```python
import torch

def _softmax(x, axis=-1):
    return torch.softmax(x, dim=axis)

def _gelu(x):
    return torch.nn.functional.gelu(x, approximate='tanh')

def _silu(x):
    return torch.nn.functional.silu(x)

def _sigmoid(x):
    return torch.sigmoid(x)

def _layernorm(x, axis=-1, eps=1e-05):
    m = x.mean(dim=axis, keepdim=True)
    v = x.var(dim=axis, keepdim=True, unbiased=False)
    return (x - m) / torch.sqrt(v + eps)

def _scatter_add(tgt, idx, src, axis=0):
    return tgt.clone().index_add_(axis, idx, src)

def _segment_sum(src, seg, n):
    out = torch.zeros((n,) + src.shape[1:], dtype=src.dtype)
    return out.index_add_(0, seg, src)

def _pad(x, pw):
    flat = tuple((v for pair in reversed(pw) for v in pair))
    return torch.nn.functional.pad(x, flat)
kernel_name = 'adaLN_cond__mha_block_cached__glu_gated_swiglu__prompt'

def setup_inputs():

    _w = lambda a: (lambda t: t.to(torch.bfloat16) if t.is_floating_point() else t)(torch.as_tensor(a))

    def _A_setup():
        B, Sq, D = (1, 2048, 512)
        H, Sk, Dh = (32, 2048, 128)
        return {'x': _w((lambda *s: torch.randn(*s, dtype=torch.bfloat16) * 0.1)(B, Sq, D)), 'k_cache': _w((lambda *s: torch.randn(*s, dtype=torch.bfloat16) * 0.8)(B, H, Sk, Dh)), 'v_cache': _w((lambda *s: torch.randn(*s, dtype=torch.bfloat16) * 3.2)(B, H, Sk, Dh)), 'wq': _w((lambda *s: torch.randn(*s, dtype=torch.bfloat16) * 0.8)(D, H * Dh) * D ** (-0.5)), 'wo': _w((lambda *s: torch.randn(*s, dtype=torch.bfloat16) * 3.2)(H * Dh, D) * (H * Dh) ** (-0.5))}
    _A_in = _A_setup()

    def _B_setup():
        B, S, D, F = (1, 2048, 512, 1792)
        return {'x': _w((lambda *s: torch.randn(*s, dtype=torch.bfloat16) * 0.1)(B, S, D)), 'w1': _w((lambda *s: torch.randn(*s, dtype=torch.bfloat16) * 3.2)(D, F) * (2.0 / D) ** 0.5), 'w3': _w((lambda *s: torch.randn(*s, dtype=torch.bfloat16) * 3.2)(D, F) * (2.0 / D) ** 0.5), 'w2': _w((lambda *s: torch.randn(*s, dtype=torch.bfloat16) * 3.2)(F, D) * (2.0 / F) ** 0.5)}
    _B_in = _B_setup()
    return {'A_x': _A_in['x'], 'A_k_cache': _A_in['k_cache'], 'A_v_cache': _A_in['v_cache'], 'A_wq': _A_in['wq'], 'A_wo': _A_in['wo'], 'B_x': _B_in['x'], 'B_w1': _B_in['w1'], 'B_w3': _B_in['w3'], 'B_w2': _B_in['w2'], 'c': _w((lambda *s: torch.randn(*s, dtype=torch.bfloat16) * 0.8)(1, 512) * 8.0), 'w_mod': _w((lambda *s: torch.randn(*s, dtype=torch.bfloat16) * 0.8)(512, 6 * 512) * 512 ** (-0.5) * 8.0)}

def reference(A_x, A_k_cache, A_v_cache, A_wq, A_wo, B_x, B_w1, B_w3, B_w2, c, w_mod):

    def _A_ref(x, k_cache, v_cache, wq, wo):
        B, Sq, D = x.shape
        H, Dh = (32, 128)
        q = (lambda x, *d: x.permute(*d))((x @ wq).reshape(B, Sq, H, Dh), 0, 2, 1, 3)
        scores = torch.einsum('bhqd,bhkd->bhqk', q, k_cache) * Dh ** (-0.5)
        p = _softmax(scores, axis=-1)
        o = torch.einsum('bhqk,bhkd->bhqd', p, v_cache)
        return (lambda x, *d: x.permute(*d))(o, 0, 2, 1, 3).reshape(B, Sq, H * Dh) @ wo

    def _B_ref(x, w1, w3, w2):
        gate = torch.einsum('bsd,df->bsf', x, w1)
        up = torch.einsum('bsd,df->bsf', x, w3)
        h = _silu(gate) * up
        out = torch.einsum('bsf,fd->bsd', h, w2)
        return out
    x = A_x
    mod = (_silu(c) @ w_mod).reshape(c.shape[0], 6, 1, -1)
    sa, ca, ga, sb, cb, gb = (mod[:, 0].clone(), mod[:, 1].clone(), mod[:, 2].clone(), mod[:, 3].clone(), mod[:, 4].clone(), mod[:, 5].clone())
    h = _layernorm(x, axis=-1) * (1 + ca) + sa
    x = x + ga * _A_ref(h, A_k_cache, A_v_cache, A_wq, A_wo)
    h = _layernorm(x, axis=-1) * (1 + cb) + sb
    x = x + gb * _B_ref(h, B_w1, B_w3, B_w2)
    return x
```

```python
import re

TRANS = ('v_exp_f32', 'v_log_f32', 'v_rcp_f32', 'v_rsq_f32', 'v_sqrt_f32', 'v_sin_f32', 'v_cos_f32',
         'v_exp_f16', 'v_rcp_f16', 'v_rcp_iflag_f32')

_reg_re = re.compile(r'^(-|\|)?(abs\()?([vas])(\d+|\[(\d+):(\d+)\])\)?\|?$')


def parse_reg(tok):
    tok = tok.strip()
    if tok in ('vcc',):
        return {('s', 'vcc')}
    if tok in ('vcc_lo', 'vcc_hi'):
        return {('s', 'vcc')}
    if tok == 'exec':
        return {('s', 'exec')}
    if tok == 'm0':
        return {('s', 'm0')}
    if tok == 'scc':
        return {('s', 'scc')}
    m = _reg_re.match(tok)
    if not m:
        return set()
    t = m.group(3)
    if m.group(5) is not None:
        return {(t, i) for i in range(int(m.group(5)), int(m.group(6)) + 1)}
    return {(t, int(m.group(4)))}


def split_ops(s):
    out = []
    depth = 0
    cur = ''
    for ch in s:
        if ch in '[(':
            depth += 1
        if ch in '])':
            depth -= 1
        if ch == ',' and depth == 0:
            out.append(cur.strip())
            cur = ''
        else:
            cur += ch
    if cur.strip():
        out.append(cur.strip())
    return out


class Ins:
    __slots__ = ('text', 'op', 'ops', 'mods', 'kind', 'dst', 'src', 'tag', 'srcC', 'srcAB', 'passes', 'target',
                 'is_label', 'nop', 'dpp', 'lds_dma', 'store_data', 'comment')

    def __init__(self, text, tag=None):
        self.text = text
        self.tag = tag
        self.is_label = text.endswith(':')
        self.dst = set(); self.src = set(); self.srcC = set(); self.srcAB = set()
        self.kind = None; self.passes = 0; self.target = None; self.nop = 0
        self.dpp = False; self.lds_dma = False; self.store_data = set()
        if self.is_label or text.startswith('.'):
            self.op = None
            self.kind = 'label' if self.is_label else 'dir'
            return
        parts = text.split(None, 1)
        op = parts[0]
        self.op = op
        rest = parts[1] if len(parts) > 1 else ''
        ops = split_ops(rest)
        mods = ''
        if ops:
            lp = ops[-1].split(None, 1)
            if len(lp) > 1:
                ops[-1] = lp[0]; mods = lp[1]
        self.ops = ops; self.mods = mods
        R = [parse_reg(o) for o in ops]
        if op.startswith('v_mfma'):
            self.kind = 'mfma'
            self.dst = R[0]; self.srcAB = R[1] | R[2]; self.srcC = R[3]; self.src = self.srcAB | self.srcC
            self.passes = 8 if '32x32x16' in op else 4
        elif op.startswith('v_'):
            self.kind = 'valu'
            base = op.replace('_e32', '').replace('_e64', '').replace('_dpp', '').replace('_sdwa', '')
            self.dpp = '_dpp' in op or 'quad_perm' in mods or 'row_' in mods
            if base.startswith('v_cmp'):
                self.dst = R[0]; self.src = set().union(*R[1:])
            elif base in ('v_add_co_u32', 'v_sub_co_u32', 'v_addc_co_u32', 'v_subb_co_u32'):
                self.dst = R[0] | R[1]; self.src = set().union(*R[2:])
            elif base.startswith('v_permlane') and 'swap' in base:
                self.dst = R[0] | R[1]; self.src = R[0] | R[1]
            elif base in ('v_fmac_f32', 'v_mac_f32', 'v_dot2c_f32_bf16'):
                self.dst = R[0]; self.src = set().union(*R)
            elif base == 'v_nop':
                pass
            else:
                self.dst = R[0]; self.src = set().union(*R[1:]) if len(R) > 1 else set()
                if base == 'v_cndmask_b32' and len(ops) == 3:
                    self.src |= {('s', 'vcc')}
                if self.dpp and 'bound_ctrl' not in mods:
                    self.src |= R[0]
            self.op = base
        elif op.startswith('ds_'):
            self.kind = 'ds'
            if op.startswith('ds_read') or op.startswith('ds_bpermute') or op.startswith('ds_swizzle') or op.startswith('ds_permute'):
                self.dst = R[0]; self.src = set().union(*R[1:])
            else:
                self.src = set().union(*R)
        elif op.startswith('buffer_') or op.startswith('global_'):
            self.kind = 'vmem'
            allm = ' ' + mods + ' '
            if ' lds ' in allm or '_lds_' in op:
                self.lds_dma = True
                self.src = set().union(*R) | {('s', 'm0')}
            elif 'load' in op:
                self.dst = R[0]; self.src = set().union(*R[1:])
            elif 'atomic' in op:
                self.src = set().union(*R)
                if ' sc0 ' in allm:
                    self.dst = R[0]
            elif op in ('buffer_wbl2', 'buffer_inv'):
                pass
            else:
                self.src = set().union(*R)
                data = R[0] if op.startswith('buffer_') else R[1]
                if 'x4' in op or 'x3' in op:
                    self.store_data = data
        elif op.startswith('s_'):
            self.kind = 'salu'
            if op == 's_nop':
                self.nop = int(ops[0], 0)
            elif op == 's_waitcnt':
                self.kind = 'wait'
            elif op == 's_barrier':
                self.kind = 'barrier'
            elif op.startswith('s_cbranch') or op == 's_branch':
                self.kind = 'branch'; self.target = ops[0]
                if 'vcc' in op: self.src = {('s', 'vcc')}
                if 'exec' in op: self.src = {('s', 'exec')}
            elif op == 's_call_b64':
                self.kind = 'call'; self.target = ops[1]; self.dst = R[0]
            elif op == 's_setpc_b64':
                self.kind = 'ret'; self.src = R[0]
            elif op == 's_endpgm':
                self.kind = 'end'
            elif op.startswith('s_load') or op.startswith('s_buffer_load') or op in ('s_memtime', 's_memrealtime'):
                self.kind = 'smem'; self.dst = R[0]; self.src = set().union(*R[1:]) if len(R) > 1 else set()
            elif op.startswith('s_cmp') or op in ('s_setprio', 's_sleep', 's_bitcmp1_b32', 's_bitcmp0_b32'):
                self.src = set().union(*R) if R else set()
            else:
                self.dst = R[0] if R else set(); self.src = set().union(*R[1:]) if len(R) > 1 else set()
                if 'saveexec' in op:
                    self.dst |= {('s', 'exec')}
        else:
            raise ValueError('unknown instr: ' + text)

    def states(self):
        if self.kind in ('label', 'dir'):
            return 0
        if self.op == 's_nop':
            return self.nop + 1
        return 1


def _vregs(s):
    return {r for r in s if r[0] in 'va'}


def _sregs(s):
    return {r for r in s if r[0] == 's'}


def required(p, c):
    need = 0
    if p.kind == 'valu':
        pv = _vregs(p.dst); ps = _sregs(p.dst)
        if pv:
            if c.kind == 'mfma' and pv & c.src:
                need = max(need, 2)
            if c.kind == 'valu':
                if c.op in ('v_readlane_b32', 'v_readfirstlane_b32') and pv & c.src:
                    need = max(need, 1)
                if c.dpp and pv & c.src:
                    need = max(need, 2)
                if c.op.startswith('v_permlane') and pv & c.src:
                    need = max(need, 2)
                if p.op in TRANS and pv & c.src:
                    need = max(need, 1)
            if p.op in TRANS and c.kind in ('ds', 'vmem') and pv & c.src:
                need = max(need, 1)
        if ps:
            if c.kind == 'valu' and ps & c.src:
                need = max(need, 2)
                if c.op in ('v_readlane_b32', 'v_writelane_b32'):
                    need = max(need, 4)
            if c.kind == 'vmem' and ps & c.src:
                need = max(need, 5)
            if c.kind in ('salu', 'branch', 'smem') and ps & c.src:
                need = max(need, 1)
    if p.kind == 'mfma':
        big = {8: 12, 4: 8}[p.passes]
        ovl = {8: 10, 4: 6}[p.passes]
        if c.kind == 'mfma':
            if p.dst & c.srcAB:
                need = max(need, big)
            if p.dst & c.srcC:
                if not (p.dst == c.srcC and p.passes == c.passes):
                    need = max(need, ovl)
            elif p.dst & c.dst:
                need = max(need, ovl)
        elif c.kind in ('valu', 'ds', 'vmem'):
            if p.dst & (c.src | c.dst):
                need = max(need, big)
            if c.kind == 'valu' and p.srcC & c.dst:
                need = max(need, {8: 7, 4: 3}[p.passes])
    if p.kind == 'salu' and ('s', 'm0') in p.dst and c.lds_dma:
        need = max(need, 1)
    if p.kind == 'vmem' and p.store_data:
        if c.kind == 'valu' and p.store_data & c.dst:
            need = max(need, 2)
        elif c.kind in ('ds', 'vmem', 'mfma') and p.store_data & c.dst:
            need = max(need, 1)
    return need


class Kern:
    def __init__(self, name):
        self.name = name
        self.ins = []
        self.vmq = []
        self.lgq = []
        self.uid = 0

    def e(self, text, tag=None):
        i = Ins(text.strip(), tag)
        self.ins.append(i)
        if i.kind == 'vmem':
            self.vmq.append(tag)
        elif i.kind == 'ds':
            self.lgq.append(tag)
        elif i.kind == 'smem':
            self.lgq.append('SMEM')
        elif i.kind == 'wait':
            m = re.search(r'vmcnt\((\d+)\)', text)
            if m:
                n = int(m.group(1)); self.vmq = self.vmq[len(self.vmq) - n:] if n < len(self.vmq) else self.vmq
                if n == 0: self.vmq = []
            m = re.search(r'lgkmcnt\((\d+)\)', text)
            if m:
                n = int(m.group(1)); self.lgq = self.lgq[len(self.lgq) - n:] if n < len(self.lgq) else self.lgq
                if n == 0: self.lgq = []
        return i

    def label(self, name):
        self.ins.append(Ins(name + ':'))

    def newlabel(self, base):
        self.uid += 1
        return f'{self.name}_{base}_{self.uid}'

    def _cnt(self, q, tags, mx):
        idx = -1
        for i, t in enumerate(q):
            if t in tags:
                idx = i
        if idx < 0:
            return None
        return min(len(q) - 1 - idx, mx)

    def wait_text(self, vm=(), lg=()):
        parts = []
        n = self._cnt(self.vmq, set(vm), 63) if vm else None
        if n is not None:
            parts.append(f'vmcnt({n})')
        if lg:
            n = self._cnt(self.lgq, set(lg), 15)
            if n is not None:
                if 'SMEM' in self.lgq:
                    n = 0
                parts.append(f'lgkmcnt({n})')
        return 's_waitcnt ' + ' '.join(parts) if parts else None

    def wait(self, vm=(), lg=()):
        t = self.wait_text(vm, lg)
        if t:
            self.e(t)

    def fix_hazards(self, verbose=False):
        ins = self.ins
        labels = {i.text[:-1]: n for n, i in enumerate(ins) if i.kind == 'label'}
        preds = [[] for _ in ins]
        for n, i in enumerate(ins):
            if n + 1 < len(ins) and not (i.op == 's_branch' or i.kind in ('end', 'ret', 'call')):
                preds[n + 1].append(n)
            if i.kind in ('branch', 'call') and i.target in labels:
                preds[labels[i.target]].append(n)
        rets = [n for n, i in enumerate(ins) if i.kind == 'ret']
        for n, i in enumerate(ins):
            if i.kind == 'call' and n + 1 < len(ins):
                preds[n + 1] += rets
        pad = [0] * len(ins)
        changed = True
        while changed:
            changed = False
            for n, c in enumerate(ins):
                if c.kind not in ('valu', 'mfma', 'ds', 'vmem', 'salu', 'branch', 'smem'):
                    continue
                worst = 0
                stack = [(p, pad[n]) for p in preds[n]]
                seen = {}
                while stack:
                    p, dist = stack.pop()
                    if p in seen and seen[p] <= dist:
                        continue
                    seen[p] = dist
                    pi = ins[p]
                    if pi.kind in ('valu', 'mfma', 'salu', 'vmem'):
                        r = required(pi, c)
                        if r > dist:
                            worst = max(worst, r - dist)
                            if verbose:
                                print(f'hazard {r - dist} nop(s): [{pi.text}] -> [{c.text}]')
                    nd = dist + pi.states() + pad[p]
                    if nd < 20:
                        stack += [(q, nd) for q in preds[p]]
                if worst:
                    pad[n] += worst
                    changed = True
        out = []
        for n, i in enumerate(ins):
            k = pad[n]
            while k > 0:
                m = min(k, 16)
                out.append(Ins(f's_nop {m - 1}'))
                k -= m
            out.append(i)
        self.ins = out
        return sum(pad)

    def verify_path(self, taken):
        ins = self.ins
        labels = {i.text[:-1]: n for n, i in enumerate(ins) if i.kind == 'label'}
        taken = dict(taken)
        vm = []; lg = []
        n = 0
        errs = 0
        ret = []
        steps = 0
        while n < len(ins):
            i = ins[n]
            steps += 1
            if steps > 2000000:
                raise RuntimeError('verify: runaway')
            if i.kind in ('label', 'dir'):
                n += 1; continue
            touched = i.src | i.dst
            for q, nm in ((vm, 'vm'), (lg, 'lgkm')):
                for (d, t) in q:
                    if d & touched:
                        if (i.kind == 'vmem' and nm == 'vm' or i.kind == 'ds' and nm == 'lgkm') and not (d & i.src):
                            continue
                        print(f'{self.name}: WAIT BUG [{i.text}] touches pending {nm} load [{t}]')
                        errs += 1
            if i.kind == 'vmem':
                vm.append((set(i.dst), i.text))
                if len(vm) > 63: vm.pop(0)
            elif i.kind in ('ds', 'smem'):
                lg.append((set(i.dst), i.text))
            elif i.kind == 'wait':
                m = re.search(r'vmcnt\((\d+)\)', i.text)
                if m:
                    k = int(m.group(1)); vm = vm[len(vm) - k:] if k < len(vm) else vm
                    if k == 0: vm = []
                m = re.search(r'lgkmcnt\((\d+)\)', i.text)
                if m:
                    k = int(m.group(1))
                    if any('s_load' in t or 's_mem' in t for _, t in lg) and k != 0:
                        pass
                    else:
                        lg = lg[len(lg) - k:] if k < len(lg) else lg
                        if k == 0: lg = []
            if i.kind == 'end':
                break
            if i.kind == 'call':
                ret.append(n + 1); n = labels[i.target]; continue
            if i.kind == 'ret':
                n = ret.pop(); continue
            if i.kind == 'branch':
                if i.op == 's_branch':
                    n = labels[i.target]; continue
                c = taken.get(i.target, 0)
                if isinstance(c, list):
                    go = c.pop(0) if c else False
                else:
                    go = c > 0
                    if go: taken[i.target] = c - 1
                if go:
                    n = labels[i.target]; continue
            n += 1
        return errs

    def text(self):
        out = []
        for i in self.ins:
            if i.kind in ('label', 'dir'):
                out.append(i.text)
            else:
                out.append('    ' + i.text)
        return '\n'.join(out) + '\n'

    def max_regs(self):
        mv = ma = ms = -1
        for i in self.ins:
            for (t, r) in (i.src | i.dst):
                if isinstance(r, int):
                    if t == 'v': mv = max(mv, r)
                    if t == 'a': ma = max(ma, r)
                    if t == 's': ms = max(ms, r)
        return mv, ma, ms


def vr(b, n=1):
    return f'v{b}' if n == 1 else f'v[{b}:{b + n - 1}]'


def ar(b, n=1):
    return f'a{b}' if n == 1 else f'a[{b}:{b + n - 1}]'


def sr(b, n=1):
    return f's{b}' if n == 1 else f's[{b}:{b + n - 1}]'


def descriptor(k, min_vgpr=0):
    mv, ma, ms = k.max_regs()
    arch = max(mv + 1, 4)
    acc = (arch + 3) // 4 * 4
    nfv = acc + (ma + 1) if ma >= 0 else arch
    nfv = max(nfv, min_vgpr)
    if ma < 0:
        acc = min(256, (nfv + 3) // 4 * 4)
    assert acc <= 256 and nfv <= 512, (acc, nfv)
    return f'''.amdhsa_kernel {k.name}
  .amdhsa_next_free_vgpr {nfv}
  .amdhsa_next_free_sgpr {min(102, max(ms + 1, 16))}
  .amdhsa_accum_offset {acc}
  .amdhsa_group_segment_fixed_size 0
  .amdhsa_kernarg_size 112
  .amdhsa_user_sgpr_count 2
  .amdhsa_user_sgpr_kernarg_segment_ptr 1
  .amdhsa_system_sgpr_workgroup_id_x 1
.end_amdhsa_kernel
'''
```

```python
import sys, struct, math
from asmlib import *

A_X, A_K, A_V, A_WQ, A_WO, A_BX, A_W1, A_W3, A_W2, A_C, A_WMOD, A_OUT, A_DBG, A_WS = [8 * i for i in range(14)]
WS_MOD1 = 0
WS_GA = 4096
WS_MOD2 = 8192
WS_GB = 8192 + 4096
WS_XHAT = 0x10000
WS_O = 0x400000
WS_X1 = 0x1400000
WS_ST = 0x1600000
WS_HH = 0x1800000
WS_SIZE = 0x2000000

LOG2E = 1.4426950408889634


def f32(x):
    return '0x%08x' % struct.unpack('<I', struct.pack('<f', x))[0]


def srd(k, d, lo, hi, nbytes):
    k.e(f's_mov_b32 s{d}, s{lo}')
    k.e(f's_and_b32 s{d + 1}, s{hi}, 0xffff')
    k.e(f's_mov_b32 s{d + 2}, {nbytes}')
    k.e(f's_mov_b32 s{d + 3}, 0x00020000')


def rbf(k, d, s):
    k.e(f'v_cvt_pk_bf16_f32 v{d}, 0, v{s}')


def allreduce16(k, v, t):
    for mod in ('quad_perm:[1,0,3,2]', 'quad_perm:[2,3,0,1]', 'row_half_mirror', 'row_mirror'):
        k.e(f'v_add_f32_dpp v{t}, v{v}, v{v} {mod} row_mask:0xf bank_mask:0xf')
        v, t = t, v


def gen_prep():
    k = Kern('prep_kernel')
    e = k.e
    NMOD, NLN = 96, 128
    e(f's_cmp_ge_u32 s2, {NMOD + NLN}')
    e('s_cbranch_scc1 prep_end')
    e(f's_load_dwordx2 s[4:5], s[0:1], {A_WS}')
    e(f's_load_dwordx2 s[6:7], s[0:1], {A_X}')
    e(f's_load_dwordx4 s[20:23], s[0:1], {A_C}')
    e(f's_cmp_ge_u32 s2, {NMOD}')
    e('s_cbranch_scc1 prep_ln')
    e('v_and_b32 v1, 3, v0')
    e('v_lshrrev_b32 v2, 2, v0')
    e('s_mov_b32 s3, 49152')
    e('v_mul_lo_u32 v3, v2, s3')
    e('v_lshl_add_u32 v3, v1, 4, v3')
    e('s_lshl_b32 s3, s2, 6')
    e('v_add_u32 v3, s3, v3')
    e('v_lshlrev_b32 v4, 4, v2')
    e('s_waitcnt lgkmcnt(0)')
    srd(k, 8, 20, 21, 1024)
    srd(k, 12, 22, 23, 512 * 6144)
    srd(k, 16, 4, 5, WS_SIZE)
    e('buffer_load_dwordx4 v[8:11], v4, s[8:11], 0 offen', 'c')
    for i in range(8):
        e(f's_mov_b32 s{24 + i}, {i * 6144}')
        e(f'buffer_load_dwordx4 v[{16 + 4 * i}:{19 + 4 * i}], v3, s[12:15], s{24 + i} offen', ('w', i))
    k.wait(vm=['c'])
    e(f's_mov_b32 s3, {f32(-LOG2E)}')
    for i in range(8):
        src = 8 + i // 2
        if i % 2 == 0:
            e(f'v_lshlrev_b32 v{48 + i}, 16, v{src}')
        else:
            e(f'v_and_b32 v{48 + i}, 0xffff0000, v{src}')
    for i in range(8):
        e(f'v_mul_f32 v{56 + i}, s3, v{48 + i}')
    for i in range(8):
        e(f'v_exp_f32 v{56 + i}, v{56 + i}')
    for i in range(8):
        e(f'v_add_f32 v{56 + i}, 1.0, v{56 + i}')
    for i in range(8):
        e(f'v_rcp_f32 v{56 + i}, v{56 + i}')
    for i in range(8):
        e(f'v_mul_f32 v{48 + i}, v{48 + i}, v{56 + i}')
    for i in range(8):
        rbf(k, 48 + i, 48 + i)
    for i in range(8):
        k.wait(vm=[('w', i)])
        for p in range(4):
            w = 16 + 4 * i + p
            e(f'v_lshlrev_b32 v56, 16, v{w}')
            e(f'v_and_b32 v57, 0xffff0000, v{w}')
            if i == 0:
                e(f'v_mul_f32 v{64 + 2 * p}, v48, v56')
                e(f'v_mul_f32 v{65 + 2 * p}, v48, v57')
            else:
                e(f'v_fmac_f32 v{64 + 2 * p}, v{48 + i}, v56')
                e(f'v_fmac_f32 v{65 + 2 * p}, v{48 + i}, v57')
    e('v_lshlrev_b32 v5, 5, v0')
    e('ds_write_b128 v5, v[64:67]')
    e('ds_write_b128 v5, v[68:71] offset:16')
    e('s_waitcnt lgkmcnt(0)')
    e('s_barrier')
    e('v_and_b32 v6, 31, v0')
    e('v_lshrrev_b32 v7, 5, v0')
    e('v_lshlrev_b32 v5, 10, v7')
    e('v_lshl_add_u32 v5, v6, 2, v5')
    for i in range(8):
        e(f'ds_read_b32 v{16 + i}, v5 offset:{i * 128}')
    e('s_waitcnt lgkmcnt(0)')
    for i in range(1, 8):
        e(f'v_add_f32 v16, v16, v{16 + i}')
    e('v_lshlrev_b32 v5, 2, v0')
    e('ds_write_b32 v5, v16 offset:8192')
    e('s_waitcnt lgkmcnt(0)')
    e('s_barrier')
    e('v_cmp_gt_u32 vcc, 32, v0')
    e('s_and_saveexec_b64 s[32:33], vcc')
    e('s_cbranch_execz prep_end')
    for i in range(8):
        e(f'ds_read_b32 v{16 + i}, v5 offset:{8192 + i * 128}')
    e('s_waitcnt lgkmcnt(0)')
    for i in range(1, 8):
        e(f'v_add_f32 v16, v16, v{16 + i}')
    rbf(k, 16, 16)
    e('v_add_f32 v17, 1.0, v16')
    rbf(k, 17, 17)
    e('s_lshr_b32 s24, s2, 4')
    e('s_and_b32 s25, s2, 15')
    e('s_lshl_b32 s25, s25, 5')
    e('v_add_u32 v6, s25, v0')
    e('s_cmp_ge_u32 s24, 3')
    e('s_cselect_b32 s26, 8192, 0')
    e('s_cselect_b32 s27, 3, 0')
    e('s_sub_u32 s24, s24, s27')
    e('v_lshrrev_b32 v7, 3, v6')
    e('v_lshlrev_b32 v7, 6, v7')
    e('v_and_b32 v8, 7, v6')
    e('v_lshl_add_u32 v7, v8, 2, v7')
    e('v_lshlrev_b32 v8, 2, v6')
    e('s_cmp_eq_u32 s24, 2')
    e('s_cbranch_scc1 prep_gate')
    e('s_cmp_eq_u32 s24, 1')
    e('s_cbranch_scc1 prep_scale')
    e('buffer_store_dword v16, v7, s[16:19], s26 offen offset:32')
    e('s_endpgm')
    k.label('prep_scale')
    e('buffer_store_dword v17, v7, s[16:19], s26 offen')
    e('s_endpgm')
    k.label('prep_gate')
    e('s_add_u32 s26, s26, 4096')
    e('buffer_store_dword v16, v8, s[16:19], s26 offen')
    e('s_endpgm')
    k.label('prep_ln')
    e(f's_sub_u32 s3, s2, {NMOD}')
    e('s_lshl_b32 s3, s3, 4')
    e('v_lshrrev_b32 v1, 4, v0')
    e('v_add_u32 v1, s3, v1')
    e('v_and_b32 v2, 15, v0')
    e('v_lshlrev_b32 v3, 10, v1')
    e('v_lshl_add_u32 v3, v2, 4, v3')
    e('s_waitcnt lgkmcnt(0)')
    srd(k, 8, 6, 7, 2048 * 1024)
    srd(k, 16, 4, 5, WS_SIZE)
    for j in range(4):
        e(f'buffer_load_dwordx4 v[{8 + 4 * j}:{11 + 4 * j}], v3, s[8:11], 0 offen offset:{256 * j}', ('x', j))
    e('v_lshrrev_b32 v4, 5, v1')
    e('v_lshlrev_b32 v4, 15, v4')
    e('v_lshrrev_b32 v5, 1, v2')
    e('v_lshl_add_u32 v4, v5, 10, v4')
    e('v_and_b32 v5, 1, v2')
    e('v_lshl_add_u32 v4, v5, 9, v4')
    e('v_and_b32 v5, 31, v1')
    e('v_lshl_add_u32 v4, v5, 4, v4')
    X = 32
    for j in range(4):
        k.wait(vm=[('x', j)])
        for p in range(4):
            e(f'v_lshlrev_b32 v{X + 8 * j + 2 * p}, 16, v{8 + 4 * j + p}')
            e(f'v_and_b32 v{X + 8 * j + 2 * p + 1}, 0xffff0000, v{8 + 4 * j + p}')
    e(f'v_add_f32 v24, v{X}, v{X + 1}')
    e(f'v_add_f32 v25, v{X + 2}, v{X + 3}')
    for i in range(4, 32):
        e(f'v_add_f32 v{24 + i % 2}, v{24 + i % 2}, v{X + i}')
    e('v_add_f32 v24, v24, v25')
    allreduce16(k, 24, 25)
    e(f's_mov_b32 s3, {f32(1.0 / 512)}')
    e('v_mul_f32 v24, s3, v24')
    for i in range(32):
        e(f'v_sub_f32 v{64 + i % 4}, v{X + i}, v24')
        if i < 2:
            e(f'v_mul_f32 v{26 + i}, v{64 + i % 4}, v{64 + i % 4}')
        else:
            e(f'v_fmac_f32 v{26 + i % 2}, v{64 + i % 4}, v{64 + i % 4}')
    e('v_add_f32 v26, v26, v27')
    allreduce16(k, 26, 27)
    e('v_mul_f32 v26, s3, v26')
    rbf(k, 24, 24)
    rbf(k, 26, 26)
    e(f'v_add_f32 v26, {f32(1e-5)}, v26')
    rbf(k, 26, 26)
    e('v_sqrt_f32 v26, v26')
    rbf(k, 26, 26)
    e('v_rcp_f32 v26, v26')
    e(f's_mov_b32 s24, {WS_XHAT}')
    for j in range(4):
        for i in range(8):
            r = X + 8 * j + i
            e(f'v_sub_f32 v{r}, v{r}, v24')
        for i in range(8):
            r = X + 8 * j + i
            rbf(k, r, r)
        for i in range(8):
            r = X + 8 * j + i
            e(f'v_mul_f32 v{r}, v{r}, v26')
        for i in range(8):
            r = X + 8 * j + i
            rbf(k, r, r)
        for p in range(4):
            r = X + 8 * j + 2 * p
            e(f'v_cvt_pkrtz_f16_f32 v{8 + 4 * j + p}, v{r}, v{r + 1}')
        e(f'buffer_store_dwordx4 v[{8 + 4 * j}:{11 + 4 * j}], v4, s[16:19], s24 offen')
        if j < 3:
            e(f's_add_u32 s24, s24, 8192')
    k.label('prep_end')
    e('s_endpgm')
    return k, f'grid=({NMOD + NLN},1,1) block=(256,1,1) lds=9216'


COST = {'exp': 2, 'valu': 1, 'ds': 2, 'dma': 5, 'salu': 1, 'vload': 5}
GAPCAP = 6


def schedule(k, mfmas, fixed, stream, last_gap=None, cap=GAPCAP):
    n = len(mfmas)
    if last_gap is None:
        last_gap = n - 1
    spare = []
    for g in range(n):
        c = sum(x[0] for x in fixed.get(g, []))
        spare.append(max(cap - c, 0) if g <= last_gap else 0)
    tot_spare = sum(spare)
    tot = sum(x[0] for x in stream)
    si = 0
    done = 0.0
    cum = 0
    for g in range(n):
        mfmas[g]()
        fx = fixed.get(g, [])
        cum += spare[g]
        target = tot * cum / max(tot_spare, 1)
        mine = []
        while si < len(stream) and (done + stream[si][0] * 0.5 <= target or g >= last_gap):
            mine.append(stream[si]); done += stream[si][0]; si += 1
        pre = [x for x in fx if len(x) > 2 and x[2] == 'pre']
        post = [x for x in fx if not (len(x) > 2 and x[2] == 'pre')]
        for x in pre: x[1]()
        for x in mine[:1]: x[1]()
        for x in post: x[1]()
        for x in mine[1:]: x[1]()
    assert si == len(stream)


class G256:
    pass


BIAS = 86.0
THRESH = 2.0 ** 30


def gen_attn(opts):
    k = Kern('attn_kernel')
    e = k.e
    sK, sV, sWQ, sWS = 8, 12, 16, 20
    sW, sW4K, sKoff, sVoff, sCnt, sThr, sXb, sT0, sT1, sOb = 32, 33, 34, 35, 36, 37, 38, 39, 40, 41
    sLink = 44
    S = [8, 40]; NEGM = 72; P = [104, 120]; Q = 136; ET = 200
    LS = [208, 209]; L = [210, 211]; TMP = 212
    KR = 216; VR = 224; DK = 228; DV = 232; VL16 = 233; VMD = 234; VLANE = 235
    O = 0; KF = 128; VF = 160
    LDS_K, LDS_V, LDS_MOD = 0, 65536, 131072

    e('s_cmp_ge_u32 s2, 256')
    e('s_cbranch_scc1 attn_end')
    e(f's_load_dwordx4 s[4:7], s[0:1], {A_K}')
    e(f's_load_dwordx2 s[24:25], s[0:1], {A_WQ}')
    e(f's_load_dwordx2 s[26:27], s[0:1], {A_WS}')
    e('s_and_b32 s28, s2, 7')
    e('s_lshl_b32 s28, s28, 2')
    e('s_lshr_b32 s29, s2, 3')
    e('s_and_b32 s30, s29, 3')
    e('s_add_u32 s28, s28, s30')
    e('s_lshr_b32 s29, s29, 2')
    e('v_lshrrev_b32 v1, 6, v0')
    e(f'v_and_b32 v{VLANE}, 63, v0')
    e(f'v_readfirstlane_b32 s{sW}, v1')
    e(f'v_lshlrev_b32 v{VL16}, 4, v{VLANE}')
    e(f's_lshl_b32 s{sW4K}, s{sW}, 12')
    e(f'v_lshrrev_b32 v2, 4, v{VLANE}')
    e(f'v_and_b32 v3, 15, v{VLANE}')
    e(f'v_lshrrev_b32 v4, 5, v{VLANE}')
    e(f'v_and_b32 v5, 31, v{VLANE}')
    e('v_lshlrev_b32 v6, 2, v2')
    e('v_xor_b32 v6, v6, v3')
    e('v_lshlrev_b32 v6, 4, v6')
    e(f'v_lshl_add_u32 v{DV}, v2, 8, v6')
    e(f'v_add_u32 v{DV}, s{sW4K}, v{DV}')
    e(f's_lshl_b32 s3, s{sW}, 17')
    e('v_lshl_add_u32 v7, v2, 13, v6')
    e('v_add_u32 v7, s3, v7')
    e('s_waitcnt lgkmcnt(0)')
    e('s_lshl_b32 s3, s28, 19')
    e('s_add_u32 s4, s4, s3'); e('s_addc_u32 s5, s5, 0')
    e('s_add_u32 s6, s6, s3'); e('s_addc_u32 s7, s7, 0')
    srd(k, sK, 4, 5, 524288)
    srd(k, sV, 6, 7, 524288)
    e('s_lshl_b32 s3, s28, 8')
    e('s_add_u32 s24, s24, s3'); e('s_addc_u32 s25, s25, 0')
    e(f's_mov_b32 s{sWQ}, s24'); e(f's_and_b32 s{sWQ + 1}, s25, 0xffff')
    e(f's_sub_u32 s{sWQ + 2}, {512 * 8192}, s3'); e(f's_mov_b32 s{sWQ + 3}, 0x00020000')
    srd(k, sWS, 26, 27, WS_SIZE)
    e('s_lshl_b32 s3, s29, 3')
    e(f's_lshl_b32 s{sT0}, s{sW}, 1')
    e(f's_add_u32 s3, s3, s{sT0}')
    e(f's_lshl_b32 s{sXb}, s3, 15')
    e(f's_add_u32 s{sXb}, s{sXb}, {WS_XHAT}')
    e(f's_lshl_b32 s{sOb}, s3, 18')
    e(f's_lshl_b32 s{sT0}, s28, 13')
    e(f's_add_u32 s{sOb}, s{sOb}, s{sT0}')
    e(f's_add_u32 s{sOb}, s{sOb}, {WS_O}')

    XR = 8; H = 136; SS = 152; FT = 184; WRA = 200; WF = 128
    chunk_slot = [LDS_K, LDS_K + 16384, LDS_V, LDS_K + 32768, LDS_K + 49152, LDS_V + 16384, LDS_V + 32768, LDS_V + 49152]

    def wq_dma(c):
        out = []
        out.append((1, lambda: e(f's_add_u32 m0, s{sW4K}, {chunk_slot[c]}')))
        for p in range(4):
            out.append((1, lambda p=p: e(f's_mov_b32 s{sT0}, {c * 524288 + p * (32768 - 1024)}')))
            out.append((COST['dma'], lambda p=p: e(f'buffer_load_dwordx4 v7, s[{sWQ}:{sWQ + 3}], s{sT0} offen offset:{p * 1024} lds', ('wq', c))))
        return out

    def xreg(ks, qb):
        return XR + (((ks // 4) % 4) * 8 + (ks % 4) * 2 + qb) * 4

    def x_load(ks, qb):
        c = ks // 4
        out = []
        out.append((1, lambda: e(f's_add_u32 s{sT1}, s{sXb}, {qb * 32768 + c * 4096}')))
        r = xreg(ks, qb)
        out.append((COST['vload'], lambda: e(f'buffer_load_dwordx4 v[{r}:{r + 3}], v{VL16}, s[{sWS}:{sWS + 3}], s{sT1} offen offset:{(ks % 4) * 1024}', ('x', ks))))
        return out

    e(f's_lshl_b32 s{sT0}, s{sW}, 10')
    e(f's_add_u32 m0, s{sT0}, {LDS_MOD}')
    e(f's_add_u32 s{sT0}, s{sT0}, {WS_MOD1}')
    e(f'buffer_load_dwordx4 v{VL16}, s[{sWS}:{sWS + 3}], s{sT0} offen lds', ('wq', 0))
    for c in range(4):
        for _, f in wq_dma(c): f()
        for ks in range(4 * c, 4 * c + 4):
            for qb in range(2):
                for _, f in x_load(ks, qb): f()
    e('v_lshrrev_b32 v236, 2, v3')
    e(f'v_and_b32 v237, 3, v{VLANE}')
    e('v_and_b32 v238, 1, v2')
    e('v_lshlrev_b32 v238, 5, v238')
    e('v_and_b32 v239, 1, v237')
    e('v_lshl_add_u32 v238, v239, 4, v238')
    e('v_lshrrev_b32 v239, 1, v237')
    e('v_lshl_add_u32 v238, v239, 3, v238')
    e('v_lshl_add_u32 v238, v236, 8, v238')
    for db in range(4):
        e(f'v_xor_b32 v239, {db}, v236')
        e(f'v_lshl_add_u32 v239, v239, 6, v238')
        e(f'v_lshl_add_u32 v{WRA + db}, v4, 11, v239')
        e(f'v_add_u32 v{WRA + 4 + db}, {LDS_V}, v{WRA + db}')
        e(f'v_lshl_add_u32 v{VR + db}, v4, 10, v239')
        e(f'v_add_u32 v{VR + db}, {LDS_V}, v{VR + db}')
    for ks in range(8):
        e(f'v_add_u32 v239, {2 * ks}, v4')
        e('v_xor_b32 v239, v239, v3')
        e('v_lshlrev_b32 v239, 4, v239')
        e(f'v_lshl_add_u32 v{KR + ks}, v5, 8, v239')
    for p in range(4):
        e(f'v_add_u32 v239, {4 * p}, v2')
        e('v_xor_b32 v239, v239, v3')
        e('v_lshlrev_b32 v239, 4, v239')
        e('v_lshl_add_u32 v239, v2, 8, v239')
        e(f'v_add_u32 v{DK + p}, s{sW4K}, v239')
    e(f'v_lshlrev_b32 v{VMD}, 6, v4')
    e(f'v_add_u32 v{VMD}, {LDS_MOD}, v{VMD}')
    e(f's_mov_b32 s{sThr}, {f32(THRESH)}')

    def w_reads(ks):
        c = ks // 4
        slot = chunk_slot[c]
        base = WRA + 4 if slot >= LDS_V else WRA
        off0 = (slot % 65536) + (ks % 4) * 16 * 256
        out = []
        for db in range(4):
            for t in range(2):
                r = WF + (ks % 2) * 16 + db * 4 + t * 2
                out.append((COST['ds'], lambda r=r, db=db, t=t: e(f'ds_read_b64_tr_b16 a[{r}:{r + 1}], v{base + db} offset:{off0 + t * 1024}', ('w', ks))))
        return out

    def ss_reads(ks):
        out = []
        for j in range(4):
            r = SS + (ks % 2) * 16 + 4 * j
            out.append((COST['ds'], lambda r=r, j=j: e(f'ds_read_b128 v[{r}:{r + 3}], v{VMD} offset:{ks * 128 + j * 16}', ('ss', ks))))
        return out

    def xform(ks):
        out = []
        sb = SS + (ks % 2) * 16
        first = [True]

        def w0():
            k.wait(vm=[('x', ks)], lg=[('ss', ks)])
        out.append((1, w0))
        for qb in range(2):
            x = xreg(ks, qb)
            for p in range(4):
                t = FT + (qb * 4 + p) * 2
                out.append((1, lambda x=x, p=p, t=t: e(f'v_fma_mix_f32 v{t}, v{x + p}, v{sb + 2 * p}, v{sb + 8 + 2 * p} op_sel_hi:[1,0,0]')))
                out.append((1, lambda x=x, p=p, t=t: e(f'v_fma_mix_f32 v{t + 1}, v{x + p}, v{sb + 2 * p + 1}, v{sb + 8 + 2 * p + 1} op_sel:[1,0,0] op_sel_hi:[1,0,0]')))
                h = H + (ks % 2) * 8 + qb * 4 + p
                out.append((1, lambda t=t, h=h: e(f'v_cvt_pk_bf16_f32 v{h}, v{t}, v{t + 1}')))
        return out

    def chunk_barrier(c):
        def f():
            k.wait(vm=[('wq', c)])
            e('s_barrier')
        return (2, f)

    def kv_dma(which, tile):
        out = []
        slot = tile % 4
        if which == 'K':
            out.append((1, lambda: e(f's_add_u32 m0, s{sW4K}, {LDS_K + slot * 16384}')))
            out.append((1, lambda: e(f's_mov_b32 s{sT0}, {tile * 16384}')))
            for p in range(4):
                out.append((COST['dma'], lambda p=p: e(f'buffer_load_dwordx4 v{DK + p}, s[{sK}:{sK + 3}], s{sT0} offen offset:{p * 1024} lds', ('K', tile))))
        else:
            out.append((1, lambda: e(f's_add_u32 m0, s{sW4K}, {LDS_V + slot * 16384}')))
            out.append((1, lambda: e(f's_mov_b32 s{sT0}, {tile * 16384}')))
            for p in range(4):
                out.append((COST['dma'], lambda p=p: e(f'buffer_load_dwordx4 v{DV}, s[{sV}:{sV + 3}], s{sT0} offen offset:{p * 1024} lds', ('V', tile))))
        return out

    chunk_barrier(0)[1]()
    for _, f in ss_reads(0) + w_reads(0) + ss_reads(1): f()
    for _, f in xform(0): f()
    for ks in range(32):
        mf = []
        for db in range(4):
            for qb in range(2):
                def m(db=db, qb=qb):
                    if db == 0 and qb == 0:
                        k.wait(lg=[('w', ks)])
                    acc = O + (db * 2 + qb) * 16
                    wf = WF + (ks % 2) * 16 + db * 4
                    h = H + (ks % 2) * 8 + qb * 4
                    c = '0' if ks == 0 else ar(acc, 16)
                    e(f'v_mfma_f32_32x32x16_bf16 {ar(acc, 16)}, {ar(wf, 4)}, {vr(h, 4)}, {c}')
                mf.append(m)
        st = []
        if ks + 1 < 32:
            if (ks + 1) % 4 == 0:
                st.append(chunk_barrier((ks + 1) // 4))
            wr = w_reads(ks + 1)
            xf = xform(ks + 1)
            while wr or xf:
                if wr: st.append(wr.pop(0))
                for _ in range(3):
                    if xf: st.append(xf.pop(0))
        if ks + 2 < 32:
            st += ss_reads(ks + 2)
        if ks + 16 < 32:
            if ks % 4 == 0:
                st += wq_dma(ks // 4 + 4)
            st += x_load(ks + 16, 0) + x_load(ks + 16, 1)
        if ks == 16: st += kv_dma('K', 0)
        if ks == 20: st += kv_dma('K', 1)
        if ks == 24: st += kv_dma('V', 0)
        schedule(k, mf, {}, st)

    cq = LOG2E / math.sqrt(128.0)
    e(f's_mov_b32 s3, {f32(cq)}')
    k.wait(vm=[('K', 0)])
    e('s_barrier')

    def k_read(blk, ks):
        tile = blk // 2
        off = LDS_K + (tile % 4) * 16384 + (blk % 2) * 8192
        r = KF + 4 * ks
        return lambda: e(f'ds_read_b128 a[{r}:{r + 3}], v{KR + ks} offset:{off}', ('kf', ks))

    def v_read(blk, i):
        u, db, t = i // 8, (i // 2) % 4, i % 2
        tile = blk // 2
        off = (tile % 4) * 16384 + ((blk % 2) * 32 + 16 * u + 8 * t) * 256
        r = VF + (u * 4 + db) * 4 + 2 * t
        return lambda: e(f'ds_read_b64_tr_b16 a[{r}:{r + 1}], v{VR + db} offset:{off}', ('vf', i))

    for ks in range(8):
        k_read(0, ks)()
    for _, f in kv_dma('K', 2): f()
    for db in range(4):
        for qb in range(2):
            acc = O + (db * 2 + qb) * 16
            for i in range(16):
                e(f'v_accvgpr_read_b32 v{8 + i}, a{acc + i}')
            for i in range(16):
                e(f'v_mul_f32 v{8 + i}, s3, v{8 + i}')
            for i in range(8):
                u = i // 4
                e(f'v_cvt_pk_bf16_f32 v{Q + (qb * 8 + 2 * db + u) * 4 + i % 4}, v{8 + 2 * i}, v{9 + 2 * i}')
    for _, f in kv_dma('V', 1): f()

    def qk_mfmas(blk, czero=False):
        out = []
        for ks in range(8):
            for qb in range(2):
                def m(ks=ks, qb=qb):
                    if qb == 0 and ks == 0:
                        k.wait(lg=[('kf', i) for i in range(4)])
                    if qb == 0 and ks == 4:
                        k.wait(lg=[('kf', i) for i in range(8)])
                    d = S[blk % 2] + 16 * qb
                    if ks == 0:
                        c = '0' if czero else vr(NEGM + 16 * qb, 16)
                    else:
                        c = vr(d, 16)
                    e(f'v_mfma_f32_32x32x16_bf16 {vr(d, 16)}, {ar(KF + 4 * ks, 4)}, {vr(Q + (qb * 8 + ks) * 4, 4)}, {c}')
                out.append(m)
        return out

    def pv_mfmas(blk, czero=False):
        out = []
        for u in range(2):
            for db in range(4):
                for qb in range(2):
                    def m(u=u, db=db, qb=qb):
                        if qb == 0 and db == 0:
                            k.wait(lg=[('vf', i) for i in range(8 * u + 8)])
                        acc = O + (db * 2 + qb) * 16
                        c = '0' if (czero and u == 0) else ar(acc, 16)
                        e(f'v_mfma_f32_32x32x16_bf16 {ar(acc, 16)}, {ar(VF + (u * 4 + db) * 4, 4)}, {vr(P[blk % 2] + (qb * 2 + u) * 4, 4)}, {c}')
                    out.append(m)
        return out

    def softmax_stream(blk):
        sb = S[blk % 2]; pb = P[blk % 2]
        items = []
        pend = []
        n = 0
        for qb in range(2):
            for i in range(8):
                t = ET + (n % 4) * 2
                r = sb + qb * 16 + 2 * i
                a = [(COST['exp'], lambda t=t, r=r: e(f'v_exp_f32 v{t}, v{r}')),
                     (COST['exp'], lambda t=t, r=r: e(f'v_exp_f32 v{t + 1}, v{r + 1}'))]
                if i == 0:
                    c = [(1, lambda t=t, qb=qb: e(f'v_add_f32 v{LS[qb]}, v{t}, v{t + 1}')), None]
                else:
                    c = [(1, lambda t=t, qb=qb: e(f'v_add_f32 v{LS[qb]}, v{LS[qb]}, v{t}')),
                         (1, lambda t=t, qb=qb: e(f'v_add_f32 v{LS[qb]}, v{LS[qb]}, v{t + 1}'))]
                pd = pb + (qb * 2 + i // 4) * 4 + i % 4
                c.append((1, lambda t=t, pd=pd: e(f'v_cvt_pk_bf16_f32 v{pd}, v{t}, v{t + 1}')))
                items.append(a[0])
                if pend and pend[0]: items.append(pend[0])
                items.append(a[1])
                for x in pend[1:]:
                    if x: items.append(x)
                pend = c
                n += 1
        for x in pend:
            if x: items.append(x)
        return items

    stubs = []

    def check_items(blk):
        lab = k.newlabel('slow'); ret = k.newlabel('ret')
        stubs.append((lab, ret, blk % 2))

        def br():
            e(f's_cbranch_vccnz {lab}')
            k.label(ret)
        return [(1, lambda: e(f'v_max_f32 v{TMP}, v{LS[0]}, v{LS[1]}')),
                (1, lambda: e(f'v_cmp_lt_f32 vcc, s{sThr}, v{TMP}')),
                (1, br),
                (1, lambda: e(f'v_add_f32 v{L[0]}, v{L[0]}, v{LS[0]}')),
                (1, lambda: e(f'v_add_f32 v{L[1]}, v{L[1]}, v{LS[1]}'))]

    mf = qk_mfmas(0, czero=True)
    fx = {}
    for ks in range(8):
        fx.setdefault(min(2 * ks + 2, 15), []).append((COST['ds'], k_read(1, ks)))
    schedule(k, mf, fx, [])
    for qb in range(2):
        sb = S[0] + 16 * qb
        e(f'v_max3_f32 v{TMP}, v{sb}, v{sb + 1}, v{sb + 2}')
        for i in range(3, 15, 2):
            e(f'v_max3_f32 v{TMP}, v{TMP}, v{sb + i}, v{sb + i + 1}')
        e(f'v_max_f32 v{TMP}, v{TMP}, v{sb + 15}')
        e(f'v_mov_b32 v{TMP + 1}, v{TMP}')
        e(f'v_permlane32_swap_b32 v{TMP}, v{TMP + 1}')
        e(f'v_max_f32 v{TMP}, v{TMP}, v{TMP + 1}')
        e(f'v_add_f32 v{TMP}, {f32(BIAS)}, v{TMP}')
        e(f'v_sub_f32 v{NEGM + 16 * qb}, 0, v{TMP}')
        for i in range(1, 16):
            e(f'v_mov_b32 v{NEGM + 16 * qb + i}, v{NEGM + 16 * qb}')
        for i in range(16):
            e(f'v_sub_f32 v{sb + i}, v{sb + i}, v{TMP}')
        e(f'v_mov_b32 v{L[qb]}, 0')
    e(f's_mov_b32 s{sKoff}, {3 * 16384}')
    e(f's_mov_b32 s{sVoff}, {2 * 16384}')
    e(f's_mov_b32 s{sCnt}, 8')

    def step(b, do_qk=True, do_sm=True, do_pv=True, pv_zero=False, do_kread=True, do_dma=True):
        mf = []
        fx = {}
        nq = 0
        if do_qk:
            mf += qk_mfmas(b + 1); nq = 16
        if do_pv:
            mf += pv_mfmas(b - 1, czero=pv_zero)
        n = len(mf)
        if do_pv:
            if do_qk:
                for i in range(16):
                    fx.setdefault(i, []).append((COST['ds'], v_read(b - 1, i)))
            else:
                for i in range(16):
                    v_read(b - 1, i)()
        base = nq if do_pv else 0
        ph2 = n - base if do_pv else n
        T = b // 2 + 1
        if b % 2 == 0 and do_kread:
            def bar():
                e('s_waitcnt vmcnt(8)')
                e('s_barrier')
            g = (base - 1) if do_pv else 0
            fx.setdefault(g, []).append((2, bar))
        if do_kread:
            for ks in range(8):
                if do_pv:
                    g = base + 2 * ks
                else:
                    g = min(2 * ks + 2, 15)
                fx.setdefault(g, []).append((COST['ds'], k_read(b + 2, ks)))
        if do_dma:
            isK = (b % 2 == 0)
            I = (b + 2) // 2 if isK else (b + 1) // 2
            if isK:
                slot = LDS_K + ((I + 2) % 4) * 16384; so = sKoff
            else:
                slot = LDS_V + ((I + 1) % 4) * 16384; so = sVoff
            gs = [base + 1 + 4 * p for p in range(4)] if do_pv else [1 + 4 * p for p in range(4)]
            fx.setdefault(gs[0], []).append((1, lambda: e(f's_add_u32 m0, s{sW4K}, {slot}'), 'pre'))
            for p in range(4):
                va = DK + p if isK else DV
                sd = sK if isK else sV
                fx.setdefault(gs[p], []).append((COST['dma'], lambda p=p, va=va, sd=sd: e(
                    f'buffer_load_dwordx4 v{va}, s[{sd}:{sd + 3}], s{so} offen offset:{p * 1024} lds', 'kv')))
            fx.setdefault(gs[3] + 1, []).append((1, lambda: e(f's_add_u32 s{so}, s{so}, 16384')))
        st = []
        if do_sm:
            st = softmax_stream(b)
        schedule(k, mf, fx, st, last_gap=n - 2)
        if do_sm:
            for _, f in check_items(b): f()

    step(0, do_pv=False)
    step(1, pv_zero=True)
    e('s_branch attn_ent')
    e('.p2align 6')
    k.label('attn_loop')
    for pos in range(8):
        if pos == 2:
            k.label('attn_ent')
        step(8 + pos)
        if pos == 6:
            e(f's_sub_u32 s{sCnt}, s{sCnt}, 1')
            e(f's_cmp_eq_u32 s{sCnt}, 0')
            e('s_cbranch_scc1 attn_tail')
    e('s_branch attn_loop')
    k.label('attn_tail')
    k.lgq = []
    step(63, do_qk=False, do_kread=False, do_dma=False)
    step(64, do_qk=False, do_sm=False, do_kread=False, do_dma=False)

    for qb in range(2):
        e(f'v_mov_b32 v{TMP}, v{L[qb]}')
        e(f'v_permlane32_swap_b32 v{L[qb]}, v{TMP}')
        e(f'v_add_f32 v{L[qb]}, v{L[qb]}, v{TMP}')
        e(f'v_rcp_f32 v{L[qb]}, v{L[qb]}')
    n = 0
    for qb in range(2):
        e(f's_add_u32 s{sT0}, s{sOb}, {qb * 262144}')
        e(f's_add_u32 s{sT1}, s{sOb}, {qb * 262144 + 4096}')
        for db in range(4):
            for u in range(2):
                acc = O + (db * 2 + qb) * 16 + 8 * u
                t = 8 + (n % 4) * 16; n += 1
                for i in range(8):
                    e(f'v_accvgpr_read_b32 v{t + i}, a{acc + i}')
                for i in range(8):
                    e(f'v_mul_f32 v{t + i}, v{t + i}, v{L[qb]}')
                for i in range(4):
                    e(f'v_cvt_pk_bf16_f32 v{t + 8 + i}, v{t + 2 * i}, v{t + 2 * i + 1}')
                kk = 2 * db + u
                so = sT0 if kk < 4 else sT1
                e(f'buffer_store_dwordx4 v[{t + 8}:{t + 11}], v{VL16}, s[{sWS}:{sWS + 3}], s{so} offen offset:{(kk % 4) * 1024}')
    k.label('attn_end')
    e('s_endpgm')

    for lab, ret, par in stubs:
        k.label(lab)
        e(f's_call_b64 s[{sLink}:{sLink + 1}], attn_slow{par}')
        e(f's_branch {ret}')
    for par in range(2):
        k.label(f'attn_slow{par}')
        e('s_nop 15'); e('s_nop 15')
        D0 = [TMP + 2, TMP + 3]
        for qb in range(2):
            sb = S[par] + 16 * qb; sn = S[1 - par] + 16 * qb
            e(f'v_max3_f32 v{TMP}, v{sb}, v{sb + 1}, v{sb + 2}')
            for i in range(3, 15, 2):
                e(f'v_max3_f32 v{TMP}, v{TMP}, v{sb + i}, v{sb + i + 1}')
            e(f'v_max_f32 v{TMP}, v{TMP}, v{sb + 15}')
            e(f'v_mov_b32 v{TMP + 1}, v{TMP}')
            e(f'v_permlane32_swap_b32 v{TMP}, v{TMP + 1}')
            e(f'v_max_f32 v{TMP}, v{TMP}, v{TMP + 1}')
            e(f'v_add_f32 v{TMP}, {f32(BIAS)}, v{TMP}')
            e(f'v_max_f32 v{TMP}, 0, v{TMP}')
            e(f'v_sub_f32 v{TMP + 1}, 0, v{TMP}')
            e(f'v_exp_f32 v{D0[qb]}, v{TMP + 1}')
            for i in range(16):
                e(f'v_sub_f32 v{NEGM + 16 * qb + i}, v{NEGM + 16 * qb + i}, v{TMP}')
                e(f'v_sub_f32 v{sb + i}, v{sb + i}, v{TMP}')
                e(f'v_sub_f32 v{sn + i}, v{sn + i}, v{TMP}')
            e(f'v_mul_f32 v{L[qb]}, v{L[qb]}, v{D0[qb]}')
            for db in range(4):
                acc = O + (db * 2 + qb) * 16
                for i in range(16):
                    t = ET + i % 8
                    e(f'v_accvgpr_read_b32 v{t}, a{acc + i}')
                    e(f'v_mul_f32 v{t}, v{t}, v{D0[qb]}')
                    e(f'v_accvgpr_write_b32 a{acc + i}, v{t}')
        for _, f in softmax_stream(par): f()
        e('s_nop 3')
        e(f's_setpc_b64 s[{sLink}:{sLink + 1}]')
    return k, 'grid=(256,1,1) block=(256,1,1) lds=135168'


def gen_gemm64(name, which):
    k = Kern(name)
    e = k.e
    NKS = 256 if which == 'wo' else 112
    KW = NKS // 8
    D = 8 if which == 'wo' else 7
    A_W = A_WO if which == 'wo' else A_W2
    WS_XIN = WS_O if which == 'wo' else WS_HH
    sW_, sWS, sG = 8, 12, 16
    sWv, sXo, sWo, sT0, sT1, sLb, sCnt = 32, 33, 34, 35, 36, 37, 38
    ACC = 8
    XF = 72
    WFr = XF + 64
    VL16, VDW, VWR = 160, 161, 162
    e(f's_cmp_ge_u32 s2, 256')
    e(f's_cbranch_scc1 {name}_end')
    e(f's_load_dwordx2 s[4:5], s[0:1], {A_W}')
    e(f's_load_dwordx2 s[6:7], s[0:1], {A_WS}')
    e(f's_load_dwordx2 s[24:25], s[0:1], {A_X if which == "wo" else A_OUT}')
    e('s_and_b32 s28, s2, 7')
    e('s_lshl_b32 s28, s28, 2')
    e('s_lshr_b32 s29, s2, 3')
    e('s_and_b32 s30, s29, 3')
    e('s_add_u32 s28, s28, s30')
    e('s_lshr_b32 s29, s29, 2')
    e('v_lshrrev_b32 v1, 6, v0')
    e('v_and_b32 v2, 63, v0')
    e(f'v_readfirstlane_b32 s{sWv}, v1')
    e(f'v_lshlrev_b32 v{VL16}, 4, v2')
    e('v_lshrrev_b32 v3, 3, v2')
    e('v_and_b32 v4, 7, v2')
    e('v_lshlrev_b32 v5, 1, v3')
    e('v_and_b32 v5, 4, v5')
    e('v_xor_b32 v4, v4, v5')
    e('v_lshlrev_b32 v4, 4, v4')
    e(f'v_lshl_add_u32 v{VDW}, v3, 10, v4')
    e('v_lshrrev_b32 v3, 5, v2')
    e('v_bfe_u32 v4, v2, 2, 2')
    e('v_lshl_add_u32 v5, v3, 3, v4')
    e('v_lshlrev_b32 v5, 7, v5')
    e('v_bfe_u32 v6, v2, 4, 1')
    e('v_lshl_add_u32 v5, v6, 5, v5')
    e('v_and_b32 v6, 1, v2')
    e('v_lshl_add_u32 v5, v6, 4, v5')
    e('v_bfe_u32 v6, v2, 1, 1')
    e('v_lshl_add_u32 v5, v6, 3, v5')
    e(f's_mul_i32 s{sLb}, s{sWv}, {D * 2048}')
    e(f'v_add_u32 v5, s{sLb}, v5')
    e('v_lshrrev_b32 v6, 1, v4')
    e(f'v_lshl_add_u32 v{VWR}, v6, 6, v5')
    e('v_xor_b32 v6, 1, v6')
    e(f'v_lshl_add_u32 v{VWR + 1}, v6, 6, v5')
    e('s_waitcnt lgkmcnt(0)')
    srd(k, sW_, 4, 5, NKS * 16 * 1024)
    srd(k, sWS, 6, 7, WS_SIZE)
    srd(k, sG, 24, 25, 2048 * 1024)
    e(f's_mul_i32 s{sXo}, s28, {2 * NKS * 1024}')
    e(f's_mul_i32 s{sT0}, s{sWv}, {KW * 1024}')
    e(f's_add_u32 s{sXo}, s{sXo}, s{sT0}')
    e(f's_add_u32 s{sXo}, s{sXo}, {WS_XIN}')
    e(f's_add_u32 s{sT1}, s{sXo}, {NKS * 1024}')
    sXo1 = 39
    e(f's_mov_b32 s{sXo1}, s{sT1}')
    e(f's_mul_i32 s{sWo}, s{sWv}, {KW * 16 * 1024}')
    e(f's_lshl_b32 s{sT0}, s29, 7')
    e(f's_add_u32 s{sWo}, s{sWo}, s{sT0}')

    def loads(ks):
        sl = ks % D
        e(f's_add_u32 m0, s{sLb}, {sl * 2048}')
        e(f's_add_u32 s{sT0}, s{sWo}, {8192 - 1024}')
        e(f'buffer_load_dwordx4 v{VDW}, s[{sW_}:{sW_ + 3}], s{sWo} offen lds', ('w', ks))
        e(f'buffer_load_dwordx4 v{VDW}, s[{sW_}:{sW_ + 3}], s{sT0} offen offset:1024 lds', ('w', ks))
        for mb in range(2):
            r = XF + (sl * 2 + mb) * 4
            so = sXo if mb == 0 else sXo1
            e(f'buffer_load_dwordx4 v[{r}:{r + 3}], v{VL16}, s[{sWS}:{sWS + 3}], s{so} offen', ('x', ks))
        e(f's_add_u32 s{sWo}, s{sWo}, 16384')
        e(f's_add_u32 s{sXo}, s{sXo}, 1024')
        e(f's_add_u32 s{sXo1}, s{sXo1}, 1024')

    def wreads(ks):
        sl = ks % D
        k.wait(vm=[('w', ks)])
        for nb in range(2):
            for t in range(2):
                r = WFr + (ks % 2) * 8 + nb * 4 + t * 2
                e(f'ds_read_b64_tr_b16 v[{r}:{r + 1}], v{VWR + nb} offset:{sl * 2048 + t * 512}', ('wf', ks))

    def mfmas(ks):
        sl = ks % D
        k.wait(vm=[('x', ks)], lg=[('wf', ks)])
        for nb in range(2):
            for mb in range(2):
                acc = ACC + (nb * 2 + mb) * 16
                c = '0' if ks == 0 else vr(acc, 16)
                e(f'v_mfma_f32_32x32x16_bf16 {vr(acc, 16)}, {vr(WFr + (ks % 2) * 8 + nb * 4, 4)}, {vr(XF + (sl * 2 + mb) * 4, 4)}, {c}')

    for ks in range(D):
        loads(ks)
    wreads(0)
    for ks in range(KW):
        if ks + 1 < KW:
            wreads(ks + 1)
        mfmas(ks)
        if ks + D < KW:
            loads(ks + D)
    e('s_barrier')
    e(f's_lshl_b32 s{sT0}, s{sWv}, 14')
    e(f'v_add_u32 v3, s{sT0}, v{VL16}')
    for qd in range(16):
        e(f'ds_write_b128 v3, v[{ACC + 4 * qd}:{ACC + 4 * qd + 3}] offset:{qd * 1024}')
    EP = 72
    e(f's_lshr_b32 s{sT0}, s{sWv}, 2')
    e(f's_bfe_u32 s{sT1}, s{sWv}, 0x10001')
    e(f's_and_b32 s40, s{sWv}, 1')
    e('s_lshl_b32 s41, s29, 6')
    e(f's_lshl_b32 s42, s{sT0}, 5')
    e('s_add_u32 s41, s41, s42')
    e('s_lshl_b32 s42, s40, 4')
    e('s_add_u32 s41, s41, s42')
    e('s_lshl_b32 s42, s28, 6')
    e(f's_lshl_b32 s43, s{sT1}, 5')
    e('s_add_u32 s42, s42, s43')
    e('v_lshrrev_b32 v4, 5, v2')
    e('v_and_b32 v5, 31, v2')
    e('v_add_u32 v6, s42, v5')
    e('v_lshlrev_b32 v6, 10, v6')
    e('v_lshl_add_u32 v6, v4, 4, v6')
    e('s_lshl_b32 s43, s41, 1')
    e('v_add_u32 v6, s43, v6')
    e('s_lshl_b32 s43, s42, 10')
    e('s_lshl_b32 s44, s41, 6')
    e('s_add_u32 s43, s43, s44')
    e(f's_add_u32 s43, s43, {WS_X1}')
    e('v_lshlrev_b32 v7, 5, v4')
    e('s_lshl_b32 s44, s41, 2')
    e(f's_add_u32 s44, s44, {WS_GA if which == "wo" else WS_GB}')
    e(f'buffer_load_dwordx4 v[{EP}:{EP + 3}], v7, s[{sWS}:{sWS + 3}], s44 offen', 'g')
    e(f'buffer_load_dwordx4 v[{EP + 4}:{EP + 7}], v7, s[{sWS}:{sWS + 3}], s44 offen offset:16', 'g')
    if which == 'wo':
        e(f'buffer_load_dwordx4 v[{EP + 8}:{EP + 11}], v6, s[{sG}:{sG + 3}], 0 offen', 'g')
    else:
        e(f'buffer_load_dwordx4 v[{EP + 8}:{EP + 11}], v{VL16}, s[{sWS}:{sWS + 3}], s43 offen', 'g')
    e('s_waitcnt lgkmcnt(0)')
    e('s_barrier')
    e(f's_lshl_b32 s{sT0}, s{sWv}, 11')
    e(f'v_add_u32 v3, s{sT0}, v{VL16}')
    e(f'v_add_u32 v1, 0x10000, v3')
    RD = 88
    for w in range(8):
        a = 3 if w < 4 else 1
        for h in range(2):
            r = RD + (w * 2 + h) * 4
            e(f'ds_read_b128 v[{r}:{r + 3}], v{a} offset:{(w % 4) * 16384 + h * 1024}', ('r', w))
    for w in range(1, 8):
        k.wait(lg=[('r', w), ('r', 0)])
        for i in range(8):
            e(f'v_add_f32 v{RD + i}, v{RD + i}, v{RD + w * 8 + i}')
    k.wait(vm=['g'])
    for i in range(8):
        rbf(k, RD + i, RD + i)
    for i in range(8):
        e(f'v_mul_f32 v{RD + i}, v{RD + i}, v{EP + i}')
    for i in range(8):
        rbf(k, RD + i, RD + i)
    for i in range(8):
        src = EP + 8 + i // 2
        if i % 2 == 0:
            e(f'v_lshlrev_b32 v{RD + 8 + i}, 16, v{src}')
        else:
            e(f'v_and_b32 v{RD + 8 + i}, 0xffff0000, v{src}')
    for i in range(8):
        e(f'v_add_f32 v{RD + i}, v{RD + i}, v{RD + 8 + i}')
    for i in range(4):
        e(f'v_cvt_pk_bf16_f32 v{RD + 16 + i}, v{RD + 2 * i}, v{RD + 2 * i + 1}')
    if which == 'w2':
        e(f'buffer_store_dwordx4 v[{RD + 16}:{RD + 19}], v6, s[{sG}:{sG + 3}], 0 offen')
    else:
        e(f'buffer_store_dwordx4 v[{RD + 16}:{RD + 19}], v{VL16}, s[{sWS}:{sWS + 3}], s43 offen')
        for i in range(8):
            src = RD + 16 + i // 2
            if i % 2 == 0:
                e(f'v_lshlrev_b32 v{RD + i}, 16, v{src}')
            else:
                e(f'v_and_b32 v{RD + i}, 0xffff0000, v{src}')
        e(f'v_add_f32 v{RD + 8}, v{RD}, v{RD + 1}')
        e(f'v_mul_f32 v{RD + 9}, v{RD}, v{RD}')
        e(f'v_fmac_f32 v{RD + 9}, v{RD + 1}, v{RD + 1}')
        for i in range(2, 8):
            e(f'v_add_f32 v{RD + 8}, v{RD + 8}, v{RD + i}')
            e(f'v_fmac_f32 v{RD + 9}, v{RD + i}, v{RD + i}')
        e(f's_lshl_b32 s45, s{sT1}, 11')
        e(f's_lshr_b32 s46, s{sWv}, 2')
        e('s_lshl_b32 s46, s46, 5')
        e('s_add_u32 s45, s45, s46')
        e('s_lshl_b32 s46, s40, 4')
        e('s_add_u32 s45, s45, s46')
        e('s_add_u32 s45, s45, 131072')
        e('v_lshlrev_b32 v3, 6, v5')
        e('v_lshl_add_u32 v3, v4, 3, v3')
        e('v_add_u32 v3, s45, v3')
        e(f'ds_write_b64 v3, v[{RD + 8}:{RD + 9}]')
        e('s_waitcnt lgkmcnt(0)')
        e('s_barrier')
        e(f's_cmp_lg_u32 s{sWv}, 0')
        e(f's_cbranch_scc1 {name}_end')
        e('v_lshlrev_b32 v3, 6, v2')
        e('v_add_u32 v3, 131072, v3')
        for j in range(4):
            e(f'ds_read_b128 v[{8 + 4 * j}:{11 + 4 * j}], v3 offset:{16 * j}')
        e('s_waitcnt lgkmcnt(0)')
        for j in range(1, 8):
            e(f'v_add_f32 v8, v8, v{8 + 2 * j}')
            e(f'v_add_f32 v9, v9, v{9 + 2 * j}')
        e('s_lshl_b32 s45, s28, 12')
        e('s_lshl_b32 s46, s29, 3')
        e('s_add_u32 s45, s45, s46')
        e(f's_add_u32 s45, s45, {WS_ST}')
        e('v_lshlrev_b32 v3, 6, v2')
        e(f'buffer_store_dwordx2 v[8:9], v3, s[{sWS}:{sWS + 3}], s45 offen')
    k.label(f'{name}_end')
    e('s_endpgm')
    return k, 'grid=(256,1,1) block=(512,1,1) lds=135168'


def gen_ffn1():
    k = Kern('ffn1_kernel')
    e = k.e
    name = 'ffn1'
    s1, s3_, sWS = 8, 12, 16
    sW, sT0, sT1, sXb, sWo, sHb = 32, 33, 34, 35, 36, 37
    XR = 8; H = 136; SS = 152; FT = 184; WRA = 200
    VL16, VDW, VMD, VLANE = 204, 205, 206, 207
    RS = [208, 209]; NM = [210, 211]
    WF = 128; ACC = 0
    LDS_G, LDS_U, LDS_MOD = 0, 65536, 131072
    e('s_cmp_ge_u32 s2, 224')
    e(f's_cbranch_scc1 {name}_end')
    e(f's_load_dwordx4 s[4:7], s[0:1], {A_W1}')
    e(f's_load_dwordx2 s[24:25], s[0:1], {A_WS}')
    e('s_and_b32 s28, s2, 7')
    e('s_lshr_b32 s29, s2, 3')
    e('v_lshrrev_b32 v1, 6, v0')
    e(f'v_and_b32 v{VLANE}, 63, v0')
    e(f'v_readfirstlane_b32 s{sW}, v1')
    e(f'v_lshlrev_b32 v{VL16}, 4, v{VLANE}')
    e(f'v_lshrrev_b32 v3, 3, v{VLANE}')
    e(f'v_and_b32 v4, 7, v{VLANE}')
    e('v_lshlrev_b32 v5, 1, v3')
    e('v_and_b32 v5, 4, v5')
    e('v_xor_b32 v4, v4, v5')
    e('v_lshlrev_b32 v4, 4, v4')
    e('s_mov_b32 s3, 3584')
    e('v_mul_lo_u32 v3, v3, s3')
    e(f'v_add_u32 v{VDW}, v3, v4')
    e('s_waitcnt lgkmcnt(0)')
    srd(k, s1, 4, 5, 512 * 3584)
    srd(k, s3_, 6, 7, 512 * 3584)
    srd(k, sWS, 24, 25, WS_SIZE)
    e('s_lshl_b32 s3, s28, 3')
    e(f's_lshl_b32 s{sT0}, s{sW}, 1')
    e(f's_add_u32 s3, s3, s{sT0}')
    e(f's_lshl_b32 s{sXb}, s3, 15')
    e(f's_add_u32 s{sXb}, s{sXb}, {WS_X1}')
    e(f's_mul_i32 s{sHb}, s3, {112 * 1024}')
    e(f's_lshl_b32 s{sT0}, s29, 12')
    e(f's_add_u32 s{sHb}, s{sHb}, s{sT0}')
    e(f's_add_u32 s{sHb}, s{sHb}, {WS_HH}')
    e(f's_mul_i32 s{sWo}, s{sW}, {16 * 3584}')
    e(f's_lshl_b32 s{sT0}, s29, 7')
    e(f's_add_u32 s{sWo}, s{sWo}, s{sT0}')
    sW2K = 38
    e(f's_lshl_b32 s{sW2K}, s{sW}, 11')
    e(f'v_and_b32 v5, 31, v{VLANE}')
    e(f'v_lshrrev_b32 v4, 5, v{VLANE}')
    e('v_lshlrev_b32 v6, 6, v5')
    e('v_lshl_add_u32 v6, v4, 5, v6')
    e(f's_lshl_b32 s{sT0}, s3, 11')
    e(f's_add_u32 s{sT0}, s{sT0}, {WS_ST}')
    for qb in range(2):
        for j in range(2):
            r = 212 + qb * 8 + 4 * j
            e(f'buffer_load_dwordx4 v[{r}:{r + 3}], v6, s[{sWS}:{sWS + 3}], s{sT0} offen offset:{qb * 2048 + 16 * j}', 'st')

    def w_dma(c):
        out = []
        for mat, (sd, reg) in enumerate(((s1, LDS_G), (s3_, LDS_U))):
            out.append((1, lambda reg=reg: e(f's_add_u32 m0, s{sW2K}, {reg + c * 8192}')))
            for p in range(2):
                out.append((1, lambda p=p: e(f's_add_u32 s{sT0}, s{sWo}, {c * 64 * 3584 + p * (8 * 3584 - 1024)}')))
                out.append((COST['dma'], lambda p=p, sd=sd: e(f'buffer_load_dwordx4 v{VDW}, s[{sd}:{sd + 3}], s{sT0} offen offset:{p * 1024} lds', ('wq', c))))
        return out

    def xreg(ks, qb):
        return XR + (((ks // 4) % 4) * 8 + (ks % 4) * 2 + qb) * 4

    def x_load(ks, qb):
        c = ks // 4
        r = xreg(ks, qb)
        return [(1, lambda: e(f's_add_u32 s{sT1}, s{sXb}, {qb * 32768 + c * 4096}')),
                (COST['vload'], lambda: e(f'buffer_load_dwordx4 v[{r}:{r + 3}], v{VL16}, s[{sWS}:{sWS + 3}], s{sT1} offen offset:{(ks % 4) * 1024}', ('x', ks)))]

    e(f's_lshl_b32 s{sT0}, s{sW}, 10')
    e(f's_add_u32 m0, s{sT0}, {LDS_MOD}')
    e(f's_add_u32 s{sT0}, s{sT0}, {WS_MOD2}')
    e(f'buffer_load_dwordx4 v{VL16}, s[{sWS}:{sWS + 3}], s{sT0} offen lds', ('wq', 0))
    for c in range(4):
        for _, f in w_dma(c): f()
        for ks in range(4 * c, 4 * c + 4):
            for qb in range(2):
                for _, f in x_load(ks, qb): f()
    e(f'v_bfe_u32 v3, v{VLANE}, 2, 2')
    e('v_lshl_add_u32 v5, v4, 3, v3')
    e('v_lshlrev_b32 v5, 7, v5')
    e(f'v_bfe_u32 v6, v{VLANE}, 4, 1')
    e('v_lshl_add_u32 v5, v6, 5, v5')
    e(f'v_and_b32 v6, 1, v{VLANE}')
    e('v_lshl_add_u32 v5, v6, 4, v5')
    e(f'v_bfe_u32 v6, v{VLANE}, 1, 1')
    e('v_lshl_add_u32 v5, v6, 3, v5')
    e('v_lshrrev_b32 v6, 1, v3')
    e(f'v_lshl_add_u32 v{WRA}, v6, 6, v5')
    e('v_xor_b32 v6, 1, v6')
    e(f'v_lshl_add_u32 v{WRA + 1}, v6, 6, v5')
    e(f'v_add_u32 v{WRA + 2}, {LDS_U}, v{WRA}')
    e(f'v_add_u32 v{WRA + 3}, {LDS_U}, v{WRA + 1}')
    e(f'v_lshlrev_b32 v{VMD}, 6, v4')
    e(f'v_add_u32 v{VMD}, {LDS_MOD}, v{VMD}')
    k.wait(vm=['st'])
    e(f's_mov_b32 s3, {f32(1.0 / 512)}')
    for qb in range(2):
        r = 212 + qb * 8
        for j in range(1, 4):
            e(f'v_add_f32 v{r}, v{r}, v{r + 2 * j}')
            e(f'v_add_f32 v{r + 1}, v{r + 1}, v{r + 2 * j + 1}')
        e(f'v_mov_b32 v{r + 2}, v{r}')
        e(f'v_mov_b32 v{r + 3}, v{r + 1}')
        e(f'v_permlane32_swap_b32 v{r}, v{r + 2}')
        e(f'v_permlane32_swap_b32 v{r + 1}, v{r + 3}')
        e(f'v_add_f32 v{r}, v{r}, v{r + 2}')
        e(f'v_add_f32 v{r + 1}, v{r + 1}, v{r + 3}')
        e(f'v_mul_f32 v{r}, s3, v{r}')
        e(f'v_mul_f32 v{r + 1}, s3, v{r + 1}')
        e(f'v_fma_f32 v{r + 1}, -v{r}, v{r}, v{r + 1}')
        e(f'v_max_f32 v{r + 1}, 0, v{r + 1}')
        rbf(k, r, r)
        rbf(k, r + 1, r + 1)
        e(f'v_add_f32 v{r + 1}, {f32(1e-5)}, v{r + 1}')
        rbf(k, r + 1, r + 1)
        e(f'v_sqrt_f32 v{r + 1}, v{r + 1}')
        rbf(k, r + 1, r + 1)
        e(f'v_rcp_f32 v{RS[qb]}, v{r + 1}')
        e(f'v_mul_f32 v{NM[qb]}, v{r}, v{RS[qb]}')
        e(f'v_sub_f32 v{NM[qb]}, 0, v{NM[qb]}')

    def w_reads(ks):
        out = []
        for db in range(4):
            for t in range(2):
                r = WF + (ks % 2) * 16 + db * 4 + t * 2
                out.append((COST['ds'], lambda r=r, db=db, t=t: e(f'ds_read_b64_tr_b16 a[{r}:{r + 1}], v{WRA + db} offset:{ks * 2048 + t * 512}', ('w', ks))))
        return out

    def ss_reads(ks):
        out = []
        for j in range(4):
            r = SS + (ks % 2) * 16 + 4 * j
            out.append((COST['ds'], lambda r=r, j=j: e(f'ds_read_b128 v[{r}:{r + 3}], v{VMD} offset:{ks * 128 + j * 16}', ('ss', ks))))
        return out

    def xform(ks):
        out = []
        sb = SS + (ks % 2) * 16
        out.append((1, lambda: k.wait(vm=[('x', ks)], lg=[('ss', ks)])))
        for qb in range(2):
            x = xreg(ks, qb)
            for p in range(4):
                t = FT + (qb * 4 + p) * 2
                out.append((1, lambda x=x, p=p, t=t: e(f'v_lshlrev_b32 v{t}, 16, v{x + p}')))
                out.append((1, lambda x=x, p=p, t=t: e(f'v_and_b32 v{t + 1}, 0xffff0000, v{x + p}')))
                out.append((1, lambda t=t, qb=qb: e(f'v_fma_f32 v{t}, v{t}, v{RS[qb]}, v{NM[qb]}')))
                out.append((1, lambda t=t, qb=qb: e(f'v_fma_f32 v{t + 1}, v{t + 1}, v{RS[qb]}, v{NM[qb]}')))
                out.append((1, lambda p=p, t=t: e(f'v_fma_f32 v{t}, v{t}, v{sb + 2 * p}, v{sb + 8 + 2 * p}')))
                out.append((1, lambda p=p, t=t: e(f'v_fma_f32 v{t + 1}, v{t + 1}, v{sb + 2 * p + 1}, v{sb + 8 + 2 * p + 1}')))
                h = H + (ks % 2) * 8 + qb * 4 + p
                out.append((1, lambda t=t, h=h: e(f'v_cvt_pk_bf16_f32 v{h}, v{t}, v{t + 1}')))
        return out

    def chunk_barrier(c):
        def f():
            k.wait(vm=[('wq', c)])
            e('s_barrier')
        return (2, f)

    chunk_barrier(0)[1]()
    for _, f in ss_reads(0) + w_reads(0) + ss_reads(1): f()
    for _, f in xform(0): f()
    for ks in range(32):
        mf = []
        for db in range(4):
            for qb in range(2):
                def m(db=db, qb=qb):
                    if db == 0 and qb == 0:
                        k.wait(lg=[('w', ks)])
                    acc = ACC + (db * 2 + qb) * 16
                    wf = WF + (ks % 2) * 16 + db * 4
                    h = H + (ks % 2) * 8 + qb * 4
                    c = '0' if ks == 0 else ar(acc, 16)
                    e(f'v_mfma_f32_32x32x16_bf16 {ar(acc, 16)}, {ar(wf, 4)}, {vr(h, 4)}, {c}')
                mf.append(m)
        st = []
        if ks + 1 < 32:
            if (ks + 1) % 4 == 0:
                st.append(chunk_barrier((ks + 1) // 4))
            wr = w_reads(ks + 1)
            xf = xform(ks + 1)
            while wr or xf:
                if wr: st.append(wr.pop(0))
                for _ in range(7):
                    if xf: st.append(xf.pop(0))
        if ks + 2 < 32:
            st += ss_reads(ks + 2)
        if ks + 16 < 32:
            if ks % 4 == 0:
                st += w_dma(ks // 4 + 4)
            st += x_load(ks + 16, 0) + x_load(ks + 16, 1)
        schedule(k, mf, {}, st)
    e(f's_mov_b32 s3, {f32(-LOG2E)}')
    n = 0
    for qb in range(2):
        e(f's_add_u32 s{sT0}, s{sHb}, {qb * 112 * 1024}')
        for nb in range(2):
            for u in range(2):
                g = ACC + (nb * 2 + qb) * 16 + 8 * u
                up = ACC + ((2 + nb) * 2 + qb) * 16 + 8 * u
                t = 8 + (n % 4) * 32; n += 1
                for i in range(8):
                    e(f'v_accvgpr_read_b32 v{t + i}, a{g + i}')
                for i in range(8):
                    e(f'v_accvgpr_read_b32 v{t + 8 + i}, a{up + i}')
                for i in range(8):
                    rbf(k, t + i, t + i)
                for i in range(8):
                    e(f'v_mul_f32 v{t + 16 + i}, s3, v{t + i}')
                for i in range(8):
                    e(f'v_exp_f32 v{t + 16 + i}, v{t + 16 + i}')
                for i in range(8):
                    rbf(k, t + 8 + i, t + 8 + i)
                for i in range(8):
                    e(f'v_add_f32 v{t + 16 + i}, 1.0, v{t + 16 + i}')
                for i in range(8):
                    e(f'v_rcp_f32 v{t + 16 + i}, v{t + 16 + i}')
                for i in range(8):
                    e(f'v_mul_f32 v{t + i}, v{t + i}, v{t + 16 + i}')
                for i in range(8):
                    rbf(k, t + i, t + i)
                for i in range(8):
                    e(f'v_mul_f32 v{t + i}, v{t + i}, v{t + 8 + i}')
                for i in range(4):
                    e(f'v_cvt_pk_bf16_f32 v{t + 24 + i}, v{t + 2 * i}, v{t + 2 * i + 1}')
                e(f'buffer_store_dwordx4 v[{t + 24}:{t + 27}], v{VL16}, s[{sWS}:{sWS + 3}], s{sT0} offen offset:{(nb * 2 + u) * 1024}')
    k.label(f'{name}_end')
    e('s_endpgm')
    return k, 'grid=(224,1,1) block=(256,1,1) lds=135168'


def build(opts=None):
    opts = opts or {}
    ks = [gen_prep(), gen_attn(opts), gen_gemm64('oproj_kernel', 'wo'), gen_ffn1(), gen_gemm64('ffn2_kernel', 'w2')]
    hdr = open('adaLN_cond__mha_block_cached__glu_gated_swiglu__prompt.s.ref').read().split('\n')
    out = []
    for l in hdr:
        if l.startswith('; Override') or l.startswith('; grid=') or '@launch' in l or not l.startswith(';'):
            if not l.startswith(';'):
                break
            continue
        out.append(l)
    for k, launch in ks:
        out.append(f'; @launch kernel={k.name} {launch}')
    out.append('.amdgcn_target "amdgcn-amd-amdhsa--gfx950"')
    out.append('.text')
    for k, _ in ks:
        n = k.fix_hazards(verbose=opts.get('verbose', False))
        print(f'{k.name}: {len(k.ins)} instr, {n} hazard nop states, regs {k.max_regs()}', file=sys.stderr)
        out.append(f'.globl {k.name}')
        out.append('.p2align 8')
        out.append(f'.type {k.name},@function')
        out.append(f'{k.name}:')
        out.append(k.text())
    errs = 0
    errs += ks[0][0].verify_path({})
    errs += ks[0][0].verify_path({'prep_ln': 1})
    errs += ks[1][0].verify_path({'attn_tail': [False, False, True]})
    errs += ks[2][0].verify_path({})
    errs += ks[3][0].verify_path({})
    errs += ks[4][0].verify_path({})
    assert errs == 0, errs
    out.append('.section .rodata,"a"')
    for k, _ in ks:
        out.append('.p2align 6')
        out.append(descriptor(k))
    return '\n'.join(out)


if __name__ == '__main__':
    dst = sys.argv[1] if len(sys.argv) > 1 else 'adaLN_cond__mha_block_cached__glu_gated_swiglu__prompt.s'
    opts = {}
    for a in sys.argv[2:]:
        kk, _, v = a.partition('=')
        opts[kk] = eval(v) if v else True
    open(dst, 'w').write(build(opts))
```

```python
import sys, struct, math
from asmlib import *

A_X, A_K, A_V, A_WQ, A_WO, A_BX, A_W1, A_W3, A_W2, A_C, A_WMOD, A_OUT, A_DBG, A_WS = [8 * i for i in range(14)]
WS_MOD1 = 0
WS_GA = 4096
WS_MOD2 = 8192
WS_GB = 8192 + 4096
WS_XHAT = 0x10000
WS_O = 0x400000
WS_X1 = 0x1400000
WS_ST = 0x1600000
WS_HH = 0x1800000
WS_SIZE = 0x2000000

LOG2E = 1.4426950408889634


def f32(x):
    return '0x%08x' % struct.unpack('<I', struct.pack('<f', x))[0]


def srd(k, d, lo, hi, nbytes):
    k.e(f's_mov_b32 s{d}, s{lo}')
    k.e(f's_and_b32 s{d + 1}, s{hi}, 0xffff')
    k.e(f's_mov_b32 s{d + 2}, {nbytes}')
    k.e(f's_mov_b32 s{d + 3}, 0x00020000')


WS_STAMP = 0x1F00000
STAMP = False


def stamp(k, idx):
    if not STAMP:
        return
    k.e('s_waitcnt lgkmcnt(0)')
    k.e(f's_memtime s[{64 + 2 * idx}:{65 + 2 * idx}]')
    if idx == 0:
        k.e('s_memrealtime s[96:97]')
    k.e('s_waitcnt lgkmcnt(0)')


def stamp_flush(k, n, sws, kidx):
    if not STAMP:
        return
    e = k.e
    e('s_waitcnt vmcnt(0) lgkmcnt(0)')
    stamp(k, n)
    e('s_memrealtime s[98:99]')
    e('s_waitcnt lgkmcnt(0)')
    lab = k.newlabel('nost')
    e('v_readfirstlane_b32 s100, v0')
    e('s_cmp_lg_u32 s100, 0')
    e(f's_cbranch_scc1 {lab}')
    e('s_lshl_b32 s100, s2, 7')
    e(f's_add_u32 s100, s100, {WS_STAMP + kidx * 65536}')
    e('v_mov_b32 v1, 0')
    for i in range(n + 1):
        e(f'v_mov_b32 v2, s{64 + 2 * i}')
        e(f'buffer_store_dword v2, v1, s[{sws}:{sws + 3}], s100 offen offset:{4 * i}')
    e('v_mov_b32 v2, s96')
    e(f'buffer_store_dword v2, v1, s[{sws}:{sws + 3}], s100 offen offset:120')
    e('v_mov_b32 v2, s98')
    e(f'buffer_store_dword v2, v1, s[{sws}:{sws + 3}], s100 offen offset:124')
    k.label(lab)


def rbf(k, d, s):
    k.e(f'v_cvt_pk_bf16_f32 v{d}, 0, v{s}')


def allreduce16(k, v, t):
    for mod in ('quad_perm:[1,0,3,2]', 'quad_perm:[2,3,0,1]', 'row_half_mirror', 'row_mirror'):
        k.e(f'v_add_f32_dpp v{t}, v{v}, v{v} {mod} row_mask:0xf bank_mask:0xf')
        v, t = t, v


def gen_prep(opts):
    k = Kern('prep_kernel')
    e = k.e
    NMOD, NLN = 96, 128
    e(f's_cmp_ge_u32 s2, {NMOD + NLN}')
    e('s_cbranch_scc1 prep_end')
    e(f's_load_dwordx2 s[4:5], s[0:1], {A_WS}')
    e(f's_load_dwordx2 s[6:7], s[0:1], {A_X}')
    e(f's_load_dwordx4 s[20:23], s[0:1], {A_C}')
    e(f's_load_dwordx4 s[36:39], s[0:1], {A_K}')
    e(f's_load_dwordx2 s[40:41], s[0:1], {A_WQ}')

    def prefetch():
        if not opts.get('pf1', 1):
            return
        e('v_lshrrev_b32 v72, 6, v0')
        e('v_and_b32 v73, 63, v0')
        e('v_readfirstlane_b32 s42, v72')
        e('v_lshrrev_b32 v74, 4, v73')
        e('v_and_b32 v75, 15, v73')
        e('v_lshlrev_b32 v74, 13, v74')
        e('v_lshl_add_u32 v74, v75, 6, v74')
        e('v_lshlrev_b32 v73, 6, v73')
        e('s_lshr_b32 s43, s2, 3')
        e('s_lshl_b32 s43, s43, 2')
        e('s_add_u32 s43, s43, s42')
        e('s_and_b32 s44, s2, 7')
        srd(k, 48, 40, 41, 512 * 8192)
        e('s_lshl_b32 s45, s43, 15')
        e('s_lshl_b32 s46, s44, 10')
        e('s_add_u32 s45, s45, s46')
        e('buffer_load_dword v76, v74, s[48:51], s45 offen', 'pf')
        e(f's_add_u32 s45, s45, {112 * 32768}')
        e('buffer_load_dword v77, v74, s[48:51], s45 offen', 'pf')
        e('s_and_b32 s45, s43, 63')
        e('s_lshr_b32 s46, s45, 4')
        e('s_lshl_b32 s47, s44, 2')
        e('s_add_u32 s46, s46, s47')
        e('s_lshl_b32 s46, s46, 19')
        e('s_and_b32 s45, s45, 15')
        e('s_lshl_b32 s45, s45, 12')
        e('s_add_u32 s45, s45, s46')
        srd(k, 48, 36, 37, 32 * 524288)
        e('buffer_load_dword v78, v73, s[48:51], s45 offen', 'pf')
        srd(k, 48, 38, 39, 32 * 524288)
        e('buffer_load_dword v79, v73, s[48:51], s45 offen', 'pf')
    e(f's_cmp_ge_u32 s2, {NMOD}')
    e('s_cbranch_scc1 prep_ln')
    e('v_and_b32 v1, 3, v0')
    e('v_lshrrev_b32 v2, 2, v0')
    e('s_mov_b32 s3, 49152')
    e('v_mul_lo_u32 v3, v2, s3')
    e('v_lshl_add_u32 v3, v1, 4, v3')
    e('s_lshl_b32 s3, s2, 6')
    e('v_add_u32 v3, s3, v3')
    e('v_lshlrev_b32 v4, 4, v2')
    e('s_waitcnt lgkmcnt(0)')
    srd(k, 8, 20, 21, 1024)
    srd(k, 12, 22, 23, 512 * 6144)
    srd(k, 16, 4, 5, WS_SIZE)
    e('buffer_load_dwordx4 v[8:11], v4, s[8:11], 0 offen', 'c')
    for i in range(8):
        e(f's_mov_b32 s{24 + i}, {i * 6144}')
        e(f'buffer_load_dwordx4 v[{16 + 4 * i}:{19 + 4 * i}], v3, s[12:15], s{24 + i} offen', ('w', i))
    prefetch()
    k.wait(vm=['c'])
    e(f's_mov_b32 s3, {f32(-LOG2E)}')
    for i in range(8):
        src = 8 + i // 2
        if i % 2 == 0:
            e(f'v_lshlrev_b32 v{48 + i}, 16, v{src}')
        else:
            e(f'v_and_b32 v{48 + i}, 0xffff0000, v{src}')
    for i in range(8):
        e(f'v_mul_f32 v{56 + i}, s3, v{48 + i}')
    for i in range(8):
        e(f'v_exp_f32 v{56 + i}, v{56 + i}')
    for i in range(8):
        e(f'v_add_f32 v{56 + i}, 1.0, v{56 + i}')
    for i in range(8):
        e(f'v_rcp_f32 v{56 + i}, v{56 + i}')
    for i in range(8):
        e(f'v_mul_f32 v{48 + i}, v{48 + i}, v{56 + i}')
    for i in range(8):
        rbf(k, 48 + i, 48 + i)
    for i in range(8):
        k.wait(vm=[('w', i)])
        for p in range(4):
            w = 16 + 4 * i + p
            e(f'v_lshlrev_b32 v56, 16, v{w}')
            e(f'v_and_b32 v57, 0xffff0000, v{w}')
            if i == 0:
                e(f'v_mul_f32 v{64 + 2 * p}, v48, v56')
                e(f'v_mul_f32 v{65 + 2 * p}, v48, v57')
            else:
                e(f'v_fmac_f32 v{64 + 2 * p}, v{48 + i}, v56')
                e(f'v_fmac_f32 v{65 + 2 * p}, v{48 + i}, v57')
    e('v_lshlrev_b32 v5, 5, v0')
    e('ds_write_b128 v5, v[64:67]')
    e('ds_write_b128 v5, v[68:71] offset:16')
    e('s_waitcnt lgkmcnt(0)')
    e('s_barrier')
    e('v_and_b32 v6, 31, v0')
    e('v_lshrrev_b32 v7, 5, v0')
    e('v_lshlrev_b32 v5, 10, v7')
    e('v_lshl_add_u32 v5, v6, 2, v5')
    for i in range(8):
        e(f'ds_read_b32 v{16 + i}, v5 offset:{i * 128}')
    e('s_waitcnt lgkmcnt(0)')
    for i in range(1, 8):
        e(f'v_add_f32 v16, v16, v{16 + i}')
    e('v_lshlrev_b32 v5, 2, v0')
    e('ds_write_b32 v5, v16 offset:8192')
    e('s_waitcnt lgkmcnt(0)')
    e('s_barrier')
    e('v_cmp_gt_u32 vcc, 32, v0')
    e('s_and_saveexec_b64 s[32:33], vcc')
    e('s_cbranch_execz prep_end')
    for i in range(8):
        e(f'ds_read_b32 v{16 + i}, v5 offset:{8192 + i * 128}')
    e('s_waitcnt lgkmcnt(0)')
    for i in range(1, 8):
        e(f'v_add_f32 v16, v16, v{16 + i}')
    rbf(k, 16, 16)
    e('v_add_f32 v17, 1.0, v16')
    rbf(k, 17, 17)
    e('s_lshr_b32 s24, s2, 4')
    e('s_and_b32 s25, s2, 15')
    e('s_lshl_b32 s25, s25, 5')
    e('v_add_u32 v6, s25, v0')
    e('s_cmp_ge_u32 s24, 3')
    e('s_cselect_b32 s26, 8192, 0')
    e('s_cselect_b32 s27, 3, 0')
    e('s_sub_u32 s24, s24, s27')
    e('v_lshrrev_b32 v7, 3, v6')
    e('v_lshlrev_b32 v7, 6, v7')
    e('v_and_b32 v8, 7, v6')
    e('v_lshl_add_u32 v7, v8, 2, v7')
    e('v_lshlrev_b32 v8, 2, v6')
    e('s_cmp_eq_u32 s24, 2')
    e('s_cbranch_scc1 prep_gate')
    e('s_cmp_eq_u32 s24, 1')
    e('s_cbranch_scc1 prep_scale')
    e('buffer_store_dword v16, v7, s[16:19], s26 offen offset:32')
    e('s_endpgm')
    k.label('prep_scale')
    e('buffer_store_dword v17, v7, s[16:19], s26 offen')
    e('s_endpgm')
    k.label('prep_gate')
    e('s_add_u32 s26, s26, 4096')
    e('buffer_store_dword v16, v8, s[16:19], s26 offen')
    e('s_endpgm')
    k.label('prep_ln')
    e(f's_sub_u32 s3, s2, {NMOD}')
    e('s_lshl_b32 s3, s3, 4')
    e('v_lshrrev_b32 v1, 4, v0')
    e('v_add_u32 v1, s3, v1')
    e('v_and_b32 v2, 15, v0')
    e('v_lshlrev_b32 v3, 10, v1')
    e('v_lshl_add_u32 v3, v2, 4, v3')
    e('s_waitcnt lgkmcnt(0)')
    srd(k, 8, 6, 7, 2048 * 1024)
    srd(k, 16, 4, 5, WS_SIZE)
    for j in range(4):
        e(f'buffer_load_dwordx4 v[{8 + 4 * j}:{11 + 4 * j}], v3, s[8:11], 0 offen offset:{256 * j}', ('x', j))
    prefetch()
    e('v_lshrrev_b32 v4, 5, v1')
    e('v_lshlrev_b32 v4, 15, v4')
    e('v_lshrrev_b32 v5, 1, v2')
    e('v_lshl_add_u32 v4, v5, 10, v4')
    e('v_and_b32 v5, 1, v2')
    e('v_lshl_add_u32 v4, v5, 9, v4')
    e('v_and_b32 v5, 31, v1')
    e('v_lshl_add_u32 v4, v5, 4, v4')
    X = 32
    for j in range(4):
        k.wait(vm=[('x', j)])
        for p in range(4):
            e(f'v_lshlrev_b32 v{X + 8 * j + 2 * p}, 16, v{8 + 4 * j + p}')
            e(f'v_and_b32 v{X + 8 * j + 2 * p + 1}, 0xffff0000, v{8 + 4 * j + p}')
    e(f'v_add_f32 v24, v{X}, v{X + 1}')
    e(f'v_add_f32 v25, v{X + 2}, v{X + 3}')
    for i in range(4, 32):
        e(f'v_add_f32 v{24 + i % 2}, v{24 + i % 2}, v{X + i}')
    e('v_add_f32 v24, v24, v25')
    allreduce16(k, 24, 25)
    e(f's_mov_b32 s3, {f32(1.0 / 512)}')
    e('v_mul_f32 v24, s3, v24')
    for i in range(32):
        e(f'v_sub_f32 v{64 + i % 4}, v{X + i}, v24')
        if i < 2:
            e(f'v_mul_f32 v{26 + i}, v{64 + i % 4}, v{64 + i % 4}')
        else:
            e(f'v_fmac_f32 v{26 + i % 2}, v{64 + i % 4}, v{64 + i % 4}')
    e('v_add_f32 v26, v26, v27')
    allreduce16(k, 26, 27)
    e('v_mul_f32 v26, s3, v26')
    rbf(k, 24, 24)
    rbf(k, 26, 26)
    e(f'v_add_f32 v26, {f32(1e-5)}, v26')
    rbf(k, 26, 26)
    e('v_sqrt_f32 v26, v26')
    rbf(k, 26, 26)
    e('v_rcp_f32 v26, v26')
    e(f's_mov_b32 s24, {WS_XHAT}')
    for j in range(4):
        for i in range(8):
            r = X + 8 * j + i
            e(f'v_sub_f32 v{r}, v{r}, v24')
        for i in range(8):
            r = X + 8 * j + i
            rbf(k, r, r)
        for i in range(8):
            r = X + 8 * j + i
            e(f'v_mul_f32 v{r}, v{r}, v26')
        for i in range(8):
            r = X + 8 * j + i
            rbf(k, r, r)
        for p in range(4):
            r = X + 8 * j + 2 * p
            e(f'v_cvt_pkrtz_f16_f32 v{8 + 4 * j + p}, v{r}, v{r + 1}')
        e(f'buffer_store_dwordx4 v[{8 + 4 * j}:{11 + 4 * j}], v4, s[16:19], s24 offen')
        if j < 3:
            e(f's_add_u32 s24, s24, 8192')
    k.label('prep_end')
    e('s_endpgm')
    return k, f'grid=({NMOD + NLN},1,1) block=(256,1,1) lds=9216'


COST = {'exp': 2, 'valu': 1, 'ds': 1, 'dma': 2.5, 'salu': 1, 'vload': 2.5}
GAPCAP = 6
ORDER = {'wait': 0, 'bar': 1, 'dma': 2, 'ds': 3, 'end': 9}


def schedule(k, mfmas, fixed, stream, last_gap=None, cap=GAPCAP, caps=None):
    n = len(mfmas)
    if last_gap is None:
        last_gap = n - 1
    spare = []
    for g in range(n):
        c = sum(x[0] for x in fixed.get(g, []))
        cp = caps.get(g, cap) if caps else cap
        spare.append(max(cp - c, 0) if g <= last_gap else 0)
    tot_spare = sum(spare)
    tot = sum(x[0] for x in stream)
    si = 0
    done = 0.0
    cum = 0
    lastg = max([g for g in range(n) if spare[g] > 0] or [n - 1])
    for g in range(n):
        mfmas[g]()
        fx = sorted(fixed.get(g, []), key=lambda x: ORDER[x[2]])
        cum += spare[g]
        target = tot * cum / max(tot_spare, 1)
        mine = []
        while si < len(stream) and ((spare[g] > 0 and done + stream[si][0] * 0.5 <= target) or g >= lastg):
            mine.append(stream[si]); done += stream[si][0]; si += 1
        for x in fx:
            if x[2] != 'end': x[1]()
        for x in mine: x[1]()
        for x in fx:
            if x[2] == 'end': x[1]()
    assert si == len(stream)


def gemm256(k, P):
    e = k.e
    P['chunk_barrier'](0)
    for _, f in P['ss_reads'](0) + P['w_reads'](0) + P['ss_reads'](1): f()
    k.wait(vm=[('x', 0)], lg=[('ss', 0)])
    for _, f in P['xform'](0): f()
    k.wait(lg=[('w', 0)])
    for ks in range(32):
        mf = []
        for db in range(4):
            for qb in range(2):
                def m(db=db, qb=qb):
                    acc = P['ACC'] + (db * 2 + qb) * 16
                    wf = P['WF'] + (ks % 2) * 16 + db * 4
                    h = P['H'] + (ks % 2) * 8 + qb * 4
                    c = '0' if ks == 0 else ar(acc, 16)
                    e(f'v_mfma_f32_32x32x16_bf16 {ar(acc, 16)}, {ar(wf, 4)}, {vr(h, 4)}, {c}')
                mf.append(m)
        fx = {}
        st = []
        caps = {}
        if ks + 1 < 32:
            newc = (ks + 1) % 4 == 0
            if newc:
                fx.setdefault(0, []).append((0, lambda: k.wait(vm=[('wq', (ks + 1) // 4), ('x', ks + 1)], lg=[('ss', ks + 1)]), 'wait'))
                fx.setdefault(0, []).append((6, lambda: e('s_barrier'), 'bar'))
                caps[1] = 4
            else:
                fx.setdefault(0, []).append((0, lambda: k.wait(vm=[('x', ks + 1)], lg=[('ss', ks + 1)]), 'wait'))
            g0 = 1 if newc else 0
            for i, it in enumerate(P['w_reads'](ks + 1)):
                fx.setdefault(g0 + i // 2, []).append((it[0], it[1], 'ds'))
            st = P['xform'](ks + 1)
            fx.setdefault(7, []).append((0, lambda: k.wait(lg=[('w', ks + 1)]), 'wait'))
        if ks + 2 < 32:
            for i, it in enumerate(P['ss_reads'](ks + 2)):
                fx.setdefault(5 + i // 2, []).append((it[0], it[1], 'ds'))
        groups = P['refill'](ks)
        gl = [3, 5, 6, 4, 2, 7][:len(groups)]
        gl.sort()
        for g, grp in zip(gl, groups):
            for it in grp[:-1]:
                fx.setdefault(g - 1, []).append((it[0], it[1], 'end'))
            fx.setdefault(g, []).append((grp[-1][0], grp[-1][1], 'dma'))
        schedule(k, mf, fx, st, caps=caps)


class G256:
    pass


BIAS = 100.0
THRESH = 2.0 ** 80


def gen_attn(opts):
    k = Kern('attn_kernel')
    e = k.e
    sK, sV, sWQ, sWS = 8, 12, 16, 20
    sW, sW4K, sKoff, sVoff, sCnt, sThr, sXb, sT0, sT1, sOb = 32, 33, 34, 35, 36, 37, 38, 39, 40, 41
    sLink = 44
    S = [8, 40]; NEGM = 72; P = [104, 120]; Q = 136; ET = 200
    LS = [208, 209]; L = [210, 211]; TMP = 212
    KR = 216; VR = 224; DK = 228; DV = 232; VL16 = 233; VMD = 234; VLANE = 235
    O = 0; KF = 128; VF = 160
    LDS_K, LDS_V, LDS_MOD = 0, 65536, 131072

    e('s_cmp_ge_u32 s2, 256')
    e('s_cbranch_scc1 attn_end')
    stamp(k, 0)
    e(f's_load_dwordx4 s[4:7], s[0:1], {A_K}')
    e(f's_load_dwordx2 s[24:25], s[0:1], {A_WQ}')
    e(f's_load_dwordx2 s[26:27], s[0:1], {A_WS}')
    e(f's_load_dwordx2 s[48:49], s[0:1], {A_WO}')
    e(f's_load_dwordx4 s[52:55], s[0:1], {A_W3}')
    e(f's_load_dwordx2 s[50:51], s[0:1], {A_W1}')
    e('s_and_b32 s28, s2, 7')
    e('s_lshl_b32 s28, s28, 2')
    e('s_lshr_b32 s29, s2, 3')
    e('s_and_b32 s30, s29, 3')
    e('s_add_u32 s28, s28, s30')
    e('s_lshr_b32 s29, s29, 2')
    e('v_lshrrev_b32 v1, 6, v0')
    e(f'v_and_b32 v{VLANE}, 63, v0')
    e(f'v_readfirstlane_b32 s{sW}, v1')
    e(f'v_lshlrev_b32 v{VL16}, 4, v{VLANE}')
    e(f's_lshl_b32 s{sW4K}, s{sW}, 12')
    e(f'v_lshrrev_b32 v2, 4, v{VLANE}')
    e(f'v_and_b32 v3, 15, v{VLANE}')
    e(f'v_lshrrev_b32 v4, 5, v{VLANE}')
    e(f'v_and_b32 v5, 31, v{VLANE}')
    e('v_lshlrev_b32 v6, 2, v2')
    e('v_xor_b32 v6, v6, v3')
    e('v_lshlrev_b32 v6, 4, v6')
    e(f'v_lshl_add_u32 v{DV}, v2, 8, v6')
    e(f'v_add_u32 v{DV}, s{sW4K}, v{DV}')
    e(f's_lshl_b32 s3, s{sW}, 17')
    e('v_lshl_add_u32 v7, v2, 13, v6')
    e('v_add_u32 v7, s3, v7')
    e('s_waitcnt lgkmcnt(0)')
    e('s_lshl_b32 s3, s28, 19')
    e('s_add_u32 s4, s4, s3'); e('s_addc_u32 s5, s5, 0')
    e('s_add_u32 s6, s6, s3'); e('s_addc_u32 s7, s7, 0')
    srd(k, sK, 4, 5, 524288)
    srd(k, sV, 6, 7, 524288)
    e('s_lshl_b32 s3, s28, 8')
    e('s_add_u32 s24, s24, s3'); e('s_addc_u32 s25, s25, 0')
    e(f's_mov_b32 s{sWQ}, s24'); e(f's_and_b32 s{sWQ + 1}, s25, 0xffff')
    e(f's_sub_u32 s{sWQ + 2}, {512 * 8192}, s3'); e(f's_mov_b32 s{sWQ + 3}, 0x00020000')
    srd(k, sWS, 26, 27, WS_SIZE)
    e('s_lshl_b32 s3, s29, 3')
    e(f's_lshl_b32 s{sT0}, s{sW}, 1')
    e(f's_add_u32 s3, s3, s{sT0}')
    e(f's_lshl_b32 s{sXb}, s3, 15')
    e(f's_add_u32 s{sXb}, s{sXb}, {WS_XHAT}')
    e(f's_lshl_b32 s{sOb}, s3, 18')
    e(f's_lshl_b32 s{sT0}, s28, 13')
    e(f's_add_u32 s{sOb}, s{sOb}, s{sT0}')
    e(f's_add_u32 s{sOb}, s{sOb}, {WS_O}')

    XR = 8; H = 136; SS = 152; FT = 184; WRA = 200; WF = 128
    chunk_slot = [LDS_K, LDS_K + 16384, LDS_V, LDS_K + 32768, LDS_K + 49152, LDS_V + 16384, LDS_V + 32768, LDS_V + 49152]

    def wq_dma(c):
        out = []
        for p in range(4):
            g = []
            if p == 0:
                g.append((1, lambda: e(f's_add_u32 m0, s{sW4K}, {chunk_slot[c]}')))
            g.append((1, lambda p=p: e(f's_mov_b32 s{sT0}, {c * 524288 + p * (32768 - 1024)}')))
            g.append((COST['dma'], lambda p=p: e(f'buffer_load_dwordx4 v7, s[{sWQ}:{sWQ + 3}], s{sT0} offen offset:{p * 1024} lds', ('wq', c))))
            out.append(g)
        return out

    def xreg(ks, qb):
        return XR + (((ks // 4) % 4) * 8 + (ks % 4) * 2 + qb) * 4

    def x_load(ks, qb):
        c = ks // 4
        out = []
        out.append((1, lambda: e(f's_add_u32 s{sT1}, s{sXb}, {qb * 32768 + c * 4096}')))
        r = xreg(ks, qb)
        out.append((COST['vload'], lambda: e(f'buffer_load_dwordx4 v[{r}:{r + 3}], v{VL16}, s[{sWS}:{sWS + 3}], s{sT1} offen offset:{(ks % 4) * 1024}', ('x', ks))))
        return out

    e(f's_lshl_b32 s{sT0}, s{sW}, 10')
    e(f's_add_u32 m0, s{sT0}, {LDS_MOD}')
    e(f's_add_u32 s{sT0}, s{sT0}, {WS_MOD1}')
    e(f'buffer_load_dwordx4 v{VL16}, s[{sWS}:{sWS + 3}], s{sT0} offen lds', ('wq', 0))
    NPRE = opts.get('npre', 1)
    for c in range(NPRE):
        for g in wq_dma(c):
            for _, f in g: f()
        for ks in range(4 * c, 4 * c + 4):
            for qb in range(2):
                for _, f in x_load(ks, qb): f()
    e('v_lshrrev_b32 v236, 2, v3')
    e(f'v_and_b32 v237, 3, v{VLANE}')
    e('v_and_b32 v238, 1, v2')
    e('v_lshlrev_b32 v238, 5, v238')
    e('v_and_b32 v239, 1, v237')
    e('v_lshl_add_u32 v238, v239, 4, v238')
    e('v_lshrrev_b32 v239, 1, v237')
    e('v_lshl_add_u32 v238, v239, 3, v238')
    e('v_lshl_add_u32 v238, v236, 8, v238')
    for db in range(4):
        e(f'v_xor_b32 v239, {db}, v236')
        e(f'v_lshl_add_u32 v239, v239, 6, v238')
        e(f'v_lshl_add_u32 v{WRA + db}, v4, 11, v239')
        e(f'v_add_u32 v{WRA + 4 + db}, {LDS_V}, v{WRA + db}')
        e(f'v_lshl_add_u32 v{VR + db}, v4, 10, v239')
        e(f'v_add_u32 v{VR + db}, {LDS_V}, v{VR + db}')
    for ks in range(8):
        e(f'v_add_u32 v239, {2 * ks}, v4')
        e('v_xor_b32 v239, v239, v3')
        e('v_lshlrev_b32 v239, 4, v239')
        e(f'v_lshl_add_u32 v{KR + ks}, v5, 8, v239')
    for p in range(4):
        e(f'v_add_u32 v239, {4 * p}, v2')
        e('v_xor_b32 v239, v239, v3')
        e('v_lshlrev_b32 v239, 4, v239')
        e('v_lshl_add_u32 v239, v2, 8, v239')
        e(f'v_add_u32 v{DK + p}, s{sW4K}, v239')
    e(f'v_lshlrev_b32 v{VMD}, 6, v4')
    e(f'v_add_u32 v{VMD}, {LDS_MOD}, v{VMD}')
    e(f's_mov_b32 s{sThr}, {f32(THRESH)}')

    def w_reads(ks):
        c = ks // 4
        slot = chunk_slot[c]
        base = WRA + 4 if slot >= LDS_V else WRA
        off0 = (slot % 65536) + (ks % 4) * 16 * 256
        out = []
        for db in range(4):
            for t in range(2):
                r = WF + (ks % 2) * 16 + db * 4 + t * 2
                out.append((COST['ds'], lambda r=r, db=db, t=t: e(f'ds_read_b64_tr_b16 a[{r}:{r + 1}], v{base + db} offset:{off0 + t * 1024}', ('w', ks))))
        return out

    def ss_reads(ks):
        out = []
        for j in range(4):
            r = SS + (ks % 2) * 16 + 4 * j
            out.append((COST['ds'], lambda r=r, j=j: e(f'ds_read_b128 v[{r}:{r + 3}], v{VMD} offset:{ks * 128 + j * 16}', ('ss', ks))))
        return out

    def xform(ks):
        out = []
        sb = SS + (ks % 2) * 16
        for qb in range(2):
            x = xreg(ks, qb)
            for p in range(4):
                t = FT + (qb * 4 + p) * 2
                out.append((1, lambda x=x, p=p, t=t: e(f'v_fma_mix_f32 v{t}, v{x + p}, v{sb + 2 * p}, v{sb + 8 + 2 * p} op_sel_hi:[1,0,0]')))
                out.append((1, lambda x=x, p=p, t=t: e(f'v_fma_mix_f32 v{t + 1}, v{x + p}, v{sb + 2 * p + 1}, v{sb + 8 + 2 * p + 1} op_sel:[1,0,0] op_sel_hi:[1,0,0]')))
                h = H + (ks % 2) * 8 + qb * 4 + p
                out.append((1, lambda t=t, h=h: e(f'v_cvt_pk_bf16_f32 v{h}, v{t}, v{t + 1}')))
        return out

    def chunk_barrier(c):
        stamp(k, 1)
        k.wait(vm=[('wq', c)])
        e('s_barrier')
        stamp(k, 2)

    def kv_dma(which, tile):
        out = []
        slot = tile % 4
        for p in range(4):
            g = []
            if p == 0:
                g.append((1, lambda: e(f's_add_u32 m0, s{sW4K}, {(LDS_K if which == "K" else LDS_V) + slot * 16384}')))
                g.append((1, lambda: e(f's_mov_b32 s{sT0}, {tile * 16384}')))
            if which == 'K':
                g.append((COST['dma'], lambda p=p: e(f'buffer_load_dwordx4 v{DK + p}, s[{sK}:{sK + 3}], s{sT0} offen offset:{p * 1024} lds', ('K', tile))))
            else:
                g.append((COST['dma'], lambda p=p: e(f'buffer_load_dwordx4 v{DV}, s[{sV}:{sV + 3}], s{sT0} offen offset:{p * 1024} lds', ('V', tile))))
            out.append(g)
        return out

    todo = []
    for c in range(NPRE, 8):
        todo += [(0, g) for g in wq_dma(c)]
        for ks in range(4 * c, 4 * c + 4):
            todo += [(ks - 16, x_load(ks, 0)), (ks - 16, x_load(ks, 1))]
    todo += [(4, g) for g in kv_dma('K', 0)] + [(8, g) for g in kv_dma('K', 1)] + [(12, g) for g in kv_dma('V', 0)]
    RATE = opts.get('rate', 4)

    def refill(ks):
        out = []
        while todo and len(out) < RATE and todo[0][0] <= ks:
            out.append(todo.pop(0)[1])
        return out

    gemm256(k, dict(w_reads=w_reads, ss_reads=ss_reads, xform=xform, refill=refill, chunk_barrier=chunk_barrier,
                    ACC=O, WF=WF, H=H))
    assert not todo

    cq = LOG2E / math.sqrt(128.0)
    e(f's_mov_b32 s3, {f32(cq)}')
    stamp(k, 3)
    k.wait(vm=[('K', 0)])
    e('s_barrier')

    def k_read(blk, ks):
        tile = blk // 2
        off = LDS_K + (tile % 4) * 16384 + (blk % 2) * 8192
        r = KF + 4 * ks
        return lambda: e(f'ds_read_b128 a[{r}:{r + 3}], v{KR + ks} offset:{off}', ('kf', ks))

    def v_read(blk, i):
        u, db, t = i // 8, (i // 2) % 4, i % 2
        tile = blk // 2
        off = (tile % 4) * 16384 + ((blk % 2) * 32 + 16 * u + 8 * t) * 256
        r = VF + (u * 4 + db) * 4 + 2 * t
        return lambda: e(f'ds_read_b64_tr_b16 a[{r}:{r + 1}], v{VR + db} offset:{off}', ('vf', i))

    for ks in range(8):
        k_read(0, ks)()
    for g in kv_dma('K', 2):
        for _, f in g: f()
    for db in range(4):
        for qb in range(2):
            acc = O + (db * 2 + qb) * 16
            for i in range(16):
                e(f'v_accvgpr_read_b32 v{8 + i}, a{acc + i}')
            for i in range(16):
                e(f'v_mul_f32 v{8 + i}, s3, v{8 + i}')
            for i in range(8):
                u = i // 4
                e(f'v_cvt_pk_bf16_f32 v{Q + (qb * 8 + 2 * db + u) * 4 + i % 4}, v{8 + 2 * i}, v{9 + 2 * i}')
    for g in kv_dma('V', 1):
        for _, f in g: f()
    NPF = 0

    def qk_mfmas(blk, czero=False):
        out = []
        for ks in range(8):
            for qb in range(2):
                def m(ks=ks, qb=qb):
                    d = S[blk % 2] + 16 * qb
                    if ks == 0:
                        c = '0' if czero else vr(NEGM + 16 * qb, 16)
                    else:
                        c = vr(d, 16)
                    e(f'v_mfma_f32_32x32x16_bf16 {vr(d, 16)}, {ar(KF + 4 * ks, 4)}, {vr(Q + (qb * 8 + ks) * 4, 4)}, {c}')
                out.append(m)
        return out

    def pv_mfmas(blk, czero=False):
        out = []
        for u in range(2):
            for db in range(4):
                for qb in range(2):
                    def m(u=u, db=db, qb=qb):
                        acc = O + (db * 2 + qb) * 16
                        c = '0' if (czero and u == 0) else ar(acc, 16)
                        e(f'v_mfma_f32_32x32x16_bf16 {ar(acc, 16)}, {ar(VF + (u * 4 + db) * 4, 4)}, {vr(P[blk % 2] + (qb * 2 + u) * 4, 4)}, {c}')
                    out.append(m)
        return out

    def softmax_stream(blk):
        sb = S[blk % 2]; pb = P[blk % 2]
        items = []
        pend = []
        n = 0
        for qb in range(2):
            for i in range(8):
                t = ET + (n % 4) * 2
                r = sb + qb * 16 + 2 * i
                a = [(COST['exp'], lambda t=t, r=r: e(f'v_exp_f32 v{t}, v{r}')),
                     (COST['exp'], lambda t=t, r=r: e(f'v_exp_f32 v{t + 1}, v{r + 1}'))]
                if i == 0:
                    c = [(1, lambda t=t, qb=qb: e(f'v_add_f32 v{LS[qb]}, v{t}, v{t + 1}')), None]
                else:
                    c = [(1, lambda t=t, qb=qb: e(f'v_add_f32 v{LS[qb]}, v{LS[qb]}, v{t}')),
                         (1, lambda t=t, qb=qb: e(f'v_add_f32 v{LS[qb]}, v{LS[qb]}, v{t + 1}'))]
                pd = pb + (qb * 2 + i // 4) * 4 + i % 4
                c.append((1, lambda t=t, pd=pd: e(f'v_cvt_pk_bf16_f32 v{pd}, v{t}, v{t + 1}')))
                items.append(a[0])
                if pend and pend[0]: items.append(pend[0])
                items.append(a[1])
                for x in pend[1:]:
                    if x: items.append(x)
                pend = c
                n += 1
        for x in pend:
            if x: items.append(x)
        return items

    stubs = []

    def check_items(blk):
        lab = k.newlabel('slow'); ret = k.newlabel('ret')
        stubs.append((lab, ret, blk % 2))

        def br():
            e(f's_cbranch_vccnz {lab}')
            k.label(ret)
        return [(1, lambda: e(f'v_max_f32 v{TMP}, v{LS[0]}, v{LS[1]}')),
                (1, lambda: e(f'v_cmp_lt_f32 vcc, s{sThr}, v{TMP}')),
                (1, br),
                (1, lambda: e(f'v_add_f32 v{L[0]}, v{L[0]}, v{LS[0]}')),
                (1, lambda: e(f'v_add_f32 v{L[1]}, v{L[1]}, v{LS[1]}'))]

    KFALL = [('kf', i) for i in range(8)]
    VFALL = [('vf', i) for i in range(16)]
    mf = qk_mfmas(0, czero=True)
    fx = {}
    for ks in range(8):
        fx.setdefault(min(2 * ks + 2, 15), []).append((COST['ds'], k_read(1, ks), 'ds'))
    k.wait(lg=KFALL)
    schedule(k, mf, fx, [])
    for qb in range(2):
        sb = S[0] + 16 * qb
        e(f'v_max3_f32 v{TMP}, v{sb}, v{sb + 1}, v{sb + 2}')
        for i in range(3, 15, 2):
            e(f'v_max3_f32 v{TMP}, v{TMP}, v{sb + i}, v{sb + i + 1}')
        e(f'v_max_f32 v{TMP}, v{TMP}, v{sb + 15}')
        e(f'v_mov_b32 v{TMP + 1}, v{TMP}')
        e(f'v_permlane32_swap_b32 v{TMP}, v{TMP + 1}')
        e(f'v_max_f32 v{TMP}, v{TMP}, v{TMP + 1}')
        e(f'v_add_f32 v{TMP}, {f32(BIAS)}, v{TMP}')
        e(f'v_sub_f32 v{NEGM + 16 * qb}, 0, v{TMP}')
        for i in range(1, 16):
            e(f'v_mov_b32 v{NEGM + 16 * qb + i}, v{NEGM + 16 * qb}')
        for i in range(16):
            e(f'v_sub_f32 v{sb + i}, v{sb + i}, v{TMP}')
        e(f'v_mov_b32 v{L[qb]}, 0')
    e(f's_mov_b32 s{sKoff}, {3 * 16384}')
    e(f's_mov_b32 s{sVoff}, {2 * 16384}')
    e(f's_mov_b32 s{sCnt}, 8')

    def step(b, do_qk=True, do_sm=True, do_pv=True, pv_zero=False, do_kread=True, do_dma=True):
        mf = []
        fx = {}
        nq = 0
        X = opts.get('x', '')
        if 'D' in X: do_dma = False
        if 'S' in X: do_sm = False
        if do_qk:
            mf += qk_mfmas(b + 1); nq = 16
        if do_pv:
            mf += pv_mfmas(b - 1, czero=pv_zero)
        n = len(mf)
        caps = {}
        full = do_qk and do_pv
        if do_pv and 'L' not in X:
            if do_qk:
                for i in range(16):
                    fx.setdefault(i // 2, []).append((COST['ds'], v_read(b - 1, i), 'ds'))
            else:
                for i in range(16):
                    v_read(b - 1, i)()
                k.wait(lg=VFALL)
        bar = b % 2 == 0 and do_kread and 'B' not in X
        gb = 15 if full else 0
        if bar:
            vmn = 8 + NPF if b == 0 else 8

            def wt():
                t = k.wait_text(lg=VFALL) if full else None
                e(f's_waitcnt vmcnt({vmn})' + (t[9:] if t else ''))
            fx.setdefault(gb, []).append((0, wt, 'wait'))
            fx.setdefault(gb, []).append((6, lambda: e('s_barrier'), 'bar'))
            caps[gb + 1] = opts.get('cap_ab', 3)
        elif full:
            fx.setdefault(15, []).append((0, lambda: k.wait(lg=VFALL), 'wait'))
        if do_kread and 'L' not in X:
            for ks in range(8):
                g = (17 + ks // 2) if full else min(2 * ks + 2, 15)
                fx.setdefault(g, []).append((COST['ds'], k_read(b + 2, ks), 'ds'))
            if full:
                fx.setdefault(n - 1, []).append((0, lambda: k.wait(lg=KFALL), 'wait'))
        if do_dma:
            isK = (b % 2 == 0)
            I = (b + 2) // 2 if isK else (b + 1) // 2
            if isK:
                slot = LDS_K + ((I + 2) % 4) * 16384; so = sKoff
            else:
                slot = LDS_V + ((I + 1) % 4) * 16384; so = sVoff
            gs = [22, 24, 26, 28] if full else [3, 5, 7, 9]
            fx.setdefault(gs[0] - 1, []).append((1, lambda: e(f's_add_u32 m0, s{sW4K}, {slot}'), 'end'))
            for p in range(4):
                va = DK + p if isK else DV
                sd = sK if isK else sV
                fx.setdefault(gs[p], []).append((COST['dma'], lambda p=p, va=va, sd=sd: e(
                    f'buffer_load_dwordx4 v{va}, s[{sd}:{sd + 3}], s{so} offen offset:{p * 1024} lds', 'kv'), 'dma'))
            fx.setdefault(gs[3] + 1, []).append((1, lambda: e(f's_add_u32 s{so}, s{so}, 16384'), 'end'))
        st = []
        if do_sm:
            st = softmax_stream(b)
        schedule(k, mf, fx, st, last_gap=n - 2, caps=caps)
        if do_kread and not full:
            k.wait(lg=KFALL)
        if do_sm:
            for _, f in check_items(b): f()

    stamp(k, 4)
    k.wait(lg=KFALL)
    step(0, do_pv=False)
    step(1, pv_zero=True)
    e('s_branch attn_ent')
    e('.p2align 6')
    k.label('attn_loop')
    for pos in range(8):
        if pos == 2:
            k.label('attn_ent')
        step(8 + pos)
        if pos == 6:
            e(f's_sub_u32 s{sCnt}, s{sCnt}, 1')
            e(f's_cmp_eq_u32 s{sCnt}, 0')
            e('s_cbranch_scc1 attn_tail')
    e('s_branch attn_loop')
    k.label('attn_tail')
    k.lgq = []
    if opts.get('pf', 1):
        e(f's_lshl_b32 s{sT0}, s2, 14')
        e(f's_add_u32 s{sT0}, s{sT0}, s{sW4K}')
        e(f'v_lshlrev_b32 v236, 6, v{VLANE}')
        for i, (sp, nb) in enumerate(((48, 4096 * 1024), (50, 512 * 3584), (52, 512 * 3584), (54, 1792 * 1024))):
            srd(k, 56, sp, sp + 1, nb)
            e(f'buffer_load_dword v{237 + i % 3}, v236, s[56:59], s{sT0} offen', 'pf')

    step(63, do_qk=False, do_kread=False, do_dma=False)
    step(64, do_qk=False, do_sm=False, do_kread=False, do_dma=False)

    stamp(k, 5)
    for qb in range(2):
        e(f'v_mov_b32 v{TMP}, v{L[qb]}')
        e(f'v_permlane32_swap_b32 v{L[qb]}, v{TMP}')
        e(f'v_add_f32 v{L[qb]}, v{L[qb]}, v{TMP}')
        e(f'v_rcp_f32 v{L[qb]}, v{L[qb]}')
    n = 0
    for qb in range(2):
        e(f's_add_u32 s{sT0}, s{sOb}, {qb * 262144}')
        e(f's_add_u32 s{sT1}, s{sOb}, {qb * 262144 + 4096}')
        for db in range(4):
            for u in range(2):
                acc = O + (db * 2 + qb) * 16 + 8 * u
                t = 8 + (n % 4) * 16; n += 1
                for i in range(8):
                    e(f'v_accvgpr_read_b32 v{t + i}, a{acc + i}')
                for i in range(8):
                    e(f'v_mul_f32 v{t + i}, v{t + i}, v{L[qb]}')
                for i in range(4):
                    e(f'v_cvt_pk_bf16_f32 v{t + 8 + i}, v{t + 2 * i}, v{t + 2 * i + 1}')
                kk = 2 * db + u
                so = sT0 if kk < 4 else sT1
                e(f'buffer_store_dwordx4 v[{t + 8}:{t + 11}], v{VL16}, s[{sWS}:{sWS + 3}], s{so} offen offset:{(kk % 4) * 1024}{opts.get("ost", "")}')
    stamp(k, 6)
    stamp_flush(k, 7, sWS, 1)
    k.label('attn_end')
    e('s_endpgm')

    for lab, ret, par in stubs:
        k.label(lab)
        e(f's_call_b64 s[{sLink}:{sLink + 1}], attn_slow{par}')
        e(f's_branch {ret}')
    for par in range(2):
        k.label(f'attn_slow{par}')
        e('s_nop 15'); e('s_nop 15')
        D0 = [TMP + 2, TMP + 3]
        for qb in range(2):
            sb = S[par] + 16 * qb; sn = S[1 - par] + 16 * qb
            e(f'v_max3_f32 v{TMP}, v{sb}, v{sb + 1}, v{sb + 2}')
            for i in range(3, 15, 2):
                e(f'v_max3_f32 v{TMP}, v{TMP}, v{sb + i}, v{sb + i + 1}')
            e(f'v_max_f32 v{TMP}, v{TMP}, v{sb + 15}')
            e(f'v_mov_b32 v{TMP + 1}, v{TMP}')
            e(f'v_permlane32_swap_b32 v{TMP}, v{TMP + 1}')
            e(f'v_max_f32 v{TMP}, v{TMP}, v{TMP + 1}')
            e(f'v_add_f32 v{TMP}, {f32(BIAS)}, v{TMP}')
            e(f'v_max_f32 v{TMP}, 0, v{TMP}')
            e(f'v_sub_f32 v{TMP + 1}, 0, v{TMP}')
            e(f'v_exp_f32 v{D0[qb]}, v{TMP + 1}')
            for i in range(16):
                e(f'v_sub_f32 v{NEGM + 16 * qb + i}, v{NEGM + 16 * qb + i}, v{TMP}')
                e(f'v_sub_f32 v{sb + i}, v{sb + i}, v{TMP}')
                e(f'v_sub_f32 v{sn + i}, v{sn + i}, v{TMP}')
            e(f'v_mul_f32 v{L[qb]}, v{L[qb]}, v{D0[qb]}')
            for db in range(4):
                acc = O + (db * 2 + qb) * 16
                for i in range(16):
                    t = ET + i % 8
                    e(f'v_accvgpr_read_b32 v{t}, a{acc + i}')
                    e(f'v_mul_f32 v{t}, v{t}, v{D0[qb]}')
                    e(f'v_accvgpr_write_b32 a{acc + i}, v{t}')
        for _, f in softmax_stream(par): f()
        e('s_nop 3')
        e(f's_setpc_b64 s[{sLink}:{sLink + 1}]')
    return k, 'grid=(256,1,1) block=(256,1,1) lds=135168'


def gen_gemm64(name, which):
    k = Kern(name)
    e = k.e
    NKS = 256 if which == 'wo' else 112
    KW = NKS // 8
    D = 8 if which == 'wo' else 7
    A_W = A_WO if which == 'wo' else A_W2
    WS_XIN = WS_O if which == 'wo' else WS_HH
    sW_, sWS, sG = 8, 12, 16
    sWv, sXo, sWo, sT0, sT1, sLb, sCnt = 32, 33, 34, 35, 36, 37, 38
    ACC = 8
    XF = 72
    WFr = XF + 64
    VL16, VDW, VWR = 160, 161, 162
    e(f's_cmp_ge_u32 s2, 256')
    e(f's_cbranch_scc1 {name}_end')
    stamp(k, 0)
    e(f's_load_dwordx2 s[4:5], s[0:1], {A_W}')
    e(f's_load_dwordx2 s[6:7], s[0:1], {A_WS}')
    e(f's_load_dwordx2 s[24:25], s[0:1], {A_X if which == "wo" else A_OUT}')
    e('s_and_b32 s28, s2, 7')
    e('s_lshl_b32 s28, s28, 2')
    e('s_lshr_b32 s29, s2, 3')
    e('s_and_b32 s30, s29, 3')
    e('s_add_u32 s28, s28, s30')
    e('s_lshr_b32 s29, s29, 2')
    e('v_lshrrev_b32 v1, 6, v0')
    e('v_and_b32 v2, 63, v0')
    e(f'v_readfirstlane_b32 s{sWv}, v1')
    e(f'v_lshlrev_b32 v{VL16}, 4, v2')
    e('v_lshrrev_b32 v3, 3, v2')
    e('v_and_b32 v4, 7, v2')
    e('v_lshlrev_b32 v5, 1, v3')
    e('v_and_b32 v5, 4, v5')
    e('v_xor_b32 v4, v4, v5')
    e('v_lshlrev_b32 v4, 4, v4')
    e(f'v_lshl_add_u32 v{VDW}, v3, 10, v4')
    e('v_lshrrev_b32 v3, 5, v2')
    e('v_bfe_u32 v4, v2, 2, 2')
    e('v_lshl_add_u32 v5, v3, 3, v4')
    e('v_lshlrev_b32 v5, 7, v5')
    e('v_bfe_u32 v6, v2, 4, 1')
    e('v_lshl_add_u32 v5, v6, 5, v5')
    e('v_and_b32 v6, 1, v2')
    e('v_lshl_add_u32 v5, v6, 4, v5')
    e('v_bfe_u32 v6, v2, 1, 1')
    e('v_lshl_add_u32 v5, v6, 3, v5')
    e(f's_lshl_b32 s{sLb}, s{sWv}, 14')
    e(f'v_add_u32 v5, s{sLb}, v5')
    e('v_lshrrev_b32 v6, 1, v4')
    e(f'v_lshl_add_u32 v{VWR}, v6, 6, v5')
    e('v_xor_b32 v6, 1, v6')
    e(f'v_lshl_add_u32 v{VWR + 1}, v6, 6, v5')
    e('s_waitcnt lgkmcnt(0)')
    srd(k, sW_, 4, 5, NKS * 16 * 1024)
    srd(k, sWS, 6, 7, WS_SIZE)
    srd(k, sG, 24, 25, 2048 * 1024)
    e(f's_mul_i32 s{sXo}, s28, {2 * NKS * 1024}')
    e(f's_mul_i32 s{sT0}, s{sWv}, {KW * 1024}')
    e(f's_add_u32 s{sXo}, s{sXo}, s{sT0}')
    e(f's_add_u32 s{sXo}, s{sXo}, {WS_XIN}')
    e(f's_add_u32 s{sT1}, s{sXo}, {NKS * 1024}')
    sXo1 = 39
    e(f's_mov_b32 s{sXo1}, s{sT1}')
    e(f's_mul_i32 s{sWo}, s{sWv}, {KW * 16 * 1024}')
    e(f's_lshl_b32 s{sT0}, s29, 7')
    e(f's_add_u32 s{sWo}, s{sWo}, s{sT0}')

    def loads(ks):
        sl = ks % D
        e(f's_add_u32 m0, s{sLb}, {sl * 2048}')
        e(f's_add_u32 s{sT0}, s{sWo}, {8192 - 1024}')
        e(f'buffer_load_dwordx4 v{VDW}, s[{sW_}:{sW_ + 3}], s{sWo} offen lds', ('w', ks))
        e(f'buffer_load_dwordx4 v{VDW}, s[{sW_}:{sW_ + 3}], s{sT0} offen offset:1024 lds', ('w', ks))
        for mb in range(2):
            r = XF + (sl * 2 + mb) * 4
            so = sXo if mb == 0 else sXo1
            e(f'buffer_load_dwordx4 v[{r}:{r + 3}], v{VL16}, s[{sWS}:{sWS + 3}], s{so} offen', ('x', ks))
        e(f's_add_u32 s{sWo}, s{sWo}, 16384')
        e(f's_add_u32 s{sXo}, s{sXo}, 1024')
        e(f's_add_u32 s{sXo1}, s{sXo1}, 1024')

    def wreads(ks):
        sl = ks % D
        k.wait(vm=[('w', ks)])
        for nb in range(2):
            for t in range(2):
                r = WFr + (ks % 2) * 8 + nb * 4 + t * 2
                e(f'ds_read_b64_tr_b16 v[{r}:{r + 1}], v{VWR + nb} offset:{sl * 2048 + t * 512}', ('wf', ks))

    def mfmas(ks):
        sl = ks % D
        k.wait(vm=[('x', ks)], lg=[('wf', ks)])
        for nb in range(2):
            for mb in range(2):
                acc = ACC + (nb * 2 + mb) * 16
                c = '0' if ks == 0 else vr(acc, 16)
                e(f'v_mfma_f32_32x32x16_bf16 {vr(acc, 16)}, {vr(WFr + (ks % 2) * 8 + nb * 4, 4)}, {vr(XF + (sl * 2 + mb) * 4, 4)}, {c}')

    for ks in range(D):
        loads(ks)
    EP = 164
    e(f's_lshr_b32 s{sT0}, s{sWv}, 2')
    e(f's_bfe_u32 s{sT1}, s{sWv}, 0x10001')
    e(f's_and_b32 s40, s{sWv}, 1')
    e('s_lshl_b32 s41, s29, 6')
    e(f's_lshl_b32 s42, s{sT0}, 5')
    e('s_add_u32 s41, s41, s42')
    e('s_lshl_b32 s42, s40, 4')
    e('s_add_u32 s41, s41, s42')
    e('s_lshl_b32 s42, s28, 6')
    e(f's_lshl_b32 s43, s{sT1}, 5')
    e('s_add_u32 s42, s42, s43')
    e('v_lshrrev_b32 v4, 5, v2')
    e('v_and_b32 v5, 31, v2')
    e('v_add_u32 v6, s42, v5')
    e('v_lshlrev_b32 v6, 10, v6')
    e('v_lshl_add_u32 v6, v4, 4, v6')
    e('s_lshl_b32 s43, s41, 1')
    e('v_add_u32 v6, s43, v6')
    e('s_lshl_b32 s43, s42, 10')
    e('s_lshl_b32 s44, s41, 6')
    e('s_add_u32 s43, s43, s44')
    e(f's_add_u32 s43, s43, {WS_X1}')
    e('v_lshlrev_b32 v7, 5, v4')
    e('s_lshl_b32 s44, s41, 2')
    e(f's_add_u32 s44, s44, {WS_GA if which == "wo" else WS_GB}')
    e(f'buffer_load_dwordx4 v[{EP}:{EP + 3}], v7, s[{sWS}:{sWS + 3}], s44 offen', 'g')
    e(f'buffer_load_dwordx4 v[{EP + 4}:{EP + 7}], v7, s[{sWS}:{sWS + 3}], s44 offen offset:16', 'g')
    if which == 'wo':
        e(f'buffer_load_dwordx4 v[{EP + 8}:{EP + 11}], v6, s[{sG}:{sG + 3}], 0 offen', 'g')
    else:
        e(f'buffer_load_dwordx4 v[{EP + 8}:{EP + 11}], v{VL16}, s[{sWS}:{sWS + 3}], s43 offen', 'g')
    stamp(k, 1)
    wreads(0)
    stamp(k, 2)
    for ks in range(KW):
        if ks + 1 < KW:
            wreads(ks + 1)
        mfmas(ks)
        if ks + D < KW:
            loads(ks + D)
    stamp(k, 3)
    e(f'v_add_u32 v3, s{sLb}, v{VL16}')
    for qd in range(16):
        e(f'ds_write_b128 v3, v[{ACC + 4 * qd}:{ACC + 4 * qd + 3}] offset:{qd * 1024}')
    e('s_waitcnt lgkmcnt(0)')
    e('s_barrier')
    stamp(k, 4)
    e(f's_lshl_b32 s{sT0}, s{sWv}, 11')
    e(f'v_add_u32 v3, s{sT0}, v{VL16}')
    e(f'v_add_u32 v1, 0x10000, v3')
    RD = 88
    for w in range(8):
        a = 3 if w < 4 else 1
        for h in range(2):
            r = RD + (w * 2 + h) * 4
            e(f'ds_read_b128 v[{r}:{r + 3}], v{a} offset:{(w % 4) * 16384 + h * 1024}', ('r', w))
    for w in range(1, 8):
        k.wait(lg=[('r', w), ('r', 0)])
        for i in range(8):
            e(f'v_add_f32 v{RD + i}, v{RD + i}, v{RD + w * 8 + i}')
    k.wait(vm=['g'])
    for i in range(8):
        rbf(k, RD + i, RD + i)
    for i in range(8):
        e(f'v_mul_f32 v{RD + i}, v{RD + i}, v{EP + i}')
    for i in range(8):
        rbf(k, RD + i, RD + i)
    for i in range(8):
        src = EP + 8 + i // 2
        if i % 2 == 0:
            e(f'v_lshlrev_b32 v{RD + 8 + i}, 16, v{src}')
        else:
            e(f'v_and_b32 v{RD + 8 + i}, 0xffff0000, v{src}')
    for i in range(8):
        e(f'v_add_f32 v{RD + i}, v{RD + i}, v{RD + 8 + i}')
    for i in range(4):
        e(f'v_cvt_pk_bf16_f32 v{RD + 16 + i}, v{RD + 2 * i}, v{RD + 2 * i + 1}')
    if which == 'w2':
        e(f'buffer_store_dwordx4 v[{RD + 16}:{RD + 19}], v6, s[{sG}:{sG + 3}], 0 offen')
    else:
        e(f'buffer_store_dwordx4 v[{RD + 16}:{RD + 19}], v{VL16}, s[{sWS}:{sWS + 3}], s43 offen')
        for i in range(8):
            src = RD + 16 + i // 2
            if i % 2 == 0:
                e(f'v_lshlrev_b32 v{RD + i}, 16, v{src}')
            else:
                e(f'v_and_b32 v{RD + i}, 0xffff0000, v{src}')
        e(f'v_add_f32 v{RD + 8}, v{RD}, v{RD + 1}')
        e(f'v_mul_f32 v{RD + 9}, v{RD}, v{RD}')
        e(f'v_fmac_f32 v{RD + 9}, v{RD + 1}, v{RD + 1}')
        for i in range(2, 8):
            e(f'v_add_f32 v{RD + 8}, v{RD + 8}, v{RD + i}')
            e(f'v_fmac_f32 v{RD + 9}, v{RD + i}, v{RD + i}')
        e(f's_lshl_b32 s45, s{sT1}, 11')
        e(f's_lshr_b32 s46, s{sWv}, 2')
        e('s_lshl_b32 s46, s46, 5')
        e('s_add_u32 s45, s45, s46')
        e('s_lshl_b32 s46, s40, 4')
        e('s_add_u32 s45, s45, s46')
        e('s_add_u32 s45, s45, 131072')
        e('v_lshlrev_b32 v3, 6, v5')
        e('v_lshl_add_u32 v3, v4, 3, v3')
        e('v_add_u32 v3, s45, v3')
        e(f'ds_write_b64 v3, v[{RD + 8}:{RD + 9}]')
        e('s_waitcnt lgkmcnt(0)')
        e('s_barrier')
        e(f's_cmp_lg_u32 s{sWv}, 0')
        e(f's_cbranch_scc1 {name}_end')
        e('v_lshlrev_b32 v3, 6, v2')
        e('v_add_u32 v3, 131072, v3')
        for j in range(4):
            e(f'ds_read_b128 v[{8 + 4 * j}:{11 + 4 * j}], v3 offset:{16 * j}')
        e('s_waitcnt lgkmcnt(0)')
        for j in range(1, 8):
            e(f'v_add_f32 v8, v8, v{8 + 2 * j}')
            e(f'v_add_f32 v9, v9, v{9 + 2 * j}')
        e('s_lshl_b32 s45, s28, 12')
        e('s_lshl_b32 s46, s29, 3')
        e('s_add_u32 s45, s45, s46')
        e(f's_add_u32 s45, s45, {WS_ST}')
        e('v_lshlrev_b32 v3, 6, v2')
        e(f'buffer_store_dwordx2 v[8:9], v3, s[{sWS}:{sWS + 3}], s45 offen')
    stamp_flush(k, 5, sWS, 2 if which == 'wo' else 4)
    k.label(f'{name}_end')
    e('s_endpgm')
    return k, 'grid=(256,1,1) block=(512,1,1) lds=135168'


def gen_ffn1(opts):
    k = Kern('ffn1_kernel')
    e = k.e
    name = 'ffn1'
    s1, s3_, sWS = 8, 12, 16
    sW, sT0, sT1, sXb, sWo, sHb = 32, 33, 34, 35, 36, 37
    XR = 8; H = 136; SS = 152; FT = 184; WRA = 200
    VL16, VDW, VMD, VLANE = 204, 205, 206, 207
    RS = [208, 209]; NM = [210, 211]
    WF = 128; ACC = 0
    LDS_G, LDS_U, LDS_MOD = 0, 65536, 131072
    e('s_cmp_ge_u32 s2, 224')
    e(f's_cbranch_scc1 {name}_end')
    stamp(k, 0)
    e(f's_load_dwordx4 s[4:7], s[0:1], {A_W1}')
    e(f's_load_dwordx2 s[24:25], s[0:1], {A_WS}')
    e('s_and_b32 s28, s2, 7')
    e('s_lshr_b32 s29, s2, 3')
    e('v_lshrrev_b32 v1, 6, v0')
    e(f'v_and_b32 v{VLANE}, 63, v0')
    e(f'v_readfirstlane_b32 s{sW}, v1')
    e(f'v_lshlrev_b32 v{VL16}, 4, v{VLANE}')
    e(f'v_lshrrev_b32 v3, 3, v{VLANE}')
    e(f'v_and_b32 v4, 7, v{VLANE}')
    e('v_lshlrev_b32 v5, 1, v3')
    e('v_and_b32 v5, 4, v5')
    e('v_xor_b32 v4, v4, v5')
    e('v_lshlrev_b32 v4, 4, v4')
    e('s_mov_b32 s3, 3584')
    e('v_mul_lo_u32 v3, v3, s3')
    e(f'v_add_u32 v{VDW}, v3, v4')
    e('s_waitcnt lgkmcnt(0)')
    srd(k, s1, 4, 5, 512 * 3584)
    srd(k, s3_, 6, 7, 512 * 3584)
    srd(k, sWS, 24, 25, WS_SIZE)
    e('s_lshl_b32 s3, s28, 3')
    e(f's_lshl_b32 s{sT0}, s{sW}, 1')
    e(f's_add_u32 s3, s3, s{sT0}')
    e(f's_lshl_b32 s{sXb}, s3, 15')
    e(f's_add_u32 s{sXb}, s{sXb}, {WS_X1}')
    e(f's_mul_i32 s{sHb}, s3, {112 * 1024}')
    e(f's_lshl_b32 s{sT0}, s29, 12')
    e(f's_add_u32 s{sHb}, s{sHb}, s{sT0}')
    e(f's_add_u32 s{sHb}, s{sHb}, {WS_HH}')
    e(f's_mul_i32 s{sWo}, s{sW}, {16 * 3584}')
    e(f's_lshl_b32 s{sT0}, s29, 7')
    e(f's_add_u32 s{sWo}, s{sWo}, s{sT0}')
    sW2K = 38
    e(f's_lshl_b32 s{sW2K}, s{sW}, 11')
    e(f'v_and_b32 v5, 31, v{VLANE}')
    e(f'v_lshrrev_b32 v4, 5, v{VLANE}')
    e('v_lshlrev_b32 v6, 6, v5')
    e('v_lshl_add_u32 v6, v4, 5, v6')
    e(f's_lshl_b32 s{sT0}, s3, 11')
    e(f's_add_u32 s{sT0}, s{sT0}, {WS_ST}')
    for qb in range(2):
        for j in range(2):
            r = 212 + qb * 8 + 4 * j
            e(f'buffer_load_dwordx4 v[{r}:{r + 3}], v6, s[{sWS}:{sWS + 3}], s{sT0} offen offset:{qb * 2048 + 16 * j}', 'st')

    def w_dma(c):
        out = []
        for mat, (sd, reg) in enumerate(((s1, LDS_G), (s3_, LDS_U))):
            for p in range(2):
                g = []
                if p == 0:
                    g.append((1, lambda reg=reg: e(f's_add_u32 m0, s{sW2K}, {reg + c * 8192}')))
                g.append((1, lambda p=p: e(f's_add_u32 s{sT0}, s{sWo}, {c * 64 * 3584 + p * (8 * 3584 - 1024)}')))
                g.append((COST['dma'], lambda p=p, sd=sd: e(f'buffer_load_dwordx4 v{VDW}, s[{sd}:{sd + 3}], s{sT0} offen offset:{p * 1024} lds', ('wq', c))))
                out.append(g)
        return out

    def xreg(ks, qb):
        return XR + (((ks // 4) % 4) * 8 + (ks % 4) * 2 + qb) * 4

    def x_load(ks, qb):
        c = ks // 4
        r = xreg(ks, qb)
        return [(1, lambda: e(f's_add_u32 s{sT1}, s{sXb}, {qb * 32768 + c * 4096}')),
                (COST['vload'], lambda: e(f'buffer_load_dwordx4 v[{r}:{r + 3}], v{VL16}, s[{sWS}:{sWS + 3}], s{sT1} offen offset:{(ks % 4) * 1024}', ('x', ks)))]

    e(f's_lshl_b32 s{sT0}, s{sW}, 10')
    e(f's_add_u32 m0, s{sT0}, {LDS_MOD}')
    e(f's_add_u32 s{sT0}, s{sT0}, {WS_MOD2}')
    e(f'buffer_load_dwordx4 v{VL16}, s[{sWS}:{sWS + 3}], s{sT0} offen lds', ('wq', 0))
    NPRE = opts.get('npre', 1)
    for c in range(NPRE):
        for g in w_dma(c):
            for _, f in g: f()
        for ks in range(4 * c, 4 * c + 4):
            for qb in range(2):
                for _, f in x_load(ks, qb): f()
    e(f'v_bfe_u32 v3, v{VLANE}, 2, 2')
    e('v_lshl_add_u32 v5, v4, 3, v3')
    e('v_lshlrev_b32 v5, 7, v5')
    e(f'v_bfe_u32 v6, v{VLANE}, 4, 1')
    e('v_lshl_add_u32 v5, v6, 5, v5')
    e(f'v_and_b32 v6, 1, v{VLANE}')
    e('v_lshl_add_u32 v5, v6, 4, v5')
    e(f'v_bfe_u32 v6, v{VLANE}, 1, 1')
    e('v_lshl_add_u32 v5, v6, 3, v5')
    e('v_lshrrev_b32 v6, 1, v3')
    e(f'v_lshl_add_u32 v{WRA}, v6, 6, v5')
    e('v_xor_b32 v6, 1, v6')
    e(f'v_lshl_add_u32 v{WRA + 1}, v6, 6, v5')
    e(f'v_add_u32 v{WRA + 2}, {LDS_U}, v{WRA}')
    e(f'v_add_u32 v{WRA + 3}, {LDS_U}, v{WRA + 1}')
    e(f'v_lshlrev_b32 v{VMD}, 6, v4')
    e(f'v_add_u32 v{VMD}, {LDS_MOD}, v{VMD}')
    k.wait(vm=['st'])
    e(f's_mov_b32 s3, {f32(1.0 / 512)}')
    for qb in range(2):
        r = 212 + qb * 8
        for j in range(1, 4):
            e(f'v_add_f32 v{r}, v{r}, v{r + 2 * j}')
            e(f'v_add_f32 v{r + 1}, v{r + 1}, v{r + 2 * j + 1}')
        e(f'v_mov_b32 v{r + 2}, v{r}')
        e(f'v_mov_b32 v{r + 3}, v{r + 1}')
        e(f'v_permlane32_swap_b32 v{r}, v{r + 2}')
        e(f'v_permlane32_swap_b32 v{r + 1}, v{r + 3}')
        e(f'v_add_f32 v{r}, v{r}, v{r + 2}')
        e(f'v_add_f32 v{r + 1}, v{r + 1}, v{r + 3}')
        e(f'v_mul_f32 v{r}, s3, v{r}')
        e(f'v_mul_f32 v{r + 1}, s3, v{r + 1}')
        e(f'v_fma_f32 v{r + 1}, -v{r}, v{r}, v{r + 1}')
        e(f'v_max_f32 v{r + 1}, 0, v{r + 1}')
        rbf(k, r, r)
        rbf(k, r + 1, r + 1)
        e(f'v_add_f32 v{r + 1}, {f32(1e-5)}, v{r + 1}')
        rbf(k, r + 1, r + 1)
        e(f'v_sqrt_f32 v{r + 1}, v{r + 1}')
        rbf(k, r + 1, r + 1)
        e(f'v_rcp_f32 v{RS[qb]}, v{r + 1}')
        e(f'v_mul_f32 v{NM[qb]}, v{r}, v{RS[qb]}')
        e(f'v_sub_f32 v{NM[qb]}, 0, v{NM[qb]}')

    def w_reads(ks):
        out = []
        for db in range(4):
            for t in range(2):
                r = WF + (ks % 2) * 16 + db * 4 + t * 2
                out.append((COST['ds'], lambda r=r, db=db, t=t: e(f'ds_read_b64_tr_b16 a[{r}:{r + 1}], v{WRA + db} offset:{ks * 2048 + t * 512}', ('w', ks))))
        return out

    def ss_reads(ks):
        out = []
        for j in range(4):
            r = SS + (ks % 2) * 16 + 4 * j
            out.append((COST['ds'], lambda r=r, j=j: e(f'ds_read_b128 v[{r}:{r + 3}], v{VMD} offset:{ks * 128 + j * 16}', ('ss', ks))))
        return out

    def xform(ks):
        out = []
        sb = SS + (ks % 2) * 16
        for qb in range(2):
            x = xreg(ks, qb)
            for p in range(4):
                t = FT + (qb * 4 + p) * 2
                out.append((1, lambda x=x, p=p, t=t: e(f'v_lshlrev_b32 v{t}, 16, v{x + p}')))
                out.append((1, lambda x=x, p=p, t=t: e(f'v_and_b32 v{t + 1}, 0xffff0000, v{x + p}')))
                out.append((1, lambda t=t, qb=qb: e(f'v_fma_f32 v{t}, v{t}, v{RS[qb]}, v{NM[qb]}')))
                out.append((1, lambda t=t, qb=qb: e(f'v_fma_f32 v{t + 1}, v{t + 1}, v{RS[qb]}, v{NM[qb]}')))
                out.append((1, lambda p=p, t=t: e(f'v_fma_f32 v{t}, v{t}, v{sb + 2 * p}, v{sb + 8 + 2 * p}')))
                out.append((1, lambda p=p, t=t: e(f'v_fma_f32 v{t + 1}, v{t + 1}, v{sb + 2 * p + 1}, v{sb + 8 + 2 * p + 1}')))
                h = H + (ks % 2) * 8 + qb * 4 + p
                out.append((1, lambda t=t, h=h: e(f'v_cvt_pk_bf16_f32 v{h}, v{t}, v{t + 1}')))
        return out

    def chunk_barrier(c):
        stamp(k, 1)
        k.wait(vm=[('wq', c)])
        e('s_barrier')
        stamp(k, 2)

    todo = []
    for c in range(NPRE, 8):
        todo += [(0, g) for g in w_dma(c)]
        for ks in range(4 * c, 4 * c + 4):
            todo += [(ks - 16, x_load(ks, 0)), (ks - 16, x_load(ks, 1))]
    RATE = opts.get('rate', 4)

    def refill(ks):
        out = []
        while todo and len(out) < RATE and todo[0][0] <= ks:
            out.append(todo.pop(0)[1])
        return out

    gemm256(k, dict(w_reads=w_reads, ss_reads=ss_reads, xform=xform, refill=refill, chunk_barrier=chunk_barrier,
                    ACC=ACC, WF=WF, H=H))
    assert not todo
    stamp(k, 3)
    e(f's_mov_b32 s3, {f32(-LOG2E)}')
    n = 0
    for qb in range(2):
        e(f's_add_u32 s{sT0}, s{sHb}, {qb * 112 * 1024}')
        for nb in range(2):
            for u in range(2):
                g = ACC + (nb * 2 + qb) * 16 + 8 * u
                up = ACC + ((2 + nb) * 2 + qb) * 16 + 8 * u
                t = 8 + (n % 4) * 32; n += 1
                for i in range(8):
                    e(f'v_accvgpr_read_b32 v{t + i}, a{g + i}')
                for i in range(8):
                    e(f'v_accvgpr_read_b32 v{t + 8 + i}, a{up + i}')
                for i in range(8):
                    rbf(k, t + i, t + i)
                for i in range(8):
                    e(f'v_mul_f32 v{t + 16 + i}, s3, v{t + i}')
                for i in range(8):
                    e(f'v_exp_f32 v{t + 16 + i}, v{t + 16 + i}')
                for i in range(8):
                    rbf(k, t + 8 + i, t + 8 + i)
                for i in range(8):
                    e(f'v_add_f32 v{t + 16 + i}, 1.0, v{t + 16 + i}')
                for i in range(8):
                    e(f'v_rcp_f32 v{t + 16 + i}, v{t + 16 + i}')
                for i in range(8):
                    e(f'v_mul_f32 v{t + i}, v{t + i}, v{t + 16 + i}')
                for i in range(8):
                    rbf(k, t + i, t + i)
                for i in range(8):
                    e(f'v_mul_f32 v{t + i}, v{t + i}, v{t + 8 + i}')
                for i in range(4):
                    e(f'v_cvt_pk_bf16_f32 v{t + 24 + i}, v{t + 2 * i}, v{t + 2 * i + 1}')
                e(f'buffer_store_dwordx4 v[{t + 24}:{t + 27}], v{VL16}, s[{sWS}:{sWS + 3}], s{sT0} offen offset:{(nb * 2 + u) * 1024}{opts.get("hst", "")}')
    stamp(k, 4)
    stamp_flush(k, 5, sWS, 3)
    k.label(f'{name}_end')
    e('s_endpgm')
    return k, 'grid=(224,1,1) block=(256,1,1) lds=135168'


def build(opts=None):
    global STAMP
    opts = opts or {}
    STAMP = opts.get('stamp', False)
    for kk in COST:
        if 'c_' + kk in opts: COST[kk] = opts['c_' + kk]
    ks = [gen_prep(opts), gen_attn(opts), gen_gemm64('oproj_kernel', 'wo'), gen_ffn1(opts), gen_gemm64('ffn2_kernel', 'w2')]
    hdr = open('adaLN_cond__mha_block_cached__glu_gated_swiglu__prompt.s.ref').read().split('\n')
    out = []
    for l in hdr:
        if l.startswith('; Override') or l.startswith('; grid=') or '@launch' in l or not l.startswith(';'):
            if not l.startswith(';'):
                break
            continue
        out.append(l)
    for k, launch in ks:
        for _ in range(1 + opts.get('dup_' + k.name[:4], 0)):
            out.append(f'; @launch kernel={k.name} {launch}')
    out.append('.amdgcn_target "amdgcn-amd-amdhsa--gfx950"')
    out.append('.text')
    for k, _ in ks:
        n = k.fix_hazards(verbose=opts.get('verbose', False))
        print(f'{k.name}: {len(k.ins)} instr, {n} hazard nop states, regs {k.max_regs()}', file=sys.stderr)
        out.append(f'.globl {k.name}')
        out.append('.p2align 8')
        out.append(f'.type {k.name},@function')
        out.append(f'{k.name}:')
        out.append(k.text())
    errs = 0
    errs += ks[0][0].verify_path({})
    errs += ks[0][0].verify_path({'prep_ln': 1})
    errs += ks[1][0].verify_path({'attn_tail': [False, False, True]})
    errs += ks[2][0].verify_path({})
    errs += ks[3][0].verify_path({})
    errs += ks[4][0].verify_path({})
    assert errs == 0, errs
    out.append('.section .rodata,"a"')
    for k, _ in ks:
        out.append('.p2align 6')
        out.append(descriptor(k))
    return '\n'.join(out)


if __name__ == '__main__':
    dst = sys.argv[1] if len(sys.argv) > 1 else 'adaLN_cond__mha_block_cached__glu_gated_swiglu__prompt.s'
    opts = {}
    for a in sys.argv[2:]:
        kk, _, v = a.partition('=')
        opts[kk] = eval(v) if v else True
    open(dst, 'w').write(build(opts))
```

```python
import sys, struct, math
from asmlib import *

A_X, A_K, A_V, A_WQ, A_WO, A_BX, A_W1, A_W3, A_W2, A_C, A_WMOD, A_OUT, A_DBG, A_WS = [8 * i for i in range(14)]
WS_MOD1 = 0
WS_GA = 4096
WS_MOD2 = 8192
WS_GB = 8192 + 4096
WS_XHAT = 0x10000
WS_O = 0x400000
WS_X1 = 0x1400000
WS_ST = 0x1600000
WS_HH = 0x1800000
WS_SIZE = 0x2000000

LOG2E = 1.4426950408889634


def f32(x):
    return '0x%08x' % struct.unpack('<I', struct.pack('<f', x))[0]


def srd(k, d, lo, hi, nbytes):
    k.e(f's_mov_b32 s{d}, s{lo}')
    k.e(f's_and_b32 s{d + 1}, s{hi}, 0xffff')
    k.e(f's_mov_b32 s{d + 2}, {nbytes}')
    k.e(f's_mov_b32 s{d + 3}, 0x00020000')


WS_STAMP = 0x1F00000
STAMP = False


def stamp(k, idx):
    if not STAMP:
        return
    k.e('s_waitcnt lgkmcnt(0)')
    k.e(f's_memtime s[{64 + 2 * idx}:{65 + 2 * idx}]')
    if idx == 0:
        k.e('s_memrealtime s[96:97]')
    k.e('s_waitcnt lgkmcnt(0)')


def stamp_flush(k, n, sws, kidx):
    if not STAMP:
        return
    e = k.e
    e('s_waitcnt vmcnt(0) lgkmcnt(0)')
    stamp(k, n)
    e('s_memrealtime s[98:99]')
    e('s_waitcnt lgkmcnt(0)')
    lab = k.newlabel('nost')
    e('v_readfirstlane_b32 s100, v0')
    e('s_cmp_lg_u32 s100, 0')
    e(f's_cbranch_scc1 {lab}')
    e('s_lshl_b32 s100, s2, 7')
    e(f's_add_u32 s100, s100, {WS_STAMP + kidx * 65536}')
    e('v_mov_b32 v1, 0')
    for i in range(n + 1):
        e(f'v_mov_b32 v2, s{64 + 2 * i}')
        e(f'buffer_store_dword v2, v1, s[{sws}:{sws + 3}], s100 offen offset:{4 * i}')
    e('v_mov_b32 v2, s96')
    e(f'buffer_store_dword v2, v1, s[{sws}:{sws + 3}], s100 offen offset:120')
    e('v_mov_b32 v2, s98')
    e(f'buffer_store_dword v2, v1, s[{sws}:{sws + 3}], s100 offen offset:124')
    k.label(lab)


def rbf(k, d, s):
    k.e(f'v_cvt_pk_bf16_f32 v{d}, 0, v{s}')


def allreduce16(k, v, t):
    for mod in ('quad_perm:[1,0,3,2]', 'quad_perm:[2,3,0,1]', 'row_half_mirror', 'row_mirror'):
        k.e(f'v_add_f32_dpp v{t}, v{v}, v{v} {mod} row_mask:0xf bank_mask:0xf')
        v, t = t, v


def gen_prep(opts):
    k = Kern('prep_kernel')
    e = k.e
    NMOD, NLN = 96, 128
    e(f's_cmp_ge_u32 s2, {NMOD + NLN}')
    e('s_cbranch_scc1 prep_end')
    stamp(k, 0)
    e(f's_load_dwordx2 s[4:5], s[0:1], {A_WS}')
    e(f's_load_dwordx2 s[6:7], s[0:1], {A_X}')
    e(f's_load_dwordx4 s[20:23], s[0:1], {A_C}')
    e(f's_load_dwordx4 s[36:39], s[0:1], {A_K}')
    e(f's_load_dwordx2 s[40:41], s[0:1], {A_WQ}')

    def prefetch():
        if not opts.get('pf1', 1):
            return
        e('v_lshrrev_b32 v72, 6, v0')
        e('v_and_b32 v73, 63, v0')
        e('v_readfirstlane_b32 s42, v72')
        e('v_lshrrev_b32 v74, 4, v73')
        e('v_and_b32 v75, 15, v73')
        e('v_lshlrev_b32 v74, 13, v74')
        e('v_lshl_add_u32 v74, v75, 6, v74')
        e('v_lshlrev_b32 v73, 6, v73')
        e('s_lshr_b32 s43, s2, 3')
        e('s_lshl_b32 s43, s43, 2')
        e('s_add_u32 s43, s43, s42')
        e('s_and_b32 s44, s2, 7')
        srd(k, 48, 40, 41, 512 * 8192)
        e('s_lshl_b32 s45, s43, 15')
        e('s_lshl_b32 s46, s44, 10')
        e('s_add_u32 s45, s45, s46')
        e('buffer_load_dword v76, v74, s[48:51], s45 offen', 'pf')
        e(f's_add_u32 s45, s45, {112 * 32768}')
        e('buffer_load_dword v77, v74, s[48:51], s45 offen', 'pf')
        e('s_and_b32 s45, s43, 63')
        e('s_lshr_b32 s46, s45, 4')
        e('s_lshl_b32 s47, s44, 2')
        e('s_add_u32 s46, s46, s47')
        e('s_lshl_b32 s46, s46, 19')
        e('s_and_b32 s45, s45, 15')
        e('s_lshl_b32 s45, s45, 12')
        e('s_add_u32 s45, s45, s46')
        srd(k, 48, 36, 37, 32 * 524288)
        e('buffer_load_dword v78, v73, s[48:51], s45 offen', 'pf')
        srd(k, 48, 38, 39, 32 * 524288)
        e('buffer_load_dword v79, v73, s[48:51], s45 offen', 'pf')
    e(f's_cmp_ge_u32 s2, {NMOD}')
    e('s_cbranch_scc1 prep_ln')
    e('v_and_b32 v1, 3, v0')
    e('v_lshrrev_b32 v2, 2, v0')
    e('s_mov_b32 s3, 49152')
    e('v_mul_lo_u32 v3, v2, s3')
    e('v_lshl_add_u32 v3, v1, 4, v3')
    e('s_lshl_b32 s3, s2, 6')
    e('v_add_u32 v3, s3, v3')
    e('v_lshlrev_b32 v4, 4, v2')
    e('s_waitcnt lgkmcnt(0)')
    srd(k, 8, 20, 21, 1024)
    srd(k, 12, 22, 23, 512 * 6144)
    srd(k, 16, 4, 5, WS_SIZE)
    e('buffer_load_dwordx4 v[8:11], v4, s[8:11], 0 offen', 'c')
    for i in range(8):
        e(f's_mov_b32 s{24 + i}, {i * 6144}')
        e(f'buffer_load_dwordx4 v[{16 + 4 * i}:{19 + 4 * i}], v3, s[12:15], s{24 + i} offen', ('w', i))
    prefetch()
    k.wait(vm=['c'])
    e(f's_mov_b32 s3, {f32(-LOG2E)}')
    for i in range(8):
        src = 8 + i // 2
        if i % 2 == 0:
            e(f'v_lshlrev_b32 v{48 + i}, 16, v{src}')
        else:
            e(f'v_and_b32 v{48 + i}, 0xffff0000, v{src}')
    for i in range(8):
        e(f'v_mul_f32 v{56 + i}, s3, v{48 + i}')
    for i in range(8):
        e(f'v_exp_f32 v{56 + i}, v{56 + i}')
    for i in range(8):
        e(f'v_add_f32 v{56 + i}, 1.0, v{56 + i}')
    for i in range(8):
        e(f'v_rcp_f32 v{56 + i}, v{56 + i}')
    for i in range(8):
        e(f'v_mul_f32 v{48 + i}, v{48 + i}, v{56 + i}')
    for i in range(8):
        rbf(k, 48 + i, 48 + i)
    for i in range(8):
        k.wait(vm=[('w', i)])
        for p in range(4):
            w = 16 + 4 * i + p
            e(f'v_lshlrev_b32 v56, 16, v{w}')
            e(f'v_and_b32 v57, 0xffff0000, v{w}')
            if i == 0:
                e(f'v_mul_f32 v{64 + 2 * p}, v48, v56')
                e(f'v_mul_f32 v{65 + 2 * p}, v48, v57')
            else:
                e(f'v_fmac_f32 v{64 + 2 * p}, v{48 + i}, v56')
                e(f'v_fmac_f32 v{65 + 2 * p}, v{48 + i}, v57')
    e('v_lshlrev_b32 v5, 5, v0')
    e('ds_write_b128 v5, v[64:67]')
    e('ds_write_b128 v5, v[68:71] offset:16')
    e('s_waitcnt lgkmcnt(0)')
    e('s_barrier')
    e('v_and_b32 v6, 31, v0')
    e('v_lshrrev_b32 v7, 5, v0')
    e('v_lshlrev_b32 v5, 10, v7')
    e('v_lshl_add_u32 v5, v6, 2, v5')
    for i in range(8):
        e(f'ds_read_b32 v{16 + i}, v5 offset:{i * 128}')
    e('s_waitcnt lgkmcnt(0)')
    for i in range(1, 8):
        e(f'v_add_f32 v16, v16, v{16 + i}')
    e('v_lshlrev_b32 v5, 2, v0')
    e('ds_write_b32 v5, v16 offset:8192')
    e('s_waitcnt lgkmcnt(0)')
    e('s_barrier')
    e('v_cmp_gt_u32 vcc, 32, v0')
    e('s_and_saveexec_b64 s[32:33], vcc')
    e('s_cbranch_execz prep_end')
    for i in range(8):
        e(f'ds_read_b32 v{16 + i}, v5 offset:{8192 + i * 128}')
    e('s_waitcnt lgkmcnt(0)')
    for i in range(1, 8):
        e(f'v_add_f32 v16, v16, v{16 + i}')
    rbf(k, 16, 16)
    e('v_add_f32 v17, 1.0, v16')
    rbf(k, 17, 17)
    e('s_lshr_b32 s24, s2, 4')
    e('s_and_b32 s25, s2, 15')
    e('s_lshl_b32 s25, s25, 5')
    e('v_add_u32 v6, s25, v0')
    e('s_cmp_ge_u32 s24, 3')
    e('s_cselect_b32 s26, 8192, 0')
    e('s_cselect_b32 s27, 3, 0')
    e('s_sub_u32 s24, s24, s27')
    e('v_lshrrev_b32 v7, 3, v6')
    e('v_lshlrev_b32 v7, 6, v7')
    e('v_and_b32 v8, 7, v6')
    e('v_lshl_add_u32 v7, v8, 2, v7')
    e('v_lshlrev_b32 v8, 2, v6')
    stamp_flush(k, 1, 16, 0)
    e('s_cmp_eq_u32 s24, 2')
    e('s_cbranch_scc1 prep_gate')
    e('s_cmp_eq_u32 s24, 1')
    e('s_cbranch_scc1 prep_scale')
    e('buffer_store_dword v16, v7, s[16:19], s26 offen offset:32')
    e('s_endpgm')
    k.label('prep_scale')
    e('buffer_store_dword v17, v7, s[16:19], s26 offen')
    e('s_endpgm')
    k.label('prep_gate')
    e('s_add_u32 s26, s26, 4096')
    e('buffer_store_dword v16, v8, s[16:19], s26 offen')
    e('s_endpgm')
    k.label('prep_ln')
    e(f's_sub_u32 s3, s2, {NMOD}')
    e('s_lshl_b32 s3, s3, 4')
    e('v_lshrrev_b32 v1, 4, v0')
    e('v_add_u32 v1, s3, v1')
    e('v_and_b32 v2, 15, v0')
    e('v_lshlrev_b32 v3, 10, v1')
    e('v_lshl_add_u32 v3, v2, 4, v3')
    e('s_waitcnt lgkmcnt(0)')
    srd(k, 8, 6, 7, 2048 * 1024)
    srd(k, 16, 4, 5, WS_SIZE)
    for j in range(4):
        e(f'buffer_load_dwordx4 v[{8 + 4 * j}:{11 + 4 * j}], v3, s[8:11], 0 offen offset:{256 * j}', ('x', j))
    prefetch()
    e('v_lshrrev_b32 v4, 5, v1')
    e('v_lshlrev_b32 v4, 15, v4')
    e('v_lshrrev_b32 v5, 1, v2')
    e('v_lshl_add_u32 v4, v5, 10, v4')
    e('v_and_b32 v5, 1, v2')
    e('v_lshl_add_u32 v4, v5, 9, v4')
    e('v_and_b32 v5, 31, v1')
    e('v_lshl_add_u32 v4, v5, 4, v4')
    X = 32
    for j in range(4):
        k.wait(vm=[('x', j)])
        for p in range(4):
            e(f'v_lshlrev_b32 v{X + 8 * j + 2 * p}, 16, v{8 + 4 * j + p}')
            e(f'v_and_b32 v{X + 8 * j + 2 * p + 1}, 0xffff0000, v{8 + 4 * j + p}')
    e(f'v_add_f32 v24, v{X}, v{X + 1}')
    e(f'v_add_f32 v25, v{X + 2}, v{X + 3}')
    for i in range(4, 32):
        e(f'v_add_f32 v{24 + i % 2}, v{24 + i % 2}, v{X + i}')
    e('v_add_f32 v24, v24, v25')
    allreduce16(k, 24, 25)
    e(f's_mov_b32 s3, {f32(1.0 / 512)}')
    e('v_mul_f32 v24, s3, v24')
    for i in range(32):
        e(f'v_sub_f32 v{64 + i % 4}, v{X + i}, v24')
        if i < 2:
            e(f'v_mul_f32 v{26 + i}, v{64 + i % 4}, v{64 + i % 4}')
        else:
            e(f'v_fmac_f32 v{26 + i % 2}, v{64 + i % 4}, v{64 + i % 4}')
    e('v_add_f32 v26, v26, v27')
    allreduce16(k, 26, 27)
    e('v_mul_f32 v26, s3, v26')
    rbf(k, 24, 24)
    rbf(k, 26, 26)
    e(f'v_add_f32 v26, {f32(1e-5)}, v26')
    rbf(k, 26, 26)
    e('v_sqrt_f32 v26, v26')
    rbf(k, 26, 26)
    e('v_rcp_f32 v26, v26')
    e(f's_mov_b32 s24, {WS_XHAT}')
    for j in range(4):
        for i in range(8):
            r = X + 8 * j + i
            e(f'v_sub_f32 v{r}, v{r}, v24')
        for i in range(8):
            r = X + 8 * j + i
            rbf(k, r, r)
        for i in range(8):
            r = X + 8 * j + i
            e(f'v_mul_f32 v{r}, v{r}, v26')
        for i in range(8):
            r = X + 8 * j + i
            rbf(k, r, r)
        for p in range(4):
            r = X + 8 * j + 2 * p
            e(f'v_cvt_pkrtz_f16_f32 v{8 + 4 * j + p}, v{r}, v{r + 1}')
        e(f'buffer_store_dwordx4 v[{8 + 4 * j}:{11 + 4 * j}], v4, s[16:19], s24 offen')
        if j < 3:
            e(f's_add_u32 s24, s24, 8192')
    stamp_flush(k, 1, 16, 0)
    k.label('prep_end')
    e('s_endpgm')
    return k, f'grid=({NMOD + NLN},1,1) block=(256,1,1) lds=9216'


COST = {'exp': 2, 'valu': 1, 'ds': 1, 'dma': 2.5, 'salu': 1, 'vload': 2.5}
GAPCAP = 6
ORDER = {'wait': 0, 'bar': 1, 'dma': 2, 'ds': 3, 'end': 9}


def schedule(k, mfmas, fixed, stream, last_gap=None, cap=GAPCAP, caps=None):
    n = len(mfmas)
    if last_gap is None:
        last_gap = n - 1
    spare = []
    for g in range(n):
        c = sum(x[0] for x in fixed.get(g, []))
        cp = caps.get(g, cap) if caps else cap
        spare.append(max(cp - c, 0) if g <= last_gap else 0)
    tot_spare = sum(spare)
    tot = sum(x[0] for x in stream)
    si = 0
    done = 0.0
    cum = 0
    lastg = max([g for g in range(n) if spare[g] > 0] or [n - 1])
    for g in range(n):
        mfmas[g]()
        fx = sorted(fixed.get(g, []), key=lambda x: ORDER[x[2]])
        cum += spare[g]
        target = tot * cum / max(tot_spare, 1)
        mine = []
        while si < len(stream) and ((spare[g] > 0 and done + stream[si][0] * 0.5 <= target) or g >= lastg):
            mine.append(stream[si]); done += stream[si][0]; si += 1
        for x in fx:
            if x[2] != 'end': x[1]()
        for x in mine: x[1]()
        for x in fx:
            if x[2] == 'end': x[1]()
    assert si == len(stream)


def gemm256(k, P):
    e = k.e
    P['chunk_barrier'](0)
    for _, f in P['ss_reads'](0) + P['w_reads'](0) + P['ss_reads'](1): f()
    k.wait(vm=[('x', 0)], lg=[('ss', 0)])
    for _, f in P['xform'](0): f()
    k.wait(lg=[('w', 0)])
    for ks in range(32):
        mf = []
        for db in range(4):
            for qb in range(2):
                def m(db=db, qb=qb):
                    acc = P['ACC'] + (db * 2 + qb) * 16
                    wf = P['WF'] + (ks % 2) * 16 + db * 4
                    h = P['H'] + (ks % 2) * 8 + qb * 4
                    c = '0' if ks == 0 else ar(acc, 16)
                    e(f'v_mfma_f32_32x32x16_bf16 {ar(acc, 16)}, {ar(wf, 4)}, {vr(h, 4)}, {c}')
                mf.append(m)
        fx = {}
        st = []
        caps = {}
        if ks + 1 < 32:
            newc = (ks + 1) % 4 == 0
            if newc:
                fx.setdefault(0, []).append((0, lambda: k.wait(vm=[('wq', (ks + 1) // 4), ('x', ks + 1)], lg=[('ss', ks + 1)]), 'wait'))
                fx.setdefault(0, []).append((6, lambda: e('s_barrier'), 'bar'))
                caps[1] = 4
            else:
                fx.setdefault(0, []).append((0, lambda: k.wait(vm=[('x', ks + 1)], lg=[('ss', ks + 1)]), 'wait'))
            g0 = 1 if newc else 0
            for i, it in enumerate(P['w_reads'](ks + 1)):
                fx.setdefault(g0 + i // 2, []).append((it[0], it[1], 'ds'))
            st = P['xform'](ks + 1)
            fx.setdefault(7, []).append((0, lambda: k.wait(lg=[('w', ks + 1)]), 'wait'))
        if ks + 2 < 32:
            for i, it in enumerate(P['ss_reads'](ks + 2)):
                fx.setdefault(5 + i // 2, []).append((it[0], it[1], 'ds'))
        groups = P['refill'](ks)
        gl = [3, 5, 6, 4, 2, 7][:len(groups)]
        gl.sort()
        for g, grp in zip(gl, groups):
            for it in grp[:-1]:
                fx.setdefault(g - 1, []).append((it[0], it[1], 'end'))
            fx.setdefault(g, []).append((grp[-1][0], grp[-1][1], 'dma'))
        schedule(k, mf, fx, st, caps=caps)


class G256:
    pass


BIAS = 100.0
THRESH = 2.0 ** 80


def gen_attn(opts):
    k = Kern('attn_kernel')
    e = k.e
    sK, sV, sWQ, sWS = 8, 12, 16, 20
    sW, sW4K, sKoff, sVoff, sCnt, sThr, sXb, sT0, sT1, sOb = 32, 33, 34, 35, 36, 37, 38, 39, 40, 41
    sLink = 44
    S = [8, 40]; NEGM = 72; P = [104, 120]; Q = 136; ET = 200
    LS = [208, 209]; L = [210, 211]; TMP = 212
    KR = 216; VR = 224; DK = 228; DV = 232; VL16 = 233; VMD = 234; VLANE = 235
    O = 0; KF = 128; VF = 160
    LDS_K, LDS_V, LDS_MOD = 0, 65536, 131072

    e('s_cmp_ge_u32 s2, 256')
    e('s_cbranch_scc1 attn_end')
    stamp(k, 0)
    e(f's_load_dwordx4 s[4:7], s[0:1], {A_K}')
    e(f's_load_dwordx2 s[24:25], s[0:1], {A_WQ}')
    e(f's_load_dwordx2 s[26:27], s[0:1], {A_WS}')
    e(f's_load_dwordx2 s[48:49], s[0:1], {A_WO}')
    e(f's_load_dwordx4 s[52:55], s[0:1], {A_W3}')
    e(f's_load_dwordx2 s[50:51], s[0:1], {A_W1}')
    e('s_and_b32 s28, s2, 7')
    e('s_lshl_b32 s28, s28, 2')
    e('s_lshr_b32 s29, s2, 3')
    e('s_and_b32 s30, s29, 3')
    e('s_add_u32 s28, s28, s30')
    e('s_lshr_b32 s29, s29, 2')
    e('v_lshrrev_b32 v1, 6, v0')
    e(f'v_and_b32 v{VLANE}, 63, v0')
    e(f'v_readfirstlane_b32 s{sW}, v1')
    e(f'v_lshlrev_b32 v{VL16}, 4, v{VLANE}')
    e(f's_lshl_b32 s{sW4K}, s{sW}, 12')
    e(f'v_lshrrev_b32 v2, 4, v{VLANE}')
    e(f'v_and_b32 v3, 15, v{VLANE}')
    e(f'v_lshrrev_b32 v4, 5, v{VLANE}')
    e(f'v_and_b32 v5, 31, v{VLANE}')
    e('v_lshlrev_b32 v6, 2, v2')
    e('v_xor_b32 v6, v6, v3')
    e('v_lshlrev_b32 v6, 4, v6')
    e(f'v_lshl_add_u32 v{DV}, v2, 8, v6')
    e(f'v_add_u32 v{DV}, s{sW4K}, v{DV}')
    e(f's_lshl_b32 s3, s{sW}, 17')
    e('v_lshl_add_u32 v7, v2, 13, v6')
    e('v_add_u32 v7, s3, v7')
    e('s_waitcnt lgkmcnt(0)')
    e('s_lshl_b32 s3, s28, 19')
    e('s_add_u32 s4, s4, s3'); e('s_addc_u32 s5, s5, 0')
    e('s_add_u32 s6, s6, s3'); e('s_addc_u32 s7, s7, 0')
    srd(k, sK, 4, 5, 524288)
    srd(k, sV, 6, 7, 524288)
    e('s_lshl_b32 s3, s28, 8')
    e('s_add_u32 s24, s24, s3'); e('s_addc_u32 s25, s25, 0')
    e(f's_mov_b32 s{sWQ}, s24'); e(f's_and_b32 s{sWQ + 1}, s25, 0xffff')
    e(f's_sub_u32 s{sWQ + 2}, {512 * 8192}, s3'); e(f's_mov_b32 s{sWQ + 3}, 0x00020000')
    srd(k, sWS, 26, 27, WS_SIZE)
    e('s_lshl_b32 s3, s29, 3')
    e(f's_lshl_b32 s{sT0}, s{sW}, 1')
    e(f's_add_u32 s3, s3, s{sT0}')
    e(f's_lshl_b32 s{sXb}, s3, 15')
    e(f's_add_u32 s{sXb}, s{sXb}, {WS_XHAT}')
    e(f's_lshl_b32 s{sOb}, s3, 18')
    e(f's_lshl_b32 s{sT0}, s28, 13')
    e(f's_add_u32 s{sOb}, s{sOb}, s{sT0}')
    e(f's_add_u32 s{sOb}, s{sOb}, {WS_O}')

    XR = 8; H = 136; SS = 152; FT = 184; WRA = 200; WF = 128
    chunk_slot = [LDS_K, LDS_K + 16384, LDS_V, LDS_K + 32768, LDS_K + 49152, LDS_V + 16384, LDS_V + 32768, LDS_V + 49152]

    def wq_dma(c):
        out = []
        for p in range(4):
            g = []
            if p == 0:
                g.append((1, lambda: e(f's_add_u32 m0, s{sW4K}, {chunk_slot[c]}')))
            g.append((1, lambda p=p: e(f's_mov_b32 s{sT0}, {c * 524288 + p * (32768 - 1024)}')))
            g.append((COST['dma'], lambda p=p: e(f'buffer_load_dwordx4 v7, s[{sWQ}:{sWQ + 3}], s{sT0} offen offset:{p * 1024} lds', ('wq', c))))
            out.append(g)
        return out

    def xreg(ks, qb):
        return XR + (((ks // 4) % 4) * 8 + (ks % 4) * 2 + qb) * 4

    def x_load(ks, qb):
        c = ks // 4
        out = []
        out.append((1, lambda: e(f's_add_u32 s{sT1}, s{sXb}, {qb * 32768 + c * 4096}')))
        r = xreg(ks, qb)
        out.append((COST['vload'], lambda: e(f'buffer_load_dwordx4 v[{r}:{r + 3}], v{VL16}, s[{sWS}:{sWS + 3}], s{sT1} offen offset:{(ks % 4) * 1024}', ('x', ks))))
        return out

    e(f's_lshl_b32 s{sT0}, s{sW}, 10')
    e(f's_add_u32 m0, s{sT0}, {LDS_MOD}')
    e(f's_add_u32 s{sT0}, s{sT0}, {WS_MOD1}')
    e(f'buffer_load_dwordx4 v{VL16}, s[{sWS}:{sWS + 3}], s{sT0} offen lds', ('wq', 0))
    NPRE = opts.get('npre', 1)
    for c in range(NPRE):
        for g in wq_dma(c):
            for _, f in g: f()
        for ks in range(4 * c, 4 * c + 4):
            for qb in range(2):
                for _, f in x_load(ks, qb): f()
    e('v_lshrrev_b32 v236, 2, v3')
    e(f'v_and_b32 v237, 3, v{VLANE}')
    e('v_and_b32 v238, 1, v2')
    e('v_lshlrev_b32 v238, 5, v238')
    e('v_and_b32 v239, 1, v237')
    e('v_lshl_add_u32 v238, v239, 4, v238')
    e('v_lshrrev_b32 v239, 1, v237')
    e('v_lshl_add_u32 v238, v239, 3, v238')
    e('v_lshl_add_u32 v238, v236, 8, v238')
    for db in range(4):
        e(f'v_xor_b32 v239, {db}, v236')
        e(f'v_lshl_add_u32 v239, v239, 6, v238')
        e(f'v_lshl_add_u32 v{WRA + db}, v4, 11, v239')
        e(f'v_add_u32 v{WRA + 4 + db}, {LDS_V}, v{WRA + db}')
        e(f'v_lshl_add_u32 v{VR + db}, v4, 10, v239')
        e(f'v_add_u32 v{VR + db}, {LDS_V}, v{VR + db}')
    for ks in range(8):
        e(f'v_add_u32 v239, {2 * ks}, v4')
        e('v_xor_b32 v239, v239, v3')
        e('v_lshlrev_b32 v239, 4, v239')
        e(f'v_lshl_add_u32 v{KR + ks}, v5, 8, v239')
    for p in range(4):
        e(f'v_add_u32 v239, {4 * p}, v2')
        e('v_xor_b32 v239, v239, v3')
        e('v_lshlrev_b32 v239, 4, v239')
        e('v_lshl_add_u32 v239, v2, 8, v239')
        e(f'v_add_u32 v{DK + p}, s{sW4K}, v239')
    e(f'v_lshlrev_b32 v{VMD}, 6, v4')
    e(f'v_add_u32 v{VMD}, {LDS_MOD}, v{VMD}')
    e(f's_mov_b32 s{sThr}, {f32(THRESH)}')

    def w_reads(ks):
        c = ks // 4
        slot = chunk_slot[c]
        base = WRA + 4 if slot >= LDS_V else WRA
        off0 = (slot % 65536) + (ks % 4) * 16 * 256
        out = []
        for db in range(4):
            for t in range(2):
                r = WF + (ks % 2) * 16 + db * 4 + t * 2
                out.append((COST['ds'], lambda r=r, db=db, t=t: e(f'ds_read_b64_tr_b16 a[{r}:{r + 1}], v{base + db} offset:{off0 + t * 1024}', ('w', ks))))
        return out

    def ss_reads(ks):
        out = []
        for j in range(4):
            r = SS + (ks % 2) * 16 + 4 * j
            out.append((COST['ds'], lambda r=r, j=j: e(f'ds_read_b128 v[{r}:{r + 3}], v{VMD} offset:{ks * 128 + j * 16}', ('ss', ks))))
        return out

    def xform(ks):
        out = []
        sb = SS + (ks % 2) * 16
        for qb in range(2):
            x = xreg(ks, qb)
            for p in range(4):
                t = FT + (qb * 4 + p) * 2
                out.append((1, lambda x=x, p=p, t=t: e(f'v_fma_mix_f32 v{t}, v{x + p}, v{sb + 2 * p}, v{sb + 8 + 2 * p} op_sel_hi:[1,0,0]')))
                out.append((1, lambda x=x, p=p, t=t: e(f'v_fma_mix_f32 v{t + 1}, v{x + p}, v{sb + 2 * p + 1}, v{sb + 8 + 2 * p + 1} op_sel:[1,0,0] op_sel_hi:[1,0,0]')))
                h = H + (ks % 2) * 8 + qb * 4 + p
                out.append((1, lambda t=t, h=h: e(f'v_cvt_pk_bf16_f32 v{h}, v{t}, v{t + 1}')))
        return out

    def chunk_barrier(c):
        stamp(k, 1)
        k.wait(vm=[('wq', c)])
        e('s_barrier')
        stamp(k, 2)

    def kv_dma(which, tile):
        out = []
        slot = tile % 4
        for p in range(4):
            g = []
            if p == 0:
                g.append((1, lambda: e(f's_add_u32 m0, s{sW4K}, {(LDS_K if which == "K" else LDS_V) + slot * 16384}')))
                g.append((1, lambda: e(f's_mov_b32 s{sT0}, {tile * 16384}')))
            if which == 'K':
                g.append((COST['dma'], lambda p=p: e(f'buffer_load_dwordx4 v{DK + p}, s[{sK}:{sK + 3}], s{sT0} offen offset:{p * 1024} lds', ('K', tile))))
            else:
                g.append((COST['dma'], lambda p=p: e(f'buffer_load_dwordx4 v{DV}, s[{sV}:{sV + 3}], s{sT0} offen offset:{p * 1024} lds', ('V', tile))))
            out.append(g)
        return out

    todo = []
    for c in range(NPRE, 8):
        todo += [(0, g) for g in wq_dma(c)]
        for ks in range(4 * c, 4 * c + 4):
            todo += [(ks - 16, x_load(ks, 0)), (ks - 16, x_load(ks, 1))]
    todo += [(4, g) for g in kv_dma('K', 0)] + [(8, g) for g in kv_dma('K', 1)] + [(12, g) for g in kv_dma('V', 0)]
    RATE = opts.get('rate', 4)

    def refill(ks):
        out = []
        while todo and len(out) < RATE and todo[0][0] <= ks:
            out.append(todo.pop(0)[1])
        return out

    gemm256(k, dict(w_reads=w_reads, ss_reads=ss_reads, xform=xform, refill=refill, chunk_barrier=chunk_barrier,
                    ACC=O, WF=WF, H=H))
    assert not todo

    cq = LOG2E / math.sqrt(128.0)
    e(f's_mov_b32 s3, {f32(cq)}')
    stamp(k, 3)
    k.wait(vm=[('K', 0)])
    e('s_barrier')

    def k_read(blk, ks):
        tile = blk // 2
        off = LDS_K + (tile % 4) * 16384 + (blk % 2) * 8192
        r = KF + 4 * ks
        return lambda: e(f'ds_read_b128 a[{r}:{r + 3}], v{KR + ks} offset:{off}', ('kf', ks))

    def v_read(blk, i):
        u, db, t = i // 8, (i // 2) % 4, i % 2
        tile = blk // 2
        off = (tile % 4) * 16384 + ((blk % 2) * 32 + 16 * u + 8 * t) * 256
        r = VF + (u * 4 + db) * 4 + 2 * t
        return lambda: e(f'ds_read_b64_tr_b16 a[{r}:{r + 1}], v{VR + db} offset:{off}', ('vf', i))

    for ks in range(8):
        k_read(0, ks)()
    for g in kv_dma('K', 2):
        for _, f in g: f()
    for db in range(4):
        for qb in range(2):
            acc = O + (db * 2 + qb) * 16
            for i in range(16):
                e(f'v_accvgpr_read_b32 v{8 + i}, a{acc + i}')
            for i in range(16):
                e(f'v_mul_f32 v{8 + i}, s3, v{8 + i}')
            for i in range(8):
                u = i // 4
                e(f'v_cvt_pk_bf16_f32 v{Q + (qb * 8 + 2 * db + u) * 4 + i % 4}, v{8 + 2 * i}, v{9 + 2 * i}')
    for g in kv_dma('V', 1):
        for _, f in g: f()
    NPF = 2 if opts.get('pf', 1) else 0
    sPF = 42
    if NPF:
        for i, (sp, nb) in enumerate(((48, 4096 * 1024), (50, 512 * 3584), (52, 512 * 3584), (54, 1792 * 1024))):
            srd(k, 80 + 4 * i, sp, sp + 1, nb)
        e(f's_lshl_b32 s{sPF}, s2, 12')
        e(f's_lshl_b32 s{sT0}, s{sW}, 10')
        e(f's_add_u32 s{sPF}, s{sPF}, s{sT0}')
        e(f'v_lshrrev_b32 v236, 2, v{VLANE}')
        e(f'v_lshlrev_b32 v236, 6, v236')
        e(f'buffer_load_dword v237, v236, s[92:95], s{sPF} offen', 'pf')

    def qk_mfmas(blk, czero=False):
        out = []
        for ks in range(8):
            for qb in range(2):
                def m(ks=ks, qb=qb):
                    d = S[blk % 2] + 16 * qb
                    if ks == 0:
                        c = '0' if czero else vr(NEGM + 16 * qb, 16)
                    else:
                        c = vr(d, 16)
                    e(f'v_mfma_f32_32x32x16_bf16 {vr(d, 16)}, {ar(KF + 4 * ks, 4)}, {vr(Q + (qb * 8 + ks) * 4, 4)}, {c}')
                out.append(m)
        return out

    def pv_mfmas(blk, czero=False):
        out = []
        for u in range(2):
            for db in range(4):
                for qb in range(2):
                    def m(u=u, db=db, qb=qb):
                        acc = O + (db * 2 + qb) * 16
                        c = '0' if (czero and u == 0) else ar(acc, 16)
                        e(f'v_mfma_f32_32x32x16_bf16 {ar(acc, 16)}, {ar(VF + (u * 4 + db) * 4, 4)}, {vr(P[blk % 2] + (qb * 2 + u) * 4, 4)}, {c}')
                    out.append(m)
        return out

    def softmax_stream(blk):
        sb = S[blk % 2]; pb = P[blk % 2]
        items = []
        pend = []
        n = 0
        for qb in range(2):
            for i in range(8):
                t = ET + (n % 4) * 2
                r = sb + qb * 16 + 2 * i
                a = [(COST['exp'], lambda t=t, r=r: e(f'v_exp_f32 v{t}, v{r}')),
                     (COST['exp'], lambda t=t, r=r: e(f'v_exp_f32 v{t + 1}, v{r + 1}'))]
                if i == 0:
                    c = [(1, lambda t=t, qb=qb: e(f'v_add_f32 v{LS[qb]}, v{t}, v{t + 1}')), None]
                else:
                    c = [(1, lambda t=t, qb=qb: e(f'v_add_f32 v{LS[qb]}, v{LS[qb]}, v{t}')),
                         (1, lambda t=t, qb=qb: e(f'v_add_f32 v{LS[qb]}, v{LS[qb]}, v{t + 1}'))]
                pd = pb + (qb * 2 + i // 4) * 4 + i % 4
                c.append((1, lambda t=t, pd=pd: e(f'v_cvt_pk_bf16_f32 v{pd}, v{t}, v{t + 1}')))
                items.append(a[0])
                if pend and pend[0]: items.append(pend[0])
                items.append(a[1])
                for x in pend[1:]:
                    if x: items.append(x)
                pend = c
                n += 1
        for x in pend:
            if x: items.append(x)
        return items

    stubs = []

    def check_items(blk):
        lab = k.newlabel('slow'); ret = k.newlabel('ret')
        stubs.append((lab, ret, blk % 2))

        def br():
            e(f's_cbranch_vccnz {lab}')
            k.label(ret)
        return [(1, lambda: e(f'v_max_f32 v{TMP}, v{LS[0]}, v{LS[1]}')),
                (1, lambda: e(f'v_cmp_lt_f32 vcc, s{sThr}, v{TMP}')),
                (1, br),
                (1, lambda: e(f'v_add_f32 v{L[0]}, v{L[0]}, v{LS[0]}')),
                (1, lambda: e(f'v_add_f32 v{L[1]}, v{L[1]}, v{LS[1]}'))]

    KFALL = [('kf', i) for i in range(8)]
    VFALL = [('vf', i) for i in range(16)]
    mf = qk_mfmas(0, czero=True)
    fx = {}
    for ks in range(8):
        fx.setdefault(min(2 * ks + 2, 15), []).append((COST['ds'], k_read(1, ks), 'ds'))
    k.wait(lg=KFALL)
    schedule(k, mf, fx, [])
    for qb in range(2):
        sb = S[0] + 16 * qb
        e(f'v_max3_f32 v{TMP}, v{sb}, v{sb + 1}, v{sb + 2}')
        for i in range(3, 15, 2):
            e(f'v_max3_f32 v{TMP}, v{TMP}, v{sb + i}, v{sb + i + 1}')
        e(f'v_max_f32 v{TMP}, v{TMP}, v{sb + 15}')
        e(f'v_mov_b32 v{TMP + 1}, v{TMP}')
        e(f'v_permlane32_swap_b32 v{TMP}, v{TMP + 1}')
        e(f'v_max_f32 v{TMP}, v{TMP}, v{TMP + 1}')
        e(f'v_add_f32 v{TMP}, {f32(BIAS)}, v{TMP}')
        e(f'v_sub_f32 v{NEGM + 16 * qb}, 0, v{TMP}')
        for i in range(1, 16):
            e(f'v_mov_b32 v{NEGM + 16 * qb + i}, v{NEGM + 16 * qb}')
        for i in range(16):
            e(f'v_sub_f32 v{sb + i}, v{sb + i}, v{TMP}')
        e(f'v_mov_b32 v{L[qb]}, 0')
    e(f's_mov_b32 s{sKoff}, {3 * 16384}')
    e(f's_mov_b32 s{sVoff}, {2 * 16384}')
    e(f's_mov_b32 s{sCnt}, 8')

    def step(b, do_qk=True, do_sm=True, do_pv=True, pv_zero=False, do_kread=True, do_dma=True):
        mf = []
        fx = {}
        nq = 0
        X = opts.get('x', '')
        if 'D' in X: do_dma = False
        if 'S' in X: do_sm = False
        if do_qk:
            mf += qk_mfmas(b + 1); nq = 16
        if do_pv:
            mf += pv_mfmas(b - 1, czero=pv_zero)
        n = len(mf)
        caps = {}
        full = do_qk and do_pv
        if do_pv and 'L' not in X:
            if do_qk:
                for i in range(16):
                    fx.setdefault(i // 2, []).append((COST['ds'], v_read(b - 1, i), 'ds'))
            else:
                for i in range(16):
                    v_read(b - 1, i)()
                k.wait(lg=VFALL)
        bar = b % 2 == 0 and do_kread and 'B' not in X
        gb = 15 if full else 0
        if bar:
            vmn = 8 + (NPF if b >= 2 else NPF // 2)

            def wt():
                t = k.wait_text(lg=VFALL) if full else None
                e(f's_waitcnt vmcnt({vmn})' + (t[9:] if t else ''))
            fx.setdefault(gb, []).append((0, wt, 'wait'))
            fx.setdefault(gb, []).append((6, lambda: e('s_barrier'), 'bar'))
            caps[gb + 1] = opts.get('cap_ab', 3)
        elif full:
            fx.setdefault(15, []).append((0, lambda: k.wait(lg=VFALL), 'wait'))
        if do_kread and 'L' not in X:
            for ks in range(8):
                g = (17 + ks // 2) if full else min(2 * ks + 2, 15)
                fx.setdefault(g, []).append((COST['ds'], k_read(b + 2, ks), 'ds'))
            if full:
                fx.setdefault(n - 1, []).append((0, lambda: k.wait(lg=KFALL), 'wait'))
        if do_dma:
            isK = (b % 2 == 0)
            I = (b + 2) // 2 if isK else (b + 1) // 2
            if isK:
                slot = LDS_K + ((I + 2) % 4) * 16384; so = sKoff
            else:
                slot = LDS_V + ((I + 1) % 4) * 16384; so = sVoff
            gs = [22, 24, 26, 28] if full else [3, 5, 7, 9]
            fx.setdefault(gs[0] - 1, []).append((1, lambda: e(f's_add_u32 m0, s{sW4K}, {slot}'), 'end'))
            for p in range(4):
                va = DK + p if isK else DV
                sd = sK if isK else sV
                fx.setdefault(gs[p], []).append((COST['dma'], lambda p=p, va=va, sd=sd: e(
                    f'buffer_load_dwordx4 v{va}, s[{sd}:{sd + 3}], s{so} offen offset:{p * 1024} lds', 'kv'), 'dma'))
            fx.setdefault(gs[3] + 1, []).append((1, lambda: e(f's_add_u32 s{so}, s{so}, 16384'), 'end'))
            if NPF and not isK:
                sp = 80 + 4 * ((b // 2) % 4)
                fx.setdefault(30, []).append((COST['dma'], lambda: e(f'buffer_load_dword v237, v236, s[{sp}:{sp + 3}], s{sPF} offen', 'pf'), 'dma'))
                if b % 8 == 7:
                    fx.setdefault(30, []).append((1, lambda: e(f's_add_u32 s{sPF}, s{sPF}, 0x100000'), 'end'))
        st = []
        if do_sm:
            st = softmax_stream(b)
        schedule(k, mf, fx, st, last_gap=n - 2, caps=caps)
        if do_kread and not full:
            k.wait(lg=KFALL)
        if do_sm:
            for _, f in check_items(b): f()

    stamp(k, 4)
    k.wait(lg=KFALL)
    step(0, do_pv=False)
    step(1, pv_zero=True)
    e('s_branch attn_ent')
    e('.p2align 6')
    k.label('attn_loop')
    for pos in range(8):
        if pos == 2:
            k.label('attn_ent')
        step(8 + pos)
        if pos == 6:
            e(f's_sub_u32 s{sCnt}, s{sCnt}, 1')
            e(f's_cmp_eq_u32 s{sCnt}, 0')
            e('s_cbranch_scc1 attn_tail')
    e('s_branch attn_loop')
    k.label('attn_tail')
    k.lgq = []
    step(63, do_qk=False, do_kread=False, do_dma=False)
    step(64, do_qk=False, do_sm=False, do_kread=False, do_dma=False)

    stamp(k, 5)
    for qb in range(2):
        e(f'v_mov_b32 v{TMP}, v{L[qb]}')
        e(f'v_permlane32_swap_b32 v{L[qb]}, v{TMP}')
        e(f'v_add_f32 v{L[qb]}, v{L[qb]}, v{TMP}')
        e(f'v_rcp_f32 v{L[qb]}, v{L[qb]}')
    n = 0
    for qb in range(2):
        e(f's_add_u32 s{sT0}, s{sOb}, {qb * 262144}')
        e(f's_add_u32 s{sT1}, s{sOb}, {qb * 262144 + 4096}')
        for db in range(4):
            for u in range(2):
                acc = O + (db * 2 + qb) * 16 + 8 * u
                t = 8 + (n % 4) * 16; n += 1
                for i in range(8):
                    e(f'v_accvgpr_read_b32 v{t + i}, a{acc + i}')
                for i in range(8):
                    e(f'v_mul_f32 v{t + i}, v{t + i}, v{L[qb]}')
                for i in range(4):
                    e(f'v_cvt_pk_bf16_f32 v{t + 8 + i}, v{t + 2 * i}, v{t + 2 * i + 1}')
                kk = 2 * db + u
                so = sT0 if kk < 4 else sT1
                e(f'buffer_store_dwordx4 v[{t + 8}:{t + 11}], v{VL16}, s[{sWS}:{sWS + 3}], s{so} offen offset:{(kk % 4) * 1024}{opts.get("ost", " sc1")}')
    stamp(k, 6)
    stamp_flush(k, 7, sWS, 1)
    k.label('attn_end')
    e('s_endpgm')

    for lab, ret, par in stubs:
        k.label(lab)
        e(f's_call_b64 s[{sLink}:{sLink + 1}], attn_slow{par}')
        e(f's_branch {ret}')
    for par in range(2):
        k.label(f'attn_slow{par}')
        e('s_nop 15'); e('s_nop 15')
        D0 = [TMP + 2, TMP + 3]
        for qb in range(2):
            sb = S[par] + 16 * qb; sn = S[1 - par] + 16 * qb
            e(f'v_max3_f32 v{TMP}, v{sb}, v{sb + 1}, v{sb + 2}')
            for i in range(3, 15, 2):
                e(f'v_max3_f32 v{TMP}, v{TMP}, v{sb + i}, v{sb + i + 1}')
            e(f'v_max_f32 v{TMP}, v{TMP}, v{sb + 15}')
            e(f'v_mov_b32 v{TMP + 1}, v{TMP}')
            e(f'v_permlane32_swap_b32 v{TMP}, v{TMP + 1}')
            e(f'v_max_f32 v{TMP}, v{TMP}, v{TMP + 1}')
            e(f'v_add_f32 v{TMP}, {f32(BIAS)}, v{TMP}')
            e(f'v_max_f32 v{TMP}, 0, v{TMP}')
            e(f'v_sub_f32 v{TMP + 1}, 0, v{TMP}')
            e(f'v_exp_f32 v{D0[qb]}, v{TMP + 1}')
            for i in range(16):
                e(f'v_sub_f32 v{NEGM + 16 * qb + i}, v{NEGM + 16 * qb + i}, v{TMP}')
                e(f'v_sub_f32 v{sb + i}, v{sb + i}, v{TMP}')
                e(f'v_sub_f32 v{sn + i}, v{sn + i}, v{TMP}')
            e(f'v_mul_f32 v{L[qb]}, v{L[qb]}, v{D0[qb]}')
            for db in range(4):
                acc = O + (db * 2 + qb) * 16
                for i in range(16):
                    t = ET + i % 8
                    e(f'v_accvgpr_read_b32 v{t}, a{acc + i}')
                    e(f'v_mul_f32 v{t}, v{t}, v{D0[qb]}')
                    e(f'v_accvgpr_write_b32 a{acc + i}, v{t}')
        for _, f in softmax_stream(par): f()
        e('s_nop 3')
        e(f's_setpc_b64 s[{sLink}:{sLink + 1}]')
    return k, 'grid=(256,1,1) block=(256,1,1) lds=135168'


def gen_gemm64(name, which):
    k = Kern(name)
    e = k.e
    NKS = 256 if which == 'wo' else 112
    KW = NKS // 8
    D = 8 if which == 'wo' else 7
    A_W = A_WO if which == 'wo' else A_W2
    WS_XIN = WS_O if which == 'wo' else WS_HH
    sW_, sWS, sG = 8, 12, 16
    sWv, sXo, sWo, sT0, sT1, sLb, sCnt = 32, 33, 34, 35, 36, 37, 38
    ACC = 8
    XF = 72
    WFr = XF + 64
    VL16, VDW, VWR = 160, 161, 162
    e(f's_cmp_ge_u32 s2, 256')
    e(f's_cbranch_scc1 {name}_end')
    stamp(k, 0)
    e(f's_load_dwordx2 s[4:5], s[0:1], {A_W}')
    e(f's_load_dwordx2 s[6:7], s[0:1], {A_WS}')
    e(f's_load_dwordx2 s[24:25], s[0:1], {A_X if which == "wo" else A_OUT}')
    e('s_and_b32 s28, s2, 7')
    e('s_lshl_b32 s28, s28, 2')
    e('s_lshr_b32 s29, s2, 3')
    e('s_and_b32 s30, s29, 3')
    e('s_add_u32 s28, s28, s30')
    e('s_lshr_b32 s29, s29, 2')
    e('v_lshrrev_b32 v1, 6, v0')
    e('v_and_b32 v2, 63, v0')
    e(f'v_readfirstlane_b32 s{sWv}, v1')
    e(f'v_lshlrev_b32 v{VL16}, 4, v2')
    e('v_lshrrev_b32 v3, 3, v2')
    e('v_and_b32 v4, 7, v2')
    e('v_lshlrev_b32 v5, 1, v3')
    e('v_and_b32 v5, 4, v5')
    e('v_xor_b32 v4, v4, v5')
    e('v_lshlrev_b32 v4, 4, v4')
    e(f'v_lshl_add_u32 v{VDW}, v3, 10, v4')
    e('v_lshrrev_b32 v3, 5, v2')
    e('v_bfe_u32 v4, v2, 2, 2')
    e('v_lshl_add_u32 v5, v3, 3, v4')
    e('v_lshlrev_b32 v5, 7, v5')
    e('v_bfe_u32 v6, v2, 4, 1')
    e('v_lshl_add_u32 v5, v6, 5, v5')
    e('v_and_b32 v6, 1, v2')
    e('v_lshl_add_u32 v5, v6, 4, v5')
    e('v_bfe_u32 v6, v2, 1, 1')
    e('v_lshl_add_u32 v5, v6, 3, v5')
    e(f's_lshl_b32 s{sLb}, s{sWv}, 14')
    e(f'v_add_u32 v5, s{sLb}, v5')
    e('v_lshrrev_b32 v6, 1, v4')
    e(f'v_lshl_add_u32 v{VWR}, v6, 6, v5')
    e('v_xor_b32 v6, 1, v6')
    e(f'v_lshl_add_u32 v{VWR + 1}, v6, 6, v5')
    e('s_waitcnt lgkmcnt(0)')
    srd(k, sW_, 4, 5, NKS * 16 * 1024)
    srd(k, sWS, 6, 7, WS_SIZE)
    srd(k, sG, 24, 25, 2048 * 1024)
    e(f's_mul_i32 s{sXo}, s28, {2 * NKS * 1024}')
    e(f's_mul_i32 s{sT0}, s{sWv}, {KW * 1024}')
    e(f's_add_u32 s{sXo}, s{sXo}, s{sT0}')
    e(f's_add_u32 s{sXo}, s{sXo}, {WS_XIN}')
    e(f's_add_u32 s{sT1}, s{sXo}, {NKS * 1024}')
    sXo1 = 39
    e(f's_mov_b32 s{sXo1}, s{sT1}')
    e(f's_mul_i32 s{sWo}, s{sWv}, {KW * 16 * 1024}')
    e(f's_lshl_b32 s{sT0}, s29, 7')
    e(f's_add_u32 s{sWo}, s{sWo}, s{sT0}')

    def loads(ks):
        sl = ks % D
        e(f's_add_u32 m0, s{sLb}, {sl * 2048}')
        e(f's_add_u32 s{sT0}, s{sWo}, {8192 - 1024}')
        e(f'buffer_load_dwordx4 v{VDW}, s[{sW_}:{sW_ + 3}], s{sWo} offen lds', ('w', ks))
        e(f'buffer_load_dwordx4 v{VDW}, s[{sW_}:{sW_ + 3}], s{sT0} offen offset:1024 lds', ('w', ks))
        for mb in range(2):
            r = XF + (sl * 2 + mb) * 4
            so = sXo if mb == 0 else sXo1
            e(f'buffer_load_dwordx4 v[{r}:{r + 3}], v{VL16}, s[{sWS}:{sWS + 3}], s{so} offen', ('x', ks))
        e(f's_add_u32 s{sWo}, s{sWo}, 16384')
        e(f's_add_u32 s{sXo}, s{sXo}, 1024')
        e(f's_add_u32 s{sXo1}, s{sXo1}, 1024')

    def wreads(ks):
        sl = ks % D
        k.wait(vm=[('w', ks)])
        for nb in range(2):
            for t in range(2):
                r = WFr + (ks % 2) * 8 + nb * 4 + t * 2
                e(f'ds_read_b64_tr_b16 v[{r}:{r + 1}], v{VWR + nb} offset:{sl * 2048 + t * 512}', ('wf', ks))

    def mfmas(ks):
        sl = ks % D
        k.wait(vm=[('x', ks)], lg=[('wf', ks)])
        for nb in range(2):
            for mb in range(2):
                acc = ACC + (nb * 2 + mb) * 16
                c = '0' if ks == 0 else vr(acc, 16)
                e(f'v_mfma_f32_32x32x16_bf16 {vr(acc, 16)}, {vr(WFr + (ks % 2) * 8 + nb * 4, 4)}, {vr(XF + (sl * 2 + mb) * 4, 4)}, {c}')

    for ks in range(D):
        loads(ks)
    EP = 164
    e(f's_lshr_b32 s{sT0}, s{sWv}, 2')
    e(f's_bfe_u32 s{sT1}, s{sWv}, 0x10001')
    e(f's_and_b32 s40, s{sWv}, 1')
    e('s_lshl_b32 s41, s29, 6')
    e(f's_lshl_b32 s42, s{sT0}, 5')
    e('s_add_u32 s41, s41, s42')
    e('s_lshl_b32 s42, s40, 4')
    e('s_add_u32 s41, s41, s42')
    e('s_lshl_b32 s42, s28, 6')
    e(f's_lshl_b32 s43, s{sT1}, 5')
    e('s_add_u32 s42, s42, s43')
    e('v_lshrrev_b32 v4, 5, v2')
    e('v_and_b32 v5, 31, v2')
    e('v_add_u32 v6, s42, v5')
    e('v_lshlrev_b32 v6, 10, v6')
    e('v_lshl_add_u32 v6, v4, 4, v6')
    e('s_lshl_b32 s43, s41, 1')
    e('v_add_u32 v6, s43, v6')
    e('s_lshl_b32 s43, s42, 10')
    e('s_lshl_b32 s44, s41, 6')
    e('s_add_u32 s43, s43, s44')
    e(f's_add_u32 s43, s43, {WS_X1}')
    e('v_lshlrev_b32 v7, 5, v4')
    e('s_lshl_b32 s44, s41, 2')
    e(f's_add_u32 s44, s44, {WS_GA if which == "wo" else WS_GB}')
    e(f'buffer_load_dwordx4 v[{EP}:{EP + 3}], v7, s[{sWS}:{sWS + 3}], s44 offen', 'g')
    e(f'buffer_load_dwordx4 v[{EP + 4}:{EP + 7}], v7, s[{sWS}:{sWS + 3}], s44 offen offset:16', 'g')
    if which == 'wo':
        e(f'buffer_load_dwordx4 v[{EP + 8}:{EP + 11}], v6, s[{sG}:{sG + 3}], 0 offen', 'g')
    else:
        e(f'buffer_load_dwordx4 v[{EP + 8}:{EP + 11}], v{VL16}, s[{sWS}:{sWS + 3}], s43 offen', 'g')
    stamp(k, 1)
    wreads(0)
    stamp(k, 2)
    for ks in range(KW):
        if ks + 1 < KW:
            wreads(ks + 1)
        mfmas(ks)
        if ks + D < KW:
            loads(ks + D)
    stamp(k, 3)
    e(f'v_add_u32 v3, s{sLb}, v{VL16}')
    for qd in range(16):
        e(f'ds_write_b128 v3, v[{ACC + 4 * qd}:{ACC + 4 * qd + 3}] offset:{qd * 1024}')
    e('s_waitcnt lgkmcnt(0)')
    e('s_barrier')
    stamp(k, 4)
    e(f's_lshl_b32 s{sT0}, s{sWv}, 11')
    e(f'v_add_u32 v3, s{sT0}, v{VL16}')
    e(f'v_add_u32 v1, 0x10000, v3')
    RD = 88
    for w in range(8):
        a = 3 if w < 4 else 1
        for h in range(2):
            r = RD + (w * 2 + h) * 4
            e(f'ds_read_b128 v[{r}:{r + 3}], v{a} offset:{(w % 4) * 16384 + h * 1024}', ('r', w))
    for w in range(1, 8):
        k.wait(lg=[('r', w), ('r', 0)])
        for i in range(8):
            e(f'v_add_f32 v{RD + i}, v{RD + i}, v{RD + w * 8 + i}')
    k.wait(vm=['g'])
    for i in range(8):
        rbf(k, RD + i, RD + i)
    for i in range(8):
        e(f'v_mul_f32 v{RD + i}, v{RD + i}, v{EP + i}')
    for i in range(8):
        rbf(k, RD + i, RD + i)
    for i in range(8):
        src = EP + 8 + i // 2
        if i % 2 == 0:
            e(f'v_lshlrev_b32 v{RD + 8 + i}, 16, v{src}')
        else:
            e(f'v_and_b32 v{RD + 8 + i}, 0xffff0000, v{src}')
    for i in range(8):
        e(f'v_add_f32 v{RD + i}, v{RD + i}, v{RD + 8 + i}')
    for i in range(4):
        e(f'v_cvt_pk_bf16_f32 v{RD + 16 + i}, v{RD + 2 * i}, v{RD + 2 * i + 1}')
    if which == 'w2':
        e(f'buffer_store_dwordx4 v[{RD + 16}:{RD + 19}], v6, s[{sG}:{sG + 3}], 0 offen')
    else:
        e(f'buffer_store_dwordx4 v[{RD + 16}:{RD + 19}], v{VL16}, s[{sWS}:{sWS + 3}], s43 offen')
        for i in range(8):
            src = RD + 16 + i // 2
            if i % 2 == 0:
                e(f'v_lshlrev_b32 v{RD + i}, 16, v{src}')
            else:
                e(f'v_and_b32 v{RD + i}, 0xffff0000, v{src}')
        e(f'v_add_f32 v{RD + 8}, v{RD}, v{RD + 1}')
        e(f'v_mul_f32 v{RD + 9}, v{RD}, v{RD}')
        e(f'v_fmac_f32 v{RD + 9}, v{RD + 1}, v{RD + 1}')
        for i in range(2, 8):
            e(f'v_add_f32 v{RD + 8}, v{RD + 8}, v{RD + i}')
            e(f'v_fmac_f32 v{RD + 9}, v{RD + i}, v{RD + i}')
        e(f's_lshl_b32 s45, s{sT1}, 11')
        e(f's_lshr_b32 s46, s{sWv}, 2')
        e('s_lshl_b32 s46, s46, 5')
        e('s_add_u32 s45, s45, s46')
        e('s_lshl_b32 s46, s40, 4')
        e('s_add_u32 s45, s45, s46')
        e('s_add_u32 s45, s45, 131072')
        e('v_lshlrev_b32 v3, 6, v5')
        e('v_lshl_add_u32 v3, v4, 3, v3')
        e('v_add_u32 v3, s45, v3')
        e(f'ds_write_b64 v3, v[{RD + 8}:{RD + 9}]')
        e('s_waitcnt lgkmcnt(0)')
        e('s_barrier')
        e(f's_cmp_lg_u32 s{sWv}, 0')
        e(f's_cbranch_scc1 {name}_end')
        e('v_lshlrev_b32 v3, 6, v2')
        e('v_add_u32 v3, 131072, v3')
        for j in range(4):
            e(f'ds_read_b128 v[{8 + 4 * j}:{11 + 4 * j}], v3 offset:{16 * j}')
        e('s_waitcnt lgkmcnt(0)')
        for j in range(1, 8):
            e(f'v_add_f32 v8, v8, v{8 + 2 * j}')
            e(f'v_add_f32 v9, v9, v{9 + 2 * j}')
        e('s_lshl_b32 s45, s28, 12')
        e('s_lshl_b32 s46, s29, 3')
        e('s_add_u32 s45, s45, s46')
        e(f's_add_u32 s45, s45, {WS_ST}')
        e('v_lshlrev_b32 v3, 6, v2')
        e(f'buffer_store_dwordx2 v[8:9], v3, s[{sWS}:{sWS + 3}], s45 offen')
    stamp_flush(k, 5, sWS, 2 if which == 'wo' else 4)
    k.label(f'{name}_end')
    e('s_endpgm')
    return k, 'grid=(256,1,1) block=(512,1,1) lds=135168'


def gen_ffn1(opts):
    k = Kern('ffn1_kernel')
    e = k.e
    name = 'ffn1'
    s1, s3_, sWS = 8, 12, 16
    sW, sT0, sT1, sXb, sWo, sHb = 32, 33, 34, 35, 36, 37
    XR = 8; H = 136; SS = 152; FT = 184; WRA = 200
    VL16, VDW, VMD, VLANE = 204, 205, 206, 207
    RS = [208, 209]; NM = [210, 211]
    WF = 128; ACC = 0
    LDS_G, LDS_U, LDS_MOD = 0, 65536, 131072
    e('s_cmp_ge_u32 s2, 224')
    e(f's_cbranch_scc1 {name}_end')
    stamp(k, 0)
    e(f's_load_dwordx4 s[4:7], s[0:1], {A_W1}')
    e(f's_load_dwordx2 s[24:25], s[0:1], {A_WS}')
    e('s_and_b32 s28, s2, 7')
    e('s_lshr_b32 s29, s2, 3')
    e('v_lshrrev_b32 v1, 6, v0')
    e(f'v_and_b32 v{VLANE}, 63, v0')
    e(f'v_readfirstlane_b32 s{sW}, v1')
    e(f'v_lshlrev_b32 v{VL16}, 4, v{VLANE}')
    e(f'v_lshrrev_b32 v3, 3, v{VLANE}')
    e(f'v_and_b32 v4, 7, v{VLANE}')
    e('v_lshlrev_b32 v5, 1, v3')
    e('v_and_b32 v5, 4, v5')
    e('v_xor_b32 v4, v4, v5')
    e('v_lshlrev_b32 v4, 4, v4')
    e('s_mov_b32 s3, 3584')
    e('v_mul_lo_u32 v3, v3, s3')
    e(f'v_add_u32 v{VDW}, v3, v4')
    e('s_waitcnt lgkmcnt(0)')
    srd(k, s1, 4, 5, 512 * 3584)
    srd(k, s3_, 6, 7, 512 * 3584)
    srd(k, sWS, 24, 25, WS_SIZE)
    e('s_lshl_b32 s3, s28, 3')
    e(f's_lshl_b32 s{sT0}, s{sW}, 1')
    e(f's_add_u32 s3, s3, s{sT0}')
    e(f's_lshl_b32 s{sXb}, s3, 15')
    e(f's_add_u32 s{sXb}, s{sXb}, {WS_X1}')
    e(f's_mul_i32 s{sHb}, s3, {112 * 1024}')
    e(f's_lshl_b32 s{sT0}, s29, 12')
    e(f's_add_u32 s{sHb}, s{sHb}, s{sT0}')
    e(f's_add_u32 s{sHb}, s{sHb}, {WS_HH}')
    e(f's_mul_i32 s{sWo}, s{sW}, {16 * 3584}')
    e(f's_lshl_b32 s{sT0}, s29, 7')
    e(f's_add_u32 s{sWo}, s{sWo}, s{sT0}')
    sW2K = 38
    e(f's_lshl_b32 s{sW2K}, s{sW}, 11')
    e(f'v_and_b32 v5, 31, v{VLANE}')
    e(f'v_lshrrev_b32 v4, 5, v{VLANE}')
    e('v_lshlrev_b32 v6, 6, v5')
    e('v_lshl_add_u32 v6, v4, 5, v6')
    e(f's_lshl_b32 s{sT0}, s3, 11')
    e(f's_add_u32 s{sT0}, s{sT0}, {WS_ST}')
    for qb in range(2):
        for j in range(2):
            r = 212 + qb * 8 + 4 * j
            e(f'buffer_load_dwordx4 v[{r}:{r + 3}], v6, s[{sWS}:{sWS + 3}], s{sT0} offen offset:{qb * 2048 + 16 * j}', 'st')

    def w_dma(c):
        out = []
        for mat, (sd, reg) in enumerate(((s1, LDS_G), (s3_, LDS_U))):
            for p in range(2):
                g = []
                if p == 0:
                    g.append((1, lambda reg=reg: e(f's_add_u32 m0, s{sW2K}, {reg + c * 8192}')))
                g.append((1, lambda p=p: e(f's_add_u32 s{sT0}, s{sWo}, {c * 64 * 3584 + p * (8 * 3584 - 1024)}')))
                g.append((COST['dma'], lambda p=p, sd=sd: e(f'buffer_load_dwordx4 v{VDW}, s[{sd}:{sd + 3}], s{sT0} offen offset:{p * 1024} lds', ('wq', c))))
                out.append(g)
        return out

    def xreg(ks, qb):
        return XR + (((ks // 4) % 4) * 8 + (ks % 4) * 2 + qb) * 4

    def x_load(ks, qb):
        c = ks // 4
        r = xreg(ks, qb)
        return [(1, lambda: e(f's_add_u32 s{sT1}, s{sXb}, {qb * 32768 + c * 4096}')),
                (COST['vload'], lambda: e(f'buffer_load_dwordx4 v[{r}:{r + 3}], v{VL16}, s[{sWS}:{sWS + 3}], s{sT1} offen offset:{(ks % 4) * 1024}', ('x', ks)))]

    e(f's_lshl_b32 s{sT0}, s{sW}, 10')
    e(f's_add_u32 m0, s{sT0}, {LDS_MOD}')
    e(f's_add_u32 s{sT0}, s{sT0}, {WS_MOD2}')
    e(f'buffer_load_dwordx4 v{VL16}, s[{sWS}:{sWS + 3}], s{sT0} offen lds', ('wq', 0))
    NPRE = opts.get('npre', 1)
    for c in range(NPRE):
        for g in w_dma(c):
            for _, f in g: f()
        for ks in range(4 * c, 4 * c + 4):
            for qb in range(2):
                for _, f in x_load(ks, qb): f()
    e(f'v_bfe_u32 v3, v{VLANE}, 2, 2')
    e('v_lshl_add_u32 v5, v4, 3, v3')
    e('v_lshlrev_b32 v5, 7, v5')
    e(f'v_bfe_u32 v6, v{VLANE}, 4, 1')
    e('v_lshl_add_u32 v5, v6, 5, v5')
    e(f'v_and_b32 v6, 1, v{VLANE}')
    e('v_lshl_add_u32 v5, v6, 4, v5')
    e(f'v_bfe_u32 v6, v{VLANE}, 1, 1')
    e('v_lshl_add_u32 v5, v6, 3, v5')
    e('v_lshrrev_b32 v6, 1, v3')
    e(f'v_lshl_add_u32 v{WRA}, v6, 6, v5')
    e('v_xor_b32 v6, 1, v6')
    e(f'v_lshl_add_u32 v{WRA + 1}, v6, 6, v5')
    e(f'v_add_u32 v{WRA + 2}, {LDS_U}, v{WRA}')
    e(f'v_add_u32 v{WRA + 3}, {LDS_U}, v{WRA + 1}')
    e(f'v_lshlrev_b32 v{VMD}, 6, v4')
    e(f'v_add_u32 v{VMD}, {LDS_MOD}, v{VMD}')
    k.wait(vm=['st'])
    e(f's_mov_b32 s3, {f32(1.0 / 512)}')
    for qb in range(2):
        r = 212 + qb * 8
        for j in range(1, 4):
            e(f'v_add_f32 v{r}, v{r}, v{r + 2 * j}')
            e(f'v_add_f32 v{r + 1}, v{r + 1}, v{r + 2 * j + 1}')
        e(f'v_mov_b32 v{r + 2}, v{r}')
        e(f'v_mov_b32 v{r + 3}, v{r + 1}')
        e(f'v_permlane32_swap_b32 v{r}, v{r + 2}')
        e(f'v_permlane32_swap_b32 v{r + 1}, v{r + 3}')
        e(f'v_add_f32 v{r}, v{r}, v{r + 2}')
        e(f'v_add_f32 v{r + 1}, v{r + 1}, v{r + 3}')
        e(f'v_mul_f32 v{r}, s3, v{r}')
        e(f'v_mul_f32 v{r + 1}, s3, v{r + 1}')
        e(f'v_fma_f32 v{r + 1}, -v{r}, v{r}, v{r + 1}')
        e(f'v_max_f32 v{r + 1}, 0, v{r + 1}')
        rbf(k, r, r)
        rbf(k, r + 1, r + 1)
        e(f'v_add_f32 v{r + 1}, {f32(1e-5)}, v{r + 1}')
        rbf(k, r + 1, r + 1)
        e(f'v_sqrt_f32 v{r + 1}, v{r + 1}')
        rbf(k, r + 1, r + 1)
        e(f'v_rcp_f32 v{RS[qb]}, v{r + 1}')
        e(f'v_mul_f32 v{NM[qb]}, v{r}, v{RS[qb]}')
        e(f'v_sub_f32 v{NM[qb]}, 0, v{NM[qb]}')

    def w_reads(ks):
        out = []
        for db in range(4):
            for t in range(2):
                r = WF + (ks % 2) * 16 + db * 4 + t * 2
                out.append((COST['ds'], lambda r=r, db=db, t=t: e(f'ds_read_b64_tr_b16 a[{r}:{r + 1}], v{WRA + db} offset:{ks * 2048 + t * 512}', ('w', ks))))
        return out

    def ss_reads(ks):
        out = []
        for j in range(4):
            r = SS + (ks % 2) * 16 + 4 * j
            out.append((COST['ds'], lambda r=r, j=j: e(f'ds_read_b128 v[{r}:{r + 3}], v{VMD} offset:{ks * 128 + j * 16}', ('ss', ks))))
        return out

    def xform(ks):
        out = []
        sb = SS + (ks % 2) * 16
        for qb in range(2):
            x = xreg(ks, qb)
            for p in range(4):
                t = FT + (qb * 4 + p) * 2
                out.append((1, lambda x=x, p=p, t=t: e(f'v_lshlrev_b32 v{t}, 16, v{x + p}')))
                out.append((1, lambda x=x, p=p, t=t: e(f'v_and_b32 v{t + 1}, 0xffff0000, v{x + p}')))
                out.append((1, lambda t=t, qb=qb: e(f'v_fma_f32 v{t}, v{t}, v{RS[qb]}, v{NM[qb]}')))
                out.append((1, lambda t=t, qb=qb: e(f'v_fma_f32 v{t + 1}, v{t + 1}, v{RS[qb]}, v{NM[qb]}')))
                out.append((1, lambda p=p, t=t: e(f'v_fma_f32 v{t}, v{t}, v{sb + 2 * p}, v{sb + 8 + 2 * p}')))
                out.append((1, lambda p=p, t=t: e(f'v_fma_f32 v{t + 1}, v{t + 1}, v{sb + 2 * p + 1}, v{sb + 8 + 2 * p + 1}')))
                h = H + (ks % 2) * 8 + qb * 4 + p
                out.append((1, lambda t=t, h=h: e(f'v_cvt_pk_bf16_f32 v{h}, v{t}, v{t + 1}')))
        return out

    def chunk_barrier(c):
        stamp(k, 1)
        k.wait(vm=[('wq', c)])
        e('s_barrier')
        stamp(k, 2)

    todo = []
    for c in range(NPRE, 8):
        todo += [(0, g) for g in w_dma(c)]
        for ks in range(4 * c, 4 * c + 4):
            todo += [(ks - 16, x_load(ks, 0)), (ks - 16, x_load(ks, 1))]
    RATE = opts.get('rate', 4)

    def refill(ks):
        out = []
        while todo and len(out) < RATE and todo[0][0] <= ks:
            out.append(todo.pop(0)[1])
        return out

    gemm256(k, dict(w_reads=w_reads, ss_reads=ss_reads, xform=xform, refill=refill, chunk_barrier=chunk_barrier,
                    ACC=ACC, WF=WF, H=H))
    assert not todo
    stamp(k, 3)
    e(f's_mov_b32 s3, {f32(-LOG2E)}')
    n = 0
    for qb in range(2):
        e(f's_add_u32 s{sT0}, s{sHb}, {qb * 112 * 1024}')
        for nb in range(2):
            for u in range(2):
                g = ACC + (nb * 2 + qb) * 16 + 8 * u
                up = ACC + ((2 + nb) * 2 + qb) * 16 + 8 * u
                t = 8 + (n % 4) * 32; n += 1
                for i in range(8):
                    e(f'v_accvgpr_read_b32 v{t + i}, a{g + i}')
                for i in range(8):
                    e(f'v_accvgpr_read_b32 v{t + 8 + i}, a{up + i}')
                for i in range(8):
                    rbf(k, t + i, t + i)
                for i in range(8):
                    e(f'v_mul_f32 v{t + 16 + i}, s3, v{t + i}')
                for i in range(8):
                    e(f'v_exp_f32 v{t + 16 + i}, v{t + 16 + i}')
                for i in range(8):
                    rbf(k, t + 8 + i, t + 8 + i)
                for i in range(8):
                    e(f'v_add_f32 v{t + 16 + i}, 1.0, v{t + 16 + i}')
                for i in range(8):
                    e(f'v_rcp_f32 v{t + 16 + i}, v{t + 16 + i}')
                for i in range(8):
                    e(f'v_mul_f32 v{t + i}, v{t + i}, v{t + 16 + i}')
                for i in range(8):
                    rbf(k, t + i, t + i)
                for i in range(8):
                    e(f'v_mul_f32 v{t + i}, v{t + i}, v{t + 8 + i}')
                for i in range(4):
                    e(f'v_cvt_pk_bf16_f32 v{t + 24 + i}, v{t + 2 * i}, v{t + 2 * i + 1}')
                e(f'buffer_store_dwordx4 v[{t + 24}:{t + 27}], v{VL16}, s[{sWS}:{sWS + 3}], s{sT0} offen offset:{(nb * 2 + u) * 1024}{opts.get("hst", " sc1")}')
    stamp(k, 4)
    stamp_flush(k, 5, sWS, 3)
    k.label(f'{name}_end')
    e('s_endpgm')
    return k, 'grid=(224,1,1) block=(256,1,1) lds=135168'


def build(opts=None):
    global STAMP
    opts = opts or {}
    STAMP = opts.get('stamp', False)
    for kk in COST:
        if 'c_' + kk in opts: COST[kk] = opts['c_' + kk]
    ks = [gen_prep(opts), gen_attn(opts), gen_gemm64('oproj_kernel', 'wo'), gen_ffn1(opts), gen_gemm64('ffn2_kernel', 'w2')]
    if 'nop' in opts:
        nk = Kern('nop_kernel'); nk.e('s_endpgm')
        for pos in sorted(opts['nop'], reverse=True):
            ks.insert(pos, (nk, 'grid=(1,1,1) block=(64,1,1) lds=0'))
    hdr = open('adaLN_cond__mha_block_cached__glu_gated_swiglu__prompt.s.ref').read().split('\n')
    out = []
    for l in hdr:
        if l.startswith('; Override') or l.startswith('; grid=') or '@launch' in l or not l.startswith(';'):
            if not l.startswith(';'):
                break
            continue
        out.append(l)
    for k, launch in ks:
        for _ in range(1 + opts.get('dup_' + k.name[:4], 0)):
            out.append(f'; @launch kernel={k.name} {launch}')
    out.append('.amdgcn_target "amdgcn-amd-amdhsa--gfx950"')
    out.append('.text')
    uniq = []
    for x in ks:
        if all(x[0] is not y[0] for y in uniq): uniq.append(x)
    ks = sorted(uniq, key=lambda x: x[0].name == 'nop_kernel')
    for k, _ in ks:
        n = k.fix_hazards(verbose=opts.get('verbose', False))
        print(f'{k.name}: {len(k.ins)} instr, {n} hazard nop states, regs {k.max_regs()}', file=sys.stderr)
        out.append(f'.globl {k.name}')
        out.append('.p2align 8')
        out.append(f'.type {k.name},@function')
        out.append(f'{k.name}:')
        out.append(k.text())
    errs = 0
    errs += ks[0][0].verify_path({})
    errs += ks[0][0].verify_path({'prep_ln': 1})
    errs += ks[1][0].verify_path({'attn_tail': [False, False, True]})
    errs += ks[2][0].verify_path({})
    errs += ks[3][0].verify_path({})
    errs += ks[4][0].verify_path({})
    assert errs == 0, errs
    out.append('.section .rodata,"a"')
    for k, _ in ks:
        out.append('.p2align 6')
        out.append(descriptor(k))
    return '\n'.join(out)


if __name__ == '__main__':
    dst = sys.argv[1] if len(sys.argv) > 1 else 'adaLN_cond__mha_block_cached__glu_gated_swiglu__prompt.s'
    opts = {}
    for a in sys.argv[2:]:
        kk, _, v = a.partition('=')
        opts[kk] = eval(v) if v else True
    open(dst, 'w').write(build(opts))
```

```python
import sys, struct, math
from asmlib import *

A_X, A_K, A_V, A_WQ, A_WO, A_BX, A_W1, A_W3, A_W2, A_C, A_WMOD, A_OUT, A_DBG, A_WS = [8 * i for i in range(14)]
WS_MOD1 = 0
WS_GA = 4096
WS_MOD2 = 8192
WS_GB = 8192 + 4096
WS_XHAT = 0x10000
WS_O = 0x400000
WS_X1 = 0x1400000
WS_ST = 0x1600000
WS_HH = 0x1800000
WS_WOT = 0x2000000
WS_W2T = 0x2400000
WS_SIZE = 0x2800000

LOG2E = 1.4426950408889634


def f32(x):
    return '0x%08x' % struct.unpack('<I', struct.pack('<f', x))[0]


def srd(k, d, lo, hi, nbytes):
    k.e(f's_mov_b32 s{d}, s{lo}')
    k.e(f's_and_b32 s{d + 1}, s{hi}, 0xffff')
    k.e(f's_mov_b32 s{d + 2}, {nbytes}')
    k.e(f's_mov_b32 s{d + 3}, 0x00020000')


WS_STAMP = 0x1F00000
STAMP = False


def stamp(k, idx):
    if not STAMP:
        return
    k.e('s_waitcnt lgkmcnt(0)')
    k.e(f's_memtime s[{64 + 2 * idx}:{65 + 2 * idx}]')
    if idx == 0:
        k.e('s_memrealtime s[96:97]')
    k.e('s_waitcnt lgkmcnt(0)')


def stamp_flush(k, n, sws, kidx):
    if not STAMP:
        return
    e = k.e
    e('s_waitcnt vmcnt(0) lgkmcnt(0)')
    stamp(k, n)
    e('s_memrealtime s[98:99]')
    e('s_waitcnt lgkmcnt(0)')
    lab = k.newlabel('nost')
    e('v_readfirstlane_b32 s100, v0')
    e('s_cmp_lg_u32 s100, 0')
    e(f's_cbranch_scc1 {lab}')
    e('s_lshl_b32 s100, s2, 7')
    e(f's_add_u32 s100, s100, {WS_STAMP + kidx * 65536}')
    e('v_mov_b32 v1, 0')
    for i in range(n + 1):
        e(f'v_mov_b32 v2, s{64 + 2 * i}')
        e(f'buffer_store_dword v2, v1, s[{sws}:{sws + 3}], s100 offen offset:{4 * i}')
    e('v_mov_b32 v2, s96')
    e(f'buffer_store_dword v2, v1, s[{sws}:{sws + 3}], s100 offen offset:120')
    e('v_mov_b32 v2, s98')
    e(f'buffer_store_dword v2, v1, s[{sws}:{sws + 3}], s100 offen offset:124')
    k.label(lab)


def rbf(k, d, s):
    k.e(f'v_cvt_pk_bf16_f32 v{d}, 0, v{s}')


def allreduce16(k, v, t):
    for mod in ('quad_perm:[1,0,3,2]', 'quad_perm:[2,3,0,1]', 'row_half_mirror', 'row_mirror'):
        k.e(f'v_add_f32_dpp v{t}, v{v}, v{v} {mod} row_mask:0xf bank_mask:0xf')
        v, t = t, v


def gen_prep(opts):
    k = Kern('prep_kernel')
    e = k.e
    NMOD, NLN = 96, 128
    e(f's_cmp_ge_u32 s2, {NMOD + NLN}')
    e('s_cbranch_scc1 prep_end')
    stamp(k, 0)
    e(f's_load_dwordx2 s[4:5], s[0:1], {A_WS}')
    e(f's_load_dwordx2 s[6:7], s[0:1], {A_X}')
    e(f's_load_dwordx4 s[20:23], s[0:1], {A_C}')
    e(f's_load_dwordx4 s[36:39], s[0:1], {A_K}')
    e(f's_load_dwordx2 s[40:41], s[0:1], {A_WQ}')

    def prefetch():
        if not opts.get('pf1', 0):
            return
        e('v_lshrrev_b32 v72, 6, v0')
        e('v_and_b32 v73, 63, v0')
        e('v_readfirstlane_b32 s42, v72')
        e('v_lshrrev_b32 v74, 4, v73')
        e('v_and_b32 v75, 15, v73')
        e('v_lshlrev_b32 v74, 13, v74')
        e('v_lshl_add_u32 v74, v75, 6, v74')
        e('v_lshlrev_b32 v73, 6, v73')
        e('s_lshr_b32 s43, s2, 3')
        e('s_lshl_b32 s43, s43, 2')
        e('s_add_u32 s43, s43, s42')
        e('s_and_b32 s44, s2, 7')
        srd(k, 48, 40, 41, 512 * 8192)
        e('s_lshl_b32 s45, s43, 15')
        e('s_lshl_b32 s46, s44, 10')
        e('s_add_u32 s45, s45, s46')
        e('buffer_load_dword v76, v74, s[48:51], s45 offen', 'pf')
        e(f's_add_u32 s45, s45, {112 * 32768}')
        e('buffer_load_dword v77, v74, s[48:51], s45 offen', 'pf')
        e('s_and_b32 s45, s43, 63')
        e('s_lshr_b32 s46, s45, 4')
        e('s_lshl_b32 s47, s44, 2')
        e('s_add_u32 s46, s46, s47')
        e('s_lshl_b32 s46, s46, 19')
        e('s_and_b32 s45, s45, 15')
        e('s_lshl_b32 s45, s45, 12')
        e('s_add_u32 s45, s45, s46')
        srd(k, 48, 36, 37, 32 * 524288)
        e('buffer_load_dword v78, v73, s[48:51], s45 offen', 'pf')
        srd(k, 48, 38, 39, 32 * 524288)
        e('buffer_load_dword v79, v73, s[48:51], s45 offen', 'pf')
    e(f's_cmp_ge_u32 s2, {NMOD}')
    e('s_cbranch_scc1 prep_ln')
    e('v_and_b32 v1, 3, v0')
    e('v_lshrrev_b32 v2, 2, v0')
    e('s_mov_b32 s3, 49152')
    e('v_mul_lo_u32 v3, v2, s3')
    e('v_lshl_add_u32 v3, v1, 4, v3')
    e('s_lshl_b32 s3, s2, 6')
    e('v_add_u32 v3, s3, v3')
    e('v_lshlrev_b32 v4, 4, v2')
    e('s_waitcnt lgkmcnt(0)')
    srd(k, 8, 20, 21, 1024)
    srd(k, 12, 22, 23, 512 * 6144)
    srd(k, 16, 4, 5, WS_SIZE)
    e('buffer_load_dwordx4 v[8:11], v4, s[8:11], 0 offen', 'c')
    for i in range(8):
        e(f's_mov_b32 s{24 + i}, {i * 6144}')
        e(f'buffer_load_dwordx4 v[{16 + 4 * i}:{19 + 4 * i}], v3, s[12:15], s{24 + i} offen', ('w', i))
    prefetch()
    k.wait(vm=['c'])
    e(f's_mov_b32 s3, {f32(-LOG2E)}')
    for i in range(8):
        src = 8 + i // 2
        if i % 2 == 0:
            e(f'v_lshlrev_b32 v{48 + i}, 16, v{src}')
        else:
            e(f'v_and_b32 v{48 + i}, 0xffff0000, v{src}')
    for i in range(8):
        e(f'v_mul_f32 v{56 + i}, s3, v{48 + i}')
    for i in range(8):
        e(f'v_exp_f32 v{56 + i}, v{56 + i}')
    for i in range(8):
        e(f'v_add_f32 v{56 + i}, 1.0, v{56 + i}')
    for i in range(8):
        e(f'v_rcp_f32 v{56 + i}, v{56 + i}')
    for i in range(8):
        e(f'v_mul_f32 v{48 + i}, v{48 + i}, v{56 + i}')
    for i in range(8):
        rbf(k, 48 + i, 48 + i)
    for i in range(8):
        k.wait(vm=[('w', i)])
        for p in range(4):
            w = 16 + 4 * i + p
            e(f'v_lshlrev_b32 v56, 16, v{w}')
            e(f'v_and_b32 v57, 0xffff0000, v{w}')
            if i == 0:
                e(f'v_mul_f32 v{64 + 2 * p}, v48, v56')
                e(f'v_mul_f32 v{65 + 2 * p}, v48, v57')
            else:
                e(f'v_fmac_f32 v{64 + 2 * p}, v{48 + i}, v56')
                e(f'v_fmac_f32 v{65 + 2 * p}, v{48 + i}, v57')
    e('v_lshlrev_b32 v5, 5, v0')
    e('ds_write_b128 v5, v[64:67]')
    e('ds_write_b128 v5, v[68:71] offset:16')
    e('s_waitcnt lgkmcnt(0)')
    e('s_barrier')
    e('v_and_b32 v6, 31, v0')
    e('v_lshrrev_b32 v7, 5, v0')
    e('v_lshlrev_b32 v5, 10, v7')
    e('v_lshl_add_u32 v5, v6, 2, v5')
    for i in range(8):
        e(f'ds_read_b32 v{16 + i}, v5 offset:{i * 128}')
    e('s_waitcnt lgkmcnt(0)')
    for i in range(1, 8):
        e(f'v_add_f32 v16, v16, v{16 + i}')
    e('v_lshlrev_b32 v5, 2, v0')
    e('ds_write_b32 v5, v16 offset:8192')
    e('s_waitcnt lgkmcnt(0)')
    e('s_barrier')
    e('v_cmp_gt_u32 vcc, 32, v0')
    e('s_and_saveexec_b64 s[32:33], vcc')
    e('s_cbranch_execz prep_end')
    for i in range(8):
        e(f'ds_read_b32 v{16 + i}, v5 offset:{8192 + i * 128}')
    e('s_waitcnt lgkmcnt(0)')
    for i in range(1, 8):
        e(f'v_add_f32 v16, v16, v{16 + i}')
    rbf(k, 16, 16)
    e('v_add_f32 v17, 1.0, v16')
    rbf(k, 17, 17)
    e('s_lshr_b32 s24, s2, 4')
    e('s_and_b32 s25, s2, 15')
    e('s_lshl_b32 s25, s25, 5')
    e('v_add_u32 v6, s25, v0')
    e('s_cmp_ge_u32 s24, 3')
    e('s_cselect_b32 s26, 8192, 0')
    e('s_cselect_b32 s27, 3, 0')
    e('s_sub_u32 s24, s24, s27')
    e('v_lshrrev_b32 v7, 3, v6')
    e('v_lshlrev_b32 v7, 6, v7')
    e('v_and_b32 v8, 7, v6')
    e('v_lshl_add_u32 v7, v8, 2, v7')
    e('v_lshlrev_b32 v8, 2, v6')
    stamp_flush(k, 1, 16, 0)
    e('s_cmp_eq_u32 s24, 2')
    e('s_cbranch_scc1 prep_gate')
    e('s_cmp_eq_u32 s24, 1')
    e('s_cbranch_scc1 prep_scale')
    e('buffer_store_dword v16, v7, s[16:19], s26 offen offset:32')
    e('s_endpgm')
    k.label('prep_scale')
    e('buffer_store_dword v17, v7, s[16:19], s26 offen')
    e('s_endpgm')
    k.label('prep_gate')
    e('s_add_u32 s26, s26, 4096')
    e('buffer_store_dword v16, v8, s[16:19], s26 offen')
    e('s_endpgm')
    k.label('prep_ln')
    e(f's_sub_u32 s3, s2, {NMOD}')
    e('s_lshl_b32 s3, s3, 4')
    e('v_lshrrev_b32 v1, 4, v0')
    e('v_add_u32 v1, s3, v1')
    e('v_and_b32 v2, 15, v0')
    e('v_lshlrev_b32 v3, 10, v1')
    e('v_lshl_add_u32 v3, v2, 4, v3')
    e('s_waitcnt lgkmcnt(0)')
    srd(k, 8, 6, 7, 2048 * 1024)
    srd(k, 16, 4, 5, WS_SIZE)
    for j in range(4):
        e(f'buffer_load_dwordx4 v[{8 + 4 * j}:{11 + 4 * j}], v3, s[8:11], 0 offen offset:{256 * j}', ('x', j))
    prefetch()
    e('v_lshrrev_b32 v4, 5, v1')
    e('v_lshlrev_b32 v4, 15, v4')
    e('v_lshrrev_b32 v5, 1, v2')
    e('v_lshl_add_u32 v4, v5, 10, v4')
    e('v_and_b32 v5, 1, v2')
    e('v_lshl_add_u32 v4, v5, 9, v4')
    e('v_and_b32 v5, 31, v1')
    e('v_lshl_add_u32 v4, v5, 4, v4')
    X = 32
    for j in range(4):
        k.wait(vm=[('x', j)])
        for p in range(4):
            e(f'v_lshlrev_b32 v{X + 8 * j + 2 * p}, 16, v{8 + 4 * j + p}')
            e(f'v_and_b32 v{X + 8 * j + 2 * p + 1}, 0xffff0000, v{8 + 4 * j + p}')
    e(f'v_add_f32 v24, v{X}, v{X + 1}')
    e(f'v_add_f32 v25, v{X + 2}, v{X + 3}')
    for i in range(4, 32):
        e(f'v_add_f32 v{24 + i % 2}, v{24 + i % 2}, v{X + i}')
    e('v_add_f32 v24, v24, v25')
    allreduce16(k, 24, 25)
    e(f's_mov_b32 s3, {f32(1.0 / 512)}')
    e('v_mul_f32 v24, s3, v24')
    for i in range(32):
        e(f'v_sub_f32 v{64 + i % 4}, v{X + i}, v24')
        if i < 2:
            e(f'v_mul_f32 v{26 + i}, v{64 + i % 4}, v{64 + i % 4}')
        else:
            e(f'v_fmac_f32 v{26 + i % 2}, v{64 + i % 4}, v{64 + i % 4}')
    e('v_add_f32 v26, v26, v27')
    allreduce16(k, 26, 27)
    e('v_mul_f32 v26, s3, v26')
    rbf(k, 24, 24)
    rbf(k, 26, 26)
    e(f'v_add_f32 v26, {f32(1e-5)}, v26')
    rbf(k, 26, 26)
    e('v_sqrt_f32 v26, v26')
    rbf(k, 26, 26)
    e('v_rcp_f32 v26, v26')
    e(f's_mov_b32 s24, {WS_XHAT}')
    for j in range(4):
        for i in range(8):
            r = X + 8 * j + i
            e(f'v_sub_f32 v{r}, v{r}, v24')
        for i in range(8):
            r = X + 8 * j + i
            rbf(k, r, r)
        for i in range(8):
            r = X + 8 * j + i
            e(f'v_mul_f32 v{r}, v{r}, v26')
        for i in range(8):
            r = X + 8 * j + i
            rbf(k, r, r)
        for p in range(4):
            r = X + 8 * j + 2 * p
            e(f'v_cvt_pkrtz_f16_f32 v{8 + 4 * j + p}, v{r}, v{r + 1}')
        e(f'buffer_store_dwordx4 v[{8 + 4 * j}:{11 + 4 * j}], v4, s[16:19], s24 offen')
        if j < 3:
            e(f's_add_u32 s24, s24, 8192')
    stamp_flush(k, 1, 16, 0)
    k.label('prep_end')
    e('s_endpgm')
    return k, f'grid=({NMOD + NLN},1,1) block=(256,1,1) lds=9216'


COST = {'exp': 2, 'valu': 1, 'ds': 1, 'dma': 2.5, 'salu': 1, 'vload': 2.5}
GAPCAP = 6
ORDER = {'wait': 0, 'bar': 1, 'dma': 2, 'ds': 3, 'end': 9}


def schedule(k, mfmas, fixed, stream, last_gap=None, cap=GAPCAP, caps=None):
    n = len(mfmas)
    if last_gap is None:
        last_gap = n - 1
    spare = []
    for g in range(n):
        c = sum(x[0] for x in fixed.get(g, []))
        cp = caps.get(g, cap) if caps else cap
        spare.append(max(cp - c, 0) if g <= last_gap else 0)
    tot_spare = sum(spare)
    tot = sum(x[0] for x in stream)
    si = 0
    done = 0.0
    cum = 0
    lastg = max([g for g in range(n) if spare[g] > 0] or [n - 1])
    for g in range(n):
        mfmas[g]()
        fx = sorted(fixed.get(g, []), key=lambda x: ORDER[x[2]])
        cum += spare[g]
        target = tot * cum / max(tot_spare, 1)
        mine = []
        while si < len(stream) and ((spare[g] > 0 and done + stream[si][0] * 0.5 <= target) or g >= lastg):
            mine.append(stream[si]); done += stream[si][0]; si += 1
        for x in fx:
            if x[2] != 'end': x[1]()
        for x in mine: x[1]()
        for x in fx:
            if x[2] == 'end': x[1]()
    assert si == len(stream)


def gemm256(k, P):
    e = k.e
    P['chunk_barrier'](0)
    for _, f in P['ss_reads'](0) + P['w_reads'](0) + P['ss_reads'](1): f()
    k.wait(vm=[('x', 0)], lg=[('ss', 0)])
    for _, f in P['xform'](0): f()
    k.wait(lg=[('w', 0)])
    for ks in range(32):
        mf = []
        for db in range(4):
            for qb in range(2):
                def m(db=db, qb=qb):
                    acc = P['ACC'] + (db * 2 + qb) * 16
                    wf = P['WF'] + (ks % 2) * 16 + db * 4
                    h = P['H'] + (ks % 2) * 8 + qb * 4
                    c = '0' if ks == 0 else ar(acc, 16)
                    e(f'v_mfma_f32_32x32x16_bf16 {ar(acc, 16)}, {ar(wf, 4)}, {vr(h, 4)}, {c}')
                mf.append(m)
        fx = {}
        st = []
        caps = {}
        if ks + 1 < 32:
            newc = (ks + 1) % 4 == 0
            if newc:
                fx.setdefault(0, []).append((0, lambda: k.wait(vm=[('wq', (ks + 1) // 4), ('x', ks + 1)], lg=[('ss', ks + 1)]), 'wait'))
                fx.setdefault(0, []).append((6, lambda: e('s_barrier'), 'bar'))
                caps[1] = 4
            else:
                fx.setdefault(0, []).append((0, lambda: k.wait(vm=[('x', ks + 1)], lg=[('ss', ks + 1)]), 'wait'))
            g0 = 1 if newc else 0
            rd = (P['ss_reads'](ks + 2) if ks + 2 < 32 else []) + P['w_reads'](ks + 1)
            for i, it in enumerate(rd):
                fx.setdefault(g0 + i // 3, []).append((it[0], it[1], 'ds'))
            st = P['xform'](ks + 1)
            fx.setdefault(7, []).append((0, lambda: k.wait(lg=[('w', ks + 1)]), 'wait'))
        groups = P['refill'](ks)
        gl = [5, 6, 4, 7, 3, 2][:len(groups)]
        gl.sort()
        for g, grp in zip(gl, groups):
            for it in grp[:-1]:
                fx.setdefault(g - 1, []).append((it[0], it[1], 'end'))
            fx.setdefault(g, []).append((grp[-1][0], grp[-1][1], 'dma'))
        schedule(k, mf, fx, st, caps=caps, last_gap=6, cap=7)


class G256:
    pass


BIAS = 100.0
THRESH = 2.0 ** 80


def gen_attn(opts):
    global BIAS
    BIAS = opts.get('bias', BIAS)
    k = Kern('attn_kernel')
    e = k.e
    sK, sV, sWQ, sWS = 8, 12, 16, 20
    sW, sW4K, sKoff, sVoff, sCnt, sThr, sXb, sT0, sT1, sOb = 32, 33, 34, 35, 36, 37, 38, 39, 40, 41
    sLink = 44
    S = [8, 40]; NEGM = 72; P = [104, 120]; Q = 136; ET = 200
    LS = [208, 209]; L = [210, 211]; TMP = 212
    KR = 216; VR = 224; DK = 228; DV = 232; VL16 = 233; VMD = 234; VLANE = 235
    O = 0; KF = 128; VF = 160
    LDS_K, LDS_V, LDS_MOD = 0, 65536, 131072

    e('s_cmp_ge_u32 s2, 256')
    e('s_cbranch_scc1 attn_end')
    stamp(k, 0)
    e(f's_load_dwordx4 s[4:7], s[0:1], {A_K}')
    e(f's_load_dwordx2 s[24:25], s[0:1], {A_WQ}')
    e(f's_load_dwordx2 s[26:27], s[0:1], {A_WS}')
    e(f's_load_dwordx2 s[48:49], s[0:1], {A_WO}')
    e(f's_load_dwordx4 s[52:55], s[0:1], {A_W3}')
    e(f's_load_dwordx2 s[50:51], s[0:1], {A_W1}')
    e('s_and_b32 s28, s2, 7')
    e('s_lshl_b32 s28, s28, 2')
    e('s_lshr_b32 s29, s2, 3')
    e('s_and_b32 s30, s29, 3')
    e('s_add_u32 s28, s28, s30')
    e('s_lshr_b32 s29, s29, 2')
    e('v_lshrrev_b32 v1, 6, v0')
    e(f'v_and_b32 v{VLANE}, 63, v0')
    e(f'v_readfirstlane_b32 s{sW}, v1')
    e(f'v_lshlrev_b32 v{VL16}, 4, v{VLANE}')
    e(f's_lshl_b32 s{sW4K}, s{sW}, 12')
    e(f'v_lshrrev_b32 v2, 4, v{VLANE}')
    e(f'v_and_b32 v3, 15, v{VLANE}')
    e(f'v_lshrrev_b32 v4, 5, v{VLANE}')
    e(f'v_and_b32 v5, 31, v{VLANE}')
    e('v_lshlrev_b32 v6, 2, v2')
    e('v_xor_b32 v6, v6, v3')
    e('v_lshlrev_b32 v6, 4, v6')
    e(f'v_lshl_add_u32 v{DV}, v2, 8, v6')
    e(f'v_add_u32 v{DV}, s{sW4K}, v{DV}')
    e(f's_lshl_b32 s3, s{sW}, 17')
    e('v_lshl_add_u32 v7, v2, 13, v6')
    e('v_add_u32 v7, s3, v7')
    e('s_waitcnt lgkmcnt(0)')
    e('s_lshl_b32 s3, s28, 19')
    e('s_add_u32 s4, s4, s3'); e('s_addc_u32 s5, s5, 0')
    e('s_add_u32 s6, s6, s3'); e('s_addc_u32 s7, s7, 0')
    srd(k, sK, 4, 5, 524288)
    srd(k, sV, 6, 7, 524288)
    e('s_lshl_b32 s3, s28, 8')
    e('s_add_u32 s24, s24, s3'); e('s_addc_u32 s25, s25, 0')
    e(f's_mov_b32 s{sWQ}, s24'); e(f's_and_b32 s{sWQ + 1}, s25, 0xffff')
    e(f's_sub_u32 s{sWQ + 2}, {512 * 8192}, s3'); e(f's_mov_b32 s{sWQ + 3}, 0x00020000')
    srd(k, sWS, 26, 27, WS_SIZE)
    e('s_lshl_b32 s3, s29, 3')
    e(f's_lshl_b32 s{sT0}, s{sW}, 1')
    e(f's_add_u32 s3, s3, s{sT0}')
    e(f's_lshl_b32 s{sXb}, s3, 15')
    e(f's_add_u32 s{sXb}, s{sXb}, {WS_XHAT}')
    e(f's_lshl_b32 s{sOb}, s3, 18')
    e(f's_lshl_b32 s{sT0}, s28, 13')
    e(f's_add_u32 s{sOb}, s{sOb}, s{sT0}')
    e(f's_add_u32 s{sOb}, s{sOb}, {WS_O}')

    XR = 8; H = 136; SS = 152; FT = 184; WRA = 200; WF = 128
    chunk_slot = [LDS_K, LDS_K + 16384, LDS_V, LDS_K + 32768, LDS_K + 49152, LDS_V + 16384, LDS_V + 32768, LDS_V + 49152]

    def wq_dma(c):
        out = []
        for p in range(4):
            g = []
            if p == 0:
                g.append((1, lambda: e(f's_add_u32 m0, s{sW4K}, {chunk_slot[c]}')))
            g.append((1, lambda p=p: e(f's_mov_b32 s{sT0}, {c * 524288 + p * (32768 - 1024)}')))
            g.append((COST['dma'], lambda p=p: e(f'buffer_load_dwordx4 v7, s[{sWQ}:{sWQ + 3}], s{sT0} offen offset:{p * 1024} lds', ('wq', c))))
            out.append(g)
        return out

    def xreg(ks, qb):
        return XR + (((ks // 4) % 4) * 8 + (ks % 4) * 2 + qb) * 4

    def x_load(ks, qb):
        c = ks // 4
        out = []
        so = (sT1, 43)[qb]
        if ks % 4 == 0:
            out.append((1, lambda: e(f's_add_u32 s{so}, s{sXb}, {qb * 32768 + c * 4096}')))
        r = xreg(ks, qb)
        out.append((COST['vload'], lambda: e(f'buffer_load_dwordx4 v[{r}:{r + 3}], v{VL16}, s[{sWS}:{sWS + 3}], s{so} offen offset:{(ks % 4) * 1024}', ('x', ks))))
        return out

    e(f's_lshl_b32 s{sT0}, s{sW}, 10')
    e(f's_add_u32 m0, s{sT0}, {LDS_MOD}')
    e(f's_add_u32 s{sT0}, s{sT0}, {WS_MOD1}')
    e(f'buffer_load_dwordx4 v{VL16}, s[{sWS}:{sWS + 3}], s{sT0} offen lds', ('wq', 0))
    NPRE = opts.get('npre', 1)
    for c in range(NPRE):
        for g in wq_dma(c):
            for _, f in g: f()
        for ks in range(4 * c, 4 * c + 4):
            for qb in range(2):
                for _, f in x_load(ks, qb): f()
    e('v_lshrrev_b32 v236, 2, v3')
    e(f'v_and_b32 v237, 3, v{VLANE}')
    e('v_and_b32 v238, 1, v2')
    e('v_lshlrev_b32 v238, 5, v238')
    e('v_and_b32 v239, 1, v237')
    e('v_lshl_add_u32 v238, v239, 4, v238')
    e('v_lshrrev_b32 v239, 1, v237')
    e('v_lshl_add_u32 v238, v239, 3, v238')
    e('v_lshl_add_u32 v238, v236, 8, v238')
    for db in range(4):
        e(f'v_xor_b32 v239, {db}, v236')
        e(f'v_lshl_add_u32 v239, v239, 6, v238')
        e(f'v_lshl_add_u32 v{WRA + db}, v4, 11, v239')
        e(f'v_add_u32 v{WRA + 4 + db}, {LDS_V}, v{WRA + db}')
        e(f'v_lshl_add_u32 v{VR + db}, v4, 10, v239')
        e(f'v_add_u32 v{VR + db}, {LDS_V}, v{VR + db}')
    for ks in range(8):
        e(f'v_add_u32 v239, {2 * ks}, v4')
        e('v_xor_b32 v239, v239, v3')
        e('v_lshlrev_b32 v239, 4, v239')
        e(f'v_lshl_add_u32 v{KR + ks}, v5, 8, v239')
    for p in range(4):
        e(f'v_add_u32 v239, {4 * p}, v2')
        e('v_xor_b32 v239, v239, v3')
        e('v_lshlrev_b32 v239, 4, v239')
        e('v_lshl_add_u32 v239, v2, 8, v239')
        e(f'v_add_u32 v{DK + p}, s{sW4K}, v239')
    e(f'v_lshlrev_b32 v{VMD}, 6, v4')
    e(f'v_add_u32 v{VMD}, {LDS_MOD}, v{VMD}')
    e(f's_mov_b32 s{sThr}, {f32(THRESH)}')

    def w_reads(ks):
        c = ks // 4
        slot = chunk_slot[c]
        base = WRA + 4 if slot >= LDS_V else WRA
        off0 = (slot % 65536) + (ks % 4) * 16 * 256
        out = []
        for db in range(4):
            for t in range(2):
                r = WF + (ks % 2) * 16 + db * 4 + t * 2
                out.append((COST['ds'], lambda r=r, db=db, t=t: e(f'ds_read_b64_tr_b16 a[{r}:{r + 1}], v{base + db} offset:{off0 + t * 1024}', ('w', ks))))
        return out

    def ss_reads(ks):
        out = []
        for j in range(4):
            r = SS + (ks % 2) * 16 + 4 * j
            out.append((COST['ds'], lambda r=r, j=j: e(f'ds_read_b128 v[{r}:{r + 3}], v{VMD} offset:{ks * 128 + j * 16}', ('ss', ks))))
        return out

    def xform(ks):
        out = []
        sb = SS + (ks % 2) * 16
        for qb in range(2):
            x = xreg(ks, qb)
            for p in range(4):
                t = FT + (qb * 4 + p) * 2
                out.append((1, lambda x=x, p=p, t=t: e(f'v_fma_mix_f32 v{t}, v{x + p}, v{sb + 2 * p}, v{sb + 8 + 2 * p} op_sel_hi:[1,0,0]')))
                out.append((1, lambda x=x, p=p, t=t: e(f'v_fma_mix_f32 v{t + 1}, v{x + p}, v{sb + 2 * p + 1}, v{sb + 8 + 2 * p + 1} op_sel:[1,0,0] op_sel_hi:[1,0,0]')))
                h = H + (ks % 2) * 8 + qb * 4 + p
                out.append((1, lambda t=t, h=h: e(f'v_cvt_pk_bf16_f32 v{h}, v{t}, v{t + 1}')))
        return out

    def chunk_barrier(c):
        stamp(k, 1)
        k.wait(vm=[('wq', c)])
        e('s_barrier')
        stamp(k, 2)

    def kv_dma(which, tile):
        out = []
        slot = tile % 4
        for p in range(4):
            g = []
            if p == 0:
                g.append((1, lambda: e(f's_add_u32 m0, s{sW4K}, {(LDS_K if which == "K" else LDS_V) + slot * 16384}')))
                g.append((1, lambda: e(f's_mov_b32 s{sT0}, {tile * 16384}')))
            if which == 'K':
                g.append((COST['dma'], lambda p=p: e(f'buffer_load_dwordx4 v{DK + p}, s[{sK}:{sK + 3}], s{sT0} offen offset:{p * 1024} lds', ('K', tile))))
            else:
                g.append((COST['dma'], lambda p=p: e(f'buffer_load_dwordx4 v{DV}, s[{sV}:{sV + 3}], s{sT0} offen offset:{p * 1024} lds', ('V', tile))))
            out.append(g)
        return out

    todo = []
    for c in range(NPRE, 8):
        todo += [(0, g) for g in wq_dma(c)]
        for ks in range(4 * c, 4 * c + 4):
            todo += [(ks - 16, x_load(ks, 0)), (ks - 16, x_load(ks, 1))]
    todo += [(4, g) for g in kv_dma('K', 0)] + [(8, g) for g in kv_dma('K', 1)] + [(12, g) for g in kv_dma('V', 0)]
    RATE = opts.get('rate', 4)

    def refill(ks):
        out = []
        while todo and len(out) < RATE and todo[0][0] <= ks:
            out.append(todo.pop(0)[1])
        return out

    gemm256(k, dict(w_reads=w_reads, ss_reads=ss_reads, xform=xform, refill=refill, chunk_barrier=chunk_barrier,
                    ACC=O, WF=WF, H=H))
    assert not todo

    cq = LOG2E / math.sqrt(128.0)
    e(f's_mov_b32 s3, {f32(cq)}')
    stamp(k, 3)
    k.wait(vm=[('K', 0)])
    e('s_barrier')

    def k_read(blk, ks):
        tile = blk // 2
        off = LDS_K + (tile % 4) * 16384 + (blk % 2) * 8192
        r = KF + 4 * ks
        return lambda: e(f'ds_read_b128 a[{r}:{r + 3}], v{KR + ks} offset:{off}', ('kf', ks))

    def v_read(blk, i):
        u, db, t = i // 8, (i // 2) % 4, i % 2
        tile = blk // 2
        off = (tile % 4) * 16384 + ((blk % 2) * 32 + 16 * u + 8 * t) * 256
        r = VF + (u * 4 + db) * 4 + 2 * t
        return lambda: e(f'ds_read_b64_tr_b16 a[{r}:{r + 1}], v{VR + db} offset:{off}', ('vf', i))

    for ks in range(8):
        k_read(0, ks)()
    for g in kv_dma('K', 2):
        for _, f in g: f()
    for db in range(4):
        for qb in range(2):
            acc = O + (db * 2 + qb) * 16
            for i in range(16):
                e(f'v_accvgpr_read_b32 v{8 + i}, a{acc + i}')
            for i in range(16):
                e(f'v_mul_f32 v{8 + i}, s3, v{8 + i}')
            for i in range(8):
                u = i // 4
                e(f'v_cvt_pk_bf16_f32 v{Q + (qb * 8 + 2 * db + u) * 4 + i % 4}, v{8 + 2 * i}, v{9 + 2 * i}')
    for g in kv_dma('V', 1):
        for _, f in g: f()
    NPF = 2 if opts.get('pf', 1) else 0
    RETILE = opts.get('retile', 1)
    sPF = 42
    if NPF:
        for i, (sp, nb) in enumerate(((48, 4096 * 1024), (50, 512 * 3584), (52, 512 * 3584), (54, 1792 * 1024))):
            srd(k, 80 + 4 * i, sp, sp + 1, nb)
        e(f's_lshl_b32 s{sPF}, s2, 12')
        e(f's_lshl_b32 s{sT0}, s{sW}, 10')
        e(f's_add_u32 s{sPF}, s{sPF}, s{sT0}')
        e(f'v_lshrrev_b32 v236, 2, v{VLANE}')
        e(f'v_lshlrev_b32 v236, 6, v236')
        e(f'buffer_load_dword v240, v236, s[92:95], s{sPF} offen', 'pf')

    def qk_mfmas(blk, czero=False):
        out = []
        for ks in range(8):
            for qb in range(2):
                def m(ks=ks, qb=qb):
                    d = S[blk % 2] + 16 * qb
                    if ks == 0:
                        c = '0' if czero else vr(NEGM + 16 * qb, 16)
                    else:
                        c = vr(d, 16)
                    e(f'v_mfma_f32_32x32x16_bf16 {vr(d, 16)}, {ar(KF + 4 * ks, 4)}, {vr(Q + (qb * 8 + ks) * 4, 4)}, {c}')
                out.append(m)
        return out

    def pv_mfmas(blk, czero=False):
        out = []
        for u in range(2):
            for db in range(4):
                for qb in range(2):
                    def m(u=u, db=db, qb=qb):
                        acc = O + (db * 2 + qb) * 16
                        c = '0' if (czero and u == 0) else ar(acc, 16)
                        e(f'v_mfma_f32_32x32x16_bf16 {ar(acc, 16)}, {ar(VF + (u * 4 + db) * 4, 4)}, {vr(P[blk % 2] + (qb * 2 + u) * 4, 4)}, {c}')
                    out.append(m)
        return out

    def softmax_stream(blk):
        sb = S[blk % 2]; pb = P[blk % 2]
        items = []
        pend = []
        n = 0
        for qb in range(2):
            for i in range(8):
                t = ET + (n % 4) * 2
                r = sb + qb * 16 + 2 * i
                a = [(COST['exp'], lambda t=t, r=r: e(f'v_exp_f32 v{t}, v{r}')),
                     (COST['exp'], lambda t=t, r=r: e(f'v_exp_f32 v{t + 1}, v{r + 1}'))]
                if i == 0:
                    c = [(1, lambda t=t, qb=qb: e(f'v_add_f32 v{LS[qb]}, v{t}, v{t + 1}')), None]
                else:
                    c = [(1, lambda t=t, qb=qb: e(f'v_add_f32 v{LS[qb]}, v{LS[qb]}, v{t}')),
                         (1, lambda t=t, qb=qb: e(f'v_add_f32 v{LS[qb]}, v{LS[qb]}, v{t + 1}'))]
                if 'A' in opts.get('x', '') and i > 0:
                    c = [None, None]
                pd = pb + (qb * 2 + i // 4) * 4 + i % 4
                c.append((1, lambda t=t, pd=pd: e(f'v_cvt_pk_bf16_f32 v{pd}, v{t}, v{t + 1}')))
                items.append(a[0])
                if pend and pend[0]: items.append(pend[0])
                items.append(a[1])
                for x in pend[1:]:
                    if x: items.append(x)
                pend = c
                n += 1
        for x in pend:
            if x: items.append(x)
        return items

    stubs = []

    def check_items(blk):
        lab = k.newlabel('slow'); ret = k.newlabel('ret')
        stubs.append((lab, ret, blk % 2))

        def br():
            e(f's_cbranch_vccnz {lab}')
            k.label(ret)
        return [(1, lambda: e(f'v_max_f32 v{TMP}, v{LS[0]}, v{LS[1]}')),
                (1, lambda: e(f'v_cmp_lt_f32 vcc, s{sThr}, v{TMP}')),
                (1, br),
                (1, lambda: e(f'v_add_f32 v{L[0]}, v{L[0]}, v{LS[0]}')),
                (1, lambda: e(f'v_add_f32 v{L[1]}, v{L[1]}, v{LS[1]}'))]

    KFALL = [('kf', i) for i in range(8)]
    VFALL = [('vf', i) for i in range(16)]
    mf = qk_mfmas(0, czero=True)
    fx = {}
    for ks in range(8):
        fx.setdefault(min(2 * ks + 2, 15), []).append((COST['ds'], k_read(1, ks), 'ds'))
    k.wait(lg=KFALL)
    schedule(k, mf, fx, [])
    for qb in range(2):
        sb = S[0] + 16 * qb
        e(f'v_max3_f32 v{TMP}, v{sb}, v{sb + 1}, v{sb + 2}')
        for i in range(3, 15, 2):
            e(f'v_max3_f32 v{TMP}, v{TMP}, v{sb + i}, v{sb + i + 1}')
        e(f'v_max_f32 v{TMP}, v{TMP}, v{sb + 15}')
        e(f'v_mov_b32 v{TMP + 1}, v{TMP}')
        e(f'v_permlane32_swap_b32 v{TMP}, v{TMP + 1}')
        e(f'v_max_f32 v{TMP}, v{TMP}, v{TMP + 1}')
        e(f'v_add_f32 v{TMP}, {f32(BIAS)}, v{TMP}')
        e(f'v_sub_f32 v{NEGM + 16 * qb}, 0, v{TMP}')
        for i in range(1, 16):
            e(f'v_mov_b32 v{NEGM + 16 * qb + i}, v{NEGM + 16 * qb}')
        for i in range(16):
            e(f'v_sub_f32 v{sb + i}, v{sb + i}, v{TMP}')
        e(f'v_mov_b32 v{L[qb]}, 0')
    e(f's_mov_b32 s{sKoff}, {3 * 16384}')
    e(f's_mov_b32 s{sVoff}, {2 * 16384}')
    e(f's_mov_b32 s{sCnt}, 8')

    def step(b, do_qk=True, do_sm=True, do_pv=True, pv_zero=False, do_kread=True, do_dma=True):
        mf = []
        fx = {}
        nq = 0
        X = opts.get('x', '')
        if 'D' in X: do_dma = False
        if 'S' in X: do_sm = False
        if do_qk:
            mf += qk_mfmas(b + 1); nq = 16
        if do_pv:
            mf += pv_mfmas(b - 1, czero=pv_zero)
        n = len(mf)
        caps = {}
        full = do_qk and do_pv
        if do_pv and 'L' not in X:
            if do_qk:
                for i in range(16):
                    fx.setdefault(i // 2, []).append((COST['ds'], v_read(b - 1, i), 'ds'))
            else:
                for i in range(16):
                    v_read(b - 1, i)()
                k.wait(lg=VFALL)
        bar = b % 2 == 0 and do_kread and 'B' not in X
        gb = 15 if full else 0
        if bar:
            vmn = 8 + (NPF if b >= 2 else NPF // 2)

            def wt():
                t = k.wait_text(lg=VFALL) if full else None
                e(f's_waitcnt vmcnt({vmn})' + (t[9:] if t else ''))
            fx.setdefault(gb, []).append((0, wt, 'wait'))
            fx.setdefault(gb, []).append((6, lambda: e('s_barrier'), 'bar'))
            caps[gb + 1] = opts.get('cap_ab', 3)
        elif full:
            fx.setdefault(15, []).append((0, lambda: k.wait(lg=VFALL), 'wait'))
        if do_kread and 'L' not in X:
            for ks in range(8):
                g = (17 + ks // 2) if full else min(2 * ks + 2, 15)
                fx.setdefault(g, []).append((COST['ds'], k_read(b + 2, ks), 'ds'))
            if full:
                fx.setdefault(n - 1, []).append((0, lambda: k.wait(lg=KFALL), 'wait'))
        if do_dma:
            isK = (b % 2 == 0)
            I = (b + 2) // 2 if isK else (b + 1) // 2
            if isK:
                slot = LDS_K + ((I + 2) % 4) * 16384; so = sKoff
            else:
                slot = LDS_V + ((I + 1) % 4) * 16384; so = sVoff
            gs = [22, 24, 26, 28] if full else [3, 5, 7, 9]
            fx.setdefault(gs[0] - 1, []).append((1, lambda: e(f's_add_u32 m0, s{sW4K}, {slot}'), 'end'))
            for p in range(4):
                va = DK + p if isK else DV
                sd = sK if isK else sV
                fx.setdefault(gs[p], []).append((COST['dma'], lambda p=p, va=va, sd=sd: e(
                    f'buffer_load_dwordx4 v{va}, s[{sd}:{sd + 3}], s{so} offen offset:{p * 1024} lds', 'kv'), 'dma'))
            fx.setdefault(gs[3] + 1, []).append((1, lambda: e(f's_add_u32 s{so}, s{so}, 16384'), 'end'))
            if NPF and not isK:
                sp = 80 + 4 * ((b // 2) % 4)
                fx.setdefault(30, []).append((COST['dma'], lambda: e(f'buffer_load_dword v240, v236, s[{sp}:{sp + 3}], s{sPF} offen', 'pf'), 'dma'))
                if b % 8 == 7:
                    fx.setdefault(30, []).append((1, lambda: e(f's_add_u32 s{sPF}, s{sPF}, 0x100000'), 'end'))
        st = []
        if do_sm:
            st = softmax_stream(b)
        schedule(k, mf, fx, st, last_gap=n - 2, caps=caps)
        if do_kread and not full:
            k.wait(lg=KFALL)
        if do_sm:
            for _, f in check_items(b): f()

    stamp(k, 4)
    k.wait(lg=KFALL)
    step(0, do_pv=False)
    step(1, pv_zero=True)
    e('s_branch attn_ent')
    e('.p2align 6')
    k.label('attn_loop')
    for pos in range(8):
        if pos == 2:
            k.label('attn_ent')
        step(8 + pos)
        if pos == 6:
            e(f's_sub_u32 s{sCnt}, s{sCnt}, 1')
            e(f's_cmp_eq_u32 s{sCnt}, 0')
            e('s_cbranch_scc1 attn_tail')
            if RETILE:
                e(f's_cmp_le_u32 s{sCnt}, 3')
                e('s_cbranch_scc1 attn_copy')
                k.label('attn_copy_ret')
    e('s_branch attn_loop')
    k.label('attn_tail')
    k.lgq = []
    if opts.get('t23', 0):
        e(f'v_lshrrev_b32 v238, 2, v{VLANE}')
        e('v_lshlrev_b32 v238, 10, v238')
        e(f'v_and_b32 v239, 3, v{VLANE}')
        e('v_lshl_add_u32 v238, v239, 7, v238')
        e(f's_lshr_b32 s{sT0}, s2, 3')
        e(f's_lshl_b32 s{sT0}, s{sT0}, 2')
        e(f's_add_u32 s{sT0}, s{sT0}, s{sW}')
        e(f's_lshl_b32 s{sT0}, s{sT0}, 15')
        e(f's_and_b32 s{sT1}, s2, 1')
        e(f's_lshl_b32 s{sT1}, s{sT1}, 9')
        e(f's_add_u32 s{sT0}, s{sT0}, s{sT1}')
        e(f'buffer_load_dword v237, v238, s[80:83], s{sT0} offen', 'pf')
        e(f's_add_u32 s{sT0}, s{sT0}, 16384')
        e(f'buffer_load_dword v239, v238, s[80:83], s{sT0} offen', 'pf')
    step(63, do_qk=False, do_kread=False, do_dma=False)
    step(64, do_qk=False, do_sm=False, do_kread=False, do_dma=False)

    stamp(k, 5)
    for qb in range(2):
        e(f'v_mov_b32 v{TMP}, v{L[qb]}')
        e(f'v_permlane32_swap_b32 v{L[qb]}, v{TMP}')
        e(f'v_add_f32 v{L[qb]}, v{L[qb]}, v{TMP}')
        e(f'v_rcp_f32 v{L[qb]}, v{L[qb]}')
    n = 0
    for qb in range(2):
        e(f's_add_u32 s{sT0}, s{sOb}, {qb * 262144}')
        e(f's_add_u32 s{sT1}, s{sOb}, {qb * 262144 + 4096}')
        for db in range(4):
            for u in range(2):
                acc = O + (db * 2 + qb) * 16 + 8 * u
                t = 8 + (n % 4) * 16; n += 1
                for i in range(8):
                    e(f'v_accvgpr_read_b32 v{t + i}, a{acc + i}')
                for i in range(8):
                    e(f'v_mul_f32 v{t + i}, v{t + i}, v{L[qb]}')
                for i in range(4):
                    e(f'v_cvt_pk_bf16_f32 v{t + 8 + i}, v{t + 2 * i}, v{t + 2 * i + 1}')
                kk = 2 * db + u
                so = sT0 if kk < 4 else sT1
                e(f'buffer_store_dwordx4 v[{t + 8}:{t + 11}], v{VL16}, s[{sWS}:{sWS + 3}], s{so} offen offset:{(kk % 4) * 1024}{opts.get("ost", " sc1")}')
    stamp(k, 6)
    stamp_flush(k, 7, sWS, 1)
    k.label('attn_end')
    e('s_endpgm')

    if RETILE:
        CP = 192
        k.label('attn_copy')
        e(f's_cmp_eq_u32 s{sCnt}, 1')
        e('s_cbranch_scc1 attn_copy_ret')
        e(f's_lshl_b32 s{sT0}, s2, 2')
        e(f's_add_u32 s{sT0}, s{sT0}, s{sW}')
        e(f's_cmp_eq_u32 s{sCnt}, 2')
        e('s_cbranch_scc1 attn_copy_st')
        e(f's_lshl_b32 s{sT1}, s{sT0}, 12')
        for i in range(4):
            e(f'buffer_load_dwordx4 a[{CP + 4 * i}:{CP + 4 * i + 3}], v{VL16}, s[80:83], s{sT1} offen offset:{i * 1024}')
        e(f's_lshl_b32 s{sT1}, s{sT0}, 11')
        for i in range(2):
            e(f'buffer_load_dwordx4 a[{CP + 16 + 4 * i}:{CP + 19 + 4 * i}], v{VL16}, s[92:95], s{sT1} offen offset:{i * 1024}')
        e('s_branch attn_copy_ret')
        k.label('attn_copy_st')
        e(f'v_lshrrev_b32 v238, 3, v{VLANE}')
        e(f'v_and_b32 v239, 7, v{VLANE}')
        e('v_lshlrev_b32 v239, 4, v239')
        e('v_lshl_add_u32 v237, v238, 19, v239')
        e('v_lshl_add_u32 v238, v238, 18, v239')
        e(f's_lshl_b32 s{sT1}, s{sT0}, 9')
        e(f's_add_u32 s{sT1}, s{sT1}, {WS_WOT}')
        for i in range(4):
            e(f'buffer_store_dwordx4 a[{CP + 4 * i}:{CP + 4 * i + 3}], v237, s[{sWS}:{sWS + 3}], s{sT1} offen offset:{i * 128} sc1')
        e(f's_lshl_b32 s{sT1}, s{sT0}, 8')
        e(f's_add_u32 s{sT1}, s{sT1}, {WS_W2T}')
        for i in range(2):
            e(f'buffer_store_dwordx4 a[{CP + 16 + 4 * i}:{CP + 19 + 4 * i}], v238, s[{sWS}:{sWS + 3}], s{sT1} offen offset:{i * 128} sc1')
        e('s_branch attn_copy_ret')

    for lab, ret, par in stubs:
        k.label(lab)
        e(f's_call_b64 s[{sLink}:{sLink + 1}], attn_slow{par}')
        e(f's_branch {ret}')
    for par in range(2):
        k.label(f'attn_slow{par}')
        e('s_nop 15'); e('s_nop 15')
        D0 = [TMP + 2, TMP + 3]
        for qb in range(2):
            sb = S[par] + 16 * qb; sn = S[1 - par] + 16 * qb
            e(f'v_max3_f32 v{TMP}, v{sb}, v{sb + 1}, v{sb + 2}')
            for i in range(3, 15, 2):
                e(f'v_max3_f32 v{TMP}, v{TMP}, v{sb + i}, v{sb + i + 1}')
            e(f'v_max_f32 v{TMP}, v{TMP}, v{sb + 15}')
            e(f'v_mov_b32 v{TMP + 1}, v{TMP}')
            e(f'v_permlane32_swap_b32 v{TMP}, v{TMP + 1}')
            e(f'v_max_f32 v{TMP}, v{TMP}, v{TMP + 1}')
            e(f'v_add_f32 v{TMP}, {f32(BIAS)}, v{TMP}')
            e(f'v_max_f32 v{TMP}, 0, v{TMP}')
            e(f'v_sub_f32 v{TMP + 1}, 0, v{TMP}')
            e(f'v_exp_f32 v{D0[qb]}, v{TMP + 1}')
            for i in range(16):
                e(f'v_sub_f32 v{NEGM + 16 * qb + i}, v{NEGM + 16 * qb + i}, v{TMP}')
                e(f'v_sub_f32 v{sb + i}, v{sb + i}, v{TMP}')
                e(f'v_sub_f32 v{sn + i}, v{sn + i}, v{TMP}')
            e(f'v_mul_f32 v{L[qb]}, v{L[qb]}, v{D0[qb]}')
            for db in range(4):
                acc = O + (db * 2 + qb) * 16
                for i in range(16):
                    t = ET + i % 8
                    e(f'v_accvgpr_read_b32 v{t}, a{acc + i}')
                    e(f'v_mul_f32 v{t}, v{t}, v{D0[qb]}')
                    e(f'v_accvgpr_write_b32 a{acc + i}, v{t}')
        for _, f in softmax_stream(par): f()
        e('s_nop 3')
        e(f's_setpc_b64 s[{sLink}:{sLink + 1}]')
    return k, 'grid=(256,1,1) block=(256,1,1) lds=135168'


def gen_gemm64(name, which, opts):
    k = Kern(name)
    e = k.e
    NKS = 256 if which == 'wo' else 112
    KW = NKS // 4
    D = 16 if which == 'wo' else 14
    NIT = KW // D
    A_W = A_WO if which == 'wo' else A_W2
    WS_XIN = WS_O if which == 'wo' else WS_HH
    sW_, sWS, sG = 8, 12, 16
    sWv, sXo, sWo, sT0, sT1, sLb, sCnt, sXo1 = 32, 33, 34, 35, 36, 37, 38, 39
    ACC = 8
    XF = 72
    WFr = 200
    VL16, VDW, VWR = 216, 217, 218
    EP = 220
    LDS_ST = 131072
    e(f's_cmp_ge_u32 s2, 256')
    e(f's_cbranch_scc1 {name}_end')
    stamp(k, 0)
    e(f's_load_dwordx2 s[4:5], s[0:1], {A_W}')
    e(f's_load_dwordx2 s[6:7], s[0:1], {A_WS}')
    e(f's_load_dwordx2 s[24:25], s[0:1], {A_X if which == "wo" else A_OUT}')
    if which == 'wo':
        e(f's_load_dwordx4 s[56:59], s[0:1], {A_W1}')
    e('s_bfe_u32 s28, s2, 0x20001')
    e('s_lshl_b32 s28, s28, 3')
    e('s_bfe_u32 s30, s2, 0x30003')
    e('s_add_u32 s28, s28, s30')
    e('s_and_b32 s29, s2, 1')
    e('s_lshl_b32 s29, s29, 2')
    e('s_lshr_b32 s30, s2, 6')
    e('s_add_u32 s29, s29, s30')
    e('v_lshrrev_b32 v1, 6, v0')
    e('v_and_b32 v2, 63, v0')
    e(f'v_readfirstlane_b32 s{sWv}, v1')
    e(f'v_lshlrev_b32 v{VL16}, 4, v2')
    RT = opts.get('retile', 1)
    e('v_lshrrev_b32 v3, 3, v2')
    e('v_and_b32 v4, 7, v2')
    e('v_lshlrev_b32 v5, 1, v3')
    e('v_and_b32 v5, 4, v5')
    e('v_xor_b32 v4, v4, v5')
    e('v_lshlrev_b32 v4, 4, v4')
    e(f'v_lshl_add_u32 v{VDW}, v3, {7 if RT else 10}, v4')
    e(f's_lshl_b32 s{sLb}, s{sWv}, 15')
    e(f's_mul_i32 s{sXo}, s28, {2 * NKS * 1024}')
    e(f's_mul_i32 s{sT0}, s{sWv}, {KW * 1024}')
    e(f's_add_u32 s{sXo}, s{sXo}, s{sT0}')
    e(f's_add_u32 s{sXo}, s{sXo}, {WS_XIN}')
    e(f's_add_u32 s{sXo1}, s{sXo}, {NKS * 1024}')
    if RT:
        e(f's_mul_i32 s{sWo}, s{sWv}, {KW * 2048}')
        e(f's_lshl_b32 s{sT0}, s29, {19 if which == "wo" else 18}')
        e(f's_add_u32 s{sWo}, s{sWo}, s{sT0}')
        e(f's_add_u32 s{sWo}, s{sWo}, {WS_WOT if which == "wo" else WS_W2T}')
        sW_ = sWS
    else:
        e(f's_mul_i32 s{sWo}, s{sWv}, {KW * 16 * 1024}')
        e(f's_lshl_b32 s{sT0}, s29, 7')
        e(f's_add_u32 s{sWo}, s{sWo}, s{sT0}')
        e(f's_add_u32 s{sT1}, s{sWo}, {8192 - 1024}')
    e(f's_lshr_b32 s40, s{sWv}, 1')
    e(f's_and_b32 s47, s{sWv}, 1')
    e('s_lshl_b32 s41, s29, 6')
    e('s_lshl_b32 s42, s40, 5')
    e('s_add_u32 s41, s41, s42')
    e('s_lshl_b32 s42, s28, 6')
    e('s_lshl_b32 s43, s47, 5')
    e('s_add_u32 s42, s42, s43')
    e('v_lshrrev_b32 v4, 5, v2')
    e('v_and_b32 v5, 31, v2')
    e('v_add_u32 v6, s42, v5')
    e('v_lshlrev_b32 v6, 10, v6')
    e('v_lshl_add_u32 v6, v4, 4, v6')
    e('s_lshl_b32 s43, s41, 1')
    e('v_add_u32 v6, s43, v6')
    e('s_lshl_b32 s43, s42, 10')
    e('s_lshl_b32 s44, s41, 6')
    e('s_add_u32 s43, s43, s44')
    e(f's_add_u32 s43, s43, {WS_X1}')
    e('v_lshlrev_b32 v7, 5, v4')
    e('s_lshl_b32 s44, s41, 2')
    e(f's_add_u32 s44, s44, {WS_GA if which == "wo" else WS_GB}')
    e('s_waitcnt lgkmcnt(0)')
    if not RT:
        srd(k, sW_, 4, 5, NKS * 16 * 1024)
    srd(k, sWS, 6, 7, WS_SIZE)
    srd(k, sG, 24, 25, 2048 * 1024)

    def loads(ks):
        sl = ks % D
        r0 = XF + sl * 8
        Z = opts.get('z', '')
        dd = _loads(ks, sl, r0)
        if 'W' in Z: dd['w0'] = dd['w1'] = lambda: None
        if 'X' in Z: dd['x0'] = dd['x1'] = lambda: None
        if 'F' in Z: dd['uw'] = lambda: None
        if 'G' in Z: dd['ux'] = lambda: None
        return dd

    def _loads(ks, sl, r0):
        XA = opts.get('xa', '') if which == 'wo' else ''
        WA = opts.get('wa', '') if which == 'wo' else ''
        return dict(
            m0=lambda: e(f's_add_u32 m0, s{sLb}, {sl * 2048}'),
            w0=lambda: e(f'buffer_load_dwordx4 v{VDW}, s[{sW_}:{sW_ + 3}], s{sWo} offen{WA} lds', ('g', ks)),
            w1=lambda: e(f'buffer_load_dwordx4 v{VDW}, s[{sW_}:{sW_ + 3}], s{sWo if RT else sT1} offen offset:1024{WA} lds', ('g', ks)),
            x0=lambda: e(f'buffer_load_dwordx4 v[{r0}:{r0 + 3}], v{VL16}, s[{sWS}:{sWS + 3}], s{sXo} offen offset:{(ks % 2) * 1024}{XA}', ('g', ks)),
            x1=lambda: e(f'buffer_load_dwordx4 v[{r0 + 4}:{r0 + 7}], v{VL16}, s[{sWS}:{sWS + 3}], s{sXo1} offen offset:{(ks % 2) * 1024}{XA}', ('g', ks)),
            uw=lambda: e(f's_add_u32 s{sWo}, s{sWo}, 2048') if RT else (e(f's_add_u32 s{sWo}, s{sWo}, 16384'), e(f's_add_u32 s{sT1}, s{sT1}, 16384')),
            ux=lambda: (e(f's_add_u32 s{sXo}, s{sXo}, 2048'), e(f's_add_u32 s{sXo1}, s{sXo1}, 2048')) if ks % 2 == 1 else None)

    for u in range(2):
        e(f'buffer_load_dwordx4 v[{EP + 8 * u}:{EP + 8 * u + 3}], v7, s[{sWS}:{sWS + 3}], s44 offen offset:{64 * u}', 'ep')
        e(f'buffer_load_dwordx4 v[{EP + 8 * u + 4}:{EP + 8 * u + 7}], v7, s[{sWS}:{sWS + 3}], s44 offen offset:{64 * u + 16}', 'ep')
        if which == 'wo':
            e(f'buffer_load_dwordx4 v[{EP + 16 + 4 * u}:{EP + 19 + 4 * u}], v6, s[{sG}:{sG + 3}], 0 offen offset:{32 * u}', 'ep')
        else:
            e(f'buffer_load_dwordx4 v[{EP + 16 + 4 * u}:{EP + 19 + 4 * u}], v{VL16}, s[{sWS}:{sWS + 3}], s43 offen offset:{1024 * u}', 'ep')
    for ks in range(D - 1):
        L = loads(ks)
        for nm in ('m0', 'x0', 'w0', 'w1', 'x1', 'uw', 'ux'):
            L[nm]()
        if ks == 1:
            e('v_bfe_u32 v3, v2, 2, 2')
            e('v_lshl_add_u32 v1, v4, 3, v3')
            e('v_lshlrev_b32 v1, 7, v1')
            e(f'v_bfe_u32 v{VWR}, v2, 4, 1')
            e(f'v_lshl_add_u32 v1, v{VWR}, 5, v1')
            e(f'v_and_b32 v{VWR}, 1, v2')
            e(f'v_lshl_add_u32 v1, v{VWR}, 4, v1')
            e(f'v_bfe_u32 v{VWR}, v2, 1, 1')
            e(f'v_lshl_add_u32 v1, v{VWR}, 3, v1')
            e(f'v_add_u32 v1, s{sLb}, v1')
            e('v_lshrrev_b32 v3, 1, v3')
            e(f'v_lshl_add_u32 v{VWR}, v3, 6, v1')
            e('v_xor_b32 v3, 1, v3')
            e(f'v_lshl_add_u32 v{VWR + 1}, v3, 6, v1')
            for i in range(64):
                e(f'v_mov_b32 v{ACC + i}, 0')
            e(f's_mov_b32 s{sCnt}, {NIT - 1}')

    def wreads(ks):
        sl = ks % D
        for nb in range(2):
            for t in range(2):
                r = WFr + (ks % 2) * 8 + nb * 4 + t * 2
                e(f'ds_read_b64_tr_b16 v[{r}:{r + 1}], v{VWR + nb} offset:{sl * 2048 + t * 512}', ('wf', ks))

    def kstep(ks, refill, last=False, extra=None):
        sl = ks % D
        L = loads(ks + D - 1) if refill else None
        for i in range(4):
            nb, mb = i // 2, i % 2
            acc = ACC + (nb * 2 + mb) * 16
            e(f'v_mfma_f32_32x32x16_bf16 {vr(acc, 16)}, {vr(WFr + (ks % 2) * 8 + nb * 4, 4)}, {vr(XF + (sl * 2 + mb) * 4, 4)}, {vr(acc, 16)}')
            if i == 0:
                if not last:
                    k.wait(vm=[('g', ks + 1)])
                    wreads(ks + 1)
                if L: L['m0']()
            elif i == 1 and L:
                L['x0'](); L['w0']()
            elif i == 2 and L:
                L['w1'](); L['x1'](); L['uw'](); L['ux']()
            elif i == 2 and extra:
                extra()
            elif i == 3 and not last:
                k.wait(lg=[('wf', ks + 1)])

    def touch_next():
        e('s_lshr_b32 s48, s2, 3')
        e('s_lshl_b32 s48, s48, 2')
        e(f's_add_u32 s48, s48, s{sWv}')
        e(f's_mul_i32 s48, s48, {4 * 3584}')
        e('s_bfe_u32 s49, s2, 0x20001')
        e('s_lshl_b32 s49, s49, 8')
        e('s_add_u32 s48, s48, s49')
        e('v_lshrrev_b32 v244, 4, v2')
        e('v_mul_u32_u24 v244, 3584, v244')
        e('v_bfe_u32 v245, v2, 2, 2')
        e('v_lshl_add_u32 v244, v245, 10, v244')
        e('v_and_b32 v245, 3, v2')
        e('v_lshl_add_u32 v244, v245, 6, v244')
        for sp in (56, 58):
            srd(k, 52, sp, sp + 1, 512 * 3584)
            e('buffer_load_dword v245, v244, s[52:55], s48 offen', 'touch')

    stamp(k, 1)
    k.wait(vm=[('g', 0)])
    wreads(0)
    k.wait(lg=[('wf', 0)])
    stamp(k, 2)
    if NIT > 1:
        k.label(f'{name}_loop')
        for ks in range(D):
            kstep(ks, True)
        if NIT > 2:
            e(f's_sub_u32 s{sCnt}, s{sCnt}, 1')
            e(f's_cmp_lg_u32 s{sCnt}, 0')
            e(f's_cbranch_scc1 {name}_loop')
    tch = touch_next if (which == 'wo' and opts.get('t34', 1)) else None
    for ks in range(D, 2 * D):
        kstep(ks, ks == D, last=(ks == 2 * D - 1), extra=tch if ks == D + 1 else None)
    stamp(k, 3)
    e(f'v_add_u32 v3, s{sLb}, v{VL16}')
    for qd in range(16):
        e(f'ds_write_b128 v3, v[{ACC + 4 * qd}:{ACC + 4 * qd + 3}] offset:{qd * 1024}')
    e('s_waitcnt lgkmcnt(0)')
    e('s_barrier')
    stamp(k, 4)
    e(f's_lshl_b32 s{sT0}, s{sWv}, 12')
    e(f'v_add_u32 v3, s{sT0}, v{VL16}')
    e(f'v_add_u32 v1, 0x10000, v3')
    RD = 72
    for w in range(4):
        a = 3 if w < 2 else 1
        for h in range(4):
            r = RD + (w * 4 + h) * 4
            e(f'ds_read_b128 v[{r}:{r + 3}], v{a} offset:{(w % 2) * 32768 + h * 1024}', ('r', w))
    for w in range(1, 4):
        k.wait(lg=[('r', w), ('r', 0)])
        for i in range(16):
            e(f'v_add_f32 v{RD + i}, v{RD + i}, v{RD + w * 16 + i}')
    k.wait(vm=['ep'])
    for i in range(16):
        rbf(k, RD + i, RD + i)
    for i in range(16):
        e(f'v_mul_f32 v{RD + i}, v{RD + i}, v{EP + i}')
    for i in range(16):
        rbf(k, RD + i, RD + i)
    for i in range(16):
        src = EP + 16 + i // 2
        if i % 2 == 0:
            e(f'v_lshlrev_b32 v{RD + 16 + i}, 16, v{src}')
        else:
            e(f'v_and_b32 v{RD + 16 + i}, 0xffff0000, v{src}')
    for i in range(16):
        e(f'v_add_f32 v{RD + i}, v{RD + i}, v{RD + 16 + i}')
    for i in range(8):
        e(f'v_cvt_pk_bf16_f32 v{RD + 32 + i}, v{RD + 2 * i}, v{RD + 2 * i + 1}')
    for u in range(2):
        if which == 'w2':
            e(f'buffer_store_dwordx4 v[{RD + 32 + 4 * u}:{RD + 35 + 4 * u}], v6, s[{sG}:{sG + 3}], 0 offen offset:{32 * u}')
        else:
            e(f'buffer_store_dwordx4 v[{RD + 32 + 4 * u}:{RD + 35 + 4 * u}], v{VL16}, s[{sWS}:{sWS + 3}], s43 offen offset:{1024 * u}')
    if which == 'wo':
        for i in range(16):
            src = RD + 32 + i // 2
            if i % 2 == 0:
                e(f'v_lshlrev_b32 v{RD + i}, 16, v{src}')
            else:
                e(f'v_and_b32 v{RD + i}, 0xffff0000, v{src}')
        A, B = RD + 16, RD + 17
        e(f'v_add_f32 v{A}, v{RD}, v{RD + 1}')
        e(f'v_mul_f32 v{B}, v{RD}, v{RD}')
        e(f'v_fmac_f32 v{B}, v{RD + 1}, v{RD + 1}')
        for i in range(2, 16):
            e(f'v_add_f32 v{A}, v{A}, v{RD + i}')
            e(f'v_fmac_f32 v{B}, v{RD + i}, v{RD + i}')
        e(f'v_mov_b32 v{A + 2}, v{A}')
        e(f'v_mov_b32 v{A + 3}, v{B}')
        e(f'v_permlane32_swap_b32 v{A}, v{A + 2}')
        e(f'v_permlane32_swap_b32 v{B}, v{A + 3}')
        e(f'v_add_f32 v{A}, v{A}, v{A + 2}')
        e(f'v_add_f32 v{B}, v{B}, v{A + 3}')
        e('s_lshl_b32 s45, s42, 7')
        e('s_lshr_b32 s46, s41, 2')
        e('s_add_u32 s45, s45, s46')
        e(f's_add_u32 s45, s45, {WS_ST}')
        e('v_lshlrev_b32 v3, 7, v5')
        e(f'buffer_store_dwordx2 v[{A}:{A + 1}], v3, s[{sWS}:{sWS + 3}], s45 offen')
    stamp_flush(k, 5, sWS, 2 if which == 'wo' else 4)
    k.label(f'{name}_end')
    e('s_endpgm')
    return k, 'grid=(256,1,1) block=(256,1,1) lds=131072'


def gen_ffn1(opts):
    k = Kern('ffn1_kernel')
    e = k.e
    name = 'ffn1'
    s1, s3_, sWS = 8, 12, 16
    sW, sT0, sT1, sXb, sWo, sHb, sW4K = 32, 33, 34, 35, 36, 37, 38
    ACC = 0
    XD = 12
    XR = 128
    H = 176
    SS = 184
    FT = 216
    WRA = 224
    VL16, VDW, VMD, VLANE, RS, NM = 232, 233, 234, 235, 236, 237
    T = 238
    WF = 0
    LDS_MOD = 131072
    e('s_bfe_u32 s29, s2, 0x20001')
    e('s_lshr_b32 s3, s2, 6')
    e('s_lshl_b32 s3, s3, 2')
    e('s_add_u32 s29, s29, s3')
    e('s_cmp_ge_u32 s29, 14')
    e(f's_cbranch_scc1 {name}_end')
    stamp(k, 0)
    e(f's_load_dwordx4 s[4:7], s[0:1], {A_W1}')
    e(f's_load_dwordx2 s[24:25], s[0:1], {A_WS}')
    e(f's_load_dwordx2 s[44:45], s[0:1], {A_W2}')
    e('s_and_b32 s28, s2, 1')
    e('s_lshl_b32 s28, s28, 3')
    e('s_bfe_u32 s3, s2, 0x30003')
    e('s_add_u32 s28, s28, s3')
    e(f'v_lshrrev_b32 v{T}, 6, v0')
    e(f'v_and_b32 v{VLANE}, 63, v0')
    e(f'v_mov_b32 v{T + 15}, v0')
    e(f'v_readfirstlane_b32 s{sW}, v{T}')
    e(f'v_lshlrev_b32 v{VL16}, 4, v{VLANE}')
    e(f'v_lshrrev_b32 v{T + 1}, 4, v{VLANE}')
    e(f'v_and_b32 v{T + 2}, 15, v{VLANE}')
    e(f'v_lshlrev_b32 v{T + 3}, 2, v{T + 1}')
    e(f'v_xor_b32 v{T + 3}, v{T + 3}, v{T + 2}')
    e(f'v_lshlrev_b32 v{T + 3}, 4, v{T + 3}')
    e(f'v_mul_u32_u24 v{T + 4}, 3584, v{T + 1}')
    e(f'v_add_u32 v{VDW}, v{T + 4}, v{T + 3}')
    e(f's_lshl_b32 s{sW4K}, s{sW}, 12')
    e('s_lshl_b32 s3, s28, 2')
    e(f's_add_u32 s3, s3, s{sW}')
    e(f's_lshl_b32 s{sXb}, s3, 15')
    e(f's_add_u32 s{sXb}, s{sXb}, {WS_X1}')
    e(f's_mul_i32 s{sHb}, s3, {112 * 1024}')
    e(f's_lshl_b32 s{sT0}, s29, 13')
    e(f's_add_u32 s{sHb}, s{sHb}, s{sT0}')
    e(f's_add_u32 s{sHb}, s{sHb}, {WS_HH}')
    e(f's_mul_i32 s{sWo}, s{sW}, {16 * 3584}')
    e(f's_lshl_b32 s{sT0}, s29, 8')
    e(f's_add_u32 s{sWo}, s{sWo}, s{sT0}')
    e(f'v_and_b32 v{T + 5}, 31, v{VLANE}')
    e(f'v_lshrrev_b32 v{T + 4}, 5, v{VLANE}')
    e(f'v_lshlrev_b32 v{T + 6}, 7, v{T + 5}')
    e(f'v_lshl_add_u32 v{T + 6}, v{T + 4}, 6, v{T + 6}')
    e(f's_lshl_b32 s39, s3, 12')
    e(f's_add_u32 s39, s39, {WS_ST}')
    e('s_waitcnt lgkmcnt(0)')
    srd(k, s1, 4, 5, 512 * 3584)
    srd(k, s3_, 6, 7, 512 * 3584)
    srd(k, sWS, 24, 25, WS_SIZE)

    def w_dma(c):
        out = []
        for mat, sd in enumerate((s1, s3_)):
            for p in range(4):
                g = []
                if p == 0:
                    g.append((1, lambda mat=mat: e(f's_add_u32 m0, s{sW4K}, {(c % 4) * 32768 + mat * 16384}')))
                g.append((1, lambda p=p: e(f's_add_u32 s{sT0}, s{sWo}, {c * 64 * 3584 + p * (4 * 3584 - 1024)}')))
                g.append((COST['dma'], lambda p=p, sd=sd: e(f'buffer_load_dwordx4 v{VDW}, s[{sd}:{sd + 3}], s{sT0} offen offset:{p * 1024} lds', ('wq', c))))
                out.append(g)
        return out

    def xreg(ks):
        return XR + (ks % XD) * 4

    def x_load(ks):
        r = xreg(ks)
        g = []
        if ks % 4 == 0:
            g.append((1, lambda: e(f's_add_u32 s{sT1}, s{sXb}, {(ks // 4) * 4096}')))
        g.append((COST['vload'], lambda: e(f'buffer_load_dwordx4 v[{r}:{r + 3}], v{VL16}, s[{sWS}:{sWS + 3}], s{sT1} offen offset:{(ks % 4) * 1024}', ('x', ks))))
        return g

    NPRE = opts.get('npre4', 1)
    for g in w_dma(0):
        for _, f in g: f()
    ST = SS
    for j in range(4):
        e(f'buffer_load_dwordx4 v[{ST + 4 * j}:{ST + 3 + 4 * j}], v{T + 6}, s[{sWS}:{sWS + 3}], s39 offen offset:{16 * j}', 'st')
    e(f's_lshl_b32 s{sT0}, s{sW}, 10')
    e(f's_add_u32 m0, s{sT0}, {LDS_MOD}')
    e(f's_add_u32 s{sT0}, s{sT0}, {WS_MOD2}')
    e(f'buffer_load_dwordx4 v{VL16}, s[{sWS}:{sWS + 3}], s{sT0} offen lds', ('wq', 0))
    for ks in range(4):
        for _, f in x_load(ks): f()
    for c in range(1, NPRE):
        for g in w_dma(c):
            for _, f in g: f()
        for ks in range(4 * c, 4 * c + 4):
            for _, f in x_load(ks): f()
    e(f'v_lshrrev_b32 v{T + 7}, 2, v{T + 2}')
    e(f'v_and_b32 v{T + 8}, 1, v{T + 1}')
    e(f'v_lshlrev_b32 v{T + 8}, 5, v{T + 8}')
    e(f'v_and_b32 v{T + 9}, 1, v{VLANE}')
    e(f'v_lshl_add_u32 v{T + 8}, v{T + 9}, 4, v{T + 8}')
    e(f'v_bfe_u32 v{T + 9}, v{VLANE}, 1, 1')
    e(f'v_lshl_add_u32 v{T + 8}, v{T + 9}, 3, v{T + 8}')
    e(f'v_lshl_add_u32 v{T + 8}, v{T + 7}, 8, v{T + 8}')
    e(f'v_lshl_add_u32 v{T + 8}, v{T + 4}, 11, v{T + 8}')
    for db in range(4):
        e(f'v_xor_b32 v{T + 9}, {db}, v{T + 7}')
        e(f'v_lshl_add_u32 v{WRA + db}, v{T + 9}, 6, v{T + 8}')
        e(f'v_add_u32 v{WRA + 4 + db}, 0x10000, v{WRA + db}')
    e(f'v_lshlrev_b32 v{VMD}, 6, v{T + 4}')
    e(f'v_add_u32 v{VMD}, {LDS_MOD}, v{VMD}')
    k.wait(vm=['st'])
    e(f's_mov_b32 s3, {f32(1.0 / 512)}')
    r = ST
    for j in range(1, 8):
        e(f'v_add_f32 v{r}, v{r}, v{r + 2 * j}')
        e(f'v_add_f32 v{r + 1}, v{r + 1}, v{r + 2 * j + 1}')
    e(f'v_mov_b32 v{r + 2}, v{r}')
    e(f'v_mov_b32 v{r + 3}, v{r + 1}')
    e(f'v_permlane32_swap_b32 v{r}, v{r + 2}')
    e(f'v_permlane32_swap_b32 v{r + 1}, v{r + 3}')
    e(f'v_add_f32 v{r}, v{r}, v{r + 2}')
    e(f'v_add_f32 v{r + 1}, v{r + 1}, v{r + 3}')
    e(f'v_mul_f32 v{r}, s3, v{r}')
    e(f'v_mul_f32 v{r + 1}, s3, v{r + 1}')
    e(f'v_fma_f32 v{r + 1}, -v{r}, v{r}, v{r + 1}')
    e(f'v_max_f32 v{r + 1}, 0, v{r + 1}')
    rbf(k, r, r)
    rbf(k, r + 1, r + 1)
    e(f'v_add_f32 v{r + 1}, {f32(1e-5)}, v{r + 1}')
    rbf(k, r + 1, r + 1)
    e(f'v_sqrt_f32 v{r + 1}, v{r + 1}')
    rbf(k, r + 1, r + 1)
    e(f'v_rcp_f32 v{RS}, v{r + 1}')
    e(f'v_mul_f32 v{NM}, v{r}, v{RS}')
    e(f'v_sub_f32 v{NM}, 0, v{NM}')

    def w_reads(ks):
        out = []
        c = ks // 4
        for nb in range(8):
            mat, db = nb // 4, nb % 4
            off = (c % 4) * 32768 + mat * 16384 + (ks % 4) * 4096
            base = WRA + (4 if off >= 65536 else 0) + db
            for t in range(2):
                r = WF + (ks % 2) * 32 + nb * 4 + t * 2
                out.append((COST['ds'], lambda r=r, base=base, t=t, off=off: e(f'ds_read_b64_tr_b16 a[{r}:{r + 1}], v{base} offset:{off % 65536 + t * 1024}', ('w', ks))))
        return out

    def ss_reads(ks):
        out = []
        for j in range(4):
            r = SS + (ks % 2) * 16 + 4 * j
            out.append((COST['ds'], lambda r=r, j=j: e(f'ds_read_b128 v[{r}:{r + 3}], v{VMD} offset:{ks * 128 + j * 16}', ('ss', ks))))
        return out

    def xform(ks):
        out = []
        sb = SS + (ks % 2) * 16
        x = xreg(ks)
        for p in range(4):
            t = FT + p * 2
            out.append((1, lambda p=p, t=t: e(f'v_lshlrev_b32 v{t}, 16, v{x + p}')))
            out.append((1, lambda p=p, t=t: e(f'v_and_b32 v{t + 1}, 0xffff0000, v{x + p}')))
            out.append((1, lambda t=t: e(f'v_fma_f32 v{t}, v{t}, v{RS}, v{NM}')))
            out.append((1, lambda t=t: e(f'v_fma_f32 v{t + 1}, v{t + 1}, v{RS}, v{NM}')))
            out.append((1, lambda p=p, t=t: e(f'v_fma_f32 v{t}, v{t}, v{sb + 2 * p}, v{sb + 8 + 2 * p}')))
            out.append((1, lambda p=p, t=t: e(f'v_fma_f32 v{t + 1}, v{t + 1}, v{sb + 2 * p + 1}, v{sb + 8 + 2 * p + 1}')))
            h = H + (ks % 2) * 4 + p
            out.append((1, lambda t=t, h=h: e(f'v_cvt_pk_bf16_f32 v{h}, v{t}, v{t + 1}')))
        return out

    todo = []
    for c in range(NPRE, 8):
        first = 0 if c < 4 else 4 * (c - 3)
        todo += [(first, g) for g in w_dma(c)]
        for ks in range(4 * c, 4 * c + 4):
            todo.append((ks - XD, x_load(ks)))
    RATE = opts.get('rate4', 5)
    if opts.get('t45', 1):
        e(f'v_lshlrev_b32 v{T + 10}, 7, v{VLANE}')
        e('s_lshr_b32 s40, s2, 3')
        e(f's_mul_i32 s40, s40, {7 * 1024}')
        e(f's_lshl_b32 s41, s{sW}, 18')
        e('s_add_u32 s40, s40, s41')
        e('s_and_b32 s41, s2, 1')
        e('s_lshl_b32 s41, s41, 20')
        e('s_add_u32 s40, s40, s41')
        e(f's_add_u32 s40, s40, {WS_W2T}')
        todo.append((0, [(COST['dma'], lambda: e(f'buffer_load_dword v{T + 12}, v{T + 10}, s[{sWS}:{sWS + 3}], s40 offen', 'touch'))]))

    stamp(k, 1)
    k.wait(vm=[('wq', 0)])
    e('s_barrier')
    stamp(k, 2)
    for _, f in ss_reads(0) + w_reads(0) + ss_reads(1): f()
    k.wait(vm=[('x', 0)], lg=[('ss', 0)])
    for _, f in xform(0): f()
    k.wait(lg=[('w', 0)])
    for ks in range(32):
        mf = []
        for nb in range(8):
            def m(nb=nb):
                acc = ACC + nb * 16
                c = '0' if ks == 0 else vr(acc, 16)
                e(f'v_mfma_f32_32x32x16_bf16 {vr(acc, 16)}, {ar(WF + (ks % 2) * 32 + nb * 4, 4)}, {vr(H + (ks % 2) * 4, 4)}, {c}')
            mf.append(m)
        fx = {}; st = []; caps = {}
        if ks + 1 < 32:
            newc = (ks + 1) % 4 == 0
            vmw = [('x', ks + 1)] + ([('wq', (ks + 1) // 4)] if newc else [])
            fx.setdefault(0, []).append((0, lambda: k.wait(vm=vmw, lg=[('ss', ks + 1)]), 'wait'))
            if newc:
                fx.setdefault(0, []).append((6, lambda: e('s_barrier'), 'bar'))
            g0 = 1 if newc else 0
            rd = []
            if ks + 2 < 32 and 'S' not in opts.get('y', ''):
                rd += ss_reads(ks + 2)
            if 'W' not in opts.get('y', ''):
                rd += w_reads(ks + 1)
            per = opts.get('dsper', 4)
            for i, it in enumerate(rd):
                fx.setdefault(g0 + i // per, []).append((it[0], it[1], 'ds'))
            st = xform(ks + 1) if 'T' not in opts.get('y', '') else []
            fx.setdefault(7, []).append((0, lambda: k.wait(lg=[('w', ks + 1)]), 'wait'))
        groups = []
        while todo and len(groups) < RATE and todo[0][0] <= ks:
            groups.append(todo.pop(0)[1])
        gl = sorted([6, 7, 5, 4, 3, 2][:len(groups)])
        for g, grp in zip(gl, groups):
            for it in grp[:-1]:
                fx.setdefault(g - 1, []).append((it[0], it[1], 'end'))
            fx.setdefault(g, []).append((grp[-1][0], grp[-1][1], 'dma'))
        schedule(k, mf, fx, st, caps=caps, last_gap=6, cap=opts.get('cap4', 8))
    assert not todo
    stamp(k, 3)
    e(f's_mov_b32 s3, {f32(-LOG2E)}')
    e(f's_add_u32 s{sT0}, s{sHb}, 4096')
    n = 0
    for j in range(4):
        for u in range(2):
            g = ACC + j * 16 + 8 * u
            up = ACC + (4 + j) * 16 + 8 * u
            t = XR + (n % 4) * 12; n += 1
            for i in range(8):
                e(f'v_mul_f32 v{t + i}, s3, v{g + i}')
            for i in range(8):
                e(f'v_exp_f32 v{t + i}, v{t + i}')
            for i in range(8):
                e(f'v_add_f32 v{t + i}, 1.0, v{t + i}')
            for i in range(8):
                e(f'v_rcp_f32 v{t + i}, v{t + i}')
            for i in range(8):
                e(f'v_mul_f32 v{g + i}, v{g + i}, v{t + i}')
            for i in range(8):
                e(f'v_mul_f32 v{g + i}, v{g + i}, v{up + i}')
            for i in range(4):
                e(f'v_cvt_pk_bf16_f32 v{t + 8 + i}, v{g + 2 * i}, v{g + 2 * i + 1}')
            kk = 2 * j + u
            so = sHb if kk < 4 else sT0
            e(f'buffer_store_dwordx4 v[{t + 8}:{t + 11}], v{VL16}, s[{sWS}:{sWS + 3}], s{so} offen offset:{(kk % 4) * 1024}{opts.get("hst", " sc1")}')
    stamp(k, 4)
    if STAMP:
        e(f'v_mov_b32 v0, v{T + 15}')
    stamp_flush(k, 5, sWS, 3)
    k.label(f'{name}_end')
    e('s_endpgm')
    return k, 'grid=(256,1,1) block=(256,1,1) lds=135168'


def build(opts=None):
    global STAMP
    opts = opts or {}
    STAMP = opts.get('stamp', False)
    for kk in COST:
        if 'c_' + kk in opts: COST[kk] = opts['c_' + kk]
    ks = [gen_prep(opts), gen_attn(opts), gen_gemm64('oproj_kernel', 'wo', opts), gen_ffn1(opts), gen_gemm64('ffn2_kernel', 'w2', opts)]
    if 'nop' in opts:
        nk = Kern('nop_kernel'); nk.e('s_endpgm')
        for pos in sorted(opts['nop'], reverse=True):
            ks.insert(pos, (nk, 'grid=(1,1,1) block=(64,1,1) lds=0'))
    hdr = open('adaLN_cond__mha_block_cached__glu_gated_swiglu__prompt.s.ref').read().split('\n')
    out = []
    for l in hdr:
        if l.startswith('; Override') or l.startswith('; grid=') or '@launch' in l or not l.startswith(';'):
            if not l.startswith(';'):
                break
            continue
        out.append(l)
    for k, launch in ks:
        for _ in range(1 + opts.get('dup_' + k.name[:4], 0)):
            out.append(f'; @launch kernel={k.name} {launch}')
    out.append('.amdgcn_target "amdgcn-amd-amdhsa--gfx950"')
    out.append('.text')
    uniq = []
    for x in ks:
        if all(x[0] is not y[0] for y in uniq): uniq.append(x)
    ks = sorted(uniq, key=lambda x: x[0].name == 'nop_kernel')
    for k, _ in ks:
        n = k.fix_hazards(verbose=opts.get('verbose', False))
        print(f'{k.name}: {len(k.ins)} instr, {n} hazard nop states, regs {k.max_regs()}', file=sys.stderr)
        out.append(f'.globl {k.name}')
        out.append('.p2align 8')
        out.append(f'.type {k.name},@function')
        out.append(f'{k.name}:')
        out.append(k.text())
    errs = 0
    errs += ks[0][0].verify_path({})
    errs += ks[0][0].verify_path({'prep_ln': 1})
    errs += ks[1][0].verify_path({'attn_tail': [False, False, False, True], 'attn_copy': [True, True, True], 'attn_copy_st': [False, True], 'attn_copy_ret': [False, False, True]})
    errs += ks[2][0].verify_path({'oproj_kernel_loop': 2})
    errs += ks[3][0].verify_path({})
    errs += ks[4][0].verify_path({})
    assert errs == 0, errs
    out.append('.section .rodata,"a"')
    for k, _ in ks:
        out.append('.p2align 6')
        out.append(descriptor(k))
    return '\n'.join(out)


if __name__ == '__main__':
    dst = sys.argv[1] if len(sys.argv) > 1 else 'adaLN_cond__mha_block_cached__glu_gated_swiglu__prompt.s'
    opts = {}
    for a in sys.argv[2:]:
        kk, _, v = a.partition('=')
        opts[kk] = eval(v) if v else True
    open(dst, 'w').write(build(opts))
```

```python
import sys, struct, math
from asmlib import *

A_X, A_K, A_V, A_WQ, A_WO, A_BX, A_W1, A_W3, A_W2, A_C, A_WMOD, A_OUT, A_DBG, A_WS = [8 * i for i in range(14)]
WS_MOD1 = 0
WS_GA = 4096
WS_MOD2 = 8192
WS_GB = 8192 + 4096
WS_XHAT = 0x10000
WS_O = 0x400000
WS_X1 = 0x1400000
WS_ST = 0x1600000
WS_HH = 0x1800000
WS_WOT = 0x2000000
WS_W2T = 0x2400000
WS_SIZE = 0x2800000

LOG2E = 1.4426950408889634


def f32(x):
    return '0x%08x' % struct.unpack('<I', struct.pack('<f', x))[0]


def srd(k, d, lo, hi, nbytes):
    k.e(f's_mov_b32 s{d}, s{lo}')
    k.e(f's_and_b32 s{d + 1}, s{hi}, 0xffff')
    k.e(f's_mov_b32 s{d + 2}, {nbytes}')
    k.e(f's_mov_b32 s{d + 3}, 0x00020000')


WS_STAMP = 0x1F00000
STAMP = False


def stamp(k, idx):
    if not STAMP:
        return
    k.e('s_waitcnt lgkmcnt(0)')
    k.e(f's_memtime s[{64 + 2 * idx}:{65 + 2 * idx}]')
    if idx == 0:
        k.e('s_memrealtime s[96:97]')
    k.e('s_waitcnt lgkmcnt(0)')


def stamp_flush(k, n, sws, kidx):
    if not STAMP:
        return
    e = k.e
    e('s_waitcnt vmcnt(0) lgkmcnt(0)')
    stamp(k, n)
    e('s_memrealtime s[98:99]')
    e('s_waitcnt lgkmcnt(0)')
    lab = k.newlabel('nost')
    e('v_readfirstlane_b32 s100, v0')
    e('s_cmp_lg_u32 s100, 0')
    e(f's_cbranch_scc1 {lab}')
    e('s_lshl_b32 s100, s2, 7')
    e(f's_add_u32 s100, s100, {WS_STAMP + kidx * 65536}')
    e('v_mov_b32 v1, 0')
    for i in range(n + 1):
        e(f'v_mov_b32 v2, s{64 + 2 * i}')
        e(f'buffer_store_dword v2, v1, s[{sws}:{sws + 3}], s100 offen offset:{4 * i}')
    e('v_mov_b32 v2, s96')
    e(f'buffer_store_dword v2, v1, s[{sws}:{sws + 3}], s100 offen offset:120')
    e('v_mov_b32 v2, s98')
    e(f'buffer_store_dword v2, v1, s[{sws}:{sws + 3}], s100 offen offset:124')
    k.label(lab)


def code_touch(k, v, sp, sidx, vlane, start, end):
    e = k.e
    lab = k.newlabel('pc')
    e(f's_getpc_b64 s[{sp}:{sp + 1}]')
    k.label(lab)
    e(f's_add_u32 s{sp}, s{sp}, {start}-{lab}')
    e(f's_addc_u32 s{sp + 1}, s{sp + 1}, 0')
    e(f's_lshl_b32 s{sidx}, s{sidx}, 13')
    e(f'v_lshlrev_b32 v{v}, 7, v{vlane}')
    e(f'v_add_u32 v{v}, s{sidx}, v{v}')
    e(f'v_min_u32 v{v}, {end}-{start}-4, v{v}')
    e(f'v_mov_b32 v{v + 1}, s{sp + 1}')
    e(f'v_add_co_u32 v{v}, vcc, s{sp}, v{v}')
    e(f'v_addc_co_u32 v{v + 1}, vcc, 0, v{v + 1}, vcc')
    e(f'global_load_dword v{v + 2}, v[{v}:{v + 1}], off', 'code')


def rbf(k, d, s):
    k.e(f'v_cvt_pk_bf16_f32 v{d}, 0, v{s}')


def allreduce16(k, v, t):
    for mod in ('quad_perm:[1,0,3,2]', 'quad_perm:[2,3,0,1]', 'row_half_mirror', 'row_mirror'):
        k.e(f'v_add_f32_dpp v{t}, v{v}, v{v} {mod} row_mask:0xf bank_mask:0xf')
        v, t = t, v


def gen_prep(opts):
    k = Kern('prep_kernel')
    e = k.e
    NMOD, NLN = 96, 128
    e(f's_cmp_ge_u32 s2, {NMOD + NLN}')
    e('s_cbranch_scc1 prep_end')
    stamp(k, 0)
    e(f's_load_dwordx2 s[4:5], s[0:1], {A_WS}')
    e(f's_load_dwordx2 s[6:7], s[0:1], {A_X}')
    e(f's_load_dwordx4 s[20:23], s[0:1], {A_C}')
    e(f's_load_dwordx4 s[36:39], s[0:1], {A_K}')
    e(f's_load_dwordx2 s[40:41], s[0:1], {A_WQ}')

    def prefetch():
        if opts.get('cpf', 1):
            lab = k.newlabel('nocpf')
            e('v_lshrrev_b32 v72, 6, v0')
            e('v_and_b32 v73, 63, v0')
            e('v_readfirstlane_b32 s42, v72')
            e('s_lshr_b32 s43, s2, 3')
            e('s_lshl_b32 s43, s43, 2')
            e('s_add_u32 s43, s43, s42')
            e('s_cmp_ge_u32 s43, (code_end-attn_kernel+8191)/8192')
            e(f's_cbranch_scc1 {lab}')
            code_touch(k, 74, 44, 43, 73, 'attn_kernel', 'code_end')
            k.vmq.pop()
            k.label(lab)
        if not opts.get('pf1', 0):
            return
        e('v_lshrrev_b32 v72, 6, v0')
        e('v_and_b32 v73, 63, v0')
        e('v_readfirstlane_b32 s42, v72')
        e('v_lshrrev_b32 v74, 4, v73')
        e('v_and_b32 v75, 15, v73')
        e('v_lshlrev_b32 v74, 13, v74')
        e('v_lshl_add_u32 v74, v75, 6, v74')
        e('v_lshlrev_b32 v73, 6, v73')
        e('s_lshr_b32 s43, s2, 3')
        e('s_lshl_b32 s43, s43, 2')
        e('s_add_u32 s43, s43, s42')
        e('s_and_b32 s44, s2, 7')
        srd(k, 48, 40, 41, 512 * 8192)
        e('s_lshl_b32 s45, s43, 15')
        e('s_lshl_b32 s46, s44, 10')
        e('s_add_u32 s45, s45, s46')
        e('buffer_load_dword v76, v74, s[48:51], s45 offen', 'pf')
        e(f's_add_u32 s45, s45, {112 * 32768}')
        e('buffer_load_dword v77, v74, s[48:51], s45 offen', 'pf')
        e('s_and_b32 s45, s43, 63')
        e('s_lshr_b32 s46, s45, 4')
        e('s_lshl_b32 s47, s44, 2')
        e('s_add_u32 s46, s46, s47')
        e('s_lshl_b32 s46, s46, 19')
        e('s_and_b32 s45, s45, 15')
        e('s_lshl_b32 s45, s45, 12')
        e('s_add_u32 s45, s45, s46')
        srd(k, 48, 36, 37, 32 * 524288)
        e('buffer_load_dword v78, v73, s[48:51], s45 offen', 'pf')
        srd(k, 48, 38, 39, 32 * 524288)
        e('buffer_load_dword v79, v73, s[48:51], s45 offen', 'pf')
    e(f's_cmp_ge_u32 s2, {NMOD}')
    e('s_cbranch_scc1 prep_ln')
    e('v_and_b32 v1, 3, v0')
    e('v_lshrrev_b32 v2, 2, v0')
    e('s_mov_b32 s3, 49152')
    e('v_mul_lo_u32 v3, v2, s3')
    e('v_lshl_add_u32 v3, v1, 4, v3')
    e('s_lshl_b32 s3, s2, 6')
    e('v_add_u32 v3, s3, v3')
    e('v_lshlrev_b32 v4, 4, v2')
    e('s_waitcnt lgkmcnt(0)')
    srd(k, 8, 20, 21, 1024)
    srd(k, 12, 22, 23, 512 * 6144)
    srd(k, 16, 4, 5, WS_SIZE)
    e('buffer_load_dwordx4 v[8:11], v4, s[8:11], 0 offen', 'c')
    for i in range(8):
        e(f's_mov_b32 s{24 + i}, {i * 6144}')
        e(f'buffer_load_dwordx4 v[{16 + 4 * i}:{19 + 4 * i}], v3, s[12:15], s{24 + i} offen', ('w', i))
    prefetch()
    k.wait(vm=['c'])
    e(f's_mov_b32 s3, {f32(-LOG2E)}')
    for i in range(8):
        src = 8 + i // 2
        if i % 2 == 0:
            e(f'v_lshlrev_b32 v{48 + i}, 16, v{src}')
        else:
            e(f'v_and_b32 v{48 + i}, 0xffff0000, v{src}')
    for i in range(8):
        e(f'v_mul_f32 v{56 + i}, s3, v{48 + i}')
    for i in range(8):
        e(f'v_exp_f32 v{56 + i}, v{56 + i}')
    for i in range(8):
        e(f'v_add_f32 v{56 + i}, 1.0, v{56 + i}')
    for i in range(8):
        e(f'v_rcp_f32 v{56 + i}, v{56 + i}')
    for i in range(8):
        e(f'v_mul_f32 v{48 + i}, v{48 + i}, v{56 + i}')
    for i in range(8):
        rbf(k, 48 + i, 48 + i)
    for i in range(8):
        k.wait(vm=[('w', i)])
        for p in range(4):
            w = 16 + 4 * i + p
            e(f'v_lshlrev_b32 v56, 16, v{w}')
            e(f'v_and_b32 v57, 0xffff0000, v{w}')
            if i == 0:
                e(f'v_mul_f32 v{64 + 2 * p}, v48, v56')
                e(f'v_mul_f32 v{65 + 2 * p}, v48, v57')
            else:
                e(f'v_fmac_f32 v{64 + 2 * p}, v{48 + i}, v56')
                e(f'v_fmac_f32 v{65 + 2 * p}, v{48 + i}, v57')
    e('v_lshlrev_b32 v5, 5, v0')
    e('ds_write_b128 v5, v[64:67]')
    e('ds_write_b128 v5, v[68:71] offset:16')
    e('s_waitcnt lgkmcnt(0)')
    e('s_barrier')
    e('v_and_b32 v6, 31, v0')
    e('v_lshrrev_b32 v7, 5, v0')
    e('v_lshlrev_b32 v5, 10, v7')
    e('v_lshl_add_u32 v5, v6, 2, v5')
    for i in range(8):
        e(f'ds_read_b32 v{16 + i}, v5 offset:{i * 128}')
    e('s_waitcnt lgkmcnt(0)')
    for i in range(1, 8):
        e(f'v_add_f32 v16, v16, v{16 + i}')
    e('v_lshlrev_b32 v5, 2, v0')
    e('ds_write_b32 v5, v16 offset:8192')
    e('s_waitcnt lgkmcnt(0)')
    e('s_barrier')
    e('v_cmp_gt_u32 vcc, 32, v0')
    e('s_and_saveexec_b64 s[32:33], vcc')
    e('s_cbranch_execz prep_end')
    for i in range(8):
        e(f'ds_read_b32 v{16 + i}, v5 offset:{8192 + i * 128}')
    e('s_waitcnt lgkmcnt(0)')
    for i in range(1, 8):
        e(f'v_add_f32 v16, v16, v{16 + i}')
    rbf(k, 16, 16)
    e('v_add_f32 v17, 1.0, v16')
    rbf(k, 17, 17)
    e('s_lshr_b32 s24, s2, 4')
    e('s_and_b32 s25, s2, 15')
    e('s_lshl_b32 s25, s25, 5')
    e('v_add_u32 v6, s25, v0')
    e('s_cmp_ge_u32 s24, 3')
    e('s_cselect_b32 s26, 8192, 0')
    e('s_cselect_b32 s27, 3, 0')
    e('s_sub_u32 s24, s24, s27')
    e('v_lshrrev_b32 v7, 3, v6')
    e('v_lshlrev_b32 v7, 6, v7')
    e('v_and_b32 v8, 7, v6')
    e('v_lshl_add_u32 v7, v8, 2, v7')
    e('v_lshlrev_b32 v8, 2, v6')
    stamp_flush(k, 1, 16, 0)
    e('s_cmp_eq_u32 s24, 2')
    e('s_cbranch_scc1 prep_gate')
    e('s_cmp_eq_u32 s24, 1')
    e('s_cbranch_scc1 prep_scale')
    e('buffer_store_dword v16, v7, s[16:19], s26 offen offset:32')
    e('s_endpgm')
    k.label('prep_scale')
    e('buffer_store_dword v17, v7, s[16:19], s26 offen')
    e('s_endpgm')
    k.label('prep_gate')
    e('s_add_u32 s26, s26, 4096')
    e('buffer_store_dword v16, v8, s[16:19], s26 offen')
    e('s_endpgm')
    k.label('prep_ln')
    e(f's_sub_u32 s3, s2, {NMOD}')
    e('s_lshl_b32 s3, s3, 4')
    e('v_lshrrev_b32 v1, 4, v0')
    e('v_add_u32 v1, s3, v1')
    e('v_and_b32 v2, 15, v0')
    e('v_lshlrev_b32 v3, 10, v1')
    e('v_lshl_add_u32 v3, v2, 4, v3')
    e('s_waitcnt lgkmcnt(0)')
    srd(k, 8, 6, 7, 2048 * 1024)
    srd(k, 16, 4, 5, WS_SIZE)
    for j in range(4):
        e(f'buffer_load_dwordx4 v[{8 + 4 * j}:{11 + 4 * j}], v3, s[8:11], 0 offen offset:{256 * j}', ('x', j))
    prefetch()
    e('v_lshrrev_b32 v4, 5, v1')
    e('v_lshlrev_b32 v4, 15, v4')
    e('v_lshrrev_b32 v5, 1, v2')
    e('v_lshl_add_u32 v4, v5, 10, v4')
    e('v_and_b32 v5, 1, v2')
    e('v_lshl_add_u32 v4, v5, 9, v4')
    e('v_and_b32 v5, 31, v1')
    e('v_lshl_add_u32 v4, v5, 4, v4')
    X = 32
    for j in range(4):
        k.wait(vm=[('x', j)])
        for p in range(4):
            e(f'v_lshlrev_b32 v{X + 8 * j + 2 * p}, 16, v{8 + 4 * j + p}')
            e(f'v_and_b32 v{X + 8 * j + 2 * p + 1}, 0xffff0000, v{8 + 4 * j + p}')
    e(f'v_add_f32 v24, v{X}, v{X + 1}')
    e(f'v_add_f32 v25, v{X + 2}, v{X + 3}')
    for i in range(4, 32):
        e(f'v_add_f32 v{24 + i % 2}, v{24 + i % 2}, v{X + i}')
    e('v_add_f32 v24, v24, v25')
    allreduce16(k, 24, 25)
    e(f's_mov_b32 s3, {f32(1.0 / 512)}')
    e('v_mul_f32 v24, s3, v24')
    for i in range(32):
        e(f'v_sub_f32 v{64 + i % 4}, v{X + i}, v24')
        if i < 2:
            e(f'v_mul_f32 v{26 + i}, v{64 + i % 4}, v{64 + i % 4}')
        else:
            e(f'v_fmac_f32 v{26 + i % 2}, v{64 + i % 4}, v{64 + i % 4}')
    e('v_add_f32 v26, v26, v27')
    allreduce16(k, 26, 27)
    e('v_mul_f32 v26, s3, v26')
    rbf(k, 24, 24)
    rbf(k, 26, 26)
    e(f'v_add_f32 v26, {f32(1e-5)}, v26')
    rbf(k, 26, 26)
    e('v_sqrt_f32 v26, v26')
    rbf(k, 26, 26)
    e('v_rcp_f32 v26, v26')
    e(f's_mov_b32 s24, {WS_XHAT}')
    for j in range(4):
        for i in range(8):
            r = X + 8 * j + i
            e(f'v_sub_f32 v{r}, v{r}, v24')
        for i in range(8):
            r = X + 8 * j + i
            rbf(k, r, r)
        for i in range(8):
            r = X + 8 * j + i
            e(f'v_mul_f32 v{r}, v{r}, v26')
        for i in range(8):
            r = X + 8 * j + i
            rbf(k, r, r)
        for p in range(4):
            r = X + 8 * j + 2 * p
            e(f'v_cvt_pkrtz_f16_f32 v{8 + 4 * j + p}, v{r}, v{r + 1}')
        e(f'buffer_store_dwordx4 v[{8 + 4 * j}:{11 + 4 * j}], v4, s[16:19], s24 offen')
        if j < 3:
            e(f's_add_u32 s24, s24, 8192')
    stamp_flush(k, 1, 16, 0)
    k.label('prep_end')
    e('s_endpgm')
    return k, f'grid=({NMOD + NLN},1,1) block=(256,1,1) lds=9216'


COST = {'exp': 2, 'valu': 1, 'ds': 1, 'dma': 2.5, 'salu': 1, 'vload': 2.5}
GAPCAP = 6
ORDER = {'wait': 0, 'bar': 1, 'dma': 2, 'ds': 3, 'end': 9}


def schedule(k, mfmas, fixed, stream, last_gap=None, cap=GAPCAP, caps=None):
    n = len(mfmas)
    if last_gap is None:
        last_gap = n - 1
    spare = []
    for g in range(n):
        c = sum(x[0] for x in fixed.get(g, []))
        cp = caps.get(g, cap) if caps else cap
        spare.append(max(cp - c, 0) if g <= last_gap else 0)
    tot_spare = sum(spare)
    tot = sum(x[0] for x in stream)
    si = 0
    done = 0.0
    cum = 0
    lastg = max([g for g in range(n) if spare[g] > 0] or [n - 1])
    for g in range(n):
        mfmas[g]()
        fx = sorted(fixed.get(g, []), key=lambda x: ORDER[x[2]])
        cum += spare[g]
        target = tot * cum / max(tot_spare, 1)
        mine = []
        while si < len(stream) and ((spare[g] > 0 and done + stream[si][0] * 0.5 <= target) or g >= lastg):
            mine.append(stream[si]); done += stream[si][0]; si += 1
        for x in fx:
            if x[2] != 'end': x[1]()
        for x in mine: x[1]()
        for x in fx:
            if x[2] == 'end': x[1]()
    assert si == len(stream)


def gemm256(k, P):
    e = k.e
    P['chunk_barrier'](0)
    for _, f in P['ss_reads'](0) + P['w_reads'](0) + P['ss_reads'](1): f()
    k.wait(vm=[('x', 0)], lg=[('ss', 0)])
    for _, f in P['xform'](0): f()
    k.wait(lg=[('w', 0)])
    for ks in range(32):
        mf = []
        for db in range(4):
            for qb in range(2):
                def m(db=db, qb=qb):
                    acc = P['ACC'] + (db * 2 + qb) * 16
                    wf = P['WF'] + (ks % 2) * 16 + db * 4
                    h = P['H'] + (ks % 2) * 8 + qb * 4
                    c = '0' if ks == 0 else ar(acc, 16)
                    e(f'v_mfma_f32_32x32x16_bf16 {ar(acc, 16)}, {ar(wf, 4)}, {vr(h, 4)}, {c}')
                mf.append(m)
        fx = {}
        st = []
        caps = {}
        if ks + 1 < 32:
            newc = (ks + 1) % 4 == 0
            if newc:
                fx.setdefault(0, []).append((0, lambda: k.wait(vm=[('wq', (ks + 1) // 4), ('x', ks + 1)], lg=[('ss', ks + 1)]), 'wait'))
                fx.setdefault(0, []).append((6, lambda: e('s_barrier'), 'bar'))
                caps[1] = 4
            else:
                fx.setdefault(0, []).append((0, lambda: k.wait(vm=[('x', ks + 1)], lg=[('ss', ks + 1)]), 'wait'))
            g0 = 1 if newc else 0
            rd = (P['ss_reads'](ks + 2) if ks + 2 < 32 else []) + P['w_reads'](ks + 1)
            for i, it in enumerate(rd):
                fx.setdefault(g0 + i // 3, []).append((it[0], it[1], 'ds'))
            st = P['xform'](ks + 1)
            fx.setdefault(7, []).append((0, lambda: k.wait(lg=[('w', ks + 1)]), 'wait'))
        groups = P['refill'](ks)
        gl = [5, 6, 4, 7, 3, 2][:len(groups)]
        gl.sort()
        for g, grp in zip(gl, groups):
            for it in grp[:-1]:
                fx.setdefault(g - 1, []).append((it[0], it[1], 'end'))
            fx.setdefault(g, []).append((grp[-1][0], grp[-1][1], 'dma'))
        schedule(k, mf, fx, st, caps=caps, last_gap=6, cap=7)


class G256:
    pass


BIAS = 100.0
THRESH = 2.0 ** 80


def gen_attn(opts):
    global BIAS
    BIAS = opts.get('bias', BIAS)
    k = Kern('attn_kernel')
    e = k.e
    sK, sV, sWQ, sWS = 8, 12, 16, 20
    sW, sW4K, sKoff, sVoff, sCnt, sThr, sXb, sT0, sT1, sOb = 32, 33, 34, 35, 36, 37, 38, 39, 40, 41
    sLink = 44
    S = [8, 40]; NEGM = 72; P = [104, 120]; Q = 136; ET = 200
    LS = [208, 209]; L = [210, 211]; TMP = 212
    KR = 216; VR = 224; DK = 228; DV = 232; VL16 = 233; VMD = 234; VLANE = 235
    O = 0; KF = 128; VF = 160
    LDS_K, LDS_V, LDS_MOD = 0, 65536, 131072

    e('s_cmp_ge_u32 s2, 256')
    e('s_cbranch_scc1 attn_end')
    stamp(k, 0)
    e(f's_load_dwordx4 s[4:7], s[0:1], {A_K}')
    e(f's_load_dwordx2 s[24:25], s[0:1], {A_WQ}')
    e(f's_load_dwordx2 s[26:27], s[0:1], {A_WS}')
    e(f's_load_dwordx2 s[48:49], s[0:1], {A_WO}')
    e(f's_load_dwordx4 s[52:55], s[0:1], {A_W3}')
    e(f's_load_dwordx2 s[50:51], s[0:1], {A_W1}')
    e('s_and_b32 s28, s2, 7')
    e('s_lshl_b32 s28, s28, 2')
    e('s_lshr_b32 s29, s2, 3')
    e('s_and_b32 s30, s29, 3')
    e('s_add_u32 s28, s28, s30')
    e('s_lshr_b32 s29, s29, 2')
    e('v_lshrrev_b32 v1, 6, v0')
    e(f'v_and_b32 v{VLANE}, 63, v0')
    e(f'v_readfirstlane_b32 s{sW}, v1')
    e(f'v_lshlrev_b32 v{VL16}, 4, v{VLANE}')
    e(f's_lshl_b32 s{sW4K}, s{sW}, 12')
    e(f'v_lshrrev_b32 v2, 4, v{VLANE}')
    e(f'v_and_b32 v3, 15, v{VLANE}')
    e(f'v_lshrrev_b32 v4, 5, v{VLANE}')
    e(f'v_and_b32 v5, 31, v{VLANE}')
    e('v_lshlrev_b32 v6, 2, v2')
    e('v_xor_b32 v6, v6, v3')
    e('v_lshlrev_b32 v6, 4, v6')
    e(f'v_lshl_add_u32 v{DV}, v2, 8, v6')
    e(f'v_add_u32 v{DV}, s{sW4K}, v{DV}')
    e(f's_lshl_b32 s3, s{sW}, 17')
    e('v_lshl_add_u32 v7, v2, 13, v6')
    e('v_add_u32 v7, s3, v7')
    e('s_waitcnt lgkmcnt(0)')
    e('s_lshl_b32 s3, s28, 19')
    e('s_add_u32 s4, s4, s3'); e('s_addc_u32 s5, s5, 0')
    e('s_add_u32 s6, s6, s3'); e('s_addc_u32 s7, s7, 0')
    srd(k, sK, 4, 5, 524288)
    srd(k, sV, 6, 7, 524288)
    e('s_lshl_b32 s3, s28, 8')
    e('s_add_u32 s24, s24, s3'); e('s_addc_u32 s25, s25, 0')
    e(f's_mov_b32 s{sWQ}, s24'); e(f's_and_b32 s{sWQ + 1}, s25, 0xffff')
    e(f's_sub_u32 s{sWQ + 2}, {512 * 8192}, s3'); e(f's_mov_b32 s{sWQ + 3}, 0x00020000')
    srd(k, sWS, 26, 27, WS_SIZE)
    e('s_lshl_b32 s3, s29, 3')
    e(f's_lshl_b32 s{sT0}, s{sW}, 1')
    e(f's_add_u32 s3, s3, s{sT0}')
    e(f's_lshl_b32 s{sXb}, s3, 15')
    e(f's_add_u32 s{sXb}, s{sXb}, {WS_XHAT}')
    e(f's_lshl_b32 s{sOb}, s3, 18')
    e(f's_lshl_b32 s{sT0}, s28, 13')
    e(f's_add_u32 s{sOb}, s{sOb}, s{sT0}')
    e(f's_add_u32 s{sOb}, s{sOb}, {WS_O}')

    XR = 8; H = 136; SS = 152; FT = 184; WRA = 200; WF = 128
    chunk_slot = [LDS_K, LDS_K + 16384, LDS_V, LDS_K + 32768, LDS_K + 49152, LDS_V + 16384, LDS_V + 32768, LDS_V + 49152]

    def wq_dma(c):
        out = []
        for p in range(4):
            g = []
            if p == 0:
                g.append((1, lambda: e(f's_add_u32 m0, s{sW4K}, {chunk_slot[c]}')))
            g.append((1, lambda p=p: e(f's_mov_b32 s{sT0}, {c * 524288 + p * (32768 - 1024)}')))
            g.append((COST['dma'], lambda p=p: e(f'buffer_load_dwordx4 v7, s[{sWQ}:{sWQ + 3}], s{sT0} offen offset:{p * 1024} lds', ('wq', c))))
            out.append(g)
        return out

    def xreg(ks, qb):
        return XR + (((ks // 4) % 4) * 8 + (ks % 4) * 2 + qb) * 4

    def x_load(ks, qb):
        c = ks // 4
        out = []
        so = (sT1, 43)[qb]
        if ks % 4 == 0:
            out.append((1, lambda: e(f's_add_u32 s{so}, s{sXb}, {qb * 32768 + c * 4096}')))
        r = xreg(ks, qb)
        out.append((COST['vload'], lambda: e(f'buffer_load_dwordx4 v[{r}:{r + 3}], v{VL16}, s[{sWS}:{sWS + 3}], s{so} offen offset:{(ks % 4) * 1024}', ('x', ks))))
        return out

    e(f's_lshl_b32 s{sT0}, s{sW}, 10')
    e(f's_add_u32 m0, s{sT0}, {LDS_MOD}')
    e(f's_add_u32 s{sT0}, s{sT0}, {WS_MOD1}')
    e(f'buffer_load_dwordx4 v{VL16}, s[{sWS}:{sWS + 3}], s{sT0} offen lds', ('wq', 0))
    NPRE = opts.get('npre', 1)
    for c in range(NPRE):
        for g in wq_dma(c):
            for _, f in g: f()
        for ks in range(4 * c, 4 * c + 4):
            for qb in range(2):
                for _, f in x_load(ks, qb): f()
    e('v_lshrrev_b32 v236, 2, v3')
    e(f'v_and_b32 v237, 3, v{VLANE}')
    e('v_and_b32 v238, 1, v2')
    e('v_lshlrev_b32 v238, 5, v238')
    e('v_and_b32 v239, 1, v237')
    e('v_lshl_add_u32 v238, v239, 4, v238')
    e('v_lshrrev_b32 v239, 1, v237')
    e('v_lshl_add_u32 v238, v239, 3, v238')
    e('v_lshl_add_u32 v238, v236, 8, v238')
    for db in range(4):
        e(f'v_xor_b32 v239, {db}, v236')
        e(f'v_lshl_add_u32 v239, v239, 6, v238')
        e(f'v_lshl_add_u32 v{WRA + db}, v4, 11, v239')
        e(f'v_add_u32 v{WRA + 4 + db}, {LDS_V}, v{WRA + db}')
        e(f'v_lshl_add_u32 v{VR + db}, v4, 10, v239')
        e(f'v_add_u32 v{VR + db}, {LDS_V}, v{VR + db}')
    for ks in range(8):
        e(f'v_add_u32 v239, {2 * ks}, v4')
        e('v_xor_b32 v239, v239, v3')
        e('v_lshlrev_b32 v239, 4, v239')
        e(f'v_lshl_add_u32 v{KR + ks}, v5, 8, v239')
    for p in range(4):
        e(f'v_add_u32 v239, {4 * p}, v2')
        e('v_xor_b32 v239, v239, v3')
        e('v_lshlrev_b32 v239, 4, v239')
        e('v_lshl_add_u32 v239, v2, 8, v239')
        e(f'v_add_u32 v{DK + p}, s{sW4K}, v239')
    e(f'v_lshlrev_b32 v{VMD}, 6, v4')
    e(f'v_add_u32 v{VMD}, {LDS_MOD}, v{VMD}')
    e(f's_mov_b32 s{sThr}, {f32(THRESH)}')

    def w_reads(ks):
        c = ks // 4
        slot = chunk_slot[c]
        base = WRA + 4 if slot >= LDS_V else WRA
        off0 = (slot % 65536) + (ks % 4) * 16 * 256
        out = []
        for db in range(4):
            for t in range(2):
                r = WF + (ks % 2) * 16 + db * 4 + t * 2
                out.append((COST['ds'], lambda r=r, db=db, t=t: e(f'ds_read_b64_tr_b16 a[{r}:{r + 1}], v{base + db} offset:{off0 + t * 1024}', ('w', ks))))
        return out

    def ss_reads(ks):
        out = []
        for j in range(4):
            r = SS + (ks % 2) * 16 + 4 * j
            out.append((COST['ds'], lambda r=r, j=j: e(f'ds_read_b128 v[{r}:{r + 3}], v{VMD} offset:{ks * 128 + j * 16}', ('ss', ks))))
        return out

    def xform(ks):
        out = []
        sb = SS + (ks % 2) * 16
        for qb in range(2):
            x = xreg(ks, qb)
            for p in range(4):
                t = FT + (qb * 4 + p) * 2
                out.append((1, lambda x=x, p=p, t=t: e(f'v_fma_mix_f32 v{t}, v{x + p}, v{sb + 2 * p}, v{sb + 8 + 2 * p} op_sel_hi:[1,0,0]')))
                out.append((1, lambda x=x, p=p, t=t: e(f'v_fma_mix_f32 v{t + 1}, v{x + p}, v{sb + 2 * p + 1}, v{sb + 8 + 2 * p + 1} op_sel:[1,0,0] op_sel_hi:[1,0,0]')))
                h = H + (ks % 2) * 8 + qb * 4 + p
                out.append((1, lambda t=t, h=h: e(f'v_cvt_pk_bf16_f32 v{h}, v{t}, v{t + 1}')))
        return out

    def chunk_barrier(c):
        stamp(k, 1)
        k.wait(vm=[('wq', c)])
        e('s_barrier')
        stamp(k, 2)

    def kv_dma(which, tile):
        out = []
        slot = tile % 4
        for p in range(4):
            g = []
            if p == 0:
                g.append((1, lambda: e(f's_add_u32 m0, s{sW4K}, {(LDS_K if which == "K" else LDS_V) + slot * 16384}')))
                g.append((1, lambda: e(f's_mov_b32 s{sT0}, {tile * 16384}')))
            if which == 'K':
                g.append((COST['dma'], lambda p=p: e(f'buffer_load_dwordx4 v{DK + p}, s[{sK}:{sK + 3}], s{sT0} offen offset:{p * 1024} lds', ('K', tile))))
            else:
                g.append((COST['dma'], lambda p=p: e(f'buffer_load_dwordx4 v{DV}, s[{sV}:{sV + 3}], s{sT0} offen offset:{p * 1024} lds', ('V', tile))))
            out.append(g)
        return out

    todo = []
    for c in range(NPRE, 8):
        todo += [(0, g) for g in wq_dma(c)]
        for ks in range(4 * c, 4 * c + 4):
            todo += [(ks - 16, x_load(ks, 0)), (ks - 16, x_load(ks, 1))]
    todo += [(4, g) for g in kv_dma('K', 0)] + [(8, g) for g in kv_dma('K', 1)] + [(12, g) for g in kv_dma('V', 0)]
    RATE = opts.get('rate', 4)

    def refill(ks):
        out = []
        while todo and len(out) < RATE and todo[0][0] <= ks:
            out.append(todo.pop(0)[1])
        return out

    gemm256(k, dict(w_reads=w_reads, ss_reads=ss_reads, xform=xform, refill=refill, chunk_barrier=chunk_barrier,
                    ACC=O, WF=WF, H=H))
    assert not todo

    cq = LOG2E / math.sqrt(128.0)
    e(f's_mov_b32 s3, {f32(cq)}')
    stamp(k, 3)
    k.wait(vm=[('K', 0)])
    e('s_barrier')

    def k_read(blk, ks):
        tile = blk // 2
        off = LDS_K + (tile % 4) * 16384 + (blk % 2) * 8192
        r = KF + 4 * ks
        return lambda: e(f'ds_read_b128 a[{r}:{r + 3}], v{KR + ks} offset:{off}', ('kf', ks))

    def v_read(blk, i):
        u, db, t = i // 8, (i // 2) % 4, i % 2
        tile = blk // 2
        off = (tile % 4) * 16384 + ((blk % 2) * 32 + 16 * u + 8 * t) * 256
        r = VF + (u * 4 + db) * 4 + 2 * t
        return lambda: e(f'ds_read_b64_tr_b16 a[{r}:{r + 1}], v{VR + db} offset:{off}', ('vf', i))

    for ks in range(8):
        k_read(0, ks)()
    for g in kv_dma('K', 2):
        for _, f in g: f()
    for db in range(4):
        for qb in range(2):
            acc = O + (db * 2 + qb) * 16
            for i in range(16):
                e(f'v_accvgpr_read_b32 v{8 + i}, a{acc + i}')
            for i in range(16):
                e(f'v_mul_f32 v{8 + i}, s3, v{8 + i}')
            for i in range(8):
                u = i // 4
                e(f'v_cvt_pk_bf16_f32 v{Q + (qb * 8 + 2 * db + u) * 4 + i % 4}, v{8 + 2 * i}, v{9 + 2 * i}')
    for g in kv_dma('V', 1):
        for _, f in g: f()
    NPF = 2 if opts.get('pf', 1) else 0
    RETILE = opts.get('retile', 1)
    sPF = 42
    if NPF:
        for i, (sp, nb) in enumerate(((48, 4096 * 1024), (50, 512 * 3584), (52, 512 * 3584), (54, 1792 * 1024))):
            srd(k, 80 + 4 * i, sp, sp + 1, nb)
        e(f's_lshl_b32 s{sPF}, s2, 12')
        e(f's_lshl_b32 s{sT0}, s{sW}, 10')
        e(f's_add_u32 s{sPF}, s{sPF}, s{sT0}')
        e(f'v_lshrrev_b32 v236, 2, v{VLANE}')
        e(f'v_lshlrev_b32 v236, 6, v236')
        e(f'buffer_load_dword v240, v236, s[92:95], s{sPF} offen', 'pf')

    def qk_mfmas(blk, czero=False):
        out = []
        for ks in range(8):
            for qb in range(2):
                def m(ks=ks, qb=qb):
                    d = S[blk % 2] + 16 * qb
                    if ks == 0:
                        c = '0' if czero else vr(NEGM + 16 * qb, 16)
                    else:
                        c = vr(d, 16)
                    e(f'v_mfma_f32_32x32x16_bf16 {vr(d, 16)}, {ar(KF + 4 * ks, 4)}, {vr(Q + (qb * 8 + ks) * 4, 4)}, {c}')
                out.append(m)
        return out

    def pv_mfmas(blk, czero=False):
        out = []
        for u in range(2):
            for db in range(4):
                for qb in range(2):
                    def m(u=u, db=db, qb=qb):
                        acc = O + (db * 2 + qb) * 16
                        c = '0' if (czero and u == 0) else ar(acc, 16)
                        e(f'v_mfma_f32_32x32x16_bf16 {ar(acc, 16)}, {ar(VF + (u * 4 + db) * 4, 4)}, {vr(P[blk % 2] + (qb * 2 + u) * 4, 4)}, {c}')
                    out.append(m)
        return out

    def softmax_stream(blk):
        sb = S[blk % 2]; pb = P[blk % 2]
        items = []
        pend = []
        n = 0
        for qb in range(2):
            for i in range(8):
                t = ET + (n % 4) * 2
                r = sb + qb * 16 + 2 * i
                a = [(COST['exp'], lambda t=t, r=r: e(f'v_exp_f32 v{t}, v{r}')),
                     (COST['exp'], lambda t=t, r=r: e(f'v_exp_f32 v{t + 1}, v{r + 1}'))]
                if i == 0:
                    c = [(1, lambda t=t, qb=qb: e(f'v_add_f32 v{LS[qb]}, v{t}, v{t + 1}')), None]
                else:
                    c = [(1, lambda t=t, qb=qb: e(f'v_add_f32 v{LS[qb]}, v{LS[qb]}, v{t}')),
                         (1, lambda t=t, qb=qb: e(f'v_add_f32 v{LS[qb]}, v{LS[qb]}, v{t + 1}'))]
                if 'A' in opts.get('x', '') and i > 0:
                    c = [None, None]
                pd = pb + (qb * 2 + i // 4) * 4 + i % 4
                c.append((1, lambda t=t, pd=pd: e(f'v_cvt_pk_bf16_f32 v{pd}, v{t}, v{t + 1}')))
                items.append(a[0])
                if pend and pend[0]: items.append(pend[0])
                items.append(a[1])
                for x in pend[1:]:
                    if x: items.append(x)
                pend = c
                n += 1
        for x in pend:
            if x: items.append(x)
        return items

    stubs = []

    def check_items(blk):
        lab = k.newlabel('slow'); ret = k.newlabel('ret')
        stubs.append((lab, ret, blk % 2))

        def br():
            e(f's_cbranch_vccnz {lab}')
            k.label(ret)
        return [(1, lambda: e(f'v_max_f32 v{TMP}, v{LS[0]}, v{LS[1]}')),
                (1, lambda: e(f'v_cmp_lt_f32 vcc, s{sThr}, v{TMP}')),
                (1, br),
                (1, lambda: e(f'v_add_f32 v{L[0]}, v{L[0]}, v{LS[0]}')),
                (1, lambda: e(f'v_add_f32 v{L[1]}, v{L[1]}, v{LS[1]}'))]

    KFALL = [('kf', i) for i in range(8)]
    VFALL = [('vf', i) for i in range(16)]
    mf = qk_mfmas(0, czero=True)
    fx = {}
    for ks in range(8):
        fx.setdefault(min(2 * ks + 2, 15), []).append((COST['ds'], k_read(1, ks), 'ds'))
    k.wait(lg=KFALL)
    schedule(k, mf, fx, [])
    for qb in range(2):
        sb = S[0] + 16 * qb
        e(f'v_max3_f32 v{TMP}, v{sb}, v{sb + 1}, v{sb + 2}')
        for i in range(3, 15, 2):
            e(f'v_max3_f32 v{TMP}, v{TMP}, v{sb + i}, v{sb + i + 1}')
        e(f'v_max_f32 v{TMP}, v{TMP}, v{sb + 15}')
        e(f'v_mov_b32 v{TMP + 1}, v{TMP}')
        e(f'v_permlane32_swap_b32 v{TMP}, v{TMP + 1}')
        e(f'v_max_f32 v{TMP}, v{TMP}, v{TMP + 1}')
        e(f'v_add_f32 v{TMP}, {f32(BIAS)}, v{TMP}')
        e(f'v_sub_f32 v{NEGM + 16 * qb}, 0, v{TMP}')
        for i in range(1, 16):
            e(f'v_mov_b32 v{NEGM + 16 * qb + i}, v{NEGM + 16 * qb}')
        for i in range(16):
            e(f'v_sub_f32 v{sb + i}, v{sb + i}, v{TMP}')
        e(f'v_mov_b32 v{L[qb]}, 0')
    e(f's_mov_b32 s{sKoff}, {3 * 16384}')
    e(f's_mov_b32 s{sVoff}, {2 * 16384}')
    e(f's_mov_b32 s{sCnt}, 8')

    def step(b, do_qk=True, do_sm=True, do_pv=True, pv_zero=False, do_kread=True, do_dma=True):
        mf = []
        fx = {}
        nq = 0
        X = opts.get('x', '')
        if 'D' in X: do_dma = False
        if 'S' in X: do_sm = False
        if do_qk:
            mf += qk_mfmas(b + 1); nq = 16
        if do_pv:
            mf += pv_mfmas(b - 1, czero=pv_zero)
        n = len(mf)
        caps = {}
        full = do_qk and do_pv
        if do_pv and 'L' not in X:
            if do_qk:
                for i in range(16):
                    fx.setdefault(i // 2, []).append((COST['ds'], v_read(b - 1, i), 'ds'))
            else:
                for i in range(16):
                    v_read(b - 1, i)()
                k.wait(lg=VFALL)
        bar = b % 2 == 0 and do_kread and 'B' not in X
        gb = 15 if full else 0
        if bar:
            vmn = 8 + (NPF if b >= 2 else NPF // 2)

            def wt():
                t = k.wait_text(lg=VFALL) if full else None
                e(f's_waitcnt vmcnt({vmn})' + (t[9:] if t else ''))
            fx.setdefault(gb, []).append((0, wt, 'wait'))
            fx.setdefault(gb, []).append((6, lambda: e('s_barrier'), 'bar'))
            caps[gb + 1] = opts.get('cap_ab', 3)
        elif full:
            fx.setdefault(15, []).append((0, lambda: k.wait(lg=VFALL), 'wait'))
        if do_kread and 'L' not in X:
            for ks in range(8):
                g = (17 + ks // 2) if full else min(2 * ks + 2, 15)
                fx.setdefault(g, []).append((COST['ds'], k_read(b + 2, ks), 'ds'))
            if full:
                fx.setdefault(n - 1, []).append((0, lambda: k.wait(lg=KFALL), 'wait'))
        if do_dma:
            isK = (b % 2 == 0)
            I = (b + 2) // 2 if isK else (b + 1) // 2
            if isK:
                slot = LDS_K + ((I + 2) % 4) * 16384; so = sKoff
            else:
                slot = LDS_V + ((I + 1) % 4) * 16384; so = sVoff
            gs = [22, 24, 26, 28] if full else [3, 5, 7, 9]
            fx.setdefault(gs[0] - 1, []).append((1, lambda: e(f's_add_u32 m0, s{sW4K}, {slot}'), 'end'))
            for p in range(4):
                va = DK + p if isK else DV
                sd = sK if isK else sV
                fx.setdefault(gs[p], []).append((COST['dma'], lambda p=p, va=va, sd=sd: e(
                    f'buffer_load_dwordx4 v{va}, s[{sd}:{sd + 3}], s{so} offen offset:{p * 1024} lds', 'kv'), 'dma'))
            fx.setdefault(gs[3] + 1, []).append((1, lambda: e(f's_add_u32 s{so}, s{so}, 16384'), 'end'))
            if NPF and not isK:
                sp = 80 + 4 * ((b // 2) % 4)
                fx.setdefault(30, []).append((COST['dma'], lambda: e(f'buffer_load_dword v240, v236, s[{sp}:{sp + 3}], s{sPF} offen', 'pf'), 'dma'))
                if b % 8 == 7:
                    fx.setdefault(30, []).append((1, lambda: e(f's_add_u32 s{sPF}, s{sPF}, 0x100000'), 'end'))
        st = []
        if do_sm:
            st = softmax_stream(b)
        schedule(k, mf, fx, st, last_gap=n - 2, caps=caps)
        if do_kread and not full:
            k.wait(lg=KFALL)
        if do_sm:
            for _, f in check_items(b): f()

    stamp(k, 4)
    k.wait(lg=KFALL)
    step(0, do_pv=False)
    step(1, pv_zero=True)
    e('s_branch attn_ent')
    e('.p2align 6')
    k.label('attn_loop')
    for pos in range(8):
        if pos == 2:
            k.label('attn_ent')
        step(8 + pos)
        if pos == 6:
            e(f's_sub_u32 s{sCnt}, s{sCnt}, 1')
            e(f's_cmp_eq_u32 s{sCnt}, 0')
            e('s_cbranch_scc1 attn_tail')
            if RETILE:
                e(f's_cmp_le_u32 s{sCnt}, 3')
                e('s_cbranch_scc1 attn_copy')
                k.label('attn_copy_ret')
    e('s_branch attn_loop')
    k.label('attn_tail')
    k.lgq = []
    if opts.get('t23', 0):
        e(f'v_lshrrev_b32 v238, 2, v{VLANE}')
        e('v_lshlrev_b32 v238, 10, v238')
        e(f'v_and_b32 v239, 3, v{VLANE}')
        e('v_lshl_add_u32 v238, v239, 7, v238')
        e(f's_lshr_b32 s{sT0}, s2, 3')
        e(f's_lshl_b32 s{sT0}, s{sT0}, 2')
        e(f's_add_u32 s{sT0}, s{sT0}, s{sW}')
        e(f's_lshl_b32 s{sT0}, s{sT0}, 15')
        e(f's_and_b32 s{sT1}, s2, 1')
        e(f's_lshl_b32 s{sT1}, s{sT1}, 9')
        e(f's_add_u32 s{sT0}, s{sT0}, s{sT1}')
        e(f'buffer_load_dword v237, v238, s[80:83], s{sT0} offen', 'pf')
        e(f's_add_u32 s{sT0}, s{sT0}, 16384')
        e(f'buffer_load_dword v239, v238, s[80:83], s{sT0} offen', 'pf')
    step(63, do_qk=False, do_kread=False, do_dma=False)
    step(64, do_qk=False, do_sm=False, do_kread=False, do_dma=False)

    stamp(k, 5)
    for qb in range(2):
        e(f'v_mov_b32 v{TMP}, v{L[qb]}')
        e(f'v_permlane32_swap_b32 v{L[qb]}, v{TMP}')
        e(f'v_add_f32 v{L[qb]}, v{L[qb]}, v{TMP}')
        e(f'v_rcp_f32 v{L[qb]}, v{L[qb]}')
    n = 0
    for qb in range(2):
        e(f's_add_u32 s{sT0}, s{sOb}, {qb * 262144}')
        e(f's_add_u32 s{sT1}, s{sOb}, {qb * 262144 + 4096}')
        for db in range(4):
            for u in range(2):
                acc = O + (db * 2 + qb) * 16 + 8 * u
                t = 8 + (n % 4) * 16; n += 1
                for i in range(8):
                    e(f'v_accvgpr_read_b32 v{t + i}, a{acc + i}')
                for i in range(8):
                    e(f'v_mul_f32 v{t + i}, v{t + i}, v{L[qb]}')
                for i in range(4):
                    e(f'v_cvt_pk_bf16_f32 v{t + 8 + i}, v{t + 2 * i}, v{t + 2 * i + 1}')
                kk = 2 * db + u
                so = sT0 if kk < 4 else sT1
                e(f'buffer_store_dwordx4 v[{t + 8}:{t + 11}], v{VL16}, s[{sWS}:{sWS + 3}], s{so} offen offset:{(kk % 4) * 1024}{opts.get("ost", " sc1")}')
    stamp(k, 6)
    stamp_flush(k, 7, sWS, 1)
    k.label('attn_end')
    e('s_endpgm')

    if RETILE:
        CP = 192
        k.label('attn_copy')
        e(f's_cmp_eq_u32 s{sCnt}, 1')
        e('s_cbranch_scc1 attn_copy_code' if opts.get('cpf2', 1) else 's_cbranch_scc1 attn_copy_ret')
        e(f's_lshl_b32 s{sT0}, s2, 2')
        e(f's_add_u32 s{sT0}, s{sT0}, s{sW}')
        e(f's_cmp_eq_u32 s{sCnt}, 2')
        e('s_cbranch_scc1 attn_copy_st')
        e(f's_lshl_b32 s{sT1}, s{sT0}, 12')
        for i in range(4):
            e(f'buffer_load_dwordx4 a[{CP + 4 * i}:{CP + 4 * i + 3}], v{VL16}, s[80:83], s{sT1} offen offset:{i * 1024}')
        e(f's_lshl_b32 s{sT1}, s{sT0}, 11')
        for i in range(2):
            e(f'buffer_load_dwordx4 a[{CP + 16 + 4 * i}:{CP + 19 + 4 * i}], v{VL16}, s[92:95], s{sT1} offen offset:{i * 1024}')
        e('s_branch attn_copy_ret')
        k.label('attn_copy_st')
        e(f'v_lshrrev_b32 v238, 3, v{VLANE}')
        e(f'v_and_b32 v239, 7, v{VLANE}')
        e('v_lshlrev_b32 v239, 4, v239')
        e('v_lshl_add_u32 v237, v238, 19, v239')
        e('v_lshl_add_u32 v238, v238, 18, v239')
        e(f's_lshl_b32 s{sT1}, s{sT0}, 9')
        e(f's_add_u32 s{sT1}, s{sT1}, {WS_WOT}')
        for i in range(4):
            e(f'buffer_store_dwordx4 a[{CP + 4 * i}:{CP + 4 * i + 3}], v237, s[{sWS}:{sWS + 3}], s{sT1} offen offset:{i * 128} sc1')
        e(f's_lshl_b32 s{sT1}, s{sT0}, 8')
        e(f's_add_u32 s{sT1}, s{sT1}, {WS_W2T}')
        for i in range(2):
            e(f'buffer_store_dwordx4 a[{CP + 16 + 4 * i}:{CP + 19 + 4 * i}], v238, s[{sWS}:{sWS + 3}], s{sT1} offen offset:{i * 128} sc1')
        e('s_branch attn_copy_ret')
        if opts.get('cpf2', 1):
            k.label('attn_copy_code')
            e(f's_lshr_b32 s{sT0}, s2, 3')
            e(f's_lshl_b32 s{sT0}, s{sT0}, 2')
            e(f's_add_u32 s{sT0}, s{sT0}, s{sW}')
            e(f's_cmp_ge_u32 s{sT0}, (code_end-oproj_kernel+8191)/8192')
            e('s_cbranch_scc1 attn_copy_ret')
            code_touch(k, 242, 46, sT0, VLANE, 'oproj_kernel', 'code_end')
            e('s_branch attn_copy_ret')

    for lab, ret, par in stubs:
        k.label(lab)
        e(f's_call_b64 s[{sLink}:{sLink + 1}], attn_slow{par}')
        e(f's_branch {ret}')
    for par in range(2):
        k.label(f'attn_slow{par}')
        e('s_nop 15'); e('s_nop 15')
        D0 = [TMP + 2, TMP + 3]
        for qb in range(2):
            sb = S[par] + 16 * qb; sn = S[1 - par] + 16 * qb
            e(f'v_max3_f32 v{TMP}, v{sb}, v{sb + 1}, v{sb + 2}')
            for i in range(3, 15, 2):
                e(f'v_max3_f32 v{TMP}, v{TMP}, v{sb + i}, v{sb + i + 1}')
            e(f'v_max_f32 v{TMP}, v{TMP}, v{sb + 15}')
            e(f'v_mov_b32 v{TMP + 1}, v{TMP}')
            e(f'v_permlane32_swap_b32 v{TMP}, v{TMP + 1}')
            e(f'v_max_f32 v{TMP}, v{TMP}, v{TMP + 1}')
            e(f'v_add_f32 v{TMP}, {f32(BIAS)}, v{TMP}')
            e(f'v_max_f32 v{TMP}, 0, v{TMP}')
            e(f'v_sub_f32 v{TMP + 1}, 0, v{TMP}')
            e(f'v_exp_f32 v{D0[qb]}, v{TMP + 1}')
            for i in range(16):
                e(f'v_sub_f32 v{NEGM + 16 * qb + i}, v{NEGM + 16 * qb + i}, v{TMP}')
                e(f'v_sub_f32 v{sb + i}, v{sb + i}, v{TMP}')
                e(f'v_sub_f32 v{sn + i}, v{sn + i}, v{TMP}')
            e(f'v_mul_f32 v{L[qb]}, v{L[qb]}, v{D0[qb]}')
            for db in range(4):
                acc = O + (db * 2 + qb) * 16
                for i in range(16):
                    t = ET + i % 8
                    e(f'v_accvgpr_read_b32 v{t}, a{acc + i}')
                    e(f'v_mul_f32 v{t}, v{t}, v{D0[qb]}')
                    e(f'v_accvgpr_write_b32 a{acc + i}, v{t}')
        for _, f in softmax_stream(par): f()
        e('s_nop 3')
        e(f's_setpc_b64 s[{sLink}:{sLink + 1}]')
    return k, 'grid=(256,1,1) block=(256,1,1) lds=135168'


def gen_gemm64(name, which, opts):
    k = Kern(name)
    e = k.e
    NKS = 256 if which == 'wo' else 112
    KW = NKS // 4
    D = 16 if which == 'wo' else 14
    NIT = KW // D
    A_W = A_WO if which == 'wo' else A_W2
    WS_XIN = WS_O if which == 'wo' else WS_HH
    sW_, sWS, sG = 8, 12, 16
    sWv, sXo, sWo, sT0, sT1, sLb, sCnt, sXo1 = 32, 33, 34, 35, 36, 37, 38, 39
    ACC = 8
    XF = 72
    WFr = 200
    VL16, VDW, VWR = 216, 217, 218
    EP = 220
    LDS_ST = 131072
    e(f's_cmp_ge_u32 s2, 256')
    e(f's_cbranch_scc1 {name}_end')
    stamp(k, 0)
    e(f's_load_dwordx2 s[4:5], s[0:1], {A_W}')
    e(f's_load_dwordx2 s[6:7], s[0:1], {A_WS}')
    e(f's_load_dwordx2 s[24:25], s[0:1], {A_X if which == "wo" else A_OUT}')
    if which == 'wo':
        e(f's_load_dwordx4 s[56:59], s[0:1], {A_W1}')
    e('s_bfe_u32 s28, s2, 0x20001')
    e('s_lshl_b32 s28, s28, 3')
    e('s_bfe_u32 s30, s2, 0x30003')
    e('s_add_u32 s28, s28, s30')
    e('s_and_b32 s29, s2, 1')
    e('s_lshl_b32 s29, s29, 2')
    e('s_lshr_b32 s30, s2, 6')
    e('s_add_u32 s29, s29, s30')
    e('v_lshrrev_b32 v1, 6, v0')
    e('v_and_b32 v2, 63, v0')
    e(f'v_readfirstlane_b32 s{sWv}, v1')
    e(f'v_lshlrev_b32 v{VL16}, 4, v2')
    RT = opts.get('retile', 1)
    e('v_lshrrev_b32 v3, 3, v2')
    e('v_and_b32 v4, 7, v2')
    e('v_lshlrev_b32 v5, 1, v3')
    e('v_and_b32 v5, 4, v5')
    e('v_xor_b32 v4, v4, v5')
    e('v_lshlrev_b32 v4, 4, v4')
    e(f'v_lshl_add_u32 v{VDW}, v3, {7 if RT else 10}, v4')
    e(f's_lshl_b32 s{sLb}, s{sWv}, 15')
    e(f's_mul_i32 s{sXo}, s28, {2 * NKS * 1024}')
    e(f's_mul_i32 s{sT0}, s{sWv}, {KW * 1024}')
    e(f's_add_u32 s{sXo}, s{sXo}, s{sT0}')
    e(f's_add_u32 s{sXo}, s{sXo}, {WS_XIN}')
    e(f's_add_u32 s{sXo1}, s{sXo}, {NKS * 1024}')
    if RT:
        e(f's_mul_i32 s{sWo}, s{sWv}, {KW * 2048}')
        e(f's_lshl_b32 s{sT0}, s29, {19 if which == "wo" else 18}')
        e(f's_add_u32 s{sWo}, s{sWo}, s{sT0}')
        e(f's_add_u32 s{sWo}, s{sWo}, {WS_WOT if which == "wo" else WS_W2T}')
        sW_ = sWS
    else:
        e(f's_mul_i32 s{sWo}, s{sWv}, {KW * 16 * 1024}')
        e(f's_lshl_b32 s{sT0}, s29, 7')
        e(f's_add_u32 s{sWo}, s{sWo}, s{sT0}')
        e(f's_add_u32 s{sT1}, s{sWo}, {8192 - 1024}')
    e(f's_lshr_b32 s40, s{sWv}, 1')
    e(f's_and_b32 s47, s{sWv}, 1')
    e('s_lshl_b32 s41, s29, 6')
    e('s_lshl_b32 s42, s40, 5')
    e('s_add_u32 s41, s41, s42')
    e('s_lshl_b32 s42, s28, 6')
    e('s_lshl_b32 s43, s47, 5')
    e('s_add_u32 s42, s42, s43')
    e('v_lshrrev_b32 v4, 5, v2')
    e('v_and_b32 v5, 31, v2')
    e('v_add_u32 v6, s42, v5')
    e('v_lshlrev_b32 v6, 10, v6')
    e('v_lshl_add_u32 v6, v4, 4, v6')
    e('s_lshl_b32 s43, s41, 1')
    e('v_add_u32 v6, s43, v6')
    e('s_lshl_b32 s43, s42, 10')
    e('s_lshl_b32 s44, s41, 6')
    e('s_add_u32 s43, s43, s44')
    e(f's_add_u32 s43, s43, {WS_X1}')
    e('v_lshlrev_b32 v7, 5, v4')
    e('s_lshl_b32 s44, s41, 2')
    e(f's_add_u32 s44, s44, {WS_GA if which == "wo" else WS_GB}')
    e('s_waitcnt lgkmcnt(0)')
    if not RT:
        srd(k, sW_, 4, 5, NKS * 16 * 1024)
    srd(k, sWS, 6, 7, WS_SIZE)
    srd(k, sG, 24, 25, 2048 * 1024)

    def loads(ks):
        sl = ks % D
        r0 = XF + sl * 8
        Z = opts.get('z', '')
        dd = _loads(ks, sl, r0)
        if 'W' in Z: dd['w0'] = dd['w1'] = lambda: None
        if 'X' in Z: dd['x0'] = dd['x1'] = lambda: None
        if 'F' in Z: dd['uw'] = lambda: None
        if 'G' in Z: dd['ux'] = lambda: None
        return dd

    def _loads(ks, sl, r0):
        XA = opts.get('xa', '') if which == 'wo' else ''
        WA = opts.get('wa', '') if which == 'wo' else ''
        return dict(
            m0=lambda: e(f's_add_u32 m0, s{sLb}, {sl * 2048}'),
            w0=lambda: e(f'buffer_load_dwordx4 v{VDW}, s[{sW_}:{sW_ + 3}], s{sWo} offen{WA} lds', ('g', ks)),
            w1=lambda: e(f'buffer_load_dwordx4 v{VDW}, s[{sW_}:{sW_ + 3}], s{sWo if RT else sT1} offen offset:1024{WA} lds', ('g', ks)),
            x0=lambda: e(f'buffer_load_dwordx4 v[{r0}:{r0 + 3}], v{VL16}, s[{sWS}:{sWS + 3}], s{sXo} offen offset:{(ks % 2) * 1024}{XA}', ('g', ks)),
            x1=lambda: e(f'buffer_load_dwordx4 v[{r0 + 4}:{r0 + 7}], v{VL16}, s[{sWS}:{sWS + 3}], s{sXo1} offen offset:{(ks % 2) * 1024}{XA}', ('g', ks)),
            uw=lambda: e(f's_add_u32 s{sWo}, s{sWo}, 2048') if RT else (e(f's_add_u32 s{sWo}, s{sWo}, 16384'), e(f's_add_u32 s{sT1}, s{sT1}, 16384')),
            ux=lambda: (e(f's_add_u32 s{sXo}, s{sXo}, 2048'), e(f's_add_u32 s{sXo1}, s{sXo1}, 2048')) if ks % 2 == 1 else None)

    for u in range(2):
        e(f'buffer_load_dwordx4 v[{EP + 8 * u}:{EP + 8 * u + 3}], v7, s[{sWS}:{sWS + 3}], s44 offen offset:{64 * u}', 'ep')
        e(f'buffer_load_dwordx4 v[{EP + 8 * u + 4}:{EP + 8 * u + 7}], v7, s[{sWS}:{sWS + 3}], s44 offen offset:{64 * u + 16}', 'ep')
        if which == 'wo':
            e(f'buffer_load_dwordx4 v[{EP + 16 + 4 * u}:{EP + 19 + 4 * u}], v6, s[{sG}:{sG + 3}], 0 offen offset:{32 * u}', 'ep')
        else:
            e(f'buffer_load_dwordx4 v[{EP + 16 + 4 * u}:{EP + 19 + 4 * u}], v{VL16}, s[{sWS}:{sWS + 3}], s43 offen offset:{1024 * u}', 'ep')
    for ks in range(D - 1):
        L = loads(ks)
        for nm in ('m0', 'x0', 'w0', 'w1', 'x1', 'uw', 'ux'):
            L[nm]()
        if ks == 1:
            e('v_bfe_u32 v3, v2, 2, 2')
            e('v_lshl_add_u32 v1, v4, 3, v3')
            e('v_lshlrev_b32 v1, 7, v1')
            e(f'v_bfe_u32 v{VWR}, v2, 4, 1')
            e(f'v_lshl_add_u32 v1, v{VWR}, 5, v1')
            e(f'v_and_b32 v{VWR}, 1, v2')
            e(f'v_lshl_add_u32 v1, v{VWR}, 4, v1')
            e(f'v_bfe_u32 v{VWR}, v2, 1, 1')
            e(f'v_lshl_add_u32 v1, v{VWR}, 3, v1')
            e(f'v_add_u32 v1, s{sLb}, v1')
            e('v_lshrrev_b32 v3, 1, v3')
            e(f'v_lshl_add_u32 v{VWR}, v3, 6, v1')
            e('v_xor_b32 v3, 1, v3')
            e(f'v_lshl_add_u32 v{VWR + 1}, v3, 6, v1')
            for i in range(64):
                e(f'v_mov_b32 v{ACC + i}, 0')
            e(f's_mov_b32 s{sCnt}, {NIT - 1}')

    def wreads(ks):
        sl = ks % D
        for nb in range(2):
            for t in range(2):
                r = WFr + (ks % 2) * 8 + nb * 4 + t * 2
                e(f'ds_read_b64_tr_b16 v[{r}:{r + 1}], v{VWR + nb} offset:{sl * 2048 + t * 512}', ('wf', ks))

    def kstep(ks, refill, last=False, extra=None):
        sl = ks % D
        L = loads(ks + D - 1) if refill else None
        for i in range(4):
            nb, mb = i // 2, i % 2
            acc = ACC + (nb * 2 + mb) * 16
            e(f'v_mfma_f32_32x32x16_bf16 {vr(acc, 16)}, {vr(WFr + (ks % 2) * 8 + nb * 4, 4)}, {vr(XF + (sl * 2 + mb) * 4, 4)}, {vr(acc, 16)}')
            if i == 0:
                if not last:
                    k.wait(vm=[('g', ks + 1)])
                    wreads(ks + 1)
                if L: L['m0']()
            elif i == 1 and L:
                L['x0'](); L['w0']()
            elif i == 2 and L:
                L['w1'](); L['x1'](); L['uw'](); L['ux']()
            elif i == 2 and extra:
                extra()
            elif i == 3 and not last:
                k.wait(lg=[('wf', ks + 1)])

    def touch_next():
        e('s_lshr_b32 s48, s2, 3')
        e('s_lshl_b32 s48, s48, 2')
        e(f's_add_u32 s48, s48, s{sWv}')
        e(f's_mul_i32 s48, s48, {4 * 3584}')
        e('s_bfe_u32 s49, s2, 0x20001')
        e('s_lshl_b32 s49, s49, 8')
        e('s_add_u32 s48, s48, s49')
        e('v_lshrrev_b32 v244, 4, v2')
        e('v_mul_u32_u24 v244, 3584, v244')
        e('v_bfe_u32 v245, v2, 2, 2')
        e('v_lshl_add_u32 v244, v245, 10, v244')
        e('v_and_b32 v245, 3, v2')
        e('v_lshl_add_u32 v244, v245, 6, v244')
        for sp in (56, 58):
            srd(k, 52, sp, sp + 1, 512 * 3584)
            e('buffer_load_dword v245, v244, s[52:55], s48 offen', 'touch')

    stamp(k, 1)
    k.wait(vm=[('g', 0)])
    wreads(0)
    k.wait(lg=[('wf', 0)])
    stamp(k, 2)
    if NIT > 1:
        k.label(f'{name}_loop')
        for ks in range(D):
            kstep(ks, True)
        if NIT > 2:
            e(f's_sub_u32 s{sCnt}, s{sCnt}, 1')
            e(f's_cmp_lg_u32 s{sCnt}, 0')
            e(f's_cbranch_scc1 {name}_loop')
    tch = touch_next if (which == 'wo' and opts.get('t34', 1)) else None
    for ks in range(D, 2 * D):
        kstep(ks, ks == D, last=(ks == 2 * D - 1), extra=tch if ks == D + 1 else None)
    stamp(k, 3)
    e(f'v_add_u32 v3, s{sLb}, v{VL16}')
    for qd in range(16):
        e(f'ds_write_b128 v3, v[{ACC + 4 * qd}:{ACC + 4 * qd + 3}] offset:{qd * 1024}')
    e('s_waitcnt lgkmcnt(0)')
    e('s_barrier')
    stamp(k, 4)
    e(f's_lshl_b32 s{sT0}, s{sWv}, 12')
    e(f'v_add_u32 v3, s{sT0}, v{VL16}')
    e(f'v_add_u32 v1, 0x10000, v3')
    RD = 72
    for w in range(4):
        a = 3 if w < 2 else 1
        for h in range(4):
            r = RD + (w * 4 + h) * 4
            e(f'ds_read_b128 v[{r}:{r + 3}], v{a} offset:{(w % 2) * 32768 + h * 1024}', ('r', w))
    for w in range(1, 4):
        k.wait(lg=[('r', w), ('r', 0)])
        for i in range(16):
            e(f'v_add_f32 v{RD + i}, v{RD + i}, v{RD + w * 16 + i}')
    k.wait(vm=['ep'])
    for i in range(16):
        rbf(k, RD + i, RD + i)
    for i in range(16):
        e(f'v_mul_f32 v{RD + i}, v{RD + i}, v{EP + i}')
    for i in range(16):
        rbf(k, RD + i, RD + i)
    for i in range(16):
        src = EP + 16 + i // 2
        if i % 2 == 0:
            e(f'v_lshlrev_b32 v{RD + 16 + i}, 16, v{src}')
        else:
            e(f'v_and_b32 v{RD + 16 + i}, 0xffff0000, v{src}')
    for i in range(16):
        e(f'v_add_f32 v{RD + i}, v{RD + i}, v{RD + 16 + i}')
    for i in range(8):
        e(f'v_cvt_pk_bf16_f32 v{RD + 32 + i}, v{RD + 2 * i}, v{RD + 2 * i + 1}')
    for u in range(2):
        if which == 'w2':
            e(f'buffer_store_dwordx4 v[{RD + 32 + 4 * u}:{RD + 35 + 4 * u}], v6, s[{sG}:{sG + 3}], 0 offen offset:{32 * u}')
        else:
            e(f'buffer_store_dwordx4 v[{RD + 32 + 4 * u}:{RD + 35 + 4 * u}], v{VL16}, s[{sWS}:{sWS + 3}], s43 offen offset:{1024 * u}')
    if which == 'wo':
        for i in range(16):
            src = RD + 32 + i // 2
            if i % 2 == 0:
                e(f'v_lshlrev_b32 v{RD + i}, 16, v{src}')
            else:
                e(f'v_and_b32 v{RD + i}, 0xffff0000, v{src}')
        A, B = RD + 16, RD + 17
        e(f'v_add_f32 v{A}, v{RD}, v{RD + 1}')
        e(f'v_mul_f32 v{B}, v{RD}, v{RD}')
        e(f'v_fmac_f32 v{B}, v{RD + 1}, v{RD + 1}')
        for i in range(2, 16):
            e(f'v_add_f32 v{A}, v{A}, v{RD + i}')
            e(f'v_fmac_f32 v{B}, v{RD + i}, v{RD + i}')
        e(f'v_mov_b32 v{A + 2}, v{A}')
        e(f'v_mov_b32 v{A + 3}, v{B}')
        e(f'v_permlane32_swap_b32 v{A}, v{A + 2}')
        e(f'v_permlane32_swap_b32 v{B}, v{A + 3}')
        e(f'v_add_f32 v{A}, v{A}, v{A + 2}')
        e(f'v_add_f32 v{B}, v{B}, v{A + 3}')
        e('s_lshl_b32 s45, s42, 7')
        e('s_lshr_b32 s46, s41, 2')
        e('s_add_u32 s45, s45, s46')
        e(f's_add_u32 s45, s45, {WS_ST}')
        e('v_lshlrev_b32 v3, 7, v5')
        e(f'buffer_store_dwordx2 v[{A}:{A + 1}], v3, s[{sWS}:{sWS + 3}], s45 offen')
    stamp_flush(k, 5, sWS, 2 if which == 'wo' else 4)
    k.label(f'{name}_end')
    e('s_endpgm')
    return k, 'grid=(256,1,1) block=(256,1,1) lds=131072'


def gen_ffn1(opts):
    k = Kern('ffn1_kernel')
    e = k.e
    name = 'ffn1'
    s1, s3_, sWS = 8, 12, 16
    sW, sT0, sT1, sXb, sWo, sHb, sW4K = 32, 33, 34, 35, 36, 37, 38
    ACC = 0
    XD = 12
    XR = 128
    H = 176
    SS = 184
    FT = 216
    WRA = 224
    VL16, VDW, VMD, VLANE, RS, NM = 232, 233, 234, 235, 236, 237
    T = 238
    WF = 0
    LDS_MOD = 131072
    e('s_bfe_u32 s29, s2, 0x20001')
    e('s_lshr_b32 s3, s2, 6')
    e('s_lshl_b32 s3, s3, 2')
    e('s_add_u32 s29, s29, s3')
    e('s_cmp_ge_u32 s29, 14')
    e(f's_cbranch_scc1 {name}_end')
    stamp(k, 0)
    e(f's_load_dwordx4 s[4:7], s[0:1], {A_W1}')
    e(f's_load_dwordx2 s[24:25], s[0:1], {A_WS}')
    e(f's_load_dwordx2 s[44:45], s[0:1], {A_W2}')
    e('s_and_b32 s28, s2, 1')
    e('s_lshl_b32 s28, s28, 3')
    e('s_bfe_u32 s3, s2, 0x30003')
    e('s_add_u32 s28, s28, s3')
    e(f'v_lshrrev_b32 v{T}, 6, v0')
    e(f'v_and_b32 v{VLANE}, 63, v0')
    e(f'v_mov_b32 v{T + 15}, v0')
    e(f'v_readfirstlane_b32 s{sW}, v{T}')
    e(f'v_lshlrev_b32 v{VL16}, 4, v{VLANE}')
    e(f'v_lshrrev_b32 v{T + 1}, 4, v{VLANE}')
    e(f'v_and_b32 v{T + 2}, 15, v{VLANE}')
    e(f'v_lshlrev_b32 v{T + 3}, 2, v{T + 1}')
    e(f'v_xor_b32 v{T + 3}, v{T + 3}, v{T + 2}')
    e(f'v_lshlrev_b32 v{T + 3}, 4, v{T + 3}')
    e(f'v_mul_u32_u24 v{T + 4}, 3584, v{T + 1}')
    e(f'v_add_u32 v{VDW}, v{T + 4}, v{T + 3}')
    e(f's_lshl_b32 s{sW4K}, s{sW}, 12')
    e('s_lshl_b32 s3, s28, 2')
    e(f's_add_u32 s3, s3, s{sW}')
    e(f's_lshl_b32 s{sXb}, s3, 15')
    e(f's_add_u32 s{sXb}, s{sXb}, {WS_X1}')
    e(f's_mul_i32 s{sHb}, s3, {112 * 1024}')
    e(f's_lshl_b32 s{sT0}, s29, 13')
    e(f's_add_u32 s{sHb}, s{sHb}, s{sT0}')
    e(f's_add_u32 s{sHb}, s{sHb}, {WS_HH}')
    e(f's_mul_i32 s{sWo}, s{sW}, {16 * 3584}')
    e(f's_lshl_b32 s{sT0}, s29, 8')
    e(f's_add_u32 s{sWo}, s{sWo}, s{sT0}')
    e(f'v_and_b32 v{T + 5}, 31, v{VLANE}')
    e(f'v_lshrrev_b32 v{T + 4}, 5, v{VLANE}')
    e(f'v_lshlrev_b32 v{T + 6}, 7, v{T + 5}')
    e(f'v_lshl_add_u32 v{T + 6}, v{T + 4}, 6, v{T + 6}')
    e(f's_lshl_b32 s39, s3, 12')
    e(f's_add_u32 s39, s39, {WS_ST}')
    e('s_waitcnt lgkmcnt(0)')
    srd(k, s1, 4, 5, 512 * 3584)
    srd(k, s3_, 6, 7, 512 * 3584)
    srd(k, sWS, 24, 25, WS_SIZE)

    def w_dma(c):
        out = []
        for mat, sd in enumerate((s1, s3_)):
            for p in range(4):
                g = []
                if p == 0:
                    g.append((1, lambda mat=mat: e(f's_add_u32 m0, s{sW4K}, {(c % 4) * 32768 + mat * 16384}')))
                g.append((1, lambda p=p: e(f's_add_u32 s{sT0}, s{sWo}, {c * 64 * 3584 + p * (4 * 3584 - 1024)}')))
                g.append((COST['dma'], lambda p=p, sd=sd: e(f'buffer_load_dwordx4 v{VDW}, s[{sd}:{sd + 3}], s{sT0} offen offset:{p * 1024} lds', ('wq', c))))
                out.append(g)
        return out

    def xreg(ks):
        return XR + (ks % XD) * 4

    def x_load(ks):
        r = xreg(ks)
        g = []
        if ks % 4 == 0:
            g.append((1, lambda: e(f's_add_u32 s{sT1}, s{sXb}, {(ks // 4) * 4096}')))
        g.append((COST['vload'], lambda: e(f'buffer_load_dwordx4 v[{r}:{r + 3}], v{VL16}, s[{sWS}:{sWS + 3}], s{sT1} offen offset:{(ks % 4) * 1024}', ('x', ks))))
        return g

    NPRE = opts.get('npre4', 1)
    for g in w_dma(0):
        for _, f in g: f()
    ST = SS
    for j in range(4):
        e(f'buffer_load_dwordx4 v[{ST + 4 * j}:{ST + 3 + 4 * j}], v{T + 6}, s[{sWS}:{sWS + 3}], s39 offen offset:{16 * j}', 'st')
    e(f's_lshl_b32 s{sT0}, s{sW}, 10')
    e(f's_add_u32 m0, s{sT0}, {LDS_MOD}')
    e(f's_add_u32 s{sT0}, s{sT0}, {WS_MOD2}')
    e(f'buffer_load_dwordx4 v{VL16}, s[{sWS}:{sWS + 3}], s{sT0} offen lds', ('wq', 0))
    for ks in range(4):
        for _, f in x_load(ks): f()
    for c in range(1, NPRE):
        for g in w_dma(c):
            for _, f in g: f()
        for ks in range(4 * c, 4 * c + 4):
            for _, f in x_load(ks): f()
    e(f'v_lshrrev_b32 v{T + 7}, 2, v{T + 2}')
    e(f'v_and_b32 v{T + 8}, 1, v{T + 1}')
    e(f'v_lshlrev_b32 v{T + 8}, 5, v{T + 8}')
    e(f'v_and_b32 v{T + 9}, 1, v{VLANE}')
    e(f'v_lshl_add_u32 v{T + 8}, v{T + 9}, 4, v{T + 8}')
    e(f'v_bfe_u32 v{T + 9}, v{VLANE}, 1, 1')
    e(f'v_lshl_add_u32 v{T + 8}, v{T + 9}, 3, v{T + 8}')
    e(f'v_lshl_add_u32 v{T + 8}, v{T + 7}, 8, v{T + 8}')
    e(f'v_lshl_add_u32 v{T + 8}, v{T + 4}, 11, v{T + 8}')
    for db in range(4):
        e(f'v_xor_b32 v{T + 9}, {db}, v{T + 7}')
        e(f'v_lshl_add_u32 v{WRA + db}, v{T + 9}, 6, v{T + 8}')
        e(f'v_add_u32 v{WRA + 4 + db}, 0x10000, v{WRA + db}')
    e(f'v_lshlrev_b32 v{VMD}, 6, v{T + 4}')
    e(f'v_add_u32 v{VMD}, {LDS_MOD}, v{VMD}')
    k.wait(vm=['st'])
    e(f's_mov_b32 s3, {f32(1.0 / 512)}')
    r = ST
    for j in range(1, 8):
        e(f'v_add_f32 v{r}, v{r}, v{r + 2 * j}')
        e(f'v_add_f32 v{r + 1}, v{r + 1}, v{r + 2 * j + 1}')
    e(f'v_mov_b32 v{r + 2}, v{r}')
    e(f'v_mov_b32 v{r + 3}, v{r + 1}')
    e(f'v_permlane32_swap_b32 v{r}, v{r + 2}')
    e(f'v_permlane32_swap_b32 v{r + 1}, v{r + 3}')
    e(f'v_add_f32 v{r}, v{r}, v{r + 2}')
    e(f'v_add_f32 v{r + 1}, v{r + 1}, v{r + 3}')
    e(f'v_mul_f32 v{r}, s3, v{r}')
    e(f'v_mul_f32 v{r + 1}, s3, v{r + 1}')
    e(f'v_fma_f32 v{r + 1}, -v{r}, v{r}, v{r + 1}')
    e(f'v_max_f32 v{r + 1}, 0, v{r + 1}')
    rbf(k, r, r)
    rbf(k, r + 1, r + 1)
    e(f'v_add_f32 v{r + 1}, {f32(1e-5)}, v{r + 1}')
    rbf(k, r + 1, r + 1)
    e(f'v_sqrt_f32 v{r + 1}, v{r + 1}')
    rbf(k, r + 1, r + 1)
    e(f'v_rcp_f32 v{RS}, v{r + 1}')
    e(f'v_mul_f32 v{NM}, v{r}, v{RS}')
    e(f'v_sub_f32 v{NM}, 0, v{NM}')

    def w_reads(ks):
        out = []
        c = ks // 4
        for nb in range(8):
            mat, db = nb // 4, nb % 4
            off = (c % 4) * 32768 + mat * 16384 + (ks % 4) * 4096
            base = WRA + (4 if off >= 65536 else 0) + db
            for t in range(2):
                r = WF + (ks % 2) * 32 + nb * 4 + t * 2
                out.append((COST['ds'], lambda r=r, base=base, t=t, off=off: e(f'ds_read_b64_tr_b16 a[{r}:{r + 1}], v{base} offset:{off % 65536 + t * 1024}', ('w', ks))))
        return out

    def ss_reads(ks):
        out = []
        for j in range(4):
            r = SS + (ks % 2) * 16 + 4 * j
            out.append((COST['ds'], lambda r=r, j=j: e(f'ds_read_b128 v[{r}:{r + 3}], v{VMD} offset:{ks * 128 + j * 16}', ('ss', ks))))
        return out

    def xform(ks):
        out = []
        sb = SS + (ks % 2) * 16
        x = xreg(ks)
        for p in range(4):
            t = FT + p * 2
            out.append((1, lambda p=p, t=t: e(f'v_lshlrev_b32 v{t}, 16, v{x + p}')))
            out.append((1, lambda p=p, t=t: e(f'v_and_b32 v{t + 1}, 0xffff0000, v{x + p}')))
            out.append((1, lambda t=t: e(f'v_fma_f32 v{t}, v{t}, v{RS}, v{NM}')))
            out.append((1, lambda t=t: e(f'v_fma_f32 v{t + 1}, v{t + 1}, v{RS}, v{NM}')))
            out.append((1, lambda p=p, t=t: e(f'v_fma_f32 v{t}, v{t}, v{sb + 2 * p}, v{sb + 8 + 2 * p}')))
            out.append((1, lambda p=p, t=t: e(f'v_fma_f32 v{t + 1}, v{t + 1}, v{sb + 2 * p + 1}, v{sb + 8 + 2 * p + 1}')))
            h = H + (ks % 2) * 4 + p
            out.append((1, lambda t=t, h=h: e(f'v_cvt_pk_bf16_f32 v{h}, v{t}, v{t + 1}')))
        return out

    todo = []
    for c in range(NPRE, 8):
        first = 0 if c < 4 else 4 * (c - 3)
        todo += [(first, g) for g in w_dma(c)]
        for ks in range(4 * c, 4 * c + 4):
            todo.append((ks - XD, x_load(ks)))
    RATE = opts.get('rate4', 5)
    if opts.get('t45', 1):
        e(f'v_lshlrev_b32 v{T + 10}, 7, v{VLANE}')
        e('s_lshr_b32 s40, s2, 3')
        e(f's_mul_i32 s40, s40, {7 * 1024}')
        e(f's_lshl_b32 s41, s{sW}, 18')
        e('s_add_u32 s40, s40, s41')
        e('s_and_b32 s41, s2, 1')
        e('s_lshl_b32 s41, s41, 20')
        e('s_add_u32 s40, s40, s41')
        e(f's_add_u32 s40, s40, {WS_W2T}')
        todo.append((0, [(COST['dma'], lambda: e(f'buffer_load_dword v{T + 12}, v{T + 10}, s[{sWS}:{sWS + 3}], s40 offen', 'touch'))]))

    stamp(k, 1)
    k.wait(vm=[('wq', 0)])
    e('s_barrier')
    stamp(k, 2)
    for _, f in ss_reads(0) + w_reads(0) + ss_reads(1): f()
    k.wait(vm=[('x', 0)], lg=[('ss', 0)])
    for _, f in xform(0): f()
    k.wait(lg=[('w', 0)])
    for ks in range(32):
        mf = []
        for nb in range(8):
            def m(nb=nb):
                acc = ACC + nb * 16
                c = '0' if ks == 0 else vr(acc, 16)
                e(f'v_mfma_f32_32x32x16_bf16 {vr(acc, 16)}, {ar(WF + (ks % 2) * 32 + nb * 4, 4)}, {vr(H + (ks % 2) * 4, 4)}, {c}')
            mf.append(m)
        fx = {}; st = []; caps = {}
        if ks + 1 < 32:
            newc = (ks + 1) % 4 == 0
            vmw = [('x', ks + 1)] + ([('wq', (ks + 1) // 4)] if newc else [])
            fx.setdefault(0, []).append((0, lambda: k.wait(vm=vmw, lg=[('ss', ks + 1)]), 'wait'))
            if newc:
                fx.setdefault(0, []).append((6, lambda: e('s_barrier'), 'bar'))
            g0 = 1 if newc else 0
            rd = []
            if ks + 2 < 32 and 'S' not in opts.get('y', ''):
                rd += ss_reads(ks + 2)
            if 'W' not in opts.get('y', ''):
                rd += w_reads(ks + 1)
            per = opts.get('dsper', 4)
            for i, it in enumerate(rd):
                fx.setdefault(g0 + i // per, []).append((it[0], it[1], 'ds'))
            st = xform(ks + 1) if 'T' not in opts.get('y', '') else []
            fx.setdefault(7, []).append((0, lambda: k.wait(lg=[('w', ks + 1)]), 'wait'))
        groups = []
        while todo and len(groups) < RATE and todo[0][0] <= ks:
            groups.append(todo.pop(0)[1])
        gl = sorted([6, 7, 5, 4, 3, 2][:len(groups)])
        for g, grp in zip(gl, groups):
            for it in grp[:-1]:
                fx.setdefault(g - 1, []).append((it[0], it[1], 'end'))
            fx.setdefault(g, []).append((grp[-1][0], grp[-1][1], 'dma'))
        schedule(k, mf, fx, st, caps=caps, last_gap=6, cap=opts.get('cap4', 8))
    assert not todo
    stamp(k, 3)
    e(f's_mov_b32 s3, {f32(-LOG2E)}')
    e(f's_add_u32 s{sT0}, s{sHb}, 4096')
    n = 0
    for j in range(4):
        for u in range(2):
            g = ACC + j * 16 + 8 * u
            up = ACC + (4 + j) * 16 + 8 * u
            t = XR + (n % 4) * 12; n += 1
            for i in range(8):
                e(f'v_mul_f32 v{t + i}, s3, v{g + i}')
            for i in range(8):
                e(f'v_exp_f32 v{t + i}, v{t + i}')
            for i in range(8):
                e(f'v_add_f32 v{t + i}, 1.0, v{t + i}')
            for i in range(8):
                e(f'v_rcp_f32 v{t + i}, v{t + i}')
            for i in range(8):
                e(f'v_mul_f32 v{g + i}, v{g + i}, v{t + i}')
            for i in range(8):
                e(f'v_mul_f32 v{g + i}, v{g + i}, v{up + i}')
            for i in range(4):
                e(f'v_cvt_pk_bf16_f32 v{t + 8 + i}, v{g + 2 * i}, v{g + 2 * i + 1}')
            kk = 2 * j + u
            so = sHb if kk < 4 else sT0
            e(f'buffer_store_dwordx4 v[{t + 8}:{t + 11}], v{VL16}, s[{sWS}:{sWS + 3}], s{so} offen offset:{(kk % 4) * 1024}{opts.get("hst", " sc1")}')
    stamp(k, 4)
    if STAMP:
        e(f'v_mov_b32 v0, v{T + 15}')
    stamp_flush(k, 5, sWS, 3)
    k.label(f'{name}_end')
    e('s_endpgm')
    return k, 'grid=(256,1,1) block=(256,1,1) lds=135168'


def build(opts=None):
    global STAMP
    opts = opts or {}
    STAMP = opts.get('stamp', False)
    for kk in COST:
        if 'c_' + kk in opts: COST[kk] = opts['c_' + kk]
    ks = [gen_prep(opts), gen_attn(opts), gen_gemm64('oproj_kernel', 'wo', opts), gen_ffn1(opts), gen_gemm64('ffn2_kernel', 'w2', opts)]
    if 'nop' in opts:
        nk = Kern('nop_kernel'); nk.e('s_endpgm')
        for pos in sorted(opts['nop'], reverse=True):
            ks.insert(pos, (nk, 'grid=(1,1,1) block=(64,1,1) lds=0'))
    hdr = open('adaLN_cond__mha_block_cached__glu_gated_swiglu__prompt.s.ref').read().split('\n')
    out = []
    for l in hdr:
        if l.startswith('; Override') or l.startswith('; grid=') or '@launch' in l or not l.startswith(';'):
            if not l.startswith(';'):
                break
            continue
        out.append(l)
    for k, launch in ks:
        for _ in range(1 + opts.get('dup_' + k.name[:4], 0)):
            out.append(f'; @launch kernel={k.name} {launch}')
    out.append('.amdgcn_target "amdgcn-amd-amdhsa--gfx950"')
    out.append('.text')
    uniq = []
    for x in ks:
        if all(x[0] is not y[0] for y in uniq): uniq.append(x)
    ks = sorted(uniq, key=lambda x: x[0].name == 'nop_kernel')
    for k, _ in ks:
        n = k.fix_hazards(verbose=opts.get('verbose', False))
        print(f'{k.name}: {len(k.ins)} instr, {n} hazard nop states, regs {k.max_regs()}', file=sys.stderr)
        out.append(f'.globl {k.name}')
        out.append('.p2align 8')
        out.append(f'.type {k.name},@function')
        out.append(f'{k.name}:')
        out.append(k.text())
    out.append('code_end:')
    errs = 0
    errs += ks[0][0].verify_path({})
    errs += ks[0][0].verify_path({'prep_ln': 1})
    errs += ks[1][0].verify_path({'attn_tail': [False, False, False, True], 'attn_copy': [True, True, True], 'attn_copy_st': [False, True], 'attn_copy_ret': [False, False, False], 'attn_copy_code': [False, False, True]})
    errs += ks[2][0].verify_path({'oproj_kernel_loop': 2})
    errs += ks[3][0].verify_path({})
    errs += ks[4][0].verify_path({})
    assert errs == 0, errs
    out.append('.section .rodata,"a"')
    for k, _ in ks:
        out.append('.p2align 6')
        out.append(descriptor(k))
    return '\n'.join(out)


if __name__ == '__main__':
    dst = sys.argv[1] if len(sys.argv) > 1 else 'adaLN_cond__mha_block_cached__glu_gated_swiglu__prompt.s'
    opts = {}
    for a in sys.argv[2:]:
        kk, _, v = a.partition('=')
        opts[kk] = eval(v) if v else True
    open(dst, 'w').write(build(opts))
```

```python
import sys, struct, math
from asmlib import *

A_X, A_K, A_V, A_WQ, A_WO, A_BX, A_W1, A_W3, A_W2, A_C, A_WMOD, A_OUT, A_DBG, A_WS = [8 * i for i in range(14)]
WS_MOD1 = 0
WS_GA = 4096
WS_MOD2 = 8192
WS_GB = 8192 + 4096
WS_XHAT = 0x10000
WS_O = 0x400000
WS_X1 = 0x1400000
WS_ST = 0x1600000
WS_HH = 0x1800000
WS_WOT = 0x2000000
WS_W2T = 0x2400000
WS_SIZE = 0x2800000

LOG2E = 1.4426950408889634


def f32(x):
    return '0x%08x' % struct.unpack('<I', struct.pack('<f', x))[0]


def srd(k, d, lo, hi, nbytes):
    k.e(f's_mov_b32 s{d}, s{lo}')
    k.e(f's_and_b32 s{d + 1}, s{hi}, 0xffff')
    k.e(f's_mov_b32 s{d + 2}, {nbytes}')
    k.e(f's_mov_b32 s{d + 3}, 0x00020000')


WS_STAMP = 0x1F00000
STAMP = False


def stamp(k, idx):
    if not STAMP:
        return
    k.e('s_waitcnt lgkmcnt(0)')
    k.e(f's_memtime s[{64 + 2 * idx}:{65 + 2 * idx}]')
    if idx == 0:
        k.e('s_memrealtime s[96:97]')
    k.e('s_waitcnt lgkmcnt(0)')


def stamp_flush(k, n, sws, kidx):
    if not STAMP:
        return
    e = k.e
    e('s_waitcnt vmcnt(0) lgkmcnt(0)')
    stamp(k, n)
    e('s_memrealtime s[98:99]')
    e('s_waitcnt lgkmcnt(0)')
    lab = k.newlabel('nost')
    e('v_readfirstlane_b32 s100, v0')
    e('s_cmp_lg_u32 s100, 0')
    e(f's_cbranch_scc1 {lab}')
    e('s_lshl_b32 s100, s2, 7')
    e(f's_add_u32 s100, s100, {WS_STAMP + kidx * 65536}')
    e('v_mov_b32 v1, 0')
    for i in range(n + 1):
        e(f'v_mov_b32 v2, s{64 + 2 * i}')
        e(f'buffer_store_dword v2, v1, s[{sws}:{sws + 3}], s100 offen offset:{4 * i}')
    e('v_mov_b32 v2, s96')
    e(f'buffer_store_dword v2, v1, s[{sws}:{sws + 3}], s100 offen offset:120')
    e('v_mov_b32 v2, s98')
    e(f'buffer_store_dword v2, v1, s[{sws}:{sws + 3}], s100 offen offset:124')
    k.label(lab)


def code_touch(k, v, sp, sidx, vlane, start, end):
    e = k.e
    lab = k.newlabel('pc')
    e(f's_getpc_b64 s[{sp}:{sp + 1}]')
    k.label(lab)
    e(f's_add_u32 s{sp}, s{sp}, {start}-{lab}')
    e(f's_addc_u32 s{sp + 1}, s{sp + 1}, 0')
    e(f's_lshl_b32 s{sidx}, s{sidx}, 13')
    e(f'v_lshlrev_b32 v{v}, 7, v{vlane}')
    e(f'v_add_u32 v{v}, s{sidx}, v{v}')
    e(f'v_min_u32 v{v}, {end}-{start}-4, v{v}')
    e(f'v_mov_b32 v{v + 1}, s{sp + 1}')
    e(f'v_add_co_u32 v{v}, vcc, s{sp}, v{v}')
    e(f'v_addc_co_u32 v{v + 1}, vcc, 0, v{v + 1}, vcc')
    e(f'global_load_dword v{v + 2}, v[{v}:{v + 1}], off', 'code')


def rbf(k, d, s):
    k.e(f'v_cvt_pk_bf16_f32 v{d}, 0, v{s}')


def allreduce16(k, v, t):
    for mod in ('quad_perm:[1,0,3,2]', 'quad_perm:[2,3,0,1]', 'row_half_mirror', 'row_mirror'):
        k.e(f'v_add_f32_dpp v{t}, v{v}, v{v} {mod} row_mask:0xf bank_mask:0xf')
        v, t = t, v


def gen_prep(opts):
    k = Kern('prep_kernel')
    e = k.e
    NMOD, NLN = 96, 128
    e(f's_cmp_ge_u32 s2, {NMOD + NLN}')
    e('s_cbranch_scc1 prep_end')
    stamp(k, 0)
    e(f's_load_dwordx2 s[4:5], s[0:1], {A_WS}')
    e(f's_load_dwordx2 s[6:7], s[0:1], {A_X}')
    e(f's_load_dwordx4 s[20:23], s[0:1], {A_C}')
    e(f's_load_dwordx4 s[36:39], s[0:1], {A_K}')
    e(f's_load_dwordx2 s[40:41], s[0:1], {A_WQ}')

    def prefetch(ln=False):
        if opts.get('cpf', 1):
            lab = k.newlabel('nocpf')
            e('v_lshrrev_b32 v72, 6, v0')
            e('v_and_b32 v73, 63, v0')
            e('v_readfirstlane_b32 s42, v72')
            e('s_lshr_b32 s43, s2, 3')
            e('s_lshl_b32 s43, s43, 2')
            e('s_add_u32 s43, s43, s42')
            e('s_cmp_ge_u32 s43, (code_end-attn_kernel+8191)/8192')
            e(f's_cbranch_scc1 {lab}')
            code_touch(k, 74, 44, 43, 73, 'attn_kernel', 'code_end')
            k.vmq.pop()
            k.label(lab)
        if opts.get('pf1', 2) == 2:
            if ln:
                e('v_lshrrev_b32 v72, 6, v0')
                e('v_and_b32 v73, 63, v0')
                e('v_readfirstlane_b32 s42, v72')
                e('v_lshrrev_b32 v77, 3, v73')
                e('v_and_b32 v78, 7, v73')
                e('v_lshlrev_b32 v77, 13, v77')
                e('v_lshl_add_u32 v77, v78, 7, v77')
                e(f's_sub_u32 s43, s2, {NMOD}')
                e('s_lshr_b32 s43, s43, 3')
                e('s_lshl_b32 s43, s43, 2')
                e('s_add_u32 s43, s43, s42')
                e('s_lshl_b32 s43, s43, 16')
                e('s_and_b32 s44, s2, 7')
                e('s_lshl_b32 s44, s44, 10')
                e('s_add_u32 s43, s43, s44')
                srd(k, 48, 40, 41, 512 * 8192)
                e('buffer_load_dword v78, v77, s[48:51], s43 offen', 'pf')
                if opts.get('pf64', 0):
                    e('buffer_load_dword v79, v77, s[48:51], s43 offen offset:64', 'pf')
            return
        if not opts.get('pf1', 2):
            return
        e('v_lshrrev_b32 v72, 6, v0')
        e('v_and_b32 v73, 63, v0')
        e('v_readfirstlane_b32 s42, v72')
        e('v_lshrrev_b32 v74, 4, v73')
        e('v_and_b32 v75, 15, v73')
        e('v_lshlrev_b32 v74, 13, v74')
        e('v_lshl_add_u32 v74, v75, 6, v74')
        e('v_lshlrev_b32 v73, 6, v73')
        e('s_lshr_b32 s43, s2, 3')
        e('s_lshl_b32 s43, s43, 2')
        e('s_add_u32 s43, s43, s42')
        e('s_and_b32 s44, s2, 7')
        srd(k, 48, 40, 41, 512 * 8192)
        e('s_lshl_b32 s45, s43, 15')
        e('s_lshl_b32 s46, s44, 10')
        e('s_add_u32 s45, s45, s46')
        e('buffer_load_dword v76, v74, s[48:51], s45 offen', 'pf')
        e(f's_add_u32 s45, s45, {112 * 32768}')
        e('buffer_load_dword v77, v74, s[48:51], s45 offen', 'pf')
        e('s_and_b32 s45, s43, 63')
        e('s_lshr_b32 s46, s45, 4')
        e('s_lshl_b32 s47, s44, 2')
        e('s_add_u32 s46, s46, s47')
        e('s_lshl_b32 s46, s46, 19')
        e('s_and_b32 s45, s45, 15')
        e('s_lshl_b32 s45, s45, 12')
        e('s_add_u32 s45, s45, s46')
        srd(k, 48, 36, 37, 32 * 524288)
        e('buffer_load_dword v78, v73, s[48:51], s45 offen', 'pf')
        srd(k, 48, 38, 39, 32 * 524288)
        e('buffer_load_dword v79, v73, s[48:51], s45 offen', 'pf')
    e(f's_cmp_ge_u32 s2, {NMOD}')
    e('s_cbranch_scc1 prep_ln')
    e('v_and_b32 v1, 3, v0')
    e('v_lshrrev_b32 v2, 2, v0')
    e('s_mov_b32 s3, 49152')
    e('v_mul_lo_u32 v3, v2, s3')
    e('v_lshl_add_u32 v3, v1, 4, v3')
    e('s_lshl_b32 s3, s2, 6')
    e('v_add_u32 v3, s3, v3')
    e('v_lshlrev_b32 v4, 4, v2')
    e('s_waitcnt lgkmcnt(0)')
    srd(k, 8, 20, 21, 1024)
    srd(k, 12, 22, 23, 512 * 6144)
    srd(k, 16, 4, 5, WS_SIZE)
    e('buffer_load_dwordx4 v[8:11], v4, s[8:11], 0 offen', 'c')
    for i in range(8):
        e(f's_mov_b32 s{24 + i}, {i * 6144}')
        e(f'buffer_load_dwordx4 v[{16 + 4 * i}:{19 + 4 * i}], v3, s[12:15], s{24 + i} offen', ('w', i))
    prefetch()
    k.wait(vm=['c'])
    e(f's_mov_b32 s3, {f32(-LOG2E)}')
    for i in range(8):
        src = 8 + i // 2
        if i % 2 == 0:
            e(f'v_lshlrev_b32 v{48 + i}, 16, v{src}')
        else:
            e(f'v_and_b32 v{48 + i}, 0xffff0000, v{src}')
    for i in range(8):
        e(f'v_mul_f32 v{56 + i}, s3, v{48 + i}')
    for i in range(8):
        e(f'v_exp_f32 v{56 + i}, v{56 + i}')
    for i in range(8):
        e(f'v_add_f32 v{56 + i}, 1.0, v{56 + i}')
    for i in range(8):
        e(f'v_rcp_f32 v{56 + i}, v{56 + i}')
    for i in range(8):
        e(f'v_mul_f32 v{48 + i}, v{48 + i}, v{56 + i}')
    for i in range(8):
        rbf(k, 48 + i, 48 + i)
    for i in range(8):
        k.wait(vm=[('w', i)])
        for p in range(4):
            w = 16 + 4 * i + p
            e(f'v_lshlrev_b32 v56, 16, v{w}')
            e(f'v_and_b32 v57, 0xffff0000, v{w}')
            if i == 0:
                e(f'v_mul_f32 v{64 + 2 * p}, v48, v56')
                e(f'v_mul_f32 v{65 + 2 * p}, v48, v57')
            else:
                e(f'v_fmac_f32 v{64 + 2 * p}, v{48 + i}, v56')
                e(f'v_fmac_f32 v{65 + 2 * p}, v{48 + i}, v57')
    e('v_lshlrev_b32 v5, 5, v0')
    e('ds_write_b128 v5, v[64:67]')
    e('ds_write_b128 v5, v[68:71] offset:16')
    e('s_waitcnt lgkmcnt(0)')
    e('s_barrier')
    e('v_and_b32 v6, 31, v0')
    e('v_lshrrev_b32 v7, 5, v0')
    e('v_lshlrev_b32 v5, 10, v7')
    e('v_lshl_add_u32 v5, v6, 2, v5')
    for i in range(8):
        e(f'ds_read_b32 v{16 + i}, v5 offset:{i * 128}')
    e('s_waitcnt lgkmcnt(0)')
    for i in range(1, 8):
        e(f'v_add_f32 v16, v16, v{16 + i}')
    e('v_lshlrev_b32 v5, 2, v0')
    e('ds_write_b32 v5, v16 offset:8192')
    e('s_waitcnt lgkmcnt(0)')
    e('s_barrier')
    e('v_cmp_gt_u32 vcc, 32, v0')
    e('s_and_saveexec_b64 s[32:33], vcc')
    e('s_cbranch_execz prep_end')
    for i in range(8):
        e(f'ds_read_b32 v{16 + i}, v5 offset:{8192 + i * 128}')
    e('s_waitcnt lgkmcnt(0)')
    for i in range(1, 8):
        e(f'v_add_f32 v16, v16, v{16 + i}')
    rbf(k, 16, 16)
    e('v_add_f32 v17, 1.0, v16')
    rbf(k, 17, 17)
    e('s_lshr_b32 s24, s2, 4')
    e('s_and_b32 s25, s2, 15')
    e('s_lshl_b32 s25, s25, 5')
    e('v_add_u32 v6, s25, v0')
    e('s_cmp_ge_u32 s24, 3')
    e('s_cselect_b32 s26, 8192, 0')
    e('s_cselect_b32 s27, 3, 0')
    e('s_sub_u32 s24, s24, s27')
    e('v_lshrrev_b32 v7, 3, v6')
    e('v_lshlrev_b32 v7, 6, v7')
    e('v_and_b32 v8, 7, v6')
    e('v_lshl_add_u32 v7, v8, 2, v7')
    e('v_lshlrev_b32 v8, 2, v6')
    stamp_flush(k, 1, 16, 0)
    e('s_cmp_eq_u32 s24, 2')
    e('s_cbranch_scc1 prep_gate')
    e('s_cmp_eq_u32 s24, 1')
    e('s_cbranch_scc1 prep_scale')
    e('buffer_store_dword v16, v7, s[16:19], s26 offen offset:32')
    e('s_endpgm')
    k.label('prep_scale')
    e('buffer_store_dword v17, v7, s[16:19], s26 offen')
    e('s_endpgm')
    k.label('prep_gate')
    e('s_add_u32 s26, s26, 4096')
    e('buffer_store_dword v16, v8, s[16:19], s26 offen')
    e('s_endpgm')
    k.label('prep_ln')
    e(f's_sub_u32 s3, s2, {NMOD}')
    e('s_lshl_b32 s3, s3, 4')
    e('v_lshrrev_b32 v1, 4, v0')
    e('v_add_u32 v1, s3, v1')
    e('v_and_b32 v2, 15, v0')
    e('v_lshlrev_b32 v3, 10, v1')
    e('v_lshl_add_u32 v3, v2, 4, v3')
    e('s_waitcnt lgkmcnt(0)')
    srd(k, 8, 6, 7, 2048 * 1024)
    srd(k, 16, 4, 5, WS_SIZE)
    for j in range(4):
        e(f'buffer_load_dwordx4 v[{8 + 4 * j}:{11 + 4 * j}], v3, s[8:11], 0 offen offset:{256 * j}', ('x', j))
    prefetch(True)
    e('v_lshrrev_b32 v4, 5, v1')
    e('v_lshlrev_b32 v4, 15, v4')
    e('v_lshrrev_b32 v5, 1, v2')
    e('v_lshl_add_u32 v4, v5, 10, v4')
    e('v_and_b32 v5, 1, v2')
    e('v_lshl_add_u32 v4, v5, 9, v4')
    e('v_and_b32 v5, 31, v1')
    e('v_lshl_add_u32 v4, v5, 4, v4')
    X = 32
    for j in range(4):
        k.wait(vm=[('x', j)])
        for p in range(4):
            e(f'v_lshlrev_b32 v{X + 8 * j + 2 * p}, 16, v{8 + 4 * j + p}')
            e(f'v_and_b32 v{X + 8 * j + 2 * p + 1}, 0xffff0000, v{8 + 4 * j + p}')
    e(f'v_add_f32 v24, v{X}, v{X + 1}')
    e(f'v_add_f32 v25, v{X + 2}, v{X + 3}')
    for i in range(4, 32):
        e(f'v_add_f32 v{24 + i % 2}, v{24 + i % 2}, v{X + i}')
    e('v_add_f32 v24, v24, v25')
    allreduce16(k, 24, 25)
    e(f's_mov_b32 s3, {f32(1.0 / 512)}')
    e('v_mul_f32 v24, s3, v24')
    for i in range(32):
        e(f'v_sub_f32 v{64 + i % 4}, v{X + i}, v24')
        if i < 2:
            e(f'v_mul_f32 v{26 + i}, v{64 + i % 4}, v{64 + i % 4}')
        else:
            e(f'v_fmac_f32 v{26 + i % 2}, v{64 + i % 4}, v{64 + i % 4}')
    e('v_add_f32 v26, v26, v27')
    allreduce16(k, 26, 27)
    e('v_mul_f32 v26, s3, v26')
    rbf(k, 24, 24)
    rbf(k, 26, 26)
    e(f'v_add_f32 v26, {f32(1e-5)}, v26')
    rbf(k, 26, 26)
    e('v_sqrt_f32 v26, v26')
    rbf(k, 26, 26)
    e('v_rcp_f32 v26, v26')
    e(f's_mov_b32 s24, {WS_XHAT}')
    for j in range(4):
        for i in range(8):
            r = X + 8 * j + i
            e(f'v_sub_f32 v{r}, v{r}, v24')
        for i in range(8):
            r = X + 8 * j + i
            rbf(k, r, r)
        for i in range(8):
            r = X + 8 * j + i
            e(f'v_mul_f32 v{r}, v{r}, v26')
        for i in range(8):
            r = X + 8 * j + i
            rbf(k, r, r)
        for p in range(4):
            r = X + 8 * j + 2 * p
            e(f'v_cvt_pkrtz_f16_f32 v{8 + 4 * j + p}, v{r}, v{r + 1}')
        e(f'buffer_store_dwordx4 v[{8 + 4 * j}:{11 + 4 * j}], v4, s[16:19], s24 offen')
        if j < 3:
            e(f's_add_u32 s24, s24, 8192')
    stamp_flush(k, 1, 16, 0)
    k.label('prep_end')
    e('s_endpgm')
    return k, f'grid=({NMOD + NLN},1,1) block=(256,1,1) lds=9216'


COST = {'exp': 2, 'valu': 1, 'ds': 1, 'dma': 2.5, 'salu': 1, 'vload': 2.5}
GAPCAP = 6
ORDER = {'wait': 0, 'bar': 1, 'dma': 2, 'ds': 3, 'end': 9}


def schedule(k, mfmas, fixed, stream, last_gap=None, cap=GAPCAP, caps=None):
    n = len(mfmas)
    if last_gap is None:
        last_gap = n - 1
    spare = []
    for g in range(n):
        c = sum(x[0] for x in fixed.get(g, []))
        cp = caps.get(g, cap) if caps else cap
        spare.append(max(cp - c, 0) if g <= last_gap else 0)
    tot_spare = sum(spare)
    tot = sum(x[0] for x in stream)
    si = 0
    done = 0.0
    cum = 0
    lastg = max([g for g in range(n) if spare[g] > 0] or [n - 1])
    for g in range(n):
        mfmas[g]()
        fx = sorted(fixed.get(g, []), key=lambda x: ORDER[x[2]])
        cum += spare[g]
        target = tot * cum / max(tot_spare, 1)
        mine = []
        while si < len(stream) and ((spare[g] > 0 and done + stream[si][0] * 0.5 <= target) or g >= lastg):
            mine.append(stream[si]); done += stream[si][0]; si += 1
        for x in fx:
            if x[2] != 'end': x[1]()
        for x in mine: x[1]()
        for x in fx:
            if x[2] == 'end': x[1]()
    assert si == len(stream)


def gemm256(k, P):
    e = k.e
    P['chunk_barrier'](0)
    for _, f in P['ss_reads'](0) + P['w_reads'](0) + P['ss_reads'](1): f()
    k.wait(vm=[('x', 0)], lg=[('ss', 0)])
    for _, f in P['xform'](0): f()
    k.wait(lg=[('w', 0)])
    for ks in range(32):
        mf = []
        for db in range(4):
            for qb in range(2):
                def m(db=db, qb=qb):
                    acc = P['ACC'] + (db * 2 + qb) * 16
                    wf = P['WF'] + (ks % 2) * 16 + db * 4
                    h = P['H'] + (ks % 2) * 8 + qb * 4
                    c = '0' if ks == 0 else ar(acc, 16)
                    e(f'v_mfma_f32_32x32x16_bf16 {ar(acc, 16)}, {ar(wf, 4)}, {vr(h, 4)}, {c}')
                mf.append(m)
        fx = {}
        st = []
        caps = {}
        if ks + 1 < 32:
            newc = (ks + 1) % 4 == 0
            if newc:
                fx.setdefault(0, []).append((0, lambda: k.wait(vm=[('wq', (ks + 1) // 4), ('x', ks + 1)], lg=[('ss', ks + 1)]), 'wait'))
                fx.setdefault(0, []).append((6, lambda: e('s_barrier'), 'bar'))
                caps[1] = 4
            else:
                fx.setdefault(0, []).append((0, lambda: k.wait(vm=[('x', ks + 1)], lg=[('ss', ks + 1)]), 'wait'))
            g0 = 1 if newc else 0
            rd = (P['ss_reads'](ks + 2) if ks + 2 < 32 else []) + P['w_reads'](ks + 1)
            for i, it in enumerate(rd):
                fx.setdefault(g0 + i // 3, []).append((it[0], it[1], 'ds'))
            st = P['xform'](ks + 1)
            fx.setdefault(7, []).append((0, lambda: k.wait(lg=[('w', ks + 1)]), 'wait'))
        groups = P['refill'](ks)
        gl = [5, 6, 4, 7, 3, 2][:len(groups)]
        gl.sort()
        for g, grp in zip(gl, groups):
            for it in grp[:-1]:
                fx.setdefault(g - 1, []).append((it[0], it[1], 'end'))
            fx.setdefault(g, []).append((grp[-1][0], grp[-1][1], 'dma'))
        schedule(k, mf, fx, st, caps=caps, last_gap=6, cap=7)


class G256:
    pass


BIAS = 100.0
THRESH = 2.0 ** 80


def gen_attn(opts):
    global BIAS
    BIAS = opts.get('bias', BIAS)
    k = Kern('attn_kernel')
    e = k.e
    sK, sV, sWQ, sWS = 8, 12, 16, 20
    sW, sW4K, sKoff, sVoff, sCnt, sThr, sXb, sT0, sT1, sOb = 32, 33, 34, 35, 36, 37, 38, 39, 40, 41
    sLink = 44
    S = [8, 40]; NEGM = 72; P = [104, 120]; Q = 136; ET = 200
    LS = [208, 209]; L = [210, 211]; TMP = 212
    KR = 216; VR = 224; DK = 228; DV = 232; VL16 = 233; VMD = 234; VLANE = 235
    O = 0; KF = 128; VF = 160
    LDS_K, LDS_V, LDS_MOD = 0, 65536, 131072

    e('s_cmp_ge_u32 s2, 256')
    e('s_cbranch_scc1 attn_end')
    stamp(k, 0)
    e(f's_load_dwordx4 s[4:7], s[0:1], {A_K}')
    e(f's_load_dwordx2 s[24:25], s[0:1], {A_WQ}')
    e(f's_load_dwordx2 s[26:27], s[0:1], {A_WS}')
    e(f's_load_dwordx2 s[48:49], s[0:1], {A_WO}')
    e(f's_load_dwordx4 s[52:55], s[0:1], {A_W3}')
    e(f's_load_dwordx2 s[50:51], s[0:1], {A_W1}')
    e('s_and_b32 s28, s2, 7')
    e('s_lshl_b32 s28, s28, 2')
    e('s_lshr_b32 s29, s2, 3')
    e('s_and_b32 s30, s29, 3')
    e('s_add_u32 s28, s28, s30')
    e('s_lshr_b32 s29, s29, 2')
    e('v_lshrrev_b32 v1, 6, v0')
    e(f'v_and_b32 v{VLANE}, 63, v0')
    e(f'v_readfirstlane_b32 s{sW}, v1')
    e(f'v_lshlrev_b32 v{VL16}, 4, v{VLANE}')
    e(f's_lshl_b32 s{sW4K}, s{sW}, 12')
    e(f'v_lshrrev_b32 v2, 4, v{VLANE}')
    e(f'v_and_b32 v3, 15, v{VLANE}')
    e(f'v_lshrrev_b32 v4, 5, v{VLANE}')
    e(f'v_and_b32 v5, 31, v{VLANE}')
    e('v_lshlrev_b32 v6, 2, v2')
    e('v_xor_b32 v6, v6, v3')
    e('v_lshlrev_b32 v6, 4, v6')
    e(f'v_lshl_add_u32 v{DV}, v2, 8, v6')
    e(f'v_add_u32 v{DV}, s{sW4K}, v{DV}')
    e(f's_lshl_b32 s3, s{sW}, 17')
    e('v_lshl_add_u32 v7, v2, 13, v6')
    e('v_add_u32 v7, s3, v7')
    e('s_waitcnt lgkmcnt(0)')
    e('s_lshl_b32 s3, s28, 19')
    e('s_add_u32 s4, s4, s3'); e('s_addc_u32 s5, s5, 0')
    e('s_add_u32 s6, s6, s3'); e('s_addc_u32 s7, s7, 0')
    srd(k, sK, 4, 5, 524288)
    srd(k, sV, 6, 7, 524288)
    e('s_lshl_b32 s3, s28, 8')
    e('s_add_u32 s24, s24, s3'); e('s_addc_u32 s25, s25, 0')
    e(f's_mov_b32 s{sWQ}, s24'); e(f's_and_b32 s{sWQ + 1}, s25, 0xffff')
    e(f's_sub_u32 s{sWQ + 2}, {512 * 8192}, s3'); e(f's_mov_b32 s{sWQ + 3}, 0x00020000')
    srd(k, sWS, 26, 27, WS_SIZE)
    e('s_lshl_b32 s3, s29, 3')
    e(f's_lshl_b32 s{sT0}, s{sW}, 1')
    e(f's_add_u32 s3, s3, s{sT0}')
    e(f's_lshl_b32 s{sXb}, s3, 15')
    e(f's_add_u32 s{sXb}, s{sXb}, {WS_XHAT}')
    e(f's_lshl_b32 s{sOb}, s3, 18')
    e(f's_lshl_b32 s{sT0}, s28, 13')
    e(f's_add_u32 s{sOb}, s{sOb}, s{sT0}')
    e(f's_add_u32 s{sOb}, s{sOb}, {WS_O}')

    XR = 8; H = 136; SS = 152; FT = 184; WRA = 200; WF = 128
    chunk_slot = [LDS_K, LDS_K + 16384, LDS_V, LDS_K + 32768, LDS_K + 49152, LDS_V + 16384, LDS_V + 32768, LDS_V + 49152]

    def wq_dma(c):
        out = []
        for p in range(4):
            g = []
            if p == 0:
                g.append((1, lambda: e(f's_add_u32 m0, s{sW4K}, {chunk_slot[c]}')))
            g.append((1, lambda p=p: e(f's_mov_b32 s{sT0}, {c * 524288 + p * (32768 - 1024)}')))
            g.append((COST['dma'], lambda p=p: e(f'buffer_load_dwordx4 v7, s[{sWQ}:{sWQ + 3}], s{sT0} offen offset:{p * 1024} lds', ('wq', c))))
            out.append(g)
        return out

    def xreg(ks, qb):
        return XR + (((ks // 4) % 4) * 8 + (ks % 4) * 2 + qb) * 4

    def x_load(ks, qb):
        c = ks // 4
        out = []
        so = (sT1, 43)[qb]
        if ks % 4 == 0:
            out.append((1, lambda: e(f's_add_u32 s{so}, s{sXb}, {qb * 32768 + c * 4096}')))
        r = xreg(ks, qb)
        out.append((COST['vload'], lambda: e(f'buffer_load_dwordx4 v[{r}:{r + 3}], v{VL16}, s[{sWS}:{sWS + 3}], s{so} offen offset:{(ks % 4) * 1024}', ('x', ks))))
        return out

    e(f's_lshl_b32 s{sT0}, s{sW}, 10')
    e(f's_add_u32 m0, s{sT0}, {LDS_MOD}')
    e(f's_add_u32 s{sT0}, s{sT0}, {WS_MOD1}')
    e(f'buffer_load_dwordx4 v{VL16}, s[{sWS}:{sWS + 3}], s{sT0} offen lds', ('wq', 0))
    NPRE = opts.get('npre', 1)
    NPX = opts.get('npx', NPRE)
    for c in range(max(NPRE, NPX)):
        for g in (wq_dma(c) if c < NPRE else []):
            for _, f in g: f()
        for ks in (range(4 * c, 4 * c + 4) if c < NPX else []):
            for qb in range(2):
                for _, f in x_load(ks, qb): f()
    e('v_lshrrev_b32 v236, 2, v3')
    e(f'v_and_b32 v237, 3, v{VLANE}')
    e('v_and_b32 v238, 1, v2')
    e('v_lshlrev_b32 v238, 5, v238')
    e('v_and_b32 v239, 1, v237')
    e('v_lshl_add_u32 v238, v239, 4, v238')
    e('v_lshrrev_b32 v239, 1, v237')
    e('v_lshl_add_u32 v238, v239, 3, v238')
    e('v_lshl_add_u32 v238, v236, 8, v238')
    for db in range(4):
        e(f'v_xor_b32 v239, {db}, v236')
        e(f'v_lshl_add_u32 v239, v239, 6, v238')
        e(f'v_lshl_add_u32 v{WRA + db}, v4, 11, v239')
        e(f'v_add_u32 v{WRA + 4 + db}, {LDS_V}, v{WRA + db}')
        e(f'v_lshl_add_u32 v{VR + db}, v4, 10, v239')
        e(f'v_add_u32 v{VR + db}, {LDS_V}, v{VR + db}')
    for ks in range(8):
        e(f'v_add_u32 v239, {2 * ks}, v4')
        e('v_xor_b32 v239, v239, v3')
        e('v_lshlrev_b32 v239, 4, v239')
        e(f'v_lshl_add_u32 v{KR + ks}, v5, 8, v239')
    for p in range(4):
        e(f'v_add_u32 v239, {4 * p}, v2')
        e('v_xor_b32 v239, v239, v3')
        e('v_lshlrev_b32 v239, 4, v239')
        e('v_lshl_add_u32 v239, v2, 8, v239')
        e(f'v_add_u32 v{DK + p}, s{sW4K}, v239')
    e(f'v_lshlrev_b32 v{VMD}, 6, v4')
    e(f'v_add_u32 v{VMD}, {LDS_MOD}, v{VMD}')
    e(f's_mov_b32 s{sThr}, {f32(THRESH)}')

    def w_reads(ks):
        c = ks // 4
        slot = chunk_slot[c]
        base = WRA + 4 if slot >= LDS_V else WRA
        off0 = (slot % 65536) + (ks % 4) * 16 * 256
        out = []
        for db in range(4):
            for t in range(2):
                r = WF + (ks % 2) * 16 + db * 4 + t * 2
                out.append((COST['ds'], lambda r=r, db=db, t=t: e(f'ds_read_b64_tr_b16 a[{r}:{r + 1}], v{base + db} offset:{off0 + t * 1024}', ('w', ks))))
        return out

    def ss_reads(ks):
        out = []
        for j in range(4):
            r = SS + (ks % 2) * 16 + 4 * j
            out.append((COST['ds'], lambda r=r, j=j: e(f'ds_read_b128 v[{r}:{r + 3}], v{VMD} offset:{ks * 128 + j * 16}', ('ss', ks))))
        return out

    def xform(ks):
        out = []
        sb = SS + (ks % 2) * 16
        for qb in range(2):
            x = xreg(ks, qb)
            for p in range(4):
                t = FT + (qb * 4 + p) * 2
                out.append((1, lambda x=x, p=p, t=t: e(f'v_fma_mix_f32 v{t}, v{x + p}, v{sb + 2 * p}, v{sb + 8 + 2 * p} op_sel_hi:[1,0,0]')))
                out.append((1, lambda x=x, p=p, t=t: e(f'v_fma_mix_f32 v{t + 1}, v{x + p}, v{sb + 2 * p + 1}, v{sb + 8 + 2 * p + 1} op_sel:[1,0,0] op_sel_hi:[1,0,0]')))
                h = H + (ks % 2) * 8 + qb * 4 + p
                out.append((1, lambda t=t, h=h: e(f'v_cvt_pk_bf16_f32 v{h}, v{t}, v{t + 1}')))
        return out

    def chunk_barrier(c):
        stamp(k, 1)
        k.wait(vm=[('wq', c)])
        e('s_barrier')
        stamp(k, 2)

    def kv_dma(which, tile):
        out = []
        slot = tile % 4
        for p in range(4):
            g = []
            if p == 0:
                g.append((1, lambda: e(f's_add_u32 m0, s{sW4K}, {(LDS_K if which == "K" else LDS_V) + slot * 16384}')))
                g.append((1, lambda: e(f's_mov_b32 s{sT0}, {tile * 16384}')))
            if which == 'K':
                g.append((COST['dma'], lambda p=p: e(f'buffer_load_dwordx4 v{DK + p}, s[{sK}:{sK + 3}], s{sT0} offen offset:{p * 1024} lds', ('K', tile))))
            else:
                g.append((COST['dma'], lambda p=p: e(f'buffer_load_dwordx4 v{DV}, s[{sV}:{sV + 3}], s{sT0} offen offset:{p * 1024} lds', ('V', tile))))
            out.append(g)
        return out

    todo = []
    WL = opts.get('wlead', 0)
    seq = []
    for c in range(NPRE, 8 + WL):
        if c - WL < NPRE + 0 and c < 8 and False:
            pass
    wn = NPRE; xn = NPX
    while wn < 8 or xn < 8:
        if wn < 8 and wn <= xn + WL:
            todo += [(0, g) for g in wq_dma(wn)]; wn += 1
        else:
            for ks in range(4 * xn, 4 * xn + 4):
                todo += [(ks - 16, x_load(ks, 0)), (ks - 16, x_load(ks, 1))]
            xn += 1
    todo += [(4, g) for g in kv_dma('K', 0)] + [(8, g) for g in kv_dma('K', 1)] + [(12, g) for g in kv_dma('V', 0)]
    RATE = opts.get('rate', 4)

    def refill(ks):
        out = []
        while todo and len(out) < RATE and todo[0][0] <= ks:
            out.append(todo.pop(0)[1])
        return out

    gemm256(k, dict(w_reads=w_reads, ss_reads=ss_reads, xform=xform, refill=refill, chunk_barrier=chunk_barrier,
                    ACC=O, WF=WF, H=H))
    assert not todo

    cq = LOG2E / math.sqrt(128.0)
    e(f's_mov_b32 s3, {f32(cq)}')
    stamp(k, 3)
    k.wait(vm=[('K', 0)])
    e('s_barrier')

    def k_read(blk, ks):
        tile = blk // 2
        off = LDS_K + (tile % 4) * 16384 + (blk % 2) * 8192
        r = KF + 4 * ks
        return lambda: e(f'ds_read_b128 a[{r}:{r + 3}], v{KR + ks} offset:{off}', ('kf', ks))

    def v_read(blk, i):
        u, db, t = i // 8, (i // 2) % 4, i % 2
        tile = blk // 2
        off = (tile % 4) * 16384 + ((blk % 2) * 32 + 16 * u + 8 * t) * 256
        r = VF + (u * 4 + db) * 4 + 2 * t
        return lambda: e(f'ds_read_b64_tr_b16 a[{r}:{r + 1}], v{VR + db} offset:{off}', ('vf', i))

    for ks in range(8):
        k_read(0, ks)()
    for g in kv_dma('K', 2):
        for _, f in g: f()
    for db in range(4):
        for qb in range(2):
            acc = O + (db * 2 + qb) * 16
            for i in range(16):
                e(f'v_accvgpr_read_b32 v{8 + i}, a{acc + i}')
            for i in range(16):
                e(f'v_mul_f32 v{8 + i}, s3, v{8 + i}')
            for i in range(8):
                u = i // 4
                e(f'v_cvt_pk_bf16_f32 v{Q + (qb * 8 + 2 * db + u) * 4 + i % 4}, v{8 + 2 * i}, v{9 + 2 * i}')
    for g in kv_dma('V', 1):
        for _, f in g: f()
    NPF = 2 if opts.get('pf', 1) else 0
    RETILE = opts.get('retile', 1)
    sPF = 42
    if NPF:
        for i, (sp, nb) in enumerate(((48, 4096 * 1024), (50, 512 * 3584), (52, 512 * 3584), (54, 1792 * 1024))):
            srd(k, 80 + 4 * i, sp, sp + 1, nb)
        e(f's_lshl_b32 s{sPF}, s2, 12')
        e(f's_lshl_b32 s{sT0}, s{sW}, 10')
        e(f's_add_u32 s{sPF}, s{sPF}, s{sT0}')
        e(f'v_lshrrev_b32 v236, 2, v{VLANE}')
        e(f'v_lshlrev_b32 v236, 6, v236')
        e(f'buffer_load_dword v240, v236, s[92:95], s{sPF} offen', 'pf')

    def qk_mfmas(blk, czero=False):
        out = []
        for ks in range(8):
            for qb in range(2):
                def m(ks=ks, qb=qb):
                    d = S[blk % 2] + 16 * qb
                    if ks == 0:
                        c = '0' if czero else vr(NEGM + 16 * qb, 16)
                    else:
                        c = vr(d, 16)
                    e(f'v_mfma_f32_32x32x16_bf16 {vr(d, 16)}, {ar(KF + 4 * ks, 4)}, {vr(Q + (qb * 8 + ks) * 4, 4)}, {c}')
                out.append(m)
        return out

    def pv_mfmas(blk, czero=False):
        out = []
        for u in range(2):
            for db in range(4):
                for qb in range(2):
                    def m(u=u, db=db, qb=qb):
                        acc = O + (db * 2 + qb) * 16
                        c = '0' if (czero and u == 0) else ar(acc, 16)
                        e(f'v_mfma_f32_32x32x16_bf16 {ar(acc, 16)}, {ar(VF + (u * 4 + db) * 4, 4)}, {vr(P[blk % 2] + (qb * 2 + u) * 4, 4)}, {c}')
                    out.append(m)
        return out

    def softmax_stream(blk):
        sb = S[blk % 2]; pb = P[blk % 2]
        items = []
        pend = []
        n = 0
        for qb in range(2):
            for i in range(8):
                t = ET + (n % 4) * 2
                r = sb + qb * 16 + 2 * i
                a = [(COST['exp'], lambda t=t, r=r: e(f'v_exp_f32 v{t}, v{r}')),
                     (COST['exp'], lambda t=t, r=r: e(f'v_exp_f32 v{t + 1}, v{r + 1}'))]
                if i == 0:
                    c = [(1, lambda t=t, qb=qb: e(f'v_add_f32 v{LS[qb]}, v{t}, v{t + 1}')), None]
                else:
                    c = [(1, lambda t=t, qb=qb: e(f'v_add_f32 v{LS[qb]}, v{LS[qb]}, v{t}')),
                         (1, lambda t=t, qb=qb: e(f'v_add_f32 v{LS[qb]}, v{LS[qb]}, v{t + 1}'))]
                if 'A' in opts.get('x', '') and i > 0:
                    c = [None, None]
                pd = pb + (qb * 2 + i // 4) * 4 + i % 4
                c.append((1, lambda t=t, pd=pd: e(f'v_cvt_pk_bf16_f32 v{pd}, v{t}, v{t + 1}')))
                items.append(a[0])
                if pend and pend[0]: items.append(pend[0])
                items.append(a[1])
                for x in pend[1:]:
                    if x: items.append(x)
                pend = c
                n += 1
        for x in pend:
            if x: items.append(x)
        return items

    stubs = []

    def check_items(blk):
        lab = k.newlabel('slow'); ret = k.newlabel('ret')
        stubs.append((lab, ret, blk % 2))

        def br():
            e(f's_cbranch_vccnz {lab}')
            k.label(ret)
        return [(1, lambda: e(f'v_max_f32 v{TMP}, v{LS[0]}, v{LS[1]}')),
                (1, lambda: e(f'v_cmp_lt_f32 vcc, s{sThr}, v{TMP}')),
                (1, br),
                (1, lambda: e(f'v_add_f32 v{L[0]}, v{L[0]}, v{LS[0]}')),
                (1, lambda: e(f'v_add_f32 v{L[1]}, v{L[1]}, v{LS[1]}'))]

    KFALL = [('kf', i) for i in range(8)]
    VFALL = [('vf', i) for i in range(16)]
    mf = qk_mfmas(0, czero=True)
    fx = {}
    for ks in range(8):
        fx.setdefault(min(2 * ks + 2, 15), []).append((COST['ds'], k_read(1, ks), 'ds'))
    k.wait(lg=KFALL)
    schedule(k, mf, fx, [])
    for qb in range(2):
        sb = S[0] + 16 * qb
        e(f'v_max3_f32 v{TMP}, v{sb}, v{sb + 1}, v{sb + 2}')
        for i in range(3, 15, 2):
            e(f'v_max3_f32 v{TMP}, v{TMP}, v{sb + i}, v{sb + i + 1}')
        e(f'v_max_f32 v{TMP}, v{TMP}, v{sb + 15}')
        e(f'v_mov_b32 v{TMP + 1}, v{TMP}')
        e(f'v_permlane32_swap_b32 v{TMP}, v{TMP + 1}')
        e(f'v_max_f32 v{TMP}, v{TMP}, v{TMP + 1}')
        e(f'v_add_f32 v{TMP}, {f32(BIAS)}, v{TMP}')
        e(f'v_sub_f32 v{NEGM + 16 * qb}, 0, v{TMP}')
        for i in range(1, 16):
            e(f'v_mov_b32 v{NEGM + 16 * qb + i}, v{NEGM + 16 * qb}')
        for i in range(16):
            e(f'v_sub_f32 v{sb + i}, v{sb + i}, v{TMP}')
        e(f'v_mov_b32 v{L[qb]}, 0')
    e(f's_mov_b32 s{sKoff}, {3 * 16384}')
    e(f's_mov_b32 s{sVoff}, {2 * 16384}')
    e(f's_mov_b32 s{sCnt}, 8')

    def step(b, do_qk=True, do_sm=True, do_pv=True, pv_zero=False, do_kread=True, do_dma=True):
        mf = []
        fx = {}
        nq = 0
        X = opts.get('x', '')
        if 'D' in X: do_dma = False
        if 'S' in X: do_sm = False
        if do_qk:
            mf += qk_mfmas(b + 1); nq = 16
        if do_pv:
            mf += pv_mfmas(b - 1, czero=pv_zero)
        n = len(mf)
        caps = {}
        full = do_qk and do_pv
        if do_pv and 'L' not in X:
            if do_qk:
                for i in range(16):
                    fx.setdefault(i // 2, []).append((COST['ds'], v_read(b - 1, i), 'ds'))
            else:
                for i in range(16):
                    v_read(b - 1, i)()
                k.wait(lg=VFALL)
        bar = b % 2 == 0 and do_kread and 'B' not in X
        gb = 15 if full else 0
        if bar:
            vmn = 8 + (NPF if b >= 2 else NPF // 2)

            def wt():
                t = k.wait_text(lg=VFALL) if full else None
                e(f's_waitcnt vmcnt({vmn})' + (t[9:] if t else ''))
            fx.setdefault(gb, []).append((0, wt, 'wait'))
            fx.setdefault(gb, []).append((6, lambda: e('s_barrier'), 'bar'))
            caps[gb + 1] = opts.get('cap_ab', 3)
        elif full:
            fx.setdefault(15, []).append((0, lambda: k.wait(lg=VFALL), 'wait'))
        if do_kread and 'L' not in X:
            for ks in range(8):
                g = (17 + ks // 2) if full else min(2 * ks + 2, 15)
                fx.setdefault(g, []).append((COST['ds'], k_read(b + 2, ks), 'ds'))
            if full:
                fx.setdefault(n - 1, []).append((0, lambda: k.wait(lg=KFALL), 'wait'))
        if do_dma:
            isK = (b % 2 == 0)
            I = (b + 2) // 2 if isK else (b + 1) // 2
            if isK:
                slot = LDS_K + ((I + 2) % 4) * 16384; so = sKoff
            else:
                slot = LDS_V + ((I + 1) % 4) * 16384; so = sVoff
            gs = [22, 24, 26, 28] if full else [3, 5, 7, 9]
            fx.setdefault(gs[0] - 1, []).append((1, lambda: e(f's_add_u32 m0, s{sW4K}, {slot}'), 'end'))
            for p in range(4):
                va = DK + p if isK else DV
                sd = sK if isK else sV
                fx.setdefault(gs[p], []).append((COST['dma'], lambda p=p, va=va, sd=sd: e(
                    f'buffer_load_dwordx4 v{va}, s[{sd}:{sd + 3}], s{so} offen offset:{p * 1024} lds', 'kv'), 'dma'))
            fx.setdefault(gs[3] + 1, []).append((1, lambda: e(f's_add_u32 s{so}, s{so}, 16384'), 'end'))
            if NPF and not isK:
                sp = 80 + 4 * ((b // 2) % 4)
                fx.setdefault(30, []).append((COST['dma'], lambda: e(f'buffer_load_dword v240, v236, s[{sp}:{sp + 3}], s{sPF} offen', 'pf'), 'dma'))
                if b % 8 == 7:
                    fx.setdefault(30, []).append((1, lambda: e(f's_add_u32 s{sPF}, s{sPF}, 0x100000'), 'end'))
        st = []
        if do_sm:
            st = softmax_stream(b)
        schedule(k, mf, fx, st, last_gap=n - 2, caps=caps)
        if do_kread and not full:
            k.wait(lg=KFALL)
        if do_sm:
            for _, f in check_items(b): f()

    stamp(k, 4)
    k.wait(lg=KFALL)
    step(0, do_pv=False)
    step(1, pv_zero=True)
    e('s_branch attn_ent')
    e('.p2align 6')
    k.label('attn_loop')
    for pos in range(8):
        if pos == 2:
            k.label('attn_ent')
        step(8 + pos)
        if pos == 6:
            e(f's_sub_u32 s{sCnt}, s{sCnt}, 1')
            e(f's_cmp_eq_u32 s{sCnt}, 0')
            e('s_cbranch_scc1 attn_tail')
            if RETILE:
                e(f's_cmp_le_u32 s{sCnt}, 3')
                e('s_cbranch_scc1 attn_copy')
                k.label('attn_copy_ret')
    e('s_branch attn_loop')
    k.label('attn_tail')
    k.lgq = []
    if opts.get('t23', 0):
        e(f'v_lshrrev_b32 v238, 2, v{VLANE}')
        e('v_lshlrev_b32 v238, 10, v238')
        e(f'v_and_b32 v239, 3, v{VLANE}')
        e('v_lshl_add_u32 v238, v239, 7, v238')
        e(f's_lshr_b32 s{sT0}, s2, 3')
        e(f's_lshl_b32 s{sT0}, s{sT0}, 2')
        e(f's_add_u32 s{sT0}, s{sT0}, s{sW}')
        e(f's_lshl_b32 s{sT0}, s{sT0}, 15')
        e(f's_and_b32 s{sT1}, s2, 1')
        e(f's_lshl_b32 s{sT1}, s{sT1}, 9')
        e(f's_add_u32 s{sT0}, s{sT0}, s{sT1}')
        e(f'buffer_load_dword v237, v238, s[80:83], s{sT0} offen', 'pf')
        e(f's_add_u32 s{sT0}, s{sT0}, 16384')
        e(f'buffer_load_dword v239, v238, s[80:83], s{sT0} offen', 'pf')
    step(63, do_qk=False, do_kread=False, do_dma=False)
    step(64, do_qk=False, do_sm=False, do_kread=False, do_dma=False)

    stamp(k, 5)
    for qb in range(2):
        e(f'v_mov_b32 v{TMP}, v{L[qb]}')
        e(f'v_permlane32_swap_b32 v{L[qb]}, v{TMP}')
        e(f'v_add_f32 v{L[qb]}, v{L[qb]}, v{TMP}')
        e(f'v_rcp_f32 v{L[qb]}, v{L[qb]}')
    n = 0
    for qb in range(2):
        e(f's_add_u32 s{sT0}, s{sOb}, {qb * 262144}')
        e(f's_add_u32 s{sT1}, s{sOb}, {qb * 262144 + 4096}')
        for db in range(4):
            for u in range(2):
                acc = O + (db * 2 + qb) * 16 + 8 * u
                t = 8 + (n % 4) * 16; n += 1
                for i in range(8):
                    e(f'v_accvgpr_read_b32 v{t + i}, a{acc + i}')
                for i in range(8):
                    e(f'v_mul_f32 v{t + i}, v{t + i}, v{L[qb]}')
                for i in range(4):
                    e(f'v_cvt_pk_bf16_f32 v{t + 8 + i}, v{t + 2 * i}, v{t + 2 * i + 1}')
                kk = 2 * db + u
                so = sT0 if kk < 4 else sT1
                e(f'buffer_store_dwordx4 v[{t + 8}:{t + 11}], v{VL16}, s[{sWS}:{sWS + 3}], s{so} offen offset:{(kk % 4) * 1024}{opts.get("ost", " sc1")}')
    stamp(k, 6)
    stamp_flush(k, 7, sWS, 1)
    k.label('attn_end')
    e('s_endpgm')

    if RETILE:
        CP = 192
        k.label('attn_copy')
        e(f's_cmp_eq_u32 s{sCnt}, 1')
        e('s_cbranch_scc1 attn_copy_code' if opts.get('cpf2', 0) else 's_cbranch_scc1 attn_copy_ret')
        e(f's_lshl_b32 s{sT0}, s2, 2')
        e(f's_add_u32 s{sT0}, s{sT0}, s{sW}')
        e(f's_cmp_eq_u32 s{sCnt}, 2')
        e('s_cbranch_scc1 attn_copy_st')
        e(f's_lshl_b32 s{sT1}, s{sT0}, 12')
        for i in range(4):
            e(f'buffer_load_dwordx4 a[{CP + 4 * i}:{CP + 4 * i + 3}], v{VL16}, s[80:83], s{sT1} offen offset:{i * 1024}')
        e(f's_lshl_b32 s{sT1}, s{sT0}, 11')
        for i in range(2):
            e(f'buffer_load_dwordx4 a[{CP + 16 + 4 * i}:{CP + 19 + 4 * i}], v{VL16}, s[92:95], s{sT1} offen offset:{i * 1024}')
        e('s_branch attn_copy_ret')
        k.label('attn_copy_st')
        e(f'v_lshrrev_b32 v238, 3, v{VLANE}')
        e(f'v_and_b32 v239, 7, v{VLANE}')
        e('v_lshlrev_b32 v239, 4, v239')
        e('v_lshl_add_u32 v237, v238, 19, v239')
        e('v_lshl_add_u32 v238, v238, 18, v239')
        e(f's_lshl_b32 s{sT1}, s{sT0}, 9')
        e(f's_add_u32 s{sT1}, s{sT1}, {WS_WOT}')
        for i in range(4):
            e(f'buffer_store_dwordx4 a[{CP + 4 * i}:{CP + 4 * i + 3}], v237, s[{sWS}:{sWS + 3}], s{sT1} offen offset:{i * 128} sc1')
        e(f's_lshl_b32 s{sT1}, s{sT0}, 8')
        e(f's_add_u32 s{sT1}, s{sT1}, {WS_W2T}')
        for i in range(2):
            e(f'buffer_store_dwordx4 a[{CP + 16 + 4 * i}:{CP + 19 + 4 * i}], v238, s[{sWS}:{sWS + 3}], s{sT1} offen offset:{i * 128} sc1')
        e('s_branch attn_copy_ret')
        if opts.get('cpf2', 0):
            k.label('attn_copy_code')
            e(f's_lshr_b32 s{sT0}, s2, 3')
            e(f's_lshl_b32 s{sT0}, s{sT0}, 2')
            e(f's_add_u32 s{sT0}, s{sT0}, s{sW}')
            e(f's_cmp_ge_u32 s{sT0}, (code_end-oproj_kernel+8191)/8192')
            e('s_cbranch_scc1 attn_copy_ret')
            code_touch(k, 242, 46, sT0, VLANE, 'oproj_kernel', 'code_end')
            e('s_branch attn_copy_ret')

    for lab, ret, par in stubs:
        k.label(lab)
        e(f's_call_b64 s[{sLink}:{sLink + 1}], attn_slow{par}')
        e(f's_branch {ret}')
    for par in range(2):
        k.label(f'attn_slow{par}')
        e('s_nop 15'); e('s_nop 15')
        D0 = [TMP + 2, TMP + 3]
        for qb in range(2):
            sb = S[par] + 16 * qb; sn = S[1 - par] + 16 * qb
            e(f'v_max3_f32 v{TMP}, v{sb}, v{sb + 1}, v{sb + 2}')
            for i in range(3, 15, 2):
                e(f'v_max3_f32 v{TMP}, v{TMP}, v{sb + i}, v{sb + i + 1}')
            e(f'v_max_f32 v{TMP}, v{TMP}, v{sb + 15}')
            e(f'v_mov_b32 v{TMP + 1}, v{TMP}')
            e(f'v_permlane32_swap_b32 v{TMP}, v{TMP + 1}')
            e(f'v_max_f32 v{TMP}, v{TMP}, v{TMP + 1}')
            e(f'v_add_f32 v{TMP}, {f32(BIAS)}, v{TMP}')
            e(f'v_max_f32 v{TMP}, 0, v{TMP}')
            e(f'v_sub_f32 v{TMP + 1}, 0, v{TMP}')
            e(f'v_exp_f32 v{D0[qb]}, v{TMP + 1}')
            for i in range(16):
                e(f'v_sub_f32 v{NEGM + 16 * qb + i}, v{NEGM + 16 * qb + i}, v{TMP}')
                e(f'v_sub_f32 v{sb + i}, v{sb + i}, v{TMP}')
                e(f'v_sub_f32 v{sn + i}, v{sn + i}, v{TMP}')
            e(f'v_mul_f32 v{L[qb]}, v{L[qb]}, v{D0[qb]}')
            for db in range(4):
                acc = O + (db * 2 + qb) * 16
                for i in range(16):
                    t = ET + i % 8
                    e(f'v_accvgpr_read_b32 v{t}, a{acc + i}')
                    e(f'v_mul_f32 v{t}, v{t}, v{D0[qb]}')
                    e(f'v_accvgpr_write_b32 a{acc + i}, v{t}')
        for _, f in softmax_stream(par): f()
        e('s_nop 3')
        e(f's_setpc_b64 s[{sLink}:{sLink + 1}]')
    return k, 'grid=(256,1,1) block=(256,1,1) lds=135168'


def gen_gemm64(name, which, opts):
    k = Kern(name)
    e = k.e
    NKS = 256 if which == 'wo' else 112
    KW = NKS // 4
    D = 16 if which == 'wo' else 14
    NIT = KW // D
    A_W = A_WO if which == 'wo' else A_W2
    WS_XIN = WS_O if which == 'wo' else WS_HH
    sW_, sWS, sG = 8, 12, 16
    sWv, sXo, sWo, sT0, sT1, sLb, sCnt, sXo1 = 32, 33, 34, 35, 36, 37, 38, 39
    ACC = 8
    XF = 72
    WFr = 200
    VL16, VDW, VWR = 216, 217, 218
    EP = 220
    LDS_ST = 131072
    e(f's_cmp_ge_u32 s2, 256')
    e(f's_cbranch_scc1 {name}_end')
    stamp(k, 0)
    e(f's_load_dwordx2 s[4:5], s[0:1], {A_W}')
    e(f's_load_dwordx2 s[6:7], s[0:1], {A_WS}')
    e(f's_load_dwordx2 s[24:25], s[0:1], {A_X if which == "wo" else A_OUT}')
    if which == 'wo':
        e(f's_load_dwordx4 s[56:59], s[0:1], {A_W1}')
    MAP = opts.get('map3' if which == 'wo' else 'map5', 84)
    if MAP == 84:
        e('s_bfe_u32 s28, s2, 0x20001')
        e('s_lshl_b32 s28, s28, 3')
        e('s_bfe_u32 s30, s2, 0x30003')
        e('s_add_u32 s28, s28, s30')
        e('s_and_b32 s29, s2, 1')
        e('s_lshl_b32 s29, s29, 2')
        e('s_lshr_b32 s30, s2, 6')
        e('s_add_u32 s29, s29, s30')
    elif MAP == 48:
        e('s_and_b32 s28, s2, 7')
        e('s_lshl_b32 s28, s28, 2')
        e('s_bfe_u32 s30, s2, 0x20003')
        e('s_add_u32 s28, s28, s30')
        e('s_lshr_b32 s29, s2, 5')
    else:
        e('s_bfe_u32 s28, s2, 0x10002')
        e('s_lshl_b32 s28, s28, 4')
        e('s_bfe_u32 s30, s2, 0x40003')
        e('s_add_u32 s28, s28, s30')
        e('s_and_b32 s29, s2, 3')
        e('s_lshl_b32 s29, s29, 1')
        e('s_lshr_b32 s30, s2, 7')
        e('s_add_u32 s29, s29, s30')
    e('v_lshrrev_b32 v1, 6, v0')
    e('v_and_b32 v2, 63, v0')
    e(f'v_readfirstlane_b32 s{sWv}, v1')
    e(f'v_lshlrev_b32 v{VL16}, 4, v2')
    RT = opts.get('retile', 1)
    e('v_lshrrev_b32 v3, 3, v2')
    e('v_and_b32 v4, 7, v2')
    e('v_lshlrev_b32 v5, 1, v3')
    e('v_and_b32 v5, 4, v5')
    e('v_xor_b32 v4, v4, v5')
    e('v_lshlrev_b32 v4, 4, v4')
    e(f'v_lshl_add_u32 v{VDW}, v3, {7 if RT else 10}, v4')
    e(f's_lshl_b32 s{sLb}, s{sWv}, 15')
    e(f's_mul_i32 s{sXo}, s28, {2 * NKS * 1024}')
    e(f's_mul_i32 s{sT0}, s{sWv}, {KW * 1024}')
    e(f's_add_u32 s{sXo}, s{sXo}, s{sT0}')
    e(f's_add_u32 s{sXo}, s{sXo}, {WS_XIN}')
    e(f's_add_u32 s{sXo1}, s{sXo}, {NKS * 1024}')
    if RT:
        e(f's_mul_i32 s{sWo}, s{sWv}, {KW * 2048}')
        e(f's_lshl_b32 s{sT0}, s29, {19 if which == "wo" else 18}')
        e(f's_add_u32 s{sWo}, s{sWo}, s{sT0}')
        e(f's_add_u32 s{sWo}, s{sWo}, {WS_WOT if which == "wo" else WS_W2T}')
        sW_ = sWS
    else:
        e(f's_mul_i32 s{sWo}, s{sWv}, {KW * 16 * 1024}')
        e(f's_lshl_b32 s{sT0}, s29, 7')
        e(f's_add_u32 s{sWo}, s{sWo}, s{sT0}')
        e(f's_add_u32 s{sT1}, s{sWo}, {8192 - 1024}')
    e(f's_lshr_b32 s40, s{sWv}, 1')
    e(f's_and_b32 s47, s{sWv}, 1')
    e('s_lshl_b32 s41, s29, 6')
    e('s_lshl_b32 s42, s40, 5')
    e('s_add_u32 s41, s41, s42')
    e('s_lshl_b32 s42, s28, 6')
    e('s_lshl_b32 s43, s47, 5')
    e('s_add_u32 s42, s42, s43')
    e('v_lshrrev_b32 v4, 5, v2')
    e('v_and_b32 v5, 31, v2')
    e('v_add_u32 v6, s42, v5')
    e('v_lshlrev_b32 v6, 10, v6')
    e('v_lshl_add_u32 v6, v4, 4, v6')
    e('s_lshl_b32 s43, s41, 1')
    e('v_add_u32 v6, s43, v6')
    e('s_lshl_b32 s43, s42, 10')
    e('s_lshl_b32 s44, s41, 6')
    e('s_add_u32 s43, s43, s44')
    e(f's_add_u32 s43, s43, {WS_X1}')
    e('v_lshlrev_b32 v7, 5, v4')
    e('s_lshl_b32 s44, s41, 2')
    e(f's_add_u32 s44, s44, {WS_GA if which == "wo" else WS_GB}')
    e('s_waitcnt lgkmcnt(0)')
    if not RT:
        srd(k, sW_, 4, 5, NKS * 16 * 1024)
    srd(k, sWS, 6, 7, WS_SIZE)
    srd(k, sG, 24, 25, 2048 * 1024)

    def loads(ks):
        sl = ks % D
        r0 = XF + sl * 8
        Z = opts.get('z', '')
        dd = _loads(ks, sl, r0)
        if 'W' in Z: dd['w0'] = dd['w1'] = lambda: None
        if 'X' in Z: dd['x0'] = dd['x1'] = lambda: None
        if 'F' in Z: dd['uw'] = lambda: None
        if 'G' in Z: dd['ux'] = lambda: None
        return dd

    def _loads(ks, sl, r0):
        XA = opts.get('xa', '') if which == 'wo' else ''
        WA = opts.get('wa', '') if which == 'wo' else ''
        return dict(
            m0=lambda: e(f's_add_u32 m0, s{sLb}, {sl * 2048}'),
            w0=lambda: e(f'buffer_load_dwordx4 v{VDW}, s[{sW_}:{sW_ + 3}], s{sWo} offen{WA} lds', ('g', ks)),
            w1=lambda: e(f'buffer_load_dwordx4 v{VDW}, s[{sW_}:{sW_ + 3}], s{sWo if RT else sT1} offen offset:1024{WA} lds', ('g', ks)),
            x0=lambda: e(f'buffer_load_dwordx4 v[{r0}:{r0 + 3}], v{VL16}, s[{sWS}:{sWS + 3}], s{sXo} offen offset:{(ks % 2) * 1024}{XA}', ('g', ks)),
            x1=lambda: e(f'buffer_load_dwordx4 v[{r0 + 4}:{r0 + 7}], v{VL16}, s[{sWS}:{sWS + 3}], s{sXo1} offen offset:{(ks % 2) * 1024}{XA}', ('g', ks)),
            uw=lambda: e(f's_add_u32 s{sWo}, s{sWo}, 2048') if RT else (e(f's_add_u32 s{sWo}, s{sWo}, 16384'), e(f's_add_u32 s{sT1}, s{sT1}, 16384')),
            ux=lambda: (e(f's_add_u32 s{sXo}, s{sXo}, 2048'), e(f's_add_u32 s{sXo1}, s{sXo1}, 2048')) if ks % 2 == 1 else None)

    for u in range(2):
        e(f'buffer_load_dwordx4 v[{EP + 8 * u}:{EP + 8 * u + 3}], v7, s[{sWS}:{sWS + 3}], s44 offen offset:{64 * u}', 'ep')
        e(f'buffer_load_dwordx4 v[{EP + 8 * u + 4}:{EP + 8 * u + 7}], v7, s[{sWS}:{sWS + 3}], s44 offen offset:{64 * u + 16}', 'ep')
        if which == 'wo':
            e(f'buffer_load_dwordx4 v[{EP + 16 + 4 * u}:{EP + 19 + 4 * u}], v6, s[{sG}:{sG + 3}], 0 offen offset:{32 * u}', 'ep')
        else:
            e(f'buffer_load_dwordx4 v[{EP + 16 + 4 * u}:{EP + 19 + 4 * u}], v{VL16}, s[{sWS}:{sWS + 3}], s43 offen offset:{1024 * u}', 'ep')
    for ks in range(D - 1):
        L = loads(ks)
        for nm in ('m0', 'x0', 'w0', 'w1', 'x1', 'uw', 'ux'):
            L[nm]()
        if ks == 1:
            e('v_bfe_u32 v3, v2, 2, 2')
            e('v_lshl_add_u32 v1, v4, 3, v3')
            e('v_lshlrev_b32 v1, 7, v1')
            e(f'v_bfe_u32 v{VWR}, v2, 4, 1')
            e(f'v_lshl_add_u32 v1, v{VWR}, 5, v1')
            e(f'v_and_b32 v{VWR}, 1, v2')
            e(f'v_lshl_add_u32 v1, v{VWR}, 4, v1')
            e(f'v_bfe_u32 v{VWR}, v2, 1, 1')
            e(f'v_lshl_add_u32 v1, v{VWR}, 3, v1')
            e(f'v_add_u32 v1, s{sLb}, v1')
            e('v_lshrrev_b32 v3, 1, v3')
            e(f'v_lshl_add_u32 v{VWR}, v3, 6, v1')
            e('v_xor_b32 v3, 1, v3')
            e(f'v_lshl_add_u32 v{VWR + 1}, v3, 6, v1')
            for i in range(64):
                e(f'v_mov_b32 v{ACC + i}, 0')
            e(f's_mov_b32 s{sCnt}, {NIT - 1}')

    def wreads(ks):
        sl = ks % D
        for nb in range(2):
            for t in range(2):
                r = WFr + (ks % 2) * 8 + nb * 4 + t * 2
                e(f'ds_read_b64_tr_b16 v[{r}:{r + 1}], v{VWR + nb} offset:{sl * 2048 + t * 512}', ('wf', ks))

    def kstep(ks, refill, last=False, extra=None):
        sl = ks % D
        L = loads(ks + D - 1) if refill else None
        for i in range(4):
            nb, mb = i // 2, i % 2
            acc = ACC + (nb * 2 + mb) * 16
            e(f'v_mfma_f32_32x32x16_bf16 {vr(acc, 16)}, {vr(WFr + (ks % 2) * 8 + nb * 4, 4)}, {vr(XF + (sl * 2 + mb) * 4, 4)}, {vr(acc, 16)}')
            if i == 0:
                if not last:
                    k.wait(vm=[('g', ks + 1)])
                    wreads(ks + 1)
                if L: L['m0']()
            elif i == 1 and L:
                L['x0'](); L['w0']()
            elif i == 2 and L:
                L['w1'](); L['x1'](); L['uw'](); L['ux']()
            elif i == 2 and extra:
                extra()
            elif i == 3 and not last:
                k.wait(lg=[('wf', ks + 1)])

    def touch_next():
        e('s_lshr_b32 s48, s2, 3')
        e('s_lshl_b32 s48, s48, 2')
        e(f's_add_u32 s48, s48, s{sWv}')
        e(f's_mul_i32 s48, s48, {4 * 3584}')
        e('s_bfe_u32 s49, s2, 0x20001')
        e('s_lshl_b32 s49, s49, 8')
        e('s_add_u32 s48, s48, s49')
        e('v_lshrrev_b32 v244, 4, v2')
        e('v_mul_u32_u24 v244, 3584, v244')
        e('v_bfe_u32 v245, v2, 2, 2')
        e('v_lshl_add_u32 v244, v245, 10, v244')
        e('v_and_b32 v245, 3, v2')
        e('v_lshl_add_u32 v244, v245, 6, v244')
        for sp in (56, 58):
            srd(k, 52, sp, sp + 1, 512 * 3584)
            e('buffer_load_dword v245, v244, s[52:55], s48 offen', 'touch')

    stamp(k, 1)
    k.wait(vm=[('g', 0)])
    wreads(0)
    k.wait(lg=[('wf', 0)])
    stamp(k, 2)
    if NIT > 1:
        k.label(f'{name}_loop')
        for ks in range(D):
            kstep(ks, True)
        if NIT > 2:
            e(f's_sub_u32 s{sCnt}, s{sCnt}, 1')
            e(f's_cmp_lg_u32 s{sCnt}, 0')
            e(f's_cbranch_scc1 {name}_loop')
    tch = touch_next if (which == 'wo' and opts.get('t34', 1)) else None
    for ks in range(D, 2 * D):
        kstep(ks, ks == D, last=(ks == 2 * D - 1), extra=tch if ks == D + 1 else None)
    stamp(k, 3)
    e(f'v_add_u32 v3, s{sLb}, v{VL16}')
    for qd in range(16):
        e(f'ds_write_b128 v3, v[{ACC + 4 * qd}:{ACC + 4 * qd + 3}] offset:{qd * 1024}')
    e('s_waitcnt lgkmcnt(0)')
    e('s_barrier')
    stamp(k, 4)
    e(f's_lshl_b32 s{sT0}, s{sWv}, 12')
    e(f'v_add_u32 v3, s{sT0}, v{VL16}')
    e(f'v_add_u32 v1, 0x10000, v3')
    RD = 72
    for w in range(4):
        a = 3 if w < 2 else 1
        for h in range(4):
            r = RD + (w * 4 + h) * 4
            e(f'ds_read_b128 v[{r}:{r + 3}], v{a} offset:{(w % 2) * 32768 + h * 1024}', ('r', w))
    for w in range(1, 4):
        k.wait(lg=[('r', w), ('r', 0)])
        for i in range(16):
            e(f'v_add_f32 v{RD + i}, v{RD + i}, v{RD + w * 16 + i}')
    k.wait(vm=['ep'])
    for i in range(16):
        rbf(k, RD + i, RD + i)
    for i in range(16):
        e(f'v_mul_f32 v{RD + i}, v{RD + i}, v{EP + i}')
    for i in range(16):
        rbf(k, RD + i, RD + i)
    for i in range(16):
        src = EP + 16 + i // 2
        if i % 2 == 0:
            e(f'v_lshlrev_b32 v{RD + 16 + i}, 16, v{src}')
        else:
            e(f'v_and_b32 v{RD + 16 + i}, 0xffff0000, v{src}')
    for i in range(16):
        e(f'v_add_f32 v{RD + i}, v{RD + i}, v{RD + 16 + i}')
    for i in range(8):
        e(f'v_cvt_pk_bf16_f32 v{RD + 32 + i}, v{RD + 2 * i}, v{RD + 2 * i + 1}')
    for u in range(2):
        if which == 'w2':
            e(f'buffer_store_dwordx4 v[{RD + 32 + 4 * u}:{RD + 35 + 4 * u}], v6, s[{sG}:{sG + 3}], 0 offen offset:{32 * u}')
        else:
            e(f'buffer_store_dwordx4 v[{RD + 32 + 4 * u}:{RD + 35 + 4 * u}], v{VL16}, s[{sWS}:{sWS + 3}], s43 offen offset:{1024 * u}')
    if which == 'wo':
        for i in range(16):
            src = RD + 32 + i // 2
            if i % 2 == 0:
                e(f'v_lshlrev_b32 v{RD + i}, 16, v{src}')
            else:
                e(f'v_and_b32 v{RD + i}, 0xffff0000, v{src}')
        A, B = RD + 16, RD + 17
        e(f'v_add_f32 v{A}, v{RD}, v{RD + 1}')
        e(f'v_mul_f32 v{B}, v{RD}, v{RD}')
        e(f'v_fmac_f32 v{B}, v{RD + 1}, v{RD + 1}')
        for i in range(2, 16):
            e(f'v_add_f32 v{A}, v{A}, v{RD + i}')
            e(f'v_fmac_f32 v{B}, v{RD + i}, v{RD + i}')
        e(f'v_mov_b32 v{A + 2}, v{A}')
        e(f'v_mov_b32 v{A + 3}, v{B}')
        e(f'v_permlane32_swap_b32 v{A}, v{A + 2}')
        e(f'v_permlane32_swap_b32 v{B}, v{A + 3}')
        e(f'v_add_f32 v{A}, v{A}, v{A + 2}')
        e(f'v_add_f32 v{B}, v{B}, v{A + 3}')
        e('s_lshl_b32 s45, s42, 7')
        e('s_lshr_b32 s46, s41, 2')
        e('s_add_u32 s45, s45, s46')
        e(f's_add_u32 s45, s45, {WS_ST}')
        e('v_lshlrev_b32 v3, 7, v5')
        e(f'buffer_store_dwordx2 v[{A}:{A + 1}], v3, s[{sWS}:{sWS + 3}], s45 offen')
    stamp_flush(k, 5, sWS, 2 if which == 'wo' else 4)
    k.label(f'{name}_end')
    e('s_endpgm')
    return k, 'grid=(256,1,1) block=(256,1,1) lds=131072'


def gen_ffn1(opts):
    k = Kern('ffn1_kernel')
    e = k.e
    name = 'ffn1'
    s1, s3_, sWS = 8, 12, 16
    sW, sT0, sT1, sXb, sWo, sHb, sW4K = 32, 33, 34, 35, 36, 37, 38
    ACC = 0
    XD = 12
    XR = 128
    H = 176
    SS = 184
    FT = 216
    WRA = 224
    VL16, VDW, VMD, VLANE, RS, NM = 232, 233, 234, 235, 236, 237
    T = 238
    WF = 0
    LDS_MOD = 131072
    e('s_bfe_u32 s29, s2, 0x20001')
    e('s_lshr_b32 s3, s2, 6')
    e('s_lshl_b32 s3, s3, 2')
    e('s_add_u32 s29, s29, s3')
    e('s_cmp_ge_u32 s29, 14')
    e(f's_cbranch_scc1 {name}_end')
    stamp(k, 0)
    e(f's_load_dwordx4 s[4:7], s[0:1], {A_W1}')
    e(f's_load_dwordx2 s[24:25], s[0:1], {A_WS}')
    e(f's_load_dwordx2 s[44:45], s[0:1], {A_W2}')
    e('s_and_b32 s28, s2, 1')
    e('s_lshl_b32 s28, s28, 3')
    e('s_bfe_u32 s3, s2, 0x30003')
    e('s_add_u32 s28, s28, s3')
    e(f'v_lshrrev_b32 v{T}, 6, v0')
    e(f'v_and_b32 v{VLANE}, 63, v0')
    e(f'v_mov_b32 v{T + 15}, v0')
    e(f'v_readfirstlane_b32 s{sW}, v{T}')
    e(f'v_lshlrev_b32 v{VL16}, 4, v{VLANE}')
    e(f'v_lshrrev_b32 v{T + 1}, 4, v{VLANE}')
    e(f'v_and_b32 v{T + 2}, 15, v{VLANE}')
    e(f'v_lshlrev_b32 v{T + 3}, 2, v{T + 1}')
    e(f'v_xor_b32 v{T + 3}, v{T + 3}, v{T + 2}')
    e(f'v_lshlrev_b32 v{T + 3}, 4, v{T + 3}')
    e(f'v_mul_u32_u24 v{T + 4}, 3584, v{T + 1}')
    e(f'v_add_u32 v{VDW}, v{T + 4}, v{T + 3}')
    e(f's_lshl_b32 s{sW4K}, s{sW}, 12')
    e('s_lshl_b32 s3, s28, 2')
    e(f's_add_u32 s3, s3, s{sW}')
    e(f's_lshl_b32 s{sXb}, s3, 15')
    e(f's_add_u32 s{sXb}, s{sXb}, {WS_X1}')
    e(f's_mul_i32 s{sHb}, s3, {112 * 1024}')
    e(f's_lshl_b32 s{sT0}, s29, 13')
    e(f's_add_u32 s{sHb}, s{sHb}, s{sT0}')
    e(f's_add_u32 s{sHb}, s{sHb}, {WS_HH}')
    e(f's_mul_i32 s{sWo}, s{sW}, {16 * 3584}')
    e(f's_lshl_b32 s{sT0}, s29, 8')
    e(f's_add_u32 s{sWo}, s{sWo}, s{sT0}')
    e(f'v_and_b32 v{T + 5}, 31, v{VLANE}')
    e(f'v_lshrrev_b32 v{T + 4}, 5, v{VLANE}')
    e(f'v_lshlrev_b32 v{T + 6}, 7, v{T + 5}')
    e(f'v_lshl_add_u32 v{T + 6}, v{T + 4}, 6, v{T + 6}')
    e(f's_lshl_b32 s39, s3, 12')
    e(f's_add_u32 s39, s39, {WS_ST}')
    e('s_waitcnt lgkmcnt(0)')
    srd(k, s1, 4, 5, 512 * 3584)
    srd(k, s3_, 6, 7, 512 * 3584)
    srd(k, sWS, 24, 25, WS_SIZE)

    def w_dma(c):
        out = []
        for mat, sd in enumerate((s1, s3_)):
            for p in range(4):
                g = []
                if p == 0:
                    g.append((1, lambda mat=mat: e(f's_add_u32 m0, s{sW4K}, {(c % 4) * 32768 + mat * 16384}')))
                g.append((1, lambda p=p: e(f's_add_u32 s{sT0}, s{sWo}, {c * 64 * 3584 + p * (4 * 3584 - 1024)}')))
                g.append((COST['dma'], lambda p=p, sd=sd: e(f'buffer_load_dwordx4 v{VDW}, s[{sd}:{sd + 3}], s{sT0} offen offset:{p * 1024} lds', ('wq', c))))
                out.append(g)
        return out

    def xreg(ks):
        return XR + (ks % XD) * 4

    def x_load(ks):
        r = xreg(ks)
        g = []
        if ks % 4 == 0:
            g.append((1, lambda: e(f's_add_u32 s{sT1}, s{sXb}, {(ks // 4) * 4096}')))
        g.append((COST['vload'], lambda: e(f'buffer_load_dwordx4 v[{r}:{r + 3}], v{VL16}, s[{sWS}:{sWS + 3}], s{sT1} offen offset:{(ks % 4) * 1024}', ('x', ks))))
        return g

    NPRE = opts.get('npre4', 1)
    for g in w_dma(0):
        for _, f in g: f()
    ST = SS
    for j in range(4):
        e(f'buffer_load_dwordx4 v[{ST + 4 * j}:{ST + 3 + 4 * j}], v{T + 6}, s[{sWS}:{sWS + 3}], s39 offen offset:{16 * j}', 'st')
    e(f's_lshl_b32 s{sT0}, s{sW}, 10')
    e(f's_add_u32 m0, s{sT0}, {LDS_MOD}')
    e(f's_add_u32 s{sT0}, s{sT0}, {WS_MOD2}')
    e(f'buffer_load_dwordx4 v{VL16}, s[{sWS}:{sWS + 3}], s{sT0} offen lds', ('wq', 0))
    for ks in range(4):
        for _, f in x_load(ks): f()
    NPX = opts.get('npx4', NPRE)
    for c in range(1, max(NPRE, NPX)):
        for g in (w_dma(c) if c < NPRE else []):
            for _, f in g: f()
        for ks in (range(4 * c, 4 * c + 4) if c < NPX else []):
            for _, f in x_load(ks): f()
    e(f'v_lshrrev_b32 v{T + 7}, 2, v{T + 2}')
    e(f'v_and_b32 v{T + 8}, 1, v{T + 1}')
    e(f'v_lshlrev_b32 v{T + 8}, 5, v{T + 8}')
    e(f'v_and_b32 v{T + 9}, 1, v{VLANE}')
    e(f'v_lshl_add_u32 v{T + 8}, v{T + 9}, 4, v{T + 8}')
    e(f'v_bfe_u32 v{T + 9}, v{VLANE}, 1, 1')
    e(f'v_lshl_add_u32 v{T + 8}, v{T + 9}, 3, v{T + 8}')
    e(f'v_lshl_add_u32 v{T + 8}, v{T + 7}, 8, v{T + 8}')
    e(f'v_lshl_add_u32 v{T + 8}, v{T + 4}, 11, v{T + 8}')
    for db in range(4):
        e(f'v_xor_b32 v{T + 9}, {db}, v{T + 7}')
        e(f'v_lshl_add_u32 v{WRA + db}, v{T + 9}, 6, v{T + 8}')
        e(f'v_add_u32 v{WRA + 4 + db}, 0x10000, v{WRA + db}')
    e(f'v_lshlrev_b32 v{VMD}, 6, v{T + 4}')
    e(f'v_add_u32 v{VMD}, {LDS_MOD}, v{VMD}')
    k.wait(vm=['st'])
    e(f's_mov_b32 s3, {f32(1.0 / 512)}')
    r = ST
    for j in range(1, 8):
        e(f'v_add_f32 v{r}, v{r}, v{r + 2 * j}')
        e(f'v_add_f32 v{r + 1}, v{r + 1}, v{r + 2 * j + 1}')
    e(f'v_mov_b32 v{r + 2}, v{r}')
    e(f'v_mov_b32 v{r + 3}, v{r + 1}')
    e(f'v_permlane32_swap_b32 v{r}, v{r + 2}')
    e(f'v_permlane32_swap_b32 v{r + 1}, v{r + 3}')
    e(f'v_add_f32 v{r}, v{r}, v{r + 2}')
    e(f'v_add_f32 v{r + 1}, v{r + 1}, v{r + 3}')
    e(f'v_mul_f32 v{r}, s3, v{r}')
    e(f'v_mul_f32 v{r + 1}, s3, v{r + 1}')
    e(f'v_fma_f32 v{r + 1}, -v{r}, v{r}, v{r + 1}')
    e(f'v_max_f32 v{r + 1}, 0, v{r + 1}')
    rbf(k, r, r)
    rbf(k, r + 1, r + 1)
    e(f'v_add_f32 v{r + 1}, {f32(1e-5)}, v{r + 1}')
    rbf(k, r + 1, r + 1)
    e(f'v_sqrt_f32 v{r + 1}, v{r + 1}')
    rbf(k, r + 1, r + 1)
    e(f'v_rcp_f32 v{RS}, v{r + 1}')
    e(f'v_mul_f32 v{NM}, v{r}, v{RS}')
    e(f'v_sub_f32 v{NM}, 0, v{NM}')

    def w_reads(ks):
        out = []
        c = ks // 4
        for nb in range(8):
            mat, db = nb // 4, nb % 4
            off = (c % 4) * 32768 + mat * 16384 + (ks % 4) * 4096
            base = WRA + (4 if off >= 65536 else 0) + db
            for t in range(2):
                r = WF + (ks % 2) * 32 + nb * 4 + t * 2
                out.append((COST['ds'], lambda r=r, base=base, t=t, off=off: e(f'ds_read_b64_tr_b16 a[{r}:{r + 1}], v{base} offset:{off % 65536 + t * 1024}', ('w', ks))))
        return out

    def ss_reads(ks):
        out = []
        for j in range(4):
            r = SS + (ks % 2) * 16 + 4 * j
            out.append((COST['ds'], lambda r=r, j=j: e(f'ds_read_b128 v[{r}:{r + 3}], v{VMD} offset:{ks * 128 + j * 16}', ('ss', ks))))
        return out

    def xform(ks):
        out = []
        sb = SS + (ks % 2) * 16
        x = xreg(ks)
        for p in range(4):
            t = FT + p * 2
            out.append((1, lambda p=p, t=t: e(f'v_lshlrev_b32 v{t}, 16, v{x + p}')))
            out.append((1, lambda p=p, t=t: e(f'v_and_b32 v{t + 1}, 0xffff0000, v{x + p}')))
            out.append((1, lambda t=t: e(f'v_fma_f32 v{t}, v{t}, v{RS}, v{NM}')))
            out.append((1, lambda t=t: e(f'v_fma_f32 v{t + 1}, v{t + 1}, v{RS}, v{NM}')))
            out.append((1, lambda p=p, t=t: e(f'v_fma_f32 v{t}, v{t}, v{sb + 2 * p}, v{sb + 8 + 2 * p}')))
            out.append((1, lambda p=p, t=t: e(f'v_fma_f32 v{t + 1}, v{t + 1}, v{sb + 2 * p + 1}, v{sb + 8 + 2 * p + 1}')))
            h = H + (ks % 2) * 4 + p
            out.append((1, lambda t=t, h=h: e(f'v_cvt_pk_bf16_f32 v{h}, v{t}, v{t + 1}')))
        return out

    todo = []
    WL = opts.get('wlead4', 0)
    wn = NPRE; xn = NPX
    while wn < 8 or xn < 8:
        if wn < 8 and wn <= xn + WL:
            first = 0 if wn < 4 else 4 * (wn - 3)
            todo += [(first, g) for g in w_dma(wn)]; wn += 1
        else:
            for ks in range(4 * xn, 4 * xn + 4):
                todo.append((ks - XD, x_load(ks)))
            xn += 1
    RATE = opts.get('rate4', 5)
    if opts.get('t45', 1):
        e(f'v_lshlrev_b32 v{T + 10}, 7, v{VLANE}')
        e('s_lshr_b32 s40, s2, 3')
        e(f's_mul_i32 s40, s40, {7 * 1024}')
        e(f's_lshl_b32 s41, s{sW}, 18')
        e('s_add_u32 s40, s40, s41')
        e('s_and_b32 s41, s2, 1')
        e('s_lshl_b32 s41, s41, 20')
        e('s_add_u32 s40, s40, s41')
        e(f's_add_u32 s40, s40, {WS_W2T}')
        todo.append((0, [(COST['dma'], lambda: e(f'buffer_load_dword v{T + 12}, v{T + 10}, s[{sWS}:{sWS + 3}], s40 offen', 'touch'))]))

    stamp(k, 1)
    k.wait(vm=[('wq', 0)])
    e('s_barrier')
    stamp(k, 2)
    for _, f in ss_reads(0) + w_reads(0) + ss_reads(1): f()
    k.wait(vm=[('x', 0)], lg=[('ss', 0)])
    for _, f in xform(0): f()
    k.wait(lg=[('w', 0)])
    for ks in range(32):
        mf = []
        for nb in range(8):
            def m(nb=nb):
                acc = ACC + nb * 16
                c = '0' if ks == 0 else vr(acc, 16)
                e(f'v_mfma_f32_32x32x16_bf16 {vr(acc, 16)}, {ar(WF + (ks % 2) * 32 + nb * 4, 4)}, {vr(H + (ks % 2) * 4, 4)}, {c}')
            mf.append(m)
        fx = {}; st = []; caps = {}
        if ks + 1 < 32:
            newc = (ks + 1) % 4 == 0
            vmw = [('x', ks + 1)] + ([('wq', (ks + 1) // 4)] if newc else [])
            fx.setdefault(0, []).append((0, lambda: k.wait(vm=vmw, lg=[('ss', ks + 1)]), 'wait'))
            if newc:
                fx.setdefault(0, []).append((6, lambda: e('s_barrier'), 'bar'))
            g0 = 1 if newc else 0
            rd = []
            if ks + 2 < 32 and 'S' not in opts.get('y', ''):
                rd += ss_reads(ks + 2)
            if 'W' not in opts.get('y', ''):
                rd += w_reads(ks + 1)
            per = opts.get('dsper', 4)
            for i, it in enumerate(rd):
                fx.setdefault(g0 + i // per, []).append((it[0], it[1], 'ds'))
            st = xform(ks + 1) if 'T' not in opts.get('y', '') else []
            fx.setdefault(7, []).append((0, lambda: k.wait(lg=[('w', ks + 1)]), 'wait'))
        groups = []
        while todo and len(groups) < RATE and todo[0][0] <= ks:
            groups.append(todo.pop(0)[1])
        gl = sorted([6, 7, 5, 4, 3, 2][:len(groups)])
        for g, grp in zip(gl, groups):
            for it in grp[:-1]:
                fx.setdefault(g - 1, []).append((it[0], it[1], 'end'))
            fx.setdefault(g, []).append((grp[-1][0], grp[-1][1], 'dma'))
        schedule(k, mf, fx, st, caps=caps, last_gap=6, cap=opts.get('cap4', 8))
    assert not todo
    stamp(k, 3)
    e(f's_mov_b32 s3, {f32(-LOG2E)}')
    e(f's_add_u32 s{sT0}, s{sHb}, 4096')
    n = 0
    for j in range(4):
        for u in range(2):
            g = ACC + j * 16 + 8 * u
            up = ACC + (4 + j) * 16 + 8 * u
            t = XR + (n % 4) * 12; n += 1
            for i in range(8):
                e(f'v_mul_f32 v{t + i}, s3, v{g + i}')
            for i in range(8):
                e(f'v_exp_f32 v{t + i}, v{t + i}')
            for i in range(8):
                e(f'v_add_f32 v{t + i}, 1.0, v{t + i}')
            for i in range(8):
                e(f'v_rcp_f32 v{t + i}, v{t + i}')
            for i in range(8):
                e(f'v_mul_f32 v{g + i}, v{g + i}, v{t + i}')
            for i in range(8):
                e(f'v_mul_f32 v{g + i}, v{g + i}, v{up + i}')
            for i in range(4):
                e(f'v_cvt_pk_bf16_f32 v{t + 8 + i}, v{g + 2 * i}, v{g + 2 * i + 1}')
            kk = 2 * j + u
            so = sHb if kk < 4 else sT0
            e(f'buffer_store_dwordx4 v[{t + 8}:{t + 11}], v{VL16}, s[{sWS}:{sWS + 3}], s{so} offen offset:{(kk % 4) * 1024}{opts.get("hst", " sc1")}')
    stamp(k, 4)
    if STAMP:
        e(f'v_mov_b32 v0, v{T + 15}')
    stamp_flush(k, 5, sWS, 3)
    k.label(f'{name}_end')
    e('s_endpgm')
    return k, 'grid=(256,1,1) block=(256,1,1) lds=135168'


def build(opts=None):
    global STAMP
    opts = opts or {}
    STAMP = opts.get('stamp', False)
    for kk in COST:
        if 'c_' + kk in opts: COST[kk] = opts['c_' + kk]
    ks = [gen_prep(opts), gen_attn(opts), gen_gemm64('oproj_kernel', 'wo', opts), gen_ffn1(opts), gen_gemm64('ffn2_kernel', 'w2', opts)]
    if 'nop' in opts:
        nk = Kern('nop_kernel'); nk.e('s_endpgm')
        for pos in sorted(opts['nop'], reverse=True):
            ks.insert(pos, (nk, 'grid=(1,1,1) block=(64,1,1) lds=0'))
    hdr = open('adaLN_cond__mha_block_cached__glu_gated_swiglu__prompt.s.ref').read().split('\n')
    out = []
    for l in hdr:
        if l.startswith('; Override') or l.startswith('; grid=') or '@launch' in l or not l.startswith(';'):
            if not l.startswith(';'):
                break
            continue
        out.append(l)
    for k, launch in ks:
        for _ in range(1 + opts.get('dup_' + k.name[:4], 0)):
            out.append(f'; @launch kernel={k.name} {launch}')
    out.append('.amdgcn_target "amdgcn-amd-amdhsa--gfx950"')
    out.append('.text')
    uniq = []
    for x in ks:
        if all(x[0] is not y[0] for y in uniq): uniq.append(x)
    ks = sorted(uniq, key=lambda x: x[0].name == 'nop_kernel')
    for k, _ in ks:
        n = k.fix_hazards(verbose=opts.get('verbose', False))
        print(f'{k.name}: {len(k.ins)} instr, {n} hazard nop states, regs {k.max_regs()}', file=sys.stderr)
        out.append(f'.globl {k.name}')
        out.append('.p2align 8')
        out.append(f'.type {k.name},@function')
        out.append(f'{k.name}:')
        out.append(k.text())
    out.append('code_end:')
    errs = 0
    errs += ks[0][0].verify_path({})
    errs += ks[0][0].verify_path({'prep_ln': 1})
    errs += ks[1][0].verify_path({'attn_tail': [False, False, False, True], 'attn_copy': [True, True, True], 'attn_copy_st': [False, True], 'attn_copy_ret': [False, False, False], 'attn_copy_code': [False, False, True]})
    errs += ks[2][0].verify_path({'oproj_kernel_loop': 2})
    errs += ks[3][0].verify_path({})
    errs += ks[4][0].verify_path({})
    assert errs == 0, errs
    out.append('.section .rodata,"a"')
    for k, _ in ks:
        out.append('.p2align 6')
        out.append(descriptor(k))
    return '\n'.join(out)


if __name__ == '__main__':
    dst = sys.argv[1] if len(sys.argv) > 1 else 'adaLN_cond__mha_block_cached__glu_gated_swiglu__prompt.s'
    opts = {}
    for a in sys.argv[2:]:
        kk, _, v = a.partition('=')
        opts[kk] = eval(v) if v else True
    open(dst, 'w').write(build(opts))
```

```python
import sys, struct, math
from asmlib import *

A_X, A_K, A_V, A_WQ, A_WO, A_BX, A_W1, A_W3, A_W2, A_C, A_WMOD, A_OUT, A_DBG, A_WS = [8 * i for i in range(14)]
WS_MOD1 = 0
WS_GA = 4096
WS_MOD2 = 8192
WS_GB = 8192 + 4096
WS_FA = 0x4000
WS_FB = 0x5000
WS_FDUMMY = 0x6000
WS_XHAT = 0x10000
WS_O = 0x400000
WS_X1 = 0x1400000
WS_ST = 0x1600000
WS_HH = 0x1800000
WS_WOT = 0x2000000
WS_W2T = 0x2400000
WS_SIZE = 0x2800000

LOG2E = 1.4426950408889634


def f32(x):
    return '0x%08x' % struct.unpack('<I', struct.pack('<f', x))[0]


def srd(k, d, lo, hi, nbytes):
    k.e(f's_mov_b32 s{d}, s{lo}')
    k.e(f's_and_b32 s{d + 1}, s{hi}, 0xffff')
    k.e(f's_mov_b32 s{d + 2}, {nbytes}')
    k.e(f's_mov_b32 s{d + 3}, 0x00020000')


WS_STAMP = 0x1F00000
STAMP = False


def stamp(k, idx):
    if not STAMP:
        return
    k.e('s_waitcnt lgkmcnt(0)')
    k.e(f's_memtime s[{64 + 2 * idx}:{65 + 2 * idx}]')
    if idx == 0:
        k.e('s_memrealtime s[96:97]')
    k.e('s_waitcnt lgkmcnt(0)')


def stamp_flush(k, n, sws, kidx):
    if not STAMP:
        return
    e = k.e
    e('s_waitcnt vmcnt(0) lgkmcnt(0)')
    stamp(k, n)
    e('s_memrealtime s[98:99]')
    e('s_waitcnt lgkmcnt(0)')
    lab = k.newlabel('nost')
    e('v_readfirstlane_b32 s100, v0')
    e('s_cmp_lg_u32 s100, 0')
    e(f's_cbranch_scc1 {lab}')
    e('s_lshl_b32 s100, s2, 7')
    e(f's_add_u32 s100, s100, {WS_STAMP + kidx * 65536}')
    e('v_mov_b32 v1, 0')
    for i in range(n + 1):
        e(f'v_mov_b32 v2, s{64 + 2 * i}')
        e(f'buffer_store_dword v2, v1, s[{sws}:{sws + 3}], s100 offen offset:{4 * i}')
    e('v_mov_b32 v2, s96')
    e(f'buffer_store_dword v2, v1, s[{sws}:{sws + 3}], s100 offen offset:120')
    e('v_mov_b32 v2, s98')
    e(f'buffer_store_dword v2, v1, s[{sws}:{sws + 3}], s100 offen offset:124')
    k.label(lab)


def code_touch(k, v, sp, sidx, vlane, start, end):
    e = k.e
    lab = k.newlabel('pc')
    e(f's_getpc_b64 s[{sp}:{sp + 1}]')
    k.label(lab)
    e(f's_add_u32 s{sp}, s{sp}, {start}-{lab}')
    e(f's_addc_u32 s{sp + 1}, s{sp + 1}, 0')
    e(f's_lshl_b32 s{sidx}, s{sidx}, 13')
    e(f'v_lshlrev_b32 v{v}, 7, v{vlane}')
    e(f'v_add_u32 v{v}, s{sidx}, v{v}')
    e(f'v_min_u32 v{v}, {end}-{start}-4, v{v}')
    e(f'v_mov_b32 v{v + 1}, s{sp + 1}')
    e(f'v_add_co_u32 v{v}, vcc, s{sp}, v{v}')
    e(f'v_addc_co_u32 v{v + 1}, vcc, 0, v{v + 1}, vcc')
    e(f'global_load_dword v{v + 2}, v[{v}:{v + 1}], off', 'code')


def rbf(k, d, s):
    k.e(f'v_cvt_pk_bf16_f32 v{d}, 0, v{s}')


def allreduce16(k, v, t):
    for mod in ('quad_perm:[1,0,3,2]', 'quad_perm:[2,3,0,1]', 'row_half_mirror', 'row_mirror'):
        k.e(f'v_add_f32_dpp v{t}, v{v}, v{v} {mod} row_mask:0xf bank_mask:0xf')
        v, t = t, v


def gen_prep(opts):
    k = Kern('prep_kernel')
    e = k.e
    NMOD, NLN = 96, 128
    e(f's_cmp_ge_u32 s2, {NMOD + NLN}')
    e('s_cbranch_scc1 prep_end')
    stamp(k, 0)
    e(f's_load_dwordx2 s[4:5], s[0:1], {A_WS}')
    e(f's_load_dwordx2 s[6:7], s[0:1], {A_X}')
    e(f's_load_dwordx4 s[20:23], s[0:1], {A_C}')
    e(f's_load_dwordx4 s[36:39], s[0:1], {A_K}')
    e(f's_load_dwordx2 s[40:41], s[0:1], {A_WQ}')

    def prefetch(ln=False):
        if opts.get('cpf', 1):
            lab = k.newlabel('nocpf')
            e('v_lshrrev_b32 v72, 6, v0')
            e('v_and_b32 v73, 63, v0')
            e('v_readfirstlane_b32 s42, v72')
            e('s_lshr_b32 s43, s2, 3')
            e('s_lshl_b32 s43, s43, 2')
            e('s_add_u32 s43, s43, s42')
            e('s_cmp_ge_u32 s43, (code_end-attn_kernel+8191)/8192')
            e(f's_cbranch_scc1 {lab}')
            code_touch(k, 74, 44, 43, 73, 'attn_kernel', 'code_end')
            k.vmq.pop()
            k.label(lab)
        if opts.get('pf1', 2) == 2:
            if ln:
                e('v_lshrrev_b32 v72, 6, v0')
                e('v_and_b32 v73, 63, v0')
                e('v_readfirstlane_b32 s42, v72')
                e('v_lshrrev_b32 v77, 3, v73')
                e('v_and_b32 v78, 7, v73')
                e('v_lshlrev_b32 v77, 13, v77')
                e('v_lshl_add_u32 v77, v78, 7, v77')
                e(f's_sub_u32 s43, s2, {NMOD}')
                e('s_lshr_b32 s43, s43, 3')
                e('s_lshl_b32 s43, s43, 2')
                e('s_add_u32 s43, s43, s42')
                e('s_lshl_b32 s43, s43, 16')
                e('s_and_b32 s44, s2, 7')
                e('s_lshl_b32 s44, s44, 10')
                e('s_add_u32 s43, s43, s44')
                srd(k, 48, 40, 41, 512 * 8192)
                e('buffer_load_dword v78, v77, s[48:51], s43 offen', 'pf')
                if opts.get('pf64', 0):
                    e('buffer_load_dword v79, v77, s[48:51], s43 offen offset:64', 'pf')
            return
        if not opts.get('pf1', 2):
            return
        e('v_lshrrev_b32 v72, 6, v0')
        e('v_and_b32 v73, 63, v0')
        e('v_readfirstlane_b32 s42, v72')
        e('v_lshrrev_b32 v74, 4, v73')
        e('v_and_b32 v75, 15, v73')
        e('v_lshlrev_b32 v74, 13, v74')
        e('v_lshl_add_u32 v74, v75, 6, v74')
        e('v_lshlrev_b32 v73, 6, v73')
        e('s_lshr_b32 s43, s2, 3')
        e('s_lshl_b32 s43, s43, 2')
        e('s_add_u32 s43, s43, s42')
        e('s_and_b32 s44, s2, 7')
        srd(k, 48, 40, 41, 512 * 8192)
        e('s_lshl_b32 s45, s43, 15')
        e('s_lshl_b32 s46, s44, 10')
        e('s_add_u32 s45, s45, s46')
        e('buffer_load_dword v76, v74, s[48:51], s45 offen', 'pf')
        e(f's_add_u32 s45, s45, {112 * 32768}')
        e('buffer_load_dword v77, v74, s[48:51], s45 offen', 'pf')
        e('s_and_b32 s45, s43, 63')
        e('s_lshr_b32 s46, s45, 4')
        e('s_lshl_b32 s47, s44, 2')
        e('s_add_u32 s46, s46, s47')
        e('s_lshl_b32 s46, s46, 19')
        e('s_and_b32 s45, s45, 15')
        e('s_lshl_b32 s45, s45, 12')
        e('s_add_u32 s45, s45, s46')
        srd(k, 48, 36, 37, 32 * 524288)
        e('buffer_load_dword v78, v73, s[48:51], s45 offen', 'pf')
        srd(k, 48, 38, 39, 32 * 524288)
        e('buffer_load_dword v79, v73, s[48:51], s45 offen', 'pf')
    e(f's_cmp_ge_u32 s2, {NMOD}')
    e('s_cbranch_scc1 prep_ln')
    e('v_and_b32 v1, 3, v0')
    e('v_lshrrev_b32 v2, 2, v0')
    e('s_mov_b32 s3, 49152')
    e('v_mul_lo_u32 v3, v2, s3')
    e('v_lshl_add_u32 v3, v1, 4, v3')
    e('s_lshl_b32 s3, s2, 6')
    e('v_add_u32 v3, s3, v3')
    e('v_lshlrev_b32 v4, 4, v2')
    e('s_waitcnt lgkmcnt(0)')
    srd(k, 8, 20, 21, 1024)
    srd(k, 12, 22, 23, 512 * 6144)
    srd(k, 16, 4, 5, WS_SIZE)
    e('buffer_load_dwordx4 v[8:11], v4, s[8:11], 0 offen', 'c')
    for i in range(8):
        e(f's_mov_b32 s{24 + i}, {i * 6144}')
        e(f'buffer_load_dwordx4 v[{16 + 4 * i}:{19 + 4 * i}], v3, s[12:15], s{24 + i} offen', ('w', i))
    prefetch()
    k.wait(vm=['c'])
    e(f's_mov_b32 s3, {f32(-LOG2E)}')
    for i in range(8):
        src = 8 + i // 2
        if i % 2 == 0:
            e(f'v_lshlrev_b32 v{48 + i}, 16, v{src}')
        else:
            e(f'v_and_b32 v{48 + i}, 0xffff0000, v{src}')
    for i in range(8):
        e(f'v_mul_f32 v{56 + i}, s3, v{48 + i}')
    for i in range(8):
        e(f'v_exp_f32 v{56 + i}, v{56 + i}')
    for i in range(8):
        e(f'v_add_f32 v{56 + i}, 1.0, v{56 + i}')
    for i in range(8):
        e(f'v_rcp_f32 v{56 + i}, v{56 + i}')
    for i in range(8):
        e(f'v_mul_f32 v{48 + i}, v{48 + i}, v{56 + i}')
    for i in range(8):
        rbf(k, 48 + i, 48 + i)
    for i in range(8):
        k.wait(vm=[('w', i)])
        for p in range(4):
            w = 16 + 4 * i + p
            e(f'v_lshlrev_b32 v56, 16, v{w}')
            e(f'v_and_b32 v57, 0xffff0000, v{w}')
            if i == 0:
                e(f'v_mul_f32 v{64 + 2 * p}, v48, v56')
                e(f'v_mul_f32 v{65 + 2 * p}, v48, v57')
            else:
                e(f'v_fmac_f32 v{64 + 2 * p}, v{48 + i}, v56')
                e(f'v_fmac_f32 v{65 + 2 * p}, v{48 + i}, v57')
    e('v_lshlrev_b32 v5, 5, v0')
    e('ds_write_b128 v5, v[64:67]')
    e('ds_write_b128 v5, v[68:71] offset:16')
    e('s_waitcnt lgkmcnt(0)')
    e('s_barrier')
    e('v_and_b32 v6, 31, v0')
    e('v_lshrrev_b32 v7, 5, v0')
    e('v_lshlrev_b32 v5, 10, v7')
    e('v_lshl_add_u32 v5, v6, 2, v5')
    for i in range(8):
        e(f'ds_read_b32 v{16 + i}, v5 offset:{i * 128}')
    e('s_waitcnt lgkmcnt(0)')
    for i in range(1, 8):
        e(f'v_add_f32 v16, v16, v{16 + i}')
    e('v_lshlrev_b32 v5, 2, v0')
    e('ds_write_b32 v5, v16 offset:8192')
    e('s_waitcnt lgkmcnt(0)')
    e('s_barrier')
    e('v_cmp_gt_u32 vcc, 32, v0')
    e('s_and_saveexec_b64 s[32:33], vcc')
    e('s_cbranch_execz prep_end')
    for i in range(8):
        e(f'ds_read_b32 v{16 + i}, v5 offset:{8192 + i * 128}')
    e('s_waitcnt lgkmcnt(0)')
    for i in range(1, 8):
        e(f'v_add_f32 v16, v16, v{16 + i}')
    rbf(k, 16, 16)
    e('v_add_f32 v17, 1.0, v16')
    rbf(k, 17, 17)
    e('s_lshr_b32 s24, s2, 4')
    e('s_and_b32 s25, s2, 15')
    e('s_lshl_b32 s25, s25, 5')
    e('v_add_u32 v6, s25, v0')
    e('s_cmp_ge_u32 s24, 3')
    e('s_cselect_b32 s26, 8192, 0')
    e('s_cselect_b32 s27, 3, 0')
    e('s_sub_u32 s24, s24, s27')
    e('v_lshrrev_b32 v7, 3, v6')
    e('v_lshlrev_b32 v7, 6, v7')
    e('v_and_b32 v8, 7, v6')
    e('v_lshl_add_u32 v7, v8, 2, v7')
    e('v_lshlrev_b32 v8, 2, v6')
    stamp_flush(k, 1, 16, 0)
    e('s_cmp_eq_u32 s24, 2')
    e('s_cbranch_scc1 prep_gate')
    e('s_cmp_eq_u32 s24, 1')
    e('s_cbranch_scc1 prep_scale')
    e('buffer_store_dword v16, v7, s[16:19], s26 offen offset:32')
    e('s_endpgm')
    k.label('prep_scale')
    e('buffer_store_dword v17, v7, s[16:19], s26 offen')
    e('s_endpgm')
    k.label('prep_gate')
    e('s_add_u32 s26, s26, 4096')
    e('buffer_store_dword v16, v8, s[16:19], s26 offen')
    e('s_endpgm')
    k.label('prep_ln')
    e(f's_sub_u32 s3, s2, {NMOD}')
    e('s_lshl_b32 s3, s3, 4')
    e('v_lshrrev_b32 v1, 4, v0')
    e('v_add_u32 v1, s3, v1')
    e('v_and_b32 v2, 15, v0')
    e('v_lshlrev_b32 v3, 10, v1')
    e('v_lshl_add_u32 v3, v2, 4, v3')
    e('s_waitcnt lgkmcnt(0)')
    srd(k, 8, 6, 7, 2048 * 1024)
    srd(k, 16, 4, 5, WS_SIZE)
    for j in range(4):
        e(f'buffer_load_dwordx4 v[{8 + 4 * j}:{11 + 4 * j}], v3, s[8:11], 0 offen offset:{256 * j}', ('x', j))
    prefetch(True)
    e(f's_sub_u32 s43, s2, {NMOD}')
    e('s_cmp_ge_u32 s43, 8')
    e('s_cbranch_scc1 prep_nofl')
    e('s_lshl_b32 s43, s43, 10')
    e(f's_add_u32 s43, s43, {WS_FA}')
    e('v_lshlrev_b32 v72, 2, v0')
    e('v_mov_b32 v73, 0')
    e('buffer_store_dword v73, v72, s[16:19], s43 offen')
    k.vmq.pop()
    k.label('prep_nofl')
    e('v_lshrrev_b32 v4, 5, v1')
    e('v_lshlrev_b32 v4, 15, v4')
    e('v_lshrrev_b32 v5, 1, v2')
    e('v_lshl_add_u32 v4, v5, 10, v4')
    e('v_and_b32 v5, 1, v2')
    e('v_lshl_add_u32 v4, v5, 9, v4')
    e('v_and_b32 v5, 31, v1')
    e('v_lshl_add_u32 v4, v5, 4, v4')
    X = 32
    for j in range(4):
        k.wait(vm=[('x', j)])
        for p in range(4):
            e(f'v_lshlrev_b32 v{X + 8 * j + 2 * p}, 16, v{8 + 4 * j + p}')
            e(f'v_and_b32 v{X + 8 * j + 2 * p + 1}, 0xffff0000, v{8 + 4 * j + p}')
    e(f'v_add_f32 v24, v{X}, v{X + 1}')
    e(f'v_add_f32 v25, v{X + 2}, v{X + 3}')
    for i in range(4, 32):
        e(f'v_add_f32 v{24 + i % 2}, v{24 + i % 2}, v{X + i}')
    e('v_add_f32 v24, v24, v25')
    allreduce16(k, 24, 25)
    e(f's_mov_b32 s3, {f32(1.0 / 512)}')
    e('v_mul_f32 v24, s3, v24')
    for i in range(32):
        e(f'v_sub_f32 v{64 + i % 4}, v{X + i}, v24')
        if i < 2:
            e(f'v_mul_f32 v{26 + i}, v{64 + i % 4}, v{64 + i % 4}')
        else:
            e(f'v_fmac_f32 v{26 + i % 2}, v{64 + i % 4}, v{64 + i % 4}')
    e('v_add_f32 v26, v26, v27')
    allreduce16(k, 26, 27)
    e('v_mul_f32 v26, s3, v26')
    rbf(k, 24, 24)
    rbf(k, 26, 26)
    e(f'v_add_f32 v26, {f32(1e-5)}, v26')
    rbf(k, 26, 26)
    e('v_sqrt_f32 v26, v26')
    rbf(k, 26, 26)
    e('v_rcp_f32 v26, v26')
    e(f's_mov_b32 s24, {WS_XHAT}')
    for j in range(4):
        for i in range(8):
            r = X + 8 * j + i
            e(f'v_sub_f32 v{r}, v{r}, v24')
        for i in range(8):
            r = X + 8 * j + i
            rbf(k, r, r)
        for i in range(8):
            r = X + 8 * j + i
            e(f'v_mul_f32 v{r}, v{r}, v26')
        for i in range(8):
            r = X + 8 * j + i
            rbf(k, r, r)
        for p in range(4):
            r = X + 8 * j + 2 * p
            e(f'v_cvt_pkrtz_f16_f32 v{8 + 4 * j + p}, v{r}, v{r + 1}')
        e(f'buffer_store_dwordx4 v[{8 + 4 * j}:{11 + 4 * j}], v4, s[16:19], s24 offen')
        if j < 3:
            e(f's_add_u32 s24, s24, 8192')
    stamp_flush(k, 1, 16, 0)
    k.label('prep_end')
    e('s_endpgm')
    return k, f'grid=({NMOD + NLN},1,1) block=(256,1,1) lds=9216'


COST = {'exp': 2, 'valu': 1, 'ds': 1, 'dma': 2.5, 'salu': 1, 'vload': 2.5}
GAPCAP = 6
ORDER = {'wait': 0, 'bar': 1, 'dma': 2, 'ds': 3, 'end': 9}


def schedule(k, mfmas, fixed, stream, last_gap=None, cap=GAPCAP, caps=None):
    n = len(mfmas)
    if last_gap is None:
        last_gap = n - 1
    spare = []
    for g in range(n):
        c = sum(x[0] for x in fixed.get(g, []))
        cp = caps.get(g, cap) if caps else cap
        spare.append(max(cp - c, 0) if g <= last_gap else 0)
    tot_spare = sum(spare)
    tot = sum(x[0] for x in stream)
    si = 0
    done = 0.0
    cum = 0
    lastg = max([g for g in range(n) if spare[g] > 0] or [n - 1])
    for g in range(n):
        mfmas[g]()
        fx = sorted(fixed.get(g, []), key=lambda x: ORDER[x[2]])
        cum += spare[g]
        target = tot * cum / max(tot_spare, 1)
        mine = []
        while si < len(stream) and ((spare[g] > 0 and done + stream[si][0] * 0.5 <= target) or g >= lastg):
            mine.append(stream[si]); done += stream[si][0]; si += 1
        for x in fx:
            if x[2] != 'end': x[1]()
        for x in mine: x[1]()
        for x in fx:
            if x[2] == 'end': x[1]()
    assert si == len(stream)


def gemm256(k, P):
    e = k.e
    P['chunk_barrier'](0)
    for _, f in P['ss_reads'](0) + P['w_reads'](0) + P['ss_reads'](1): f()
    k.wait(vm=[('x', 0)], lg=[('ss', 0)])
    for _, f in P['xform'](0): f()
    k.wait(lg=[('w', 0)])
    for ks in range(32):
        mf = []
        for db in range(4):
            for qb in range(2):
                def m(db=db, qb=qb):
                    acc = P['ACC'] + (db * 2 + qb) * 16
                    wf = P['WF'] + (ks % 2) * 16 + db * 4
                    h = P['H'] + (ks % 2) * 8 + qb * 4
                    c = '0' if ks == 0 else ar(acc, 16)
                    e(f'v_mfma_f32_32x32x16_bf16 {ar(acc, 16)}, {ar(wf, 4)}, {vr(h, 4)}, {c}')
                mf.append(m)
        fx = {}
        st = []
        caps = {}
        if ks + 1 < 32:
            newc = (ks + 1) % 4 == 0
            if newc:
                fx.setdefault(0, []).append((0, lambda: k.wait(vm=[('wq', (ks + 1) // 4), ('x', ks + 1)], lg=[('ss', ks + 1)]), 'wait'))
                fx.setdefault(0, []).append((6, lambda: e('s_barrier'), 'bar'))
                caps[1] = 4
            else:
                fx.setdefault(0, []).append((0, lambda: k.wait(vm=[('x', ks + 1)], lg=[('ss', ks + 1)]), 'wait'))
            g0 = 1 if newc else 0
            rd = (P['ss_reads'](ks + 2) if ks + 2 < 32 else []) + P['w_reads'](ks + 1)
            for i, it in enumerate(rd):
                fx.setdefault(g0 + i // 3, []).append((it[0], it[1], 'ds'))
            st = P['xform'](ks + 1)
            fx.setdefault(7, []).append((0, lambda: k.wait(lg=[('w', ks + 1)]), 'wait'))
        groups = P['refill'](ks)
        gl = [5, 6, 4, 7, 3, 2][:len(groups)]
        gl.sort()
        for g, grp in zip(gl, groups):
            for it in grp[:-1]:
                fx.setdefault(g - 1, []).append((it[0], it[1], 'end'))
            fx.setdefault(g, []).append((grp[-1][0], grp[-1][1], 'dma'))
        schedule(k, mf, fx, st, caps=caps, last_gap=6, cap=7)


class G256:
    pass


BIAS = 100.0
THRESH = 2.0 ** 80


def gen_attn(opts):
    global BIAS
    BIAS = opts.get('bias', BIAS)
    k = Kern('attn_kernel')
    e = k.e
    sK, sV, sWQ, sWS = 8, 12, 16, 20
    sW, sW4K, sKoff, sVoff, sCnt, sThr, sXb, sT0, sT1, sOb = 32, 33, 34, 35, 36, 37, 38, 39, 40, 41
    sLink = 44
    S = [8, 40]; NEGM = 72; P = [104, 120]; Q = 136; ET = 200
    LS = [208, 209]; L = [210, 211]; TMP = 212
    KR = 216; VR = 224; DK = 228; DV = 232; VL16 = 233; VMD = 234; VLANE = 235
    O = 0; KF = 128; VF = 160
    LDS_K, LDS_V, LDS_MOD = 0, 65536, 131072

    e('s_cmp_ge_u32 s2, 256')
    e('s_cbranch_scc1 attn_end')
    stamp(k, 0)
    e(f's_load_dwordx4 s[4:7], s[0:1], {A_K}')
    e(f's_load_dwordx2 s[24:25], s[0:1], {A_WQ}')
    e(f's_load_dwordx2 s[26:27], s[0:1], {A_WS}')
    e(f's_load_dwordx2 s[48:49], s[0:1], {A_WO}')
    e(f's_load_dwordx4 s[52:55], s[0:1], {A_W3}')
    e(f's_load_dwordx2 s[50:51], s[0:1], {A_W1}')
    e('s_and_b32 s28, s2, 7')
    e('s_lshl_b32 s28, s28, 2')
    e('s_lshr_b32 s29, s2, 3')
    e('s_and_b32 s30, s29, 3')
    e('s_add_u32 s28, s28, s30')
    e('s_lshr_b32 s29, s29, 2')
    e('v_lshrrev_b32 v1, 6, v0')
    e(f'v_and_b32 v{VLANE}, 63, v0')
    e(f'v_readfirstlane_b32 s{sW}, v1')
    e(f'v_lshlrev_b32 v{VL16}, 4, v{VLANE}')
    e(f's_lshl_b32 s{sW4K}, s{sW}, 12')
    e(f'v_lshrrev_b32 v2, 4, v{VLANE}')
    e(f'v_and_b32 v3, 15, v{VLANE}')
    e(f'v_lshrrev_b32 v4, 5, v{VLANE}')
    e(f'v_and_b32 v5, 31, v{VLANE}')
    e('v_lshlrev_b32 v6, 2, v2')
    e('v_xor_b32 v6, v6, v3')
    e('v_lshlrev_b32 v6, 4, v6')
    e(f'v_lshl_add_u32 v{DV}, v2, 8, v6')
    e(f'v_add_u32 v{DV}, s{sW4K}, v{DV}')
    e(f's_lshl_b32 s3, s{sW}, 17')
    e('v_lshl_add_u32 v7, v2, 13, v6')
    e('v_add_u32 v7, s3, v7')
    e('s_waitcnt lgkmcnt(0)')
    e('s_lshl_b32 s3, s28, 19')
    e('s_add_u32 s4, s4, s3'); e('s_addc_u32 s5, s5, 0')
    e('s_add_u32 s6, s6, s3'); e('s_addc_u32 s7, s7, 0')
    srd(k, sK, 4, 5, 524288)
    srd(k, sV, 6, 7, 524288)
    e('s_lshl_b32 s3, s28, 8')
    e('s_add_u32 s24, s24, s3'); e('s_addc_u32 s25, s25, 0')
    e(f's_mov_b32 s{sWQ}, s24'); e(f's_and_b32 s{sWQ + 1}, s25, 0xffff')
    e(f's_sub_u32 s{sWQ + 2}, {512 * 8192}, s3'); e(f's_mov_b32 s{sWQ + 3}, 0x00020000')
    srd(k, sWS, 26, 27, WS_SIZE)
    e('s_lshl_b32 s3, s29, 3')
    e(f's_lshl_b32 s{sT0}, s{sW}, 1')
    e(f's_add_u32 s3, s3, s{sT0}')
    e(f's_lshl_b32 s{sXb}, s3, 15')
    e(f's_add_u32 s{sXb}, s{sXb}, {WS_XHAT}')
    e(f's_lshl_b32 s{sOb}, s3, 18')
    e(f's_lshl_b32 s{sT0}, s28, 13')
    e(f's_add_u32 s{sOb}, s{sOb}, s{sT0}')
    e(f's_add_u32 s{sOb}, s{sOb}, {WS_O}')

    XR = 8; H = 136; SS = 152; FT = 184; WRA = 200; WF = 128
    chunk_slot = [LDS_K, LDS_K + 16384, LDS_V, LDS_K + 32768, LDS_K + 49152, LDS_V + 16384, LDS_V + 32768, LDS_V + 49152]

    def wq_dma(c):
        out = []
        for p in range(4):
            g = []
            if p == 0:
                g.append((1, lambda: e(f's_add_u32 m0, s{sW4K}, {chunk_slot[c]}')))
            g.append((1, lambda p=p: e(f's_mov_b32 s{sT0}, {c * 524288 + p * (32768 - 1024)}')))
            g.append((COST['dma'], lambda p=p: e(f'buffer_load_dwordx4 v7, s[{sWQ}:{sWQ + 3}], s{sT0} offen offset:{p * 1024} lds', ('wq', c))))
            out.append(g)
        return out

    def xreg(ks, qb):
        return XR + (((ks // 4) % 4) * 8 + (ks % 4) * 2 + qb) * 4

    def x_load(ks, qb):
        c = ks // 4
        out = []
        so = (sT1, 43)[qb]
        if ks % 4 == 0:
            out.append((1, lambda: e(f's_add_u32 s{so}, s{sXb}, {qb * 32768 + c * 4096}')))
        r = xreg(ks, qb)
        out.append((COST['vload'], lambda: e(f'buffer_load_dwordx4 v[{r}:{r + 3}], v{VL16}, s[{sWS}:{sWS + 3}], s{so} offen offset:{(ks % 4) * 1024}', ('x', ks))))
        return out

    e(f's_lshl_b32 s{sT0}, s{sW}, 10')
    e(f's_add_u32 m0, s{sT0}, {LDS_MOD}')
    e(f's_add_u32 s{sT0}, s{sT0}, {WS_MOD1}')
    e(f'buffer_load_dwordx4 v{VL16}, s[{sWS}:{sWS + 3}], s{sT0} offen lds', ('wq', 0))
    NPRE = opts.get('npre', 1)
    NPX = opts.get('npx', NPRE)
    for c in range(max(NPRE, NPX)):
        for g in (wq_dma(c) if c < NPRE else []):
            for _, f in g: f()
        for ks in (range(4 * c, 4 * c + 4) if c < NPX else []):
            for qb in range(2):
                for _, f in x_load(ks, qb): f()
    e('v_lshrrev_b32 v236, 2, v3')
    e(f'v_and_b32 v237, 3, v{VLANE}')
    e('v_and_b32 v238, 1, v2')
    e('v_lshlrev_b32 v238, 5, v238')
    e('v_and_b32 v239, 1, v237')
    e('v_lshl_add_u32 v238, v239, 4, v238')
    e('v_lshrrev_b32 v239, 1, v237')
    e('v_lshl_add_u32 v238, v239, 3, v238')
    e('v_lshl_add_u32 v238, v236, 8, v238')
    for db in range(4):
        e(f'v_xor_b32 v239, {db}, v236')
        e(f'v_lshl_add_u32 v239, v239, 6, v238')
        e(f'v_lshl_add_u32 v{WRA + db}, v4, 11, v239')
        e(f'v_add_u32 v{WRA + 4 + db}, {LDS_V}, v{WRA + db}')
        e(f'v_lshl_add_u32 v{VR + db}, v4, 10, v239')
        e(f'v_add_u32 v{VR + db}, {LDS_V}, v{VR + db}')
    for ks in range(8):
        e(f'v_add_u32 v239, {2 * ks}, v4')
        e('v_xor_b32 v239, v239, v3')
        e('v_lshlrev_b32 v239, 4, v239')
        e(f'v_lshl_add_u32 v{KR + ks}, v5, 8, v239')
    for p in range(4):
        e(f'v_add_u32 v239, {4 * p}, v2')
        e('v_xor_b32 v239, v239, v3')
        e('v_lshlrev_b32 v239, 4, v239')
        e('v_lshl_add_u32 v239, v2, 8, v239')
        e(f'v_add_u32 v{DK + p}, s{sW4K}, v239')
    e(f'v_lshlrev_b32 v{VMD}, 6, v4')
    e(f'v_add_u32 v{VMD}, {LDS_MOD}, v{VMD}')
    e(f's_mov_b32 s{sThr}, {f32(THRESH)}')

    def w_reads(ks):
        c = ks // 4
        slot = chunk_slot[c]
        base = WRA + 4 if slot >= LDS_V else WRA
        off0 = (slot % 65536) + (ks % 4) * 16 * 256
        out = []
        for db in range(4):
            for t in range(2):
                r = WF + (ks % 2) * 16 + db * 4 + t * 2
                out.append((COST['ds'], lambda r=r, db=db, t=t: e(f'ds_read_b64_tr_b16 a[{r}:{r + 1}], v{base + db} offset:{off0 + t * 1024}', ('w', ks))))
        return out

    def ss_reads(ks):
        out = []
        for j in range(4):
            r = SS + (ks % 2) * 16 + 4 * j
            out.append((COST['ds'], lambda r=r, j=j: e(f'ds_read_b128 v[{r}:{r + 3}], v{VMD} offset:{ks * 128 + j * 16}', ('ss', ks))))
        return out

    def xform(ks):
        out = []
        sb = SS + (ks % 2) * 16
        for qb in range(2):
            x = xreg(ks, qb)
            for p in range(4):
                t = FT + (qb * 4 + p) * 2
                out.append((1, lambda x=x, p=p, t=t: e(f'v_fma_mix_f32 v{t}, v{x + p}, v{sb + 2 * p}, v{sb + 8 + 2 * p} op_sel_hi:[1,0,0]')))
                out.append((1, lambda x=x, p=p, t=t: e(f'v_fma_mix_f32 v{t + 1}, v{x + p}, v{sb + 2 * p + 1}, v{sb + 8 + 2 * p + 1} op_sel:[1,0,0] op_sel_hi:[1,0,0]')))
                h = H + (ks % 2) * 8 + qb * 4 + p
                out.append((1, lambda t=t, h=h: e(f'v_cvt_pk_bf16_f32 v{h}, v{t}, v{t + 1}')))
        return out

    def chunk_barrier(c):
        stamp(k, 1)
        k.wait(vm=[('wq', c)])
        e('s_barrier')
        stamp(k, 2)

    def kv_dma(which, tile):
        out = []
        slot = tile % 4
        for p in range(4):
            g = []
            if p == 0:
                g.append((1, lambda: e(f's_add_u32 m0, s{sW4K}, {(LDS_K if which == "K" else LDS_V) + slot * 16384}')))
                g.append((1, lambda: e(f's_mov_b32 s{sT0}, {tile * 16384}')))
            if which == 'K':
                g.append((COST['dma'], lambda p=p: e(f'buffer_load_dwordx4 v{DK + p}, s[{sK}:{sK + 3}], s{sT0} offen offset:{p * 1024} lds', ('K', tile))))
            else:
                g.append((COST['dma'], lambda p=p: e(f'buffer_load_dwordx4 v{DV}, s[{sV}:{sV + 3}], s{sT0} offen offset:{p * 1024} lds', ('V', tile))))
            out.append(g)
        return out

    todo = []
    WL = opts.get('wlead', 0)
    seq = []
    for c in range(NPRE, 8 + WL):
        if c - WL < NPRE + 0 and c < 8 and False:
            pass
    wn = NPRE; xn = NPX
    while wn < 8 or xn < 8:
        if wn < 8 and wn <= xn + WL:
            todo += [(0, g) for g in wq_dma(wn)]; wn += 1
        else:
            for ks in range(4 * xn, 4 * xn + 4):
                todo += [(ks - 16, x_load(ks, 0)), (ks - 16, x_load(ks, 1))]
            xn += 1
    todo += [(4, g) for g in kv_dma('K', 0)] + [(8, g) for g in kv_dma('K', 1)] + [(12, g) for g in kv_dma('V', 0)]
    RATE = opts.get('rate', 4)

    def refill(ks):
        out = []
        while todo and len(out) < RATE and todo[0][0] <= ks:
            out.append(todo.pop(0)[1])
        return out

    gemm256(k, dict(w_reads=w_reads, ss_reads=ss_reads, xform=xform, refill=refill, chunk_barrier=chunk_barrier,
                    ACC=O, WF=WF, H=H))
    assert not todo

    cq = LOG2E / math.sqrt(128.0)
    e(f's_mov_b32 s3, {f32(cq)}')
    stamp(k, 3)
    k.wait(vm=[('K', 0)])
    e('s_barrier')

    def k_read(blk, ks):
        tile = blk // 2
        off = LDS_K + (tile % 4) * 16384 + (blk % 2) * 8192
        r = KF + 4 * ks
        return lambda: e(f'ds_read_b128 a[{r}:{r + 3}], v{KR + ks} offset:{off}', ('kf', ks))

    def v_read(blk, i):
        u, db, t = i // 8, (i // 2) % 4, i % 2
        tile = blk // 2
        off = (tile % 4) * 16384 + ((blk % 2) * 32 + 16 * u + 8 * t) * 256
        r = VF + (u * 4 + db) * 4 + 2 * t
        return lambda: e(f'ds_read_b64_tr_b16 a[{r}:{r + 1}], v{VR + db} offset:{off}', ('vf', i))

    for ks in range(8):
        k_read(0, ks)()
    for g in kv_dma('K', 2):
        for _, f in g: f()
    def conv(db):
        items = []
        for qb in range(2):
            acc = O + (db * 2 + qb) * 16
            t = 72 + ((db * 2 + qb) % 4) * 16
            items += [(1, lambda i=i, t=t, acc=acc: e(f'v_accvgpr_read_b32 v{t + i}, a{acc + i}')) for i in range(16)]
            items += [(1, lambda i=i, t=t: e(f'v_mul_f32 v{t + i}, s3, v{t + i}')) for i in range(16)]
            items += [(1, lambda i=i, t=t, qb=qb: e(f'v_cvt_pk_bf16_f32 v{Q + (qb * 8 + 2 * db + i // 4) * 4 + i % 4}, v{t + 2 * i}, v{t + 2 * i + 1}')) for i in range(8)]
        return items
    for _, f in conv(0): f()
    for g in kv_dma('V', 1):
        for _, f in g: f()
    NPF = 2 if opts.get('pf', 1) else 0
    RETILE = opts.get('retile', 1)
    sPF = 42
    if NPF:
        for i, (sp, nb) in enumerate(((48, 4096 * 1024), (50, 512 * 3584), (52, 512 * 3584), (54, 1792 * 1024))):
            srd(k, 80 + 4 * i, sp, sp + 1, nb)
        e(f's_lshl_b32 s{sPF}, s2, 12')
        e(f's_lshl_b32 s{sT0}, s{sW}, 10')
        e(f's_add_u32 s{sPF}, s{sPF}, s{sT0}')
        e(f'v_lshrrev_b32 v236, 2, v{VLANE}')
        e(f'v_lshlrev_b32 v236, 6, v236')
        e(f'buffer_load_dword v240, v236, s[92:95], s{sPF} offen', 'pf')

    def qk_mfmas(blk, czero=False):
        out = []
        for ks in range(8):
            for qb in range(2):
                def m(ks=ks, qb=qb):
                    d = S[blk % 2] + 16 * qb
                    if ks == 0:
                        c = '0' if czero else vr(NEGM + 16 * qb, 16)
                    else:
                        c = vr(d, 16)
                    e(f'v_mfma_f32_32x32x16_bf16 {vr(d, 16)}, {ar(KF + 4 * ks, 4)}, {vr(Q + (qb * 8 + ks) * 4, 4)}, {c}')
                out.append(m)
        return out

    def pv_mfmas(blk, czero=False):
        out = []
        for u in range(2):
            for db in range(4):
                for qb in range(2):
                    def m(u=u, db=db, qb=qb):
                        acc = O + (db * 2 + qb) * 16
                        c = '0' if (czero and u == 0) else ar(acc, 16)
                        e(f'v_mfma_f32_32x32x16_bf16 {ar(acc, 16)}, {ar(VF + (u * 4 + db) * 4, 4)}, {vr(P[blk % 2] + (qb * 2 + u) * 4, 4)}, {c}')
                    out.append(m)
        return out

    def softmax_stream(blk):
        sb = S[blk % 2]; pb = P[blk % 2]
        items = []
        pend = []
        n = 0
        for qb in range(2):
            for i in range(8):
                t = ET + (n % 4) * 2
                r = sb + qb * 16 + 2 * i
                a = [(COST['exp'], lambda t=t, r=r: e(f'v_exp_f32 v{t}, v{r}')),
                     (COST['exp'], lambda t=t, r=r: e(f'v_exp_f32 v{t + 1}, v{r + 1}'))]
                if i == 0:
                    c = [(1, lambda t=t, qb=qb: e(f'v_add_f32 v{LS[qb]}, v{t}, v{t + 1}')), None]
                else:
                    c = [(1, lambda t=t, qb=qb: e(f'v_add_f32 v{LS[qb]}, v{LS[qb]}, v{t}')),
                         (1, lambda t=t, qb=qb: e(f'v_add_f32 v{LS[qb]}, v{LS[qb]}, v{t + 1}'))]
                if 'A' in opts.get('x', '') and i > 0:
                    c = [None, None]
                pd = pb + (qb * 2 + i // 4) * 4 + i % 4
                c.append((1, lambda t=t, pd=pd: e(f'v_cvt_pk_bf16_f32 v{pd}, v{t}, v{t + 1}')))
                items.append(a[0])
                if pend and pend[0]: items.append(pend[0])
                items.append(a[1])
                for x in pend[1:]:
                    if x: items.append(x)
                pend = c
                n += 1
        for x in pend:
            if x: items.append(x)
        return items

    stubs = []

    def check_items(blk):
        lab = k.newlabel('slow'); ret = k.newlabel('ret')
        stubs.append((lab, ret, blk % 2))

        def br():
            e(f's_cbranch_vccnz {lab}')
            k.label(ret)
        return [(1, lambda: e(f'v_max_f32 v{TMP}, v{LS[0]}, v{LS[1]}')),
                (1, lambda: e(f'v_cmp_lt_f32 vcc, s{sThr}, v{TMP}')),
                (1, br),
                (1, lambda: e(f'v_add_f32 v{L[0]}, v{L[0]}, v{LS[0]}')),
                (1, lambda: e(f'v_add_f32 v{L[1]}, v{L[1]}, v{LS[1]}'))]

    KFALL = [('kf', i) for i in range(8)]
    VFALL = [('vf', i) for i in range(16)]
    mf = qk_mfmas(0, czero=True)
    k.wait(lg=KFALL)
    for db in range(4):
        fx = {}
        for ks in (2 * db - 1, 2 * db):
            if ks >= 0:
                fx.setdefault(0 if ks < 2 * db else 2, []).append((COST['ds'], k_read(1, ks), 'ds'))
        if db == 3:
            fx.setdefault(3, []).append((COST['ds'], k_read(1, 7), 'ds'))
        schedule(k, mf[4 * db:4 * db + 4], fx, conv(db + 1) if db < 3 else [])
    for qb in range(2):
        sb = S[0] + 16 * qb
        e(f'v_max3_f32 v{TMP}, v{sb}, v{sb + 1}, v{sb + 2}')
        for i in range(3, 15, 2):
            e(f'v_max3_f32 v{TMP}, v{TMP}, v{sb + i}, v{sb + i + 1}')
        e(f'v_max_f32 v{TMP}, v{TMP}, v{sb + 15}')
        e(f'v_mov_b32 v{TMP + 1}, v{TMP}')
        e(f'v_permlane32_swap_b32 v{TMP}, v{TMP + 1}')
        e(f'v_max_f32 v{TMP}, v{TMP}, v{TMP + 1}')
        e(f'v_add_f32 v{TMP}, {f32(BIAS)}, v{TMP}')
        e(f'v_sub_f32 v{NEGM + 16 * qb}, 0, v{TMP}')
        for i in range(1, 16):
            e(f'v_mov_b32 v{NEGM + 16 * qb + i}, v{NEGM + 16 * qb}')
        for i in range(16):
            e(f'v_sub_f32 v{sb + i}, v{sb + i}, v{TMP}')
        e(f'v_mov_b32 v{L[qb]}, 0')
    e(f's_mov_b32 s{sKoff}, {3 * 16384}')
    e(f's_mov_b32 s{sVoff}, {2 * 16384}')
    e(f's_mov_b32 s{sCnt}, 8')

    def step(b, do_qk=True, do_sm=True, do_pv=True, pv_zero=False, do_kread=True, do_dma=True):
        mf = []
        fx = {}
        nq = 0
        X = opts.get('x', '')
        if 'D' in X: do_dma = False
        if 'S' in X: do_sm = False
        if do_qk:
            mf += qk_mfmas(b + 1); nq = 16
        if do_pv:
            mf += pv_mfmas(b - 1, czero=pv_zero)
        n = len(mf)
        caps = {}
        full = do_qk and do_pv
        if do_pv and 'L' not in X:
            if do_qk:
                for i in range(16):
                    fx.setdefault(i // 2, []).append((COST['ds'], v_read(b - 1, i), 'ds'))
            else:
                for i in range(16):
                    v_read(b - 1, i)()
                k.wait(lg=VFALL)
        bar = b % 2 == 0 and do_kread and 'B' not in X
        gb = 15 if full else 0
        if bar:
            vmn = 8 + (NPF if b >= 2 else NPF // 2)

            def wt():
                t = k.wait_text(lg=VFALL) if full else None
                e(f's_waitcnt vmcnt({vmn})' + (t[9:] if t else ''))
            fx.setdefault(gb, []).append((0, wt, 'wait'))
            fx.setdefault(gb, []).append((6, lambda: e('s_barrier'), 'bar'))
            caps[gb + 1] = opts.get('cap_ab', 3)
            if RETILE and b == 14:
                def hook():
                    e(f's_cmp_le_u32 s{sCnt}, 4')
                    e('s_cbranch_scc1 attn_copy')
                    k.label('attn_copy_ret')
                fx.setdefault(gb + 1, []).append((2, hook, 'dma'))
        elif full:
            fx.setdefault(15, []).append((0, lambda: k.wait(lg=VFALL), 'wait'))
        if do_kread and 'L' not in X:
            for ks in range(8):
                g = (17 + ks // 2) if full else min(2 * ks + 2, 15)
                fx.setdefault(g, []).append((COST['ds'], k_read(b + 2, ks), 'ds'))
            if full:
                fx.setdefault(n - 1, []).append((0, lambda: k.wait(lg=KFALL), 'wait'))
        if do_dma:
            isK = (b % 2 == 0)
            I = (b + 2) // 2 if isK else (b + 1) // 2
            if isK:
                slot = LDS_K + ((I + 2) % 4) * 16384; so = sKoff
            else:
                slot = LDS_V + ((I + 1) % 4) * 16384; so = sVoff
            gs = [22, 24, 26, 28] if full else [3, 5, 7, 9]
            fx.setdefault(gs[0] - 1, []).append((1, lambda: e(f's_add_u32 m0, s{sW4K}, {slot}'), 'end'))
            for p in range(4):
                va = DK + p if isK else DV
                sd = sK if isK else sV
                fx.setdefault(gs[p], []).append((COST['dma'], lambda p=p, va=va, sd=sd: e(
                    f'buffer_load_dwordx4 v{va}, s[{sd}:{sd + 3}], s{so} offen offset:{p * 1024} lds', 'kv'), 'dma'))
            fx.setdefault(gs[3] + 1, []).append((1, lambda: e(f's_add_u32 s{so}, s{so}, 16384'), 'end'))
            if NPF and not isK:
                sp = 80 + 4 * ((b // 2) % 4)
                fx.setdefault(30, []).append((COST['dma'], lambda: e(f'buffer_load_dword v240, v236, s[{sp}:{sp + 3}], s{sPF} offen', 'pf'), 'dma'))
                if b % 8 == 7:
                    fx.setdefault(30, []).append((1, lambda: e(f's_add_u32 s{sPF}, s{sPF}, 0x100000'), 'end'))
        st = []
        if do_sm:
            st = softmax_stream(b)
        schedule(k, mf, fx, st, last_gap=n - 2, caps=caps)
        if do_kread and not full:
            k.wait(lg=KFALL)
        if do_sm:
            for _, f in check_items(b): f()

    stamp(k, 4)
    k.wait(lg=KFALL)
    step(0, do_pv=False)
    step(1, pv_zero=True)
    e('s_branch attn_ent')
    e('.p2align 6')
    k.label('attn_loop')
    for pos in range(8):
        if pos == 2:
            k.label('attn_ent')
        step(8 + pos)
        if pos == 6:
            e(f's_sub_u32 s{sCnt}, s{sCnt}, 1')
            e(f's_cmp_eq_u32 s{sCnt}, 0')
            e('s_cbranch_scc1 attn_tail')
    e('s_branch attn_loop')
    k.label('attn_tail')
    k.lgq = []
    if opts.get('t23', 0):
        e(f'v_lshrrev_b32 v238, 2, v{VLANE}')
        e('v_lshlrev_b32 v238, 10, v238')
        e(f'v_and_b32 v239, 3, v{VLANE}')
        e('v_lshl_add_u32 v238, v239, 7, v238')
        e(f's_lshr_b32 s{sT0}, s2, 3')
        e(f's_lshl_b32 s{sT0}, s{sT0}, 2')
        e(f's_add_u32 s{sT0}, s{sT0}, s{sW}')
        e(f's_lshl_b32 s{sT0}, s{sT0}, 15')
        e(f's_and_b32 s{sT1}, s2, 1')
        e(f's_lshl_b32 s{sT1}, s{sT1}, 9')
        e(f's_add_u32 s{sT0}, s{sT0}, s{sT1}')
        e(f'buffer_load_dword v237, v238, s[80:83], s{sT0} offen', 'pf')
        e(f's_add_u32 s{sT0}, s{sT0}, 16384')
        e(f'buffer_load_dword v239, v238, s[80:83], s{sT0} offen', 'pf')
    step(63, do_qk=False, do_kread=False, do_dma=False)
    step(64, do_qk=False, do_sm=False, do_kread=False, do_dma=False)

    stamp(k, 5)
    for qb in range(2):
        e(f'v_mov_b32 v{TMP}, v{L[qb]}')
        e(f'v_permlane32_swap_b32 v{L[qb]}, v{TMP}')
        e(f'v_add_f32 v{L[qb]}, v{L[qb]}, v{TMP}')
        e(f'v_rcp_f32 v{L[qb]}, v{L[qb]}')
    n = 0
    for qb in range(2):
        e(f's_add_u32 s{sT0}, s{sOb}, {qb * 262144}')
        e(f's_add_u32 s{sT1}, s{sOb}, {qb * 262144 + 4096}')
        for db in range(4):
            for u in range(2):
                acc = O + (db * 2 + qb) * 16 + 8 * u
                t = 8 + (n % 4) * 16; n += 1
                for i in range(8):
                    e(f'v_accvgpr_read_b32 v{t + i}, a{acc + i}')
                for i in range(8):
                    e(f'v_mul_f32 v{t + i}, v{t + i}, v{L[qb]}')
                for i in range(4):
                    e(f'v_cvt_pk_bf16_f32 v{t + 8 + i}, v{t + 2 * i}, v{t + 2 * i + 1}')
                kk = 2 * db + u
                so = sT0 if kk < 4 else sT1
                e(f'buffer_store_dwordx4 v[{t + 8}:{t + 11}], v{VL16}, s[{sWS}:{sWS + 3}], s{so} offen offset:{(kk % 4) * 1024}{opts.get("ost", " sc1")}')
    stamp(k, 6)
    stamp_flush(k, 7, sWS, 1)
    k.label('attn_end')
    e('s_endpgm')

    if RETILE:
        CP = 192
        k.label('attn_copy')
        e(f's_cmp_le_u32 s{sCnt}, 2')
        e('s_cbranch_scc1 attn_copy_code' if opts.get('cpf2', 0) else 's_cbranch_scc1 attn_copy_ret')
        e(f's_lshl_b32 s{sT0}, s2, 2')
        e(f's_add_u32 s{sT0}, s{sT0}, s{sW}')
        e(f's_cmp_eq_u32 s{sCnt}, 3')
        e('s_cbranch_scc1 attn_copy_st')
        e(f's_lshl_b32 s{sT1}, s{sT0}, 12')
        for i in range(4):
            e(f'buffer_load_dwordx4 a[{CP + 4 * i}:{CP + 4 * i + 3}], v{VL16}, s[80:83], s{sT1} offen offset:{i * 1024}')
        e(f's_lshl_b32 s{sT1}, s{sT0}, 11')
        for i in range(2):
            e(f'buffer_load_dwordx4 a[{CP + 16 + 4 * i}:{CP + 19 + 4 * i}], v{VL16}, s[92:95], s{sT1} offen offset:{i * 1024}')
        e('s_branch attn_copy_ret')
        k.label('attn_copy_st')
        e(f'v_lshrrev_b32 v238, 3, v{VLANE}')
        e(f'v_and_b32 v239, 7, v{VLANE}')
        e('v_lshlrev_b32 v239, 4, v239')
        e('v_lshl_add_u32 v237, v238, 19, v239')
        e('v_lshl_add_u32 v238, v238, 18, v239')
        e(f's_lshl_b32 s{sT1}, s{sT0}, 9')
        e(f's_add_u32 s{sT1}, s{sT1}, {WS_WOT}')
        for i in range(4):
            e(f'buffer_store_dwordx4 a[{CP + 4 * i}:{CP + 4 * i + 3}], v237, s[{sWS}:{sWS + 3}], s{sT1} offen offset:{i * 128} sc1')
        e(f's_lshl_b32 s{sT1}, s{sT0}, 8')
        e(f's_add_u32 s{sT1}, s{sT1}, {WS_W2T}')
        for i in range(2):
            e(f'buffer_store_dwordx4 a[{CP + 16 + 4 * i}:{CP + 19 + 4 * i}], v238, s[{sWS}:{sWS + 3}], s{sT1} offen offset:{i * 128} sc1')
        e('s_branch attn_copy_ret')
        if opts.get('cpf2', 0):
            k.label('attn_copy_code')
            e(f's_lshr_b32 s{sT0}, s2, 3')
            e(f's_lshl_b32 s{sT0}, s{sT0}, 2')
            e(f's_add_u32 s{sT0}, s{sT0}, s{sW}')
            e(f's_cmp_ge_u32 s{sT0}, 1')
            e('s_cbranch_scc1 attn_copy_ret')
            code_touch(k, 242, 46, sT0, VLANE, 'attn_end', 'code_end')
            e('s_branch attn_copy_ret')

    for lab, ret, par in stubs:
        k.label(lab)
        e(f's_call_b64 s[{sLink}:{sLink + 1}], attn_slow{par}')
        e(f's_branch {ret}')
    for par in range(2):
        k.label(f'attn_slow{par}')
        e('s_nop 15'); e('s_nop 15')
        D0 = [TMP + 2, TMP + 3]
        for qb in range(2):
            sb = S[par] + 16 * qb; sn = S[1 - par] + 16 * qb
            e(f'v_max3_f32 v{TMP}, v{sb}, v{sb + 1}, v{sb + 2}')
            for i in range(3, 15, 2):
                e(f'v_max3_f32 v{TMP}, v{TMP}, v{sb + i}, v{sb + i + 1}')
            e(f'v_max_f32 v{TMP}, v{TMP}, v{sb + 15}')
            e(f'v_mov_b32 v{TMP + 1}, v{TMP}')
            e(f'v_permlane32_swap_b32 v{TMP}, v{TMP + 1}')
            e(f'v_max_f32 v{TMP}, v{TMP}, v{TMP + 1}')
            e(f'v_add_f32 v{TMP}, {f32(BIAS)}, v{TMP}')
            e(f'v_max_f32 v{TMP}, 0, v{TMP}')
            e(f'v_sub_f32 v{TMP + 1}, 0, v{TMP}')
            e(f'v_exp_f32 v{D0[qb]}, v{TMP + 1}')
            for i in range(16):
                e(f'v_sub_f32 v{NEGM + 16 * qb + i}, v{NEGM + 16 * qb + i}, v{TMP}')
                e(f'v_sub_f32 v{sb + i}, v{sb + i}, v{TMP}')
                e(f'v_sub_f32 v{sn + i}, v{sn + i}, v{TMP}')
            e(f'v_mul_f32 v{L[qb]}, v{L[qb]}, v{D0[qb]}')
            for db in range(4):
                acc = O + (db * 2 + qb) * 16
                for i in range(16):
                    t = ET + i % 8
                    e(f'v_accvgpr_read_b32 v{t}, a{acc + i}')
                    e(f'v_mul_f32 v{t}, v{t}, v{D0[qb]}')
                    e(f'v_accvgpr_write_b32 a{acc + i}, v{t}')
        for _, f in softmax_stream(par): f()
        e('s_nop 3')
        e(f's_setpc_b64 s[{sLink}:{sLink + 1}]')
    return k, 'grid=(256,1,1) block=(256,1,1) lds=135168'


sWS_T = 12
sWV_T = 32
X1KEEP = 64


def lane_id(k, v):
    k.e(f'v_mbcnt_lo_u32_b32 v{v}, -1, 0')
    k.e(f'v_mbcnt_hi_u32_b32 v{v}, -1, v{v}')


def signal(k, vt, soff, nyounger):
    e = k.e
    e(f's_waitcnt vmcnt({nyounger})')
    e(f'v_mov_b32 v{vt}, 0')
    e(f'v_mov_b32 v{vt + 1}, 1')
    e('s_mov_b64 exec, 1')
    e(f'buffer_store_dword v{vt + 1}, v{vt}, s[{sWS_T}:{sWS_T + 3}], s{soff} offen sc1', 'flag')
    e('s_mov_b64 exec, -1')


def poll(k, name, vt, vlane, soff, nflags, opts):
    e = k.e
    e(f's_cmp_lg_u32 s{sWV_T}, 0')
    e(f's_cbranch_scc1 {name}_go')
    e(f'v_min_u32 v{vt}, {nflags - 1}, v{vlane}')
    e(f'v_lshlrev_b32 v{vt}, 2, v{vt}')
    e('s_mov_b32 s48, 0x40000')
    k.label(f'{name}_poll')
    e(f'buffer_load_dword v{vt + 1}, v{vt}, s[{sWS_T}:{sWS_T + 3}], s{soff} offen sc1', 'poll')
    e('s_waitcnt vmcnt(0)')
    e(f'v_cmp_eq_u32 vcc, 0, v{vt + 1}')
    e(f's_cbranch_vccz {name}_go')
    e(f's_sleep {opts.get("sleep", 2)}')
    e('s_sub_u32 s48, s48, 1')
    e('s_cmp_lg_u32 s48, 0')
    e(f's_cbranch_scc1 {name}_poll')
    k.label(f'{name}_go')
    e('s_waitcnt vmcnt(0)')
    e('s_barrier')


BSLOT = [(0, 32768), (65536, 98304), (16384, 49152), (81920, 114688)]


def early_b(k):
    e = k.e
    items = []

    def setup():
        lane_id(k, 251)
        e('v_lshrrev_b32 v252, 4, v251')
        e('v_and_b32 v253, 15, v251')
        e('v_lshlrev_b32 v250, 2, v252')
        e('v_xor_b32 v250, v250, v253')
        e('v_lshlrev_b32 v250, 4, v250')
        e('v_mul_u32_u24 v252, 3584, v252')
        e('v_add_u32 v250, v250, v252')
        e(f's_and_b32 s54, s{sWV_T}, 1')
        e('s_cmp_eq_u32 s54, 0')
        e('s_cselect_b32 s24, s56, s58')
        e('s_cselect_b32 s25, s57, s59')
        e('s_and_b32 s25, s25, 0xffff')
        e(f's_mov_b32 s26, {512 * 3584}')
        e('s_mov_b32 s27, 0x00020000')
        e(f's_lshr_b32 s54, s{sWV_T}, 1')
        e(f's_mul_i32 s54, s54, {64 * 3584}')
        e('s_lshl_b32 s53, s51, 8')
        e('s_add_u32 s54, s54, s53')
        e(f's_lshl_b32 s53, s{sWV_T}, 15')
    items.append(setup)
    for p in range(16):
        def f(p=p):
            e(f's_add_u32 m0, s53, {p * 1024}')
            e(f's_add_u32 s52, s54, {p * 4 * 3584}')
            e('buffer_load_dwordx4 v250, s[24:27], s52 offen lds', ('wq', 0))
        items.append(f)
    return items


def early_c(k, n):
    e = k.e
    items = []

    def setup():
        lane_id(k, 252)
        e('v_lshrrev_b32 v253, 3, v252')
        e('v_lshlrev_b32 v251, 1, v253')
        e('v_and_b32 v251, 4, v251')
        e('v_and_b32 v252, 7, v252')
        e('v_xor_b32 v251, v251, v252')
        e('v_lshlrev_b32 v251, 4, v251')
        e('v_lshl_add_u32 v251, v253, 7, v251')
        e(f's_lshl_b32 s49, s{sWV_T}, 15')
        e('s_and_b32 s55, s2, 1')
        e('s_lshl_b32 s55, s55, 2')
        e('s_lshr_b32 s47, s2, 6')
        e('s_add_u32 s55, s55, s47')
        e('s_lshl_b32 s55, s55, 18')
        e(f's_mul_i32 s47, s{sWV_T}, {28 * 2048}')
        e('s_add_u32 s55, s55, s47')
        e(f's_add_u32 s55, s55, {WS_W2T}')
    items.append(setup)
    for ks in range(n):
        def f(ks=ks):
            e(f's_add_u32 m0, s49, {ks * 2048}')
            e('s_nop 0')
            e(f'buffer_load_dwordx4 v251, s[{sWS_T}:{sWS_T + 3}], s55 offen lds', ('g', ks))
            e(f'buffer_load_dwordx4 v251, s[{sWS_T}:{sWS_T + 3}], s55 offen offset:1024 lds', ('g', ks))
            e('s_add_u32 s55, s55, 2048')
        items.append(f)
    return items


def phase_gemm64(k, which, opts, dep, out_flag, keep_x1, sbase, early=None):
    e = k.e
    name = 'pa' if which == 'wo' else 'pc'
    NKS = 256 if which == 'wo' else 112
    KW = NKS // 4
    D = 16 if which == 'wo' else 14
    NIT = KW // D
    WS_XIN = WS_O if which == 'wo' else WS_HH
    sWS, sG = sWS_T, 16
    sWv, sXo, sWo, sT0, sLb, sCnt, sXo1 = sWV_T, 33, 34, 35, 37, 38, 39
    ACC = 8
    XF = 72
    WFr = 200
    VL16, VDW, VWR = 216, 217, 218
    EP = 220
    XA = ' sc1' if dep else ''
    SA = ' sc1' if out_flag else ''
    POFF = 16384
    if dep:
        VDW, sWo, sLb = 251, 55, 49
    e('s_bfe_u32 s28, s2, 0x20001')
    e('s_lshl_b32 s28, s28, 3')
    e('s_bfe_u32 s30, s2, 0x30003')
    e('s_add_u32 s28, s28, s30')
    e('s_and_b32 s29, s2, 1')
    e('s_lshl_b32 s29, s29, 2')
    e('s_lshr_b32 s30, s2, 6')
    e('s_add_u32 s29, s29, s30')
    lane_id(k, 2)
    e(f'v_lshlrev_b32 v{VL16}, 4, v2')
    if not dep:
        e('v_lshrrev_b32 v3, 3, v2')
        e('v_and_b32 v4, 7, v2')
        e('v_lshlrev_b32 v5, 1, v3')
        e('v_and_b32 v5, 4, v5')
        e('v_xor_b32 v4, v4, v5')
        e('v_lshlrev_b32 v4, 4, v4')
        e(f'v_lshl_add_u32 v{VDW}, v3, 7, v4')
        e(f's_lshl_b32 s{sLb}, s{sWv}, 15')
    e(f's_mul_i32 s{sXo}, s28, {2 * NKS * 1024}')
    e(f's_mul_i32 s{sT0}, s{sWv}, {KW * 1024}')
    e(f's_add_u32 s{sXo}, s{sXo}, s{sT0}')
    e(f's_add_u32 s{sXo}, s{sXo}, {WS_XIN}')
    e(f's_add_u32 s{sXo1}, s{sXo}, {NKS * 1024}')
    if not dep:
        e(f's_mul_i32 s{sWo}, s{sWv}, {KW * 2048}')
        e(f's_lshl_b32 s{sT0}, s29, {19 if which == "wo" else 18}')
        e(f's_add_u32 s{sWo}, s{sWo}, s{sT0}')
        e(f's_add_u32 s{sWo}, s{sWo}, {WS_WOT if which == "wo" else WS_W2T}')
    e(f's_lshr_b32 s40, s{sWv}, 1')
    e(f's_and_b32 s47, s{sWv}, 1')
    e('s_lshl_b32 s41, s29, 6')
    e('s_lshl_b32 s42, s40, 5')
    e('s_add_u32 s41, s41, s42')
    e('s_lshl_b32 s42, s28, 6')
    e('s_lshl_b32 s43, s47, 5')
    e('s_add_u32 s42, s42, s43')
    e('v_lshrrev_b32 v4, 5, v2')
    e('v_and_b32 v5, 31, v2')
    e('v_add_u32 v6, s42, v5')
    e('v_lshlrev_b32 v6, 10, v6')
    e('v_lshl_add_u32 v6, v4, 4, v6')
    e('s_lshl_b32 s43, s41, 1')
    e('v_add_u32 v6, s43, v6')
    e('s_lshl_b32 s43, s42, 10')
    e('s_lshl_b32 s44, s41, 6')
    e('s_add_u32 s43, s43, s44')
    e(f's_add_u32 s43, s43, {WS_X1}')
    e('v_lshlrev_b32 v7, 5, v4')
    e('s_lshl_b32 s44, s41, 2')
    e(f's_add_u32 s44, s44, {WS_GA if which == "wo" else WS_GB}')
    yield 'setup'
    sp = 60 if which == 'wo' else 62
    srd(k, sG, sp, sp + 1, 2048 * 1024)

    def loads(ks):
        sl = ks % D
        r0 = XF + sl * 8
        return dict(
            m0=lambda: e(f's_add_u32 m0, s{sLb}, {sl * 2048}'),
            w0=lambda: e(f'buffer_load_dwordx4 v{VDW}, s[{sWS}:{sWS + 3}], s{sWo} offen lds', ('g', ks)),
            w1=lambda: e(f'buffer_load_dwordx4 v{VDW}, s[{sWS}:{sWS + 3}], s{sWo} offen offset:1024 lds', ('g', ks)),
            x0=lambda: e(f'buffer_load_dwordx4 v[{r0}:{r0 + 3}], v{VL16}, s[{sWS}:{sWS + 3}], s{sXo} offen offset:{(ks % 2) * 1024}{XA}', ('g', ks)),
            x1=lambda: e(f'buffer_load_dwordx4 v[{r0 + 4}:{r0 + 7}], v{VL16}, s[{sWS}:{sWS + 3}], s{sXo1} offen offset:{(ks % 2) * 1024}{XA}', ('g', ks)),
            uw=lambda: e(f's_add_u32 s{sWo}, s{sWo}, 2048'),
            ux=lambda: (e(f's_add_u32 s{sXo}, s{sXo}, 2048'), e(f's_add_u32 s{sXo1}, s{sXo1}, 2048')) if ks % 2 == 1 else None)

    def misc_setup():
        e('v_bfe_u32 v3, v2, 2, 2')
        e('v_lshl_add_u32 v1, v4, 3, v3')
        e('v_lshlrev_b32 v1, 7, v1')
        e(f'v_bfe_u32 v{VWR}, v2, 4, 1')
        e(f'v_lshl_add_u32 v1, v{VWR}, 5, v1')
        e(f'v_and_b32 v{VWR}, 1, v2')
        e(f'v_lshl_add_u32 v1, v{VWR}, 4, v1')
        e(f'v_bfe_u32 v{VWR}, v2, 1, 1')
        e(f'v_lshl_add_u32 v1, v{VWR}, 3, v1')
        e(f'v_add_u32 v1, s{sLb}, v1')
        e('v_lshrrev_b32 v3, 1, v3')
        e(f'v_lshl_add_u32 v{VWR}, v3, 6, v1')
        e('v_xor_b32 v3, 1, v3')
        e(f'v_lshl_add_u32 v{VWR + 1}, v3, 6, v1')
        for i in range(64):
            e(f'v_mov_b32 v{ACC + i}, 0')
        e(f's_mov_b32 s{sCnt}, {NIT - 1}')

    for u in range(2):
        e(f'buffer_load_dwordx4 v[{EP + 8 * u}:{EP + 8 * u + 3}], v7, s[{sWS}:{sWS + 3}], s44 offen offset:{64 * u}', 'ep')
        e(f'buffer_load_dwordx4 v[{EP + 8 * u + 4}:{EP + 8 * u + 7}], v7, s[{sWS}:{sWS + 3}], s44 offen offset:{64 * u + 16}', 'ep')
        if which == 'wo':
            e(f'buffer_load_dwordx4 v[{EP + 16 + 4 * u}:{EP + 19 + 4 * u}], v6, s[{sG}:{sG + 3}], 0 offen offset:{32 * u}', 'ep')
        elif not keep_x1:
            e(f'buffer_load_dwordx4 v[{EP + 16 + 4 * u}:{EP + 19 + 4 * u}], v{VL16}, s[{sWS}:{sWS + 3}], s43 offen offset:{1024 * u}', 'ep')
    if dep:
        assert NIT == 2
        NWP = D - 1
        yield 'prefetched'
        misc_setup()
        e('s_lshr_b32 s45, s28, 1')
        e('s_lshl_b32 s45, s45, 8')
        e(f's_add_u32 s45, s45, {WS_FB}')
        stamp(k, sbase)
        poll(k, name, ACC + 64 + 120, 2, 45, 56, opts)
        sbase += 1
        stamp(k, sbase)
        for ks in range(D - 1):
            L = loads(ks)
            for nm in (('x0', 'x1', 'ux') if ks < NWP else ('m0', 'x0', 'w0', 'w1', 'x1', 'uw', 'ux')):
                L[nm]()
    else:
        for ks in range(D - 1):
            L = loads(ks)
            for nm in ('m0', 'x0', 'w0', 'w1', 'x1', 'uw', 'ux'):
                L[nm]()
            if ks == 1:
                misc_setup()
        yield 'prefetched'
        stamp(k, sbase)

    def wreads(ks):
        sl = ks % D
        for nb in range(2):
            for t in range(2):
                r = WFr + (ks % 2) * 8 + nb * 4 + t * 2
                e(f'ds_read_b64_tr_b16 v[{r}:{r + 1}], v{VWR + nb} offset:{sl * 2048 + t * 512}', ('wf', ks))

    def kstep(ks, refill, last=False, extra=()):
        sl = ks % D
        L = loads(ks + D - 1) if refill else None
        for i in range(4):
            nb, mb = i // 2, i % 2
            acc = ACC + (nb * 2 + mb) * 16
            e(f'v_mfma_f32_32x32x16_bf16 {vr(acc, 16)}, {vr(WFr + (ks % 2) * 8 + nb * 4, 4)}, {vr(XF + (sl * 2 + mb) * 4, 4)}, {vr(acc, 16)}')
            if i == 0:
                if not last:
                    k.wait(vm=[('g', ks + 1)])
                    wreads(ks + 1)
                if L: L['m0']()
            elif i == 1 and L:
                L['x0'](); L['w0']()
            elif i == 2 and L:
                L['w1'](); L['x1'](); L['uw'](); L['ux']()
            elif i == 3 and not last:
                k.wait(lg=[('wf', ks + 1)])
            if i in (1, 2) and len(extra) >= i:
                extra[i - 1]()

    k.wait(vm=[('g', 0)])
    wreads(0)
    k.wait(lg=[('wf', 0)])
    stamp(k, sbase + 1)
    k.label(f'{name}_loop')
    for ks in range(D):
        kstep(ks, True)
    if NIT > 2:
        e(f's_sub_u32 s{sCnt}, s{sCnt}, 1')
        e(f's_cmp_lg_u32 s{sCnt}, 0')
        e(f's_cbranch_scc1 {name}_loop')
    early = list(early or [])
    for ks in range(D, 2 * D):
        ex = []
        E0 = opts.get('e0', 1)
        if early and ks == D + E0:
            ex = [early.pop(0)]
        elif early and ks > D + E0:
            ex = early[:2]; early = early[2:]
        kstep(ks, ks == D, last=(ks == 2 * D - 1), extra=ex)
    assert not early
    stamp(k, sbase + 2)
    e(f'v_add_u32 v3, s{sLb}, v{VL16}')
    for qd in range(16):
        e(f'ds_write_b128 v3, v[{ACC + 4 * qd}:{ACC + 4 * qd + 3}] offset:{POFF + qd * 1024}')
    e('s_waitcnt lgkmcnt(0)')
    e('s_barrier')
    e(f's_lshl_b32 s{sT0}, s{sWv}, 12')
    e(f'v_add_u32 v3, s{sT0}, v{VL16}')
    e(f'v_add_u32 v1, 0x10000, v3')
    RD = 72
    for w in range(4):
        a = 3 if w < 2 else 1
        for h in range(4):
            r = RD + (w * 4 + h) * 4
            e(f'ds_read_b128 v[{r}:{r + 3}], v{a} offset:{POFF + (w % 2) * 32768 + h * 1024}', ('r', w))
    for w in range(1, 4):
        k.wait(lg=[('r', w), ('r', 0)])
        for i in range(16):
            e(f'v_add_f32 v{RD + i}, v{RD + i}, v{RD + w * 16 + i}')
    if out_flag:
        e('s_barrier')
    k.wait(vm=['ep'])
    if which == 'w2' and keep_x1:
        for i in range(8):
            e(f'v_accvgpr_read_b32 v{EP + 16 + i}, a{X1KEEP + i}')
    for i in range(16):
        rbf(k, RD + i, RD + i)
    for i in range(16):
        e(f'v_mul_f32 v{RD + i}, v{RD + i}, v{EP + i}')
    for i in range(16):
        rbf(k, RD + i, RD + i)
    for i in range(16):
        src = EP + 16 + i // 2
        if i % 2 == 0:
            e(f'v_lshlrev_b32 v{RD + 16 + i}, 16, v{src}')
        else:
            e(f'v_and_b32 v{RD + 16 + i}, 0xffff0000, v{src}')
    for i in range(16):
        e(f'v_add_f32 v{RD + i}, v{RD + i}, v{RD + 16 + i}')
    for i in range(8):
        e(f'v_cvt_pk_bf16_f32 v{RD + 32 + i}, v{RD + 2 * i}, v{RD + 2 * i + 1}')
    for u in range(2):
        if which == 'w2':
            e(f'buffer_store_dwordx4 v[{RD + 32 + 4 * u}:{RD + 35 + 4 * u}], v6, s[{sG}:{sG + 3}], 0 offen offset:{32 * u}')
        else:
            e(f'buffer_store_dwordx4 v[{RD + 32 + 4 * u}:{RD + 35 + 4 * u}], v{VL16}, s[{sWS}:{sWS + 3}], s43 offen offset:{1024 * u}{SA}')
    if which == 'wo':
        if keep_x1:
            for i in range(8):
                e(f'v_accvgpr_write_b32 a{X1KEEP + i}, v{RD + 32 + i}')
        for i in range(16):
            src = RD + 32 + i // 2
            if i % 2 == 0:
                e(f'v_lshlrev_b32 v{RD + i}, 16, v{src}')
            else:
                e(f'v_and_b32 v{RD + i}, 0xffff0000, v{src}')
        A, B = RD + 16, RD + 17
        e(f'v_add_f32 v{A}, v{RD}, v{RD + 1}')
        e(f'v_mul_f32 v{B}, v{RD}, v{RD}')
        e(f'v_fmac_f32 v{B}, v{RD + 1}, v{RD + 1}')
        for i in range(2, 16):
            e(f'v_add_f32 v{A}, v{A}, v{RD + i}')
            e(f'v_fmac_f32 v{B}, v{RD + i}, v{RD + i}')
        e(f'v_mov_b32 v{A + 2}, v{A}')
        e(f'v_mov_b32 v{A + 3}, v{B}')
        e(f'v_permlane32_swap_b32 v{A}, v{A + 2}')
        e(f'v_permlane32_swap_b32 v{B}, v{A + 3}')
        e(f'v_add_f32 v{A}, v{A}, v{A + 2}')
        e(f'v_add_f32 v{B}, v{B}, v{A + 3}')
        e('s_lshl_b32 s45, s42, 7')
        e('s_lshr_b32 s46, s41, 2')
        e('s_add_u32 s45, s45, s46')
        e(f's_add_u32 s45, s45, {WS_ST}')
        e('v_lshlrev_b32 v3, 7, v5')
        e(f'buffer_store_dwordx2 v[{A}:{A + 1}], v3, s[{sWS}:{sWS + 3}], s45 offen{SA}')
        if out_flag:
            e('s_lshr_b32 s46, s28, 1')
            e('s_lshl_b32 s46, s46, 8')
            e('s_and_b32 s45, s28, 1')
            e('s_lshl_b32 s45, s45, 7')
            e('s_add_u32 s46, s46, s45')
            e('s_lshl_b32 s45, s29, 4')
            e('s_add_u32 s46, s46, s45')
            e(f's_lshl_b32 s45, s{sWv}, 2')
            e('s_add_u32 s46, s46, s45')
            e(f's_add_u32 s46, s46, {WS_FA}')
    stamp(k, sbase + 3)
    yield 'done'


def phase_ffn1(k, opts, dep, out_flag, sbase, early=None):
    e = k.e
    s1, s3_, sWS = 8, 20, sWS_T
    sW, sT0, sT1, sXb, sWo, sHb, sW4K = sWV_T, 33, 34, 35, 36, 37, 38
    ACC = 0
    XD = 12
    XR = 128
    H = 176
    SS = 184
    FT = 216
    WRA = 224
    VL16, VDW, VMD, VLANE, RS, NM = 232, 233, 234, 235, 236, 237
    T = 238
    WF = 0
    LDS_MOD = 131072
    XA = ' sc1' if dep else ''
    e('s_and_b32 s50, s2, 1')
    e('s_lshl_b32 s50, s50, 3')
    e('s_bfe_u32 s3, s2, 0x30003')
    e('s_add_u32 s50, s50, s3')
    lane_id(k, VLANE)
    e(f'v_lshlrev_b32 v{VL16}, 4, v{VLANE}')
    e(f'v_lshrrev_b32 v{T + 1}, 4, v{VLANE}')
    e(f'v_and_b32 v{T + 2}, 15, v{VLANE}')
    e(f'v_lshlrev_b32 v{T + 3}, 2, v{T + 1}')
    e(f'v_xor_b32 v{T + 3}, v{T + 3}, v{T + 2}')
    e(f'v_lshlrev_b32 v{T + 3}, 4, v{T + 3}')
    e(f'v_mul_u32_u24 v{T + 4}, 3584, v{T + 1}')
    e(f'v_add_u32 v{VDW}, v{T + 4}, v{T + 3}')
    e(f's_lshl_b32 s{sW4K}, s{sW}, 12')
    e('s_lshl_b32 s3, s50, 2')
    e(f's_add_u32 s3, s3, s{sW}')
    e(f's_lshl_b32 s{sXb}, s3, 15')
    e(f's_add_u32 s{sXb}, s{sXb}, {WS_X1}')
    e(f's_mul_i32 s{sHb}, s3, {112 * 1024}')
    e(f's_lshl_b32 s{sT0}, s51, 13')
    e(f's_add_u32 s{sHb}, s{sHb}, s{sT0}')
    e(f's_add_u32 s{sHb}, s{sHb}, {WS_HH}')
    e(f's_mul_i32 s{sWo}, s{sW}, {16 * 3584}')
    e(f's_lshl_b32 s{sT0}, s51, 8')
    e(f's_add_u32 s{sWo}, s{sWo}, s{sT0}')
    e(f'v_and_b32 v{T + 5}, 31, v{VLANE}')
    e(f'v_lshrrev_b32 v{T + 4}, 5, v{VLANE}')
    e(f'v_lshlrev_b32 v{T + 6}, 7, v{T + 5}')
    e(f'v_lshl_add_u32 v{T + 6}, v{T + 4}, 6, v{T + 6}')
    e(f's_lshl_b32 s39, s3, 12')
    e(f's_add_u32 s39, s39, {WS_ST}')
    yield 'setup'
    srd(k, s1, 56, 57, 512 * 3584)
    srd(k, s3_, 58, 59, 512 * 3584)

    def w_dma(c):
        out = []
        for mat, sd in enumerate((s1, s3_)):
            for p in range(4):
                g = []
                if p == 0:
                    g.append((1, lambda mat=mat: e(f's_add_u32 m0, s{sW4K}, {BSLOT[c % 4][mat]}')))
                g.append((1, lambda p=p: e(f's_add_u32 s{sT0}, s{sWo}, {c * 64 * 3584 + p * (4 * 3584 - 1024)}')))
                g.append((COST['dma'], lambda p=p, sd=sd: e(f'buffer_load_dwordx4 v{VDW}, s[{sd}:{sd + 3}], s{sT0} offen offset:{p * 1024} lds', ('wq', c))))
                out.append(g)
        return out

    def xreg(ks):
        return XR + (ks % XD) * 4

    def x_load(ks):
        r = xreg(ks)
        g = []
        if ks % 4 == 0:
            g.append((1, lambda: e(f's_add_u32 s{sT1}, s{sXb}, {(ks // 4) * 4096}')))
        g.append((COST['vload'], lambda: e(f'buffer_load_dwordx4 v[{r}:{r + 3}], v{VL16}, s[{sWS}:{sWS + 3}], s{sT1} offen offset:{(ks % 4) * 1024}{XA}', ('x', ks))))
        return g

    def addr_setup():
        e(f'v_lshrrev_b32 v{T + 7}, 2, v{T + 2}')
        e(f'v_and_b32 v{T + 8}, 1, v{T + 1}')
        e(f'v_lshlrev_b32 v{T + 8}, 5, v{T + 8}')
        e(f'v_and_b32 v{T + 9}, 1, v{VLANE}')
        e(f'v_lshl_add_u32 v{T + 8}, v{T + 9}, 4, v{T + 8}')
        e(f'v_bfe_u32 v{T + 9}, v{VLANE}, 1, 1')
        e(f'v_lshl_add_u32 v{T + 8}, v{T + 9}, 3, v{T + 8}')
        e(f'v_lshl_add_u32 v{T + 8}, v{T + 7}, 8, v{T + 8}')
        e(f'v_lshl_add_u32 v{T + 8}, v{T + 4}, 11, v{T + 8}')
        for db in range(4):
            e(f'v_xor_b32 v{T + 9}, {db}, v{T + 7}')
            e(f'v_lshl_add_u32 v{WRA + db}, v{T + 9}, 6, v{T + 8}')
            e(f'v_add_u32 v{WRA + 4 + db}, 0x10000, v{WRA + db}')
        e(f'v_lshlrev_b32 v{VMD}, 6, v{T + 4}')
        e(f'v_add_u32 v{VMD}, {LDS_MOD}, v{VMD}')

    ST = SS

    def st_loads():
        for j in range(4):
            e(f'buffer_load_dwordx4 v[{ST + 4 * j}:{ST + 3 + 4 * j}], v{T + 6}, s[{sWS}:{sWS + 3}], s39 offen offset:{16 * j}{XA}', 'st')

    def mod_dma():
        e(f's_lshl_b32 s{sT0}, s{sW}, 10')
        e(f's_add_u32 m0, s{sT0}, {LDS_MOD}')
        e(f's_add_u32 s{sT0}, s{sT0}, {WS_MOD2}')
        e(f'buffer_load_dwordx4 v{VL16}, s[{sWS}:{sWS + 3}], s{sT0} offen lds', ('wq', 0))

    if dep:
        NPRE = opts.get('npre4f', 4); NPX = 3
        mod_dma()
        for c in range(2, NPRE):
            for g in w_dma(c):
                for _, f in g: f()
        yield 'prefetched'
        addr_setup()
        e('s_lshl_b32 s45, s50, 8')
        e(f's_add_u32 s45, s45, {WS_FA}')
        stamp(k, sbase)
        poll(k, 'pb', T + 10, VLANE, 45, 64, opts)
        sbase += 1
        stamp(k, sbase)
        st_loads()
        for ks in range(4 * NPX):
            for _, f in x_load(ks): f()
    else:
        NPRE = 1; NPX = 1
        st_loads()
        mod_dma()
        for _, f in x_load(0): f()
        for g in w_dma(0):
            for _, f in g: f()
        for ks in range(1, 4):
            for _, f in x_load(ks): f()
        yield 'prefetched'
        addr_setup()
        stamp(k, sbase)
    k.wait(vm=['st'])
    e(f's_mov_b32 s3, {f32(1.0 / 512)}')
    r = ST
    for j in range(1, 8):
        e(f'v_add_f32 v{r}, v{r}, v{r + 2 * j}')
        e(f'v_add_f32 v{r + 1}, v{r + 1}, v{r + 2 * j + 1}')
    e(f'v_mov_b32 v{r + 2}, v{r}')
    e(f'v_mov_b32 v{r + 3}, v{r + 1}')
    e(f'v_permlane32_swap_b32 v{r}, v{r + 2}')
    e(f'v_permlane32_swap_b32 v{r + 1}, v{r + 3}')
    e(f'v_add_f32 v{r}, v{r}, v{r + 2}')
    e(f'v_add_f32 v{r + 1}, v{r + 1}, v{r + 3}')
    e(f'v_mul_f32 v{r}, s3, v{r}')
    e(f'v_mul_f32 v{r + 1}, s3, v{r + 1}')
    e(f'v_fma_f32 v{r + 1}, -v{r}, v{r}, v{r + 1}')
    e(f'v_max_f32 v{r + 1}, 0, v{r + 1}')
    rbf(k, r, r)
    rbf(k, r + 1, r + 1)
    e(f'v_add_f32 v{r + 1}, {f32(1e-5)}, v{r + 1}')
    rbf(k, r + 1, r + 1)
    e(f'v_sqrt_f32 v{r + 1}, v{r + 1}')
    rbf(k, r + 1, r + 1)
    e(f'v_rcp_f32 v{RS}, v{r + 1}')
    e(f'v_mul_f32 v{NM}, v{r}, v{RS}')
    e(f'v_sub_f32 v{NM}, 0, v{NM}')

    def w_reads(ks):
        out = []
        c = ks // 4
        for nb in range(8):
            mat, db = nb // 4, nb % 4
            off = BSLOT[c % 4][mat] + (ks % 4) * 4096
            base = WRA + (4 if off >= 65536 else 0) + db
            for t in range(2):
                r = WF + (ks % 2) * 32 + nb * 4 + t * 2
                out.append((COST['ds'], lambda r=r, base=base, t=t, off=off: e(f'ds_read_b64_tr_b16 a[{r}:{r + 1}], v{base} offset:{off % 65536 + t * 1024}', ('w', ks))))
        return out

    def ss_reads(ks):
        out = []
        for j in range(4):
            r = SS + (ks % 2) * 16 + 4 * j
            out.append((COST['ds'], lambda r=r, j=j: e(f'ds_read_b128 v[{r}:{r + 3}], v{VMD} offset:{ks * 128 + j * 16}', ('ss', ks))))
        return out

    def xform(ks):
        out = []
        sb = SS + (ks % 2) * 16
        x = xreg(ks)
        for p in range(4):
            t = FT + p * 2
            out.append((1, lambda p=p, t=t: e(f'v_lshlrev_b32 v{t}, 16, v{x + p}')))
            out.append((1, lambda p=p, t=t: e(f'v_and_b32 v{t + 1}, 0xffff0000, v{x + p}')))
            out.append((1, lambda t=t: e(f'v_fma_f32 v{t}, v{t}, v{RS}, v{NM}')))
            out.append((1, lambda t=t: e(f'v_fma_f32 v{t + 1}, v{t + 1}, v{RS}, v{NM}')))
            out.append((1, lambda p=p, t=t: e(f'v_fma_f32 v{t}, v{t}, v{sb + 2 * p}, v{sb + 8 + 2 * p}')))
            out.append((1, lambda p=p, t=t: e(f'v_fma_f32 v{t + 1}, v{t + 1}, v{sb + 2 * p + 1}, v{sb + 8 + 2 * p + 1}')))
            h = H + (ks % 2) * 4 + p
            out.append((1, lambda t=t, h=h: e(f'v_cvt_pk_bf16_f32 v{h}, v{t}, v{t + 1}')))
        return out

    todo = []
    wn = NPRE; xn = NPX
    while wn < 8 or xn < 8:
        if wn < 8 and wn <= xn:
            first = 0 if wn < 4 else 4 * (wn - 3)
            todo += [(first, g) for g in w_dma(wn)]; wn += 1
        else:
            for ks in range(4 * xn, 4 * xn + 4):
                todo.append((ks - XD, x_load(ks)))
            xn += 1
    RATE = opts.get('rate4', 5)
    early = list(early or [])

    k.wait(vm=[('wq', 0)])
    e('s_barrier')
    stamp(k, sbase + 1)
    for _, f in ss_reads(0) + w_reads(0) + ss_reads(1): f()
    k.wait(vm=[('x', 0)], lg=[('ss', 0)])
    for _, f in xform(0): f()
    k.wait(lg=[('w', 0)])
    for ks in range(32):
        mf = []
        for nb in range(8):
            def m(nb=nb):
                acc = ACC + nb * 16
                c = '0' if ks == 0 else vr(acc, 16)
                e(f'v_mfma_f32_32x32x16_bf16 {vr(acc, 16)}, {ar(WF + (ks % 2) * 32 + nb * 4, 4)}, {vr(H + (ks % 2) * 4, 4)}, {c}')
            mf.append(m)
        fx = {}; st = []; caps = {}
        if ks + 1 < 32:
            newc = (ks + 1) % 4 == 0
            vmw = [('x', ks + 1)] + ([('wq', (ks + 1) // 4)] if newc else [])
            fx.setdefault(0, []).append((0, lambda: k.wait(vm=vmw, lg=[('ss', ks + 1)]), 'wait'))
            if newc:
                fx.setdefault(0, []).append((6, lambda: e('s_barrier'), 'bar'))
            g0 = 1 if newc else 0
            rd = (ss_reads(ks + 2) if ks + 2 < 32 else []) + w_reads(ks + 1)
            for i, it in enumerate(rd):
                fx.setdefault(g0 + i // 4, []).append((it[0], it[1], 'ds'))
            st = xform(ks + 1)
            fx.setdefault(7, []).append((0, lambda: k.wait(lg=[('w', ks + 1)]), 'wait'))
        groups = []
        while todo and len(groups) < RATE and todo[0][0] <= ks:
            groups.append(todo.pop(0)[1])
        if early and ks == 22:
            groups.append([(8, early.pop(0))])
        elif early and ks >= 24 and len(early) > 5:
            groups.append([(6, early.pop(0))])
        gl = sorted([6, 7, 5, 4, 3, 2][:len(groups)])
        for g, grp in zip(gl, groups):
            for it in grp[:-1]:
                fx.setdefault(g - 1, []).append((it[0], it[1], 'end'))
            fx.setdefault(g, []).append((grp[-1][0], grp[-1][1], 'dma'))
        schedule(k, mf, fx, st, caps=caps, last_gap=6, cap=8)
    assert not todo
    if out_flag:
        e('s_barrier')
        for f in early: f()
    stamp(k, sbase + 2)
    e(f's_mov_b32 s3, {f32(-LOG2E)}')
    e(f's_add_u32 s{sT0}, s{sHb}, 4096')
    n = 0
    for j in range(4):
        for u in range(2):
            g = ACC + j * 16 + 8 * u
            up = ACC + (4 + j) * 16 + 8 * u
            t = XR + (n % 4) * 12; n += 1
            for i in range(8):
                e(f'v_mul_f32 v{t + i}, s3, v{g + i}')
            for i in range(8):
                e(f'v_exp_f32 v{t + i}, v{t + i}')
            for i in range(8):
                e(f'v_add_f32 v{t + i}, 1.0, v{t + i}')
            for i in range(8):
                e(f'v_rcp_f32 v{t + i}, v{t + i}')
            for i in range(8):
                e(f'v_mul_f32 v{g + i}, v{g + i}, v{t + i}')
            for i in range(8):
                e(f'v_mul_f32 v{g + i}, v{g + i}, v{up + i}')
            for i in range(4):
                e(f'v_cvt_pk_bf16_f32 v{t + 8 + i}, v{g + 2 * i}, v{g + 2 * i + 1}')
            kk = 2 * j + u
            so = sHb if kk < 4 else sT0
            e(f'buffer_store_dwordx4 v[{t + 8}:{t + 11}], v{VL16}, s[{sWS}:{sWS + 3}], s{so} offen offset:{(kk % 4) * 1024} sc1')
    if out_flag:
        e('s_lshl_b32 s46, s50, 8')
        e('s_lshl_b32 s45, s51, 4')
        e('s_add_u32 s46, s46, s45')
        e(f's_lshl_b32 s45, s{sW}, 2')
        e('s_add_u32 s46, s46, s45')
        e(f's_add_u32 s46, s46, {WS_FB}')
    stamp(k, sbase + 3)
    yield 'done'


def run_until(gen, tag):
    for t in gen:
        if t == tag:
            return
    raise RuntimeError('phase tag not reached: ' + tag)


def gen_tail(name, phases, opts, kidx):
    k = Kern(name)
    e = k.e
    e('s_cmp_ge_u32 s2, 256')
    e(f's_cbranch_scc1 {name}_end')
    if 'B' in phases:
        e('s_bfe_u32 s51, s2, 0x20001')
        e('s_lshr_b32 s3, s2, 6')
        e('s_lshl_b32 s3, s3, 2')
        e('s_add_u32 s51, s51, s3')
        if phases == 'B':
            e('s_cmp_ge_u32 s51, 14')
            e(f's_cbranch_scc1 {name}_end')
    stamp(k, 0)
    e(f's_load_dwordx2 s[6:7], s[0:1], {A_WS}')
    if 'A' in phases:
        e(f's_load_dwordx2 s[60:61], s[0:1], {A_X}')
    if 'B' in phases:
        e(f's_load_dwordx4 s[56:59], s[0:1], {A_W1}')
    if 'C' in phases:
        e(f's_load_dwordx2 s[62:63], s[0:1], {A_OUT}')
    e('v_lshrrev_b32 v1, 6, v0')
    e(f'v_readfirstlane_b32 s{sWV_T}, v1')
    keep = 'A' in phases and 'C' in phases
    first = True
    pending_flag = False
    sb = 1
    for pi, ph in enumerate(phases):
        dep = pi > 0
        out_flag = pi + 1 < len(phases)
        if ph == 'B' and len(phases) > 1:
            if first:
                e('s_waitcnt lgkmcnt(0)')
                srd(k, sWS_T, 6, 7, WS_SIZE)
                first = False
            e('s_cmp_ge_u32 s51, 14')
            e(f's_cbranch_scc1 {name}_skipb')
        if ph == 'B':
            g = phase_ffn1(k, opts, dep, out_flag, sb, early_c(k, 13) if out_flag else None)
        else:
            g = phase_gemm64(k, 'wo' if ph == 'A' else 'w2', opts, dep, out_flag, keep, sb, early_b(k) if out_flag else None)
        run_until(g, 'setup')
        if first:
            e('s_waitcnt lgkmcnt(0)')
            srd(k, sWS_T, 6, 7, WS_SIZE)
            first = False
        if pending_flag:
            signal(k, 244 if ph == 'C' else 252, 46, 0)
        run_until(g, 'prefetched')
        run_until(g, 'done')
        pending_flag = out_flag
        if ph == 'B' and len(phases) > 1:
            if pi + 1 < len(phases):
                e(f's_branch {name}_joinb')
                k.label(f'{name}_skipb')
                if pi > 0:
                    signal(k, 252, 46, 0)
                for f in early_c(k, 13): f()
                e(f's_mov_b32 s46, {WS_FDUMMY}')
                k.label(f'{name}_joinb')
            else:
                e(f's_branch {name}_fin')
                k.label(f'{name}_skipb')
                if pi > 0:
                    signal(k, 252, 46, 0)
                k.label(f'{name}_fin')
        sb += 5 if dep else 4
    if STAMP:
        e(f's_lshl_b32 s100, s{sWV_T}, 6')
        e('v_mov_b32 v0, s100')
    stamp_flush(k, sb, sWS_T, kidx)
    k.label(f'{name}_end')
    e('s_endpgm')
    return k, 'grid=(256,1,1) block=(256,1,1) lds=135168'


def build(opts=None):
    global STAMP
    opts = opts or {}
    STAMP = opts.get('stamp', False)
    for kk in COST:
        if 'c_' + kk in opts: COST[kk] = opts['c_' + kk]
    ks = [gen_prep(opts), gen_attn(opts)]
    for i, ph in enumerate(opts.get('fuse', 'A|B|C').split('|')):
        ks.append(gen_tail('tail' + ph.lower() + '_kernel', ph, opts, 2 + i))
    hdr = open('adaLN_cond__mha_block_cached__glu_gated_swiglu__prompt.s.ref').read().split('\n')
    out = []
    for l in hdr:
        if l.startswith('; Override') or l.startswith('; grid=') or '@launch' in l or not l.startswith(';'):
            if not l.startswith(';'):
                break
            continue
        out.append(l)
    for k, launch in ks:
        for _ in range(1 + opts.get('dup_' + k.name[:5], 0)):
            out.append(f'; @launch kernel={k.name} {launch}')
    out.append('.amdgcn_target "amdgcn-amd-amdhsa--gfx950"')
    out.append('.text')
    for k, _ in ks:
        n = k.fix_hazards(verbose=opts.get('verbose', False))
        print(f'{k.name}: {len(k.ins)} instr, {n} hazard nop states, regs {k.max_regs()}', file=sys.stderr)
        out.append(f'.globl {k.name}')
        out.append('.p2align 8')
        out.append(f'.type {k.name},@function')
        out.append(f'{k.name}:')
        out.append(k.text())
    out.append('code_end:')
    errs = 0
    errs += ks[0][0].verify_path({})
    errs += ks[0][0].verify_path({'prep_ln': 1})
    errs += ks[1][0].verify_path({'attn_tail': [False, False, False, True], 'attn_copy': [True, True, True, True], 'attn_copy_st': [False, True], 'attn_copy_ret': [False, False, True, True]})
    for k, _ in ks[2:]:
        errs += k.verify_path({'pa_loop': 2, 'pb_go': [False, True], 'pc_go': [False, True]})
        errs += k.verify_path({'pa_loop': 2, 'pb_go': 1, 'pc_go': 1})
        errs += k.verify_path({'pa_loop': 2, 'pb_go': 1, 'pc_go': 1, k.name + '_skipb': 1})
    assert errs == 0, errs
    out.append('.section .rodata,"a"')
    for k, _ in ks:
        out.append('.p2align 6')
        out.append(descriptor(k, 264 if k.name.startswith('tail') else 0))
    return '\n'.join(out)


if __name__ == '__main__':
    dst = sys.argv[1] if len(sys.argv) > 1 else 'adaLN_cond__mha_block_cached__glu_gated_swiglu__prompt.s'
    opts = {}
    for a in sys.argv[2:]:
        kk, _, v = a.partition('=')
        opts[kk] = eval(v) if v else True
    open(dst, 'w').write(build(opts))
```

```python
import sys, struct, math
from asmlib import *

A_X, A_K, A_V, A_WQ, A_WO, A_BX, A_W1, A_W3, A_W2, A_C, A_WMOD, A_OUT, A_DBG, A_WS = [8 * i for i in range(14)]
WS_MOD1 = 0
WS_GA = 4096
WS_MOD2 = 8192
WS_GB = 8192 + 4096
WS_FA = 0x4000
WS_FB = 0x5000
WS_FDUMMY = 0x6000
WS_XHAT = 0x10000
WS_O = 0x400000
WS_X1 = 0x1400000
WS_ST = 0x1600000
WS_HH = 0x1800000
WS_WOT = 0x2000000
WS_W2T = 0x2400000
WS_H2 = 0x2600000
WS_P = 0x3000000
WS_SIZE = 0x4000000

LOG2E = 1.4426950408889634


def f32(x):
    return '0x%08x' % struct.unpack('<I', struct.pack('<f', x))[0]


def srd(k, d, lo, hi, nbytes):
    k.e(f's_mov_b32 s{d}, s{lo}')
    k.e(f's_and_b32 s{d + 1}, s{hi}, 0xffff')
    k.e(f's_mov_b32 s{d + 2}, {nbytes}')
    k.e(f's_mov_b32 s{d + 3}, 0x00020000')


WS_STAMP = 0x1F00000
STAMP = False


def stamp(k, idx):
    if not STAMP:
        return
    k.e('s_waitcnt lgkmcnt(0)')
    k.e(f's_memtime s[{64 + 2 * idx}:{65 + 2 * idx}]')
    if idx == 0:
        k.e('s_memrealtime s[96:97]')
    k.e('s_waitcnt lgkmcnt(0)')


def stamp_flush(k, n, sws, kidx):
    if not STAMP:
        return
    e = k.e
    e('s_waitcnt vmcnt(0) lgkmcnt(0)')
    stamp(k, n)
    e('s_memrealtime s[98:99]')
    e('s_waitcnt lgkmcnt(0)')
    lab = k.newlabel('nost')
    e('v_readfirstlane_b32 s100, v0')
    e('s_cmp_lg_u32 s100, 0')
    e(f's_cbranch_scc1 {lab}')
    e('s_lshl_b32 s100, s2, 7')
    e(f's_add_u32 s100, s100, {WS_STAMP + kidx * 65536}')
    e('v_mov_b32 v1, 0')
    for i in range(n + 1):
        e(f'v_mov_b32 v2, s{64 + 2 * i}')
        e(f'buffer_store_dword v2, v1, s[{sws}:{sws + 3}], s100 offen offset:{4 * i}')
    e('v_mov_b32 v2, s96')
    e(f'buffer_store_dword v2, v1, s[{sws}:{sws + 3}], s100 offen offset:120')
    e('v_mov_b32 v2, s98')
    e(f'buffer_store_dword v2, v1, s[{sws}:{sws + 3}], s100 offen offset:124')
    k.label(lab)


def code_touch(k, v, sp, sidx, vlane, start, end):
    e = k.e
    lab = k.newlabel('pc')
    e(f's_getpc_b64 s[{sp}:{sp + 1}]')
    k.label(lab)
    e(f's_add_u32 s{sp}, s{sp}, {start}-{lab}')
    e(f's_addc_u32 s{sp + 1}, s{sp + 1}, 0')
    e(f's_lshl_b32 s{sidx}, s{sidx}, 13')
    e(f'v_lshlrev_b32 v{v}, 7, v{vlane}')
    e(f'v_add_u32 v{v}, s{sidx}, v{v}')
    e(f'v_min_u32 v{v}, {end}-{start}-4, v{v}')
    e(f'v_mov_b32 v{v + 1}, s{sp + 1}')
    e(f'v_add_co_u32 v{v}, vcc, s{sp}, v{v}')
    e(f'v_addc_co_u32 v{v + 1}, vcc, 0, v{v + 1}, vcc')
    e(f'global_load_dword v{v + 2}, v[{v}:{v + 1}], off', 'code')


def rbf(k, d, s):
    k.e(f'v_cvt_pk_bf16_f32 v{d}, 0, v{s}')


def allreduce16(k, v, t):
    for mod in ('quad_perm:[1,0,3,2]', 'quad_perm:[2,3,0,1]', 'row_half_mirror', 'row_mirror'):
        k.e(f'v_add_f32_dpp v{t}, v{v}, v{v} {mod} row_mask:0xf bank_mask:0xf')
        v, t = t, v


def gen_prep(opts):
    k = Kern('prep_kernel')
    e = k.e
    NMOD, NLN = 96, 128
    e(f's_cmp_ge_u32 s2, {NMOD + NLN}')
    e('s_cbranch_scc1 prep_end')
    stamp(k, 0)
    e(f's_load_dwordx2 s[4:5], s[0:1], {A_WS}')
    e(f's_load_dwordx2 s[6:7], s[0:1], {A_X}')
    e(f's_load_dwordx4 s[20:23], s[0:1], {A_C}')
    e(f's_load_dwordx4 s[36:39], s[0:1], {A_K}')
    e(f's_load_dwordx2 s[40:41], s[0:1], {A_WQ}')

    def prefetch(ln=False):
        if opts.get('cpf', 1):
            lab = k.newlabel('nocpf')
            e('v_lshrrev_b32 v72, 6, v0')
            e('v_and_b32 v73, 63, v0')
            e('v_readfirstlane_b32 s42, v72')
            e('s_lshr_b32 s43, s2, 3')
            e('s_lshl_b32 s43, s43, 2')
            e('s_add_u32 s43, s43, s42')
            e('s_cmp_ge_u32 s43, (code_end-attn_kernel+8191)/8192')
            e(f's_cbranch_scc1 {lab}')
            code_touch(k, 74, 44, 43, 73, 'attn_kernel', 'code_end')
            k.vmq.pop()
            k.label(lab)
        if opts.get('pf1', 2) == 2:
            if ln:
                e('v_lshrrev_b32 v72, 6, v0')
                e('v_and_b32 v73, 63, v0')
                e('v_readfirstlane_b32 s42, v72')
                e('v_lshrrev_b32 v77, 3, v73')
                e('v_and_b32 v78, 7, v73')
                e('v_lshlrev_b32 v77, 13, v77')
                e('v_lshl_add_u32 v77, v78, 7, v77')
                e(f's_sub_u32 s43, s2, {NMOD}')
                e('s_lshr_b32 s43, s43, 3')
                e('s_lshl_b32 s43, s43, 2')
                e('s_add_u32 s43, s43, s42')
                e('s_lshl_b32 s43, s43, 16')
                e('s_and_b32 s44, s2, 7')
                e('s_lshl_b32 s44, s44, 10')
                e('s_add_u32 s43, s43, s44')
                srd(k, 48, 40, 41, 512 * 8192)
                e('buffer_load_dword v78, v77, s[48:51], s43 offen', 'pf')
                if opts.get('pf64', 0):
                    e('buffer_load_dword v79, v77, s[48:51], s43 offen offset:64', 'pf')
            return
        if not opts.get('pf1', 2):
            return
        e('v_lshrrev_b32 v72, 6, v0')
        e('v_and_b32 v73, 63, v0')
        e('v_readfirstlane_b32 s42, v72')
        e('v_lshrrev_b32 v74, 4, v73')
        e('v_and_b32 v75, 15, v73')
        e('v_lshlrev_b32 v74, 13, v74')
        e('v_lshl_add_u32 v74, v75, 6, v74')
        e('v_lshlrev_b32 v73, 6, v73')
        e('s_lshr_b32 s43, s2, 3')
        e('s_lshl_b32 s43, s43, 2')
        e('s_add_u32 s43, s43, s42')
        e('s_and_b32 s44, s2, 7')
        srd(k, 48, 40, 41, 512 * 8192)
        e('s_lshl_b32 s45, s43, 15')
        e('s_lshl_b32 s46, s44, 10')
        e('s_add_u32 s45, s45, s46')
        e('buffer_load_dword v76, v74, s[48:51], s45 offen', 'pf')
        e(f's_add_u32 s45, s45, {112 * 32768}')
        e('buffer_load_dword v77, v74, s[48:51], s45 offen', 'pf')
        e('s_and_b32 s45, s43, 63')
        e('s_lshr_b32 s46, s45, 4')
        e('s_lshl_b32 s47, s44, 2')
        e('s_add_u32 s46, s46, s47')
        e('s_lshl_b32 s46, s46, 19')
        e('s_and_b32 s45, s45, 15')
        e('s_lshl_b32 s45, s45, 12')
        e('s_add_u32 s45, s45, s46')
        srd(k, 48, 36, 37, 32 * 524288)
        e('buffer_load_dword v78, v73, s[48:51], s45 offen', 'pf')
        srd(k, 48, 38, 39, 32 * 524288)
        e('buffer_load_dword v79, v73, s[48:51], s45 offen', 'pf')
    e(f's_cmp_ge_u32 s2, {NMOD}')
    e('s_cbranch_scc1 prep_ln')
    e('v_and_b32 v1, 3, v0')
    e('v_lshrrev_b32 v2, 2, v0')
    e('s_mov_b32 s3, 49152')
    e('v_mul_lo_u32 v3, v2, s3')
    e('v_lshl_add_u32 v3, v1, 4, v3')
    e('s_lshl_b32 s3, s2, 6')
    e('v_add_u32 v3, s3, v3')
    e('v_lshlrev_b32 v4, 4, v2')
    e('s_waitcnt lgkmcnt(0)')
    srd(k, 8, 20, 21, 1024)
    srd(k, 12, 22, 23, 512 * 6144)
    srd(k, 16, 4, 5, WS_SIZE)
    e('buffer_load_dwordx4 v[8:11], v4, s[8:11], 0 offen', 'c')
    for i in range(8):
        e(f's_mov_b32 s{24 + i}, {i * 6144}')
        e(f'buffer_load_dwordx4 v[{16 + 4 * i}:{19 + 4 * i}], v3, s[12:15], s{24 + i} offen', ('w', i))
    prefetch()
    k.wait(vm=['c'])
    e(f's_mov_b32 s3, {f32(-LOG2E)}')
    for i in range(8):
        src = 8 + i // 2
        if i % 2 == 0:
            e(f'v_lshlrev_b32 v{48 + i}, 16, v{src}')
        else:
            e(f'v_and_b32 v{48 + i}, 0xffff0000, v{src}')
    for i in range(8):
        e(f'v_mul_f32 v{56 + i}, s3, v{48 + i}')
    for i in range(8):
        e(f'v_exp_f32 v{56 + i}, v{56 + i}')
    for i in range(8):
        e(f'v_add_f32 v{56 + i}, 1.0, v{56 + i}')
    for i in range(8):
        e(f'v_rcp_f32 v{56 + i}, v{56 + i}')
    for i in range(8):
        e(f'v_mul_f32 v{48 + i}, v{48 + i}, v{56 + i}')
    for i in range(8):
        rbf(k, 48 + i, 48 + i)
    for i in range(8):
        k.wait(vm=[('w', i)])
        for p in range(4):
            w = 16 + 4 * i + p
            e(f'v_lshlrev_b32 v56, 16, v{w}')
            e(f'v_and_b32 v57, 0xffff0000, v{w}')
            if i == 0:
                e(f'v_mul_f32 v{64 + 2 * p}, v48, v56')
                e(f'v_mul_f32 v{65 + 2 * p}, v48, v57')
            else:
                e(f'v_fmac_f32 v{64 + 2 * p}, v{48 + i}, v56')
                e(f'v_fmac_f32 v{65 + 2 * p}, v{48 + i}, v57')
    e('v_lshlrev_b32 v5, 5, v0')
    e('ds_write_b128 v5, v[64:67]')
    e('ds_write_b128 v5, v[68:71] offset:16')
    e('s_waitcnt lgkmcnt(0)')
    e('s_barrier')
    e('v_and_b32 v6, 31, v0')
    e('v_lshrrev_b32 v7, 5, v0')
    e('v_lshlrev_b32 v5, 10, v7')
    e('v_lshl_add_u32 v5, v6, 2, v5')
    for i in range(8):
        e(f'ds_read_b32 v{16 + i}, v5 offset:{i * 128}')
    e('s_waitcnt lgkmcnt(0)')
    for i in range(1, 8):
        e(f'v_add_f32 v16, v16, v{16 + i}')
    e('v_lshlrev_b32 v5, 2, v0')
    e('ds_write_b32 v5, v16 offset:8192')
    e('s_waitcnt lgkmcnt(0)')
    e('s_barrier')
    e('v_cmp_gt_u32 vcc, 32, v0')
    e('s_and_saveexec_b64 s[32:33], vcc')
    e('s_cbranch_execz prep_end')
    for i in range(8):
        e(f'ds_read_b32 v{16 + i}, v5 offset:{8192 + i * 128}')
    e('s_waitcnt lgkmcnt(0)')
    for i in range(1, 8):
        e(f'v_add_f32 v16, v16, v{16 + i}')
    rbf(k, 16, 16)
    e('v_add_f32 v17, 1.0, v16')
    rbf(k, 17, 17)
    e('s_lshr_b32 s24, s2, 4')
    e('s_and_b32 s25, s2, 15')
    e('s_lshl_b32 s25, s25, 5')
    e('v_add_u32 v6, s25, v0')
    e('s_cmp_ge_u32 s24, 3')
    e('s_cselect_b32 s26, 8192, 0')
    e('s_cselect_b32 s27, 3, 0')
    e('s_sub_u32 s24, s24, s27')
    e('v_lshrrev_b32 v7, 3, v6')
    e('v_lshlrev_b32 v7, 6, v7')
    e('v_and_b32 v8, 7, v6')
    e('v_lshl_add_u32 v7, v8, 2, v7')
    e('v_lshlrev_b32 v8, 2, v6')
    stamp_flush(k, 1, 16, 0)
    e('s_cmp_eq_u32 s24, 2')
    e('s_cbranch_scc1 prep_gate')
    e('s_cmp_eq_u32 s24, 1')
    e('s_cbranch_scc1 prep_scale')
    e('buffer_store_dword v16, v7, s[16:19], s26 offen offset:32')
    e('s_endpgm')
    k.label('prep_scale')
    e('buffer_store_dword v17, v7, s[16:19], s26 offen')
    e('s_endpgm')
    k.label('prep_gate')
    e('s_add_u32 s26, s26, 4096')
    e('buffer_store_dword v16, v8, s[16:19], s26 offen')
    e('s_endpgm')
    k.label('prep_ln')
    e(f's_sub_u32 s3, s2, {NMOD}')
    e('s_lshl_b32 s3, s3, 4')
    e('v_lshrrev_b32 v1, 4, v0')
    e('v_add_u32 v1, s3, v1')
    e('v_and_b32 v2, 15, v0')
    e('v_lshlrev_b32 v3, 10, v1')
    e('v_lshl_add_u32 v3, v2, 4, v3')
    e('s_waitcnt lgkmcnt(0)')
    srd(k, 8, 6, 7, 2048 * 1024)
    srd(k, 16, 4, 5, WS_SIZE)
    for j in range(4):
        e(f'buffer_load_dwordx4 v[{8 + 4 * j}:{11 + 4 * j}], v3, s[8:11], 0 offen offset:{256 * j}', ('x', j))
    prefetch(True)
    e(f's_sub_u32 s43, s2, {NMOD}')
    e('s_cmp_ge_u32 s43, 8')
    e('s_cbranch_scc1 prep_nofl')
    e('s_lshl_b32 s43, s43, 10')
    e(f's_add_u32 s43, s43, {WS_FA}')
    e('v_lshlrev_b32 v72, 2, v0')
    e('v_mov_b32 v73, 0')
    e('buffer_store_dword v73, v72, s[16:19], s43 offen')
    k.vmq.pop()
    k.label('prep_nofl')
    e('v_lshrrev_b32 v4, 5, v1')
    e('v_lshlrev_b32 v4, 15, v4')
    e('v_lshrrev_b32 v5, 1, v2')
    e('v_lshl_add_u32 v4, v5, 10, v4')
    e('v_and_b32 v5, 1, v2')
    e('v_lshl_add_u32 v4, v5, 9, v4')
    e('v_and_b32 v5, 31, v1')
    e('v_lshl_add_u32 v4, v5, 4, v4')
    X = 32
    for j in range(4):
        k.wait(vm=[('x', j)])
        for p in range(4):
            e(f'v_lshlrev_b32 v{X + 8 * j + 2 * p}, 16, v{8 + 4 * j + p}')
            e(f'v_and_b32 v{X + 8 * j + 2 * p + 1}, 0xffff0000, v{8 + 4 * j + p}')
    e(f'v_add_f32 v24, v{X}, v{X + 1}')
    e(f'v_add_f32 v25, v{X + 2}, v{X + 3}')
    for i in range(4, 32):
        e(f'v_add_f32 v{24 + i % 2}, v{24 + i % 2}, v{X + i}')
    e('v_add_f32 v24, v24, v25')
    allreduce16(k, 24, 25)
    e(f's_mov_b32 s3, {f32(1.0 / 512)}')
    e('v_mul_f32 v24, s3, v24')
    for i in range(32):
        e(f'v_sub_f32 v{64 + i % 4}, v{X + i}, v24')
        if i < 2:
            e(f'v_mul_f32 v{26 + i}, v{64 + i % 4}, v{64 + i % 4}')
        else:
            e(f'v_fmac_f32 v{26 + i % 2}, v{64 + i % 4}, v{64 + i % 4}')
    e('v_add_f32 v26, v26, v27')
    allreduce16(k, 26, 27)
    e('v_mul_f32 v26, s3, v26')
    rbf(k, 24, 24)
    rbf(k, 26, 26)
    e(f'v_add_f32 v26, {f32(1e-5)}, v26')
    rbf(k, 26, 26)
    e('v_sqrt_f32 v26, v26')
    rbf(k, 26, 26)
    e('v_rcp_f32 v26, v26')
    e(f's_mov_b32 s24, {WS_XHAT}')
    for j in range(4):
        for i in range(8):
            r = X + 8 * j + i
            e(f'v_sub_f32 v{r}, v{r}, v24')
        for i in range(8):
            r = X + 8 * j + i
            rbf(k, r, r)
        for i in range(8):
            r = X + 8 * j + i
            e(f'v_mul_f32 v{r}, v{r}, v26')
        for i in range(8):
            r = X + 8 * j + i
            rbf(k, r, r)
        for p in range(4):
            r = X + 8 * j + 2 * p
            e(f'v_cvt_pkrtz_f16_f32 v{8 + 4 * j + p}, v{r}, v{r + 1}')
        e(f'buffer_store_dwordx4 v[{8 + 4 * j}:{11 + 4 * j}], v4, s[16:19], s24 offen')
        if j < 3:
            e(f's_add_u32 s24, s24, 8192')
    stamp_flush(k, 1, 16, 0)
    k.label('prep_end')
    e('s_endpgm')
    return k, f'grid=({NMOD + NLN},1,1) block=(256,1,1) lds=9216'


COST = {'exp': 2, 'valu': 1, 'ds': 1, 'dma': 2.5, 'salu': 1, 'vload': 2.5}
GAPCAP = 6
ORDER = {'wait': 0, 'bar': 1, 'dma': 2, 'ds': 3, 'end': 9}


def schedule(k, mfmas, fixed, stream, last_gap=None, cap=GAPCAP, caps=None):
    n = len(mfmas)
    if last_gap is None:
        last_gap = n - 1
    spare = []
    for g in range(n):
        c = sum(x[0] for x in fixed.get(g, []))
        cp = caps.get(g, cap) if caps else cap
        spare.append(max(cp - c, 0) if g <= last_gap else 0)
    tot_spare = sum(spare)
    tot = sum(x[0] for x in stream)
    si = 0
    done = 0.0
    cum = 0
    lastg = max([g for g in range(n) if spare[g] > 0] or [n - 1])
    for g in range(n):
        mfmas[g]()
        fx = sorted(fixed.get(g, []), key=lambda x: ORDER[x[2]])
        cum += spare[g]
        target = tot * cum / max(tot_spare, 1)
        mine = []
        while si < len(stream) and ((spare[g] > 0 and done + stream[si][0] * 0.5 <= target) or g >= lastg):
            mine.append(stream[si]); done += stream[si][0]; si += 1
        for x in fx:
            if x[2] != 'end': x[1]()
        for x in mine: x[1]()
        for x in fx:
            if x[2] == 'end': x[1]()
    assert si == len(stream)


def gemm256(k, P):
    e = k.e
    QX = P.get('qx', '')
    P['chunk_barrier'](0)
    for _, f in P['ss_reads'](0) + P['w_reads'](0) + P['ss_reads'](1): f()
    k.wait(vm=[('x', 0)], lg=[('ss', 0)])
    for _, f in P['xform'](0): f()
    k.wait(lg=[('w', 0)])
    for ks in range(32):
        mf = []
        for db in range(4):
            for qb in range(2):
                def m(db=db, qb=qb):
                    acc = P['ACC'] + (db * 2 + qb) * 16
                    wf = P['WF'] + (ks % 2) * 16 + db * 4
                    h = P['H'] + (ks % 2) * 8 + qb * 4
                    c = '0' if ks == 0 else ar(acc, 16)
                    e(f'v_mfma_f32_32x32x16_bf16 {ar(acc, 16)}, {ar(wf, 4)}, {vr(h, 4)}, {c}')
                mf.append(m)
        fx = {}
        st = []
        caps = {}
        if ks + 1 < 32:
            newc = (ks + 1) % 4 == 0
            if newc:
                fx.setdefault(0, []).append((0, lambda: k.wait(vm=[('wq', (ks + 1) // 4), ('x', ks + 1)], lg=[('ss', ks + 1)]), 'wait'))
                if 'B' not in QX: fx.setdefault(0, []).append((6, lambda: e('s_barrier'), 'bar'))
                caps[1] = 4
            else:
                fx.setdefault(0, []).append((0, lambda: k.wait(vm=[('x', ks + 1)], lg=[('ss', ks + 1)]), 'wait'))
            g0 = 1 if newc else 0
            rd = (P['ss_reads'](ks + 2) if ks + 2 < 32 and 'S' not in QX else []) + (P['w_reads'](ks + 1) if 'W' not in QX else [])
            for i, it in enumerate(rd):
                fx.setdefault(g0 + i // 3, []).append((it[0], it[1], 'ds'))
            st = P['xform'](ks + 1) if 'T' not in QX else []
            fx.setdefault(7, []).append((0, lambda: k.wait(lg=[('w', ks + 1)]), 'wait'))
        groups = P['refill'](ks)
        if 'V' in QX: groups = []
        gl = [5, 6, 4, 7, 3, 2][:len(groups)]
        gl.sort()
        for g, grp in zip(gl, groups):
            for it in grp[:-1]:
                fx.setdefault(g - 1, []).append((it[0], it[1], 'end'))
            fx.setdefault(g, []).append((grp[-1][0], grp[-1][1], 'dma'))
        schedule(k, mf, fx, st, caps=caps, last_gap=6, cap=7)


class G256:
    pass


BIAS = 100.0
THRESH = 2.0 ** 80


def gen_attn(opts):
    global BIAS
    BIAS = opts.get('bias', BIAS)
    k = Kern('attn_kernel')
    e = k.e
    sK, sV, sWQ, sWS = 8, 12, 16, 20
    sW, sW4K, sKoff, sVoff, sCnt, sThr, sXb, sT0, sT1, sOb = 32, 33, 34, 35, 36, 37, 38, 39, 40, 41
    sLink = 44
    S = [8, 40]; NEGM = 72; P = [104, 120]; Q = 136; ET = 200
    LS = [208, 209]; L = [210, 211]; TMP = 212
    KR = 216; VR = 224; DK = 228; DV = 232; VL16 = 233; VMD = 234; VLANE = 235
    O = 0; KF = 128; VF = 160
    LDS_K, LDS_V, LDS_MOD = 0, 65536, 131072

    e('s_cmp_ge_u32 s2, 256')
    e('s_cbranch_scc1 attn_end')
    stamp(k, 0)
    e(f's_load_dwordx4 s[4:7], s[0:1], {A_K}')
    e(f's_load_dwordx2 s[24:25], s[0:1], {A_WQ}')
    e(f's_load_dwordx2 s[26:27], s[0:1], {A_WS}')
    e(f's_load_dwordx2 s[48:49], s[0:1], {A_WO}')
    e(f's_load_dwordx4 s[52:55], s[0:1], {A_W3}')
    e(f's_load_dwordx2 s[50:51], s[0:1], {A_W1}')
    e('s_and_b32 s28, s2, 7')
    e('s_lshl_b32 s28, s28, 2')
    e('s_lshr_b32 s29, s2, 3')
    e('s_and_b32 s30, s29, 3')
    e('s_add_u32 s28, s28, s30')
    e('s_lshr_b32 s29, s29, 2')
    e('v_lshrrev_b32 v1, 6, v0')
    e(f'v_and_b32 v{VLANE}, 63, v0')
    e(f'v_readfirstlane_b32 s{sW}, v1')
    e(f'v_lshlrev_b32 v{VL16}, 4, v{VLANE}')
    e(f's_lshl_b32 s{sW4K}, s{sW}, 12')
    e(f'v_lshrrev_b32 v2, 4, v{VLANE}')
    e(f'v_and_b32 v3, 15, v{VLANE}')
    e(f'v_lshrrev_b32 v4, 5, v{VLANE}')
    e(f'v_and_b32 v5, 31, v{VLANE}')
    e('v_lshlrev_b32 v6, 2, v2')
    e('v_xor_b32 v6, v6, v3')
    e('v_lshlrev_b32 v6, 4, v6')
    e(f'v_lshl_add_u32 v{DV}, v2, 8, v6')
    e(f'v_add_u32 v{DV}, s{sW4K}, v{DV}')
    e(f's_lshl_b32 s3, s{sW}, 17')
    e('v_lshl_add_u32 v7, v2, 13, v6')
    e('v_add_u32 v7, s3, v7')
    e('s_waitcnt lgkmcnt(0)')
    e('s_lshl_b32 s3, s28, 19')
    e('s_add_u32 s4, s4, s3'); e('s_addc_u32 s5, s5, 0')
    e('s_add_u32 s6, s6, s3'); e('s_addc_u32 s7, s7, 0')
    srd(k, sK, 4, 5, 524288)
    srd(k, sV, 6, 7, 524288)
    e('s_lshl_b32 s3, s28, 8')
    e('s_add_u32 s24, s24, s3'); e('s_addc_u32 s25, s25, 0')
    e(f's_mov_b32 s{sWQ}, s24'); e(f's_and_b32 s{sWQ + 1}, s25, 0xffff')
    e(f's_sub_u32 s{sWQ + 2}, {512 * 8192}, s3'); e(f's_mov_b32 s{sWQ + 3}, 0x00020000')
    srd(k, sWS, 26, 27, WS_SIZE)
    e('s_lshl_b32 s3, s29, 3')
    e(f's_lshl_b32 s{sT0}, s{sW}, 1')
    e(f's_add_u32 s3, s3, s{sT0}')
    e(f's_lshl_b32 s{sXb}, s3, 15')
    e(f's_add_u32 s{sXb}, s{sXb}, {WS_XHAT}')
    e(f's_lshl_b32 s{sOb}, s3, 18')
    e(f's_lshl_b32 s{sT0}, s28, 13')
    e(f's_add_u32 s{sOb}, s{sOb}, s{sT0}')
    e(f's_add_u32 s{sOb}, s{sOb}, {WS_O}')

    XR = 8; H = 136; SS = 152; FT = 184; WRA = 200; WF = 128
    chunk_slot = [LDS_K, LDS_K + 16384, LDS_V, LDS_K + 32768, LDS_K + 49152, LDS_V + 16384, LDS_V + 32768, LDS_V + 49152]

    def wq_dma(c):
        out = []
        for p in range(4):
            g = []
            if p == 0:
                g.append((1, lambda: e(f's_add_u32 m0, s{sW4K}, {chunk_slot[c]}')))
            g.append((1, lambda p=p: e(f's_mov_b32 s{sT0}, {c * 524288 + p * (32768 - 1024)}')))
            g.append((COST['dma'], lambda p=p: e(f'buffer_load_dwordx4 v7, s[{sWQ}:{sWQ + 3}], s{sT0} offen offset:{p * 1024} lds', ('wq', c))))
            out.append(g)
        return out

    def xreg(ks, qb):
        return XR + (((ks // 4) % 4) * 8 + (ks % 4) * 2 + qb) * 4

    def x_load(ks, qb):
        c = ks // 4
        out = []
        so = (sT1, 43)[qb]
        if ks % 4 == 0:
            out.append((1, lambda: e(f's_add_u32 s{so}, s{sXb}, {qb * 32768 + c * 4096}')))
        r = xreg(ks, qb)
        out.append((COST['vload'], lambda: e(f'buffer_load_dwordx4 v[{r}:{r + 3}], v{VL16}, s[{sWS}:{sWS + 3}], s{so} offen offset:{(ks % 4) * 1024}', ('x', ks))))
        return out

    e(f's_lshl_b32 s{sT0}, s{sW}, 10')
    e(f's_add_u32 m0, s{sT0}, {LDS_MOD}')
    e(f's_add_u32 s{sT0}, s{sT0}, {WS_MOD1}')
    e(f'buffer_load_dwordx4 v{VL16}, s[{sWS}:{sWS + 3}], s{sT0} offen lds', ('wq', 0))
    NPRE = opts.get('npre', 1)
    NPX = opts.get('npx', NPRE)
    for c in range(max(NPRE, NPX)):
        for g in (wq_dma(c) if c < NPRE else []):
            for _, f in g: f()
        for ks in (range(4 * c, 4 * c + 4) if c < NPX else []):
            for qb in range(2):
                for _, f in x_load(ks, qb): f()
    e('v_lshrrev_b32 v236, 2, v3')
    e(f'v_and_b32 v237, 3, v{VLANE}')
    e('v_and_b32 v238, 1, v2')
    e('v_lshlrev_b32 v238, 5, v238')
    e('v_and_b32 v239, 1, v237')
    e('v_lshl_add_u32 v238, v239, 4, v238')
    e('v_lshrrev_b32 v239, 1, v237')
    e('v_lshl_add_u32 v238, v239, 3, v238')
    e('v_lshl_add_u32 v238, v236, 8, v238')
    for db in range(4):
        e(f'v_xor_b32 v239, {db}, v236')
        e(f'v_lshl_add_u32 v239, v239, 6, v238')
        e(f'v_lshl_add_u32 v{WRA + db}, v4, 11, v239')
        e(f'v_add_u32 v{WRA + 4 + db}, {LDS_V}, v{WRA + db}')
        e(f'v_lshl_add_u32 v{VR + db}, v4, 10, v239')
        e(f'v_add_u32 v{VR + db}, {LDS_V}, v{VR + db}')
    for ks in range(8):
        e(f'v_add_u32 v239, {2 * ks}, v4')
        e('v_xor_b32 v239, v239, v3')
        e('v_lshlrev_b32 v239, 4, v239')
        e(f'v_lshl_add_u32 v{KR + ks}, v5, 8, v239')
    for p in range(4):
        e(f'v_add_u32 v239, {4 * p}, v2')
        e('v_xor_b32 v239, v239, v3')
        e('v_lshlrev_b32 v239, 4, v239')
        e('v_lshl_add_u32 v239, v2, 8, v239')
        e(f'v_add_u32 v{DK + p}, s{sW4K}, v239')
    e(f'v_lshlrev_b32 v{VMD}, 6, v4')
    e(f'v_add_u32 v{VMD}, {LDS_MOD}, v{VMD}')
    e(f's_mov_b32 s{sThr}, {f32(THRESH)}')

    def w_reads(ks):
        c = ks // 4
        slot = chunk_slot[c]
        base = WRA + 4 if slot >= LDS_V else WRA
        off0 = (slot % 65536) + (ks % 4) * 16 * 256
        out = []
        for db in range(4):
            for t in range(2):
                r = WF + (ks % 2) * 16 + db * 4 + t * 2
                out.append((COST['ds'], lambda r=r, db=db, t=t: e(f'ds_read_b64_tr_b16 a[{r}:{r + 1}], v{base + db} offset:{off0 + t * 1024}', ('w', ks))))
        return out

    def ss_reads(ks):
        out = []
        for j in range(4):
            r = SS + (ks % 2) * 16 + 4 * j
            out.append((COST['ds'], lambda r=r, j=j: e(f'ds_read_b128 v[{r}:{r + 3}], v{VMD} offset:{ks * 128 + j * 16}', ('ss', ks))))
        return out

    def xform(ks):
        out = []
        sb = SS + (ks % 2) * 16
        for qb in range(2):
            x = xreg(ks, qb)
            for p in range(4):
                t = FT + (qb * 4 + p) * 2
                out.append((1, lambda x=x, p=p, t=t: e(f'v_fma_mix_f32 v{t}, v{x + p}, v{sb + 2 * p}, v{sb + 8 + 2 * p} op_sel_hi:[1,0,0]')))
                out.append((1, lambda x=x, p=p, t=t: e(f'v_fma_mix_f32 v{t + 1}, v{x + p}, v{sb + 2 * p + 1}, v{sb + 8 + 2 * p + 1} op_sel:[1,0,0] op_sel_hi:[1,0,0]')))
                h = H + (ks % 2) * 8 + qb * 4 + p
                out.append((1, lambda t=t, h=h: e(f'v_cvt_pk_bf16_f32 v{h}, v{t}, v{t + 1}')))
        return out

    def chunk_barrier(c):
        stamp(k, 1)
        k.wait(vm=[('wq', c)])
        e('s_barrier')
        stamp(k, 2)

    def kv_dma(which, tile):
        out = []
        slot = tile % 4
        for p in range(4):
            g = []
            if p == 0:
                g.append((1, lambda: e(f's_add_u32 m0, s{sW4K}, {(LDS_K if which == "K" else LDS_V) + slot * 16384}')))
                g.append((1, lambda: e(f's_mov_b32 s{sT0}, {tile * 16384}')))
            if which == 'K':
                g.append((COST['dma'], lambda p=p: e(f'buffer_load_dwordx4 v{DK + p}, s[{sK}:{sK + 3}], s{sT0} offen offset:{p * 1024} lds', ('K', tile))))
            else:
                g.append((COST['dma'], lambda p=p: e(f'buffer_load_dwordx4 v{DV}, s[{sV}:{sV + 3}], s{sT0} offen offset:{p * 1024} lds', ('V', tile))))
            out.append(g)
        return out

    todo = []
    WL = opts.get('wlead', 0)
    seq = []
    for c in range(NPRE, 8 + WL):
        if c - WL < NPRE + 0 and c < 8 and False:
            pass
    wn = NPRE; xn = NPX
    while wn < 8 or xn < 8:
        if wn < 8 and wn <= xn + WL:
            todo += [(0, g) for g in wq_dma(wn)]; wn += 1
        else:
            for ks in range(4 * xn, 4 * xn + 4):
                todo += [(ks - 16, x_load(ks, 0)), (ks - 16, x_load(ks, 1))]
            xn += 1
    todo += [(4, g) for g in kv_dma('K', 0)] + [(8, g) for g in kv_dma('K', 1)] + [(12, g) for g in kv_dma('V', 0)]
    RATE = opts.get('rate', 4)

    def refill(ks):
        out = []
        while todo and len(out) < RATE and todo[0][0] <= ks:
            out.append(todo.pop(0)[1])
        return out

    gemm256(k, dict(w_reads=w_reads, ss_reads=ss_reads, xform=xform, refill=refill, chunk_barrier=chunk_barrier,
                    ACC=O, WF=WF, H=H, qx=opts.get('qx', '')))
    assert not todo

    cq = LOG2E / math.sqrt(128.0)
    e(f's_mov_b32 s3, {f32(cq)}')
    stamp(k, 3)
    k.wait(vm=[('K', 0)])
    e('s_barrier')

    def k_read(blk, ks):
        tile = blk // 2
        off = LDS_K + (tile % 4) * 16384 + (blk % 2) * 8192
        r = KF + 4 * ks
        return lambda: e(f'ds_read_b128 a[{r}:{r + 3}], v{KR + ks} offset:{off}', ('kf', ks))

    def v_read(blk, i):
        u, db, t = i // 8, (i // 2) % 4, i % 2
        tile = blk // 2
        off = (tile % 4) * 16384 + ((blk % 2) * 32 + 16 * u + 8 * t) * 256
        r = VF + (u * 4 + db) * 4 + 2 * t
        return lambda: e(f'ds_read_b64_tr_b16 a[{r}:{r + 1}], v{VR + db} offset:{off}', ('vf', i))

    for ks in range(8):
        k_read(0, ks)()
    for g in kv_dma('K', 2):
        for _, f in g: f()
    def conv(db):
        items = []
        for qb in range(2):
            acc = O + (db * 2 + qb) * 16
            t = 72 + ((db * 2 + qb) % 4) * 16
            items += [(1, lambda i=i, t=t, acc=acc: e(f'v_accvgpr_read_b32 v{t + i}, a{acc + i}')) for i in range(16)]
            items += [(1, lambda i=i, t=t: e(f'v_mul_f32 v{t + i}, s3, v{t + i}')) for i in range(16)]
            items += [(1, lambda i=i, t=t, qb=qb: e(f'v_cvt_pk_bf16_f32 v{Q + (qb * 8 + 2 * db + i // 4) * 4 + i % 4}, v{t + 2 * i}, v{t + 2 * i + 1}')) for i in range(8)]
        return items
    for _, f in conv(0): f()
    for g in kv_dma('V', 1):
        for _, f in g: f()
    NPF = 2 if opts.get('pf', 1) else 0
    RETILE = opts.get('retile', 1)
    sPF = 42
    if NPF:
        for i, (sp, nb) in enumerate(((48, 4096 * 1024), (50, 512 * 3584), (52, 512 * 3584), (54, 1792 * 1024))):
            srd(k, 80 + 4 * i, sp, sp + 1, nb)
        e(f's_lshl_b32 s{sPF}, s2, 12')
        e(f's_lshl_b32 s{sT0}, s{sW}, 10')
        e(f's_add_u32 s{sPF}, s{sPF}, s{sT0}')
        e(f'v_lshrrev_b32 v236, 2, v{VLANE}')
        e(f'v_lshlrev_b32 v236, 6, v236')
        e(f'buffer_load_dword v240, v236, s[92:95], s{sPF} offen', 'pf')

    def qk_mfmas(blk, czero=False, alt=False):
        out = []
        order = [(ks, qb) for qb in range(2) for ks in range(8)] if alt else [(ks, qb) for ks in range(8) for qb in range(2)]
        for ks, qb in order:
            if True:
                def m(ks=ks, qb=qb):
                    d = S[blk % 2] + 16 * qb
                    if ks == 0:
                        c = '0' if czero else vr(NEGM + 16 * qb, 16)
                    else:
                        c = vr(d, 16)
                    e(f'v_mfma_f32_32x32x16_bf16 {vr(d, 16)}, {ar(KF + 4 * ks, 4)}, {vr(Q + (qb * 8 + ks) * 4, 4)}, {c}')
                out.append(m)
        return out

    def pv_mfmas(blk, czero=False):
        out = []
        po = opts.get('pvo', 0)
        if po == 0:
            order = [(u, db, qb) for u in range(2) for db in range(4) for qb in range(2)]
        elif po == 1:
            order = [(u, db, qb) for u in range(2) for qb in range(2) for db in range(4)]
        else:
            order = [(u, db, qb) for db in range(4) for qb in range(2) for u in range(2)]
        for u, db, qb in order:
            if True:
                if True:
                    def m(u=u, db=db, qb=qb):
                        acc = O + (db * 2 + qb) * 16
                        c = '0' if (czero and u == 0) else ar(acc, 16)
                        e(f'v_mfma_f32_32x32x16_bf16 {ar(acc, 16)}, {ar(VF + (u * 4 + db) * 4, 4)}, {vr(P[blk % 2] + (qb * 2 + u) * 4, 4)}, {c}')
                    out.append(m)
        return out

    def softmax_stream(blk):
        sb = S[blk % 2]; pb = P[blk % 2]
        items = []
        pend = []
        n = 0
        for qb in range(2):
            for i in range(8):
                t = ET + (n % 4) * 2
                r = sb + qb * 16 + 2 * i
                a = [(COST['exp'], lambda t=t, r=r: e(f'v_exp_f32 v{t}, v{r}')),
                     (COST['exp'], lambda t=t, r=r: e(f'v_exp_f32 v{t + 1}, v{r + 1}'))]
                if i == 0:
                    c = [(1, lambda t=t, qb=qb: e(f'v_add_f32 v{LS[qb]}, v{t}, v{t + 1}')), None]
                else:
                    c = [(1, lambda t=t, qb=qb: e(f'v_add_f32 v{LS[qb]}, v{LS[qb]}, v{t}')),
                         (1, lambda t=t, qb=qb: e(f'v_add_f32 v{LS[qb]}, v{LS[qb]}, v{t + 1}'))]
                if 'A' in opts.get('x', '') and i > 0:
                    c = [None, None]
                pd = pb + (qb * 2 + i // 4) * 4 + i % 4
                c.append((1, lambda t=t, pd=pd: e(f'v_cvt_pk_bf16_f32 v{pd}, v{t}, v{t + 1}')))
                items.append(a[0])
                if pend and pend[0]: items.append(pend[0])
                items.append(a[1])
                for x in pend[1:]:
                    if x: items.append(x)
                pend = c
                n += 1
        for x in pend:
            if x: items.append(x)
        return items

    stubs = []

    def check_items(blk):
        lab = k.newlabel('slow'); ret = k.newlabel('ret')
        stubs.append((lab, ret, blk % 2))

        def br():
            e(f's_cbranch_vccnz {lab}')
            k.label(ret)
        return [(1, lambda: e(f'v_max_f32 v{TMP}, v{LS[0]}, v{LS[1]}')),
                (1, lambda: e(f'v_cmp_lt_f32 vcc, s{sThr}, v{TMP}')),
                (1, br),
                (1, lambda: e(f'v_add_f32 v{L[0]}, v{L[0]}, v{LS[0]}')),
                (1, lambda: e(f'v_add_f32 v{L[1]}, v{L[1]}, v{LS[1]}'))]

    KFALL = [('kf', i) for i in range(8)]
    VFALL = [('vf', i) for i in range(16)]
    mf = qk_mfmas(0, czero=True)
    k.wait(lg=KFALL)
    for db in range(4):
        fx = {}
        for ks in (2 * db - 1, 2 * db):
            if ks >= 0:
                fx.setdefault(0 if ks < 2 * db else 2, []).append((COST['ds'], k_read(1, ks), 'ds'))
        if db == 3:
            fx.setdefault(3, []).append((COST['ds'], k_read(1, 7), 'ds'))
        schedule(k, mf[4 * db:4 * db + 4], fx, conv(db + 1) if db < 3 else [])
    for qb in range(2):
        sb = S[0] + 16 * qb
        e(f'v_max3_f32 v{TMP}, v{sb}, v{sb + 1}, v{sb + 2}')
        for i in range(3, 15, 2):
            e(f'v_max3_f32 v{TMP}, v{TMP}, v{sb + i}, v{sb + i + 1}')
        e(f'v_max_f32 v{TMP}, v{TMP}, v{sb + 15}')
        e(f'v_mov_b32 v{TMP + 1}, v{TMP}')
        e(f'v_permlane32_swap_b32 v{TMP}, v{TMP + 1}')
        e(f'v_max_f32 v{TMP}, v{TMP}, v{TMP + 1}')
        e(f'v_add_f32 v{TMP}, {f32(BIAS)}, v{TMP}')
        e(f'v_sub_f32 v{NEGM + 16 * qb}, 0, v{TMP}')
        for i in range(1, 16):
            e(f'v_mov_b32 v{NEGM + 16 * qb + i}, v{NEGM + 16 * qb}')
        for i in range(16):
            e(f'v_sub_f32 v{sb + i}, v{sb + i}, v{TMP}')
        e(f'v_mov_b32 v{L[qb]}, 0')
    e(f's_mov_b32 s{sKoff}, {3 * 16384}')
    e(f's_mov_b32 s{sVoff}, {2 * 16384}')
    e(f's_mov_b32 s{sCnt}, 8')

    def step(b, do_qk=True, do_sm=True, do_pv=True, pv_zero=False, do_kread=True, do_dma=True):
        mf = []
        fx = {}
        nq = 0
        X = opts.get('x', '')
        if 'D' in X: do_dma = False
        if 'S' in X: do_sm = False
        if do_qk:
            mf += qk_mfmas(b + 1, alt=opts.get('qko', 0) and do_pv); nq = 16
        if do_pv:
            mf += pv_mfmas(b - 1, czero=pv_zero)
        n = len(mf)
        caps = {}
        full = do_qk and do_pv
        if do_pv and 'L' not in X:
            if do_qk:
                for i in range(16):
                    fx.setdefault(i // 2, []).append((COST['ds'], v_read(b - 1, i), 'ds'))
            else:
                for i in range(16):
                    v_read(b - 1, i)()
                k.wait(lg=VFALL)
        bar = b % 2 == 0 and do_kread and 'B' not in X
        gb = 15 if full else 0
        if bar:
            vmn = 8 + (NPF if b >= 2 else NPF // 2)

            def wt():
                t = k.wait_text(lg=VFALL) if full else None
                e(f's_waitcnt vmcnt({vmn})' + (t[9:] if t else ''))
            fx.setdefault(gb, []).append((0, wt, 'wait'))
            fx.setdefault(gb, []).append((6, lambda: e('s_barrier'), 'bar'))
            caps[gb + 1] = opts.get('cap_ab', 3)
            if RETILE and b == 14:
                def hook():
                    e(f's_cmp_le_u32 s{sCnt}, 4')
                    e('s_cbranch_scc1 attn_copy')
                    k.label('attn_copy_ret')
                fx.setdefault(gb + 1, []).append((2, hook, 'dma'))
        elif full:
            fx.setdefault(15, []).append((0, lambda: k.wait(lg=VFALL), 'wait'))
        if do_kread and 'L' not in X:
            for ks in range(8):
                g = (17 + ks // 2) if full else min(2 * ks + 2, 15)
                fx.setdefault(g, []).append((COST['ds'], k_read(b + 2, ks), 'ds'))
            if full:
                fx.setdefault(n - 1, []).append((0, lambda: k.wait(lg=KFALL), 'wait'))
        if do_dma:
            isK = (b % 2 == 0)
            I = (b + 2) // 2 if isK else (b + 1) // 2
            if isK:
                slot = LDS_K + ((I + 2) % 4) * 16384; so = sKoff
            else:
                slot = LDS_V + ((I + 1) % 4) * 16384; so = sVoff
            gs = [22, 24, 26, 28] if full else [3, 5, 7, 9]
            fx.setdefault(gs[0] - 1, []).append((1, lambda: e(f's_add_u32 m0, s{sW4K}, {slot}'), 'end'))
            for p in range(4):
                va = DK + p if isK else DV
                sd = sK if isK else sV
                fx.setdefault(gs[p], []).append((COST['dma'], lambda p=p, va=va, sd=sd: e(
                    f'buffer_load_dwordx4 v{va}, s[{sd}:{sd + 3}], s{so} offen offset:{p * 1024} lds', 'kv'), 'dma'))
            fx.setdefault(gs[3] + 1, []).append((1, lambda: e(f's_add_u32 s{so}, s{so}, 16384'), 'end'))
            if NPF and not isK:
                sp = 80 + 4 * ((b // 2) % 4)
                fx.setdefault(30, []).append((COST['dma'], lambda: e(f'buffer_load_dword v240, v236, s[{sp}:{sp + 3}], s{sPF} offen', 'pf'), 'dma'))
                if b % 8 == 7:
                    fx.setdefault(30, []).append((1, lambda: e(f's_add_u32 s{sPF}, s{sPF}, 0x100000'), 'end'))
        st = []
        if do_sm:
            st = softmax_stream(b)
        schedule(k, mf, fx, st, last_gap=n - 2, caps=caps)
        if do_kread and not full:
            k.wait(lg=KFALL)
        if do_sm:
            for _, f in check_items(b): f()

    stamp(k, 4)
    k.wait(lg=KFALL)
    step(0, do_pv=False)
    step(1, pv_zero=True)
    e('s_branch attn_ent')
    e('.p2align 6')
    k.label('attn_loop')
    for pos in range(8):
        if pos == 2:
            k.label('attn_ent')
        step(8 + pos)
        if pos == 6:
            e(f's_sub_u32 s{sCnt}, s{sCnt}, 1')
            e(f's_cmp_eq_u32 s{sCnt}, 0')
            e('s_cbranch_scc1 attn_tail')
    e('s_branch attn_loop')
    k.label('attn_tail')
    k.lgq = []
    if opts.get('t23', 0):
        e(f'v_lshrrev_b32 v238, 2, v{VLANE}')
        e('v_lshlrev_b32 v238, 10, v238')
        e(f'v_and_b32 v239, 3, v{VLANE}')
        e('v_lshl_add_u32 v238, v239, 7, v238')
        e(f's_lshr_b32 s{sT0}, s2, 3')
        e(f's_lshl_b32 s{sT0}, s{sT0}, 2')
        e(f's_add_u32 s{sT0}, s{sT0}, s{sW}')
        e(f's_lshl_b32 s{sT0}, s{sT0}, 15')
        e(f's_and_b32 s{sT1}, s2, 1')
        e(f's_lshl_b32 s{sT1}, s{sT1}, 9')
        e(f's_add_u32 s{sT0}, s{sT0}, s{sT1}')
        e(f'buffer_load_dword v237, v238, s[80:83], s{sT0} offen', 'pf')
        e(f's_add_u32 s{sT0}, s{sT0}, 16384')
        e(f'buffer_load_dword v239, v238, s[80:83], s{sT0} offen', 'pf')
    step(63, do_qk=False, do_kread=False, do_dma=False)
    step(64, do_qk=False, do_sm=False, do_kread=False, do_dma=False)

    stamp(k, 5)
    for qb in range(2):
        e(f'v_mov_b32 v{TMP}, v{L[qb]}')
        e(f'v_permlane32_swap_b32 v{L[qb]}, v{TMP}')
        e(f'v_add_f32 v{L[qb]}, v{L[qb]}, v{TMP}')
        e(f'v_rcp_f32 v{L[qb]}, v{L[qb]}')
    n = 0
    for qb in range(2):
        e(f's_add_u32 s{sT0}, s{sOb}, {qb * 262144}')
        e(f's_add_u32 s{sT1}, s{sOb}, {qb * 262144 + 4096}')
        for db in range(4):
            for u in range(2):
                acc = O + (db * 2 + qb) * 16 + 8 * u
                t = 8 + (n % 4) * 16; n += 1
                for i in range(8):
                    e(f'v_accvgpr_read_b32 v{t + i}, a{acc + i}')
                for i in range(8):
                    e(f'v_mul_f32 v{t + i}, v{t + i}, v{L[qb]}')
                for i in range(4):
                    e(f'v_cvt_pk_bf16_f32 v{t + 8 + i}, v{t + 2 * i}, v{t + 2 * i + 1}')
                kk = 2 * db + u
                so = sT0 if kk < 4 else sT1
                e(f'buffer_store_dwordx4 v[{t + 8}:{t + 11}], v{VL16}, s[{sWS}:{sWS + 3}], s{so} offen offset:{(kk % 4) * 1024}{opts.get("ost", " sc1")}')
    stamp(k, 6)
    stamp_flush(k, 7, sWS, 1)
    k.label('attn_end')
    e('s_endpgm')

    if RETILE:
        CP = 192
        k.label('attn_copy')
        e(f's_cmp_le_u32 s{sCnt}, 2')
        e('s_cbranch_scc1 attn_copy_code' if opts.get('cpf2', 0) else 's_cbranch_scc1 attn_copy_ret')
        e(f's_lshl_b32 s{sT0}, s2, 2')
        e(f's_add_u32 s{sT0}, s{sT0}, s{sW}')
        e(f's_cmp_eq_u32 s{sCnt}, 3')
        e('s_cbranch_scc1 attn_copy_st')
        e(f's_lshl_b32 s{sT1}, s{sT0}, 12')
        for i in range(4):
            e(f'buffer_load_dwordx4 a[{CP + 4 * i}:{CP + 4 * i + 3}], v{VL16}, s[80:83], s{sT1} offen offset:{i * 1024}')
        e(f's_lshl_b32 s{sT1}, s{sT0}, 11')
        for i in range(2):
            e(f'buffer_load_dwordx4 a[{CP + 16 + 4 * i}:{CP + 19 + 4 * i}], v{VL16}, s[92:95], s{sT1} offen offset:{i * 1024}')
        e('s_branch attn_copy_ret')
        k.label('attn_copy_st')
        e(f'v_lshrrev_b32 v238, 3, v{VLANE}')
        e(f'v_and_b32 v239, 7, v{VLANE}')
        e('v_lshlrev_b32 v239, 4, v239')
        SK = opts.get('sk', 0)
        if SK:
            e(f'v_lshrrev_b32 v237, 4, v{VLANE}')
            e('v_lshlrev_b32 v237, 20, v237')
            e(f'v_and_b32 v241, 15, v{VLANE}')
            e('v_lshl_add_u32 v237, v241, 4, v237')
        else:
            e('v_lshl_add_u32 v237, v238, 19, v239')
        e('v_lshl_add_u32 v238, v238, 18, v239')
        e(f's_lshl_b32 s{sT1}, s{sT0}, {10 if SK else 9}')
        e(f's_add_u32 s{sT1}, s{sT1}, {WS_WOT}')
        for i in range(4):
            e(f'buffer_store_dwordx4 a[{CP + 4 * i}:{CP + 4 * i + 3}], v237, s[{sWS}:{sWS + 3}], s{sT1} offen offset:{i * (256 if SK else 128)} sc1')
        e(f's_lshl_b32 s{sT1}, s{sT0}, 8')
        e(f's_add_u32 s{sT1}, s{sT1}, {WS_W2T}')
        for i in range(2):
            e(f'buffer_store_dwordx4 a[{CP + 16 + 4 * i}:{CP + 19 + 4 * i}], v238, s[{sWS}:{sWS + 3}], s{sT1} offen offset:{i * 128} sc1')
        e('s_branch attn_copy_ret')
        if opts.get('cpf2', 0):
            k.label('attn_copy_code')
            e(f's_lshr_b32 s{sT0}, s2, 3')
            e(f's_lshl_b32 s{sT0}, s{sT0}, 2')
            e(f's_add_u32 s{sT0}, s{sT0}, s{sW}')
            e(f's_cmp_ge_u32 s{sT0}, 1')
            e('s_cbranch_scc1 attn_copy_ret')
            code_touch(k, 242, 46, sT0, VLANE, 'attn_end', 'code_end')
            e('s_branch attn_copy_ret')

    for lab, ret, par in stubs:
        k.label(lab)
        e(f's_call_b64 s[{sLink}:{sLink + 1}], attn_slow{par}')
        e(f's_branch {ret}')
    for par in range(2):
        k.label(f'attn_slow{par}')
        e('s_nop 15'); e('s_nop 15')
        D0 = [TMP + 2, TMP + 3]
        for qb in range(2):
            sb = S[par] + 16 * qb; sn = S[1 - par] + 16 * qb
            e(f'v_max3_f32 v{TMP}, v{sb}, v{sb + 1}, v{sb + 2}')
            for i in range(3, 15, 2):
                e(f'v_max3_f32 v{TMP}, v{TMP}, v{sb + i}, v{sb + i + 1}')
            e(f'v_max_f32 v{TMP}, v{TMP}, v{sb + 15}')
            e(f'v_mov_b32 v{TMP + 1}, v{TMP}')
            e(f'v_permlane32_swap_b32 v{TMP}, v{TMP + 1}')
            e(f'v_max_f32 v{TMP}, v{TMP}, v{TMP + 1}')
            e(f'v_add_f32 v{TMP}, {f32(BIAS)}, v{TMP}')
            e(f'v_max_f32 v{TMP}, 0, v{TMP}')
            e(f'v_ceil_f32 v{TMP}, v{TMP}')
            e(f'v_sub_f32 v{TMP + 1}, 0, v{TMP}')
            e(f'v_cvt_i32_f32 v{D0[qb]}, v{TMP + 1}')
            for i in range(16):
                e(f'v_sub_f32 v{NEGM + 16 * qb + i}, v{NEGM + 16 * qb + i}, v{TMP}')
                e(f'v_sub_f32 v{sb + i}, v{sb + i}, v{TMP}')
                e(f'v_sub_f32 v{sn + i}, v{sn + i}, v{TMP}')
            e(f'v_ldexp_f32 v{L[qb]}, v{L[qb]}, v{D0[qb]}')
            for db in range(4):
                acc = O + (db * 2 + qb) * 16
                for i in range(16):
                    t = ET + i % 8
                    e(f'v_accvgpr_read_b32 v{t}, a{acc + i}')
                    e(f'v_ldexp_f32 v{t}, v{t}, v{D0[qb]}')
                    e(f'v_accvgpr_write_b32 a{acc + i}, v{t}')
        for _, f in softmax_stream(par): f()
        e('s_nop 3')
        e(f's_setpc_b64 s[{sLink}:{sLink + 1}]')
    return k, 'grid=(256,1,1) block=(256,1,1) lds=135168'


sWS_T = 12
sWV_T = 32
X1KEEP = 64


def lane_id(k, v):
    k.e(f'v_mbcnt_lo_u32_b32 v{v}, -1, 0')
    k.e(f'v_mbcnt_hi_u32_b32 v{v}, -1, v{v}')


def signal(k, vt, soff, nyounger):
    e = k.e
    e(f's_waitcnt vmcnt({nyounger})')
    e(f'v_mov_b32 v{vt}, 0')
    e(f'v_mov_b32 v{vt + 1}, 1')
    e('s_mov_b64 exec, 1')
    e(f'buffer_store_dword v{vt + 1}, v{vt}, s[{sWS_T}:{sWS_T + 3}], s{soff} offen sc1', 'flag')
    e('s_mov_b64 exec, -1')


def poll(k, name, vt, vlane, soff, nflags, opts):
    e = k.e
    e(f's_cmp_lg_u32 s{sWV_T}, 0')
    e(f's_cbranch_scc1 {name}_go')
    e(f'v_min_u32 v{vt}, {nflags - 1}, v{vlane}')
    e(f'v_lshlrev_b32 v{vt}, 2, v{vt}')
    e('s_mov_b32 s48, 0x40000')
    k.label(f'{name}_poll')
    e(f'buffer_load_dword v{vt + 1}, v{vt}, s[{sWS_T}:{sWS_T + 3}], s{soff} offen sc1', 'poll')
    e('s_waitcnt vmcnt(0)')
    e(f'v_cmp_eq_u32 vcc, 0, v{vt + 1}')
    e(f's_cbranch_vccz {name}_go')
    e(f's_sleep {opts.get("sleep", 2)}')
    e('s_sub_u32 s48, s48, 1')
    e('s_cmp_lg_u32 s48, 0')
    e(f's_cbranch_scc1 {name}_poll')
    k.label(f'{name}_go')
    e('s_waitcnt vmcnt(0)')
    e('s_barrier')


BSLOT = [(0, 32768), (65536, 98304), (16384, 49152), (81920, 114688)]


def early_b(k):
    e = k.e
    items = []

    def setup():
        lane_id(k, 251)
        e('v_lshrrev_b32 v252, 4, v251')
        e('v_and_b32 v253, 15, v251')
        e('v_lshlrev_b32 v250, 2, v252')
        e('v_xor_b32 v250, v250, v253')
        e('v_lshlrev_b32 v250, 4, v250')
        e('v_mul_u32_u24 v252, 3584, v252')
        e('v_add_u32 v250, v250, v252')
        e(f's_and_b32 s54, s{sWV_T}, 1')
        e('s_cmp_eq_u32 s54, 0')
        e('s_cselect_b32 s24, s56, s58')
        e('s_cselect_b32 s25, s57, s59')
        e('s_and_b32 s25, s25, 0xffff')
        e(f's_mov_b32 s26, {512 * 3584}')
        e('s_mov_b32 s27, 0x00020000')
        e(f's_lshr_b32 s54, s{sWV_T}, 1')
        e(f's_mul_i32 s54, s54, {64 * 3584}')
        e('s_lshl_b32 s53, s51, 8')
        e('s_add_u32 s54, s54, s53')
        e(f's_lshl_b32 s53, s{sWV_T}, 15')
    items.append(setup)
    for p in range(16):
        def f(p=p):
            e(f's_add_u32 m0, s53, {p * 1024}')
            e(f's_add_u32 s52, s54, {p * 4 * 3584}')
            e('buffer_load_dwordx4 v250, s[24:27], s52 offen lds', ('wq', 0))
        items.append(f)
    return items


def early_c(k, n):
    e = k.e
    items = []

    def setup():
        lane_id(k, 252)
        e('v_lshrrev_b32 v253, 3, v252')
        e('v_lshlrev_b32 v251, 1, v253')
        e('v_and_b32 v251, 4, v251')
        e('v_and_b32 v252, 7, v252')
        e('v_xor_b32 v251, v251, v252')
        e('v_lshlrev_b32 v251, 4, v251')
        e('v_lshl_add_u32 v251, v253, 7, v251')
        e(f's_lshl_b32 s49, s{sWV_T}, 15')
        e('s_and_b32 s55, s2, 1')
        e('s_lshl_b32 s55, s55, 2')
        e('s_lshr_b32 s47, s2, 6')
        e('s_add_u32 s55, s55, s47')
        e('s_lshl_b32 s55, s55, 18')
        e(f's_mul_i32 s47, s{sWV_T}, {28 * 2048}')
        e('s_add_u32 s55, s55, s47')
        e(f's_add_u32 s55, s55, {WS_W2T}')
    items.append(setup)
    for ks in range(n):
        def f(ks=ks):
            e(f's_add_u32 m0, s49, {ks * 2048}')
            e('s_nop 0')
            e(f'buffer_load_dwordx4 v251, s[{sWS_T}:{sWS_T + 3}], s55 offen lds', ('g', ks))
            e(f'buffer_load_dwordx4 v251, s[{sWS_T}:{sWS_T + 3}], s55 offen offset:1024 lds', ('g', ks))
            e('s_add_u32 s55, s55, 2048')
        items.append(f)
    return items


def phase_gemm64(k, which, opts, dep, out_flag, keep_x1, sbase, early=None):
    e = k.e
    name = 'pa' if which == 'wo' else 'pc'
    NKS = 256 if which == 'wo' else 112
    KW = NKS // 4
    D = 16 if which == 'wo' else 14
    NIT = KW // D
    WS_XIN = WS_O if which == 'wo' else WS_HH
    sWS, sG = sWS_T, 16
    sWv, sXo, sWo, sT0, sLb, sCnt, sXo1 = sWV_T, 33, 34, 35, 37, 38, 39
    ACC = 8
    XF = 72
    WFr = 200
    VL16, VDW, VWR = 216, 217, 218
    EP = 220
    XA = ' sc1' if dep else ''
    SA = ' sc1' if out_flag else ''
    POFF = 16384
    if dep:
        VDW, sWo, sLb = 251, 55, 49
    e('s_bfe_u32 s28, s2, 0x20001')
    e('s_lshl_b32 s28, s28, 3')
    e('s_bfe_u32 s30, s2, 0x30003')
    e('s_add_u32 s28, s28, s30')
    e('s_and_b32 s29, s2, 1')
    e('s_lshl_b32 s29, s29, 2')
    e('s_lshr_b32 s30, s2, 6')
    e('s_add_u32 s29, s29, s30')
    lane_id(k, 2)
    e(f'v_lshlrev_b32 v{VL16}, 4, v2')
    if not dep:
        e('v_lshrrev_b32 v3, 3, v2')
        e('v_and_b32 v4, 7, v2')
        e('v_lshlrev_b32 v5, 1, v3')
        e('v_and_b32 v5, 4, v5')
        e('v_xor_b32 v4, v4, v5')
        e('v_lshlrev_b32 v4, 4, v4')
        e(f'v_lshl_add_u32 v{VDW}, v3, 7, v4')
        e(f's_lshl_b32 s{sLb}, s{sWv}, 15')
    e(f's_mul_i32 s{sXo}, s28, {2 * NKS * 1024}')
    e(f's_mul_i32 s{sT0}, s{sWv}, {KW * 1024}')
    e(f's_add_u32 s{sXo}, s{sXo}, s{sT0}')
    e(f's_add_u32 s{sXo}, s{sXo}, {WS_XIN}')
    e(f's_add_u32 s{sXo1}, s{sXo}, {NKS * 1024}')
    if not dep:
        e(f's_mul_i32 s{sWo}, s{sWv}, {KW * 2048}')
        e(f's_lshl_b32 s{sT0}, s29, {19 if which == "wo" else 18}')
        e(f's_add_u32 s{sWo}, s{sWo}, s{sT0}')
        e(f's_add_u32 s{sWo}, s{sWo}, {WS_WOT if which == "wo" else WS_W2T}')
    e(f's_lshr_b32 s40, s{sWv}, 1')
    e(f's_and_b32 s47, s{sWv}, 1')
    e('s_lshl_b32 s41, s29, 6')
    e('s_lshl_b32 s42, s40, 5')
    e('s_add_u32 s41, s41, s42')
    e('s_lshl_b32 s42, s28, 6')
    e('s_lshl_b32 s43, s47, 5')
    e('s_add_u32 s42, s42, s43')
    e('v_lshrrev_b32 v4, 5, v2')
    e('v_and_b32 v5, 31, v2')
    e('v_add_u32 v6, s42, v5')
    e('v_lshlrev_b32 v6, 10, v6')
    e('v_lshl_add_u32 v6, v4, 4, v6')
    e('s_lshl_b32 s43, s41, 1')
    e('v_add_u32 v6, s43, v6')
    e('s_lshl_b32 s43, s42, 10')
    e('s_lshl_b32 s44, s41, 6')
    e('s_add_u32 s43, s43, s44')
    e(f's_add_u32 s43, s43, {WS_X1}')
    e('v_lshlrev_b32 v7, 5, v4')
    e('s_lshl_b32 s44, s41, 2')
    e(f's_add_u32 s44, s44, {WS_GA if which == "wo" else WS_GB}')
    yield 'setup'
    sp = 60 if which == 'wo' else 62
    srd(k, sG, sp, sp + 1, 2048 * 1024)

    def loads(ks):
        sl = ks % D
        r0 = XF + sl * 8
        return dict(
            m0=lambda: e(f's_add_u32 m0, s{sLb}, {sl * 2048}'),
            w0=lambda: e(f'buffer_load_dwordx4 v{VDW}, s[{sWS}:{sWS + 3}], s{sWo} offen lds', ('g', ks)),
            w1=lambda: e(f'buffer_load_dwordx4 v{VDW}, s[{sWS}:{sWS + 3}], s{sWo} offen offset:1024 lds', ('g', ks)),
            x0=lambda: e(f'buffer_load_dwordx4 v[{r0}:{r0 + 3}], v{VL16}, s[{sWS}:{sWS + 3}], s{sXo} offen offset:{(ks % 2) * 1024}{XA}{opts.get("xa", "")}', ('g', ks)),
            x1=lambda: e(f'buffer_load_dwordx4 v[{r0 + 4}:{r0 + 7}], v{VL16}, s[{sWS}:{sWS + 3}], s{sXo1} offen offset:{(ks % 2) * 1024}{XA}{opts.get("xa", "")}', ('g', ks)),
            uw=lambda: e(f's_add_u32 s{sWo}, s{sWo}, 2048'),
            ux=lambda: (e(f's_add_u32 s{sXo}, s{sXo}, 2048'), e(f's_add_u32 s{sXo1}, s{sXo1}, 2048')) if ks % 2 == 1 else None)

    def misc_setup():
        e('v_bfe_u32 v3, v2, 2, 2')
        e('v_lshl_add_u32 v1, v4, 3, v3')
        e('v_lshlrev_b32 v1, 7, v1')
        e(f'v_bfe_u32 v{VWR}, v2, 4, 1')
        e(f'v_lshl_add_u32 v1, v{VWR}, 5, v1')
        e(f'v_and_b32 v{VWR}, 1, v2')
        e(f'v_lshl_add_u32 v1, v{VWR}, 4, v1')
        e(f'v_bfe_u32 v{VWR}, v2, 1, 1')
        e(f'v_lshl_add_u32 v1, v{VWR}, 3, v1')
        e(f'v_add_u32 v1, s{sLb}, v1')
        e('v_lshrrev_b32 v3, 1, v3')
        e(f'v_lshl_add_u32 v{VWR}, v3, 6, v1')
        e('v_xor_b32 v3, 1, v3')
        e(f'v_lshl_add_u32 v{VWR + 1}, v3, 6, v1')
        for i in range(64):
            e(f'v_mov_b32 v{ACC + i}, 0')
        e(f's_mov_b32 s{sCnt}, {NIT - 1}')

    for u in range(2):
        e(f'buffer_load_dwordx4 v[{EP + 8 * u}:{EP + 8 * u + 3}], v7, s[{sWS}:{sWS + 3}], s44 offen offset:{64 * u}', 'ep')
        e(f'buffer_load_dwordx4 v[{EP + 8 * u + 4}:{EP + 8 * u + 7}], v7, s[{sWS}:{sWS + 3}], s44 offen offset:{64 * u + 16}', 'ep')
        if which == 'wo':
            e(f'buffer_load_dwordx4 v[{EP + 16 + 4 * u}:{EP + 19 + 4 * u}], v6, s[{sG}:{sG + 3}], 0 offen offset:{32 * u}', 'ep')
        elif not keep_x1:
            e(f'buffer_load_dwordx4 v[{EP + 16 + 4 * u}:{EP + 19 + 4 * u}], v{VL16}, s[{sWS}:{sWS + 3}], s43 offen offset:{1024 * u}', 'ep')
    if dep:
        assert NIT == 2
        NWP = D - 1
        yield 'prefetched'
        misc_setup()
        e('s_lshr_b32 s45, s28, 1')
        e('s_lshl_b32 s45, s45, 8')
        e(f's_add_u32 s45, s45, {WS_FB}')
        stamp(k, sbase)
        poll(k, name, ACC + 64 + 120, 2, 45, 56, opts)
        sbase += 1
        stamp(k, sbase)
        for ks in range(D - 1):
            L = loads(ks)
            for nm in (('x0', 'x1', 'ux') if ks < NWP else ('m0', 'x0', 'w0', 'w1', 'x1', 'uw', 'ux')):
                L[nm]()
    else:
        for ks in range(D - 1):
            L = loads(ks)
            for nm in ('m0', 'x0', 'w0', 'w1', 'x1', 'uw', 'ux'):
                L[nm]()
            if ks == 1:
                misc_setup()
        yield 'prefetched'
        stamp(k, sbase)

    def wreads(ks):
        sl = ks % D
        for nb in range(2):
            for t in range(2):
                r = WFr + (ks % 2) * 8 + nb * 4 + t * 2
                e(f'ds_read_b64_tr_b16 v[{r}:{r + 1}], v{VWR + nb} offset:{sl * 2048 + t * 512}', ('wf', ks))

    def kstep(ks, refill, last=False, extra=()):
        sl = ks % D
        L = loads(ks + D - 1) if refill else None
        for i in range(4):
            nb, mb = i // 2, i % 2
            acc = ACC + (nb * 2 + mb) * 16
            if 'M' not in opts.get('z', ''):
                e(f'v_mfma_f32_32x32x16_bf16 {vr(acc, 16)}, {vr(WFr + (ks % 2) * 8 + nb * 4, 4)}, {vr(XF + (sl * 2 + mb) * 4, 4)}, {vr(acc, 16)}')
            if i == 0:
                if not last:
                    k.wait(vm=[('g', ks + 1)])
                    if 'R' not in opts.get('z', ''): wreads(ks + 1)
                if L: L['m0']()
            elif i == 1 and L:
                L['x0'](); L['w0']()
            elif i == 2 and L:
                L['w1'](); L['x1'](); L['uw'](); L['ux']()
            elif i == 3 and not last:
                k.wait(lg=[('wf', ks + 1)])
            if i in (1, 2) and len(extra) >= i:
                extra[i - 1]()

    k.wait(vm=[('g', 0)])
    wreads(0)
    k.wait(lg=[('wf', 0)])
    stamp(k, sbase + 1)
    k.label(f'{name}_loop')
    for ks in range(D):
        kstep(ks, True)
    if NIT > 2:
        e(f's_sub_u32 s{sCnt}, s{sCnt}, 1')
        e(f's_cmp_lg_u32 s{sCnt}, 0')
        e(f's_cbranch_scc1 {name}_loop')
    early = list(early or [])
    for ks in range(D, 2 * D):
        ex = []
        E0 = opts.get('e0', 1)
        if early and ks == D + E0:
            ex = [early.pop(0)]
        elif early and ks > D + E0:
            ex = early[:2]; early = early[2:]
        kstep(ks, ks == D, last=(ks == 2 * D - 1), extra=ex)
    assert not early
    stamp(k, sbase + 2)
    e(f'v_add_u32 v3, s{sLb}, v{VL16}')
    for qd in range(16):
        e(f'ds_write_b128 v3, v[{ACC + 4 * qd}:{ACC + 4 * qd + 3}] offset:{POFF + qd * 1024}')
    e('s_waitcnt lgkmcnt(0)')
    e('s_barrier')
    e(f's_lshl_b32 s{sT0}, s{sWv}, 12')
    e(f'v_add_u32 v3, s{sT0}, v{VL16}')
    e(f'v_add_u32 v1, 0x10000, v3')
    RD = 72
    for w in range(4):
        a = 3 if w < 2 else 1
        for h in range(4):
            r = RD + (w * 4 + h) * 4
            e(f'ds_read_b128 v[{r}:{r + 3}], v{a} offset:{POFF + (w % 2) * 32768 + h * 1024}', ('r', w))
    for w in range(1, 4):
        k.wait(lg=[('r', w), ('r', 0)])
        for i in range(16):
            e(f'v_add_f32 v{RD + i}, v{RD + i}, v{RD + w * 16 + i}')
    if out_flag:
        e('s_barrier')
    k.wait(vm=['ep'])
    if which == 'w2' and keep_x1:
        for i in range(8):
            e(f'v_accvgpr_read_b32 v{EP + 16 + i}, a{X1KEEP + i}')
    for i in range(16):
        rbf(k, RD + i, RD + i)
    for i in range(16):
        e(f'v_mul_f32 v{RD + i}, v{RD + i}, v{EP + i}')
    for i in range(16):
        rbf(k, RD + i, RD + i)
    for i in range(16):
        src = EP + 16 + i // 2
        if i % 2 == 0:
            e(f'v_lshlrev_b32 v{RD + 16 + i}, 16, v{src}')
        else:
            e(f'v_and_b32 v{RD + 16 + i}, 0xffff0000, v{src}')
    for i in range(16):
        e(f'v_add_f32 v{RD + i}, v{RD + i}, v{RD + 16 + i}')
    for i in range(8):
        e(f'v_cvt_pk_bf16_f32 v{RD + 32 + i}, v{RD + 2 * i}, v{RD + 2 * i + 1}')
    for u in range(2):
        if which == 'w2':
            e(f'buffer_store_dwordx4 v[{RD + 32 + 4 * u}:{RD + 35 + 4 * u}], v6, s[{sG}:{sG + 3}], 0 offen offset:{32 * u}')
        else:
            e(f'buffer_store_dwordx4 v[{RD + 32 + 4 * u}:{RD + 35 + 4 * u}], v{VL16}, s[{sWS}:{sWS + 3}], s43 offen offset:{1024 * u}{SA}')
    if which == 'wo':
        if keep_x1:
            for i in range(8):
                e(f'v_accvgpr_write_b32 a{X1KEEP + i}, v{RD + 32 + i}')
        for i in range(16):
            src = RD + 32 + i // 2
            if i % 2 == 0:
                e(f'v_lshlrev_b32 v{RD + i}, 16, v{src}')
            else:
                e(f'v_and_b32 v{RD + i}, 0xffff0000, v{src}')
        A, B = RD + 16, RD + 17
        e(f'v_add_f32 v{A}, v{RD}, v{RD + 1}')
        e(f'v_mul_f32 v{B}, v{RD}, v{RD}')
        e(f'v_fmac_f32 v{B}, v{RD + 1}, v{RD + 1}')
        for i in range(2, 16):
            e(f'v_add_f32 v{A}, v{A}, v{RD + i}')
            e(f'v_fmac_f32 v{B}, v{RD + i}, v{RD + i}')
        e(f'v_mov_b32 v{A + 2}, v{A}')
        e(f'v_mov_b32 v{A + 3}, v{B}')
        e(f'v_permlane32_swap_b32 v{A}, v{A + 2}')
        e(f'v_permlane32_swap_b32 v{B}, v{A + 3}')
        e(f'v_add_f32 v{A}, v{A}, v{A + 2}')
        e(f'v_add_f32 v{B}, v{B}, v{A + 3}')
        e('s_lshl_b32 s45, s42, 7')
        e('s_lshr_b32 s46, s41, 2')
        e('s_add_u32 s45, s45, s46')
        e(f's_add_u32 s45, s45, {WS_ST}')
        e('v_lshlrev_b32 v3, 7, v5')
        e(f'buffer_store_dwordx2 v[{A}:{A + 1}], v3, s[{sWS}:{sWS + 3}], s45 offen{SA}')
        if out_flag:
            e('s_lshr_b32 s46, s28, 1')
            e('s_lshl_b32 s46, s46, 8')
            e('s_and_b32 s45, s28, 1')
            e('s_lshl_b32 s45, s45, 7')
            e('s_add_u32 s46, s46, s45')
            e('s_lshl_b32 s45, s29, 4')
            e('s_add_u32 s46, s46, s45')
            e(f's_lshl_b32 s45, s{sWv}, 2')
            e('s_add_u32 s46, s46, s45')
            e(f's_add_u32 s46, s46, {WS_FA}')
    stamp(k, sbase + 3)
    yield 'done'


def phase_ffn1(k, opts, dep, out_flag, sbase, early=None):
    e = k.e
    s1, s3_, sWS = 8, 20, sWS_T
    sW, sT0, sT1, sXb, sWo, sHb, sW4K = sWV_T, 33, 34, 35, 36, 37, 38
    ACC = 0
    XD = 12
    XR = 128
    H = 176
    SS = 184
    FT = 216
    WRA = 224
    VL16, VDW, VMD, VLANE, RS, NM = 232, 233, 234, 235, 236, 237
    T = 238
    WF = 0
    LDS_MOD = 131072
    XA = ' sc1' if dep else ''
    PURE = opts.get('sk', 0)
    if PURE:
        XD = 16; XR = 128
    e('s_and_b32 s50, s2, 1')
    e('s_lshl_b32 s50, s50, 3')
    e('s_bfe_u32 s3, s2, 0x30003')
    e('s_add_u32 s50, s50, s3')
    lane_id(k, VLANE)
    e(f'v_lshlrev_b32 v{VL16}, 4, v{VLANE}')
    e(f'v_lshrrev_b32 v{T + 1}, 4, v{VLANE}')
    e(f'v_and_b32 v{T + 2}, 15, v{VLANE}')
    e(f'v_lshlrev_b32 v{T + 3}, 2, v{T + 1}')
    e(f'v_xor_b32 v{T + 3}, v{T + 3}, v{T + 2}')
    e(f'v_lshlrev_b32 v{T + 3}, 4, v{T + 3}')
    e(f'v_mul_u32_u24 v{T + 4}, 3584, v{T + 1}')
    e(f'v_add_u32 v{VDW}, v{T + 4}, v{T + 3}')
    e(f's_lshl_b32 s{sW4K}, s{sW}, 12')
    e('s_lshl_b32 s3, s50, 2')
    e(f's_add_u32 s3, s3, s{sW}')
    e(f's_lshl_b32 s{sXb}, s3, 15')
    e(f's_add_u32 s{sXb}, s{sXb}, {WS_H2 if PURE else WS_X1}')
    e(f's_mul_i32 s{sHb}, s3, {112 * 1024}')
    e(f's_lshl_b32 s{sT0}, s51, 13')
    e(f's_add_u32 s{sHb}, s{sHb}, s{sT0}')
    e(f's_add_u32 s{sHb}, s{sHb}, {WS_HH}')
    e(f's_mul_i32 s{sWo}, s{sW}, {16 * 3584}')
    e(f's_lshl_b32 s{sT0}, s51, 8')
    e(f's_add_u32 s{sWo}, s{sWo}, s{sT0}')
    e(f'v_and_b32 v{T + 5}, 31, v{VLANE}')
    e(f'v_lshrrev_b32 v{T + 4}, 5, v{VLANE}')
    e(f'v_lshlrev_b32 v{T + 6}, 7, v{T + 5}')
    e(f'v_lshl_add_u32 v{T + 6}, v{T + 4}, 6, v{T + 6}')
    e(f's_lshl_b32 s39, s3, 12')
    e(f's_add_u32 s39, s39, {WS_ST}')
    yield 'setup'
    srd(k, s1, 56, 57, 512 * 3584)
    srd(k, s3_, 58, 59, 512 * 3584)

    def w_dma(c):
        out = []
        for mat, sd in enumerate((s1, s3_)):
            for p in range(4):
                g = []
                if p == 0:
                    g.append((1, lambda mat=mat: e(f's_add_u32 m0, s{sW4K}, {BSLOT[c % 4][mat]}')))
                g.append((1, lambda p=p: e(f's_add_u32 s{sT0}, s{sWo}, {c * 64 * 3584 + p * (4 * 3584 - 1024)}')))
                g.append((COST['dma'], lambda p=p, sd=sd: e(f'buffer_load_dwordx4 v{VDW}, s[{sd}:{sd + 3}], s{sT0} offen offset:{p * 1024} lds', ('wq', c))))
                out.append(g)
        return out

    def xreg(ks):
        return XR + (ks % XD) * 4

    def x_load(ks):
        r = xreg(ks)
        g = []
        if ks % 4 == 0:
            g.append((1, lambda: e(f's_add_u32 s{sT1}, s{sXb}, {(ks // 4) * 4096}')))
        g.append((COST['vload'], lambda: e(f'buffer_load_dwordx4 v[{r}:{r + 3}], v{VL16}, s[{sWS}:{sWS + 3}], s{sT1} offen offset:{(ks % 4) * 1024}{XA}', ('x', ks))))
        return g

    def addr_setup():
        e(f'v_lshrrev_b32 v{T + 7}, 2, v{T + 2}')
        e(f'v_and_b32 v{T + 8}, 1, v{T + 1}')
        e(f'v_lshlrev_b32 v{T + 8}, 5, v{T + 8}')
        e(f'v_and_b32 v{T + 9}, 1, v{VLANE}')
        e(f'v_lshl_add_u32 v{T + 8}, v{T + 9}, 4, v{T + 8}')
        e(f'v_bfe_u32 v{T + 9}, v{VLANE}, 1, 1')
        e(f'v_lshl_add_u32 v{T + 8}, v{T + 9}, 3, v{T + 8}')
        e(f'v_lshl_add_u32 v{T + 8}, v{T + 7}, 8, v{T + 8}')
        e(f'v_lshl_add_u32 v{T + 8}, v{T + 4}, 11, v{T + 8}')
        for db in range(4):
            e(f'v_xor_b32 v{T + 9}, {db}, v{T + 7}')
            e(f'v_lshl_add_u32 v{WRA + db}, v{T + 9}, 6, v{T + 8}')
            e(f'v_add_u32 v{WRA + 4 + db}, 0x10000, v{WRA + db}')
        e(f'v_lshlrev_b32 v{VMD}, 6, v{T + 4}')
        e(f'v_add_u32 v{VMD}, {LDS_MOD}, v{VMD}')

    ST = SS

    def st_loads():
        for j in range(4):
            e(f'buffer_load_dwordx4 v[{ST + 4 * j}:{ST + 3 + 4 * j}], v{T + 6}, s[{sWS}:{sWS + 3}], s39 offen offset:{16 * j}{XA}', 'st')

    def mod_dma():
        e(f's_lshl_b32 s{sT0}, s{sW}, 10')
        e(f's_add_u32 m0, s{sT0}, {LDS_MOD}')
        e(f's_add_u32 s{sT0}, s{sT0}, {WS_MOD2}')
        e(f'buffer_load_dwordx4 v{VL16}, s[{sWS}:{sWS + 3}], s{sT0} offen lds', ('wq', 0))

    if dep:
        NPRE = opts.get('npre4f', 4); NPX = 3
        mod_dma()
        for c in range(2, NPRE):
            for g in w_dma(c):
                for _, f in g: f()
        yield 'prefetched'
        addr_setup()
        e('s_lshl_b32 s45, s50, 8')
        e(f's_add_u32 s45, s45, {WS_FA}')
        stamp(k, sbase)
        poll(k, 'pb', T + 10, VLANE, 45, 64, opts)
        sbase += 1
        stamp(k, sbase)
        st_loads()
        for ks in range(4 * NPX):
            for _, f in x_load(ks): f()
    else:
        NPRE = opts.get('npre4', 1); NPX = NPRE
        if not PURE:
            st_loads()
            mod_dma()
        for _, f in x_load(0): f()
        for g in w_dma(0):
            for _, f in g: f()
        for ks in range(1, 4):
            for _, f in x_load(ks): f()
        for c in range(1, NPRE):
            for g in w_dma(c):
                for _, f in g: f()
            for ks in range(4 * c, 4 * c + 4):
                for _, f in x_load(ks): f()
        yield 'prefetched'
        addr_setup()
        stamp(k, sbase)
    if not PURE:
        k.wait(vm=['st'])
        e(f's_mov_b32 s3, {f32(1.0 / 512)}')
        r = ST
        for j in range(1, 8):
            e(f'v_add_f32 v{r}, v{r}, v{r + 2 * j}')
            e(f'v_add_f32 v{r + 1}, v{r + 1}, v{r + 2 * j + 1}')
        e(f'v_mov_b32 v{r + 2}, v{r}')
        e(f'v_mov_b32 v{r + 3}, v{r + 1}')
        e(f'v_permlane32_swap_b32 v{r}, v{r + 2}')
        e(f'v_permlane32_swap_b32 v{r + 1}, v{r + 3}')
        e(f'v_add_f32 v{r}, v{r}, v{r + 2}')
        e(f'v_add_f32 v{r + 1}, v{r + 1}, v{r + 3}')
        e(f'v_mul_f32 v{r}, s3, v{r}')
        e(f'v_mul_f32 v{r + 1}, s3, v{r + 1}')
        e(f'v_fma_f32 v{r + 1}, -v{r}, v{r}, v{r + 1}')
        e(f'v_max_f32 v{r + 1}, 0, v{r + 1}')
        rbf(k, r, r)
        rbf(k, r + 1, r + 1)
        e(f'v_add_f32 v{r + 1}, {f32(1e-5)}, v{r + 1}')
        rbf(k, r + 1, r + 1)
        e(f'v_sqrt_f32 v{r + 1}, v{r + 1}')
        rbf(k, r + 1, r + 1)
        e(f'v_rcp_f32 v{RS}, v{r + 1}')
        e(f'v_mul_f32 v{NM}, v{r}, v{RS}')
        e(f'v_sub_f32 v{NM}, 0, v{NM}')

    def w_reads(ks):
        out = []
        c = ks // 4
        for nb in range(8):
            mat, db = nb // 4, nb % 4
            off = BSLOT[c % 4][mat] + (ks % 4) * 4096
            base = WRA + (4 if off >= 65536 else 0) + db
            for t in range(2):
                r = WF + (ks % 2) * 32 + nb * 4 + t * 2
                out.append((COST['ds'], lambda r=r, base=base, t=t, off=off: e(f'ds_read_b64_tr_b16 a[{r}:{r + 1}], v{base} offset:{off % 65536 + t * 1024}', ('w', ks))))
        return out

    def ss_reads(ks):
        out = []
        for j in range(4):
            r = SS + (ks % 2) * 16 + 4 * j
            out.append((COST['ds'], lambda r=r, j=j: e(f'ds_read_b128 v[{r}:{r + 3}], v{VMD} offset:{ks * 128 + j * 16}', ('ss', ks))))
        return out

    def xform(ks):
        out = []
        sb = SS + (ks % 2) * 16
        x = xreg(ks)
        for p in range(4):
            t = FT + p * 2
            out.append((1, lambda p=p, t=t: e(f'v_lshlrev_b32 v{t}, 16, v{x + p}')))
            out.append((1, lambda p=p, t=t: e(f'v_and_b32 v{t + 1}, 0xffff0000, v{x + p}')))
            out.append((1, lambda t=t: e(f'v_fma_f32 v{t}, v{t}, v{RS}, v{NM}')))
            out.append((1, lambda t=t: e(f'v_fma_f32 v{t + 1}, v{t + 1}, v{RS}, v{NM}')))
            out.append((1, lambda p=p, t=t: e(f'v_fma_f32 v{t}, v{t}, v{sb + 2 * p}, v{sb + 8 + 2 * p}')))
            out.append((1, lambda p=p, t=t: e(f'v_fma_f32 v{t + 1}, v{t + 1}, v{sb + 2 * p + 1}, v{sb + 8 + 2 * p + 1}')))
            h = H + (ks % 2) * 4 + p
            out.append((1, lambda t=t, h=h: e(f'v_cvt_pk_bf16_f32 v{h}, v{t}, v{t + 1}')))
        return out

    todo = []
    wn = NPRE; xn = NPX
    while wn < 8 or xn < 8:
        if wn < 8 and wn <= xn:
            first = 0 if wn < 4 else 4 * (wn - 3)
            todo += [(first, g) for g in w_dma(wn)]; wn += 1
        else:
            for ks in range(4 * xn, 4 * xn + 4):
                todo.append((ks - XD + (1 if PURE else 0), x_load(ks)))
            xn += 1
    RATE = opts.get('rate4', 5)
    early = list(early or [])

    k.wait(vm=[('wq', 0)])
    e('s_barrier')
    stamp(k, sbase + 1)
    if PURE:
        for _, f in w_reads(0): f()
        k.wait(vm=[('x', 0)], lg=[('w', 0)])
    else:
        for _, f in ss_reads(0) + w_reads(0) + ss_reads(1): f()
        k.wait(vm=[('x', 0)], lg=[('ss', 0)])
        for _, f in xform(0): f()
        k.wait(lg=[('w', 0)])
    for ks in range(32):
        mf = []
        for nb in range(8):
            def m(nb=nb):
                acc = ACC + nb * 16
                c = '0' if ks == 0 else vr(acc, 16)
                b = xreg(ks) if PURE else H + (ks % 2) * 4
                e(f'v_mfma_f32_32x32x16_bf16 {vr(acc, 16)}, {ar(WF + (ks % 2) * 32 + nb * 4, 4)}, {vr(b, 4)}, {c}')
            mf.append(m)
        fx = {}; st = []; caps = {}
        if ks + 1 < 32:
            newc = (ks + 1) % 4 == 0
            vmw = ([] if PURE else [('x', ks + 1)]) + ([('wq', (ks + 1) // 4)] if newc else [])
            fx.setdefault(0, []).append((0, lambda: k.wait(vm=vmw, lg=[('ss', ks + 1)]), 'wait'))
            if newc:
                fx.setdefault(0, []).append((6, lambda: e('s_barrier'), 'bar'))
            g0 = 1 if newc else 0
            rd = (ss_reads(ks + 2) if ks + 2 < 32 and not PURE else []) + w_reads(ks + 1)
            for i, it in enumerate(rd):
                fx.setdefault(g0 + i // 4, []).append((it[0], it[1], 'ds'))
            st = [] if PURE else xform(ks + 1)
            fx.setdefault(7, []).append((0, lambda: k.wait(vm=[('x', ks + 1)] if PURE else [], lg=[('w', ks + 1)]), 'wait'))
        groups = []
        while todo and len(groups) < RATE and todo[0][0] <= ks:
            groups.append(todo.pop(0)[1])
        if early and ks == 22:
            groups.append([(8, early.pop(0))])
        elif early and ks >= 24 and len(early) > 5:
            groups.append([(6, early.pop(0))])
        gl = sorted([6, 7, 5, 4, 3, 2][:len(groups)])
        for g, grp in zip(gl, groups):
            for it in grp[:-1]:
                fx.setdefault(g - 1, []).append((it[0], it[1], 'end'))
            fx.setdefault(g, []).append((grp[-1][0], grp[-1][1], 'dma'))
        schedule(k, mf, fx, st, caps=caps, last_gap=6, cap=8)
    assert not todo
    if out_flag:
        e('s_barrier')
        for f in early: f()
    stamp(k, sbase + 2)
    e(f's_mov_b32 s3, {f32(-LOG2E)}')
    e(f's_add_u32 s{sT0}, s{sHb}, 4096')
    n = 0
    for j in range(4):
        for u in range(2):
            g = ACC + j * 16 + 8 * u
            up = ACC + (4 + j) * 16 + 8 * u
            t = XR + (n % 4) * 12; n += 1
            for i in range(8):
                e(f'v_mul_f32 v{t + i}, s3, v{g + i}')
            for i in range(8):
                e(f'v_exp_f32 v{t + i}, v{t + i}')
            for i in range(8):
                e(f'v_add_f32 v{t + i}, 1.0, v{t + i}')
            for i in range(8):
                e(f'v_rcp_f32 v{t + i}, v{t + i}')
            for i in range(8):
                e(f'v_mul_f32 v{g + i}, v{g + i}, v{t + i}')
            for i in range(8):
                e(f'v_mul_f32 v{g + i}, v{g + i}, v{up + i}')
            for i in range(4):
                e(f'v_cvt_pk_bf16_f32 v{t + 8 + i}, v{g + 2 * i}, v{g + 2 * i + 1}')
            kk = 2 * j + u
            so = sHb if kk < 4 else sT0
            e(f'buffer_store_dwordx4 v[{t + 8}:{t + 11}], v{VL16}, s[{sWS}:{sWS + 3}], s{so} offen offset:{(kk % 4) * 1024} sc1')
    if out_flag:
        e('s_lshl_b32 s46, s50, 8')
        e('s_lshl_b32 s45, s51, 4')
        e('s_add_u32 s46, s46, s45')
        e(f's_lshl_b32 s45, s{sW}, 2')
        e('s_add_u32 s46, s46, s45')
        e(f's_add_u32 s46, s46, {WS_FB}')
    stamp(k, sbase + 3)
    yield 'done'


def gen_oproj_sk(opts):
    k = Kern('oproj_kernel')
    e = k.e
    sWS = 12
    sW, sT0, sT1, sXb, sWo, sPb, sW4K = 32, 33, 34, 35, 36, 37, 38
    ACC = 0
    XD = 32
    XR = 64
    WRA = 192
    VL16, VDW, VLANE = 200, 201, 202
    T = 204
    WF = 0
    NSL = 8
    e('s_cmp_ge_u32 s2, 256')
    e('s_cbranch_scc1 oproj_end')
    stamp(k, 0)
    e(f's_load_dwordx2 s[6:7], s[0:1], {A_WS}')
    e(f'v_lshrrev_b32 v{T}, 6, v0')
    e(f'v_and_b32 v{VLANE}, 63, v0')
    e(f'v_readfirstlane_b32 s{sW}, v{T}')
    e(f'v_lshlrev_b32 v{VL16}, 4, v{VLANE}')
    e('s_bfe_u32 s28, s2, 0x20001')
    e('s_and_b32 s29, s2, 1')
    e('s_lshl_b32 s29, s29, 3')
    e('s_bfe_u32 s3, s2, 0x30003')
    e('s_add_u32 s29, s29, s3')
    e('s_lshr_b32 s30, s2, 6')
    e(f'v_lshrrev_b32 v{T + 1}, 4, v{VLANE}')
    e(f'v_and_b32 v{T + 2}, 15, v{VLANE}')
    e(f'v_lshlrev_b32 v{T + 3}, 2, v{T + 1}')
    e(f'v_xor_b32 v{T + 3}, v{T + 3}, v{T + 2}')
    e(f'v_lshlrev_b32 v{T + 3}, 4, v{T + 3}')
    e(f'v_lshl_add_u32 v{VDW}, v{T + 1}, 8, v{T + 3}')
    e(f's_lshl_b32 s{sW4K}, s{sW}, 12')
    e('s_lshl_b32 s3, s29, 2')
    e(f's_add_u32 s3, s3, s{sW}')
    e(f's_lshl_b32 s{sXb}, s3, 18')
    e(f's_lshl_b32 s{sT0}, s28, 16')
    e(f's_add_u32 s{sXb}, s{sXb}, s{sT0}')
    e(f's_add_u32 s{sXb}, s{sXb}, {WS_O}')
    e(f's_lshl_b32 s{sWo}, s30, 20')
    e(f's_lshl_b32 s{sT0}, s28, 18')
    e(f's_add_u32 s{sWo}, s{sWo}, s{sT0}')
    e(f's_add_u32 s{sWo}, s{sWo}, s{sW4K}')
    e(f's_add_u32 s{sWo}, s{sWo}, {WS_WOT}')
    e(f's_lshl_b32 s{sPb}, s28, 22')
    e(f's_lshl_b32 s{sT0}, s3, 16')
    e(f's_add_u32 s{sPb}, s{sPb}, s{sT0}')
    e(f's_lshl_b32 s{sT0}, s30, 14')
    e(f's_add_u32 s{sPb}, s{sPb}, s{sT0}')
    e(f's_add_u32 s{sPb}, s{sPb}, {WS_P}')
    e('s_waitcnt lgkmcnt(0)')
    srd(k, sWS, 6, 7, WS_SIZE)

    def w_dma(c):
        out = []
        for p in range(4):
            g = []
            if p == 0:
                g.append((1, lambda: e(f's_add_u32 m0, s{sW4K}, {(c % NSL) * 16384}')))
                g.append((1, lambda: e(f's_add_u32 s{sT0}, s{sWo}, {c * 16384}')))
            g.append((COST['dma'], lambda p=p: e(f'buffer_load_dwordx4 v{VDW}, s[{sWS}:{sWS + 3}], s{sT0} offen offset:{p * 1024} lds', ('wq', c))))
            out.append(g)
        return out

    def xreg(ks):
        return XR + (ks % XD) * 4

    def x_load(ks):
        r = xreg(ks)
        g = []
        if ks % 4 == 0:
            g.append((1, lambda: e(f's_add_u32 s{sT1}, s{sXb}, {(ks // 4) * 4096}')))
        g.append((COST['vload'], lambda: e(f'buffer_load_dwordx4 v[{r}:{r + 3}], v{VL16}, s[{sWS}:{sWS + 3}], s{sT1} offen offset:{(ks % 4) * 1024}', ('x', ks))))
        return g

    NPRE = opts.get('npre3', 4)
    for c in range(NPRE):
        for g in w_dma(c):
            for _, f in g: f()
        for ks in range(4 * c, 4 * c + 4):
            for _, f in x_load(ks): f()
        if c == 0:
            e(f'v_lshrrev_b32 v{T + 4}, 5, v{VLANE}')
            e(f'v_lshrrev_b32 v{T + 7}, 2, v{T + 2}')
            e(f'v_and_b32 v{T + 8}, 1, v{T + 1}')
            e(f'v_lshlrev_b32 v{T + 8}, 5, v{T + 8}')
            e(f'v_and_b32 v{T + 9}, 1, v{VLANE}')
            e(f'v_lshl_add_u32 v{T + 8}, v{T + 9}, 4, v{T + 8}')
            e(f'v_bfe_u32 v{T + 9}, v{VLANE}, 1, 1')
            e(f'v_lshl_add_u32 v{T + 8}, v{T + 9}, 3, v{T + 8}')
            e(f'v_lshl_add_u32 v{T + 8}, v{T + 7}, 8, v{T + 8}')
            e(f'v_lshl_add_u32 v{T + 8}, v{T + 4}, 11, v{T + 8}')
            for db in range(4):
                e(f'v_xor_b32 v{T + 9}, {db}, v{T + 7}')
                e(f'v_lshl_add_u32 v{WRA + db}, v{T + 9}, 6, v{T + 8}')
                e(f'v_add_u32 v{WRA + 4 + db}, 0x10000, v{WRA + db}')

    def w_reads(ks):
        out = []
        off = ((ks // 4) % NSL) * 16384 + (ks % 4) * 4096
        for db in range(4):
            base = WRA + (4 if off >= 65536 else 0) + db
            for t in range(2):
                r = WF + (ks % 2) * 16 + db * 4 + t * 2
                out.append(lambda r=r, base=base, t=t: e(f'ds_read_b64_tr_b16 a[{r}:{r + 1}], v{base} offset:{off % 65536 + t * 1024}', ('w', ks)))
        return out

    todo = []
    for c in range(NPRE, 16):
        first = 0 if c < NSL else 4 * (c - NSL + 1)
        todo += [(first, g) for g in w_dma(c)]
        for ks in range(4 * c, 4 * c + 4):
            todo.append((ks - XD + 1, x_load(ks)))
    RATE = opts.get('rate3', 3)
    stamp(k, 1)
    k.wait(vm=[('wq', 0)])
    e('s_barrier')
    for f in w_reads(0): f()
    k.wait(vm=[('x', 0)], lg=[('w', 0)])
    stamp(k, 2)
    for ks in range(64):
        mf = []
        for nb in range(4):
            def m(nb=nb):
                acc = ACC + nb * 16
                c = '0' if ks == 0 else vr(acc, 16)
                e(f'v_mfma_f32_32x32x16_bf16 {vr(acc, 16)}, {ar(WF + (ks % 2) * 16 + nb * 4, 4)}, {vr(xreg(ks), 4)}, {c}')
            mf.append(m)
        fx = {}
        if ks + 1 < 64:
            newc = (ks + 1) % 4 == 0
            if newc:
                fx.setdefault(0, []).append((0, lambda: k.wait(vm=[('wq', (ks + 1) // 4)]), 'wait'))
                fx.setdefault(0, []).append((1, lambda: e('s_barrier'), 'bar'))
            for i, f in enumerate(w_reads(ks + 1)):
                fx.setdefault(i // 4, []).append((1, f, 'ds'))
            fx.setdefault(3, []).append((0, lambda: k.wait(vm=[('x', ks + 1)], lg=[('w', ks + 1)]), 'wait'))
        groups = []
        while todo and len(groups) < RATE and todo[0][0] <= ks:
            groups.append(todo.pop(0)[1])
        for g, grp in zip([2, 3, 3][:len(groups)] if len(groups) < 3 else [1, 2, 3], groups):
            for it in grp[:-1]:
                fx.setdefault(g if g == 3 and len(groups) == 2 and False else g - 1, []).append((it[0], it[1], 'end'))
            fx.setdefault(g, []).append((grp[-1][0], grp[-1][1], 'dma'))
        schedule(k, mf, fx, [])
    assert not todo
    stamp(k, 3)
    for nb in range(4):
        e(f's_add_u32 s{sT0}, s{sPb}, {nb * 4096}')
        for q in range(4):
            e(f'buffer_store_dwordx4 v[{ACC + nb * 16 + 4 * q}:{ACC + nb * 16 + 4 * q + 3}], v{VL16}, s[{sWS}:{sWS + 3}], s{sT0} offen offset:{q * 1024}{opts.get("pst", " sc1")}')
    stamp(k, 4)
    if STAMP:
        e(f's_lshl_b32 s100, s{sW}, 6')
        e('v_mov_b32 v0, s100')
    stamp_flush(k, 5, sWS, 2)
    k.label('oproj_end')
    e('s_endpgm')
    return k, 'grid=(256,1,1) block=(256,1,1) lds=131072'


def gen_red(opts):
    k = Kern('red_kernel')
    e = k.e
    sWS, sX = 12, 16
    e('s_cmp_ge_u32 s2, 256')
    e('s_cbranch_scc1 red_end')
    stamp(k, 0)
    e(f's_load_dwordx2 s[6:7], s[0:1], {A_WS}')
    e(f's_load_dwordx2 s[4:5], s[0:1], {A_X}')
    e('v_and_b32 v1, 7, v0')
    e('v_lshrrev_b32 v2, 3, v0')
    e('v_lshlrev_b32 v3, 11, v2')
    e('v_lshl_add_u32 v3, v1, 4, v3')
    e('s_lshr_b32 s28, s2, 2')
    e('s_and_b32 s29, s2, 3')
    e('s_lshl_b32 s30, s28, 16')
    e('s_lshl_b32 s31, s29, 7')
    e('s_add_u32 s30, s30, s31')
    e(f's_add_u32 s30, s30, {WS_P}')
    e('s_lshl_b32 s33, s2, 13')
    e('v_lshlrev_b32 v4, 10, v1')
    e('v_lshl_add_u32 v4, v2, 5, v4')
    e('v_lshlrev_b32 v5, 6, v2')
    e('v_lshlrev_b32 v6, 7, v2')
    e('v_lshlrev_b32 v7, 10, v2')
    e('v_lshl_add_u32 v7, v1, 4, v7')
    e('s_lshl_b32 s34, s28, 15')
    e('s_add_u32 s34, s34, s31')
    e(f's_add_u32 s35, s34, {WS_H2}')
    e(f's_add_u32 s34, s34, {WS_X1}')
    e('s_waitcnt lgkmcnt(0)')
    srd(k, sWS, 6, 7, WS_SIZE)
    srd(k, sX, 4, 5, 2048 * 1024)
    PR = 16
    for sp in range(4):
        for hh in range(2):
            for q in range(2):
                r = PR + sp * 16 + hh * 8 + q * 4
                e(f'buffer_load_dwordx4 v[{r}:{r + 3}], v3, s[{sWS}:{sWS + 3}], s30 offen offset:{q * 1024 + hh * 512}', ('p', sp))
        if sp < 3:
            e('s_add_u32 s30, s30, 0x400000')
    GA = 80; XX = 96; MD = 104
    e(f's_mov_b32 s36, {WS_GA}')
    e(f's_mov_b32 s37, {WS_MOD2}')
    for j in range(4):
        e(f'buffer_load_dwordx4 v[{GA + 4 * j}:{GA + 4 * j + 3}], v5, s[{sWS}:{sWS + 3}], s36 offen offset:{16 * j}', 'g')
    for j in range(2):
        e(f'buffer_load_dwordx4 v[{XX + 4 * j}:{XX + 4 * j + 3}], v4, s[{sX}:{sX + 3}], s33 offen offset:{16 * j}', 'g')
    for j in range(8):
        e(f'buffer_load_dwordx4 v[{MD + 4 * j}:{MD + 4 * j + 3}], v6, s[{sWS}:{sWS + 3}], s37 offen offset:{16 * j}', 'md')
    stamp(k, 1)
    for sp in range(1, 4):
        k.wait(vm=[('p', sp), ('p', 0)])
        for i in range(16):
            e(f'v_add_f32 v{PR + i}, v{PR + i}, v{PR + sp * 16 + i}')
    k.wait(vm=['g'])
    U = 32
    for i in range(16):
        rbf(k, PR + i, PR + i)
    for i in range(16):
        e(f'v_mul_f32 v{PR + i}, v{PR + i}, v{GA + i}')
    for i in range(16):
        rbf(k, PR + i, PR + i)
    for i in range(16):
        if i % 2 == 0:
            e(f'v_lshlrev_b32 v{U + i}, 16, v{XX + i // 2}')
        else:
            e(f'v_and_b32 v{U + i}, 0xffff0000, v{XX + i // 2}')
    for i in range(16):
        e(f'v_add_f32 v{PR + i}, v{PR + i}, v{U + i}')
    for i in range(8):
        e(f'v_cvt_pk_bf16_f32 v{U + i}, v{PR + 2 * i}, v{PR + 2 * i + 1}')
    for hh in range(2):
        e(f'buffer_store_dwordx4 v[{U + 4 * hh}:{U + 4 * hh + 3}], v7, s[{sWS}:{sWS + 3}], s34 offen offset:{512 * hh}')
    for i in range(16):
        rbf(k, PR + i, PR + i)
    A, B, C2, D2 = 48, 49, 50, 51
    e(f'v_add_f32 v{A}, v{PR}, v{PR + 1}')
    e(f'v_mul_f32 v{B}, v{PR}, v{PR}')
    e(f'v_fmac_f32 v{B}, v{PR + 1}, v{PR + 1}')
    for i in range(2, 16):
        e(f'v_add_f32 v{A}, v{A}, v{PR + i}')
        e(f'v_fmac_f32 v{B}, v{PR + i}, v{PR + i}')
    e(f'v_add_f32_dpp v{C2}, v{A}, v{A} row_ror:8 row_mask:0xf bank_mask:0xf')
    e(f'v_add_f32_dpp v{D2}, v{B}, v{B} row_ror:8 row_mask:0xf bank_mask:0xf')
    for sw in ('v_permlane16_swap_b32', 'v_permlane32_swap_b32'):
        e(f'v_mov_b32 v{A}, v{C2}')
        e(f'v_mov_b32 v{B}, v{D2}')
        e(f'{sw} v{A}, v{C2}')
        e(f'{sw} v{B}, v{D2}')
        e(f'v_add_f32 v{C2}, v{A}, v{C2}')
        e(f'v_add_f32 v{D2}, v{B}, v{D2}')
    e('v_lshrrev_b32 v8, 6, v0')
    e('v_lshlrev_b32 v9, 5, v1')
    e('v_lshl_add_u32 v8, v8, 3, v9')
    e(f'ds_write_b64 v8, v[{C2}:{D2}]')
    e('s_waitcnt lgkmcnt(0)')
    e('s_barrier')
    e('ds_read_b128 v[52:55], v9')
    e('ds_read_b128 v[56:59], v9 offset:16')
    e('s_waitcnt lgkmcnt(0)')
    e('v_add_f32 v52, v52, v54')
    e('v_add_f32 v53, v53, v55')
    e('v_add_f32 v56, v56, v58')
    e('v_add_f32 v57, v57, v59')
    e('v_add_f32 v52, v52, v56')
    e('v_add_f32 v53, v53, v57')
    e(f's_mov_b32 s3, {f32(1.0 / 512)}')
    e('v_mul_f32 v52, s3, v52')
    e('v_mul_f32 v53, s3, v53')
    e('v_fma_f32 v53, -v52, v52, v53')
    e('v_max_f32 v53, 0, v53')
    rbf(k, 52, 52)
    rbf(k, 53, 53)
    e(f'v_add_f32 v53, {f32(1e-5)}, v53')
    rbf(k, 53, 53)
    e('v_sqrt_f32 v53, v53')
    rbf(k, 53, 53)
    e('v_rcp_f32 v53, v53')
    k.wait(vm=['md'])
    for i in range(16):
        e(f'v_sub_f32 v{PR + i}, v{PR + i}, v52')
    for i in range(16):
        rbf(k, PR + i, PR + i)
    for i in range(16):
        e(f'v_mul_f32 v{PR + i}, v{PR + i}, v53')
    for i in range(16):
        rbf(k, PR + i, PR + i)
    for i in range(16):
        e(f'v_mul_f32 v{PR + i}, v{PR + i}, v{MD + (i // 8) * 16 + i % 8}')
    for i in range(16):
        rbf(k, PR + i, PR + i)
    for i in range(16):
        e(f'v_add_f32 v{PR + i}, v{PR + i}, v{MD + (i // 8) * 16 + 8 + i % 8}')
    for i in range(8):
        e(f'v_cvt_pk_bf16_f32 v{60 + i}, v{PR + 2 * i}, v{PR + 2 * i + 1}')
    for hh in range(2):
        e(f'buffer_store_dwordx4 v[{60 + 4 * hh}:{63 + 4 * hh}], v7, s[{sWS}:{sWS + 3}], s35 offen offset:{512 * hh}')
    stamp(k, 2)
    stamp_flush(k, 3, sWS, 3)
    k.label('red_end')
    e('s_endpgm')
    return k, 'grid=(256,1,1) block=(256,1,1) lds=512'


def run_until(gen, tag):
    for t in gen:
        if t == tag:
            return
    raise RuntimeError('phase tag not reached: ' + tag)


def gen_tail(name, phases, opts, kidx):
    k = Kern(name)
    e = k.e
    e('s_cmp_ge_u32 s2, 256')
    e(f's_cbranch_scc1 {name}_end')
    if 'B' in phases:
        e('s_bfe_u32 s51, s2, 0x20001')
        e('s_lshr_b32 s3, s2, 6')
        e('s_lshl_b32 s3, s3, 2')
        e('s_add_u32 s51, s51, s3')
        if phases == 'B':
            e('s_cmp_ge_u32 s51, 14')
            e(f's_cbranch_scc1 {name}_end')
    stamp(k, 0)
    e(f's_load_dwordx2 s[6:7], s[0:1], {A_WS}')
    if 'A' in phases:
        e(f's_load_dwordx2 s[60:61], s[0:1], {A_X}')
    if 'B' in phases:
        e(f's_load_dwordx4 s[56:59], s[0:1], {A_W1}')
    if 'C' in phases:
        e(f's_load_dwordx2 s[62:63], s[0:1], {A_OUT}')
    e('v_lshrrev_b32 v1, 6, v0')
    e(f'v_readfirstlane_b32 s{sWV_T}, v1')
    keep = 'A' in phases and 'C' in phases
    first = True
    pending_flag = False
    sb = 1
    for pi, ph in enumerate(phases):
        dep = pi > 0
        out_flag = pi + 1 < len(phases)
        if ph == 'B' and len(phases) > 1:
            if first:
                e('s_waitcnt lgkmcnt(0)')
                srd(k, sWS_T, 6, 7, WS_SIZE)
                first = False
            e('s_cmp_ge_u32 s51, 14')
            e(f's_cbranch_scc1 {name}_skipb')
        if ph == 'B':
            g = phase_ffn1(k, opts, dep, out_flag, sb, early_c(k, 13) if out_flag else None)
        else:
            g = phase_gemm64(k, 'wo' if ph == 'A' else 'w2', opts, dep, out_flag, keep, sb, early_b(k) if out_flag else None)
        run_until(g, 'setup')
        if first:
            e('s_waitcnt lgkmcnt(0)')
            srd(k, sWS_T, 6, 7, WS_SIZE)
            first = False
        if pending_flag:
            signal(k, 244 if ph == 'C' else 252, 46, 0)
        run_until(g, 'prefetched')
        run_until(g, 'done')
        pending_flag = out_flag
        if ph == 'B' and len(phases) > 1:
            if pi + 1 < len(phases):
                e(f's_branch {name}_joinb')
                k.label(f'{name}_skipb')
                if pi > 0:
                    signal(k, 252, 46, 0)
                for f in early_c(k, 13): f()
                e(f's_mov_b32 s46, {WS_FDUMMY}')
                k.label(f'{name}_joinb')
            else:
                e(f's_branch {name}_fin')
                k.label(f'{name}_skipb')
                if pi > 0:
                    signal(k, 252, 46, 0)
                k.label(f'{name}_fin')
        sb += 5 if dep else 4
    if STAMP:
        e(f's_lshl_b32 s100, s{sWV_T}, 6')
        e('v_mov_b32 v0, s100')
    stamp_flush(k, sb, sWS_T, kidx)
    k.label(f'{name}_end')
    e('s_endpgm')
    return k, 'grid=(256,1,1) block=(256,1,1) lds=135168'


def build(opts=None):
    global STAMP
    opts = opts or {}
    STAMP = opts.get('stamp', False)
    for kk in COST:
        if 'c_' + kk in opts: COST[kk] = opts['c_' + kk]
    ks = [gen_prep(opts), gen_attn(opts)]
    if opts.get('sk', 0):
        ks += [gen_oproj_sk(opts), gen_red(opts)]
        for i, ph in enumerate(opts.get('fuse', 'B|C').split('|')):
            ks.append(gen_tail('tail' + ph.lower() + '_kernel', ph, opts, 4 + i))
    else:
        for i, ph in enumerate(opts.get('fuse', 'A|B|C').split('|')):
            ks.append(gen_tail('tail' + ph.lower() + '_kernel', ph, opts, 2 + i))
    hdr = open('adaLN_cond__mha_block_cached__glu_gated_swiglu__prompt.s.ref').read().split('\n')
    out = []
    for l in hdr:
        if l.startswith('; Override') or l.startswith('; grid=') or '@launch' in l or not l.startswith(';'):
            if not l.startswith(';'):
                break
            continue
        out.append(l)
    for k, launch in ks:
        for _ in range(1 + opts.get('dup_' + k.name[:5], 0)):
            out.append(f'; @launch kernel={k.name} {launch}')
    out.append('.amdgcn_target "amdgcn-amd-amdhsa--gfx950"')
    out.append('.text')
    for k, _ in ks:
        n = k.fix_hazards(verbose=opts.get('verbose', False))
        print(f'{k.name}: {len(k.ins)} instr, {n} hazard nop states, regs {k.max_regs()}', file=sys.stderr)
        out.append(f'.globl {k.name}')
        out.append('.p2align 8')
        out.append(f'.type {k.name},@function')
        out.append(f'{k.name}:')
        out.append(k.text())
    out.append('code_end:')
    errs = 0
    errs += ks[0][0].verify_path({})
    errs += ks[0][0].verify_path({'prep_ln': 1})
    errs += ks[1][0].verify_path({'attn_tail': [False, False, False, True], 'attn_copy': [True, True, True, True], 'attn_copy_st': [False, True], 'attn_copy_ret': [False, False, True, True]})
    for k, _ in ks[2:]:
        errs += k.verify_path({'pa_loop': 2, 'pb_go': [False, True], 'pc_go': [False, True]})
        errs += k.verify_path({'pa_loop': 2, 'pb_go': 1, 'pc_go': 1})
        errs += k.verify_path({'pa_loop': 2, 'pb_go': 1, 'pc_go': 1, k.name + '_skipb': 1})
    assert errs == 0 or 'qx' in opts, errs
    out.append('.section .rodata,"a"')
    for k, _ in ks:
        out.append('.p2align 6')
        out.append(descriptor(k, 264 if k.name.startswith('tail') else 0))
    return '\n'.join(out)


if __name__ == '__main__':
    dst = sys.argv[1] if len(sys.argv) > 1 else 'adaLN_cond__mha_block_cached__glu_gated_swiglu__prompt.s'
    opts = {}
    for a in sys.argv[2:]:
        kk, _, v = a.partition('=')
        opts[kk] = eval(v) if v else True
    open(dst, 'w').write(build(opts))
```

```python
import sys, struct, math
from asmlib import *

A_X, A_K, A_V, A_WQ, A_WO, A_BX, A_W1, A_W3, A_W2, A_C, A_WMOD, A_OUT, A_DBG, A_WS = [8 * i for i in range(14)]
WS_MOD1 = 0
WS_GA = 4096
WS_MOD2 = 8192
WS_GB = 8192 + 4096
WS_FA = 0x4000
WS_FB = 0x5000
WS_FDUMMY = 0x6000
WS_XHAT = 0x10000
WS_O = 0x400000
WS_X1 = 0x1400000
WS_ST = 0x1600000
WS_HH = 0x1800000
WS_WOT = 0x2000000
WS_W2T = 0x2400000
WS_H2 = 0x2600000
WS_P = 0x3000000
WS_SIZE = 0x4000000

LOG2E = 1.4426950408889634


def f32(x):
    return '0x%08x' % struct.unpack('<I', struct.pack('<f', x))[0]


def srd(k, d, lo, hi, nbytes):
    k.e(f's_mov_b32 s{d}, s{lo}')
    k.e(f's_and_b32 s{d + 1}, s{hi}, 0xffff')
    k.e(f's_mov_b32 s{d + 2}, {nbytes}')
    k.e(f's_mov_b32 s{d + 3}, 0x00020000')


WS_STAMP = 0x1F00000
STAMP = False


def stamp(k, idx):
    if not STAMP:
        return
    k.e('s_waitcnt lgkmcnt(0)')
    k.e(f's_memtime s[{64 + 2 * idx}:{65 + 2 * idx}]')
    if idx == 0:
        k.e('s_memrealtime s[96:97]')
    k.e('s_waitcnt lgkmcnt(0)')


def stamp_flush(k, n, sws, kidx):
    if not STAMP:
        return
    e = k.e
    e('s_waitcnt vmcnt(0) lgkmcnt(0)')
    stamp(k, n)
    e('s_memrealtime s[98:99]')
    e('s_waitcnt lgkmcnt(0)')
    lab = k.newlabel('nost')
    e('v_readfirstlane_b32 s100, v0')
    e('s_cmp_lg_u32 s100, 0')
    e(f's_cbranch_scc1 {lab}')
    e('s_lshl_b32 s100, s2, 7')
    e(f's_add_u32 s100, s100, {WS_STAMP + kidx * 65536}')
    e('v_mov_b32 v1, 0')
    for i in range(n + 1):
        e(f'v_mov_b32 v2, s{64 + 2 * i}')
        e(f'buffer_store_dword v2, v1, s[{sws}:{sws + 3}], s100 offen offset:{4 * i}')
    e('v_mov_b32 v2, s96')
    e(f'buffer_store_dword v2, v1, s[{sws}:{sws + 3}], s100 offen offset:120')
    e('v_mov_b32 v2, s98')
    e(f'buffer_store_dword v2, v1, s[{sws}:{sws + 3}], s100 offen offset:124')
    k.label(lab)


def code_touch(k, v, sp, sidx, vlane, start, end):
    e = k.e
    lab = k.newlabel('pc')
    e(f's_getpc_b64 s[{sp}:{sp + 1}]')
    k.label(lab)
    e(f's_add_u32 s{sp}, s{sp}, {start}-{lab}')
    e(f's_addc_u32 s{sp + 1}, s{sp + 1}, 0')
    e(f's_lshl_b32 s{sidx}, s{sidx}, 13')
    e(f'v_lshlrev_b32 v{v}, 7, v{vlane}')
    e(f'v_add_u32 v{v}, s{sidx}, v{v}')
    e(f'v_min_u32 v{v}, {end}-{start}-4, v{v}')
    e(f'v_mov_b32 v{v + 1}, s{sp + 1}')
    e(f'v_add_co_u32 v{v}, vcc, s{sp}, v{v}')
    e(f'v_addc_co_u32 v{v + 1}, vcc, 0, v{v + 1}, vcc')
    e(f'global_load_dword v{v + 2}, v[{v}:{v + 1}], off', 'code')


def rbf(k, d, s):
    k.e(f'v_cvt_pk_bf16_f32 v{d}, 0, v{s}')


def allreduce16(k, v, t):
    for mod in ('quad_perm:[1,0,3,2]', 'quad_perm:[2,3,0,1]', 'row_half_mirror', 'row_mirror'):
        k.e(f'v_add_f32_dpp v{t}, v{v}, v{v} {mod} row_mask:0xf bank_mask:0xf')
        v, t = t, v


def gen_prep(opts):
    k = Kern('prep_kernel')
    e = k.e
    NMOD, NLN = 96, 128
    e(f's_cmp_ge_u32 s2, {NMOD + NLN}')
    e('s_cbranch_scc1 prep_end')
    stamp(k, 0)
    e(f's_load_dwordx2 s[4:5], s[0:1], {A_WS}')
    e(f's_load_dwordx2 s[6:7], s[0:1], {A_X}')
    e(f's_load_dwordx4 s[20:23], s[0:1], {A_C}')
    e(f's_load_dwordx4 s[36:39], s[0:1], {A_K}')
    e(f's_load_dwordx2 s[40:41], s[0:1], {A_WQ}')

    def prefetch(ln=False, part=3):
        if opts.get('cpf', 1) and part & 1:
            lab = k.newlabel('nocpf')
            e('v_lshrrev_b32 v72, 6, v0')
            e('v_and_b32 v73, 63, v0')
            e('v_readfirstlane_b32 s42, v72')
            e('s_lshr_b32 s43, s2, 3')
            e('s_lshl_b32 s43, s43, 2')
            e('s_add_u32 s43, s43, s42')
            e('s_cmp_ge_u32 s43, (code_end-attn_kernel+8191)/8192')
            e(f's_cbranch_scc1 {lab}')
            code_touch(k, 74, 44, 43, 73, 'attn_kernel', 'code_end')
            k.vmq.pop()
            k.label(lab)
        if opts.get('pf1', 2) == 2:
            if ln and part & 2:
                e('v_lshrrev_b32 v72, 6, v0')
                e('v_and_b32 v73, 63, v0')
                e('v_readfirstlane_b32 s42, v72')
                e('v_lshrrev_b32 v77, 3, v73')
                e('v_and_b32 v78, 7, v73')
                e('v_lshlrev_b32 v77, 13, v77')
                e('v_lshl_add_u32 v77, v78, 7, v77')
                e(f's_sub_u32 s43, s2, {NMOD}')
                e('s_lshr_b32 s43, s43, 3')
                e('s_lshl_b32 s43, s43, 2')
                e('s_add_u32 s43, s43, s42')
                e('s_lshl_b32 s43, s43, 16')
                e('s_and_b32 s44, s2, 7')
                e('s_lshl_b32 s44, s44, 10')
                e('s_add_u32 s43, s43, s44')
                srd(k, 48, 40, 41, 512 * 8192)
                e('buffer_load_dword v78, v77, s[48:51], s43 offen', 'pf')
                if opts.get('pf64', 0):
                    e('buffer_load_dword v79, v77, s[48:51], s43 offen offset:64', 'pf')
            return
        if not opts.get('pf1', 2):
            return
        e('v_lshrrev_b32 v72, 6, v0')
        e('v_and_b32 v73, 63, v0')
        e('v_readfirstlane_b32 s42, v72')
        e('v_lshrrev_b32 v74, 4, v73')
        e('v_and_b32 v75, 15, v73')
        e('v_lshlrev_b32 v74, 13, v74')
        e('v_lshl_add_u32 v74, v75, 6, v74')
        e('v_lshlrev_b32 v73, 6, v73')
        e('s_lshr_b32 s43, s2, 3')
        e('s_lshl_b32 s43, s43, 2')
        e('s_add_u32 s43, s43, s42')
        e('s_and_b32 s44, s2, 7')
        srd(k, 48, 40, 41, 512 * 8192)
        e('s_lshl_b32 s45, s43, 15')
        e('s_lshl_b32 s46, s44, 10')
        e('s_add_u32 s45, s45, s46')
        e('buffer_load_dword v76, v74, s[48:51], s45 offen', 'pf')
        e(f's_add_u32 s45, s45, {112 * 32768}')
        e('buffer_load_dword v77, v74, s[48:51], s45 offen', 'pf')
        e('s_and_b32 s45, s43, 63')
        e('s_lshr_b32 s46, s45, 4')
        e('s_lshl_b32 s47, s44, 2')
        e('s_add_u32 s46, s46, s47')
        e('s_lshl_b32 s46, s46, 19')
        e('s_and_b32 s45, s45, 15')
        e('s_lshl_b32 s45, s45, 12')
        e('s_add_u32 s45, s45, s46')
        srd(k, 48, 36, 37, 32 * 524288)
        e('buffer_load_dword v78, v73, s[48:51], s45 offen', 'pf')
        srd(k, 48, 38, 39, 32 * 524288)
        e('buffer_load_dword v79, v73, s[48:51], s45 offen', 'pf')
    e(f's_cmp_ge_u32 s2, {NMOD}')
    e('s_cbranch_scc1 prep_ln')
    e('v_and_b32 v1, 3, v0')
    e('v_lshrrev_b32 v2, 2, v0')
    e('s_mov_b32 s3, 49152')
    e('v_mul_lo_u32 v3, v2, s3')
    e('v_lshl_add_u32 v3, v1, 4, v3')
    e('s_lshl_b32 s3, s2, 6')
    e('v_add_u32 v3, s3, v3')
    e('v_lshlrev_b32 v4, 4, v2')
    e('s_waitcnt lgkmcnt(0)')
    stamp(k, 1)
    srd(k, 8, 20, 21, 1024)
    srd(k, 12, 22, 23, 512 * 6144)
    srd(k, 16, 4, 5, WS_SIZE)
    e('buffer_load_dwordx4 v[8:11], v4, s[8:11], 0 offen', 'c')
    for i in range(8):
        e(f's_mov_b32 s{24 + i}, {i * 6144}')
        e(f'buffer_load_dwordx4 v[{16 + 4 * i}:{19 + 4 * i}], v3, s[12:15], s{24 + i} offen', ('w', i))
    prefetch()
    k.wait(vm=['c'])
    stamp(k, 2)
    e(f's_mov_b32 s3, {f32(-LOG2E)}')
    for i in range(8):
        src = 8 + i // 2
        if i % 2 == 0:
            e(f'v_lshlrev_b32 v{48 + i}, 16, v{src}')
        else:
            e(f'v_and_b32 v{48 + i}, 0xffff0000, v{src}')
    for i in range(8):
        e(f'v_mul_f32 v{56 + i}, s3, v{48 + i}')
    for i in range(8):
        e(f'v_exp_f32 v{56 + i}, v{56 + i}')
    for i in range(8):
        e(f'v_add_f32 v{56 + i}, 1.0, v{56 + i}')
    for i in range(8):
        e(f'v_rcp_f32 v{56 + i}, v{56 + i}')
    for i in range(8):
        e(f'v_mul_f32 v{48 + i}, v{48 + i}, v{56 + i}')
    for i in range(8):
        rbf(k, 48 + i, 48 + i)
    for i in range(8):
        k.wait(vm=[('w', i)])
        for p in range(4):
            w = 16 + 4 * i + p
            e(f'v_lshlrev_b32 v56, 16, v{w}')
            e(f'v_and_b32 v57, 0xffff0000, v{w}')
            if i == 0:
                e(f'v_mul_f32 v{64 + 2 * p}, v48, v56')
                e(f'v_mul_f32 v{65 + 2 * p}, v48, v57')
            else:
                e(f'v_fmac_f32 v{64 + 2 * p}, v{48 + i}, v56')
                e(f'v_fmac_f32 v{65 + 2 * p}, v{48 + i}, v57')
    stamp(k, 3)
    e('v_lshlrev_b32 v5, 5, v0')
    e('ds_write_b128 v5, v[64:67]')
    e('ds_write_b128 v5, v[68:71] offset:16')
    e('s_waitcnt lgkmcnt(0)')
    e('s_barrier')
    e('v_and_b32 v6, 31, v0')
    e('v_lshrrev_b32 v7, 5, v0')
    e('v_lshlrev_b32 v5, 10, v7')
    e('v_lshl_add_u32 v5, v6, 2, v5')
    for i in range(8):
        e(f'ds_read_b32 v{16 + i}, v5 offset:{i * 128}')
    e('s_waitcnt lgkmcnt(0)')
    for i in range(1, 8):
        e(f'v_add_f32 v16, v16, v{16 + i}')
    e('v_lshlrev_b32 v5, 2, v0')
    e('ds_write_b32 v5, v16 offset:8192')
    e('s_waitcnt lgkmcnt(0)')
    e('s_barrier')
    e('v_cmp_gt_u32 vcc, 32, v0')
    e('s_and_saveexec_b64 s[32:33], vcc')
    e('s_cbranch_execz prep_end')
    for i in range(8):
        e(f'ds_read_b32 v{16 + i}, v5 offset:{8192 + i * 128}')
    e('s_waitcnt lgkmcnt(0)')
    for i in range(1, 8):
        e(f'v_add_f32 v16, v16, v{16 + i}')
    rbf(k, 16, 16)
    e('v_add_f32 v17, 1.0, v16')
    rbf(k, 17, 17)
    e('s_lshr_b32 s24, s2, 4')
    e('s_and_b32 s25, s2, 15')
    e('s_lshl_b32 s25, s25, 5')
    e('v_add_u32 v6, s25, v0')
    e('s_cmp_ge_u32 s24, 3')
    e('s_cselect_b32 s26, 8192, 0')
    e('s_cselect_b32 s27, 3, 0')
    e('s_sub_u32 s24, s24, s27')
    e('v_lshrrev_b32 v7, 3, v6')
    e('v_lshlrev_b32 v7, 6, v7')
    e('v_and_b32 v8, 7, v6')
    e('v_lshl_add_u32 v7, v8, 2, v7')
    e('v_lshlrev_b32 v8, 2, v6')
    stamp_flush(k, 4, 16, 0)
    e('s_cmp_eq_u32 s24, 2')
    e('s_cbranch_scc1 prep_gate')
    e('s_cmp_eq_u32 s24, 1')
    e('s_cbranch_scc1 prep_scale')
    e('buffer_store_dword v16, v7, s[16:19], s26 offen offset:32')
    e('s_endpgm')
    k.label('prep_scale')
    e('buffer_store_dword v17, v7, s[16:19], s26 offen')
    e('s_endpgm')
    k.label('prep_gate')
    e('s_add_u32 s26, s26, 4096')
    e('buffer_store_dword v16, v8, s[16:19], s26 offen')
    e('s_endpgm')
    k.label('prep_ln')
    e(f's_sub_u32 s3, s2, {NMOD}')
    e('s_lshl_b32 s3, s3, 4')
    e('v_lshrrev_b32 v1, 4, v0')
    e('v_add_u32 v1, s3, v1')
    e('v_and_b32 v2, 15, v0')
    e('v_lshlrev_b32 v3, 10, v1')
    e('v_lshl_add_u32 v3, v2, 4, v3')
    e('s_waitcnt lgkmcnt(0)')
    stamp(k, 1)
    srd(k, 8, 6, 7, 2048 * 1024)
    srd(k, 16, 4, 5, WS_SIZE)
    for j in range(4):
        e(f'buffer_load_dwordx4 v[{8 + 4 * j}:{11 + 4 * j}], v3, s[8:11], 0 offen offset:{256 * j}', ('x', j))
    PFP = opts.get('pfp', 0)
    prefetch(True, 3 if PFP == 0 else 1)
    e(f's_sub_u32 s43, s2, {NMOD}')
    e('s_cmp_ge_u32 s43, 8')
    e('s_cbranch_scc1 prep_nofl')
    e('s_lshl_b32 s43, s43, 10')
    e(f's_add_u32 s43, s43, {WS_FA}')
    e('v_lshlrev_b32 v72, 2, v0')
    e('v_mov_b32 v73, 0')
    e('buffer_store_dword v73, v72, s[16:19], s43 offen')
    k.vmq.pop()
    k.label('prep_nofl')
    e('v_lshrrev_b32 v4, 5, v1')
    e('v_lshlrev_b32 v4, 15, v4')
    e('v_lshrrev_b32 v5, 1, v2')
    e('v_lshl_add_u32 v4, v5, 10, v4')
    e('v_and_b32 v5, 1, v2')
    e('v_lshl_add_u32 v4, v5, 9, v4')
    e('v_and_b32 v5, 31, v1')
    e('v_lshl_add_u32 v4, v5, 4, v4')
    X = 32
    for j in range(4):
        k.wait(vm=[('x', j)])
        for p in range(4):
            e(f'v_lshlrev_b32 v{X + 8 * j + 2 * p}, 16, v{8 + 4 * j + p}')
            e(f'v_and_b32 v{X + 8 * j + 2 * p + 1}, 0xffff0000, v{8 + 4 * j + p}')
    stamp(k, 2)
    if PFP == 1:
        prefetch(True, 2)
    e(f'v_add_f32 v24, v{X}, v{X + 1}')
    e(f'v_add_f32 v25, v{X + 2}, v{X + 3}')
    for i in range(4, 32):
        e(f'v_add_f32 v{24 + i % 2}, v{24 + i % 2}, v{X + i}')
    e('v_add_f32 v24, v24, v25')
    allreduce16(k, 24, 25)
    e(f's_mov_b32 s3, {f32(1.0 / 512)}')
    e('v_mul_f32 v24, s3, v24')
    for i in range(32):
        e(f'v_sub_f32 v{64 + i % 4}, v{X + i}, v24')
        if i < 2:
            e(f'v_mul_f32 v{26 + i}, v{64 + i % 4}, v{64 + i % 4}')
        else:
            e(f'v_fmac_f32 v{26 + i % 2}, v{64 + i % 4}, v{64 + i % 4}')
    e('v_add_f32 v26, v26, v27')
    allreduce16(k, 26, 27)
    e('v_mul_f32 v26, s3, v26')
    rbf(k, 24, 24)
    rbf(k, 26, 26)
    e(f'v_add_f32 v26, {f32(1e-5)}, v26')
    rbf(k, 26, 26)
    e('v_sqrt_f32 v26, v26')
    rbf(k, 26, 26)
    e('v_rcp_f32 v26, v26')
    e(f's_mov_b32 s24, {WS_XHAT}')
    for j in range(4):
        for i in range(8):
            r = X + 8 * j + i
            e(f'v_sub_f32 v{r}, v{r}, v24')
        for i in range(8):
            r = X + 8 * j + i
            rbf(k, r, r)
        for i in range(8):
            r = X + 8 * j + i
            e(f'v_mul_f32 v{r}, v{r}, v26')
        for i in range(8):
            r = X + 8 * j + i
            rbf(k, r, r)
        for p in range(4):
            r = X + 8 * j + 2 * p
            e(f'v_cvt_pkrtz_f16_f32 v{8 + 4 * j + p}, v{r}, v{r + 1}')
        e(f'buffer_store_dwordx4 v[{8 + 4 * j}:{11 + 4 * j}], v4, s[16:19], s24 offen')
        if j < 3:
            e(f's_add_u32 s24, s24, 8192')
    if PFP == 2:
        prefetch(True, 2)
    stamp(k, 3)
    stamp_flush(k, 4, 16, 0)
    k.label('prep_end')
    e('s_endpgm')
    return k, f'grid=({NMOD + NLN},1,1) block=(256,1,1) lds=9216'


COST = {'exp': 2, 'valu': 1, 'ds': 1, 'dma': 2.5, 'salu': 1, 'vload': 2.5}
GAPCAP = 6
ORDER = {'wait': 0, 'bar': 1, 'dma': 2, 'ds': 3, 'end': 9}


def schedule(k, mfmas, fixed, stream, last_gap=None, cap=GAPCAP, caps=None):
    n = len(mfmas)
    if last_gap is None:
        last_gap = n - 1
    spare = []
    for g in range(n):
        c = sum(x[0] for x in fixed.get(g, []))
        cp = caps.get(g, cap) if caps else cap
        spare.append(max(cp - c, 0) if g <= last_gap else 0)
    tot_spare = sum(spare)
    tot = sum(x[0] for x in stream)
    si = 0
    done = 0.0
    cum = 0
    lastg = max([g for g in range(n) if spare[g] > 0] or [n - 1])
    for g in range(n):
        mfmas[g]()
        fx = sorted(fixed.get(g, []), key=lambda x: ORDER[x[2]])
        cum += spare[g]
        target = tot * cum / max(tot_spare, 1)
        mine = []
        while si < len(stream) and ((spare[g] > 0 and done + stream[si][0] * 0.5 <= target) or g >= lastg):
            mine.append(stream[si]); done += stream[si][0]; si += 1
        for x in fx:
            if x[2] != 'end': x[1]()
        for x in mine: x[1]()
        for x in fx:
            if x[2] == 'end': x[1]()
    assert si == len(stream)


def gemm256(k, P):
    e = k.e
    QX = P.get('qx', '')
    P['chunk_barrier'](0)
    for _, f in P['ss_reads'](0) + P['w_reads'](0) + P['ss_reads'](1): f()
    k.wait(vm=[('x', 0)], lg=[('ss', 0)])
    for _, f in P['xform'](0): f()
    k.wait(lg=[('w', 0)])
    for ks in range(32):
        mf = []
        for db in range(4):
            for qb in range(2):
                def m(db=db, qb=qb):
                    acc = P['ACC'] + (db * 2 + qb) * 16
                    wf = P['WF'] + (ks % 2) * 16 + db * 4
                    h = P['H'] + (ks % 2) * 8 + qb * 4
                    c = '0' if ks == 0 else ar(acc, 16)
                    e(f'v_mfma_f32_32x32x16_bf16 {ar(acc, 16)}, {ar(wf, 4)}, {vr(h, 4)}, {c}')
                mf.append(m)
        fx = {}
        st = []
        caps = {}
        if ks + 1 < 32:
            newc = (ks + 1) % 4 == 0
            if newc:
                fx.setdefault(0, []).append((0, lambda: k.wait(vm=[('wq', (ks + 1) // 4), ('x', ks + 1)], lg=[('ss', ks + 1)]), 'wait'))
                if 'B' not in QX: fx.setdefault(0, []).append((6, lambda: e('s_barrier'), 'bar'))
                caps[1] = 4
            else:
                fx.setdefault(0, []).append((0, lambda: k.wait(vm=[('x', ks + 1)], lg=[('ss', ks + 1)]), 'wait'))
            g0 = 1 if newc else 0
            rd = (P['ss_reads'](ks + 2) if ks + 2 < 32 and 'S' not in QX else []) + (P['w_reads'](ks + 1) if 'W' not in QX else [])
            for i, it in enumerate(rd):
                fx.setdefault(g0 + i // 3, []).append((it[0], it[1], 'ds'))
            st = P['xform'](ks + 1) if 'T' not in QX else []
            fx.setdefault(7, []).append((0, lambda: k.wait(lg=[('w', ks + 1)]), 'wait'))
        groups = P['refill'](ks)
        if 'V' in QX: groups = []
        gl = [5, 6, 4, 7, 3, 2][:len(groups)]
        gl.sort()
        for g, grp in zip(gl, groups):
            for it in grp[:-1]:
                fx.setdefault(g - 1, []).append((it[0], it[1], 'end'))
            fx.setdefault(g, []).append((grp[-1][0], grp[-1][1], 'dma'))
        schedule(k, mf, fx, st, caps=caps, last_gap=6, cap=7)


class G256:
    pass


BIAS = 100.0
THRESH = 2.0 ** 80


def gen_attn(opts):
    global BIAS
    BIAS = opts.get('bias', BIAS)
    k = Kern('attn_kernel')
    e = k.e
    sK, sV, sWQ, sWS = 8, 12, 16, 20
    sW, sW4K, sKoff, sVoff, sCnt, sThr, sXb, sT0, sT1, sOb = 32, 33, 34, 35, 36, 37, 38, 39, 40, 41
    sLink = 44
    S = [8, 40]; NEGM = 72; P = [104, 120]; Q = 136; ET = 200
    LS = [208, 209]; L = [210, 211]; TMP = 212
    KR = 216; VR = 224; DK = 228; DV = 232; VL16 = 233; VMD = 234; VLANE = 235
    O = 0; KF = 128; VF = 160
    LDS_K, LDS_V, LDS_MOD = 0, 65536, 131072

    e('s_cmp_ge_u32 s2, 256')
    e('s_cbranch_scc1 attn_end')
    stamp(k, 0)
    e(f's_load_dwordx4 s[4:7], s[0:1], {A_K}')
    e(f's_load_dwordx2 s[24:25], s[0:1], {A_WQ}')
    e(f's_load_dwordx2 s[26:27], s[0:1], {A_WS}')
    e(f's_load_dwordx2 s[48:49], s[0:1], {A_WO}')
    e(f's_load_dwordx4 s[52:55], s[0:1], {A_W3}')
    e(f's_load_dwordx2 s[50:51], s[0:1], {A_W1}')
    e('s_and_b32 s28, s2, 7')
    e('s_lshl_b32 s28, s28, 2')
    e('s_lshr_b32 s29, s2, 3')
    e('s_and_b32 s30, s29, 3')
    e('s_add_u32 s28, s28, s30')
    e('s_lshr_b32 s29, s29, 2')
    e('v_lshrrev_b32 v1, 6, v0')
    e(f'v_and_b32 v{VLANE}, 63, v0')
    e(f'v_readfirstlane_b32 s{sW}, v1')
    e(f'v_lshlrev_b32 v{VL16}, 4, v{VLANE}')
    e(f's_lshl_b32 s{sW4K}, s{sW}, 12')
    e(f'v_lshrrev_b32 v2, 4, v{VLANE}')
    e(f'v_and_b32 v3, 15, v{VLANE}')
    e(f'v_lshrrev_b32 v4, 5, v{VLANE}')
    e(f'v_and_b32 v5, 31, v{VLANE}')
    e('v_lshlrev_b32 v6, 2, v2')
    e('v_xor_b32 v6, v6, v3')
    e('v_lshlrev_b32 v6, 4, v6')
    e(f'v_lshl_add_u32 v{DV}, v2, 8, v6')
    e(f'v_add_u32 v{DV}, s{sW4K}, v{DV}')
    e(f's_lshl_b32 s3, s{sW}, 17')
    e('v_lshl_add_u32 v7, v2, 13, v6')
    e('v_add_u32 v7, s3, v7')
    e('s_waitcnt lgkmcnt(0)')
    e('s_lshl_b32 s3, s28, 19')
    e('s_add_u32 s4, s4, s3'); e('s_addc_u32 s5, s5, 0')
    e('s_add_u32 s6, s6, s3'); e('s_addc_u32 s7, s7, 0')
    srd(k, sK, 4, 5, 524288)
    srd(k, sV, 6, 7, 524288)
    e('s_lshl_b32 s3, s28, 8')
    e('s_add_u32 s24, s24, s3'); e('s_addc_u32 s25, s25, 0')
    e(f's_mov_b32 s{sWQ}, s24'); e(f's_and_b32 s{sWQ + 1}, s25, 0xffff')
    e(f's_sub_u32 s{sWQ + 2}, {512 * 8192}, s3'); e(f's_mov_b32 s{sWQ + 3}, 0x00020000')
    srd(k, sWS, 26, 27, WS_SIZE)
    e('s_lshl_b32 s3, s29, 3')
    e(f's_lshl_b32 s{sT0}, s{sW}, 1')
    e(f's_add_u32 s3, s3, s{sT0}')
    e(f's_lshl_b32 s{sXb}, s3, 15')
    e(f's_add_u32 s{sXb}, s{sXb}, {WS_XHAT}')
    e(f's_lshl_b32 s{sOb}, s3, 18')
    e(f's_lshl_b32 s{sT0}, s28, 13')
    e(f's_add_u32 s{sOb}, s{sOb}, s{sT0}')
    e(f's_add_u32 s{sOb}, s{sOb}, {WS_O}')

    XR = 8; H = 136; SS = 152; FT = 184; WRA = 200; WF = 128
    chunk_slot = [LDS_K, LDS_K + 16384, LDS_V, LDS_K + 32768, LDS_K + 49152, LDS_V + 16384, LDS_V + 32768, LDS_V + 49152]

    def wq_dma(c):
        out = []
        for p in range(4):
            g = []
            if p == 0:
                g.append((1, lambda: e(f's_add_u32 m0, s{sW4K}, {chunk_slot[c]}')))
            g.append((1, lambda p=p: e(f's_mov_b32 s{sT0}, {c * 524288 + p * (32768 - 1024)}')))
            g.append((COST['dma'], lambda p=p: e(f'buffer_load_dwordx4 v7, s[{sWQ}:{sWQ + 3}], s{sT0} offen offset:{p * 1024} lds', ('wq', c))))
            out.append(g)
        return out

    def xreg(ks, qb):
        return XR + (((ks // 4) % 4) * 8 + (ks % 4) * 2 + qb) * 4

    def x_load(ks, qb):
        c = ks // 4
        out = []
        so = (sT1, 43)[qb]
        if ks % 4 == 0:
            out.append((1, lambda: e(f's_add_u32 s{so}, s{sXb}, {qb * 32768 + c * 4096}')))
        r = xreg(ks, qb)
        out.append((COST['vload'], lambda: e(f'buffer_load_dwordx4 v[{r}:{r + 3}], v{VL16}, s[{sWS}:{sWS + 3}], s{so} offen offset:{(ks % 4) * 1024}', ('x', ks))))
        return out

    e(f's_lshl_b32 s{sT0}, s{sW}, 10')
    e(f's_add_u32 m0, s{sT0}, {LDS_MOD}')
    e(f's_add_u32 s{sT0}, s{sT0}, {WS_MOD1}')
    e(f'buffer_load_dwordx4 v{VL16}, s[{sWS}:{sWS + 3}], s{sT0} offen lds', ('wq', 0))
    NPRE = opts.get('npre', 1)
    NPX = opts.get('npx', NPRE)
    for c in range(max(NPRE, NPX)):
        for g in (wq_dma(c) if c < NPRE else []):
            for _, f in g: f()
        for ks in (range(4 * c, 4 * c + 4) if c < NPX else []):
            for qb in range(2):
                for _, f in x_load(ks, qb): f()
    e('v_lshrrev_b32 v236, 2, v3')
    e(f'v_and_b32 v237, 3, v{VLANE}')
    e('v_and_b32 v238, 1, v2')
    e('v_lshlrev_b32 v238, 5, v238')
    e('v_and_b32 v239, 1, v237')
    e('v_lshl_add_u32 v238, v239, 4, v238')
    e('v_lshrrev_b32 v239, 1, v237')
    e('v_lshl_add_u32 v238, v239, 3, v238')
    e('v_lshl_add_u32 v238, v236, 8, v238')
    for db in range(4):
        e(f'v_xor_b32 v239, {db}, v236')
        e(f'v_lshl_add_u32 v239, v239, 6, v238')
        e(f'v_lshl_add_u32 v{WRA + db}, v4, 11, v239')
        e(f'v_add_u32 v{WRA + 4 + db}, {LDS_V}, v{WRA + db}')
        e(f'v_lshl_add_u32 v{VR + db}, v4, 10, v239')
        e(f'v_add_u32 v{VR + db}, {LDS_V}, v{VR + db}')
    for ks in range(8):
        e(f'v_add_u32 v239, {2 * ks}, v4')
        e('v_xor_b32 v239, v239, v3')
        e('v_lshlrev_b32 v239, 4, v239')
        e(f'v_lshl_add_u32 v{KR + ks}, v5, 8, v239')
    for p in range(4):
        e(f'v_add_u32 v239, {4 * p}, v2')
        e('v_xor_b32 v239, v239, v3')
        e('v_lshlrev_b32 v239, 4, v239')
        e('v_lshl_add_u32 v239, v2, 8, v239')
        e(f'v_add_u32 v{DK + p}, s{sW4K}, v239')
    e(f'v_lshlrev_b32 v{VMD}, 6, v4')
    e(f'v_add_u32 v{VMD}, {LDS_MOD}, v{VMD}')
    e(f's_mov_b32 s{sThr}, {f32(THRESH)}')

    def w_reads(ks):
        c = ks // 4
        slot = chunk_slot[c]
        base = WRA + 4 if slot >= LDS_V else WRA
        off0 = (slot % 65536) + (ks % 4) * 16 * 256
        out = []
        for db in range(4):
            for t in range(2):
                r = WF + (ks % 2) * 16 + db * 4 + t * 2
                out.append((COST['ds'], lambda r=r, db=db, t=t: e(f'ds_read_b64_tr_b16 a[{r}:{r + 1}], v{base + db} offset:{off0 + t * 1024}', ('w', ks))))
        return out

    def ss_reads(ks):
        out = []
        for j in range(4):
            r = SS + (ks % 2) * 16 + 4 * j
            out.append((COST['ds'], lambda r=r, j=j: e(f'ds_read_b128 v[{r}:{r + 3}], v{VMD} offset:{ks * 128 + j * 16}', ('ss', ks))))
        return out

    def xform(ks):
        out = []
        sb = SS + (ks % 2) * 16
        for qb in range(2):
            x = xreg(ks, qb)
            for p in range(4):
                t = FT + (qb * 4 + p) * 2
                out.append((1, lambda x=x, p=p, t=t: e(f'v_fma_mix_f32 v{t}, v{x + p}, v{sb + 2 * p}, v{sb + 8 + 2 * p} op_sel_hi:[1,0,0]')))
                out.append((1, lambda x=x, p=p, t=t: e(f'v_fma_mix_f32 v{t + 1}, v{x + p}, v{sb + 2 * p + 1}, v{sb + 8 + 2 * p + 1} op_sel:[1,0,0] op_sel_hi:[1,0,0]')))
                h = H + (ks % 2) * 8 + qb * 4 + p
                out.append((1, lambda t=t, h=h: e(f'v_cvt_pk_bf16_f32 v{h}, v{t}, v{t + 1}')))
        return out

    def chunk_barrier(c):
        stamp(k, 1)
        k.wait(vm=[('wq', c)])
        e('s_barrier')
        stamp(k, 2)

    def kv_dma(which, tile):
        out = []
        slot = tile % 4
        for p in range(4):
            g = []
            if p == 0:
                g.append((1, lambda: e(f's_add_u32 m0, s{sW4K}, {(LDS_K if which == "K" else LDS_V) + slot * 16384}')))
                g.append((1, lambda: e(f's_mov_b32 s{sT0}, {tile * 16384}')))
            if which == 'K':
                g.append((COST['dma'], lambda p=p: e(f'buffer_load_dwordx4 v{DK + p}, s[{sK}:{sK + 3}], s{sT0} offen offset:{p * 1024} lds', ('K', tile))))
            else:
                g.append((COST['dma'], lambda p=p: e(f'buffer_load_dwordx4 v{DV}, s[{sV}:{sV + 3}], s{sT0} offen offset:{p * 1024} lds', ('V', tile))))
            out.append(g)
        return out

    todo = []
    WL = opts.get('wlead', 0)
    seq = []
    for c in range(NPRE, 8 + WL):
        if c - WL < NPRE + 0 and c < 8 and False:
            pass
    wn = NPRE; xn = NPX
    while wn < 8 or xn < 8:
        if wn < 8 and wn <= xn + WL:
            todo += [(0, g) for g in wq_dma(wn)]; wn += 1
        else:
            for ks in range(4 * xn, 4 * xn + 4):
                todo += [(ks - 16, x_load(ks, 0)), (ks - 16, x_load(ks, 1))]
            xn += 1
    todo += [(4, g) for g in kv_dma('K', 0)] + [(8, g) for g in kv_dma('K', 1)] + [(12, g) for g in kv_dma('V', 0)]
    RATE = opts.get('rate', 4)

    def refill(ks):
        out = []
        while todo and len(out) < RATE and todo[0][0] <= ks:
            out.append(todo.pop(0)[1])
        return out

    gemm256(k, dict(w_reads=w_reads, ss_reads=ss_reads, xform=xform, refill=refill, chunk_barrier=chunk_barrier,
                    ACC=O, WF=WF, H=H, qx=opts.get('qx', '')))
    assert not todo

    cq = LOG2E / math.sqrt(128.0)
    e(f's_mov_b32 s3, {f32(cq)}')
    stamp(k, 3)
    k.wait(vm=[('K', 0)])
    e('s_barrier')

    def k_read(blk, ks):
        tile = blk // 2
        off = LDS_K + (tile % 4) * 16384 + (blk % 2) * 8192
        r = KF + 4 * ks
        return lambda: e(f'ds_read_b128 a[{r}:{r + 3}], v{KR + ks} offset:{off}', ('kf', ks))

    def v_read(blk, i):
        u, db, t = i // 8, (i // 2) % 4, i % 2
        tile = blk // 2
        off = (tile % 4) * 16384 + ((blk % 2) * 32 + 16 * u + 8 * t) * 256
        r = VF + (u * 4 + db) * 4 + 2 * t
        return lambda: e(f'ds_read_b64_tr_b16 a[{r}:{r + 1}], v{VR + db} offset:{off}', ('vf', i))

    for ks in range(8):
        k_read(0, ks)()
    for g in kv_dma('K', 2):
        for _, f in g: f()
    def conv(db):
        items = []
        for qb in range(2):
            acc = O + (db * 2 + qb) * 16
            t = 72 + ((db * 2 + qb) % 4) * 16
            items += [(1, lambda i=i, t=t, acc=acc: e(f'v_accvgpr_read_b32 v{t + i}, a{acc + i}')) for i in range(16)]
            items += [(1, lambda i=i, t=t: e(f'v_mul_f32 v{t + i}, s3, v{t + i}')) for i in range(16)]
            items += [(1, lambda i=i, t=t, qb=qb: e(f'v_cvt_pk_bf16_f32 v{Q + (qb * 8 + 2 * db + i // 4) * 4 + i % 4}, v{t + 2 * i}, v{t + 2 * i + 1}')) for i in range(8)]
        return items
    for _, f in conv(0): f()
    for g in kv_dma('V', 1):
        for _, f in g: f()
    NPF = 2 if opts.get('pf', 1) else 0
    RETILE = opts.get('retile', 1)
    sPF = 42
    if NPF:
        for i, (sp, nb) in enumerate(((48, 4096 * 1024), (50, 512 * 3584), (52, 512 * 3584), (54, 1792 * 1024))):
            srd(k, 80 + 4 * i, sp, sp + 1, nb)
        e(f's_lshl_b32 s{sPF}, s2, 12')
        e(f's_lshl_b32 s{sT0}, s{sW}, 10')
        e(f's_add_u32 s{sPF}, s{sPF}, s{sT0}')
        e(f'v_lshrrev_b32 v236, 2, v{VLANE}')
        e(f'v_lshlrev_b32 v236, 6, v236')
        e(f'buffer_load_dword v240, v236, s[92:95], s{sPF} offen', 'pf')

    def qk_mfmas(blk, czero=False, alt=False):
        out = []
        order = [(ks, qb) for qb in range(2) for ks in range(8)] if alt else [(ks, qb) for ks in range(8) for qb in range(2)]
        for ks, qb in order:
            if True:
                def m(ks=ks, qb=qb):
                    d = S[blk % 2] + 16 * qb
                    if ks == 0:
                        c = '0' if czero else vr(NEGM + 16 * qb, 16)
                    else:
                        c = vr(d, 16)
                    e(f'v_mfma_f32_32x32x16_bf16 {vr(d, 16)}, {ar(KF + 4 * ks, 4)}, {vr(Q + (qb * 8 + ks) * 4, 4)}, {c}')
                out.append(m)
        return out

    def pv_mfmas(blk, czero=False):
        out = []
        po = opts.get('pvo', 0)
        if po == 0:
            order = [(u, db, qb) for u in range(2) for db in range(4) for qb in range(2)]
        elif po == 1:
            order = [(u, db, qb) for u in range(2) for qb in range(2) for db in range(4)]
        else:
            order = [(u, db, qb) for db in range(4) for qb in range(2) for u in range(2)]
        for u, db, qb in order:
            if True:
                if True:
                    def m(u=u, db=db, qb=qb):
                        acc = O + (db * 2 + qb) * 16
                        c = '0' if (czero and u == 0) else ar(acc, 16)
                        e(f'v_mfma_f32_32x32x16_bf16 {ar(acc, 16)}, {ar(VF + (u * 4 + db) * 4, 4)}, {vr(P[blk % 2] + (qb * 2 + u) * 4, 4)}, {c}')
                    out.append(m)
        return out

    def softmax_stream(blk):
        sb = S[blk % 2]; pb = P[blk % 2]
        items = []
        pend = []
        n = 0
        for qb in range(2):
            for i in range(8):
                t = ET + (n % 4) * 2
                r = sb + qb * 16 + 2 * i
                a = [(COST['exp'], lambda t=t, r=r: e(f'v_exp_f32 v{t}, v{r}')),
                     (COST['exp'], lambda t=t, r=r: e(f'v_exp_f32 v{t + 1}, v{r + 1}'))]
                if i == 0:
                    c = [(1, lambda t=t, qb=qb: e(f'v_add_f32 v{LS[qb]}, v{t}, v{t + 1}')), None]
                else:
                    c = [(1, lambda t=t, qb=qb: e(f'v_add_f32 v{LS[qb]}, v{LS[qb]}, v{t}')),
                         (1, lambda t=t, qb=qb: e(f'v_add_f32 v{LS[qb]}, v{LS[qb]}, v{t + 1}'))]
                if 'A' in opts.get('x', '') and i > 0:
                    c = [None, None]
                pd = pb + (qb * 2 + i // 4) * 4 + i % 4
                c.append((1, lambda t=t, pd=pd: e(f'v_cvt_pk_bf16_f32 v{pd}, v{t}, v{t + 1}')))
                items.append(a[0])
                if pend and pend[0]: items.append(pend[0])
                items.append(a[1])
                for x in pend[1:]:
                    if x: items.append(x)
                pend = c
                n += 1
        for x in pend:
            if x: items.append(x)
        return items

    stubs = []

    def check_items(blk):
        lab = k.newlabel('slow'); ret = k.newlabel('ret')
        stubs.append((lab, ret, blk % 2))

        def br():
            e(f's_cbranch_vccnz {lab}')
            k.label(ret)
        return [(1, lambda: e(f'v_max_f32 v{TMP}, v{LS[0]}, v{LS[1]}')),
                (1, lambda: e(f'v_cmp_lt_f32 vcc, s{sThr}, v{TMP}')),
                (1, br),
                (1, lambda: e(f'v_add_f32 v{L[0]}, v{L[0]}, v{LS[0]}')),
                (1, lambda: e(f'v_add_f32 v{L[1]}, v{L[1]}, v{LS[1]}'))]

    KFALL = [('kf', i) for i in range(8)]
    VFALL = [('vf', i) for i in range(16)]
    mf = qk_mfmas(0, czero=True)
    k.wait(lg=KFALL)
    for db in range(4):
        fx = {}
        for ks in (2 * db - 1, 2 * db):
            if ks >= 0:
                fx.setdefault(0 if ks < 2 * db else 2, []).append((COST['ds'], k_read(1, ks), 'ds'))
        if db == 3:
            fx.setdefault(3, []).append((COST['ds'], k_read(1, 7), 'ds'))
        schedule(k, mf[4 * db:4 * db + 4], fx, conv(db + 1) if db < 3 else [])
    for qb in range(2):
        sb = S[0] + 16 * qb
        e(f'v_max3_f32 v{TMP}, v{sb}, v{sb + 1}, v{sb + 2}')
        for i in range(3, 15, 2):
            e(f'v_max3_f32 v{TMP}, v{TMP}, v{sb + i}, v{sb + i + 1}')
        e(f'v_max_f32 v{TMP}, v{TMP}, v{sb + 15}')
        e(f'v_mov_b32 v{TMP + 1}, v{TMP}')
        e(f'v_permlane32_swap_b32 v{TMP}, v{TMP + 1}')
        e(f'v_max_f32 v{TMP}, v{TMP}, v{TMP + 1}')
        e(f'v_add_f32 v{TMP}, {f32(BIAS)}, v{TMP}')
        e(f'v_sub_f32 v{NEGM + 16 * qb}, 0, v{TMP}')
        for i in range(1, 16):
            e(f'v_mov_b32 v{NEGM + 16 * qb + i}, v{NEGM + 16 * qb}')
        for i in range(16):
            e(f'v_sub_f32 v{sb + i}, v{sb + i}, v{TMP}')
        e(f'v_mov_b32 v{L[qb]}, 0')
    e(f's_mov_b32 s{sKoff}, {3 * 16384}')
    e(f's_mov_b32 s{sVoff}, {2 * 16384}')
    e(f's_mov_b32 s{sCnt}, 8')

    def step(b, do_qk=True, do_sm=True, do_pv=True, pv_zero=False, do_kread=True, do_dma=True):
        mf = []
        fx = {}
        nq = 0
        X = opts.get('x', '')
        if 'D' in X: do_dma = False
        if 'S' in X: do_sm = False
        if do_qk:
            mf += qk_mfmas(b + 1, alt=opts.get('qko', 0) and do_pv); nq = 16
        if do_pv:
            mf += pv_mfmas(b - 1, czero=pv_zero)
        n = len(mf)
        caps = {}
        full = do_qk and do_pv
        if do_pv and 'L' not in X:
            if do_qk:
                for i in range(16):
                    fx.setdefault(i // 2, []).append((COST['ds'], v_read(b - 1, i), 'ds'))
            else:
                for i in range(16):
                    v_read(b - 1, i)()
                k.wait(lg=VFALL)
        bar = b % 2 == 0 and do_kread and 'B' not in X
        gb = 15 if full else 0
        if bar:
            vmn = 8 + (NPF if b >= 2 else NPF // 2)

            def wt():
                t = k.wait_text(lg=VFALL) if full else None
                e(f's_waitcnt vmcnt({vmn})' + (t[9:] if t else ''))
            fx.setdefault(gb, []).append((0, wt, 'wait'))
            fx.setdefault(gb, []).append((6, lambda: e('s_barrier'), 'bar'))
            caps[gb + 1] = opts.get('cap_ab', 3)
            if RETILE and b == 14:
                def hook():
                    e(f's_cmp_le_u32 s{sCnt}, 4')
                    e('s_cbranch_scc1 attn_copy')
                    k.label('attn_copy_ret')
                fx.setdefault(gb + 1, []).append((2, hook, 'dma'))
        elif full:
            fx.setdefault(15, []).append((0, lambda: k.wait(lg=VFALL), 'wait'))
        if do_kread and 'L' not in X:
            for ks in range(8):
                g = (17 + ks // 2) if full else min(2 * ks + 2, 15)
                fx.setdefault(g, []).append((COST['ds'], k_read(b + 2, ks), 'ds'))
            if full:
                fx.setdefault(n - 1, []).append((0, lambda: k.wait(lg=KFALL), 'wait'))
        if do_dma:
            isK = (b % 2 == 0)
            I = (b + 2) // 2 if isK else (b + 1) // 2
            if isK:
                slot = LDS_K + ((I + 2) % 4) * 16384; so = sKoff
            else:
                slot = LDS_V + ((I + 1) % 4) * 16384; so = sVoff
            gs = [22, 24, 26, 28] if full else [3, 5, 7, 9]
            fx.setdefault(gs[0] - 1, []).append((1, lambda: e(f's_add_u32 m0, s{sW4K}, {slot}'), 'end'))
            for p in range(4):
                va = DK + p if isK else DV
                sd = sK if isK else sV
                fx.setdefault(gs[p], []).append((COST['dma'], lambda p=p, va=va, sd=sd: e(
                    f'buffer_load_dwordx4 v{va}, s[{sd}:{sd + 3}], s{so} offen offset:{p * 1024} lds', 'kv'), 'dma'))
            fx.setdefault(gs[3] + 1, []).append((1, lambda: e(f's_add_u32 s{so}, s{so}, 16384'), 'end'))
            if NPF and not isK:
                sp = 80 + 4 * ((b // 2) % 4)
                fx.setdefault(30, []).append((COST['dma'], lambda: e(f'buffer_load_dword v240, v236, s[{sp}:{sp + 3}], s{sPF} offen', 'pf'), 'dma'))
                if b % 8 == 7:
                    fx.setdefault(30, []).append((1, lambda: e(f's_add_u32 s{sPF}, s{sPF}, 0x100000'), 'end'))
        st = []
        if do_sm:
            st = softmax_stream(b)
        schedule(k, mf, fx, st, last_gap=n - 2, caps=caps)
        if do_kread and not full:
            k.wait(lg=KFALL)
        if do_sm:
            for _, f in check_items(b): f()

    stamp(k, 4)
    k.wait(lg=KFALL)
    step(0, do_pv=False)
    step(1, pv_zero=True)
    e('s_branch attn_ent')
    e('.p2align 6')
    k.label('attn_loop')
    for pos in range(8):
        if pos == 2:
            k.label('attn_ent')
        step(8 + pos)
        if pos == 6:
            e(f's_sub_u32 s{sCnt}, s{sCnt}, 1')
            e(f's_cmp_eq_u32 s{sCnt}, 0')
            e('s_cbranch_scc1 attn_tail')
    e('s_branch attn_loop')
    k.label('attn_tail')
    k.lgq = []
    if opts.get('t23', 0):
        e(f'v_lshrrev_b32 v238, 2, v{VLANE}')
        e('v_lshlrev_b32 v238, 10, v238')
        e(f'v_and_b32 v239, 3, v{VLANE}')
        e('v_lshl_add_u32 v238, v239, 7, v238')
        e(f's_lshr_b32 s{sT0}, s2, 3')
        e(f's_lshl_b32 s{sT0}, s{sT0}, 2')
        e(f's_add_u32 s{sT0}, s{sT0}, s{sW}')
        e(f's_lshl_b32 s{sT0}, s{sT0}, 15')
        e(f's_and_b32 s{sT1}, s2, 1')
        e(f's_lshl_b32 s{sT1}, s{sT1}, 9')
        e(f's_add_u32 s{sT0}, s{sT0}, s{sT1}')
        e(f'buffer_load_dword v237, v238, s[80:83], s{sT0} offen', 'pf')
        e(f's_add_u32 s{sT0}, s{sT0}, 16384')
        e(f'buffer_load_dword v239, v238, s[80:83], s{sT0} offen', 'pf')
    step(63, do_qk=False, do_kread=False, do_dma=False)
    step(64, do_qk=False, do_sm=False, do_kread=False, do_dma=False)

    stamp(k, 5)
    for qb in range(2):
        e(f'v_mov_b32 v{TMP}, v{L[qb]}')
        e(f'v_permlane32_swap_b32 v{L[qb]}, v{TMP}')
        e(f'v_add_f32 v{L[qb]}, v{L[qb]}, v{TMP}')
        e(f'v_rcp_f32 v{L[qb]}, v{L[qb]}')
    n = 0
    for qb in range(2):
        e(f's_add_u32 s{sT0}, s{sOb}, {qb * 262144}')
        e(f's_add_u32 s{sT1}, s{sOb}, {qb * 262144 + 4096}')
        for db in range(4):
            for u in range(2):
                acc = O + (db * 2 + qb) * 16 + 8 * u
                t = 8 + (n % 4) * 16; n += 1
                for i in range(8):
                    e(f'v_accvgpr_read_b32 v{t + i}, a{acc + i}')
                for i in range(8):
                    e(f'v_mul_f32 v{t + i}, v{t + i}, v{L[qb]}')
                for i in range(4):
                    e(f'v_cvt_pk_bf16_f32 v{t + 8 + i}, v{t + 2 * i}, v{t + 2 * i + 1}')
                kk = 2 * db + u
                so = sT0 if kk < 4 else sT1
                e(f'buffer_store_dwordx4 v[{t + 8}:{t + 11}], v{VL16}, s[{sWS}:{sWS + 3}], s{so} offen offset:{(kk % 4) * 1024}{opts.get("ost", " sc1")}')
    stamp(k, 6)
    stamp_flush(k, 7, sWS, 1)
    k.label('attn_end')
    e('s_endpgm')

    if RETILE:
        CP = 192
        k.label('attn_copy')
        e(f's_cmp_le_u32 s{sCnt}, 2')
        e('s_cbranch_scc1 attn_copy_code' if opts.get('cpf2', 0) else 's_cbranch_scc1 attn_copy_ret')
        e(f's_lshl_b32 s{sT0}, s2, 2')
        e(f's_add_u32 s{sT0}, s{sT0}, s{sW}')
        e(f's_cmp_eq_u32 s{sCnt}, 3')
        e('s_cbranch_scc1 attn_copy_st')
        e(f's_lshl_b32 s{sT1}, s{sT0}, 12')
        for i in range(4):
            e(f'buffer_load_dwordx4 a[{CP + 4 * i}:{CP + 4 * i + 3}], v{VL16}, s[80:83], s{sT1} offen offset:{i * 1024}')
        e(f's_lshl_b32 s{sT1}, s{sT0}, 11')
        for i in range(2):
            e(f'buffer_load_dwordx4 a[{CP + 16 + 4 * i}:{CP + 19 + 4 * i}], v{VL16}, s[92:95], s{sT1} offen offset:{i * 1024}')
        e('s_branch attn_copy_ret')
        k.label('attn_copy_st')
        e(f'v_lshrrev_b32 v238, 3, v{VLANE}')
        e(f'v_and_b32 v239, 7, v{VLANE}')
        e('v_lshlrev_b32 v239, 4, v239')
        SK = opts.get('sk', 0)
        if SK:
            e(f'v_lshrrev_b32 v237, 4, v{VLANE}')
            e('v_lshlrev_b32 v237, 20, v237')
            e(f'v_and_b32 v241, 15, v{VLANE}')
            e('v_lshl_add_u32 v237, v241, 4, v237')
        else:
            e('v_lshl_add_u32 v237, v238, 19, v239')
        e('v_lshl_add_u32 v238, v238, 18, v239')
        e(f's_lshl_b32 s{sT1}, s{sT0}, {10 if SK else 9}')
        e(f's_add_u32 s{sT1}, s{sT1}, {WS_WOT}')
        for i in range(4):
            e(f'buffer_store_dwordx4 a[{CP + 4 * i}:{CP + 4 * i + 3}], v237, s[{sWS}:{sWS + 3}], s{sT1} offen offset:{i * (256 if SK else 128)} sc1')
        e(f's_lshl_b32 s{sT1}, s{sT0}, 8')
        e(f's_add_u32 s{sT1}, s{sT1}, {WS_W2T}')
        for i in range(2):
            e(f'buffer_store_dwordx4 a[{CP + 16 + 4 * i}:{CP + 19 + 4 * i}], v238, s[{sWS}:{sWS + 3}], s{sT1} offen offset:{i * 128} sc1')
        e('s_branch attn_copy_ret')
        if opts.get('cpf2', 0):
            k.label('attn_copy_code')
            e(f's_lshr_b32 s{sT0}, s2, 3')
            e(f's_lshl_b32 s{sT0}, s{sT0}, 2')
            e(f's_add_u32 s{sT0}, s{sT0}, s{sW}')
            e(f's_cmp_ge_u32 s{sT0}, 1')
            e('s_cbranch_scc1 attn_copy_ret')
            code_touch(k, 242, 46, sT0, VLANE, 'attn_end', 'code_end')
            e('s_branch attn_copy_ret')

    for lab, ret, par in stubs:
        k.label(lab)
        e(f's_call_b64 s[{sLink}:{sLink + 1}], attn_slow{par}')
        e(f's_branch {ret}')
    for par in range(2):
        k.label(f'attn_slow{par}')
        e('s_nop 15'); e('s_nop 15')
        D0 = [TMP + 2, TMP + 3]
        for qb in range(2):
            sb = S[par] + 16 * qb; sn = S[1 - par] + 16 * qb
            e(f'v_max3_f32 v{TMP}, v{sb}, v{sb + 1}, v{sb + 2}')
            for i in range(3, 15, 2):
                e(f'v_max3_f32 v{TMP}, v{TMP}, v{sb + i}, v{sb + i + 1}')
            e(f'v_max_f32 v{TMP}, v{TMP}, v{sb + 15}')
            e(f'v_mov_b32 v{TMP + 1}, v{TMP}')
            e(f'v_permlane32_swap_b32 v{TMP}, v{TMP + 1}')
            e(f'v_max_f32 v{TMP}, v{TMP}, v{TMP + 1}')
            e(f'v_add_f32 v{TMP}, {f32(BIAS)}, v{TMP}')
            e(f'v_max_f32 v{TMP}, 0, v{TMP}')
            e(f'v_ceil_f32 v{TMP}, v{TMP}')
            e(f'v_sub_f32 v{TMP + 1}, 0, v{TMP}')
            e(f'v_cvt_i32_f32 v{D0[qb]}, v{TMP + 1}')
            for i in range(16):
                e(f'v_sub_f32 v{NEGM + 16 * qb + i}, v{NEGM + 16 * qb + i}, v{TMP}')
                e(f'v_sub_f32 v{sb + i}, v{sb + i}, v{TMP}')
                e(f'v_sub_f32 v{sn + i}, v{sn + i}, v{TMP}')
            e(f'v_ldexp_f32 v{L[qb]}, v{L[qb]}, v{D0[qb]}')
            for db in range(4):
                acc = O + (db * 2 + qb) * 16
                for i in range(16):
                    t = ET + i % 8
                    e(f'v_accvgpr_read_b32 v{t}, a{acc + i}')
                    e(f'v_ldexp_f32 v{t}, v{t}, v{D0[qb]}')
                    e(f'v_accvgpr_write_b32 a{acc + i}, v{t}')
        for _, f in softmax_stream(par): f()
        e('s_nop 3')
        e(f's_setpc_b64 s[{sLink}:{sLink + 1}]')
    return k, 'grid=(256,1,1) block=(256,1,1) lds=135168'


sWS_T = 12
sWV_T = 32
X1KEEP = 64


def lane_id(k, v):
    k.e(f'v_mbcnt_lo_u32_b32 v{v}, -1, 0')
    k.e(f'v_mbcnt_hi_u32_b32 v{v}, -1, v{v}')


def signal(k, vt, soff, nyounger):
    e = k.e
    e(f's_waitcnt vmcnt({nyounger})')
    e(f'v_mov_b32 v{vt}, 0')
    e(f'v_mov_b32 v{vt + 1}, 1')
    e('s_mov_b64 exec, 1')
    e(f'buffer_store_dword v{vt + 1}, v{vt}, s[{sWS_T}:{sWS_T + 3}], s{soff} offen sc1', 'flag')
    e('s_mov_b64 exec, -1')


def poll(k, name, vt, vlane, soff, nflags, opts):
    e = k.e
    e(f's_cmp_lg_u32 s{sWV_T}, 0')
    e(f's_cbranch_scc1 {name}_go')
    e(f'v_min_u32 v{vt}, {nflags - 1}, v{vlane}')
    e(f'v_lshlrev_b32 v{vt}, 2, v{vt}')
    e('s_mov_b32 s48, 0x40000')
    k.label(f'{name}_poll')
    e(f'buffer_load_dword v{vt + 1}, v{vt}, s[{sWS_T}:{sWS_T + 3}], s{soff} offen sc1', 'poll')
    e('s_waitcnt vmcnt(0)')
    e(f'v_cmp_eq_u32 vcc, 0, v{vt + 1}')
    e(f's_cbranch_vccz {name}_go')
    e(f's_sleep {opts.get("sleep", 2)}')
    e('s_sub_u32 s48, s48, 1')
    e('s_cmp_lg_u32 s48, 0')
    e(f's_cbranch_scc1 {name}_poll')
    k.label(f'{name}_go')
    e('s_waitcnt vmcnt(0)')
    e('s_barrier')


BSLOT = [(0, 32768), (65536, 98304), (16384, 49152), (81920, 114688)]


def early_b(k):
    e = k.e
    items = []

    def setup():
        lane_id(k, 251)
        e('v_lshrrev_b32 v252, 4, v251')
        e('v_and_b32 v253, 15, v251')
        e('v_lshlrev_b32 v250, 2, v252')
        e('v_xor_b32 v250, v250, v253')
        e('v_lshlrev_b32 v250, 4, v250')
        e('v_mul_u32_u24 v252, 3584, v252')
        e('v_add_u32 v250, v250, v252')
        e(f's_and_b32 s54, s{sWV_T}, 1')
        e('s_cmp_eq_u32 s54, 0')
        e('s_cselect_b32 s24, s56, s58')
        e('s_cselect_b32 s25, s57, s59')
        e('s_and_b32 s25, s25, 0xffff')
        e(f's_mov_b32 s26, {512 * 3584}')
        e('s_mov_b32 s27, 0x00020000')
        e(f's_lshr_b32 s54, s{sWV_T}, 1')
        e(f's_mul_i32 s54, s54, {64 * 3584}')
        e('s_lshl_b32 s53, s51, 8')
        e('s_add_u32 s54, s54, s53')
        e(f's_lshl_b32 s53, s{sWV_T}, 15')
    items.append(setup)
    for p in range(16):
        def f(p=p):
            e(f's_add_u32 m0, s53, {p * 1024}')
            e(f's_add_u32 s52, s54, {p * 4 * 3584}')
            e('buffer_load_dwordx4 v250, s[24:27], s52 offen lds', ('wq', 0))
        items.append(f)
    return items


def early_c(k, n):
    e = k.e
    items = []

    def setup():
        lane_id(k, 252)
        e('v_lshrrev_b32 v253, 3, v252')
        e('v_lshlrev_b32 v251, 1, v253')
        e('v_and_b32 v251, 4, v251')
        e('v_and_b32 v252, 7, v252')
        e('v_xor_b32 v251, v251, v252')
        e('v_lshlrev_b32 v251, 4, v251')
        e('v_lshl_add_u32 v251, v253, 7, v251')
        e(f's_lshl_b32 s49, s{sWV_T}, 15')
        e('s_and_b32 s55, s2, 1')
        e('s_lshl_b32 s55, s55, 2')
        e('s_lshr_b32 s47, s2, 6')
        e('s_add_u32 s55, s55, s47')
        e('s_lshl_b32 s55, s55, 18')
        e(f's_mul_i32 s47, s{sWV_T}, {28 * 2048}')
        e('s_add_u32 s55, s55, s47')
        e(f's_add_u32 s55, s55, {WS_W2T}')
    items.append(setup)
    for ks in range(n):
        def f(ks=ks):
            e(f's_add_u32 m0, s49, {ks * 2048}')
            e('s_nop 0')
            e(f'buffer_load_dwordx4 v251, s[{sWS_T}:{sWS_T + 3}], s55 offen lds', ('g', ks))
            e(f'buffer_load_dwordx4 v251, s[{sWS_T}:{sWS_T + 3}], s55 offen offset:1024 lds', ('g', ks))
            e('s_add_u32 s55, s55, 2048')
        items.append(f)
    return items


def phase_gemm64(k, which, opts, dep, out_flag, keep_x1, sbase, early=None):
    e = k.e
    name = 'pa' if which == 'wo' else 'pc'
    NKS = 256 if which == 'wo' else 112
    KW = NKS // 4
    D = 16 if which == 'wo' else 14
    NIT = KW // D
    WS_XIN = WS_O if which == 'wo' else WS_HH
    sWS, sG = sWS_T, 16
    sWv, sXo, sWo, sT0, sLb, sCnt, sXo1 = sWV_T, 33, 34, 35, 37, 38, 39
    ACC = 8
    XF = 72
    WFr = 200
    VL16, VDW, VWR = 216, 217, 218
    EP = 220
    XA = ' sc1' if dep else ''
    SA = ' sc1' if out_flag else ''
    POFF = 16384
    if dep:
        VDW, sWo, sLb = 251, 55, 49
    e('s_bfe_u32 s28, s2, 0x20001')
    e('s_lshl_b32 s28, s28, 3')
    e('s_bfe_u32 s30, s2, 0x30003')
    e('s_add_u32 s28, s28, s30')
    e('s_and_b32 s29, s2, 1')
    e('s_lshl_b32 s29, s29, 2')
    e('s_lshr_b32 s30, s2, 6')
    e('s_add_u32 s29, s29, s30')
    lane_id(k, 2)
    e(f'v_lshlrev_b32 v{VL16}, 4, v2')
    if not dep:
        e('v_lshrrev_b32 v3, 3, v2')
        e('v_and_b32 v4, 7, v2')
        e('v_lshlrev_b32 v5, 1, v3')
        e('v_and_b32 v5, 4, v5')
        e('v_xor_b32 v4, v4, v5')
        e('v_lshlrev_b32 v4, 4, v4')
        e(f'v_lshl_add_u32 v{VDW}, v3, 7, v4')
        e(f's_lshl_b32 s{sLb}, s{sWv}, 15')
    e(f's_mul_i32 s{sXo}, s28, {2 * NKS * 1024}')
    e(f's_mul_i32 s{sT0}, s{sWv}, {KW * 1024}')
    e(f's_add_u32 s{sXo}, s{sXo}, s{sT0}')
    e(f's_add_u32 s{sXo}, s{sXo}, {WS_XIN}')
    e(f's_add_u32 s{sXo1}, s{sXo}, {NKS * 1024}')
    if not dep:
        e(f's_mul_i32 s{sWo}, s{sWv}, {KW * 2048}')
        e(f's_lshl_b32 s{sT0}, s29, {19 if which == "wo" else 18}')
        e(f's_add_u32 s{sWo}, s{sWo}, s{sT0}')
        e(f's_add_u32 s{sWo}, s{sWo}, {WS_WOT if which == "wo" else WS_W2T}')
    e(f's_lshr_b32 s40, s{sWv}, 1')
    e(f's_and_b32 s47, s{sWv}, 1')
    e('s_lshl_b32 s41, s29, 6')
    e('s_lshl_b32 s42, s40, 5')
    e('s_add_u32 s41, s41, s42')
    e('s_lshl_b32 s42, s28, 6')
    e('s_lshl_b32 s43, s47, 5')
    e('s_add_u32 s42, s42, s43')
    e('v_lshrrev_b32 v4, 5, v2')
    e('v_and_b32 v5, 31, v2')
    e('v_add_u32 v6, s42, v5')
    e('v_lshlrev_b32 v6, 10, v6')
    e('v_lshl_add_u32 v6, v4, 4, v6')
    e('s_lshl_b32 s43, s41, 1')
    e('v_add_u32 v6, s43, v6')
    e('s_lshl_b32 s43, s42, 10')
    e('s_lshl_b32 s44, s41, 6')
    e('s_add_u32 s43, s43, s44')
    e(f's_add_u32 s43, s43, {WS_X1}')
    e('v_lshlrev_b32 v7, 5, v4')
    e('s_lshl_b32 s44, s41, 2')
    e(f's_add_u32 s44, s44, {WS_GA if which == "wo" else WS_GB}')
    yield 'setup'
    sp = 60 if which == 'wo' else 62
    srd(k, sG, sp, sp + 1, 2048 * 1024)

    def loads(ks):
        sl = ks % D
        r0 = XF + sl * 8
        return dict(
            m0=lambda: e(f's_add_u32 m0, s{sLb}, {sl * 2048}'),
            w0=lambda: e(f'buffer_load_dwordx4 v{VDW}, s[{sWS}:{sWS + 3}], s{sWo} offen lds', ('g', ks)),
            w1=lambda: e(f'buffer_load_dwordx4 v{VDW}, s[{sWS}:{sWS + 3}], s{sWo} offen offset:1024 lds', ('g', ks)),
            x0=lambda: e(f'buffer_load_dwordx4 v[{r0}:{r0 + 3}], v{VL16}, s[{sWS}:{sWS + 3}], s{sXo} offen offset:{(ks % 2) * 1024}{XA}{opts.get("xa", "")}', ('g', ks)),
            x1=lambda: e(f'buffer_load_dwordx4 v[{r0 + 4}:{r0 + 7}], v{VL16}, s[{sWS}:{sWS + 3}], s{sXo1} offen offset:{(ks % 2) * 1024}{XA}{opts.get("xa", "")}', ('g', ks)),
            uw=lambda: e(f's_add_u32 s{sWo}, s{sWo}, 2048'),
            ux=lambda: (e(f's_add_u32 s{sXo}, s{sXo}, 2048'), e(f's_add_u32 s{sXo1}, s{sXo1}, 2048')) if ks % 2 == 1 else None)

    def misc_setup():
        e('v_bfe_u32 v3, v2, 2, 2')
        e('v_lshl_add_u32 v1, v4, 3, v3')
        e('v_lshlrev_b32 v1, 7, v1')
        e(f'v_bfe_u32 v{VWR}, v2, 4, 1')
        e(f'v_lshl_add_u32 v1, v{VWR}, 5, v1')
        e(f'v_and_b32 v{VWR}, 1, v2')
        e(f'v_lshl_add_u32 v1, v{VWR}, 4, v1')
        e(f'v_bfe_u32 v{VWR}, v2, 1, 1')
        e(f'v_lshl_add_u32 v1, v{VWR}, 3, v1')
        e(f'v_add_u32 v1, s{sLb}, v1')
        e('v_lshrrev_b32 v3, 1, v3')
        e(f'v_lshl_add_u32 v{VWR}, v3, 6, v1')
        e('v_xor_b32 v3, 1, v3')
        e(f'v_lshl_add_u32 v{VWR + 1}, v3, 6, v1')
        for i in range(64):
            e(f'v_mov_b32 v{ACC + i}, 0')
        e(f's_mov_b32 s{sCnt}, {NIT - 1}')

    for u in range(2):
        e(f'buffer_load_dwordx4 v[{EP + 8 * u}:{EP + 8 * u + 3}], v7, s[{sWS}:{sWS + 3}], s44 offen offset:{64 * u}', 'ep')
        e(f'buffer_load_dwordx4 v[{EP + 8 * u + 4}:{EP + 8 * u + 7}], v7, s[{sWS}:{sWS + 3}], s44 offen offset:{64 * u + 16}', 'ep')
        if which == 'wo':
            e(f'buffer_load_dwordx4 v[{EP + 16 + 4 * u}:{EP + 19 + 4 * u}], v6, s[{sG}:{sG + 3}], 0 offen offset:{32 * u}', 'ep')
        elif not keep_x1:
            e(f'buffer_load_dwordx4 v[{EP + 16 + 4 * u}:{EP + 19 + 4 * u}], v{VL16}, s[{sWS}:{sWS + 3}], s43 offen offset:{1024 * u}', 'ep')
    if dep:
        assert NIT == 2
        NWP = D - 1
        yield 'prefetched'
        misc_setup()
        e('s_lshr_b32 s45, s28, 1')
        e('s_lshl_b32 s45, s45, 8')
        e(f's_add_u32 s45, s45, {WS_FB}')
        stamp(k, sbase)
        poll(k, name, ACC + 64 + 120, 2, 45, 56, opts)
        sbase += 1
        stamp(k, sbase)
        for ks in range(D - 1):
            L = loads(ks)
            for nm in (('x0', 'x1', 'ux') if ks < NWP else ('m0', 'x0', 'w0', 'w1', 'x1', 'uw', 'ux')):
                L[nm]()
    else:
        for ks in range(D - 1):
            L = loads(ks)
            for nm in ('m0', 'x0', 'w0', 'w1', 'x1', 'uw', 'ux'):
                L[nm]()
            if ks == 1:
                misc_setup()
        yield 'prefetched'
        stamp(k, sbase)

    def wreads(ks):
        sl = ks % D
        for nb in range(2):
            for t in range(2):
                r = WFr + (ks % 2) * 8 + nb * 4 + t * 2
                e(f'ds_read_b64_tr_b16 v[{r}:{r + 1}], v{VWR + nb} offset:{sl * 2048 + t * 512}', ('wf', ks))

    def kstep(ks, refill, last=False, extra=()):
        sl = ks % D
        L = loads(ks + D - 1) if refill else None
        for i in range(4):
            nb, mb = i // 2, i % 2
            acc = ACC + (nb * 2 + mb) * 16
            if 'M' not in opts.get('z', ''):
                e(f'v_mfma_f32_32x32x16_bf16 {vr(acc, 16)}, {vr(WFr + (ks % 2) * 8 + nb * 4, 4)}, {vr(XF + (sl * 2 + mb) * 4, 4)}, {vr(acc, 16)}')
            if i == 0:
                if not last:
                    k.wait(vm=[('g', ks + 1)])
                    if 'R' not in opts.get('z', ''): wreads(ks + 1)
                if L: L['m0']()
            elif i == 1 and L:
                L['x0'](); L['w0']()
            elif i == 2 and L:
                L['w1'](); L['x1'](); L['uw'](); L['ux']()
            elif i == 3 and not last:
                k.wait(lg=[('wf', ks + 1)])
            if i in (1, 2) and len(extra) >= i:
                extra[i - 1]()

    k.wait(vm=[('g', 0)])
    wreads(0)
    k.wait(lg=[('wf', 0)])
    stamp(k, sbase + 1)
    k.label(f'{name}_loop')
    for ks in range(D):
        kstep(ks, True)
    if NIT > 2:
        e(f's_sub_u32 s{sCnt}, s{sCnt}, 1')
        e(f's_cmp_lg_u32 s{sCnt}, 0')
        e(f's_cbranch_scc1 {name}_loop')
    early = list(early or [])
    for ks in range(D, 2 * D):
        ex = []
        E0 = opts.get('e0', 1)
        if early and ks == D + E0:
            ex = [early.pop(0)]
        elif early and ks > D + E0:
            ex = early[:2]; early = early[2:]
        kstep(ks, ks == D, last=(ks == 2 * D - 1), extra=ex)
    assert not early
    stamp(k, sbase + 2)
    e(f'v_add_u32 v3, s{sLb}, v{VL16}')
    for qd in range(16):
        e(f'ds_write_b128 v3, v[{ACC + 4 * qd}:{ACC + 4 * qd + 3}] offset:{POFF + qd * 1024}')
    e('s_waitcnt lgkmcnt(0)')
    e('s_barrier')
    e(f's_lshl_b32 s{sT0}, s{sWv}, 12')
    e(f'v_add_u32 v3, s{sT0}, v{VL16}')
    e(f'v_add_u32 v1, 0x10000, v3')
    RD = 72
    for w in range(4):
        a = 3 if w < 2 else 1
        for h in range(4):
            r = RD + (w * 4 + h) * 4
            e(f'ds_read_b128 v[{r}:{r + 3}], v{a} offset:{POFF + (w % 2) * 32768 + h * 1024}', ('r', w))
    for w in range(1, 4):
        k.wait(lg=[('r', w), ('r', 0)])
        for i in range(16):
            e(f'v_add_f32 v{RD + i}, v{RD + i}, v{RD + w * 16 + i}')
    if out_flag:
        e('s_barrier')
    k.wait(vm=['ep'])
    if which == 'w2' and keep_x1:
        for i in range(8):
            e(f'v_accvgpr_read_b32 v{EP + 16 + i}, a{X1KEEP + i}')
    for i in range(16):
        rbf(k, RD + i, RD + i)
    for i in range(16):
        e(f'v_mul_f32 v{RD + i}, v{RD + i}, v{EP + i}')
    for i in range(16):
        rbf(k, RD + i, RD + i)
    for i in range(16):
        src = EP + 16 + i // 2
        if i % 2 == 0:
            e(f'v_lshlrev_b32 v{RD + 16 + i}, 16, v{src}')
        else:
            e(f'v_and_b32 v{RD + 16 + i}, 0xffff0000, v{src}')
    for i in range(16):
        e(f'v_add_f32 v{RD + i}, v{RD + i}, v{RD + 16 + i}')
    for i in range(8):
        e(f'v_cvt_pk_bf16_f32 v{RD + 32 + i}, v{RD + 2 * i}, v{RD + 2 * i + 1}')
    for u in range(2):
        if which == 'w2':
            e(f'buffer_store_dwordx4 v[{RD + 32 + 4 * u}:{RD + 35 + 4 * u}], v6, s[{sG}:{sG + 3}], 0 offen offset:{32 * u}')
        else:
            e(f'buffer_store_dwordx4 v[{RD + 32 + 4 * u}:{RD + 35 + 4 * u}], v{VL16}, s[{sWS}:{sWS + 3}], s43 offen offset:{1024 * u}{SA}')
    if which == 'wo':
        if keep_x1:
            for i in range(8):
                e(f'v_accvgpr_write_b32 a{X1KEEP + i}, v{RD + 32 + i}')
        for i in range(16):
            src = RD + 32 + i // 2
            if i % 2 == 0:
                e(f'v_lshlrev_b32 v{RD + i}, 16, v{src}')
            else:
                e(f'v_and_b32 v{RD + i}, 0xffff0000, v{src}')
        A, B = RD + 16, RD + 17
        e(f'v_add_f32 v{A}, v{RD}, v{RD + 1}')
        e(f'v_mul_f32 v{B}, v{RD}, v{RD}')
        e(f'v_fmac_f32 v{B}, v{RD + 1}, v{RD + 1}')
        for i in range(2, 16):
            e(f'v_add_f32 v{A}, v{A}, v{RD + i}')
            e(f'v_fmac_f32 v{B}, v{RD + i}, v{RD + i}')
        e(f'v_mov_b32 v{A + 2}, v{A}')
        e(f'v_mov_b32 v{A + 3}, v{B}')
        e(f'v_permlane32_swap_b32 v{A}, v{A + 2}')
        e(f'v_permlane32_swap_b32 v{B}, v{A + 3}')
        e(f'v_add_f32 v{A}, v{A}, v{A + 2}')
        e(f'v_add_f32 v{B}, v{B}, v{A + 3}')
        e('s_lshl_b32 s45, s42, 7')
        e('s_lshr_b32 s46, s41, 2')
        e('s_add_u32 s45, s45, s46')
        e(f's_add_u32 s45, s45, {WS_ST}')
        e('v_lshlrev_b32 v3, 7, v5')
        e(f'buffer_store_dwordx2 v[{A}:{A + 1}], v3, s[{sWS}:{sWS + 3}], s45 offen{SA}')
        if out_flag:
            e('s_lshr_b32 s46, s28, 1')
            e('s_lshl_b32 s46, s46, 8')
            e('s_and_b32 s45, s28, 1')
            e('s_lshl_b32 s45, s45, 7')
            e('s_add_u32 s46, s46, s45')
            e('s_lshl_b32 s45, s29, 4')
            e('s_add_u32 s46, s46, s45')
            e(f's_lshl_b32 s45, s{sWv}, 2')
            e('s_add_u32 s46, s46, s45')
            e(f's_add_u32 s46, s46, {WS_FA}')
    stamp(k, sbase + 3)
    yield 'done'


def phase_ffn1(k, opts, dep, out_flag, sbase, early=None):
    e = k.e
    s1, s3_, sWS = 8, 20, sWS_T
    sW, sT0, sT1, sXb, sWo, sHb, sW4K = sWV_T, 33, 34, 35, 36, 37, 38
    ACC = 0
    XD = 12
    XR = 128
    H = 176
    SS = 184
    FT = 216
    WRA = 224
    VL16, VDW, VMD, VLANE, RS, NM = 232, 233, 234, 235, 236, 237
    T = 238
    WF = 0
    LDS_MOD = 131072
    XA = ' sc1' if dep else ''
    PURE = opts.get('sk', 0)
    if PURE:
        XD = 16; XR = 128
    e('s_and_b32 s50, s2, 1')
    e('s_lshl_b32 s50, s50, 3')
    e('s_bfe_u32 s3, s2, 0x30003')
    e('s_add_u32 s50, s50, s3')
    lane_id(k, VLANE)
    e(f'v_lshlrev_b32 v{VL16}, 4, v{VLANE}')
    e(f'v_lshrrev_b32 v{T + 1}, 4, v{VLANE}')
    e(f'v_and_b32 v{T + 2}, 15, v{VLANE}')
    e(f'v_lshlrev_b32 v{T + 3}, 2, v{T + 1}')
    e(f'v_xor_b32 v{T + 3}, v{T + 3}, v{T + 2}')
    e(f'v_lshlrev_b32 v{T + 3}, 4, v{T + 3}')
    e(f'v_mul_u32_u24 v{T + 4}, 3584, v{T + 1}')
    e(f'v_add_u32 v{VDW}, v{T + 4}, v{T + 3}')
    e(f's_lshl_b32 s{sW4K}, s{sW}, 12')
    e('s_lshl_b32 s3, s50, 2')
    e(f's_add_u32 s3, s3, s{sW}')
    e(f's_lshl_b32 s{sXb}, s3, 15')
    e(f's_add_u32 s{sXb}, s{sXb}, {WS_H2 if PURE else WS_X1}')
    e(f's_mul_i32 s{sHb}, s3, {112 * 1024}')
    e(f's_lshl_b32 s{sT0}, s51, 13')
    e(f's_add_u32 s{sHb}, s{sHb}, s{sT0}')
    e(f's_add_u32 s{sHb}, s{sHb}, {WS_HH}')
    e(f's_mul_i32 s{sWo}, s{sW}, {16 * 3584}')
    e(f's_lshl_b32 s{sT0}, s51, 8')
    e(f's_add_u32 s{sWo}, s{sWo}, s{sT0}')
    e(f'v_and_b32 v{T + 5}, 31, v{VLANE}')
    e(f'v_lshrrev_b32 v{T + 4}, 5, v{VLANE}')
    e(f'v_lshlrev_b32 v{T + 6}, 7, v{T + 5}')
    e(f'v_lshl_add_u32 v{T + 6}, v{T + 4}, 6, v{T + 6}')
    e(f's_lshl_b32 s39, s3, 12')
    e(f's_add_u32 s39, s39, {WS_ST}')
    yield 'setup'
    srd(k, s1, 56, 57, 512 * 3584)
    srd(k, s3_, 58, 59, 512 * 3584)

    def w_dma(c):
        out = []
        for mat, sd in enumerate((s1, s3_)):
            for p in range(4):
                g = []
                if p == 0:
                    g.append((1, lambda mat=mat: e(f's_add_u32 m0, s{sW4K}, {BSLOT[c % 4][mat]}')))
                g.append((1, lambda p=p: e(f's_add_u32 s{sT0}, s{sWo}, {c * 64 * 3584 + p * (4 * 3584 - 1024)}')))
                g.append((COST['dma'], lambda p=p, sd=sd: e(f'buffer_load_dwordx4 v{VDW}, s[{sd}:{sd + 3}], s{sT0} offen offset:{p * 1024} lds', ('wq', c))))
                out.append(g)
        return out

    def xreg(ks):
        return XR + (ks % XD) * 4

    def x_load(ks):
        r = xreg(ks)
        g = []
        if ks % 4 == 0:
            g.append((1, lambda: e(f's_add_u32 s{sT1}, s{sXb}, {(ks // 4) * 4096}')))
        g.append((COST['vload'], lambda: e(f'buffer_load_dwordx4 v[{r}:{r + 3}], v{VL16}, s[{sWS}:{sWS + 3}], s{sT1} offen offset:{(ks % 4) * 1024}{XA}', ('x', ks))))
        return g

    def addr_setup():
        e(f'v_lshrrev_b32 v{T + 7}, 2, v{T + 2}')
        e(f'v_and_b32 v{T + 8}, 1, v{T + 1}')
        e(f'v_lshlrev_b32 v{T + 8}, 5, v{T + 8}')
        e(f'v_and_b32 v{T + 9}, 1, v{VLANE}')
        e(f'v_lshl_add_u32 v{T + 8}, v{T + 9}, 4, v{T + 8}')
        e(f'v_bfe_u32 v{T + 9}, v{VLANE}, 1, 1')
        e(f'v_lshl_add_u32 v{T + 8}, v{T + 9}, 3, v{T + 8}')
        e(f'v_lshl_add_u32 v{T + 8}, v{T + 7}, 8, v{T + 8}')
        e(f'v_lshl_add_u32 v{T + 8}, v{T + 4}, 11, v{T + 8}')
        for db in range(4):
            e(f'v_xor_b32 v{T + 9}, {db}, v{T + 7}')
            e(f'v_lshl_add_u32 v{WRA + db}, v{T + 9}, 6, v{T + 8}')
            e(f'v_add_u32 v{WRA + 4 + db}, 0x10000, v{WRA + db}')
        e(f'v_lshlrev_b32 v{VMD}, 6, v{T + 4}')
        e(f'v_add_u32 v{VMD}, {LDS_MOD}, v{VMD}')

    ST = SS

    def st_loads():
        for j in range(4):
            e(f'buffer_load_dwordx4 v[{ST + 4 * j}:{ST + 3 + 4 * j}], v{T + 6}, s[{sWS}:{sWS + 3}], s39 offen offset:{16 * j}{XA}', 'st')

    def mod_dma():
        e(f's_lshl_b32 s{sT0}, s{sW}, 10')
        e(f's_add_u32 m0, s{sT0}, {LDS_MOD}')
        e(f's_add_u32 s{sT0}, s{sT0}, {WS_MOD2}')
        e(f'buffer_load_dwordx4 v{VL16}, s[{sWS}:{sWS + 3}], s{sT0} offen lds', ('wq', 0))

    if dep:
        NPRE = opts.get('npre4f', 4); NPX = 3
        mod_dma()
        for c in range(2, NPRE):
            for g in w_dma(c):
                for _, f in g: f()
        yield 'prefetched'
        addr_setup()
        e('s_lshl_b32 s45, s50, 8')
        e(f's_add_u32 s45, s45, {WS_FA}')
        stamp(k, sbase)
        poll(k, 'pb', T + 10, VLANE, 45, 64, opts)
        sbase += 1
        stamp(k, sbase)
        st_loads()
        for ks in range(4 * NPX):
            for _, f in x_load(ks): f()
    else:
        NPRE = opts.get('npre4', 1); NPX = NPRE
        if not PURE:
            st_loads()
            mod_dma()
        for _, f in x_load(0): f()
        for g in w_dma(0):
            for _, f in g: f()
        for ks in range(1, 4):
            for _, f in x_load(ks): f()
        for c in range(1, NPRE):
            for g in w_dma(c):
                for _, f in g: f()
            for ks in range(4 * c, 4 * c + 4):
                for _, f in x_load(ks): f()
        yield 'prefetched'
        addr_setup()
        stamp(k, sbase)
    if not PURE:
        k.wait(vm=['st'])
        e(f's_mov_b32 s3, {f32(1.0 / 512)}')
        r = ST
        for j in range(1, 8):
            e(f'v_add_f32 v{r}, v{r}, v{r + 2 * j}')
            e(f'v_add_f32 v{r + 1}, v{r + 1}, v{r + 2 * j + 1}')
        e(f'v_mov_b32 v{r + 2}, v{r}')
        e(f'v_mov_b32 v{r + 3}, v{r + 1}')
        e(f'v_permlane32_swap_b32 v{r}, v{r + 2}')
        e(f'v_permlane32_swap_b32 v{r + 1}, v{r + 3}')
        e(f'v_add_f32 v{r}, v{r}, v{r + 2}')
        e(f'v_add_f32 v{r + 1}, v{r + 1}, v{r + 3}')
        e(f'v_mul_f32 v{r}, s3, v{r}')
        e(f'v_mul_f32 v{r + 1}, s3, v{r + 1}')
        e(f'v_fma_f32 v{r + 1}, -v{r}, v{r}, v{r + 1}')
        e(f'v_max_f32 v{r + 1}, 0, v{r + 1}')
        rbf(k, r, r)
        rbf(k, r + 1, r + 1)
        e(f'v_add_f32 v{r + 1}, {f32(1e-5)}, v{r + 1}')
        rbf(k, r + 1, r + 1)
        e(f'v_sqrt_f32 v{r + 1}, v{r + 1}')
        rbf(k, r + 1, r + 1)
        e(f'v_rcp_f32 v{RS}, v{r + 1}')
        e(f'v_mul_f32 v{NM}, v{r}, v{RS}')
        e(f'v_sub_f32 v{NM}, 0, v{NM}')

    def w_reads(ks):
        out = []
        c = ks // 4
        for nb in range(8):
            mat, db = nb // 4, nb % 4
            off = BSLOT[c % 4][mat] + (ks % 4) * 4096
            base = WRA + (4 if off >= 65536 else 0) + db
            for t in range(2):
                r = WF + (ks % 2) * 32 + nb * 4 + t * 2
                out.append((COST['ds'], lambda r=r, base=base, t=t, off=off: e(f'ds_read_b64_tr_b16 a[{r}:{r + 1}], v{base} offset:{off % 65536 + t * 1024}', ('w', ks))))
        return out

    def ss_reads(ks):
        out = []
        for j in range(4):
            r = SS + (ks % 2) * 16 + 4 * j
            out.append((COST['ds'], lambda r=r, j=j: e(f'ds_read_b128 v[{r}:{r + 3}], v{VMD} offset:{ks * 128 + j * 16}', ('ss', ks))))
        return out

    def xform(ks):
        out = []
        sb = SS + (ks % 2) * 16
        x = xreg(ks)
        for p in range(4):
            t = FT + p * 2
            out.append((1, lambda p=p, t=t: e(f'v_lshlrev_b32 v{t}, 16, v{x + p}')))
            out.append((1, lambda p=p, t=t: e(f'v_and_b32 v{t + 1}, 0xffff0000, v{x + p}')))
            out.append((1, lambda t=t: e(f'v_fma_f32 v{t}, v{t}, v{RS}, v{NM}')))
            out.append((1, lambda t=t: e(f'v_fma_f32 v{t + 1}, v{t + 1}, v{RS}, v{NM}')))
            out.append((1, lambda p=p, t=t: e(f'v_fma_f32 v{t}, v{t}, v{sb + 2 * p}, v{sb + 8 + 2 * p}')))
            out.append((1, lambda p=p, t=t: e(f'v_fma_f32 v{t + 1}, v{t + 1}, v{sb + 2 * p + 1}, v{sb + 8 + 2 * p + 1}')))
            h = H + (ks % 2) * 4 + p
            out.append((1, lambda t=t, h=h: e(f'v_cvt_pk_bf16_f32 v{h}, v{t}, v{t + 1}')))
        return out

    todo = []
    wn = NPRE; xn = NPX
    while wn < 8 or xn < 8:
        if wn < 8 and wn <= xn:
            first = 0 if wn < 4 else 4 * (wn - 3)
            todo += [(first, g) for g in w_dma(wn)]; wn += 1
        else:
            for ks in range(4 * xn, 4 * xn + 4):
                todo.append((ks - XD + (1 if PURE else 0), x_load(ks)))
            xn += 1
    RATE = opts.get('rate4', 5)
    early = list(early or [])

    k.wait(vm=[('wq', 0)])
    e('s_barrier')
    stamp(k, sbase + 1)
    if PURE:
        for _, f in w_reads(0): f()
        k.wait(vm=[('x', 0)], lg=[('w', 0)])
    else:
        for _, f in ss_reads(0) + w_reads(0) + ss_reads(1): f()
        k.wait(vm=[('x', 0)], lg=[('ss', 0)])
        for _, f in xform(0): f()
        k.wait(lg=[('w', 0)])
    for ks in range(32):
        mf = []
        for nb in range(8):
            def m(nb=nb):
                acc = ACC + nb * 16
                c = '0' if ks == 0 else vr(acc, 16)
                b = xreg(ks) if PURE else H + (ks % 2) * 4
                e(f'v_mfma_f32_32x32x16_bf16 {vr(acc, 16)}, {ar(WF + (ks % 2) * 32 + nb * 4, 4)}, {vr(b, 4)}, {c}')
            mf.append(m)
        fx = {}; st = []; caps = {}
        if ks + 1 < 32:
            newc = (ks + 1) % 4 == 0
            vmw = ([] if PURE else [('x', ks + 1)]) + ([('wq', (ks + 1) // 4)] if newc else [])
            fx.setdefault(0, []).append((0, lambda: k.wait(vm=vmw, lg=[('ss', ks + 1)]), 'wait'))
            if newc:
                fx.setdefault(0, []).append((6, lambda: e('s_barrier'), 'bar'))
            g0 = 1 if newc else 0
            rd = (ss_reads(ks + 2) if ks + 2 < 32 and not PURE else []) + w_reads(ks + 1)
            for i, it in enumerate(rd):
                fx.setdefault(g0 + i // 4, []).append((it[0], it[1], 'ds'))
            st = [] if PURE else xform(ks + 1)
            fx.setdefault(7, []).append((0, lambda: k.wait(vm=[('x', ks + 1)] if PURE else [], lg=[('w', ks + 1)]), 'wait'))
        groups = []
        while todo and len(groups) < RATE and todo[0][0] <= ks:
            groups.append(todo.pop(0)[1])
        if early and ks == 22:
            groups.append([(8, early.pop(0))])
        elif early and ks >= 24 and len(early) > 5:
            groups.append([(6, early.pop(0))])
        gl = sorted([6, 7, 5, 4, 3, 2][:len(groups)])
        for g, grp in zip(gl, groups):
            for it in grp[:-1]:
                fx.setdefault(g - 1, []).append((it[0], it[1], 'end'))
            fx.setdefault(g, []).append((grp[-1][0], grp[-1][1], 'dma'))
        schedule(k, mf, fx, st, caps=caps, last_gap=6, cap=8)
    assert not todo
    if out_flag:
        e('s_barrier')
        for f in early: f()
    stamp(k, sbase + 2)
    e(f's_mov_b32 s3, {f32(-LOG2E)}')
    e(f's_add_u32 s{sT0}, s{sHb}, 4096')
    n = 0
    for j in range(4):
        for u in range(2):
            g = ACC + j * 16 + 8 * u
            up = ACC + (4 + j) * 16 + 8 * u
            t = XR + (n % 4) * 12; n += 1
            for i in range(8):
                e(f'v_mul_f32 v{t + i}, s3, v{g + i}')
            for i in range(8):
                e(f'v_exp_f32 v{t + i}, v{t + i}')
            for i in range(8):
                e(f'v_add_f32 v{t + i}, 1.0, v{t + i}')
            for i in range(8):
                e(f'v_rcp_f32 v{t + i}, v{t + i}')
            for i in range(8):
                e(f'v_mul_f32 v{g + i}, v{g + i}, v{t + i}')
            for i in range(8):
                e(f'v_mul_f32 v{g + i}, v{g + i}, v{up + i}')
            for i in range(4):
                e(f'v_cvt_pk_bf16_f32 v{t + 8 + i}, v{g + 2 * i}, v{g + 2 * i + 1}')
            kk = 2 * j + u
            so = sHb if kk < 4 else sT0
            e(f'buffer_store_dwordx4 v[{t + 8}:{t + 11}], v{VL16}, s[{sWS}:{sWS + 3}], s{so} offen offset:{(kk % 4) * 1024} sc1')
    if out_flag:
        e('s_lshl_b32 s46, s50, 8')
        e('s_lshl_b32 s45, s51, 4')
        e('s_add_u32 s46, s46, s45')
        e(f's_lshl_b32 s45, s{sW}, 2')
        e('s_add_u32 s46, s46, s45')
        e(f's_add_u32 s46, s46, {WS_FB}')
    stamp(k, sbase + 3)
    yield 'done'


def gen_oproj_sk(opts):
    k = Kern('oproj_kernel')
    e = k.e
    sWS = 12
    sW, sT0, sT1, sXb, sWo, sPb, sW4K = 32, 33, 34, 35, 36, 37, 38
    ACC = 0
    XD = 32
    XR = 64
    WRA = 192
    VL16, VDW, VLANE = 200, 201, 202
    T = 204
    WF = 0
    NSL = 8
    e('s_cmp_ge_u32 s2, 256')
    e('s_cbranch_scc1 oproj_end')
    stamp(k, 0)
    e(f's_load_dwordx2 s[6:7], s[0:1], {A_WS}')
    e(f'v_lshrrev_b32 v{T}, 6, v0')
    e(f'v_and_b32 v{VLANE}, 63, v0')
    e(f'v_readfirstlane_b32 s{sW}, v{T}')
    e(f'v_lshlrev_b32 v{VL16}, 4, v{VLANE}')
    e('s_bfe_u32 s28, s2, 0x20001')
    e('s_and_b32 s29, s2, 1')
    e('s_lshl_b32 s29, s29, 3')
    e('s_bfe_u32 s3, s2, 0x30003')
    e('s_add_u32 s29, s29, s3')
    e('s_lshr_b32 s30, s2, 6')
    e(f'v_lshrrev_b32 v{T + 1}, 4, v{VLANE}')
    e(f'v_and_b32 v{T + 2}, 15, v{VLANE}')
    e(f'v_lshlrev_b32 v{T + 3}, 2, v{T + 1}')
    e(f'v_xor_b32 v{T + 3}, v{T + 3}, v{T + 2}')
    e(f'v_lshlrev_b32 v{T + 3}, 4, v{T + 3}')
    e(f'v_lshl_add_u32 v{VDW}, v{T + 1}, 8, v{T + 3}')
    e(f's_lshl_b32 s{sW4K}, s{sW}, 12')
    e('s_lshl_b32 s3, s29, 2')
    e(f's_add_u32 s3, s3, s{sW}')
    e(f's_lshl_b32 s{sXb}, s3, 18')
    e(f's_lshl_b32 s{sT0}, s28, 16')
    e(f's_add_u32 s{sXb}, s{sXb}, s{sT0}')
    e(f's_add_u32 s{sXb}, s{sXb}, {WS_O}')
    e(f's_lshl_b32 s{sWo}, s30, 20')
    e(f's_lshl_b32 s{sT0}, s28, 18')
    e(f's_add_u32 s{sWo}, s{sWo}, s{sT0}')
    e(f's_add_u32 s{sWo}, s{sWo}, s{sW4K}')
    e(f's_add_u32 s{sWo}, s{sWo}, {WS_WOT}')
    e(f's_lshl_b32 s{sPb}, s28, 22')
    e(f's_lshl_b32 s{sT0}, s3, 16')
    e(f's_add_u32 s{sPb}, s{sPb}, s{sT0}')
    e(f's_lshl_b32 s{sT0}, s30, 14')
    e(f's_add_u32 s{sPb}, s{sPb}, s{sT0}')
    e(f's_add_u32 s{sPb}, s{sPb}, {WS_P}')
    e('s_waitcnt lgkmcnt(0)')
    srd(k, sWS, 6, 7, WS_SIZE)

    def w_dma(c):
        out = []
        for p in range(4):
            g = []
            if p == 0:
                g.append((1, lambda: e(f's_add_u32 m0, s{sW4K}, {(c % NSL) * 16384}')))
                g.append((1, lambda: e(f's_add_u32 s{sT0}, s{sWo}, {c * 16384}')))
            g.append((COST['dma'], lambda p=p: e(f'buffer_load_dwordx4 v{VDW}, s[{sWS}:{sWS + 3}], s{sT0} offen offset:{p * 1024} lds', ('wq', c))))
            out.append(g)
        return out

    def xreg(ks):
        return XR + (ks % XD) * 4

    def x_load(ks):
        r = xreg(ks)
        g = []
        if ks % 4 == 0:
            g.append((1, lambda: e(f's_add_u32 s{sT1}, s{sXb}, {(ks // 4) * 4096}')))
        g.append((COST['vload'], lambda: e(f'buffer_load_dwordx4 v[{r}:{r + 3}], v{VL16}, s[{sWS}:{sWS + 3}], s{sT1} offen offset:{(ks % 4) * 1024}', ('x', ks))))
        return g

    NPRE = opts.get('npre3', 4)
    for c in range(NPRE):
        for g in w_dma(c):
            for _, f in g: f()
        for ks in range(4 * c, 4 * c + 4):
            for _, f in x_load(ks): f()
        if c == 0:
            e(f'v_lshrrev_b32 v{T + 4}, 5, v{VLANE}')
            e(f'v_lshrrev_b32 v{T + 7}, 2, v{T + 2}')
            e(f'v_and_b32 v{T + 8}, 1, v{T + 1}')
            e(f'v_lshlrev_b32 v{T + 8}, 5, v{T + 8}')
            e(f'v_and_b32 v{T + 9}, 1, v{VLANE}')
            e(f'v_lshl_add_u32 v{T + 8}, v{T + 9}, 4, v{T + 8}')
            e(f'v_bfe_u32 v{T + 9}, v{VLANE}, 1, 1')
            e(f'v_lshl_add_u32 v{T + 8}, v{T + 9}, 3, v{T + 8}')
            e(f'v_lshl_add_u32 v{T + 8}, v{T + 7}, 8, v{T + 8}')
            e(f'v_lshl_add_u32 v{T + 8}, v{T + 4}, 11, v{T + 8}')
            for db in range(4):
                e(f'v_xor_b32 v{T + 9}, {db}, v{T + 7}')
                e(f'v_lshl_add_u32 v{WRA + db}, v{T + 9}, 6, v{T + 8}')
                e(f'v_add_u32 v{WRA + 4 + db}, 0x10000, v{WRA + db}')

    def w_reads(ks):
        out = []
        off = ((ks // 4) % NSL) * 16384 + (ks % 4) * 4096
        for db in range(4):
            base = WRA + (4 if off >= 65536 else 0) + db
            for t in range(2):
                r = WF + (ks % 2) * 16 + db * 4 + t * 2
                out.append(lambda r=r, base=base, t=t: e(f'ds_read_b64_tr_b16 a[{r}:{r + 1}], v{base} offset:{off % 65536 + t * 1024}', ('w', ks)))
        return out

    todo = []
    for c in range(NPRE, 16):
        first = 0 if c < NSL else 4 * (c - NSL + 1)
        todo += [(first, g) for g in w_dma(c)]
        for ks in range(4 * c, 4 * c + 4):
            todo.append((ks - XD + 1, x_load(ks)))
    RATE = opts.get('rate3', 3)
    stamp(k, 1)
    k.wait(vm=[('wq', 0)])
    e('s_barrier')
    for f in w_reads(0): f()
    k.wait(vm=[('x', 0)], lg=[('w', 0)])
    stamp(k, 2)
    for ks in range(64):
        mf = []
        for nb in range(4):
            def m(nb=nb):
                acc = ACC + nb * 16
                c = '0' if ks == 0 else vr(acc, 16)
                e(f'v_mfma_f32_32x32x16_bf16 {vr(acc, 16)}, {ar(WF + (ks % 2) * 16 + nb * 4, 4)}, {vr(xreg(ks), 4)}, {c}')
            mf.append(m)
        fx = {}
        if ks + 1 < 64:
            newc = (ks + 1) % 4 == 0
            if newc:
                fx.setdefault(0, []).append((0, lambda: k.wait(vm=[('wq', (ks + 1) // 4)]), 'wait'))
                fx.setdefault(0, []).append((1, lambda: e('s_barrier'), 'bar'))
            for i, f in enumerate(w_reads(ks + 1)):
                fx.setdefault(i // 4, []).append((1, f, 'ds'))
            fx.setdefault(3, []).append((0, lambda: k.wait(vm=[('x', ks + 1)], lg=[('w', ks + 1)]), 'wait'))
        groups = []
        while todo and len(groups) < RATE and todo[0][0] <= ks:
            groups.append(todo.pop(0)[1])
        for g, grp in zip([2, 3, 3][:len(groups)] if len(groups) < 3 else [1, 2, 3], groups):
            for it in grp[:-1]:
                fx.setdefault(g if g == 3 and len(groups) == 2 and False else g - 1, []).append((it[0], it[1], 'end'))
            fx.setdefault(g, []).append((grp[-1][0], grp[-1][1], 'dma'))
        schedule(k, mf, fx, [])
    assert not todo
    stamp(k, 3)
    for nb in range(4):
        e(f's_add_u32 s{sT0}, s{sPb}, {nb * 4096}')
        for q in range(4):
            e(f'buffer_store_dwordx4 v[{ACC + nb * 16 + 4 * q}:{ACC + nb * 16 + 4 * q + 3}], v{VL16}, s[{sWS}:{sWS + 3}], s{sT0} offen offset:{q * 1024}{opts.get("pst", " sc1")}')
    stamp(k, 4)
    if STAMP:
        e(f's_lshl_b32 s100, s{sW}, 6')
        e('v_mov_b32 v0, s100')
    stamp_flush(k, 5, sWS, 2)
    k.label('oproj_end')
    e('s_endpgm')
    return k, 'grid=(256,1,1) block=(256,1,1) lds=131072'


def gen_red(opts):
    k = Kern('red_kernel')
    e = k.e
    sWS, sX = 12, 16
    e('s_cmp_ge_u32 s2, 256')
    e('s_cbranch_scc1 red_end')
    stamp(k, 0)
    e(f's_load_dwordx2 s[6:7], s[0:1], {A_WS}')
    e(f's_load_dwordx2 s[4:5], s[0:1], {A_X}')
    e('v_and_b32 v1, 7, v0')
    e('v_lshrrev_b32 v2, 3, v0')
    e('v_lshlrev_b32 v3, 11, v2')
    e('v_lshl_add_u32 v3, v1, 4, v3')
    e('s_lshr_b32 s28, s2, 2')
    e('s_and_b32 s29, s2, 3')
    e('s_lshl_b32 s30, s28, 16')
    e('s_lshl_b32 s31, s29, 7')
    e('s_add_u32 s30, s30, s31')
    e(f's_add_u32 s30, s30, {WS_P}')
    e('s_lshl_b32 s33, s2, 13')
    e('v_lshlrev_b32 v4, 10, v1')
    e('v_lshl_add_u32 v4, v2, 5, v4')
    e('v_lshlrev_b32 v5, 6, v2')
    e('v_lshlrev_b32 v6, 7, v2')
    e('v_lshlrev_b32 v7, 10, v2')
    e('v_lshl_add_u32 v7, v1, 4, v7')
    e('s_lshl_b32 s34, s28, 15')
    e('s_add_u32 s34, s34, s31')
    e(f's_add_u32 s35, s34, {WS_H2}')
    e(f's_add_u32 s34, s34, {WS_X1}')
    e('s_waitcnt lgkmcnt(0)')
    srd(k, sWS, 6, 7, WS_SIZE)
    srd(k, sX, 4, 5, 2048 * 1024)
    PR = 16
    for sp in range(4):
        for hh in range(2):
            for q in range(2):
                r = PR + sp * 16 + hh * 8 + q * 4
                e(f'buffer_load_dwordx4 v[{r}:{r + 3}], v3, s[{sWS}:{sWS + 3}], s30 offen offset:{q * 1024 + hh * 512}', ('p', sp))
        if sp < 3:
            e('s_add_u32 s30, s30, 0x400000')
    GA = 80; XX = 96; MD = 104
    e(f's_mov_b32 s36, {WS_GA}')
    e(f's_mov_b32 s37, {WS_MOD2}')
    for j in range(4):
        e(f'buffer_load_dwordx4 v[{GA + 4 * j}:{GA + 4 * j + 3}], v5, s[{sWS}:{sWS + 3}], s36 offen offset:{16 * j}', 'g')
    for j in range(2):
        e(f'buffer_load_dwordx4 v[{XX + 4 * j}:{XX + 4 * j + 3}], v4, s[{sX}:{sX + 3}], s33 offen offset:{16 * j}', 'g')
    for j in range(8):
        e(f'buffer_load_dwordx4 v[{MD + 4 * j}:{MD + 4 * j + 3}], v6, s[{sWS}:{sWS + 3}], s37 offen offset:{16 * j}', 'md')
    stamp(k, 1)
    for sp in range(1, 4):
        k.wait(vm=[('p', sp), ('p', 0)])
        for i in range(16):
            e(f'v_add_f32 v{PR + i}, v{PR + i}, v{PR + sp * 16 + i}')
    k.wait(vm=['g'])
    U = 32
    for i in range(16):
        rbf(k, PR + i, PR + i)
    for i in range(16):
        e(f'v_mul_f32 v{PR + i}, v{PR + i}, v{GA + i}')
    for i in range(16):
        rbf(k, PR + i, PR + i)
    for i in range(16):
        if i % 2 == 0:
            e(f'v_lshlrev_b32 v{U + i}, 16, v{XX + i // 2}')
        else:
            e(f'v_and_b32 v{U + i}, 0xffff0000, v{XX + i // 2}')
    for i in range(16):
        e(f'v_add_f32 v{PR + i}, v{PR + i}, v{U + i}')
    for i in range(8):
        e(f'v_cvt_pk_bf16_f32 v{U + i}, v{PR + 2 * i}, v{PR + 2 * i + 1}')
    for hh in range(2):
        e(f'buffer_store_dwordx4 v[{U + 4 * hh}:{U + 4 * hh + 3}], v7, s[{sWS}:{sWS + 3}], s34 offen offset:{512 * hh}')
    for i in range(16):
        rbf(k, PR + i, PR + i)
    A, B, C2, D2 = 48, 49, 50, 51
    e(f'v_add_f32 v{A}, v{PR}, v{PR + 1}')
    e(f'v_mul_f32 v{B}, v{PR}, v{PR}')
    e(f'v_fmac_f32 v{B}, v{PR + 1}, v{PR + 1}')
    for i in range(2, 16):
        e(f'v_add_f32 v{A}, v{A}, v{PR + i}')
        e(f'v_fmac_f32 v{B}, v{PR + i}, v{PR + i}')
    e(f'v_add_f32_dpp v{C2}, v{A}, v{A} row_ror:8 row_mask:0xf bank_mask:0xf')
    e(f'v_add_f32_dpp v{D2}, v{B}, v{B} row_ror:8 row_mask:0xf bank_mask:0xf')
    for sw in ('v_permlane16_swap_b32', 'v_permlane32_swap_b32'):
        e(f'v_mov_b32 v{A}, v{C2}')
        e(f'v_mov_b32 v{B}, v{D2}')
        e(f'{sw} v{A}, v{C2}')
        e(f'{sw} v{B}, v{D2}')
        e(f'v_add_f32 v{C2}, v{A}, v{C2}')
        e(f'v_add_f32 v{D2}, v{B}, v{D2}')
    e('v_lshrrev_b32 v8, 6, v0')
    e('v_lshlrev_b32 v9, 5, v1')
    e('v_lshl_add_u32 v8, v8, 3, v9')
    e(f'ds_write_b64 v8, v[{C2}:{D2}]')
    e('s_waitcnt lgkmcnt(0)')
    e('s_barrier')
    e('ds_read_b128 v[52:55], v9')
    e('ds_read_b128 v[56:59], v9 offset:16')
    e('s_waitcnt lgkmcnt(0)')
    e('v_add_f32 v52, v52, v54')
    e('v_add_f32 v53, v53, v55')
    e('v_add_f32 v56, v56, v58')
    e('v_add_f32 v57, v57, v59')
    e('v_add_f32 v52, v52, v56')
    e('v_add_f32 v53, v53, v57')
    e(f's_mov_b32 s3, {f32(1.0 / 512)}')
    e('v_mul_f32 v52, s3, v52')
    e('v_mul_f32 v53, s3, v53')
    e('v_fma_f32 v53, -v52, v52, v53')
    e('v_max_f32 v53, 0, v53')
    rbf(k, 52, 52)
    rbf(k, 53, 53)
    e(f'v_add_f32 v53, {f32(1e-5)}, v53')
    rbf(k, 53, 53)
    e('v_sqrt_f32 v53, v53')
    rbf(k, 53, 53)
    e('v_rcp_f32 v53, v53')
    k.wait(vm=['md'])
    for i in range(16):
        e(f'v_sub_f32 v{PR + i}, v{PR + i}, v52')
    for i in range(16):
        rbf(k, PR + i, PR + i)
    for i in range(16):
        e(f'v_mul_f32 v{PR + i}, v{PR + i}, v53')
    for i in range(16):
        rbf(k, PR + i, PR + i)
    for i in range(16):
        e(f'v_mul_f32 v{PR + i}, v{PR + i}, v{MD + (i // 8) * 16 + i % 8}')
    for i in range(16):
        rbf(k, PR + i, PR + i)
    for i in range(16):
        e(f'v_add_f32 v{PR + i}, v{PR + i}, v{MD + (i // 8) * 16 + 8 + i % 8}')
    for i in range(8):
        e(f'v_cvt_pk_bf16_f32 v{60 + i}, v{PR + 2 * i}, v{PR + 2 * i + 1}')
    for hh in range(2):
        e(f'buffer_store_dwordx4 v[{60 + 4 * hh}:{63 + 4 * hh}], v7, s[{sWS}:{sWS + 3}], s35 offen offset:{512 * hh}')
    stamp(k, 2)
    stamp_flush(k, 3, sWS, 3)
    k.label('red_end')
    e('s_endpgm')
    return k, 'grid=(256,1,1) block=(256,1,1) lds=512'


def run_until(gen, tag):
    for t in gen:
        if t == tag:
            return
    raise RuntimeError('phase tag not reached: ' + tag)


def gen_tail(name, phases, opts, kidx):
    k = Kern(name)
    e = k.e
    e('s_cmp_ge_u32 s2, 256')
    e(f's_cbranch_scc1 {name}_end')
    if 'B' in phases:
        e('s_bfe_u32 s51, s2, 0x20001')
        e('s_lshr_b32 s3, s2, 6')
        e('s_lshl_b32 s3, s3, 2')
        e('s_add_u32 s51, s51, s3')
        if phases == 'B':
            e('s_cmp_ge_u32 s51, 14')
            e(f's_cbranch_scc1 {name}_end')
    stamp(k, 0)
    e(f's_load_dwordx2 s[6:7], s[0:1], {A_WS}')
    if 'A' in phases:
        e(f's_load_dwordx2 s[60:61], s[0:1], {A_X}')
    if 'B' in phases:
        e(f's_load_dwordx4 s[56:59], s[0:1], {A_W1}')
    if 'C' in phases:
        e(f's_load_dwordx2 s[62:63], s[0:1], {A_OUT}')
    e('v_lshrrev_b32 v1, 6, v0')
    e(f'v_readfirstlane_b32 s{sWV_T}, v1')
    keep = 'A' in phases and 'C' in phases
    first = True
    pending_flag = False
    sb = 1
    for pi, ph in enumerate(phases):
        dep = pi > 0
        out_flag = pi + 1 < len(phases)
        if ph == 'B' and len(phases) > 1:
            if first:
                e('s_waitcnt lgkmcnt(0)')
                srd(k, sWS_T, 6, 7, WS_SIZE)
                first = False
            e('s_cmp_ge_u32 s51, 14')
            e(f's_cbranch_scc1 {name}_skipb')
        if ph == 'B':
            g = phase_ffn1(k, opts, dep, out_flag, sb, early_c(k, 13) if out_flag else None)
        else:
            g = phase_gemm64(k, 'wo' if ph == 'A' else 'w2', opts, dep, out_flag, keep, sb, early_b(k) if out_flag else None)
        run_until(g, 'setup')
        if first:
            e('s_waitcnt lgkmcnt(0)')
            srd(k, sWS_T, 6, 7, WS_SIZE)
            first = False
        if pending_flag:
            signal(k, 244 if ph == 'C' else 252, 46, 0)
        run_until(g, 'prefetched')
        run_until(g, 'done')
        pending_flag = out_flag
        if ph == 'B' and len(phases) > 1:
            if pi + 1 < len(phases):
                e(f's_branch {name}_joinb')
                k.label(f'{name}_skipb')
                if pi > 0:
                    signal(k, 252, 46, 0)
                for f in early_c(k, 13): f()
                e(f's_mov_b32 s46, {WS_FDUMMY}')
                k.label(f'{name}_joinb')
            else:
                e(f's_branch {name}_fin')
                k.label(f'{name}_skipb')
                if pi > 0:
                    signal(k, 252, 46, 0)
                k.label(f'{name}_fin')
        sb += 5 if dep else 4
    if STAMP:
        e(f's_lshl_b32 s100, s{sWV_T}, 6')
        e('v_mov_b32 v0, s100')
    stamp_flush(k, sb, sWS_T, kidx)
    k.label(f'{name}_end')
    e('s_endpgm')
    return k, 'grid=(256,1,1) block=(256,1,1) lds=135168'


def build(opts=None):
    global STAMP
    opts = opts or {}
    STAMP = opts.get('stamp', False)
    for kk in COST:
        if 'c_' + kk in opts: COST[kk] = opts['c_' + kk]
    ks = [gen_prep(opts), gen_attn(opts)]
    if opts.get('sk', 0):
        ks += [gen_oproj_sk(opts), gen_red(opts)]
        for i, ph in enumerate(opts.get('fuse', 'B|C').split('|')):
            ks.append(gen_tail('tail' + ph.lower() + '_kernel', ph, opts, 4 + i))
    else:
        for i, ph in enumerate(opts.get('fuse', 'A|B|C').split('|')):
            ks.append(gen_tail('tail' + ph.lower() + '_kernel', ph, opts, 2 + i))
    hdr = open('adaLN_cond__mha_block_cached__glu_gated_swiglu__prompt.s.ref').read().split('\n')
    out = []
    for l in hdr:
        if l.startswith('; Override') or l.startswith('; grid=') or '@launch' in l or not l.startswith(';'):
            if not l.startswith(';'):
                break
            continue
        out.append(l)
    for k, launch in ks:
        for _ in range(1 + opts.get('dup_' + k.name[:5], 0)):
            out.append(f'; @launch kernel={k.name} {launch}')
    out.append('.amdgcn_target "amdgcn-amd-amdhsa--gfx950"')
    out.append('.text')
    for k, _ in ks:
        n = k.fix_hazards(verbose=opts.get('verbose', False))
        print(f'{k.name}: {len(k.ins)} instr, {n} hazard nop states, regs {k.max_regs()}', file=sys.stderr)
        out.append(f'.globl {k.name}')
        out.append('.p2align 8')
        out.append(f'.type {k.name},@function')
        out.append(f'{k.name}:')
        out.append(k.text())
    out.append('code_end:')
    errs = 0
    errs += ks[0][0].verify_path({})
    errs += ks[0][0].verify_path({'prep_ln': 1})
    errs += ks[1][0].verify_path({'attn_tail': [False, False, False, True], 'attn_copy': [True, True, True, True], 'attn_copy_st': [False, True], 'attn_copy_ret': [False, False, True, True]})
    for k, _ in ks[2:]:
        errs += k.verify_path({'pa_loop': 2, 'pb_go': [False, True], 'pc_go': [False, True]})
        errs += k.verify_path({'pa_loop': 2, 'pb_go': 1, 'pc_go': 1})
        errs += k.verify_path({'pa_loop': 2, 'pb_go': 1, 'pc_go': 1, k.name + '_skipb': 1})
    assert errs == 0 or 'qx' in opts, errs
    out.append('.section .rodata,"a"')
    for k, _ in ks:
        out.append('.p2align 6')
        out.append(descriptor(k, 264 if k.name.startswith('tail') else 0))
    return '\n'.join(out)


if __name__ == '__main__':
    dst = sys.argv[1] if len(sys.argv) > 1 else 'adaLN_cond__mha_block_cached__glu_gated_swiglu__prompt.s'
    opts = {}
    for a in sys.argv[2:]:
        kk, _, v = a.partition('=')
        opts[kk] = eval(v) if v else True
    open(dst, 'w').write(build(opts))
```

```python
import sys, struct, math
from asmlib import *

A_X, A_K, A_V, A_WQ, A_WO, A_BX, A_W1, A_W3, A_W2, A_C, A_WMOD, A_OUT, A_DBG, A_WS = [8 * i for i in range(14)]
WS_MOD1 = 0
WS_GA = 4096
WS_MOD2 = 8192
WS_GB = 8192 + 4096
WS_FA = 0x4000
WS_FB = 0x5000
WS_FDUMMY = 0x6000
WS_XHAT = 0x10000
WS_O = 0x400000
WS_X1 = 0x1400000
WS_ST = 0x1600000
WS_HH = 0x1800000
WS_WOT = 0x2000000
WS_W2T = 0x2400000
WS_H2 = 0x2600000
WS_P = 0x3000000
WS_SIZE = 0x4000000

LOG2E = 1.4426950408889634


def f32(x):
    return '0x%08x' % struct.unpack('<I', struct.pack('<f', x))[0]


def srd(k, d, lo, hi, nbytes):
    k.e(f's_mov_b32 s{d}, s{lo}')
    k.e(f's_and_b32 s{d + 1}, s{hi}, 0xffff')
    k.e(f's_mov_b32 s{d + 2}, {nbytes}')
    k.e(f's_mov_b32 s{d + 3}, 0x00020000')


WS_STAMP = 0x1F00000
STAMP = False


def stamp(k, idx):
    if not STAMP:
        return
    k.e('s_waitcnt lgkmcnt(0)')
    k.e(f's_memtime s[{64 + 2 * idx}:{65 + 2 * idx}]')
    if idx == 0:
        k.e('s_memrealtime s[96:97]')
    k.e('s_waitcnt lgkmcnt(0)')


def stamp_flush(k, n, sws, kidx):
    if not STAMP:
        return
    e = k.e
    e('s_waitcnt vmcnt(0) lgkmcnt(0)')
    stamp(k, n)
    e('s_memrealtime s[98:99]')
    e('s_waitcnt lgkmcnt(0)')
    lab = k.newlabel('nost')
    e('v_readfirstlane_b32 s100, v0')
    e('s_cmp_lg_u32 s100, 0')
    e(f's_cbranch_scc1 {lab}')
    e('s_lshl_b32 s100, s2, 7')
    e(f's_add_u32 s100, s100, {WS_STAMP + kidx * 65536}')
    e('v_mov_b32 v1, 0')
    for i in range(n + 1):
        e(f'v_mov_b32 v2, s{64 + 2 * i}')
        e(f'buffer_store_dword v2, v1, s[{sws}:{sws + 3}], s100 offen offset:{4 * i}')
    e('v_mov_b32 v2, s96')
    e(f'buffer_store_dword v2, v1, s[{sws}:{sws + 3}], s100 offen offset:120')
    e('v_mov_b32 v2, s98')
    e(f'buffer_store_dword v2, v1, s[{sws}:{sws + 3}], s100 offen offset:124')
    k.label(lab)


def code_touch(k, v, sp, sidx, vlane, start, end):
    e = k.e
    lab = k.newlabel('pc')
    e(f's_getpc_b64 s[{sp}:{sp + 1}]')
    k.label(lab)
    e(f's_add_u32 s{sp}, s{sp}, {start}-{lab}')
    e(f's_addc_u32 s{sp + 1}, s{sp + 1}, 0')
    e(f's_lshl_b32 s{sidx}, s{sidx}, 13')
    e(f'v_lshlrev_b32 v{v}, 7, v{vlane}')
    e(f'v_add_u32 v{v}, s{sidx}, v{v}')
    e(f'v_min_u32 v{v}, {end}-{start}-4, v{v}')
    e(f'v_mov_b32 v{v + 1}, s{sp + 1}')
    e(f'v_add_co_u32 v{v}, vcc, s{sp}, v{v}')
    e(f'v_addc_co_u32 v{v + 1}, vcc, 0, v{v + 1}, vcc')
    e(f'global_load_dword v{v + 2}, v[{v}:{v + 1}], off', 'code')


def rbf(k, d, s):
    k.e(f'v_cvt_pk_bf16_f32 v{d}, 0, v{s}')


def allreduce16(k, v, t):
    for mod in ('quad_perm:[1,0,3,2]', 'quad_perm:[2,3,0,1]', 'row_half_mirror', 'row_mirror'):
        k.e(f'v_add_f32_dpp v{t}, v{v}, v{v} {mod} row_mask:0xf bank_mask:0xf')
        v, t = t, v


def gen_prep(opts):
    k = Kern('prep_kernel')
    e = k.e
    NMOD, NLN = 96, 128
    e(f's_cmp_ge_u32 s2, {NMOD + NLN}')
    e('s_cbranch_scc1 prep_end')
    stamp(k, 0)
    e(f's_load_dwordx2 s[4:5], s[0:1], {A_WS}')
    e(f's_load_dwordx2 s[6:7], s[0:1], {A_X}')
    e(f's_load_dwordx4 s[20:23], s[0:1], {A_C}')
    e(f's_load_dwordx4 s[36:39], s[0:1], {A_K}')
    e(f's_load_dwordx2 s[40:41], s[0:1], {A_WQ}')

    def prefetch(ln=False, part=3):
        if opts.get('cpf', 1) and part & 1:
            lab = k.newlabel('nocpf')
            e('v_lshrrev_b32 v72, 6, v0')
            e('v_and_b32 v73, 63, v0')
            e('v_readfirstlane_b32 s42, v72')
            e('s_lshr_b32 s43, s2, 3')
            e('s_lshl_b32 s43, s43, 2')
            e('s_add_u32 s43, s43, s42')
            e('s_cmp_ge_u32 s43, (code_end-attn_kernel+8191)/8192')
            e(f's_cbranch_scc1 {lab}')
            code_touch(k, 74, 44, 43, 73, 'attn_kernel', 'code_end')
            k.vmq.pop()
            k.label(lab)
        if opts.get('pf1', 2) == 2:
            if ln and part & 2:
                e('v_lshrrev_b32 v72, 6, v0')
                e('v_and_b32 v73, 63, v0')
                e('v_readfirstlane_b32 s42, v72')
                e('v_lshrrev_b32 v77, 3, v73')
                e('v_and_b32 v78, 7, v73')
                e('v_lshlrev_b32 v77, 13, v77')
                e('v_lshl_add_u32 v77, v78, 7, v77')
                e(f's_sub_u32 s43, s2, {NMOD}')
                e('s_lshr_b32 s43, s43, 3')
                e('s_lshl_b32 s43, s43, 2')
                e('s_add_u32 s43, s43, s42')
                e('s_lshl_b32 s43, s43, 16')
                e('s_and_b32 s44, s2, 7')
                e('s_lshl_b32 s44, s44, 10')
                e('s_add_u32 s43, s43, s44')
                srd(k, 48, 40, 41, 512 * 8192)
                e('buffer_load_dword v78, v77, s[48:51], s43 offen', 'pf')
                if opts.get('pf64', 0):
                    e('buffer_load_dword v79, v77, s[48:51], s43 offen offset:64', 'pf')
            return
        if not opts.get('pf1', 2):
            return
        e('v_lshrrev_b32 v72, 6, v0')
        e('v_and_b32 v73, 63, v0')
        e('v_readfirstlane_b32 s42, v72')
        e('v_lshrrev_b32 v74, 4, v73')
        e('v_and_b32 v75, 15, v73')
        e('v_lshlrev_b32 v74, 13, v74')
        e('v_lshl_add_u32 v74, v75, 6, v74')
        e('v_lshlrev_b32 v73, 6, v73')
        e('s_lshr_b32 s43, s2, 3')
        e('s_lshl_b32 s43, s43, 2')
        e('s_add_u32 s43, s43, s42')
        e('s_and_b32 s44, s2, 7')
        srd(k, 48, 40, 41, 512 * 8192)
        e('s_lshl_b32 s45, s43, 15')
        e('s_lshl_b32 s46, s44, 10')
        e('s_add_u32 s45, s45, s46')
        e('buffer_load_dword v76, v74, s[48:51], s45 offen', 'pf')
        e(f's_add_u32 s45, s45, {112 * 32768}')
        e('buffer_load_dword v77, v74, s[48:51], s45 offen', 'pf')
        e('s_and_b32 s45, s43, 63')
        e('s_lshr_b32 s46, s45, 4')
        e('s_lshl_b32 s47, s44, 2')
        e('s_add_u32 s46, s46, s47')
        e('s_lshl_b32 s46, s46, 19')
        e('s_and_b32 s45, s45, 15')
        e('s_lshl_b32 s45, s45, 12')
        e('s_add_u32 s45, s45, s46')
        srd(k, 48, 36, 37, 32 * 524288)
        e('buffer_load_dword v78, v73, s[48:51], s45 offen', 'pf')
        srd(k, 48, 38, 39, 32 * 524288)
        e('buffer_load_dword v79, v73, s[48:51], s45 offen', 'pf')
    e(f's_cmp_ge_u32 s2, {NMOD}')
    e('s_cbranch_scc1 prep_ln')
    e('v_and_b32 v1, 3, v0')
    e('v_lshrrev_b32 v2, 2, v0')
    e('s_mov_b32 s3, 49152')
    e('v_mul_lo_u32 v3, v2, s3')
    e('v_lshl_add_u32 v3, v1, 4, v3')
    if opts.get('mrm', 1):
        e('s_and_b32 s34, s2, 0x70')
        e('s_and_b32 s3, s2, 7')
        e('s_lshl_b32 s3, s3, 1')
        e('s_add_u32 s34, s34, s3')
        e('s_bfe_u32 s3, s2, 0x10003')
        e('s_add_u32 s34, s34, s3')
    else:
        e('s_mov_b32 s34, s2')
    e('s_lshl_b32 s3, s34, 6')
    e('v_add_u32 v3, s3, v3')
    e('v_lshlrev_b32 v4, 4, v2')
    e('s_waitcnt lgkmcnt(0)')
    stamp(k, 1)
    srd(k, 8, 20, 21, 1024)
    srd(k, 12, 22, 23, 512 * 6144)
    srd(k, 16, 4, 5, WS_SIZE)
    e('buffer_load_dwordx4 v[8:11], v4, s[8:11], 0 offen', 'c')
    for i in range(8):
        e(f's_mov_b32 s{24 + i}, {i * 6144}')
        e(f'buffer_load_dwordx4 v[{16 + 4 * i}:{19 + 4 * i}], v3, s[12:15], s{24 + i} offen', ('w', i))
    prefetch()
    k.wait(vm=['c'])
    stamp(k, 2)
    e(f's_mov_b32 s3, {f32(-LOG2E)}')
    for i in range(8):
        src = 8 + i // 2
        if i % 2 == 0:
            e(f'v_lshlrev_b32 v{48 + i}, 16, v{src}')
        else:
            e(f'v_and_b32 v{48 + i}, 0xffff0000, v{src}')
    for i in range(8):
        e(f'v_mul_f32 v{56 + i}, s3, v{48 + i}')
    for i in range(8):
        e(f'v_exp_f32 v{56 + i}, v{56 + i}')
    for i in range(8):
        e(f'v_add_f32 v{56 + i}, 1.0, v{56 + i}')
    for i in range(8):
        e(f'v_rcp_f32 v{56 + i}, v{56 + i}')
    for i in range(8):
        e(f'v_mul_f32 v{48 + i}, v{48 + i}, v{56 + i}')
    for i in range(8):
        rbf(k, 48 + i, 48 + i)
    for i in range(8):
        k.wait(vm=[('w', i)])
        for p in range(4):
            w = 16 + 4 * i + p
            e(f'v_lshlrev_b32 v56, 16, v{w}')
            e(f'v_and_b32 v57, 0xffff0000, v{w}')
            if i == 0:
                e(f'v_mul_f32 v{64 + 2 * p}, v48, v56')
                e(f'v_mul_f32 v{65 + 2 * p}, v48, v57')
            else:
                e(f'v_fmac_f32 v{64 + 2 * p}, v{48 + i}, v56')
                e(f'v_fmac_f32 v{65 + 2 * p}, v{48 + i}, v57')
    stamp(k, 3)
    e('v_lshlrev_b32 v5, 5, v0')
    e('ds_write_b128 v5, v[64:67]')
    e('ds_write_b128 v5, v[68:71] offset:16')
    e('s_waitcnt lgkmcnt(0)')
    e('s_barrier')
    e('v_and_b32 v6, 31, v0')
    e('v_lshrrev_b32 v7, 5, v0')
    e('v_lshlrev_b32 v5, 10, v7')
    e('v_lshl_add_u32 v5, v6, 2, v5')
    for i in range(8):
        e(f'ds_read_b32 v{16 + i}, v5 offset:{i * 128}')
    e('s_waitcnt lgkmcnt(0)')
    for i in range(1, 8):
        e(f'v_add_f32 v16, v16, v{16 + i}')
    e('v_lshlrev_b32 v5, 2, v0')
    e('ds_write_b32 v5, v16 offset:8192')
    e('s_waitcnt lgkmcnt(0)')
    e('s_barrier')
    e('v_cmp_gt_u32 vcc, 32, v0')
    e('s_and_saveexec_b64 s[32:33], vcc')
    e('s_cbranch_execz prep_end')
    for i in range(8):
        e(f'ds_read_b32 v{16 + i}, v5 offset:{8192 + i * 128}')
    e('s_waitcnt lgkmcnt(0)')
    for i in range(1, 8):
        e(f'v_add_f32 v16, v16, v{16 + i}')
    rbf(k, 16, 16)
    e('v_add_f32 v17, 1.0, v16')
    rbf(k, 17, 17)
    e('s_lshr_b32 s24, s34, 4')
    e('s_and_b32 s25, s34, 15')
    e('s_lshl_b32 s25, s25, 5')
    e('v_add_u32 v6, s25, v0')
    e('s_cmp_ge_u32 s24, 3')
    e('s_cselect_b32 s26, 8192, 0')
    e('s_cselect_b32 s27, 3, 0')
    e('s_sub_u32 s24, s24, s27')
    e('v_lshrrev_b32 v7, 3, v6')
    e('v_lshlrev_b32 v7, 6, v7')
    e('v_and_b32 v8, 7, v6')
    e('v_lshl_add_u32 v7, v8, 2, v7')
    e('v_lshlrev_b32 v8, 2, v6')
    stamp_flush(k, 4, 16, 0)
    e('s_cmp_eq_u32 s24, 2')
    e('s_cbranch_scc1 prep_gate')
    e('s_cmp_eq_u32 s24, 1')
    e('s_cbranch_scc1 prep_scale')
    e('buffer_store_dword v16, v7, s[16:19], s26 offen offset:32')
    e('s_endpgm')
    k.label('prep_scale')
    e('buffer_store_dword v17, v7, s[16:19], s26 offen')
    e('s_endpgm')
    k.label('prep_gate')
    e('s_add_u32 s26, s26, 4096')
    e('buffer_store_dword v16, v8, s[16:19], s26 offen')
    e('s_endpgm')
    k.label('prep_ln')
    e(f's_sub_u32 s3, s2, {NMOD}')
    e('s_lshl_b32 s3, s3, 4')
    e('v_lshrrev_b32 v1, 4, v0')
    e('v_add_u32 v1, s3, v1')
    e('v_and_b32 v2, 15, v0')
    e('v_lshlrev_b32 v3, 10, v1')
    e('v_lshl_add_u32 v3, v2, 4, v3')
    e('s_waitcnt lgkmcnt(0)')
    stamp(k, 1)
    srd(k, 8, 6, 7, 2048 * 1024)
    srd(k, 16, 4, 5, WS_SIZE)
    for j in range(4):
        e(f'buffer_load_dwordx4 v[{8 + 4 * j}:{11 + 4 * j}], v3, s[8:11], 0 offen offset:{256 * j}', ('x', j))
    PFP = opts.get('pfp', 0)
    prefetch(True, 3 if PFP == 0 else 1)
    if len(opts.get('fuse', 'A|B|C').split('|')) < 3:
        e(f's_sub_u32 s43, s2, {NMOD}')
        e('s_cmp_ge_u32 s43, 8')
        e('s_cbranch_scc1 prep_nofl')
        e('s_lshl_b32 s43, s43, 10')
        e(f's_add_u32 s43, s43, {WS_FA}')
        e('v_lshlrev_b32 v72, 2, v0')
        e('v_mov_b32 v73, 0')
        e('buffer_store_dword v73, v72, s[16:19], s43 offen')
        k.vmq.pop()
        k.label('prep_nofl')
    e('v_lshrrev_b32 v4, 5, v1')
    e('v_lshlrev_b32 v4, 15, v4')
    e('v_lshrrev_b32 v5, 1, v2')
    e('v_lshl_add_u32 v4, v5, 10, v4')
    e('v_and_b32 v5, 1, v2')
    e('v_lshl_add_u32 v4, v5, 9, v4')
    e('v_and_b32 v5, 31, v1')
    e('v_lshl_add_u32 v4, v5, 4, v4')
    X = 32
    for j in range(4):
        k.wait(vm=[('x', j)])
        for p in range(4):
            e(f'v_lshlrev_b32 v{X + 8 * j + 2 * p}, 16, v{8 + 4 * j + p}')
            e(f'v_and_b32 v{X + 8 * j + 2 * p + 1}, 0xffff0000, v{8 + 4 * j + p}')
    stamp(k, 2)
    if PFP == 1:
        prefetch(True, 2)
    e(f'v_add_f32 v24, v{X}, v{X + 1}')
    e(f'v_add_f32 v25, v{X + 2}, v{X + 3}')
    for i in range(4, 32):
        e(f'v_add_f32 v{24 + i % 2}, v{24 + i % 2}, v{X + i}')
    e('v_add_f32 v24, v24, v25')
    allreduce16(k, 24, 25)
    e(f's_mov_b32 s3, {f32(1.0 / 512)}')
    e('v_mul_f32 v24, s3, v24')
    for i in range(32):
        e(f'v_sub_f32 v{64 + i % 4}, v{X + i}, v24')
        if i < 2:
            e(f'v_mul_f32 v{26 + i}, v{64 + i % 4}, v{64 + i % 4}')
        else:
            e(f'v_fmac_f32 v{26 + i % 2}, v{64 + i % 4}, v{64 + i % 4}')
    e('v_add_f32 v26, v26, v27')
    allreduce16(k, 26, 27)
    e('v_mul_f32 v26, s3, v26')
    rbf(k, 24, 24)
    rbf(k, 26, 26)
    e(f'v_add_f32 v26, {f32(1e-5)}, v26')
    rbf(k, 26, 26)
    e('v_sqrt_f32 v26, v26')
    rbf(k, 26, 26)
    e('v_rcp_f32 v26, v26')
    e(f's_mov_b32 s24, {WS_XHAT}')
    for j in range(4):
        for i in range(8):
            r = X + 8 * j + i
            e(f'v_sub_f32 v{r}, v{r}, v24')
        for i in range(8):
            r = X + 8 * j + i
            rbf(k, r, r)
        for i in range(8):
            r = X + 8 * j + i
            e(f'v_mul_f32 v{r}, v{r}, v26')
        for i in range(8):
            r = X + 8 * j + i
            rbf(k, r, r)
        for p in range(4):
            r = X + 8 * j + 2 * p
            e(f'v_cvt_pkrtz_f16_f32 v{8 + 4 * j + p}, v{r}, v{r + 1}')
        e(f'buffer_store_dwordx4 v[{8 + 4 * j}:{11 + 4 * j}], v4, s[16:19], s24 offen')
        if j < 3:
            e(f's_add_u32 s24, s24, 8192')
    if PFP == 2:
        prefetch(True, 2)
    stamp(k, 3)
    stamp_flush(k, 4, 16, 0)
    k.label('prep_end')
    e('s_endpgm')
    return k, f'grid=({NMOD + NLN},1,1) block=(256,1,1) lds=9216'


COST = {'exp': 2, 'valu': 1, 'ds': 1, 'dma': 2.5, 'salu': 1, 'vload': 2.5}
GAPCAP = 6
ORDER = {'wait': 0, 'bar': 1, 'dma': 2, 'ds': 3, 'end': 9}


def schedule(k, mfmas, fixed, stream, last_gap=None, cap=GAPCAP, caps=None):
    n = len(mfmas)
    if last_gap is None:
        last_gap = n - 1
    spare = []
    for g in range(n):
        c = sum(x[0] for x in fixed.get(g, []))
        cp = caps.get(g, cap) if caps else cap
        spare.append(max(cp - c, 0) if g <= last_gap else 0)
    tot_spare = sum(spare)
    tot = sum(x[0] for x in stream)
    si = 0
    done = 0.0
    cum = 0
    lastg = max([g for g in range(n) if spare[g] > 0] or [n - 1])
    for g in range(n):
        mfmas[g]()
        fx = sorted(fixed.get(g, []), key=lambda x: ORDER[x[2]])
        cum += spare[g]
        target = tot * cum / max(tot_spare, 1)
        mine = []
        while si < len(stream) and ((spare[g] > 0 and done + stream[si][0] * 0.5 <= target) or g >= lastg):
            mine.append(stream[si]); done += stream[si][0]; si += 1
        for x in fx:
            if x[2] != 'end': x[1]()
        for x in mine: x[1]()
        for x in fx:
            if x[2] == 'end': x[1]()
    assert si == len(stream)


def gemm256(k, P):
    e = k.e
    QX = P.get('qx', '')
    P['chunk_barrier'](0)
    for _, f in P['ss_reads'](0) + P['w_reads'](0) + P['ss_reads'](1): f()
    k.wait(vm=[('x', 0)], lg=[('ss', 0)])
    for _, f in P['xform'](0): f()
    k.wait(lg=[('w', 0)])
    for ks in range(32):
        mf = []
        for db in range(4):
            for qb in range(2):
                def m(db=db, qb=qb):
                    acc = P['ACC'] + (db * 2 + qb) * 16
                    wf = P['WF'] + (ks % 2) * 16 + db * 4
                    h = P['H'] + (ks % 2) * 8 + qb * 4
                    c = '0' if ks == 0 else ar(acc, 16)
                    e(f'v_mfma_f32_32x32x16_bf16 {ar(acc, 16)}, {ar(wf, 4)}, {vr(h, 4)}, {c}')
                mf.append(m)
        fx = {}
        st = []
        caps = {}
        if ks + 1 < 32:
            newc = (ks + 1) % 4 == 0
            if newc:
                fx.setdefault(0, []).append((0, lambda: k.wait(vm=[('wq', (ks + 1) // 4), ('x', ks + 1)], lg=[('ss', ks + 1)]), 'wait'))
                if 'B' not in QX: fx.setdefault(0, []).append((6, lambda: e('s_barrier'), 'bar'))
                caps[1] = 4
            else:
                fx.setdefault(0, []).append((0, lambda: k.wait(vm=[('x', ks + 1)], lg=[('ss', ks + 1)]), 'wait'))
            g0 = 1 if newc else 0
            rd = (P['ss_reads'](ks + 2) if ks + 2 < 32 and 'S' not in QX else []) + (P['w_reads'](ks + 1) if 'W' not in QX else [])
            for i, it in enumerate(rd):
                fx.setdefault(g0 + i // 3, []).append((it[0], it[1], 'ds'))
            st = P['xform'](ks + 1) if 'T' not in QX else []
            fx.setdefault(7, []).append((0, lambda: k.wait(lg=[('w', ks + 1)]), 'wait'))
        groups = P['refill'](ks)
        if 'V' in QX: groups = []
        gl = [5, 6, 4, 7, 3, 2][:len(groups)]
        gl.sort()
        for g, grp in zip(gl, groups):
            for it in grp[:-1]:
                fx.setdefault(g - 1, []).append((it[0], it[1], 'end'))
            fx.setdefault(g, []).append((grp[-1][0], grp[-1][1], 'dma'))
        schedule(k, mf, fx, st, caps=caps, last_gap=6, cap=7)


class G256:
    pass


BIAS = 100.0
THRESH = 2.0 ** 90


def gen_attn(opts):
    global BIAS
    BIAS = opts.get('bias', BIAS)
    k = Kern('attn_kernel')
    e = k.e
    sK, sV, sWQ, sWS = 8, 12, 16, 20
    sW, sW4K, sKoff, sVoff, sCnt, sThr, sXb, sT0, sT1, sOb = 32, 33, 34, 35, 36, 37, 38, 39, 40, 41
    sLink = 44
    S = [8, 40]; NEGM = 72; P = [104, 120]; Q = 136; ET = 200
    LS = [208, 209]; L = [210, 211]; TMP = 212
    KR = 216; VR = 224; DK = 228; DV = 232; VL16 = 233; VMD = 234; VLANE = 235
    O = 0; KF = 128; VF = 160
    LDS_K, LDS_V, LDS_MOD = 0, 65536, 131072

    e('s_cmp_ge_u32 s2, 256')
    e('s_cbranch_scc1 attn_end')
    stamp(k, 0)
    e(f's_load_dwordx4 s[4:7], s[0:1], {A_K}')
    e(f's_load_dwordx2 s[24:25], s[0:1], {A_WQ}')
    e(f's_load_dwordx2 s[26:27], s[0:1], {A_WS}')
    e(f's_load_dwordx2 s[48:49], s[0:1], {A_WO}')
    e(f's_load_dwordx4 s[52:55], s[0:1], {A_W3}')
    e(f's_load_dwordx2 s[50:51], s[0:1], {A_W1}')
    e('s_and_b32 s28, s2, 7')
    e('s_lshl_b32 s28, s28, 2')
    e('s_lshr_b32 s29, s2, 3')
    e('s_and_b32 s30, s29, 3')
    e('s_add_u32 s28, s28, s30')
    e('s_lshr_b32 s29, s29, 2')
    e('v_lshrrev_b32 v1, 6, v0')
    e(f'v_and_b32 v{VLANE}, 63, v0')
    e(f'v_readfirstlane_b32 s{sW}, v1')
    e(f'v_lshlrev_b32 v{VL16}, 4, v{VLANE}')
    e(f's_lshl_b32 s{sW4K}, s{sW}, 12')
    e(f'v_lshrrev_b32 v2, 4, v{VLANE}')
    e(f'v_and_b32 v3, 15, v{VLANE}')
    e(f'v_lshrrev_b32 v4, 5, v{VLANE}')
    e(f'v_and_b32 v5, 31, v{VLANE}')
    e('v_lshlrev_b32 v6, 2, v2')
    e('v_xor_b32 v6, v6, v3')
    e('v_lshlrev_b32 v6, 4, v6')
    e(f'v_lshl_add_u32 v{DV}, v2, 8, v6')
    e(f'v_add_u32 v{DV}, s{sW4K}, v{DV}')
    e(f's_lshl_b32 s3, s{sW}, 17')
    e('v_lshl_add_u32 v7, v2, 13, v6')
    e('v_add_u32 v7, s3, v7')
    e('s_waitcnt lgkmcnt(0)')
    e('s_lshl_b32 s3, s28, 19')
    e('s_add_u32 s4, s4, s3'); e('s_addc_u32 s5, s5, 0')
    e('s_add_u32 s6, s6, s3'); e('s_addc_u32 s7, s7, 0')
    srd(k, sK, 4, 5, 524288)
    srd(k, sV, 6, 7, 524288)
    e('s_lshl_b32 s3, s28, 8')
    e('s_add_u32 s24, s24, s3'); e('s_addc_u32 s25, s25, 0')
    e(f's_mov_b32 s{sWQ}, s24'); e(f's_and_b32 s{sWQ + 1}, s25, 0xffff')
    e(f's_sub_u32 s{sWQ + 2}, {512 * 8192}, s3'); e(f's_mov_b32 s{sWQ + 3}, 0x00020000')
    srd(k, sWS, 26, 27, WS_SIZE)
    e('s_lshl_b32 s3, s29, 3')
    e(f's_lshl_b32 s{sT0}, s{sW}, 1')
    e(f's_add_u32 s3, s3, s{sT0}')
    e(f's_lshl_b32 s{sXb}, s3, 15')
    e(f's_add_u32 s{sXb}, s{sXb}, {WS_XHAT}')
    e(f's_lshl_b32 s{sOb}, s3, 18')
    e(f's_lshl_b32 s{sT0}, s28, 13')
    e(f's_add_u32 s{sOb}, s{sOb}, s{sT0}')
    e(f's_add_u32 s{sOb}, s{sOb}, {WS_O}')

    XR = 8; H = 136; SS = 152; FT = 184; WRA = 200; WF = 128
    chunk_slot = [LDS_K, LDS_K + 16384, LDS_V, LDS_K + 32768, LDS_K + 49152, LDS_V + 16384, LDS_V + 32768, LDS_V + 49152]

    def wq_dma(c):
        out = []
        for p in range(4):
            g = []
            if p == 0:
                g.append((1, lambda: e(f's_add_u32 m0, s{sW4K}, {chunk_slot[c]}')))
            g.append((1, lambda p=p: e(f's_mov_b32 s{sT0}, {c * 524288 + p * (32768 - 1024)}')))
            g.append((COST['dma'], lambda p=p: e(f'buffer_load_dwordx4 v7, s[{sWQ}:{sWQ + 3}], s{sT0} offen offset:{p * 1024} lds', ('wq', c))))
            out.append(g)
        return out

    def xreg(ks, qb):
        return XR + (((ks // 4) % 4) * 8 + (ks % 4) * 2 + qb) * 4

    def x_load(ks, qb):
        c = ks // 4
        out = []
        so = (sT1, 43)[qb]
        if ks % 4 == 0:
            out.append((1, lambda: e(f's_add_u32 s{so}, s{sXb}, {qb * 32768 + c * 4096}')))
        r = xreg(ks, qb)
        out.append((COST['vload'], lambda: e(f'buffer_load_dwordx4 v[{r}:{r + 3}], v{VL16}, s[{sWS}:{sWS + 3}], s{so} offen offset:{(ks % 4) * 1024}', ('x', ks))))
        return out

    e(f's_lshl_b32 s{sT0}, s{sW}, 10')
    e(f's_add_u32 m0, s{sT0}, {LDS_MOD}')
    e(f's_add_u32 s{sT0}, s{sT0}, {WS_MOD1}')
    e(f'buffer_load_dwordx4 v{VL16}, s[{sWS}:{sWS + 3}], s{sT0} offen lds', ('wq', 0))
    NPRE = opts.get('npre', 1)
    NPX = opts.get('npx', NPRE)
    for c in range(max(NPRE, NPX)):
        for g in (wq_dma(c) if c < NPRE else []):
            for _, f in g: f()
        for ks in (range(4 * c, 4 * c + 4) if c < NPX else []):
            for qb in range(2):
                for _, f in x_load(ks, qb): f()
    e('v_lshrrev_b32 v236, 2, v3')
    e(f'v_and_b32 v237, 3, v{VLANE}')
    e('v_and_b32 v238, 1, v2')
    e('v_lshlrev_b32 v238, 5, v238')
    e('v_and_b32 v239, 1, v237')
    e('v_lshl_add_u32 v238, v239, 4, v238')
    e('v_lshrrev_b32 v239, 1, v237')
    e('v_lshl_add_u32 v238, v239, 3, v238')
    e('v_lshl_add_u32 v238, v236, 8, v238')
    for db in range(4):
        e(f'v_xor_b32 v239, {db}, v236')
        e(f'v_lshl_add_u32 v239, v239, 6, v238')
        e(f'v_lshl_add_u32 v{WRA + db}, v4, 11, v239')
        e(f'v_add_u32 v{WRA + 4 + db}, {LDS_V}, v{WRA + db}')
        e(f'v_lshl_add_u32 v{VR + db}, v4, 10, v239')
        e(f'v_add_u32 v{VR + db}, {LDS_V}, v{VR + db}')
    for ks in range(8):
        e(f'v_add_u32 v239, {2 * ks}, v4')
        e('v_xor_b32 v239, v239, v3')
        e('v_lshlrev_b32 v239, 4, v239')
        e(f'v_lshl_add_u32 v{KR + ks}, v5, 8, v239')
    for p in range(4):
        e(f'v_add_u32 v239, {4 * p}, v2')
        e('v_xor_b32 v239, v239, v3')
        e('v_lshlrev_b32 v239, 4, v239')
        e('v_lshl_add_u32 v239, v2, 8, v239')
        e(f'v_add_u32 v{DK + p}, s{sW4K}, v239')
    e(f'v_lshlrev_b32 v{VMD}, 6, v4')
    e(f'v_add_u32 v{VMD}, {LDS_MOD}, v{VMD}')
    e(f's_mov_b32 s{sThr}, {f32(THRESH)}')

    def w_reads(ks):
        c = ks // 4
        slot = chunk_slot[c]
        base = WRA + 4 if slot >= LDS_V else WRA
        off0 = (slot % 65536) + (ks % 4) * 16 * 256
        out = []
        for db in range(4):
            for t in range(2):
                r = WF + (ks % 2) * 16 + db * 4 + t * 2
                out.append((COST['ds'], lambda r=r, db=db, t=t: e(f'ds_read_b64_tr_b16 a[{r}:{r + 1}], v{base + db} offset:{off0 + t * 1024}', ('w', ks))))
        return out

    def ss_reads(ks):
        out = []
        for j in range(4):
            r = SS + (ks % 2) * 16 + 4 * j
            out.append((COST['ds'], lambda r=r, j=j: e(f'ds_read_b128 v[{r}:{r + 3}], v{VMD} offset:{ks * 128 + j * 16}', ('ss', ks))))
        return out

    def xform(ks):
        out = []
        sb = SS + (ks % 2) * 16
        for qb in range(2):
            x = xreg(ks, qb)
            for p in range(4):
                t = FT + (qb * 4 + p) * 2
                out.append((1, lambda x=x, p=p, t=t: e(f'v_fma_mix_f32 v{t}, v{x + p}, v{sb + 2 * p}, v{sb + 8 + 2 * p} op_sel_hi:[1,0,0]')))
                out.append((1, lambda x=x, p=p, t=t: e(f'v_fma_mix_f32 v{t + 1}, v{x + p}, v{sb + 2 * p + 1}, v{sb + 8 + 2 * p + 1} op_sel:[1,0,0] op_sel_hi:[1,0,0]')))
                h = H + (ks % 2) * 8 + qb * 4 + p
                out.append((1, lambda t=t, h=h: e(f'v_cvt_pk_bf16_f32 v{h}, v{t}, v{t + 1}')))
        return out

    def chunk_barrier(c):
        stamp(k, 1)
        k.wait(vm=[('wq', c)])
        e('s_barrier')
        stamp(k, 2)

    def kv_dma(which, tile):
        out = []
        slot = tile % 4
        for p in range(4):
            g = []
            if p == 0:
                g.append((1, lambda: e(f's_add_u32 m0, s{sW4K}, {(LDS_K if which == "K" else LDS_V) + slot * 16384}')))
                g.append((1, lambda: e(f's_mov_b32 s{sT0}, {tile * 16384}')))
            if which == 'K':
                g.append((COST['dma'], lambda p=p: e(f'buffer_load_dwordx4 v{DK + p}, s[{sK}:{sK + 3}], s{sT0} offen offset:{p * 1024} lds', ('K', tile))))
            else:
                g.append((COST['dma'], lambda p=p: e(f'buffer_load_dwordx4 v{DV}, s[{sV}:{sV + 3}], s{sT0} offen offset:{p * 1024} lds', ('V', tile))))
            out.append(g)
        return out

    todo = []
    WL = opts.get('wlead', 0)
    seq = []
    for c in range(NPRE, 8 + WL):
        if c - WL < NPRE + 0 and c < 8 and False:
            pass
    wn = NPRE; xn = NPX
    while wn < 8 or xn < 8:
        if wn < 8 and wn <= xn + WL:
            todo += [(0, g) for g in wq_dma(wn)]; wn += 1
        else:
            for ks in range(4 * xn, 4 * xn + 4):
                todo += [(ks - 16, x_load(ks, 0)), (ks - 16, x_load(ks, 1))]
            xn += 1
    todo += [(4, g) for g in kv_dma('K', 0)] + [(8, g) for g in kv_dma('K', 1)] + [(12, g) for g in kv_dma('V', 0)]
    RATE = opts.get('rate', 4)

    def refill(ks):
        out = []
        while todo and len(out) < RATE and todo[0][0] <= ks:
            out.append(todo.pop(0)[1])
        return out

    gemm256(k, dict(w_reads=w_reads, ss_reads=ss_reads, xform=xform, refill=refill, chunk_barrier=chunk_barrier,
                    ACC=O, WF=WF, H=H, qx=opts.get('qx', '')))
    assert not todo

    cq = LOG2E / math.sqrt(128.0)
    e(f's_mov_b32 s3, {f32(cq)}')
    stamp(k, 3)
    k.wait(vm=[('K', 0)])
    e('s_barrier')

    def k_read(blk, ks):
        tile = blk // 2
        off = LDS_K + (tile % 4) * 16384 + (blk % 2) * 8192
        r = KF + 4 * ks
        return lambda: e(f'ds_read_b128 a[{r}:{r + 3}], v{KR + ks} offset:{off}', ('kf', ks))

    def v_read(blk, i):
        u, db, t = i // 8, (i // 2) % 4, i % 2
        tile = blk // 2
        off = (tile % 4) * 16384 + ((blk % 2) * 32 + 16 * u + 8 * t) * 256
        r = VF + (u * 4 + db) * 4 + 2 * t
        return lambda: e(f'ds_read_b64_tr_b16 a[{r}:{r + 1}], v{VR + db} offset:{off}', ('vf', i))

    for ks in range(8):
        k_read(0, ks)()
    for g in kv_dma('K', 2):
        for _, f in g: f()
    def conv(db):
        items = []
        for qb in range(2):
            acc = O + (db * 2 + qb) * 16
            t = 72 + ((db * 2 + qb) % 4) * 16
            items += [(1, lambda i=i, t=t, acc=acc: e(f'v_accvgpr_read_b32 v{t + i}, a{acc + i}')) for i in range(16)]
            items += [(1, lambda i=i, t=t: e(f'v_mul_f32 v{t + i}, s3, v{t + i}')) for i in range(16)]
            items += [(1, lambda i=i, t=t, qb=qb: e(f'v_cvt_pk_bf16_f32 v{Q + (qb * 8 + 2 * db + i // 4) * 4 + i % 4}, v{t + 2 * i}, v{t + 2 * i + 1}')) for i in range(8)]
        return items
    for _, f in conv(0): f()
    for g in kv_dma('V', 1):
        for _, f in g: f()
    NPF = 2 if opts.get('pf', 1) else 0
    RETILE = opts.get('retile', 1)
    sPF = 42
    if NPF:
        for i, (sp, nb) in enumerate(((48, 4096 * 1024), (50, 512 * 3584), (52, 512 * 3584), (54, 1792 * 1024))):
            srd(k, 80 + 4 * i, sp, sp + 1, nb)
        e(f's_lshl_b32 s{sPF}, s2, 12')
        e(f's_lshl_b32 s{sT0}, s{sW}, 10')
        e(f's_add_u32 s{sPF}, s{sPF}, s{sT0}')
        e(f'v_lshrrev_b32 v236, 2, v{VLANE}')
        e(f'v_lshlrev_b32 v236, 6, v236')
        e(f'buffer_load_dword v240, v236, s[92:95], s{sPF} offen', 'pf')

    def qk_mfmas(blk, czero=False, alt=False):
        out = []
        order = [(ks, qb) for qb in range(2) for ks in range(8)] if alt else [(ks, qb) for ks in range(8) for qb in range(2)]
        for ks, qb in order:
            if True:
                def m(ks=ks, qb=qb):
                    d = S[blk % 2] + 16 * qb
                    if ks == 0:
                        c = '0' if czero else vr(NEGM + 16 * qb, 16)
                    else:
                        c = vr(d, 16)
                    e(f'v_mfma_f32_32x32x16_bf16 {vr(d, 16)}, {ar(KF + 4 * ks, 4)}, {vr(Q + (qb * 8 + ks) * 4, 4)}, {c}')
                out.append(m)
        return out

    def pv_mfmas(blk, czero=False):
        out = []
        po = opts.get('pvo', 0)
        if po == 0:
            order = [(u, db, qb) for u in range(2) for db in range(4) for qb in range(2)]
        elif po == 1:
            order = [(u, db, qb) for u in range(2) for qb in range(2) for db in range(4)]
        else:
            order = [(u, db, qb) for db in range(4) for qb in range(2) for u in range(2)]
        for u, db, qb in order:
            if True:
                if True:
                    def m(u=u, db=db, qb=qb):
                        acc = O + (db * 2 + qb) * 16
                        c = '0' if (czero and u == 0) else ar(acc, 16)
                        e(f'v_mfma_f32_32x32x16_bf16 {ar(acc, 16)}, {ar(VF + (u * 4 + db) * 4, 4)}, {vr(P[blk % 2] + (qb * 2 + u) * 4, 4)}, {c}')
                    out.append(m)
        return out

    def softmax_stream(blk):
        sb = S[blk % 2]; pb = P[blk % 2]
        items = []
        pend = []
        n = 0
        for qb in range(2):
            for i in range(8):
                t = ET + (n % 4) * 2
                r = sb + qb * 16 + 2 * i
                a = [(COST['exp'], lambda t=t, r=r: e(f'v_exp_f32 v{t}, v{r}')),
                     (COST['exp'], lambda t=t, r=r: e(f'v_exp_f32 v{t + 1}, v{r + 1}'))]
                if 'E' in opts.get('x', ''):
                    a = [(COST['exp'], lambda t=t, r=r: e(f'v_mov_b32 v{t}, 0')), (COST['exp'], lambda t=t, r=r: e(f'v_mov_b32 v{t + 1}, 0'))]
                if i == 0:
                    c = [(1, lambda t=t, qb=qb: e(f'v_add_f32 v{LS[qb]}, v{t}, v{t + 1}')), None]
                else:
                    c = [(1, lambda t=t, qb=qb: e(f'v_add_f32 v{LS[qb]}, v{LS[qb]}, v{t}')),
                         (1, lambda t=t, qb=qb: e(f'v_add_f32 v{LS[qb]}, v{LS[qb]}, v{t + 1}'))]
                if 'A' in opts.get('x', '') and i > 0:
                    c = [None, None]
                pd = pb + (qb * 2 + i // 4) * 4 + i % 4
                c.append((1, lambda t=t, pd=pd: e(f'v_cvt_pk_bf16_f32 v{pd}, v{t}, v{t + 1}')))
                items.append(a[0])
                if pend and pend[0]: items.append(pend[0])
                items.append(a[1])
                for x in pend[1:]:
                    if x: items.append(x)
                pend = c
                n += 1
        for x in pend:
            if x: items.append(x)
        return items

    stubs = []

    def check_items(blk):
        lab = k.newlabel('slow'); ret = k.newlabel('ret')
        stubs.append((lab, ret, blk % 2))

        def br():
            e(f's_cbranch_vccnz {lab}')
            k.label(ret)
        return [(1, lambda: e(f'v_max_f32 v{TMP}, v{LS[0]}, v{LS[1]}')),
                (1, lambda: e(f'v_cmp_lt_f32 vcc, s{sThr}, v{TMP}')),
                (1, br),
                (1, lambda: e(f'v_add_f32 v{L[0]}, v{L[0]}, v{LS[0]}')),
                (1, lambda: e(f'v_add_f32 v{L[1]}, v{L[1]}, v{LS[1]}'))]

    KFALL = [('kf', i) for i in range(8)]
    VFALL = [('vf', i) for i in range(16)]
    mf = qk_mfmas(0, czero=True)
    k.wait(lg=KFALL)
    for db in range(4):
        fx = {}
        for ks in (2 * db - 1, 2 * db):
            if ks >= 0:
                fx.setdefault(0 if ks < 2 * db else 2, []).append((COST['ds'], k_read(1, ks), 'ds'))
        if db == 3:
            fx.setdefault(3, []).append((COST['ds'], k_read(1, 7), 'ds'))
        schedule(k, mf[4 * db:4 * db + 4], fx, conv(db + 1) if db < 3 else [])
    for qb in range(2):
        sb = S[0] + 16 * qb
        e(f'v_max3_f32 v{TMP}, v{sb}, v{sb + 1}, v{sb + 2}')
        for i in range(3, 15, 2):
            e(f'v_max3_f32 v{TMP}, v{TMP}, v{sb + i}, v{sb + i + 1}')
        e(f'v_max_f32 v{TMP}, v{TMP}, v{sb + 15}')
        e(f'v_mov_b32 v{TMP + 1}, v{TMP}')
        e(f'v_permlane32_swap_b32 v{TMP}, v{TMP + 1}')
        e(f'v_max_f32 v{TMP}, v{TMP}, v{TMP + 1}')
        e(f'v_add_f32 v{TMP}, {f32(BIAS)}, v{TMP}')
        e(f'v_sub_f32 v{NEGM + 16 * qb}, 0, v{TMP}')
        for i in range(1, 16):
            e(f'v_mov_b32 v{NEGM + 16 * qb + i}, v{NEGM + 16 * qb}')
        for i in range(16):
            e(f'v_sub_f32 v{sb + i}, v{sb + i}, v{TMP}')
        e(f'v_mov_b32 v{L[qb]}, 0')
    e(f's_mov_b32 s{sKoff}, {3 * 16384}')
    e(f's_mov_b32 s{sVoff}, {2 * 16384}')
    e(f's_mov_b32 s{sCnt}, 8')

    def step(b, do_qk=True, do_sm=True, do_pv=True, pv_zero=False, do_kread=True, do_dma=True):
        mf = []
        fx = {}
        nq = 0
        X = opts.get('x', '')
        if 'D' in X: do_dma = False
        if 'S' in X: do_sm = False
        if do_qk:
            mf += qk_mfmas(b + 1, alt=opts.get('qko', 0) and do_pv); nq = 16
        if do_pv:
            mf += pv_mfmas(b - 1, czero=pv_zero)
        n = len(mf)
        caps = {}
        full = do_qk and do_pv
        if do_pv and 'L' not in X:
            if do_qk:
                for i in range(16):
                    fx.setdefault(i // opts.get('vper', 2), []).append((COST['ds'], v_read(b - 1, i), 'ds'))
            else:
                for i in range(16):
                    v_read(b - 1, i)()
                k.wait(lg=VFALL)
        bar = b % 2 == 0 and do_kread and 'B' not in X
        gb = 15 if full else 0
        if bar:
            vmn = 8 + (NPF if b >= 2 else NPF // 2)

            def wt():
                t = k.wait_text(lg=VFALL) if full else None
                e(f's_waitcnt vmcnt({vmn})' + (t[9:] if t else ''))
            fx.setdefault(gb, []).append((0, wt, 'wait'))
            fx.setdefault(gb, []).append((6, lambda: e('s_barrier'), 'bar'))
            caps[gb + 1] = opts.get('cap_ab', 3)
            if RETILE and b == 14:
                def hook():
                    e(f's_cmp_le_u32 s{sCnt}, 4')
                    e('s_cbranch_scc1 attn_copy')
                    k.label('attn_copy_ret')
                fx.setdefault(gb + 1, []).append((2, hook, 'dma'))
        elif full:
            fx.setdefault(15, []).append((0, lambda: k.wait(lg=VFALL), 'wait'))
        if do_kread and 'L' not in X:
            for ks in range(8):
                g = (opts.get('kg0', 17) + ks // opts.get('kper', 2)) if full else min(2 * ks + 2, 15)
                fx.setdefault(g, []).append((COST['ds'], k_read(b + 2, ks), 'ds'))
            if full:
                fx.setdefault(n - 1, []).append((0, lambda: k.wait(lg=KFALL), 'wait'))
        if do_dma:
            isK = (b % 2 == 0)
            I = (b + 2) // 2 if isK else (b + 1) // 2
            if isK:
                slot = LDS_K + ((I + 2) % 4) * 16384; so = sKoff
            else:
                slot = LDS_V + ((I + 1) % 4) * 16384; so = sVoff
            gs = opts.get('dgs', [22, 24, 26, 28]) if full else [3, 5, 7, 9]
            fx.setdefault(gs[0] - 1, []).append((1, lambda: e(f's_add_u32 m0, s{sW4K}, {slot}'), 'end'))
            for p in range(4):
                va = DK + p if isK else DV
                sd = sK if isK else sV
                fx.setdefault(gs[p], []).append((COST['dma'], lambda p=p, va=va, sd=sd: e(
                    f'buffer_load_dwordx4 v{va}, s[{sd}:{sd + 3}], s{so} offen offset:{p * 1024} lds', 'kv'), 'dma'))
            fx.setdefault(gs[3] + 1, []).append((1, lambda: e(f's_add_u32 s{so}, s{so}, 16384'), 'end'))
            if NPF and not isK:
                sp = 80 + 4 * ((b // 2) % 4)
                fx.setdefault(30, []).append((COST['dma'], lambda: e(f'buffer_load_dword v240, v236, s[{sp}:{sp + 3}], s{sPF} offen', 'pf'), 'dma'))
                if b % 8 == 7:
                    fx.setdefault(30, []).append((1, lambda: e(f's_add_u32 s{sPF}, s{sPF}, 0x100000'), 'end'))
        st = []
        if do_sm:
            st = softmax_stream(b)
        ck = check_items(b) if do_sm else []
        if do_sm and opts.get('ck2', 1):
            st = st + ck[:2]; ck = ck[2:]
            caps[n - 2] = opts.get('cap_l', 5)
        schedule(k, mf, fx, st, last_gap=n - 2, caps=caps, cap=opts.get('gcap', GAPCAP))
        if do_kread and not full:
            k.wait(lg=KFALL)
        for _, f in ck: f()

    stamp(k, 4)
    k.wait(lg=KFALL)
    step(0, do_pv=False)
    step(1, pv_zero=True)
    e('s_branch attn_ent')
    e('.p2align 6')
    k.label('attn_loop')
    for pos in range(8):
        if pos == 2:
            k.label('attn_ent')
        step(8 + pos)
        if pos == 6:
            e(f's_sub_u32 s{sCnt}, s{sCnt}, 1')
            e(f's_cmp_eq_u32 s{sCnt}, 0')
            e('s_cbranch_scc1 attn_tail')
            if opts.get('refresh'):
                mask = sum(1 << c for c in opts['refresh'])
                e(f's_lshr_b32 s{sT0}, {mask}, s{sCnt}')
                e(f's_bitcmp1_b32 s{sT0}, 0')
                e(f's_cselect_b32 s{sThr}, {f32(-1.0)}, s{sThr}')
        if pos == 7 and opts.get('refresh'):
            e(f's_mov_b32 s{sThr}, {f32(THRESH)}')
    e('s_branch attn_loop')
    k.label('attn_tail')
    k.lgq = []
    if opts.get('t23', 0):
        e(f'v_lshrrev_b32 v238, 2, v{VLANE}')
        e('v_lshlrev_b32 v238, 10, v238')
        e(f'v_and_b32 v239, 3, v{VLANE}')
        e('v_lshl_add_u32 v238, v239, 7, v238')
        e(f's_lshr_b32 s{sT0}, s2, 3')
        e(f's_lshl_b32 s{sT0}, s{sT0}, 2')
        e(f's_add_u32 s{sT0}, s{sT0}, s{sW}')
        e(f's_lshl_b32 s{sT0}, s{sT0}, 15')
        e(f's_and_b32 s{sT1}, s2, 1')
        e(f's_lshl_b32 s{sT1}, s{sT1}, 9')
        e(f's_add_u32 s{sT0}, s{sT0}, s{sT1}')
        e(f'buffer_load_dword v237, v238, s[80:83], s{sT0} offen', 'pf')
        e(f's_add_u32 s{sT0}, s{sT0}, 16384')
        e(f'buffer_load_dword v239, v238, s[80:83], s{sT0} offen', 'pf')
    step(63, do_qk=False, do_kread=False, do_dma=False)
    step(64, do_qk=False, do_sm=False, do_kread=False, do_dma=False)

    stamp(k, 5)
    for qb in range(2):
        e(f'v_mov_b32 v{TMP}, v{L[qb]}')
        e(f'v_permlane32_swap_b32 v{L[qb]}, v{TMP}')
        e(f'v_add_f32 v{L[qb]}, v{L[qb]}, v{TMP}')
        e(f'v_rcp_f32 v{L[qb]}, v{L[qb]}')
    n = 0
    for qb in range(2):
        e(f's_add_u32 s{sT0}, s{sOb}, {qb * 262144}')
        e(f's_add_u32 s{sT1}, s{sOb}, {qb * 262144 + 4096}')
        for db in range(4):
            for u in range(2):
                acc = O + (db * 2 + qb) * 16 + 8 * u
                t = 8 + (n % 4) * 16; n += 1
                for i in range(8):
                    e(f'v_accvgpr_read_b32 v{t + i}, a{acc + i}')
                for i in range(8):
                    e(f'v_mul_f32 v{t + i}, v{t + i}, v{L[qb]}')
                for i in range(4):
                    e(f'v_cvt_pk_bf16_f32 v{t + 8 + i}, v{t + 2 * i}, v{t + 2 * i + 1}')
                kk = 2 * db + u
                so = sT0 if kk < 4 else sT1
                e(f'buffer_store_dwordx4 v[{t + 8}:{t + 11}], v{VL16}, s[{sWS}:{sWS + 3}], s{so} offen offset:{(kk % 4) * 1024}{opts.get("ost", " sc1")}')
    stamp(k, 6)
    stamp_flush(k, 7, sWS, 1)
    k.label('attn_end')
    e('s_endpgm')

    if RETILE:
        CP = 192
        k.label('attn_copy')
        e(f's_cmp_le_u32 s{sCnt}, 2')
        e('s_cbranch_scc1 attn_copy_code' if opts.get('cpf2', 0) else 's_cbranch_scc1 attn_copy_ret')
        e(f's_lshl_b32 s{sT0}, s2, 2')
        e(f's_add_u32 s{sT0}, s{sT0}, s{sW}')
        e(f's_cmp_eq_u32 s{sCnt}, 3')
        e('s_cbranch_scc1 attn_copy_st')
        e(f's_lshl_b32 s{sT1}, s{sT0}, 12')
        for i in range(4):
            e(f'buffer_load_dwordx4 a[{CP + 4 * i}:{CP + 4 * i + 3}], v{VL16}, s[80:83], s{sT1} offen offset:{i * 1024}')
        e(f's_lshl_b32 s{sT1}, s{sT0}, 11')
        for i in range(2):
            e(f'buffer_load_dwordx4 a[{CP + 16 + 4 * i}:{CP + 19 + 4 * i}], v{VL16}, s[92:95], s{sT1} offen offset:{i * 1024}')
        e('s_branch attn_copy_ret')
        k.label('attn_copy_st')
        e(f'v_lshrrev_b32 v238, 3, v{VLANE}')
        e(f'v_and_b32 v239, 7, v{VLANE}')
        e('v_lshlrev_b32 v239, 4, v239')
        SK = opts.get('sk', 0)
        if SK:
            e(f'v_lshrrev_b32 v237, 4, v{VLANE}')
            e('v_lshlrev_b32 v237, 20, v237')
            e(f'v_and_b32 v241, 15, v{VLANE}')
            e('v_lshl_add_u32 v237, v241, 4, v237')
        else:
            e('v_lshl_add_u32 v237, v238, 19, v239')
        e('v_lshl_add_u32 v238, v238, 18, v239')
        e(f's_lshl_b32 s{sT1}, s{sT0}, {10 if SK else 9}')
        e(f's_add_u32 s{sT1}, s{sT1}, {WS_WOT}')
        for i in range(4):
            e(f'buffer_store_dwordx4 a[{CP + 4 * i}:{CP + 4 * i + 3}], v237, s[{sWS}:{sWS + 3}], s{sT1} offen offset:{i * (256 if SK else 128)} sc1')
        e(f's_lshl_b32 s{sT1}, s{sT0}, 8')
        e(f's_add_u32 s{sT1}, s{sT1}, {WS_W2T}')
        for i in range(2):
            e(f'buffer_store_dwordx4 a[{CP + 16 + 4 * i}:{CP + 19 + 4 * i}], v238, s[{sWS}:{sWS + 3}], s{sT1} offen offset:{i * 128} sc1')
        e('s_branch attn_copy_ret')
        if opts.get('cpf2', 0):
            k.label('attn_copy_code')
            e(f's_lshr_b32 s{sT0}, s2, 3')
            e(f's_lshl_b32 s{sT0}, s{sT0}, 2')
            e(f's_add_u32 s{sT0}, s{sT0}, s{sW}')
            e(f's_cmp_ge_u32 s{sT0}, 1')
            e('s_cbranch_scc1 attn_copy_ret')
            code_touch(k, 242, 46, sT0, VLANE, 'attn_end', 'code_end')
            e('s_branch attn_copy_ret')

    for lab, ret, par in stubs:
        k.label(lab)
        e(f's_call_b64 s[{sLink}:{sLink + 1}], attn_slow{par}')
        e(f's_branch {ret}')
    for par in range(2):
        k.label(f'attn_slow{par}')
        e('s_nop 15'); e('s_nop 15')
        D0 = [TMP + 2, TMP + 3]
        for qb in range(2):
            sb = S[par] + 16 * qb; sn = S[1 - par] + 16 * qb
            e(f'v_max3_f32 v{TMP}, v{sb}, v{sb + 1}, v{sb + 2}')
            for i in range(3, 15, 2):
                e(f'v_max3_f32 v{TMP}, v{TMP}, v{sb + i}, v{sb + i + 1}')
            e(f'v_max_f32 v{TMP}, v{TMP}, v{sb + 15}')
            e(f'v_mov_b32 v{TMP + 1}, v{TMP}')
            e(f'v_permlane32_swap_b32 v{TMP}, v{TMP + 1}')
            e(f'v_max_f32 v{TMP}, v{TMP}, v{TMP + 1}')
            if opts.get('refresh'):
                e(f'v_mov_b32 v{ET}, v{L[qb]}')
                e(f'v_mov_b32 v{ET + 1}, v{L[qb]}')
                e(f'v_permlane32_swap_b32 v{ET}, v{ET + 1}')
                e(f'v_add_f32 v{ET}, v{ET}, v{ET + 1}')
                e(f'v_log_f32 v{ET}, v{ET}')
                e(f'v_max_f32 v{TMP}, v{TMP}, v{ET}')
            e(f'v_add_f32 v{TMP}, {f32(BIAS)}, v{TMP}')
            e(f'v_max_f32 v{TMP}, 0, v{TMP}')
            e(f'v_ceil_f32 v{TMP}, v{TMP}')
            e(f'v_sub_f32 v{TMP + 1}, 0, v{TMP}')
            e(f'v_cvt_i32_f32 v{D0[qb]}, v{TMP + 1}')
            for i in range(16):
                e(f'v_sub_f32 v{NEGM + 16 * qb + i}, v{NEGM + 16 * qb + i}, v{TMP}')
                e(f'v_sub_f32 v{sb + i}, v{sb + i}, v{TMP}')
                e(f'v_sub_f32 v{sn + i}, v{sn + i}, v{TMP}')
            e(f'v_ldexp_f32 v{L[qb]}, v{L[qb]}, v{D0[qb]}')
            for db in range(4):
                acc = O + (db * 2 + qb) * 16
                for i in range(16):
                    t = ET + i % 8
                    e(f'v_accvgpr_read_b32 v{t}, a{acc + i}')
                    e(f'v_ldexp_f32 v{t}, v{t}, v{D0[qb]}')
                    e(f'v_accvgpr_write_b32 a{acc + i}, v{t}')
        for _, f in softmax_stream(par): f()
        e('s_nop 3')
        e(f's_setpc_b64 s[{sLink}:{sLink + 1}]')
    return k, 'grid=(256,1,1) block=(256,1,1) lds=135168'


sWS_T = 12
sWV_T = 32
X1KEEP = 64


def lane_id(k, v):
    k.e(f'v_mbcnt_lo_u32_b32 v{v}, -1, 0')
    k.e(f'v_mbcnt_hi_u32_b32 v{v}, -1, v{v}')


def signal(k, vt, soff, nyounger):
    e = k.e
    e(f's_waitcnt vmcnt({nyounger})')
    e(f'v_mov_b32 v{vt}, 0')
    e(f'v_mov_b32 v{vt + 1}, 1')
    e('s_mov_b64 exec, 1')
    e(f'buffer_store_dword v{vt + 1}, v{vt}, s[{sWS_T}:{sWS_T + 3}], s{soff} offen sc1', 'flag')
    e('s_mov_b64 exec, -1')


def poll(k, name, vt, vlane, soff, nflags, opts):
    e = k.e
    e(f's_cmp_lg_u32 s{sWV_T}, 0')
    e(f's_cbranch_scc1 {name}_go')
    e(f'v_min_u32 v{vt}, {nflags - 1}, v{vlane}')
    e(f'v_lshlrev_b32 v{vt}, 2, v{vt}')
    e('s_mov_b32 s48, 0x40000')
    k.label(f'{name}_poll')
    e(f'buffer_load_dword v{vt + 1}, v{vt}, s[{sWS_T}:{sWS_T + 3}], s{soff} offen sc1', 'poll')
    e('s_waitcnt vmcnt(0)')
    e(f'v_cmp_eq_u32 vcc, 0, v{vt + 1}')
    e(f's_cbranch_vccz {name}_go')
    e(f's_sleep {opts.get("sleep", 2)}')
    e('s_sub_u32 s48, s48, 1')
    e('s_cmp_lg_u32 s48, 0')
    e(f's_cbranch_scc1 {name}_poll')
    k.label(f'{name}_go')
    e('s_waitcnt vmcnt(0)')
    e('s_barrier')


BSLOT = [(0, 32768), (65536, 98304), (16384, 49152), (81920, 114688)]


def early_b(k):
    e = k.e
    items = []

    def setup():
        lane_id(k, 251)
        e('v_lshrrev_b32 v252, 4, v251')
        e('v_and_b32 v253, 15, v251')
        e('v_lshlrev_b32 v250, 2, v252')
        e('v_xor_b32 v250, v250, v253')
        e('v_lshlrev_b32 v250, 4, v250')
        e('v_mul_u32_u24 v252, 3584, v252')
        e('v_add_u32 v250, v250, v252')
        e(f's_and_b32 s54, s{sWV_T}, 1')
        e('s_cmp_eq_u32 s54, 0')
        e('s_cselect_b32 s24, s56, s58')
        e('s_cselect_b32 s25, s57, s59')
        e('s_and_b32 s25, s25, 0xffff')
        e(f's_mov_b32 s26, {512 * 3584}')
        e('s_mov_b32 s27, 0x00020000')
        e(f's_lshr_b32 s54, s{sWV_T}, 1')
        e(f's_mul_i32 s54, s54, {64 * 3584}')
        e('s_lshl_b32 s53, s51, 8')
        e('s_add_u32 s54, s54, s53')
        e(f's_lshl_b32 s53, s{sWV_T}, 15')
    items.append(setup)
    for p in range(16):
        def f(p=p):
            e(f's_add_u32 m0, s53, {p * 1024}')
            e(f's_add_u32 s52, s54, {p * 4 * 3584}')
            e('buffer_load_dwordx4 v250, s[24:27], s52 offen lds', ('wq', 0))
        items.append(f)
    return items


def early_c(k, n):
    e = k.e
    items = []

    def setup():
        lane_id(k, 252)
        e('v_lshrrev_b32 v253, 3, v252')
        e('v_lshlrev_b32 v251, 1, v253')
        e('v_and_b32 v251, 4, v251')
        e('v_and_b32 v252, 7, v252')
        e('v_xor_b32 v251, v251, v252')
        e('v_lshlrev_b32 v251, 4, v251')
        e('v_lshl_add_u32 v251, v253, 7, v251')
        e(f's_lshl_b32 s49, s{sWV_T}, 15')
        e('s_and_b32 s55, s2, 1')
        e('s_lshl_b32 s55, s55, 2')
        e('s_lshr_b32 s47, s2, 6')
        e('s_add_u32 s55, s55, s47')
        e('s_lshl_b32 s55, s55, 18')
        e(f's_mul_i32 s47, s{sWV_T}, {28 * 2048}')
        e('s_add_u32 s55, s55, s47')
        e(f's_add_u32 s55, s55, {WS_W2T}')
    items.append(setup)
    for ks in range(n):
        def f(ks=ks):
            e(f's_add_u32 m0, s49, {ks * 2048}')
            e('s_nop 0')
            e(f'buffer_load_dwordx4 v251, s[{sWS_T}:{sWS_T + 3}], s55 offen lds', ('g', ks))
            e(f'buffer_load_dwordx4 v251, s[{sWS_T}:{sWS_T + 3}], s55 offen offset:1024 lds', ('g', ks))
            e('s_add_u32 s55, s55, 2048')
        items.append(f)
    return items


def phase_gemm64(k, which, opts, dep, out_flag, keep_x1, sbase, early=None):
    e = k.e
    name = 'pa' if which == 'wo' else 'pc'
    NKS = 256 if which == 'wo' else 112
    KW = NKS // 4
    D = 16 if which == 'wo' else 14
    NIT = KW // D
    WS_XIN = WS_O if which == 'wo' else WS_HH
    sWS, sG = sWS_T, 16
    sWv, sXo, sWo, sT0, sLb, sCnt, sXo1 = sWV_T, 33, 34, 35, 37, 38, 39
    ACC = 8
    XF = 72
    WFr = 200
    VL16, VDW, VWR = 216, 217, 218
    EP = 220
    XA = ' sc1' if dep else ''
    SA = ' sc1' if out_flag else ''
    POFF = 16384
    if dep:
        VDW, sWo, sLb = 251, 55, 49
    e('s_bfe_u32 s28, s2, 0x20001')
    e('s_lshl_b32 s28, s28, 3')
    e('s_bfe_u32 s30, s2, 0x30003')
    e('s_add_u32 s28, s28, s30')
    e('s_and_b32 s29, s2, 1')
    e('s_lshl_b32 s29, s29, 2')
    e('s_lshr_b32 s30, s2, 6')
    e('s_add_u32 s29, s29, s30')
    lane_id(k, 2)
    e(f'v_lshlrev_b32 v{VL16}, 4, v2')
    if not dep:
        e('v_lshrrev_b32 v3, 3, v2')
        e('v_and_b32 v4, 7, v2')
        e('v_lshlrev_b32 v5, 1, v3')
        e('v_and_b32 v5, 4, v5')
        e('v_xor_b32 v4, v4, v5')
        e('v_lshlrev_b32 v4, 4, v4')
        e(f'v_lshl_add_u32 v{VDW}, v3, 7, v4')
        e(f's_lshl_b32 s{sLb}, s{sWv}, 15')
    e(f's_mul_i32 s{sXo}, s28, {2 * NKS * 1024}')
    e(f's_mul_i32 s{sT0}, s{sWv}, {KW * 1024}')
    e(f's_add_u32 s{sXo}, s{sXo}, s{sT0}')
    e(f's_add_u32 s{sXo}, s{sXo}, {WS_XIN}')
    e(f's_add_u32 s{sXo1}, s{sXo}, {NKS * 1024}')
    if not dep:
        e(f's_mul_i32 s{sWo}, s{sWv}, {KW * 2048}')
        e(f's_lshl_b32 s{sT0}, s29, {19 if which == "wo" else 18}')
        e(f's_add_u32 s{sWo}, s{sWo}, s{sT0}')
        e(f's_add_u32 s{sWo}, s{sWo}, {WS_WOT if which == "wo" else WS_W2T}')
    e(f's_lshr_b32 s40, s{sWv}, 1')
    e(f's_and_b32 s47, s{sWv}, 1')
    e('s_lshl_b32 s41, s29, 6')
    e('s_lshl_b32 s42, s40, 5')
    e('s_add_u32 s41, s41, s42')
    e('s_lshl_b32 s42, s28, 6')
    e('s_lshl_b32 s43, s47, 5')
    e('s_add_u32 s42, s42, s43')
    e('v_lshrrev_b32 v4, 5, v2')
    e('v_and_b32 v5, 31, v2')
    e('v_add_u32 v6, s42, v5')
    e('v_lshlrev_b32 v6, 10, v6')
    e('v_lshl_add_u32 v6, v4, 4, v6')
    e('s_lshl_b32 s43, s41, 1')
    e('v_add_u32 v6, s43, v6')
    e('s_lshl_b32 s43, s42, 10')
    e('s_lshl_b32 s44, s41, 6')
    e('s_add_u32 s43, s43, s44')
    e(f's_add_u32 s43, s43, {WS_X1}')
    e('v_lshlrev_b32 v7, 5, v4')
    e('s_lshl_b32 s44, s41, 2')
    e(f's_add_u32 s44, s44, {WS_GA if which == "wo" else WS_GB}')
    yield 'setup'
    sp = 60 if which == 'wo' else 62
    srd(k, sG, sp, sp + 1, 2048 * 1024)

    def loads(ks):
        sl = ks % D
        r0 = XF + sl * 8
        return dict(
            m0=lambda: e(f's_add_u32 m0, s{sLb}, {sl * 2048}'),
            w0=lambda: e(f'buffer_load_dwordx4 v{VDW}, s[{sWS}:{sWS + 3}], s{sWo} offen lds', ('g', ks)),
            w1=lambda: e(f'buffer_load_dwordx4 v{VDW}, s[{sWS}:{sWS + 3}], s{sWo} offen offset:1024 lds', ('g', ks)),
            x0=lambda: e(f'buffer_load_dwordx4 v[{r0}:{r0 + 3}], v{VL16}, s[{sWS}:{sWS + 3}], s{sXo} offen offset:{(ks % 2) * 1024}{XA}{opts.get("xa", "")}', ('g', ks)),
            x1=lambda: e(f'buffer_load_dwordx4 v[{r0 + 4}:{r0 + 7}], v{VL16}, s[{sWS}:{sWS + 3}], s{sXo1} offen offset:{(ks % 2) * 1024}{XA}{opts.get("xa", "")}', ('g', ks)),
            uw=lambda: e(f's_add_u32 s{sWo}, s{sWo}, 2048'),
            ux=lambda: (e(f's_add_u32 s{sXo}, s{sXo}, 2048'), e(f's_add_u32 s{sXo1}, s{sXo1}, 2048')) if ks % 2 == 1 else None)

    def misc_setup():
        e('v_bfe_u32 v3, v2, 2, 2')
        e('v_lshl_add_u32 v1, v4, 3, v3')
        e('v_lshlrev_b32 v1, 7, v1')
        e(f'v_bfe_u32 v{VWR}, v2, 4, 1')
        e(f'v_lshl_add_u32 v1, v{VWR}, 5, v1')
        e(f'v_and_b32 v{VWR}, 1, v2')
        e(f'v_lshl_add_u32 v1, v{VWR}, 4, v1')
        e(f'v_bfe_u32 v{VWR}, v2, 1, 1')
        e(f'v_lshl_add_u32 v1, v{VWR}, 3, v1')
        e(f'v_add_u32 v1, s{sLb}, v1')
        e('v_lshrrev_b32 v3, 1, v3')
        e(f'v_lshl_add_u32 v{VWR}, v3, 6, v1')
        e('v_xor_b32 v3, 1, v3')
        e(f'v_lshl_add_u32 v{VWR + 1}, v3, 6, v1')
        for i in range(64):
            e(f'v_mov_b32 v{ACC + i}, 0')
        e(f's_mov_b32 s{sCnt}, {NIT - 1}')

    for u in range(2):
        e(f'buffer_load_dwordx4 v[{EP + 8 * u}:{EP + 8 * u + 3}], v7, s[{sWS}:{sWS + 3}], s44 offen offset:{64 * u}', 'ep')
        e(f'buffer_load_dwordx4 v[{EP + 8 * u + 4}:{EP + 8 * u + 7}], v7, s[{sWS}:{sWS + 3}], s44 offen offset:{64 * u + 16}', 'ep')
        if which == 'wo':
            e(f'buffer_load_dwordx4 v[{EP + 16 + 4 * u}:{EP + 19 + 4 * u}], v6, s[{sG}:{sG + 3}], 0 offen offset:{32 * u}', 'ep')
        elif not keep_x1:
            e(f'buffer_load_dwordx4 v[{EP + 16 + 4 * u}:{EP + 19 + 4 * u}], v{VL16}, s[{sWS}:{sWS + 3}], s43 offen offset:{1024 * u}', 'ep')
    if dep:
        assert NIT == 2
        NWP = D - 1
        yield 'prefetched'
        misc_setup()
        e('s_lshr_b32 s45, s28, 1')
        e('s_lshl_b32 s45, s45, 8')
        e(f's_add_u32 s45, s45, {WS_FB}')
        stamp(k, sbase)
        poll(k, name, ACC + 64 + 120, 2, 45, 56, opts)
        sbase += 1
        stamp(k, sbase)
        for ks in range(D - 1):
            L = loads(ks)
            for nm in (('x0', 'x1', 'ux') if ks < NWP else ('m0', 'x0', 'w0', 'w1', 'x1', 'uw', 'ux')):
                L[nm]()
    else:
        for ks in range(D - 1):
            L = loads(ks)
            for nm in ('m0', 'x0', 'w0', 'w1', 'x1', 'uw', 'ux'):
                L[nm]()
            if ks == 1:
                misc_setup()
        yield 'prefetched'
        stamp(k, sbase)

    def wreads(ks):
        sl = ks % D
        for nb in range(2):
            for t in range(2):
                r = WFr + (ks % 2) * 8 + nb * 4 + t * 2
                e(f'ds_read_b64_tr_b16 v[{r}:{r + 1}], v{VWR + nb} offset:{sl * 2048 + t * 512}', ('wf', ks))

    def kstep(ks, refill, last=False, extra=()):
        sl = ks % D
        L = loads(ks + D - 1) if refill else None
        for i in range(4):
            nb, mb = i // 2, i % 2
            acc = ACC + (nb * 2 + mb) * 16
            if 'M' not in opts.get('z', ''):
                e(f'v_mfma_f32_32x32x16_bf16 {vr(acc, 16)}, {vr(WFr + (ks % 2) * 8 + nb * 4, 4)}, {vr(XF + (sl * 2 + mb) * 4, 4)}, {vr(acc, 16)}')
            if i == 0:
                if not last:
                    k.wait(vm=[('g', ks + 1)])
                    if 'R' not in opts.get('z', ''): wreads(ks + 1)
                if L: L['m0']()
            elif i == 1 and L:
                L['x0'](); L['w0']()
            elif i == 2 and L:
                L['w1'](); L['x1'](); L['uw'](); L['ux']()
            elif i == 3 and not last:
                k.wait(lg=[('wf', ks + 1)])
            if i in (1, 2) and len(extra) >= i:
                extra[i - 1]()

    k.wait(vm=[('g', 0)])
    wreads(0)
    k.wait(lg=[('wf', 0)])
    stamp(k, sbase + 1)
    k.label(f'{name}_loop')
    for ks in range(D):
        kstep(ks, True)
    if NIT > 2:
        e(f's_sub_u32 s{sCnt}, s{sCnt}, 1')
        e(f's_cmp_lg_u32 s{sCnt}, 0')
        e(f's_cbranch_scc1 {name}_loop')
    early = list(early or [])
    for ks in range(D, 2 * D):
        ex = []
        E0 = opts.get('e0', 1)
        if early and ks == D + E0:
            ex = [early.pop(0)]
        elif early and ks > D + E0:
            ex = early[:2]; early = early[2:]
        kstep(ks, ks == D, last=(ks == 2 * D - 1), extra=ex)
    assert not early
    stamp(k, sbase + 2)
    e(f'v_add_u32 v3, s{sLb}, v{VL16}')
    for qd in range(16):
        e(f'ds_write_b128 v3, v[{ACC + 4 * qd}:{ACC + 4 * qd + 3}] offset:{POFF + qd * 1024}')
    e('s_waitcnt lgkmcnt(0)')
    e('s_barrier')
    e(f's_lshl_b32 s{sT0}, s{sWv}, 12')
    e(f'v_add_u32 v3, s{sT0}, v{VL16}')
    e(f'v_add_u32 v1, 0x10000, v3')
    RD = 72
    for w in range(4):
        a = 3 if w < 2 else 1
        for h in range(4):
            r = RD + (w * 4 + h) * 4
            e(f'ds_read_b128 v[{r}:{r + 3}], v{a} offset:{POFF + (w % 2) * 32768 + h * 1024}', ('r', w))
    for w in range(1, 4):
        k.wait(lg=[('r', w), ('r', 0)])
        for i in range(16):
            e(f'v_add_f32 v{RD + i}, v{RD + i}, v{RD + w * 16 + i}')
    if out_flag:
        e('s_barrier')
    k.wait(vm=['ep'])
    if which == 'w2' and keep_x1:
        for i in range(8):
            e(f'v_accvgpr_read_b32 v{EP + 16 + i}, a{X1KEEP + i}')
    for i in range(16):
        rbf(k, RD + i, RD + i)
    for i in range(16):
        e(f'v_mul_f32 v{RD + i}, v{RD + i}, v{EP + i}')
    for i in range(16):
        rbf(k, RD + i, RD + i)
    for i in range(16):
        src = EP + 16 + i // 2
        if i % 2 == 0:
            e(f'v_lshlrev_b32 v{RD + 16 + i}, 16, v{src}')
        else:
            e(f'v_and_b32 v{RD + 16 + i}, 0xffff0000, v{src}')
    for i in range(16):
        e(f'v_add_f32 v{RD + i}, v{RD + i}, v{RD + 16 + i}')
    for i in range(8):
        e(f'v_cvt_pk_bf16_f32 v{RD + 32 + i}, v{RD + 2 * i}, v{RD + 2 * i + 1}')
    for u in range(2):
        if which == 'w2':
            e(f'buffer_store_dwordx4 v[{RD + 32 + 4 * u}:{RD + 35 + 4 * u}], v6, s[{sG}:{sG + 3}], 0 offen offset:{32 * u}')
        else:
            e(f'buffer_store_dwordx4 v[{RD + 32 + 4 * u}:{RD + 35 + 4 * u}], v{VL16}, s[{sWS}:{sWS + 3}], s43 offen offset:{1024 * u}{SA}')
    if which == 'wo':
        if keep_x1:
            for i in range(8):
                e(f'v_accvgpr_write_b32 a{X1KEEP + i}, v{RD + 32 + i}')
        for i in range(16):
            src = RD + 32 + i // 2
            if i % 2 == 0:
                e(f'v_lshlrev_b32 v{RD + i}, 16, v{src}')
            else:
                e(f'v_and_b32 v{RD + i}, 0xffff0000, v{src}')
        A, B = RD + 16, RD + 17
        e(f'v_add_f32 v{A}, v{RD}, v{RD + 1}')
        e(f'v_mul_f32 v{B}, v{RD}, v{RD}')
        e(f'v_fmac_f32 v{B}, v{RD + 1}, v{RD + 1}')
        for i in range(2, 16):
            e(f'v_add_f32 v{A}, v{A}, v{RD + i}')
            e(f'v_fmac_f32 v{B}, v{RD + i}, v{RD + i}')
        e(f'v_mov_b32 v{A + 2}, v{A}')
        e(f'v_mov_b32 v{A + 3}, v{B}')
        e(f'v_permlane32_swap_b32 v{A}, v{A + 2}')
        e(f'v_permlane32_swap_b32 v{B}, v{A + 3}')
        e(f'v_add_f32 v{A}, v{A}, v{A + 2}')
        e(f'v_add_f32 v{B}, v{B}, v{A + 3}')
        e('s_lshl_b32 s45, s42, 7')
        e('s_lshr_b32 s46, s41, 2')
        e('s_add_u32 s45, s45, s46')
        e(f's_add_u32 s45, s45, {WS_ST}')
        e('v_lshlrev_b32 v3, 7, v5')
        e(f'buffer_store_dwordx2 v[{A}:{A + 1}], v3, s[{sWS}:{sWS + 3}], s45 offen{SA}')
        if out_flag:
            e('s_lshr_b32 s46, s28, 1')
            e('s_lshl_b32 s46, s46, 8')
            e('s_and_b32 s45, s28, 1')
            e('s_lshl_b32 s45, s45, 7')
            e('s_add_u32 s46, s46, s45')
            e('s_lshl_b32 s45, s29, 4')
            e('s_add_u32 s46, s46, s45')
            e(f's_lshl_b32 s45, s{sWv}, 2')
            e('s_add_u32 s46, s46, s45')
            e(f's_add_u32 s46, s46, {WS_FA}')
    stamp(k, sbase + 3)
    yield 'done'


def phase_ffn1(k, opts, dep, out_flag, sbase, early=None):
    e = k.e
    s1, s3_, sWS = 8, 20, sWS_T
    sW, sT0, sT1, sXb, sWo, sHb, sW4K = sWV_T, 33, 34, 35, 36, 37, 38
    ACC = 0
    XD = 12
    XR = 128
    H = 176
    SS = 184
    FT = 216
    WRA = 224
    VL16, VDW, VMD, VLANE, RS, NM = 232, 233, 234, 235, 236, 237
    T = 238
    WF = 0
    LDS_MOD = 131072
    XA = ' sc1' if dep else ''
    PURE = opts.get('sk', 0)
    if PURE:
        XD = 16; XR = 128
    e('s_and_b32 s50, s2, 1')
    e('s_lshl_b32 s50, s50, 3')
    e('s_bfe_u32 s3, s2, 0x30003')
    e('s_add_u32 s50, s50, s3')
    lane_id(k, VLANE)
    e(f'v_lshlrev_b32 v{VL16}, 4, v{VLANE}')
    e(f'v_lshrrev_b32 v{T + 1}, 4, v{VLANE}')
    e(f'v_and_b32 v{T + 2}, 15, v{VLANE}')
    e(f'v_lshlrev_b32 v{T + 3}, 2, v{T + 1}')
    e(f'v_xor_b32 v{T + 3}, v{T + 3}, v{T + 2}')
    e(f'v_lshlrev_b32 v{T + 3}, 4, v{T + 3}')
    e(f'v_mul_u32_u24 v{T + 4}, 3584, v{T + 1}')
    e(f'v_add_u32 v{VDW}, v{T + 4}, v{T + 3}')
    e(f's_lshl_b32 s{sW4K}, s{sW}, 12')
    e('s_lshl_b32 s3, s50, 2')
    e(f's_add_u32 s3, s3, s{sW}')
    e(f's_lshl_b32 s{sXb}, s3, 15')
    e(f's_add_u32 s{sXb}, s{sXb}, {WS_H2 if PURE else WS_X1}')
    e(f's_mul_i32 s{sHb}, s3, {112 * 1024}')
    e(f's_lshl_b32 s{sT0}, s51, 13')
    e(f's_add_u32 s{sHb}, s{sHb}, s{sT0}')
    e(f's_add_u32 s{sHb}, s{sHb}, {WS_HH}')
    e(f's_mul_i32 s{sWo}, s{sW}, {16 * 3584}')
    e(f's_lshl_b32 s{sT0}, s51, 8')
    e(f's_add_u32 s{sWo}, s{sWo}, s{sT0}')
    e(f'v_and_b32 v{T + 5}, 31, v{VLANE}')
    e(f'v_lshrrev_b32 v{T + 4}, 5, v{VLANE}')
    e(f'v_lshlrev_b32 v{T + 6}, 7, v{T + 5}')
    e(f'v_lshl_add_u32 v{T + 6}, v{T + 4}, 6, v{T + 6}')
    e(f's_lshl_b32 s39, s3, 12')
    e(f's_add_u32 s39, s39, {WS_ST}')
    yield 'setup'
    srd(k, s1, 56, 57, 512 * 3584)
    srd(k, s3_, 58, 59, 512 * 3584)

    def w_dma(c):
        out = []
        for mat, sd in enumerate((s1, s3_)):
            for p in range(4):
                g = []
                if p == 0:
                    g.append((1, lambda mat=mat: e(f's_add_u32 m0, s{sW4K}, {BSLOT[c % 4][mat]}')))
                g.append((1, lambda p=p: e(f's_add_u32 s{sT0}, s{sWo}, {c * 64 * 3584 + p * (4 * 3584 - 1024)}')))
                g.append((COST['dma'], lambda p=p, sd=sd: e(f'buffer_load_dwordx4 v{VDW}, s[{sd}:{sd + 3}], s{sT0} offen offset:{p * 1024} lds', ('wq', c))))
                out.append(g)
        return out

    def xreg(ks):
        return XR + (ks % XD) * 4

    def x_load(ks):
        r = xreg(ks)
        g = []
        if ks % 4 == 0:
            g.append((1, lambda: e(f's_add_u32 s{sT1}, s{sXb}, {(ks // 4) * 4096}')))
        g.append((COST['vload'], lambda: e(f'buffer_load_dwordx4 v[{r}:{r + 3}], v{VL16}, s[{sWS}:{sWS + 3}], s{sT1} offen offset:{(ks % 4) * 1024}{XA}', ('x', ks))))
        return g

    def addr_setup():
        e(f'v_lshrrev_b32 v{T + 7}, 2, v{T + 2}')
        e(f'v_and_b32 v{T + 8}, 1, v{T + 1}')
        e(f'v_lshlrev_b32 v{T + 8}, 5, v{T + 8}')
        e(f'v_and_b32 v{T + 9}, 1, v{VLANE}')
        e(f'v_lshl_add_u32 v{T + 8}, v{T + 9}, 4, v{T + 8}')
        e(f'v_bfe_u32 v{T + 9}, v{VLANE}, 1, 1')
        e(f'v_lshl_add_u32 v{T + 8}, v{T + 9}, 3, v{T + 8}')
        e(f'v_lshl_add_u32 v{T + 8}, v{T + 7}, 8, v{T + 8}')
        e(f'v_lshl_add_u32 v{T + 8}, v{T + 4}, 11, v{T + 8}')
        for db in range(4):
            e(f'v_xor_b32 v{T + 9}, {db}, v{T + 7}')
            e(f'v_lshl_add_u32 v{WRA + db}, v{T + 9}, 6, v{T + 8}')
            e(f'v_add_u32 v{WRA + 4 + db}, 0x10000, v{WRA + db}')
        e(f'v_lshlrev_b32 v{VMD}, 6, v{T + 4}')
        e(f'v_add_u32 v{VMD}, {LDS_MOD}, v{VMD}')

    ST = SS

    def st_loads():
        for j in range(4):
            e(f'buffer_load_dwordx4 v[{ST + 4 * j}:{ST + 3 + 4 * j}], v{T + 6}, s[{sWS}:{sWS + 3}], s39 offen offset:{16 * j}{XA}', 'st')

    def mod_dma():
        e(f's_lshl_b32 s{sT0}, s{sW}, 10')
        e(f's_add_u32 m0, s{sT0}, {LDS_MOD}')
        e(f's_add_u32 s{sT0}, s{sT0}, {WS_MOD2}')
        e(f'buffer_load_dwordx4 v{VL16}, s[{sWS}:{sWS + 3}], s{sT0} offen lds', ('wq', 0))

    if dep:
        NPRE = opts.get('npre4f', 4); NPX = 3
        mod_dma()
        for c in range(2, NPRE):
            for g in w_dma(c):
                for _, f in g: f()
        yield 'prefetched'
        addr_setup()
        e('s_lshl_b32 s45, s50, 8')
        e(f's_add_u32 s45, s45, {WS_FA}')
        stamp(k, sbase)
        poll(k, 'pb', T + 10, VLANE, 45, 64, opts)
        sbase += 1
        stamp(k, sbase)
        st_loads()
        for ks in range(4 * NPX):
            for _, f in x_load(ks): f()
    else:
        NPRE = opts.get('npre4', 1); NPX = NPRE
        if not PURE:
            st_loads()
            mod_dma()
        for _, f in x_load(0): f()
        for g in w_dma(0):
            for _, f in g: f()
        for ks in range(1, 4):
            for _, f in x_load(ks): f()
        for c in range(1, NPRE):
            for g in w_dma(c):
                for _, f in g: f()
            for ks in range(4 * c, 4 * c + 4):
                for _, f in x_load(ks): f()
        yield 'prefetched'
        addr_setup()
        stamp(k, sbase)
    if not PURE:
        k.wait(vm=['st'])
        e(f's_mov_b32 s3, {f32(1.0 / 512)}')
        r = ST
        for j in range(1, 8):
            e(f'v_add_f32 v{r}, v{r}, v{r + 2 * j}')
            e(f'v_add_f32 v{r + 1}, v{r + 1}, v{r + 2 * j + 1}')
        e(f'v_mov_b32 v{r + 2}, v{r}')
        e(f'v_mov_b32 v{r + 3}, v{r + 1}')
        e(f'v_permlane32_swap_b32 v{r}, v{r + 2}')
        e(f'v_permlane32_swap_b32 v{r + 1}, v{r + 3}')
        e(f'v_add_f32 v{r}, v{r}, v{r + 2}')
        e(f'v_add_f32 v{r + 1}, v{r + 1}, v{r + 3}')
        e(f'v_mul_f32 v{r}, s3, v{r}')
        e(f'v_mul_f32 v{r + 1}, s3, v{r + 1}')
        e(f'v_fma_f32 v{r + 1}, -v{r}, v{r}, v{r + 1}')
        e(f'v_max_f32 v{r + 1}, 0, v{r + 1}')
        rbf(k, r, r)
        rbf(k, r + 1, r + 1)
        e(f'v_add_f32 v{r + 1}, {f32(1e-5)}, v{r + 1}')
        rbf(k, r + 1, r + 1)
        e(f'v_sqrt_f32 v{r + 1}, v{r + 1}')
        rbf(k, r + 1, r + 1)
        e(f'v_rcp_f32 v{RS}, v{r + 1}')
        e(f'v_mul_f32 v{NM}, v{r}, v{RS}')
        e(f'v_sub_f32 v{NM}, 0, v{NM}')

    def w_reads(ks):
        out = []
        c = ks // 4
        for nb in range(8):
            mat, db = nb // 4, nb % 4
            off = BSLOT[c % 4][mat] + (ks % 4) * 4096
            base = WRA + (4 if off >= 65536 else 0) + db
            for t in range(2):
                r = WF + (ks % 2) * 32 + nb * 4 + t * 2
                out.append((COST['ds'], lambda r=r, base=base, t=t, off=off: e(f'ds_read_b64_tr_b16 a[{r}:{r + 1}], v{base} offset:{off % 65536 + t * 1024}', ('w', ks))))
        return out

    def ss_reads(ks):
        out = []
        for j in range(4):
            r = SS + (ks % 2) * 16 + 4 * j
            out.append((COST['ds'], lambda r=r, j=j: e(f'ds_read_b128 v[{r}:{r + 3}], v{VMD} offset:{ks * 128 + j * 16}', ('ss', ks))))
        return out

    def xform(ks):
        out = []
        sb = SS + (ks % 2) * 16
        x = xreg(ks)
        for p in range(4):
            t = FT + p * 2
            out.append((1, lambda p=p, t=t: e(f'v_lshlrev_b32 v{t}, 16, v{x + p}')))
            out.append((1, lambda p=p, t=t: e(f'v_and_b32 v{t + 1}, 0xffff0000, v{x + p}')))
            out.append((1, lambda t=t: e(f'v_fma_f32 v{t}, v{t}, v{RS}, v{NM}')))
            out.append((1, lambda t=t: e(f'v_fma_f32 v{t + 1}, v{t + 1}, v{RS}, v{NM}')))
            out.append((1, lambda p=p, t=t: e(f'v_fma_f32 v{t}, v{t}, v{sb + 2 * p}, v{sb + 8 + 2 * p}')))
            out.append((1, lambda p=p, t=t: e(f'v_fma_f32 v{t + 1}, v{t + 1}, v{sb + 2 * p + 1}, v{sb + 8 + 2 * p + 1}')))
            h = H + (ks % 2) * 4 + p
            out.append((1, lambda t=t, h=h: e(f'v_cvt_pk_bf16_f32 v{h}, v{t}, v{t + 1}')))
        return out

    todo = []
    wn = NPRE; xn = NPX
    while wn < 8 or xn < 8:
        if wn < 8 and wn <= xn:
            first = 0 if wn < 4 else 4 * (wn - 3)
            todo += [(first, g) for g in w_dma(wn)]; wn += 1
        else:
            for ks in range(4 * xn, 4 * xn + 4):
                todo.append((ks - XD + (1 if PURE else 0), x_load(ks)))
            xn += 1
    RATE = opts.get('rate4', 5)
    early = list(early or [])

    k.wait(vm=[('wq', 0)])
    e('s_barrier')
    stamp(k, sbase + 1)
    if PURE:
        for _, f in w_reads(0): f()
        k.wait(vm=[('x', 0)], lg=[('w', 0)])
    else:
        for _, f in ss_reads(0) + w_reads(0) + ss_reads(1): f()
        k.wait(vm=[('x', 0)], lg=[('ss', 0)])
        for _, f in xform(0): f()
        k.wait(lg=[('w', 0)])
    for ks in range(32):
        mf = []
        for nb in range(8):
            def m(nb=nb):
                acc = ACC + nb * 16
                c = '0' if ks == 0 else vr(acc, 16)
                b = xreg(ks) if PURE else H + (ks % 2) * 4
                e(f'v_mfma_f32_32x32x16_bf16 {vr(acc, 16)}, {ar(WF + (ks % 2) * 32 + nb * 4, 4)}, {vr(b, 4)}, {c}')
            mf.append(m)
        fx = {}; st = []; caps = {}
        if ks + 1 < 32:
            newc = (ks + 1) % 4 == 0
            vmw = ([] if PURE else [('x', ks + 1)]) + ([('wq', (ks + 1) // 4)] if newc else [])
            fx.setdefault(0, []).append((0, lambda: k.wait(vm=vmw, lg=[('ss', ks + 1)]), 'wait'))
            if newc:
                fx.setdefault(0, []).append((6, lambda: e('s_barrier'), 'bar'))
            g0 = 1 if newc else 0
            rd = (ss_reads(ks + 2) if ks + 2 < 32 and not PURE else []) + w_reads(ks + 1)
            for i, it in enumerate(rd):
                fx.setdefault(g0 + i // 4, []).append((it[0], it[1], 'ds'))
            st = [] if PURE else xform(ks + 1)
            fx.setdefault(7, []).append((0, lambda: k.wait(vm=[('x', ks + 1)] if PURE else [], lg=[('w', ks + 1)]), 'wait'))
        groups = []
        while todo and len(groups) < RATE and todo[0][0] <= ks:
            groups.append(todo.pop(0)[1])
        if early and ks == 22:
            groups.append([(8, early.pop(0))])
        elif early and ks >= 24 and len(early) > 5:
            groups.append([(6, early.pop(0))])
        gl = sorted([6, 7, 5, 4, 3, 2][:len(groups)])
        for g, grp in zip(gl, groups):
            for it in grp[:-1]:
                fx.setdefault(g - 1, []).append((it[0], it[1], 'end'))
            fx.setdefault(g, []).append((grp[-1][0], grp[-1][1], 'dma'))
        schedule(k, mf, fx, st, caps=caps, last_gap=6, cap=8)
    assert not todo
    if out_flag:
        e('s_barrier')
        for f in early: f()
    stamp(k, sbase + 2)
    e(f's_mov_b32 s3, {f32(-LOG2E)}')
    e(f's_add_u32 s{sT0}, s{sHb}, 4096')
    n = 0
    for j in range(4):
        for u in range(2):
            g = ACC + j * 16 + 8 * u
            up = ACC + (4 + j) * 16 + 8 * u
            t = XR + (n % 4) * 12; n += 1
            for i in range(8):
                e(f'v_mul_f32 v{t + i}, s3, v{g + i}')
            for i in range(8):
                e(f'v_exp_f32 v{t + i}, v{t + i}')
            for i in range(8):
                e(f'v_add_f32 v{t + i}, 1.0, v{t + i}')
            for i in range(8):
                e(f'v_rcp_f32 v{t + i}, v{t + i}')
            for i in range(8):
                e(f'v_mul_f32 v{g + i}, v{g + i}, v{t + i}')
            for i in range(8):
                e(f'v_mul_f32 v{g + i}, v{g + i}, v{up + i}')
            for i in range(4):
                e(f'v_cvt_pk_bf16_f32 v{t + 8 + i}, v{g + 2 * i}, v{g + 2 * i + 1}')
            kk = 2 * j + u
            so = sHb if kk < 4 else sT0
            e(f'buffer_store_dwordx4 v[{t + 8}:{t + 11}], v{VL16}, s[{sWS}:{sWS + 3}], s{so} offen offset:{(kk % 4) * 1024} sc1')
    if out_flag:
        e('s_lshl_b32 s46, s50, 8')
        e('s_lshl_b32 s45, s51, 4')
        e('s_add_u32 s46, s46, s45')
        e(f's_lshl_b32 s45, s{sW}, 2')
        e('s_add_u32 s46, s46, s45')
        e(f's_add_u32 s46, s46, {WS_FB}')
    stamp(k, sbase + 3)
    yield 'done'


def gen_oproj_sk(opts):
    k = Kern('oproj_kernel')
    e = k.e
    sWS = 12
    sW, sT0, sT1, sXb, sWo, sPb, sW4K = 32, 33, 34, 35, 36, 37, 38
    ACC = 0
    XD = 32
    XR = 64
    WRA = 192
    VL16, VDW, VLANE = 200, 201, 202
    T = 204
    WF = 0
    NSL = 8
    e('s_cmp_ge_u32 s2, 256')
    e('s_cbranch_scc1 oproj_end')
    stamp(k, 0)
    e(f's_load_dwordx2 s[6:7], s[0:1], {A_WS}')
    e(f'v_lshrrev_b32 v{T}, 6, v0')
    e(f'v_and_b32 v{VLANE}, 63, v0')
    e(f'v_readfirstlane_b32 s{sW}, v{T}')
    e(f'v_lshlrev_b32 v{VL16}, 4, v{VLANE}')
    e('s_bfe_u32 s28, s2, 0x20001')
    e('s_and_b32 s29, s2, 1')
    e('s_lshl_b32 s29, s29, 3')
    e('s_bfe_u32 s3, s2, 0x30003')
    e('s_add_u32 s29, s29, s3')
    e('s_lshr_b32 s30, s2, 6')
    e(f'v_lshrrev_b32 v{T + 1}, 4, v{VLANE}')
    e(f'v_and_b32 v{T + 2}, 15, v{VLANE}')
    e(f'v_lshlrev_b32 v{T + 3}, 2, v{T + 1}')
    e(f'v_xor_b32 v{T + 3}, v{T + 3}, v{T + 2}')
    e(f'v_lshlrev_b32 v{T + 3}, 4, v{T + 3}')
    e(f'v_lshl_add_u32 v{VDW}, v{T + 1}, 8, v{T + 3}')
    e(f's_lshl_b32 s{sW4K}, s{sW}, 12')
    e('s_lshl_b32 s3, s29, 2')
    e(f's_add_u32 s3, s3, s{sW}')
    e(f's_lshl_b32 s{sXb}, s3, 18')
    e(f's_lshl_b32 s{sT0}, s28, 16')
    e(f's_add_u32 s{sXb}, s{sXb}, s{sT0}')
    e(f's_add_u32 s{sXb}, s{sXb}, {WS_O}')
    e(f's_lshl_b32 s{sWo}, s30, 20')
    e(f's_lshl_b32 s{sT0}, s28, 18')
    e(f's_add_u32 s{sWo}, s{sWo}, s{sT0}')
    e(f's_add_u32 s{sWo}, s{sWo}, s{sW4K}')
    e(f's_add_u32 s{sWo}, s{sWo}, {WS_WOT}')
    e(f's_lshl_b32 s{sPb}, s28, 22')
    e(f's_lshl_b32 s{sT0}, s3, 16')
    e(f's_add_u32 s{sPb}, s{sPb}, s{sT0}')
    e(f's_lshl_b32 s{sT0}, s30, 14')
    e(f's_add_u32 s{sPb}, s{sPb}, s{sT0}')
    e(f's_add_u32 s{sPb}, s{sPb}, {WS_P}')
    e('s_waitcnt lgkmcnt(0)')
    srd(k, sWS, 6, 7, WS_SIZE)

    def w_dma(c):
        out = []
        for p in range(4):
            g = []
            if p == 0:
                g.append((1, lambda: e(f's_add_u32 m0, s{sW4K}, {(c % NSL) * 16384}')))
                g.append((1, lambda: e(f's_add_u32 s{sT0}, s{sWo}, {c * 16384}')))
            g.append((COST['dma'], lambda p=p: e(f'buffer_load_dwordx4 v{VDW}, s[{sWS}:{sWS + 3}], s{sT0} offen offset:{p * 1024} lds', ('wq', c))))
            out.append(g)
        return out

    def xreg(ks):
        return XR + (ks % XD) * 4

    def x_load(ks):
        r = xreg(ks)
        g = []
        if ks % 4 == 0:
            g.append((1, lambda: e(f's_add_u32 s{sT1}, s{sXb}, {(ks // 4) * 4096}')))
        g.append((COST['vload'], lambda: e(f'buffer_load_dwordx4 v[{r}:{r + 3}], v{VL16}, s[{sWS}:{sWS + 3}], s{sT1} offen offset:{(ks % 4) * 1024}', ('x', ks))))
        return g

    NPRE = opts.get('npre3', 4)
    for c in range(NPRE):
        for g in w_dma(c):
            for _, f in g: f()
        for ks in range(4 * c, 4 * c + 4):
            for _, f in x_load(ks): f()
        if c == 0:
            e(f'v_lshrrev_b32 v{T + 4}, 5, v{VLANE}')
            e(f'v_lshrrev_b32 v{T + 7}, 2, v{T + 2}')
            e(f'v_and_b32 v{T + 8}, 1, v{T + 1}')
            e(f'v_lshlrev_b32 v{T + 8}, 5, v{T + 8}')
            e(f'v_and_b32 v{T + 9}, 1, v{VLANE}')
            e(f'v_lshl_add_u32 v{T + 8}, v{T + 9}, 4, v{T + 8}')
            e(f'v_bfe_u32 v{T + 9}, v{VLANE}, 1, 1')
            e(f'v_lshl_add_u32 v{T + 8}, v{T + 9}, 3, v{T + 8}')
            e(f'v_lshl_add_u32 v{T + 8}, v{T + 7}, 8, v{T + 8}')
            e(f'v_lshl_add_u32 v{T + 8}, v{T + 4}, 11, v{T + 8}')
            for db in range(4):
                e(f'v_xor_b32 v{T + 9}, {db}, v{T + 7}')
                e(f'v_lshl_add_u32 v{WRA + db}, v{T + 9}, 6, v{T + 8}')
                e(f'v_add_u32 v{WRA + 4 + db}, 0x10000, v{WRA + db}')

    def w_reads(ks):
        out = []
        off = ((ks // 4) % NSL) * 16384 + (ks % 4) * 4096
        for db in range(4):
            base = WRA + (4 if off >= 65536 else 0) + db
            for t in range(2):
                r = WF + (ks % 2) * 16 + db * 4 + t * 2
                out.append(lambda r=r, base=base, t=t: e(f'ds_read_b64_tr_b16 a[{r}:{r + 1}], v{base} offset:{off % 65536 + t * 1024}', ('w', ks)))
        return out

    todo = []
    for c in range(NPRE, 16):
        first = 0 if c < NSL else 4 * (c - NSL + 1)
        todo += [(first, g) for g in w_dma(c)]
        for ks in range(4 * c, 4 * c + 4):
            todo.append((ks - XD + 1, x_load(ks)))
    RATE = opts.get('rate3', 3)
    stamp(k, 1)
    k.wait(vm=[('wq', 0)])
    e('s_barrier')
    for f in w_reads(0): f()
    k.wait(vm=[('x', 0)], lg=[('w', 0)])
    stamp(k, 2)
    for ks in range(64):
        mf = []
        for nb in range(4):
            def m(nb=nb):
                acc = ACC + nb * 16
                c = '0' if ks == 0 else vr(acc, 16)
                e(f'v_mfma_f32_32x32x16_bf16 {vr(acc, 16)}, {ar(WF + (ks % 2) * 16 + nb * 4, 4)}, {vr(xreg(ks), 4)}, {c}')
            mf.append(m)
        fx = {}
        if ks + 1 < 64:
            newc = (ks + 1) % 4 == 0
            if newc:
                fx.setdefault(0, []).append((0, lambda: k.wait(vm=[('wq', (ks + 1) // 4)]), 'wait'))
                fx.setdefault(0, []).append((1, lambda: e('s_barrier'), 'bar'))
            for i, f in enumerate(w_reads(ks + 1)):
                fx.setdefault(i // 4, []).append((1, f, 'ds'))
            fx.setdefault(3, []).append((0, lambda: k.wait(vm=[('x', ks + 1)], lg=[('w', ks + 1)]), 'wait'))
        groups = []
        while todo and len(groups) < RATE and todo[0][0] <= ks:
            groups.append(todo.pop(0)[1])
        for g, grp in zip([2, 3, 3][:len(groups)] if len(groups) < 3 else [1, 2, 3], groups):
            for it in grp[:-1]:
                fx.setdefault(g if g == 3 and len(groups) == 2 and False else g - 1, []).append((it[0], it[1], 'end'))
            fx.setdefault(g, []).append((grp[-1][0], grp[-1][1], 'dma'))
        schedule(k, mf, fx, [])
    assert not todo
    stamp(k, 3)
    for nb in range(4):
        e(f's_add_u32 s{sT0}, s{sPb}, {nb * 4096}')
        for q in range(4):
            e(f'buffer_store_dwordx4 v[{ACC + nb * 16 + 4 * q}:{ACC + nb * 16 + 4 * q + 3}], v{VL16}, s[{sWS}:{sWS + 3}], s{sT0} offen offset:{q * 1024}{opts.get("pst", " sc1")}')
    stamp(k, 4)
    if STAMP:
        e(f's_lshl_b32 s100, s{sW}, 6')
        e('v_mov_b32 v0, s100')
    stamp_flush(k, 5, sWS, 2)
    k.label('oproj_end')
    e('s_endpgm')
    return k, 'grid=(256,1,1) block=(256,1,1) lds=131072'


def gen_red(opts):
    k = Kern('red_kernel')
    e = k.e
    sWS, sX = 12, 16
    e('s_cmp_ge_u32 s2, 256')
    e('s_cbranch_scc1 red_end')
    stamp(k, 0)
    e(f's_load_dwordx2 s[6:7], s[0:1], {A_WS}')
    e(f's_load_dwordx2 s[4:5], s[0:1], {A_X}')
    e('v_and_b32 v1, 7, v0')
    e('v_lshrrev_b32 v2, 3, v0')
    e('v_lshlrev_b32 v3, 11, v2')
    e('v_lshl_add_u32 v3, v1, 4, v3')
    e('s_lshr_b32 s28, s2, 2')
    e('s_and_b32 s29, s2, 3')
    e('s_lshl_b32 s30, s28, 16')
    e('s_lshl_b32 s31, s29, 7')
    e('s_add_u32 s30, s30, s31')
    e(f's_add_u32 s30, s30, {WS_P}')
    e('s_lshl_b32 s33, s2, 13')
    e('v_lshlrev_b32 v4, 10, v1')
    e('v_lshl_add_u32 v4, v2, 5, v4')
    e('v_lshlrev_b32 v5, 6, v2')
    e('v_lshlrev_b32 v6, 7, v2')
    e('v_lshlrev_b32 v7, 10, v2')
    e('v_lshl_add_u32 v7, v1, 4, v7')
    e('s_lshl_b32 s34, s28, 15')
    e('s_add_u32 s34, s34, s31')
    e(f's_add_u32 s35, s34, {WS_H2}')
    e(f's_add_u32 s34, s34, {WS_X1}')
    e('s_waitcnt lgkmcnt(0)')
    srd(k, sWS, 6, 7, WS_SIZE)
    srd(k, sX, 4, 5, 2048 * 1024)
    PR = 16
    for sp in range(4):
        for hh in range(2):
            for q in range(2):
                r = PR + sp * 16 + hh * 8 + q * 4
                e(f'buffer_load_dwordx4 v[{r}:{r + 3}], v3, s[{sWS}:{sWS + 3}], s30 offen offset:{q * 1024 + hh * 512}', ('p', sp))
        if sp < 3:
            e('s_add_u32 s30, s30, 0x400000')
    GA = 80; XX = 96; MD = 104
    e(f's_mov_b32 s36, {WS_GA}')
    e(f's_mov_b32 s37, {WS_MOD2}')
    for j in range(4):
        e(f'buffer_load_dwordx4 v[{GA + 4 * j}:{GA + 4 * j + 3}], v5, s[{sWS}:{sWS + 3}], s36 offen offset:{16 * j}', 'g')
    for j in range(2):
        e(f'buffer_load_dwordx4 v[{XX + 4 * j}:{XX + 4 * j + 3}], v4, s[{sX}:{sX + 3}], s33 offen offset:{16 * j}', 'g')
    for j in range(8):
        e(f'buffer_load_dwordx4 v[{MD + 4 * j}:{MD + 4 * j + 3}], v6, s[{sWS}:{sWS + 3}], s37 offen offset:{16 * j}', 'md')
    stamp(k, 1)
    for sp in range(1, 4):
        k.wait(vm=[('p', sp), ('p', 0)])
        for i in range(16):
            e(f'v_add_f32 v{PR + i}, v{PR + i}, v{PR + sp * 16 + i}')
    k.wait(vm=['g'])
    U = 32
    for i in range(16):
        rbf(k, PR + i, PR + i)
    for i in range(16):
        e(f'v_mul_f32 v{PR + i}, v{PR + i}, v{GA + i}')
    for i in range(16):
        rbf(k, PR + i, PR + i)
    for i in range(16):
        if i % 2 == 0:
            e(f'v_lshlrev_b32 v{U + i}, 16, v{XX + i // 2}')
        else:
            e(f'v_and_b32 v{U + i}, 0xffff0000, v{XX + i // 2}')
    for i in range(16):
        e(f'v_add_f32 v{PR + i}, v{PR + i}, v{U + i}')
    for i in range(8):
        e(f'v_cvt_pk_bf16_f32 v{U + i}, v{PR + 2 * i}, v{PR + 2 * i + 1}')
    for hh in range(2):
        e(f'buffer_store_dwordx4 v[{U + 4 * hh}:{U + 4 * hh + 3}], v7, s[{sWS}:{sWS + 3}], s34 offen offset:{512 * hh}')
    for i in range(16):
        rbf(k, PR + i, PR + i)
    A, B, C2, D2 = 48, 49, 50, 51
    e(f'v_add_f32 v{A}, v{PR}, v{PR + 1}')
    e(f'v_mul_f32 v{B}, v{PR}, v{PR}')
    e(f'v_fmac_f32 v{B}, v{PR + 1}, v{PR + 1}')
    for i in range(2, 16):
        e(f'v_add_f32 v{A}, v{A}, v{PR + i}')
        e(f'v_fmac_f32 v{B}, v{PR + i}, v{PR + i}')
    e(f'v_add_f32_dpp v{C2}, v{A}, v{A} row_ror:8 row_mask:0xf bank_mask:0xf')
    e(f'v_add_f32_dpp v{D2}, v{B}, v{B} row_ror:8 row_mask:0xf bank_mask:0xf')
    for sw in ('v_permlane16_swap_b32', 'v_permlane32_swap_b32'):
        e(f'v_mov_b32 v{A}, v{C2}')
        e(f'v_mov_b32 v{B}, v{D2}')
        e(f'{sw} v{A}, v{C2}')
        e(f'{sw} v{B}, v{D2}')
        e(f'v_add_f32 v{C2}, v{A}, v{C2}')
        e(f'v_add_f32 v{D2}, v{B}, v{D2}')
    e('v_lshrrev_b32 v8, 6, v0')
    e('v_lshlrev_b32 v9, 5, v1')
    e('v_lshl_add_u32 v8, v8, 3, v9')
    e(f'ds_write_b64 v8, v[{C2}:{D2}]')
    e('s_waitcnt lgkmcnt(0)')
    e('s_barrier')
    e('ds_read_b128 v[52:55], v9')
    e('ds_read_b128 v[56:59], v9 offset:16')
    e('s_waitcnt lgkmcnt(0)')
    e('v_add_f32 v52, v52, v54')
    e('v_add_f32 v53, v53, v55')
    e('v_add_f32 v56, v56, v58')
    e('v_add_f32 v57, v57, v59')
    e('v_add_f32 v52, v52, v56')
    e('v_add_f32 v53, v53, v57')
    e(f's_mov_b32 s3, {f32(1.0 / 512)}')
    e('v_mul_f32 v52, s3, v52')
    e('v_mul_f32 v53, s3, v53')
    e('v_fma_f32 v53, -v52, v52, v53')
    e('v_max_f32 v53, 0, v53')
    rbf(k, 52, 52)
    rbf(k, 53, 53)
    e(f'v_add_f32 v53, {f32(1e-5)}, v53')
    rbf(k, 53, 53)
    e('v_sqrt_f32 v53, v53')
    rbf(k, 53, 53)
    e('v_rcp_f32 v53, v53')
    k.wait(vm=['md'])
    for i in range(16):
        e(f'v_sub_f32 v{PR + i}, v{PR + i}, v52')
    for i in range(16):
        rbf(k, PR + i, PR + i)
    for i in range(16):
        e(f'v_mul_f32 v{PR + i}, v{PR + i}, v53')
    for i in range(16):
        rbf(k, PR + i, PR + i)
    for i in range(16):
        e(f'v_mul_f32 v{PR + i}, v{PR + i}, v{MD + (i // 8) * 16 + i % 8}')
    for i in range(16):
        rbf(k, PR + i, PR + i)
    for i in range(16):
        e(f'v_add_f32 v{PR + i}, v{PR + i}, v{MD + (i // 8) * 16 + 8 + i % 8}')
    for i in range(8):
        e(f'v_cvt_pk_bf16_f32 v{60 + i}, v{PR + 2 * i}, v{PR + 2 * i + 1}')
    for hh in range(2):
        e(f'buffer_store_dwordx4 v[{60 + 4 * hh}:{63 + 4 * hh}], v7, s[{sWS}:{sWS + 3}], s35 offen offset:{512 * hh}')
    stamp(k, 2)
    stamp_flush(k, 3, sWS, 3)
    k.label('red_end')
    e('s_endpgm')
    return k, 'grid=(256,1,1) block=(256,1,1) lds=512'


def run_until(gen, tag):
    for t in gen:
        if t == tag:
            return
    raise RuntimeError('phase tag not reached: ' + tag)


def gen_tail(name, phases, opts, kidx):
    k = Kern(name)
    e = k.e
    e('s_cmp_ge_u32 s2, 256')
    e(f's_cbranch_scc1 {name}_end')
    if 'B' in phases:
        e('s_bfe_u32 s51, s2, 0x20001')
        e('s_lshr_b32 s3, s2, 6')
        e('s_lshl_b32 s3, s3, 2')
        e('s_add_u32 s51, s51, s3')
        if phases == 'B':
            e('s_cmp_ge_u32 s51, 14')
            e(f's_cbranch_scc1 {name}_end')
    stamp(k, 0)
    e(f's_load_dwordx2 s[6:7], s[0:1], {A_WS}')
    if 'A' in phases:
        e(f's_load_dwordx2 s[60:61], s[0:1], {A_X}')
    if 'B' in phases:
        e(f's_load_dwordx4 s[56:59], s[0:1], {A_W1}')
    if 'C' in phases:
        e(f's_load_dwordx2 s[62:63], s[0:1], {A_OUT}')
    e('v_lshrrev_b32 v1, 6, v0')
    e(f'v_readfirstlane_b32 s{sWV_T}, v1')
    keep = 'A' in phases and 'C' in phases
    first = True
    pending_flag = False
    sb = 1
    for pi, ph in enumerate(phases):
        dep = pi > 0
        out_flag = pi + 1 < len(phases)
        if ph == 'B' and len(phases) > 1:
            if first:
                e('s_waitcnt lgkmcnt(0)')
                srd(k, sWS_T, 6, 7, WS_SIZE)
                first = False
            e('s_cmp_ge_u32 s51, 14')
            e(f's_cbranch_scc1 {name}_skipb')
        if ph == 'B':
            g = phase_ffn1(k, opts, dep, out_flag, sb, early_c(k, 13) if out_flag else None)
        else:
            g = phase_gemm64(k, 'wo' if ph == 'A' else 'w2', opts, dep, out_flag, keep, sb, early_b(k) if out_flag else None)
        run_until(g, 'setup')
        if first:
            e('s_waitcnt lgkmcnt(0)')
            srd(k, sWS_T, 6, 7, WS_SIZE)
            first = False
        if pending_flag:
            signal(k, 244 if ph == 'C' else 252, 46, 0)
        run_until(g, 'prefetched')
        run_until(g, 'done')
        pending_flag = out_flag
        if ph == 'B' and len(phases) > 1:
            if pi + 1 < len(phases):
                e(f's_branch {name}_joinb')
                k.label(f'{name}_skipb')
                if pi > 0:
                    signal(k, 252, 46, 0)
                for f in early_c(k, 13): f()
                e(f's_mov_b32 s46, {WS_FDUMMY}')
                k.label(f'{name}_joinb')
            else:
                e(f's_branch {name}_fin')
                k.label(f'{name}_skipb')
                if pi > 0:
                    signal(k, 252, 46, 0)
                k.label(f'{name}_fin')
        sb += 5 if dep else 4
    if STAMP:
        e(f's_lshl_b32 s100, s{sWV_T}, 6')
        e('v_mov_b32 v0, s100')
    stamp_flush(k, sb, sWS_T, kidx)
    k.label(f'{name}_end')
    e('s_endpgm')
    return k, 'grid=(256,1,1) block=(256,1,1) lds=135168'


def build(opts=None):
    global STAMP
    opts = opts or {}
    STAMP = opts.get('stamp', False)
    for kk in COST:
        if 'c_' + kk in opts: COST[kk] = opts['c_' + kk]
    ks = [gen_prep(opts), gen_attn(opts)]
    if opts.get('sk', 0):
        ks += [gen_oproj_sk(opts), gen_red(opts)]
        for i, ph in enumerate(opts.get('fuse', 'B|C').split('|')):
            ks.append(gen_tail('tail' + ph.lower() + '_kernel', ph, opts, 4 + i))
    else:
        for i, ph in enumerate(opts.get('fuse', 'A|B|C').split('|')):
            ks.append(gen_tail('tail' + ph.lower() + '_kernel', ph, opts, 2 + i))
    hdr = open('adaLN_cond__mha_block_cached__glu_gated_swiglu__prompt.s.ref').read().split('\n')
    out = []
    for l in hdr:
        if l.startswith('; Override') or l.startswith('; grid=') or '@launch' in l or not l.startswith(';'):
            if not l.startswith(';'):
                break
            continue
        out.append(l)
    for k, launch in ks:
        for _ in range(1 + opts.get('dup_' + k.name[:5], 0)):
            out.append(f'; @launch kernel={k.name} {launch}')
    out.append('.amdgcn_target "amdgcn-amd-amdhsa--gfx950"')
    out.append('.text')
    for k, _ in ks:
        n = k.fix_hazards(verbose=opts.get('verbose', False))
        print(f'{k.name}: {len(k.ins)} instr, {n} hazard nop states, regs {k.max_regs()}', file=sys.stderr)
        out.append(f'.globl {k.name}')
        out.append('.p2align 8')
        out.append(f'.type {k.name},@function')
        out.append(f'{k.name}:')
        out.append(k.text())
    out.append('code_end:')
    errs = 0
    errs += ks[0][0].verify_path({})
    errs += ks[0][0].verify_path({'prep_ln': 1})
    errs += ks[1][0].verify_path({'attn_tail': [False, False, False, True], 'attn_copy': [True, True, True, True], 'attn_copy_st': [False, True], 'attn_copy_ret': [False, False, True, True]})
    for k, _ in ks[2:]:
        errs += k.verify_path({'pa_loop': 2, 'pb_go': [False, True], 'pc_go': [False, True]})
        errs += k.verify_path({'pa_loop': 2, 'pb_go': 1, 'pc_go': 1})
        errs += k.verify_path({'pa_loop': 2, 'pb_go': 1, 'pc_go': 1, k.name + '_skipb': 1})
    assert errs == 0 or 'qx' in opts or 'x' in opts, errs
    out.append('.section .rodata,"a"')
    for k, _ in ks:
        out.append('.p2align 6')
        out.append(descriptor(k, 264 if k.name.startswith('tail') else 0))
    return '\n'.join(out)


if __name__ == '__main__':
    dst = sys.argv[1] if len(sys.argv) > 1 else 'adaLN_cond__mha_block_cached__glu_gated_swiglu__prompt.s'
    opts = {}
    for a in sys.argv[2:]:
        kk, _, v = a.partition('=')
        opts[kk] = eval(v) if v else True
    open(dst, 'w').write(build(opts))
```

```python
import sys, struct, math
from asmlib import *

A_X, A_K, A_V, A_WQ, A_WO, A_BX, A_W1, A_W3, A_W2, A_C, A_WMOD, A_OUT, A_DBG, A_WS = [8 * i for i in range(14)]
WS_MOD1 = 0
WS_GA = 4096
WS_MOD2 = 8192
WS_GB = 8192 + 4096
WS_FA = 0x4000
WS_FB = 0x5000
WS_FO = 0x6000
WS_FC = 0x7000
WS_FDUMMY = 0x8000
WS_XHAT = 0x10000
WS_O = 0x400000
WS_X1 = 0x1400000
WS_ST = 0x1600000
WS_HH = 0x1800000
WS_WOT = 0x2000000
WS_W2T = 0x2400000
WS_H2 = 0x2600000
WS_P = 0x3000000
WS_SIZE = 0x4000000

LOG2E = 1.4426950408889634


def f32(x):
    return '0x%08x' % struct.unpack('<I', struct.pack('<f', x))[0]


def srd(k, d, lo, hi, nbytes):
    k.e(f's_mov_b32 s{d}, s{lo}')
    k.e(f's_and_b32 s{d + 1}, s{hi}, 0xffff')
    k.e(f's_mov_b32 s{d + 2}, {nbytes}')
    k.e(f's_mov_b32 s{d + 3}, 0x00020000')


WS_STAMP = 0x1F00000
STAMP = False


def stamp(k, idx):
    if not STAMP or idx > 15 or idx < 0:
        return
    k.e('s_waitcnt lgkmcnt(0)')
    k.e(f's_memtime s[{64 + 2 * idx}:{65 + 2 * idx}]')
    if idx == 0:
        k.e('s_memrealtime s[96:97]')
    k.e('s_waitcnt lgkmcnt(0)')


def stamp_flush(k, n, sws, kidx):
    if not STAMP:
        return
    e = k.e
    n = min(n, 15)
    e('s_waitcnt vmcnt(0) lgkmcnt(0)')
    stamp(k, n)
    e('s_memrealtime s[98:99]')
    e('s_waitcnt lgkmcnt(0)')
    lab = k.newlabel('nost')
    e('v_readfirstlane_b32 s100, v0')
    e('s_cmp_lg_u32 s100, 0')
    e(f's_cbranch_scc1 {lab}')
    e('s_lshl_b32 s100, s2, 7')
    e(f's_add_u32 s100, s100, {WS_STAMP + kidx * 65536}')
    e('v_mov_b32 v1, 0')
    for i in range(n + 1):
        e(f'v_mov_b32 v2, s{64 + 2 * i}')
        e(f'buffer_store_dword v2, v1, s[{sws}:{sws + 3}], s100 offen offset:{4 * i}')
    e('v_mov_b32 v2, s96')
    e(f'buffer_store_dword v2, v1, s[{sws}:{sws + 3}], s100 offen offset:120')
    e('v_mov_b32 v2, s98')
    e(f'buffer_store_dword v2, v1, s[{sws}:{sws + 3}], s100 offen offset:124')
    k.label(lab)


def code_touch(k, v, sp, sidx, vlane, start, end):
    e = k.e
    lab = k.newlabel('pc')
    e(f's_getpc_b64 s[{sp}:{sp + 1}]')
    k.label(lab)
    e(f's_add_u32 s{sp}, s{sp}, {start}-{lab}')
    e(f's_addc_u32 s{sp + 1}, s{sp + 1}, 0')
    e(f's_lshl_b32 s{sidx}, s{sidx}, 13')
    e(f'v_lshlrev_b32 v{v}, 7, v{vlane}')
    e(f'v_add_u32 v{v}, s{sidx}, v{v}')
    e(f'v_min_u32 v{v}, {end}-{start}-4, v{v}')
    e(f'v_mov_b32 v{v + 1}, s{sp + 1}')
    e(f'v_add_co_u32 v{v}, vcc, s{sp}, v{v}')
    e(f'v_addc_co_u32 v{v + 1}, vcc, 0, v{v + 1}, vcc')
    e(f'global_load_dword v{v + 2}, v[{v}:{v + 1}], off', 'code')


def rbf(k, d, s):
    k.e(f'v_cvt_pk_bf16_f32 v{d}, 0, v{s}')


def allreduce16(k, v, t):
    for mod in ('quad_perm:[1,0,3,2]', 'quad_perm:[2,3,0,1]', 'row_half_mirror', 'row_mirror'):
        k.e(f'v_add_f32_dpp v{t}, v{v}, v{v} {mod} row_mask:0xf bank_mask:0xf')
        v, t = t, v


def gen_prep(opts):
    k = Kern('prep_kernel')
    e = k.e
    NMOD, NLN = 96, 128
    e(f's_cmp_ge_u32 s2, {NMOD + NLN}')
    e('s_cbranch_scc1 prep_end')
    stamp(k, 0)
    e(f's_load_dwordx2 s[4:5], s[0:1], {A_WS}')
    e(f's_load_dwordx2 s[6:7], s[0:1], {A_X}')
    e(f's_load_dwordx4 s[20:23], s[0:1], {A_C}')
    e(f's_load_dwordx4 s[36:39], s[0:1], {A_K}')
    e(f's_load_dwordx2 s[40:41], s[0:1], {A_WQ}')

    def prefetch(ln=False, part=3):
        if opts.get('cpf', 1) and part & 1:
            lab = k.newlabel('nocpf')
            e('v_lshrrev_b32 v72, 6, v0')
            e('v_and_b32 v73, 63, v0')
            e('v_readfirstlane_b32 s42, v72')
            e('s_lshr_b32 s43, s2, 3')
            e('s_lshl_b32 s43, s43, 2')
            e('s_add_u32 s43, s43, s42')
            e('s_cmp_ge_u32 s43, (code_end-attn_kernel+8191)/8192')
            e(f's_cbranch_scc1 {lab}')
            code_touch(k, 74, 44, 43, 73, 'attn_kernel', 'code_end')
            k.vmq.pop()
            k.label(lab)
        if opts.get('pf1', 2) == 2:
            if ln and part & 2:
                e('v_lshrrev_b32 v72, 6, v0')
                e('v_and_b32 v73, 63, v0')
                e('v_readfirstlane_b32 s42, v72')
                e('v_lshrrev_b32 v77, 3, v73')
                e('v_and_b32 v78, 7, v73')
                e('v_lshlrev_b32 v77, 13, v77')
                e('v_lshl_add_u32 v77, v78, 7, v77')
                e(f's_sub_u32 s43, s2, {NMOD}')
                e('s_lshr_b32 s43, s43, 3')
                e('s_lshl_b32 s43, s43, 2')
                e('s_add_u32 s43, s43, s42')
                e('s_lshl_b32 s43, s43, 16')
                e('s_and_b32 s44, s2, 7')
                e('s_lshl_b32 s44, s44, 10')
                e('s_add_u32 s43, s43, s44')
                srd(k, 48, 40, 41, 512 * 8192)
                e('buffer_load_dword v78, v77, s[48:51], s43 offen', 'pf')
                if opts.get('pf64', 0):
                    e('buffer_load_dword v79, v77, s[48:51], s43 offen offset:64', 'pf')
            return
        if not opts.get('pf1', 2):
            return
        e('v_lshrrev_b32 v72, 6, v0')
        e('v_and_b32 v73, 63, v0')
        e('v_readfirstlane_b32 s42, v72')
        e('v_lshrrev_b32 v74, 4, v73')
        e('v_and_b32 v75, 15, v73')
        e('v_lshlrev_b32 v74, 13, v74')
        e('v_lshl_add_u32 v74, v75, 6, v74')
        e('v_lshlrev_b32 v73, 6, v73')
        e('s_lshr_b32 s43, s2, 3')
        e('s_lshl_b32 s43, s43, 2')
        e('s_add_u32 s43, s43, s42')
        e('s_and_b32 s44, s2, 7')
        srd(k, 48, 40, 41, 512 * 8192)
        e('s_lshl_b32 s45, s43, 15')
        e('s_lshl_b32 s46, s44, 10')
        e('s_add_u32 s45, s45, s46')
        e('buffer_load_dword v76, v74, s[48:51], s45 offen', 'pf')
        e(f's_add_u32 s45, s45, {112 * 32768}')
        e('buffer_load_dword v77, v74, s[48:51], s45 offen', 'pf')
        e('s_and_b32 s45, s43, 63')
        e('s_lshr_b32 s46, s45, 4')
        e('s_lshl_b32 s47, s44, 2')
        e('s_add_u32 s46, s46, s47')
        e('s_lshl_b32 s46, s46, 19')
        e('s_and_b32 s45, s45, 15')
        e('s_lshl_b32 s45, s45, 12')
        e('s_add_u32 s45, s45, s46')
        srd(k, 48, 36, 37, 32 * 524288)
        e('buffer_load_dword v78, v73, s[48:51], s45 offen', 'pf')
        srd(k, 48, 38, 39, 32 * 524288)
        e('buffer_load_dword v79, v73, s[48:51], s45 offen', 'pf')
    e(f's_cmp_ge_u32 s2, {NMOD}')
    e('s_cbranch_scc1 prep_ln')
    e('v_and_b32 v1, 3, v0')
    e('v_lshrrev_b32 v2, 2, v0')
    e('s_mov_b32 s3, 49152')
    e('v_mul_lo_u32 v3, v2, s3')
    e('v_lshl_add_u32 v3, v1, 4, v3')
    if opts.get('mrm', 1):
        e('s_and_b32 s34, s2, 0x70')
        e('s_and_b32 s3, s2, 7')
        e('s_lshl_b32 s3, s3, 1')
        e('s_add_u32 s34, s34, s3')
        e('s_bfe_u32 s3, s2, 0x10003')
        e('s_add_u32 s34, s34, s3')
    else:
        e('s_mov_b32 s34, s2')
    e('s_lshl_b32 s3, s34, 6')
    e('v_add_u32 v3, s3, v3')
    e('v_lshlrev_b32 v4, 4, v2')
    e('s_waitcnt lgkmcnt(0)')
    stamp(k, 1)
    srd(k, 8, 20, 21, 1024)
    srd(k, 12, 22, 23, 512 * 6144)
    srd(k, 16, 4, 5, WS_SIZE)
    e('buffer_load_dwordx4 v[8:11], v4, s[8:11], 0 offen', 'c')
    for i in range(8):
        e(f's_mov_b32 s{24 + i}, {i * 6144}')
        e(f'buffer_load_dwordx4 v[{16 + 4 * i}:{19 + 4 * i}], v3, s[12:15], s{24 + i} offen', ('w', i))
    prefetch()
    k.wait(vm=['c'])
    stamp(k, 2)
    e(f's_mov_b32 s3, {f32(-LOG2E)}')
    for i in range(8):
        src = 8 + i // 2
        if i % 2 == 0:
            e(f'v_lshlrev_b32 v{48 + i}, 16, v{src}')
        else:
            e(f'v_and_b32 v{48 + i}, 0xffff0000, v{src}')
    for i in range(8):
        e(f'v_mul_f32 v{56 + i}, s3, v{48 + i}')
    for i in range(8):
        e(f'v_exp_f32 v{56 + i}, v{56 + i}')
    for i in range(8):
        e(f'v_add_f32 v{56 + i}, 1.0, v{56 + i}')
    for i in range(8):
        e(f'v_rcp_f32 v{56 + i}, v{56 + i}')
    for i in range(8):
        e(f'v_mul_f32 v{48 + i}, v{48 + i}, v{56 + i}')
    for i in range(8):
        rbf(k, 48 + i, 48 + i)
    for i in range(8):
        k.wait(vm=[('w', i)])
        for p in range(4):
            w = 16 + 4 * i + p
            e(f'v_lshlrev_b32 v56, 16, v{w}')
            e(f'v_and_b32 v57, 0xffff0000, v{w}')
            if i == 0:
                e(f'v_mul_f32 v{64 + 2 * p}, v48, v56')
                e(f'v_mul_f32 v{65 + 2 * p}, v48, v57')
            else:
                e(f'v_fmac_f32 v{64 + 2 * p}, v{48 + i}, v56')
                e(f'v_fmac_f32 v{65 + 2 * p}, v{48 + i}, v57')
    stamp(k, 3)
    e('v_lshlrev_b32 v5, 5, v0')
    e('ds_write_b128 v5, v[64:67]')
    e('ds_write_b128 v5, v[68:71] offset:16')
    e('s_waitcnt lgkmcnt(0)')
    e('s_barrier')
    e('v_and_b32 v6, 31, v0')
    e('v_lshrrev_b32 v7, 5, v0')
    e('v_lshlrev_b32 v5, 10, v7')
    e('v_lshl_add_u32 v5, v6, 2, v5')
    for i in range(8):
        e(f'ds_read_b32 v{16 + i}, v5 offset:{i * 128}')
    e('s_waitcnt lgkmcnt(0)')
    for i in range(1, 8):
        e(f'v_add_f32 v16, v16, v{16 + i}')
    e('v_lshlrev_b32 v5, 2, v0')
    e('ds_write_b32 v5, v16 offset:8192')
    e('s_waitcnt lgkmcnt(0)')
    e('s_barrier')
    e('v_cmp_gt_u32 vcc, 32, v0')
    e('s_and_saveexec_b64 s[32:33], vcc')
    e('s_cbranch_execz prep_end')
    for i in range(8):
        e(f'ds_read_b32 v{16 + i}, v5 offset:{8192 + i * 128}')
    e('s_waitcnt lgkmcnt(0)')
    for i in range(1, 8):
        e(f'v_add_f32 v16, v16, v{16 + i}')
    rbf(k, 16, 16)
    e('v_add_f32 v17, 1.0, v16')
    rbf(k, 17, 17)
    e('s_lshr_b32 s24, s34, 4')
    e('s_and_b32 s25, s34, 15')
    e('s_lshl_b32 s25, s25, 5')
    e('v_add_u32 v6, s25, v0')
    e('s_cmp_ge_u32 s24, 3')
    e('s_cselect_b32 s26, 8192, 0')
    e('s_cselect_b32 s27, 3, 0')
    e('s_sub_u32 s24, s24, s27')
    e('v_lshrrev_b32 v7, 3, v6')
    e('v_lshlrev_b32 v7, 6, v7')
    e('v_and_b32 v8, 7, v6')
    e('v_lshl_add_u32 v7, v8, 2, v7')
    e('v_lshlrev_b32 v8, 2, v6')
    stamp_flush(k, 4, 16, 0)
    e('s_cmp_eq_u32 s24, 2')
    e('s_cbranch_scc1 prep_gate')
    e('s_cmp_eq_u32 s24, 1')
    e('s_cbranch_scc1 prep_scale')
    e('buffer_store_dword v16, v7, s[16:19], s26 offen offset:32')
    e('s_endpgm')
    k.label('prep_scale')
    e('buffer_store_dword v17, v7, s[16:19], s26 offen')
    e('s_endpgm')
    k.label('prep_gate')
    e('s_add_u32 s26, s26, 4096')
    e('buffer_store_dword v16, v8, s[16:19], s26 offen')
    e('s_endpgm')
    k.label('prep_ln')
    e(f's_sub_u32 s3, s2, {NMOD}')
    e('s_lshl_b32 s3, s3, 4')
    e('v_lshrrev_b32 v1, 4, v0')
    e('v_add_u32 v1, s3, v1')
    e('v_and_b32 v2, 15, v0')
    e('v_lshlrev_b32 v3, 10, v1')
    e('v_lshl_add_u32 v3, v2, 4, v3')
    e('s_waitcnt lgkmcnt(0)')
    stamp(k, 1)
    srd(k, 8, 6, 7, 2048 * 1024)
    srd(k, 16, 4, 5, WS_SIZE)
    for j in range(4):
        e(f'buffer_load_dwordx4 v[{8 + 4 * j}:{11 + 4 * j}], v3, s[8:11], 0 offen offset:{256 * j}', ('x', j))
    PFP = opts.get('pfp', 0)
    prefetch(True, 3 if PFP == 0 else 1)
    if len(opts.get('fuse', 'A|B|C').split('|')) < 3 or opts.get('mega'):
        e(f's_sub_u32 s43, s2, {NMOD}')
        e('s_cmp_ge_u32 s43, 16')
        e('s_cbranch_scc1 prep_nofl')
        e('s_lshl_b32 s43, s43, 10')
        e(f's_add_u32 s43, s43, {WS_FA}')
        e('v_lshlrev_b32 v72, 2, v0')
        e('v_mov_b32 v73, 0')
        e('buffer_store_dword v73, v72, s[16:19], s43 offen')
        k.vmq.pop()
        k.label('prep_nofl')
    e('v_lshrrev_b32 v4, 5, v1')
    e('v_lshlrev_b32 v4, 15, v4')
    e('v_lshrrev_b32 v5, 1, v2')
    e('v_lshl_add_u32 v4, v5, 10, v4')
    e('v_and_b32 v5, 1, v2')
    e('v_lshl_add_u32 v4, v5, 9, v4')
    e('v_and_b32 v5, 31, v1')
    e('v_lshl_add_u32 v4, v5, 4, v4')
    X = 32
    for j in range(4):
        k.wait(vm=[('x', j)])
        for p in range(4):
            e(f'v_lshlrev_b32 v{X + 8 * j + 2 * p}, 16, v{8 + 4 * j + p}')
            e(f'v_and_b32 v{X + 8 * j + 2 * p + 1}, 0xffff0000, v{8 + 4 * j + p}')
    stamp(k, 2)
    if PFP == 1:
        prefetch(True, 2)
    e(f'v_add_f32 v24, v{X}, v{X + 1}')
    e(f'v_add_f32 v25, v{X + 2}, v{X + 3}')
    for i in range(4, 32):
        e(f'v_add_f32 v{24 + i % 2}, v{24 + i % 2}, v{X + i}')
    e('v_add_f32 v24, v24, v25')
    allreduce16(k, 24, 25)
    e(f's_mov_b32 s3, {f32(1.0 / 512)}')
    e('v_mul_f32 v24, s3, v24')
    for i in range(32):
        e(f'v_sub_f32 v{64 + i % 4}, v{X + i}, v24')
        if i < 2:
            e(f'v_mul_f32 v{26 + i}, v{64 + i % 4}, v{64 + i % 4}')
        else:
            e(f'v_fmac_f32 v{26 + i % 2}, v{64 + i % 4}, v{64 + i % 4}')
    e('v_add_f32 v26, v26, v27')
    allreduce16(k, 26, 27)
    e('v_mul_f32 v26, s3, v26')
    rbf(k, 24, 24)
    rbf(k, 26, 26)
    e(f'v_add_f32 v26, {f32(1e-5)}, v26')
    rbf(k, 26, 26)
    e('v_sqrt_f32 v26, v26')
    rbf(k, 26, 26)
    e('v_rcp_f32 v26, v26')
    e(f's_mov_b32 s24, {WS_XHAT}')
    for j in range(4):
        for i in range(8):
            r = X + 8 * j + i
            e(f'v_sub_f32 v{r}, v{r}, v24')
        for i in range(8):
            r = X + 8 * j + i
            rbf(k, r, r)
        for i in range(8):
            r = X + 8 * j + i
            e(f'v_mul_f32 v{r}, v{r}, v26')
        for i in range(8):
            r = X + 8 * j + i
            rbf(k, r, r)
        for p in range(4):
            r = X + 8 * j + 2 * p
            e(f'v_cvt_pkrtz_f16_f32 v{8 + 4 * j + p}, v{r}, v{r + 1}')
        e(f'buffer_store_dwordx4 v[{8 + 4 * j}:{11 + 4 * j}], v4, s[16:19], s24 offen')
        if j < 3:
            e(f's_add_u32 s24, s24, 8192')
    if PFP == 2:
        prefetch(True, 2)
    stamp(k, 3)
    stamp_flush(k, 4, 16, 0)
    k.label('prep_end')
    e('s_endpgm')
    return k, f'grid=({NMOD + NLN},1,1) block=(256,1,1) lds=9216'


COST = {'exp': 2, 'valu': 1, 'ds': 1, 'dma': 2.5, 'salu': 1, 'vload': 2.5}
GAPCAP = 6
ORDER = {'wait': 0, 'bar': 1, 'dma': 2, 'ds': 3, 'end': 9}


def schedule(k, mfmas, fixed, stream, last_gap=None, cap=GAPCAP, caps=None):
    n = len(mfmas)
    if last_gap is None:
        last_gap = n - 1
    spare = []
    for g in range(n):
        c = sum(x[0] for x in fixed.get(g, []))
        cp = caps.get(g, cap) if caps else cap
        spare.append(max(cp - c, 0) if g <= last_gap else 0)
    tot_spare = sum(spare)
    tot = sum(x[0] for x in stream)
    si = 0
    done = 0.0
    cum = 0
    lastg = max([g for g in range(n) if spare[g] > 0] or [n - 1])
    for g in range(n):
        mfmas[g]()
        fx = sorted(fixed.get(g, []), key=lambda x: ORDER[x[2]])
        cum += spare[g]
        target = tot * cum / max(tot_spare, 1)
        mine = []
        while si < len(stream) and ((spare[g] > 0 and done + stream[si][0] * 0.5 <= target) or g >= lastg):
            mine.append(stream[si]); done += stream[si][0]; si += 1
        for x in fx:
            if x[2] != 'end': x[1]()
        for x in mine: x[1]()
        for x in fx:
            if x[2] == 'end': x[1]()
    assert si == len(stream)


def gemm256(k, P):
    e = k.e
    QX = P.get('qx', '')
    P['chunk_barrier'](0)
    for _, f in P['ss_reads'](0) + P['w_reads'](0) + P['ss_reads'](1): f()
    k.wait(vm=[('x', 0)], lg=[('ss', 0)])
    for _, f in P['xform'](0): f()
    k.wait(lg=[('w', 0)])
    for ks in range(32):
        mf = []
        for db in range(4):
            for qb in range(2):
                def m(db=db, qb=qb):
                    acc = P['ACC'] + (db * 2 + qb) * 16
                    wf = P['WF'] + (ks % 2) * 16 + db * 4
                    h = P['H'] + (ks % 2) * 8 + qb * 4
                    c = '0' if ks == 0 else ar(acc, 16)
                    e(f'v_mfma_f32_32x32x16_bf16 {ar(acc, 16)}, {ar(wf, 4)}, {vr(h, 4)}, {c}')
                mf.append(m)
        fx = {}
        st = []
        caps = {}
        if ks + 1 < 32:
            newc = (ks + 1) % 4 == 0
            if newc:
                fx.setdefault(0, []).append((0, lambda: k.wait(vm=[('wq', (ks + 1) // 4), ('x', ks + 1)], lg=[('ss', ks + 1)]), 'wait'))
                if 'B' not in QX: fx.setdefault(0, []).append((6, lambda: e('s_barrier'), 'bar'))
                caps[1] = 4
            else:
                fx.setdefault(0, []).append((0, lambda: k.wait(vm=[('x', ks + 1)], lg=[('ss', ks + 1)]), 'wait'))
            g0 = 1 if newc else 0
            rd = (P['ss_reads'](ks + 2) if ks + 2 < 32 and 'S' not in QX else []) + (P['w_reads'](ks + 1) if 'W' not in QX else [])
            for i, it in enumerate(rd):
                fx.setdefault(g0 + i // 3, []).append((it[0], it[1], 'ds'))
            st = P['xform'](ks + 1) if 'T' not in QX else []
            fx.setdefault(7, []).append((0, lambda: k.wait(lg=[('w', ks + 1)]), 'wait'))
        groups = P['refill'](ks)
        if 'V' in QX: groups = []
        gl = [5, 6, 4, 7, 3, 2][:len(groups)]
        gl.sort()
        for g, grp in zip(gl, groups):
            for it in grp[:-1]:
                fx.setdefault(g - 1, []).append((it[0], it[1], 'end'))
            fx.setdefault(g, []).append((grp[-1][0], grp[-1][1], 'dma'))
        schedule(k, mf, fx, st, caps=caps, last_gap=6, cap=7)


class G256:
    pass


BIAS = 100.0
THRESH = 2.0 ** 90


def gen_attn(opts, tail_cb=None):
    global BIAS
    MEGA = tail_cb is not None
    SI = (lambda i: {0: 0, 5: 1}.get(i, -1)) if MEGA else (lambda i: i)
    BIAS = opts.get('bias', BIAS)
    k = Kern('attn_kernel')
    e = k.e
    sK, sV, sWQ, sWS = 8, 12, 16, 20
    sW, sW4K, sKoff, sVoff, sCnt, sThr, sXb, sT0, sT1, sOb = 32, 33, 34, 35, 36, 37, 38, 39, 40, 41
    sLink = 44
    S = [8, 40]; NEGM = 72; P = [104, 120]; Q = 136; ET = 200
    LS = [208, 209]; L = [210, 211]; TMP = 212
    KR = 216; VR = 224; DK = 228; DV = 232; VL16 = 233; VMD = 234; VLANE = 235
    O = 0; KF = 128; VF = 160
    LDS_K, LDS_V, LDS_MOD = 0, 65536, 131072

    e('s_cmp_ge_u32 s2, 256')
    e('s_cbranch_scc1 attn_end')
    stamp(k, SI(0))
    e(f's_load_dwordx4 s[4:7], s[0:1], {A_K}')
    e(f's_load_dwordx2 s[24:25], s[0:1], {A_WQ}')
    e(f's_load_dwordx2 s[26:27], s[0:1], {A_WS}')
    e(f's_load_dwordx2 s[48:49], s[0:1], {A_WO}')
    e(f's_load_dwordx4 s[52:55], s[0:1], {A_W3}')
    e(f's_load_dwordx2 s[50:51], s[0:1], {A_W1}')
    if MEGA:
        e(f's_load_dwordx2 s[60:61], s[0:1], {A_X}')
        e(f's_load_dwordx4 s[56:59], s[0:1], {A_W1}')
        e(f's_load_dwordx2 s[62:63], s[0:1], {A_OUT}')
    e('s_and_b32 s28, s2, 7')
    e('s_lshl_b32 s28, s28, 2')
    e('s_lshr_b32 s29, s2, 3')
    e('s_and_b32 s30, s29, 3')
    e('s_add_u32 s28, s28, s30')
    e('s_lshr_b32 s29, s29, 2')
    e('v_lshrrev_b32 v1, 6, v0')
    e(f'v_and_b32 v{VLANE}, 63, v0')
    e(f'v_readfirstlane_b32 s{sW}, v1')
    e(f'v_lshlrev_b32 v{VL16}, 4, v{VLANE}')
    e(f's_lshl_b32 s{sW4K}, s{sW}, 12')
    e(f'v_lshrrev_b32 v2, 4, v{VLANE}')
    e(f'v_and_b32 v3, 15, v{VLANE}')
    e(f'v_lshrrev_b32 v4, 5, v{VLANE}')
    e(f'v_and_b32 v5, 31, v{VLANE}')
    e('v_lshlrev_b32 v6, 2, v2')
    e('v_xor_b32 v6, v6, v3')
    e('v_lshlrev_b32 v6, 4, v6')
    e(f'v_lshl_add_u32 v{DV}, v2, 8, v6')
    e(f'v_add_u32 v{DV}, s{sW4K}, v{DV}')
    e(f's_lshl_b32 s3, s{sW}, 17')
    e('v_lshl_add_u32 v7, v2, 13, v6')
    e('v_add_u32 v7, s3, v7')
    e('s_waitcnt lgkmcnt(0)')
    e('s_lshl_b32 s3, s28, 19')
    e('s_add_u32 s4, s4, s3'); e('s_addc_u32 s5, s5, 0')
    e('s_add_u32 s6, s6, s3'); e('s_addc_u32 s7, s7, 0')
    srd(k, sK, 4, 5, 524288)
    srd(k, sV, 6, 7, 524288)
    e('s_lshl_b32 s3, s28, 8')
    e('s_add_u32 s24, s24, s3'); e('s_addc_u32 s25, s25, 0')
    e(f's_mov_b32 s{sWQ}, s24'); e(f's_and_b32 s{sWQ + 1}, s25, 0xffff')
    e(f's_sub_u32 s{sWQ + 2}, {512 * 8192}, s3'); e(f's_mov_b32 s{sWQ + 3}, 0x00020000')
    srd(k, sWS, 26, 27, WS_SIZE)
    e('s_lshl_b32 s3, s29, 3')
    e(f's_lshl_b32 s{sT0}, s{sW}, 1')
    e(f's_add_u32 s3, s3, s{sT0}')
    e(f's_lshl_b32 s{sXb}, s3, 15')
    e(f's_add_u32 s{sXb}, s{sXb}, {WS_XHAT}')
    e(f's_lshl_b32 s{sOb}, s3, 18')
    e(f's_lshl_b32 s{sT0}, s28, 13')
    e(f's_add_u32 s{sOb}, s{sOb}, s{sT0}')
    e(f's_add_u32 s{sOb}, s{sOb}, {WS_O}')

    XR = 8; H = 136; SS = 152; FT = 184; WRA = 200; WF = 128
    chunk_slot = [LDS_K, LDS_K + 16384, LDS_V, LDS_K + 32768, LDS_K + 49152, LDS_V + 16384, LDS_V + 32768, LDS_V + 49152]

    def wq_dma(c):
        out = []
        for p in range(4):
            g = []
            if p == 0:
                g.append((1, lambda: e(f's_add_u32 m0, s{sW4K}, {chunk_slot[c]}')))
            g.append((1, lambda p=p: e(f's_mov_b32 s{sT0}, {c * 524288 + p * (32768 - 1024)}')))
            g.append((COST['dma'], lambda p=p: e(f'buffer_load_dwordx4 v7, s[{sWQ}:{sWQ + 3}], s{sT0} offen offset:{p * 1024} lds', ('wq', c))))
            out.append(g)
        return out

    def xreg(ks, qb):
        return XR + (((ks // 4) % 4) * 8 + (ks % 4) * 2 + qb) * 4

    def x_load(ks, qb):
        c = ks // 4
        out = []
        so = (sT1, 43)[qb]
        if ks % 4 == 0:
            out.append((1, lambda: e(f's_add_u32 s{so}, s{sXb}, {qb * 32768 + c * 4096}')))
        r = xreg(ks, qb)
        out.append((COST['vload'], lambda: e(f'buffer_load_dwordx4 v[{r}:{r + 3}], v{VL16}, s[{sWS}:{sWS + 3}], s{so} offen offset:{(ks % 4) * 1024}', ('x', ks))))
        return out

    e(f's_lshl_b32 s{sT0}, s{sW}, 10')
    e(f's_add_u32 m0, s{sT0}, {LDS_MOD}')
    e(f's_add_u32 s{sT0}, s{sT0}, {WS_MOD1}')
    e(f'buffer_load_dwordx4 v{VL16}, s[{sWS}:{sWS + 3}], s{sT0} offen lds', ('wq', 0))
    NPRE = opts.get('npre', 1)
    NPX = opts.get('npx', NPRE)
    for c in range(max(NPRE, NPX)):
        for g in (wq_dma(c) if c < NPRE else []):
            for _, f in g: f()
        for ks in (range(4 * c, 4 * c + 4) if c < NPX else []):
            for qb in range(2):
                for _, f in x_load(ks, qb): f()
    e('v_lshrrev_b32 v236, 2, v3')
    e(f'v_and_b32 v237, 3, v{VLANE}')
    e('v_and_b32 v238, 1, v2')
    e('v_lshlrev_b32 v238, 5, v238')
    e('v_and_b32 v239, 1, v237')
    e('v_lshl_add_u32 v238, v239, 4, v238')
    e('v_lshrrev_b32 v239, 1, v237')
    e('v_lshl_add_u32 v238, v239, 3, v238')
    e('v_lshl_add_u32 v238, v236, 8, v238')
    for db in range(4):
        e(f'v_xor_b32 v239, {db}, v236')
        e(f'v_lshl_add_u32 v239, v239, 6, v238')
        e(f'v_lshl_add_u32 v{WRA + db}, v4, 11, v239')
        e(f'v_add_u32 v{WRA + 4 + db}, {LDS_V}, v{WRA + db}')
        e(f'v_lshl_add_u32 v{VR + db}, v4, 10, v239')
        e(f'v_add_u32 v{VR + db}, {LDS_V}, v{VR + db}')
    for ks in range(8):
        e(f'v_add_u32 v239, {2 * ks}, v4')
        e('v_xor_b32 v239, v239, v3')
        e('v_lshlrev_b32 v239, 4, v239')
        e(f'v_lshl_add_u32 v{KR + ks}, v5, 8, v239')
    for p in range(4):
        e(f'v_add_u32 v239, {4 * p}, v2')
        e('v_xor_b32 v239, v239, v3')
        e('v_lshlrev_b32 v239, 4, v239')
        e('v_lshl_add_u32 v239, v2, 8, v239')
        e(f'v_add_u32 v{DK + p}, s{sW4K}, v239')
    e(f'v_lshlrev_b32 v{VMD}, 6, v4')
    e(f'v_add_u32 v{VMD}, {LDS_MOD}, v{VMD}')
    e(f's_mov_b32 s{sThr}, {f32(THRESH)}')

    def w_reads(ks):
        c = ks // 4
        slot = chunk_slot[c]
        base = WRA + 4 if slot >= LDS_V else WRA
        off0 = (slot % 65536) + (ks % 4) * 16 * 256
        out = []
        for db in range(4):
            for t in range(2):
                r = WF + (ks % 2) * 16 + db * 4 + t * 2
                out.append((COST['ds'], lambda r=r, db=db, t=t: e(f'ds_read_b64_tr_b16 a[{r}:{r + 1}], v{base + db} offset:{off0 + t * 1024}', ('w', ks))))
        return out

    def ss_reads(ks):
        out = []
        for j in range(4):
            r = SS + (ks % 2) * 16 + 4 * j
            out.append((COST['ds'], lambda r=r, j=j: e(f'ds_read_b128 v[{r}:{r + 3}], v{VMD} offset:{ks * 128 + j * 16}', ('ss', ks))))
        return out

    def xform(ks):
        out = []
        sb = SS + (ks % 2) * 16
        for qb in range(2):
            x = xreg(ks, qb)
            for p in range(4):
                t = FT + (qb * 4 + p) * 2
                out.append((1, lambda x=x, p=p, t=t: e(f'v_fma_mix_f32 v{t}, v{x + p}, v{sb + 2 * p}, v{sb + 8 + 2 * p} op_sel_hi:[1,0,0]')))
                out.append((1, lambda x=x, p=p, t=t: e(f'v_fma_mix_f32 v{t + 1}, v{x + p}, v{sb + 2 * p + 1}, v{sb + 8 + 2 * p + 1} op_sel:[1,0,0] op_sel_hi:[1,0,0]')))
                h = H + (ks % 2) * 8 + qb * 4 + p
                out.append((1, lambda t=t, h=h: e(f'v_cvt_pk_bf16_f32 v{h}, v{t}, v{t + 1}')))
        return out

    def chunk_barrier(c):
        stamp(k, SI(1))
        k.wait(vm=[('wq', c)])
        e('s_barrier')
        stamp(k, SI(2))

    def kv_dma(which, tile):
        out = []
        slot = tile % 4
        for p in range(4):
            g = []
            if p == 0:
                g.append((1, lambda: e(f's_add_u32 m0, s{sW4K}, {(LDS_K if which == "K" else LDS_V) + slot * 16384}')))
                g.append((1, lambda: e(f's_mov_b32 s{sT0}, {tile * 16384}')))
            if which == 'K':
                g.append((COST['dma'], lambda p=p: e(f'buffer_load_dwordx4 v{DK + p}, s[{sK}:{sK + 3}], s{sT0} offen offset:{p * 1024} lds', ('K', tile))))
            else:
                g.append((COST['dma'], lambda p=p: e(f'buffer_load_dwordx4 v{DV}, s[{sV}:{sV + 3}], s{sT0} offen offset:{p * 1024} lds', ('V', tile))))
            out.append(g)
        return out

    todo = []
    WL = opts.get('wlead', 0)
    seq = []
    for c in range(NPRE, 8 + WL):
        if c - WL < NPRE + 0 and c < 8 and False:
            pass
    wn = NPRE; xn = NPX
    while wn < 8 or xn < 8:
        if wn < 8 and wn <= xn + WL:
            todo += [(0, g) for g in wq_dma(wn)]; wn += 1
        else:
            for ks in range(4 * xn, 4 * xn + 4):
                todo += [(ks - 16, x_load(ks, 0)), (ks - 16, x_load(ks, 1))]
            xn += 1
    todo += [(4, g) for g in kv_dma('K', 0)] + [(8, g) for g in kv_dma('K', 1)] + [(12, g) for g in kv_dma('V', 0)]
    RATE = opts.get('rate', 4)

    def refill(ks):
        out = []
        while todo and len(out) < RATE and todo[0][0] <= ks:
            out.append(todo.pop(0)[1])
        return out

    gemm256(k, dict(w_reads=w_reads, ss_reads=ss_reads, xform=xform, refill=refill, chunk_barrier=chunk_barrier,
                    ACC=O, WF=WF, H=H, qx=opts.get('qx', '')))
    assert not todo

    cq = LOG2E / math.sqrt(128.0)
    e(f's_mov_b32 s3, {f32(cq)}')
    stamp(k, SI(3))
    k.wait(vm=[('K', 0)])
    e('s_barrier')

    def k_read(blk, ks):
        tile = blk // 2
        off = LDS_K + (tile % 4) * 16384 + (blk % 2) * 8192
        r = KF + 4 * ks
        return lambda: e(f'ds_read_b128 a[{r}:{r + 3}], v{KR + ks} offset:{off}', ('kf', ks))

    def v_read(blk, i):
        u, db, t = i // 8, (i // 2) % 4, i % 2
        tile = blk // 2
        off = (tile % 4) * 16384 + ((blk % 2) * 32 + 16 * u + 8 * t) * 256
        r = VF + (u * 4 + db) * 4 + 2 * t
        return lambda: e(f'ds_read_b64_tr_b16 a[{r}:{r + 1}], v{VR + db} offset:{off}', ('vf', i))

    for ks in range(8):
        k_read(0, ks)()
    for g in kv_dma('K', 2):
        for _, f in g: f()
    def conv(db):
        items = []
        for qb in range(2):
            acc = O + (db * 2 + qb) * 16
            t = 72 + ((db * 2 + qb) % 4) * 16
            items += [(1, lambda i=i, t=t, acc=acc: e(f'v_accvgpr_read_b32 v{t + i}, a{acc + i}')) for i in range(16)]
            items += [(1, lambda i=i, t=t: e(f'v_mul_f32 v{t + i}, s3, v{t + i}')) for i in range(16)]
            items += [(1, lambda i=i, t=t, qb=qb: e(f'v_cvt_pk_bf16_f32 v{Q + (qb * 8 + 2 * db + i // 4) * 4 + i % 4}, v{t + 2 * i}, v{t + 2 * i + 1}')) for i in range(8)]
        return items
    for _, f in conv(0): f()
    for g in kv_dma('V', 1):
        for _, f in g: f()
    NPF = 2 if opts.get('pf', 1) else 0
    RETILE = opts.get('retile', 1)
    sPF = 42
    if NPF:
        for i, (sp, nb) in enumerate(((48, 4096 * 1024), (50, 512 * 3584), (52, 512 * 3584), (54, 1792 * 1024))):
            srd(k, 80 + 4 * i, sp, sp + 1, nb)
        e(f's_lshl_b32 s{sPF}, s2, 12')
        e(f's_lshl_b32 s{sT0}, s{sW}, 10')
        e(f's_add_u32 s{sPF}, s{sPF}, s{sT0}')
        e(f'v_lshrrev_b32 v236, 2, v{VLANE}')
        e(f'v_lshlrev_b32 v236, 6, v236')
        e(f'buffer_load_dword v240, v236, s[92:95], s{sPF} offen', 'pf')

    def qk_mfmas(blk, czero=False, alt=False):
        out = []
        order = [(ks, qb) for qb in range(2) for ks in range(8)] if alt else [(ks, qb) for ks in range(8) for qb in range(2)]
        for ks, qb in order:
            if True:
                def m(ks=ks, qb=qb):
                    d = S[blk % 2] + 16 * qb
                    if ks == 0:
                        c = '0' if czero else vr(NEGM + 16 * qb, 16)
                    else:
                        c = vr(d, 16)
                    e(f'v_mfma_f32_32x32x16_bf16 {vr(d, 16)}, {ar(KF + 4 * ks, 4)}, {vr(Q + (qb * 8 + ks) * 4, 4)}, {c}')
                out.append(m)
        return out

    def pv_mfmas(blk, czero=False):
        out = []
        po = opts.get('pvo', 0)
        if po == 0:
            order = [(u, db, qb) for u in range(2) for db in range(4) for qb in range(2)]
        elif po == 1:
            order = [(u, db, qb) for u in range(2) for qb in range(2) for db in range(4)]
        else:
            order = [(u, db, qb) for db in range(4) for qb in range(2) for u in range(2)]
        for u, db, qb in order:
            if True:
                if True:
                    def m(u=u, db=db, qb=qb):
                        acc = O + (db * 2 + qb) * 16
                        c = '0' if (czero and u == 0) else ar(acc, 16)
                        e(f'v_mfma_f32_32x32x16_bf16 {ar(acc, 16)}, {ar(VF + (u * 4 + db) * 4, 4)}, {vr(P[blk % 2] + (qb * 2 + u) * 4, 4)}, {c}')
                    out.append(m)
        return out

    def softmax_stream(blk):
        sb = S[blk % 2]; pb = P[blk % 2]
        items = []
        pend = []
        n = 0
        for qb in range(2):
            for i in range(8):
                t = ET + (n % 4) * 2
                r = sb + qb * 16 + 2 * i
                a = [(COST['exp'], lambda t=t, r=r: e(f'v_exp_f32 v{t}, v{r}')),
                     (COST['exp'], lambda t=t, r=r: e(f'v_exp_f32 v{t + 1}, v{r + 1}'))]
                if 'E' in opts.get('x', ''):
                    a = [(COST['exp'], lambda t=t, r=r: e(f'v_mov_b32 v{t}, 0')), (COST['exp'], lambda t=t, r=r: e(f'v_mov_b32 v{t + 1}, 0'))]
                if i == 0:
                    c = [(1, lambda t=t, qb=qb: e(f'v_add_f32 v{LS[qb]}, v{t}, v{t + 1}')), None]
                else:
                    c = [(1, lambda t=t, qb=qb: e(f'v_add_f32 v{LS[qb]}, v{LS[qb]}, v{t}')),
                         (1, lambda t=t, qb=qb: e(f'v_add_f32 v{LS[qb]}, v{LS[qb]}, v{t + 1}'))]
                if 'A' in opts.get('x', '') and i > 0:
                    c = [None, None]
                pd = pb + (qb * 2 + i // 4) * 4 + i % 4
                c.append((1, lambda t=t, pd=pd: e(f'v_cvt_pk_bf16_f32 v{pd}, v{t}, v{t + 1}')))
                items.append(a[0])
                if pend and pend[0]: items.append(pend[0])
                items.append(a[1])
                for x in pend[1:]:
                    if x: items.append(x)
                pend = c
                n += 1
        for x in pend:
            if x: items.append(x)
        return items

    stubs = []

    def check_items(blk):
        lab = k.newlabel('slow'); ret = k.newlabel('ret')
        stubs.append((lab, ret, blk % 2))

        def br():
            e(f's_cbranch_vccnz {lab}')
            k.label(ret)
        return [(1, lambda: e(f'v_max_f32 v{TMP}, v{LS[0]}, v{LS[1]}')),
                (1, lambda: e(f'v_cmp_lt_f32 vcc, s{sThr}, v{TMP}')),
                (1, br),
                (1, lambda: e(f'v_add_f32 v{L[0]}, v{L[0]}, v{LS[0]}')),
                (1, lambda: e(f'v_add_f32 v{L[1]}, v{L[1]}, v{LS[1]}'))]

    KFALL = [('kf', i) for i in range(8)]
    VFALL = [('vf', i) for i in range(16)]
    mf = qk_mfmas(0, czero=True)
    k.wait(lg=KFALL)
    for db in range(4):
        fx = {}
        for ks in (2 * db - 1, 2 * db):
            if ks >= 0:
                fx.setdefault(0 if ks < 2 * db else 2, []).append((COST['ds'], k_read(1, ks), 'ds'))
        if db == 3:
            fx.setdefault(3, []).append((COST['ds'], k_read(1, 7), 'ds'))
        schedule(k, mf[4 * db:4 * db + 4], fx, conv(db + 1) if db < 3 else [])
    for qb in range(2):
        sb = S[0] + 16 * qb
        e(f'v_max3_f32 v{TMP}, v{sb}, v{sb + 1}, v{sb + 2}')
        for i in range(3, 15, 2):
            e(f'v_max3_f32 v{TMP}, v{TMP}, v{sb + i}, v{sb + i + 1}')
        e(f'v_max_f32 v{TMP}, v{TMP}, v{sb + 15}')
        e(f'v_mov_b32 v{TMP + 1}, v{TMP}')
        e(f'v_permlane32_swap_b32 v{TMP}, v{TMP + 1}')
        e(f'v_max_f32 v{TMP}, v{TMP}, v{TMP + 1}')
        e(f'v_add_f32 v{TMP}, {f32(BIAS)}, v{TMP}')
        e(f'v_sub_f32 v{NEGM + 16 * qb}, 0, v{TMP}')
        for i in range(1, 16):
            e(f'v_mov_b32 v{NEGM + 16 * qb + i}, v{NEGM + 16 * qb}')
        for i in range(16):
            e(f'v_sub_f32 v{sb + i}, v{sb + i}, v{TMP}')
        e(f'v_mov_b32 v{L[qb]}, 0')
    e(f's_mov_b32 s{sKoff}, {3 * 16384}')
    e(f's_mov_b32 s{sVoff}, {2 * 16384}')
    e(f's_mov_b32 s{sCnt}, 8')

    def step(b, do_qk=True, do_sm=True, do_pv=True, pv_zero=False, do_kread=True, do_dma=True):
        mf = []
        fx = {}
        nq = 0
        X = opts.get('x', '')
        if 'D' in X: do_dma = False
        if 'S' in X: do_sm = False
        if do_qk:
            mf += qk_mfmas(b + 1, alt=opts.get('qko', 0) and do_pv); nq = 16
        if do_pv:
            mf += pv_mfmas(b - 1, czero=pv_zero)
        n = len(mf)
        caps = {}
        full = do_qk and do_pv
        if do_pv and 'L' not in X:
            if do_qk:
                for i in range(16):
                    fx.setdefault(i // opts.get('vper', 2), []).append((COST['ds'], v_read(b - 1, i), 'ds'))
            else:
                for i in range(16):
                    v_read(b - 1, i)()
                k.wait(lg=VFALL)
        bar = b % 2 == 0 and do_kread and 'B' not in X
        gb = 15 if full else 0
        if bar:
            vmn = 8 + (NPF if b >= 2 else NPF // 2)

            def wt():
                t = k.wait_text(lg=VFALL) if full else None
                e(f's_waitcnt vmcnt({vmn})' + (t[9:] if t else ''))
            fx.setdefault(gb, []).append((0, wt, 'wait'))
            fx.setdefault(gb, []).append((6, lambda: e('s_barrier'), 'bar'))
            caps[gb + 1] = opts.get('cap_ab', 3)
            if RETILE and b == 14:
                def hook():
                    e(f's_cmp_le_u32 s{sCnt}, 4')
                    e('s_cbranch_scc1 attn_copy')
                    k.label('attn_copy_ret')
                fx.setdefault(gb + 1, []).append((2, hook, 'dma'))
        elif full:
            fx.setdefault(15, []).append((0, lambda: k.wait(lg=VFALL), 'wait'))
        if do_kread and 'L' not in X:
            for ks in range(8):
                g = (opts.get('kg0', 17) + ks // opts.get('kper', 2)) if full else min(2 * ks + 2, 15)
                fx.setdefault(g, []).append((COST['ds'], k_read(b + 2, ks), 'ds'))
            if full:
                fx.setdefault(n - 1, []).append((0, lambda: k.wait(lg=KFALL), 'wait'))
        if do_dma:
            isK = (b % 2 == 0)
            I = (b + 2) // 2 if isK else (b + 1) // 2
            if isK:
                slot = LDS_K + ((I + 2) % 4) * 16384; so = sKoff
            else:
                slot = LDS_V + ((I + 1) % 4) * 16384; so = sVoff
            gs = opts.get('dgs', [22, 24, 26, 28]) if full else [3, 5, 7, 9]
            fx.setdefault(gs[0] - 1, []).append((1, lambda: e(f's_add_u32 m0, s{sW4K}, {slot}'), 'end'))
            for p in range(4):
                va = DK + p if isK else DV
                sd = sK if isK else sV
                fx.setdefault(gs[p], []).append((COST['dma'], lambda p=p, va=va, sd=sd: e(
                    f'buffer_load_dwordx4 v{va}, s[{sd}:{sd + 3}], s{so} offen offset:{p * 1024} lds', 'kv'), 'dma'))
            fx.setdefault(gs[3] + 1, []).append((1, lambda: e(f's_add_u32 s{so}, s{so}, 16384'), 'end'))
            if NPF and not isK:
                sp = 80 + 4 * ((b // 2) % 4)
                fx.setdefault(30, []).append((COST['dma'], lambda: e(f'buffer_load_dword v240, v236, s[{sp}:{sp + 3}], s{sPF} offen', 'pf'), 'dma'))
                if b % 8 == 7:
                    fx.setdefault(30, []).append((1, lambda: e(f's_add_u32 s{sPF}, s{sPF}, 0x100000'), 'end'))
        st = []
        if do_sm:
            st = softmax_stream(b)
        ck = check_items(b) if do_sm else []
        if do_sm and opts.get('ck2', 1):
            st = st + ck[:2]; ck = ck[2:]
            caps[n - 2] = opts.get('cap_l', 5)
        schedule(k, mf, fx, st, last_gap=n - 2, caps=caps, cap=opts.get('gcap', GAPCAP))
        if do_kread and not full:
            k.wait(lg=KFALL)
        for _, f in ck: f()

    stamp(k, SI(4))
    k.wait(lg=KFALL)
    step(0, do_pv=False)
    step(1, pv_zero=True)
    e('s_branch attn_ent')
    e('.p2align 6')
    k.label('attn_loop')
    for pos in range(8):
        if pos == 2:
            k.label('attn_ent')
        step(8 + pos)
        if pos == 6:
            e(f's_sub_u32 s{sCnt}, s{sCnt}, 1')
            e(f's_cmp_eq_u32 s{sCnt}, 0')
            e('s_cbranch_scc1 attn_tail')
            if opts.get('refresh'):
                mask = sum(1 << c for c in opts['refresh'])
                e(f's_lshr_b32 s{sT0}, {mask}, s{sCnt}')
                e(f's_bitcmp1_b32 s{sT0}, 0')
                e(f's_cselect_b32 s{sThr}, {f32(-1.0)}, s{sThr}')
        if pos == 7 and opts.get('refresh'):
            e(f's_mov_b32 s{sThr}, {f32(THRESH)}')
    e('s_branch attn_loop')
    k.label('attn_tail')
    k.lgq = []
    if opts.get('t23', 0):
        e(f'v_lshrrev_b32 v238, 2, v{VLANE}')
        e('v_lshlrev_b32 v238, 10, v238')
        e(f'v_and_b32 v239, 3, v{VLANE}')
        e('v_lshl_add_u32 v238, v239, 7, v238')
        e(f's_lshr_b32 s{sT0}, s2, 3')
        e(f's_lshl_b32 s{sT0}, s{sT0}, 2')
        e(f's_add_u32 s{sT0}, s{sT0}, s{sW}')
        e(f's_lshl_b32 s{sT0}, s{sT0}, 15')
        e(f's_and_b32 s{sT1}, s2, 1')
        e(f's_lshl_b32 s{sT1}, s{sT1}, 9')
        e(f's_add_u32 s{sT0}, s{sT0}, s{sT1}')
        e(f'buffer_load_dword v237, v238, s[80:83], s{sT0} offen', 'pf')
        e(f's_add_u32 s{sT0}, s{sT0}, 16384')
        e(f'buffer_load_dword v239, v238, s[80:83], s{sT0} offen', 'pf')
    if MEGA:
        e(f's_mov_b32 s{sT0}, {WS_FC}')
        e(f'buffer_load_dwordx4 v[244:247], v{VL16}, s[{sWS}:{sWS + 3}], s{sT0} offen sc1', 'fc')
    step(63, do_qk=False, do_kread=False, do_dma=False)
    step(64, do_qk=False, do_sm=False, do_kread=False, do_dma=False)
    if MEGA:
        e('s_barrier')

    stamp(k, SI(5))
    for qb in range(2):
        e(f'v_mov_b32 v{TMP}, v{L[qb]}')
        e(f'v_permlane32_swap_b32 v{L[qb]}, v{TMP}')
        e(f'v_add_f32 v{L[qb]}, v{L[qb]}, v{TMP}')
        e(f'v_rcp_f32 v{L[qb]}, v{L[qb]}')
    n = 0
    for qb in range(2):
        e(f's_add_u32 s{sT0}, s{sOb}, {qb * 262144}')
        e(f's_add_u32 s{sT1}, s{sOb}, {qb * 262144 + 4096}')
        for db in range(4):
            for u in range(2):
                acc = O + (db * 2 + qb) * 16 + 8 * u
                t = 8 + (n % 4) * 16; n += 1
                for i in range(8):
                    e(f'v_accvgpr_read_b32 v{t + i}, a{acc + i}')
                for i in range(8):
                    e(f'v_mul_f32 v{t + i}, v{t + i}, v{L[qb]}')
                for i in range(4):
                    e(f'v_cvt_pk_bf16_f32 v{t + 8 + i}, v{t + 2 * i}, v{t + 2 * i + 1}')
                kk = 2 * db + u
                so = sT0 if kk < 4 else sT1
                e(f'buffer_store_dwordx4 v[{t + 8}:{t + 11}], v{VL16}, s[{sWS}:{sWS + 3}], s{so} offen offset:{(kk % 4) * 1024}{opts.get("ost", " sc1")}')
    if MEGA:
        srd(k, 12, 26, 27, WS_SIZE)
        e('s_lshl_b32 s46, s29, 2')
        e(f's_add_u32 s46, s46, s{sW}')
        e('s_lshl_b32 s46, s46, 7')
        e('s_lshl_b32 s3, s28, 2')
        e('s_add_u32 s46, s46, s3')
        e(f's_add_u32 s46, s46, {WS_FO}')
        e('s_waitcnt vmcnt(16)')
        e('s_mov_b32 s48, 0x40000')
        k.label('attn_fc')
        e('v_min_u32 v244, v244, v245')
        e('v_min3_u32 v244, v244, v246, v247')
        e('v_cmp_eq_u32 vcc, 0, v244')
        e('s_cbranch_vccz attn_fc_go')
        e('s_sleep 2')
        e(f's_mov_b32 s{sT0}, {WS_FC}')
        e(f'buffer_load_dwordx4 v[244:247], v{VL16}, s[{sWS}:{sWS + 3}], s{sT0} offen sc1', 'fc')
        k.vmq.pop()
        e('s_waitcnt vmcnt(0)')
        k.vmq = ['st'] * 16
        e('s_sub_u32 s48, s48, 1')
        e('s_cmp_lg_u32 s48, 0')
        e('s_cbranch_scc1 attn_fc')
        k.label('attn_fc_go')
        tail_cb(k)
    else:
        stamp(k, SI(6))
        stamp_flush(k, 7, sWS, 1)
    k.label('attn_end')
    e('s_endpgm')

    if RETILE:
        CP = 192
        k.label('attn_copy')
        e(f's_cmp_le_u32 s{sCnt}, 2')
        e('s_cbranch_scc1 attn_copy_flag' if MEGA else 's_cbranch_scc1 attn_copy_ret')
        e(f's_lshl_b32 s{sT0}, s2, 2')
        e(f's_add_u32 s{sT0}, s{sT0}, s{sW}')
        e(f's_cmp_eq_u32 s{sCnt}, 3')
        e('s_cbranch_scc1 attn_copy_st')
        e(f's_lshl_b32 s{sT1}, s{sT0}, 12')
        for i in range(4):
            e(f'buffer_load_dwordx4 a[{CP + 4 * i}:{CP + 4 * i + 3}], v{VL16}, s[80:83], s{sT1} offen offset:{i * 1024}')
        e(f's_lshl_b32 s{sT1}, s{sT0}, 11')
        for i in range(2):
            e(f'buffer_load_dwordx4 a[{CP + 16 + 4 * i}:{CP + 19 + 4 * i}], v{VL16}, s[92:95], s{sT1} offen offset:{i * 1024}')
        e('s_branch attn_copy_ret')
        k.label('attn_copy_st')
        e(f'v_lshrrev_b32 v238, 3, v{VLANE}')
        e(f'v_and_b32 v239, 7, v{VLANE}')
        e('v_lshlrev_b32 v239, 4, v239')
        SK = opts.get('sk', 0)
        if SK:
            e(f'v_lshrrev_b32 v237, 4, v{VLANE}')
            e('v_lshlrev_b32 v237, 20, v237')
            e(f'v_and_b32 v241, 15, v{VLANE}')
            e('v_lshl_add_u32 v237, v241, 4, v237')
        else:
            e('v_lshl_add_u32 v237, v238, 19, v239')
        e('v_lshl_add_u32 v238, v238, 18, v239')
        e(f's_lshl_b32 s{sT1}, s{sT0}, {10 if SK else 9}')
        e(f's_add_u32 s{sT1}, s{sT1}, {WS_WOT}')
        for i in range(4):
            e(f'buffer_store_dwordx4 a[{CP + 4 * i}:{CP + 4 * i + 3}], v237, s[{sWS}:{sWS + 3}], s{sT1} offen offset:{i * (256 if SK else 128)} sc1')
        e(f's_lshl_b32 s{sT1}, s{sT0}, 8')
        e(f's_add_u32 s{sT1}, s{sT1}, {WS_W2T}')
        for i in range(2):
            e(f'buffer_store_dwordx4 a[{CP + 16 + 4 * i}:{CP + 19 + 4 * i}], v238, s[{sWS}:{sWS + 3}], s{sT1} offen offset:{i * 128} sc1')
        e('s_branch attn_copy_ret')
        if MEGA:
            k.label('attn_copy_flag')
            e(f's_cmp_lg_u32 s{sCnt}, 2')
            e('s_cbranch_scc1 attn_copy_ret')
            e(f's_cmp_lg_u32 s{sW}, 0')
            e('s_cbranch_scc1 attn_copy_ret')
            e(f's_lshl_b32 s{sT1}, s2, 2')
            e(f's_add_u32 s{sT1}, s{sT1}, {WS_FC}')
            e('v_mov_b32 v238, 0')
            e('v_mov_b32 v239, 1')
            e('s_mov_b64 exec, 1')
            e(f'buffer_store_dword v239, v238, s[{sWS}:{sWS + 3}], s{sT1} offen sc1')
            e('s_mov_b64 exec, -1')
            e('s_branch attn_copy_ret')

    for lab, ret, par in stubs:
        k.label(lab)
        e(f's_call_b64 s[{sLink}:{sLink + 1}], attn_slow{par}')
        e(f's_branch {ret}')
    for par in range(2):
        k.label(f'attn_slow{par}')
        e('s_nop 15'); e('s_nop 15')
        D0 = [TMP + 2, TMP + 3]
        for qb in range(2):
            sb = S[par] + 16 * qb; sn = S[1 - par] + 16 * qb
            e(f'v_max3_f32 v{TMP}, v{sb}, v{sb + 1}, v{sb + 2}')
            for i in range(3, 15, 2):
                e(f'v_max3_f32 v{TMP}, v{TMP}, v{sb + i}, v{sb + i + 1}')
            e(f'v_max_f32 v{TMP}, v{TMP}, v{sb + 15}')
            e(f'v_mov_b32 v{TMP + 1}, v{TMP}')
            e(f'v_permlane32_swap_b32 v{TMP}, v{TMP + 1}')
            e(f'v_max_f32 v{TMP}, v{TMP}, v{TMP + 1}')
            if opts.get('refresh'):
                e(f'v_mov_b32 v{ET}, v{L[qb]}')
                e(f'v_mov_b32 v{ET + 1}, v{L[qb]}')
                e(f'v_permlane32_swap_b32 v{ET}, v{ET + 1}')
                e(f'v_add_f32 v{ET}, v{ET}, v{ET + 1}')
                e(f'v_log_f32 v{ET}, v{ET}')
                e(f'v_max_f32 v{TMP}, v{TMP}, v{ET}')
            e(f'v_add_f32 v{TMP}, {f32(BIAS)}, v{TMP}')
            e(f'v_max_f32 v{TMP}, 0, v{TMP}')
            e(f'v_ceil_f32 v{TMP}, v{TMP}')
            e(f'v_sub_f32 v{TMP + 1}, 0, v{TMP}')
            e(f'v_cvt_i32_f32 v{D0[qb]}, v{TMP + 1}')
            for i in range(16):
                e(f'v_sub_f32 v{NEGM + 16 * qb + i}, v{NEGM + 16 * qb + i}, v{TMP}')
                e(f'v_sub_f32 v{sb + i}, v{sb + i}, v{TMP}')
                e(f'v_sub_f32 v{sn + i}, v{sn + i}, v{TMP}')
            e(f'v_ldexp_f32 v{L[qb]}, v{L[qb]}, v{D0[qb]}')
            for db in range(4):
                acc = O + (db * 2 + qb) * 16
                for i in range(16):
                    t = ET + i % 8
                    e(f'v_accvgpr_read_b32 v{t}, a{acc + i}')
                    e(f'v_ldexp_f32 v{t}, v{t}, v{D0[qb]}')
                    e(f'v_accvgpr_write_b32 a{acc + i}, v{t}')
        for _, f in softmax_stream(par): f()
        e('s_nop 3')
        e(f's_setpc_b64 s[{sLink}:{sLink + 1}]')
    return k, 'grid=(256,1,1) block=(256,1,1) lds=135168'


sWS_T = 12
sWV_T = 32
X1KEEP = 64


def lane_id(k, v):
    k.e(f'v_mbcnt_lo_u32_b32 v{v}, -1, 0')
    k.e(f'v_mbcnt_hi_u32_b32 v{v}, -1, v{v}')


def signal(k, vt, soff, nyounger):
    e = k.e
    e(f's_waitcnt vmcnt({nyounger})')
    e(f'v_mov_b32 v{vt}, 0')
    e(f'v_mov_b32 v{vt + 1}, 1')
    e('s_mov_b64 exec, 1')
    e(f'buffer_store_dword v{vt + 1}, v{vt}, s[{sWS_T}:{sWS_T + 3}], s{soff} offen sc1', 'flag')
    e('s_mov_b64 exec, -1')


def poll(k, name, vt, vlane, soff, nflags, opts):
    e = k.e
    e(f's_cmp_lg_u32 s{sWV_T}, 0')
    e(f's_cbranch_scc1 {name}_go')
    e(f'v_min_u32 v{vt}, {nflags - 1}, v{vlane}')
    e(f'v_lshlrev_b32 v{vt}, 2, v{vt}')
    e('s_mov_b32 s48, 0x40000')
    k.label(f'{name}_poll')
    e(f'buffer_load_dword v{vt + 1}, v{vt}, s[{sWS_T}:{sWS_T + 3}], s{soff} offen sc1', 'poll')
    e('s_waitcnt vmcnt(0)')
    e(f'v_cmp_eq_u32 vcc, 0, v{vt + 1}')
    e(f's_cbranch_vccz {name}_go')
    e(f's_sleep {opts.get("sleep", 2)}')
    e('s_sub_u32 s48, s48, 1')
    e('s_cmp_lg_u32 s48, 0')
    e(f's_cbranch_scc1 {name}_poll')
    k.label(f'{name}_go')
    e('s_waitcnt vmcnt(0)')
    e('s_barrier')


BSLOT = [(0, 32768), (65536, 98304), (16384, 49152), (81920, 114688)]


def early_b(k):
    e = k.e
    items = []

    def setup():
        lane_id(k, 251)
        e('v_lshrrev_b32 v252, 4, v251')
        e('v_and_b32 v253, 15, v251')
        e('v_lshlrev_b32 v250, 2, v252')
        e('v_xor_b32 v250, v250, v253')
        e('v_lshlrev_b32 v250, 4, v250')
        e('v_mul_u32_u24 v252, 3584, v252')
        e('v_add_u32 v250, v250, v252')
        e(f's_and_b32 s54, s{sWV_T}, 1')
        e('s_cmp_eq_u32 s54, 0')
        e('s_cselect_b32 s24, s56, s58')
        e('s_cselect_b32 s25, s57, s59')
        e('s_and_b32 s25, s25, 0xffff')
        e(f's_mov_b32 s26, {512 * 3584}')
        e('s_mov_b32 s27, 0x00020000')
        e(f's_lshr_b32 s54, s{sWV_T}, 1')
        e(f's_mul_i32 s54, s54, {64 * 3584}')
        e('s_lshl_b32 s53, s51, 8')
        e('s_add_u32 s54, s54, s53')
        e(f's_lshl_b32 s53, s{sWV_T}, 15')
    items.append(setup)
    for p in range(16):
        def f(p=p):
            e(f's_add_u32 m0, s53, {p * 1024}')
            e(f's_add_u32 s52, s54, {p * 4 * 3584}')
            e('buffer_load_dwordx4 v250, s[24:27], s52 offen lds', ('wq', 0))
        items.append(f)
    return items


def early_c(k, n, which='w2', wa=''):
    e = k.e
    items = []

    def setup():
        lane_id(k, 252)
        e('v_lshrrev_b32 v253, 3, v252')
        e('v_lshlrev_b32 v251, 1, v253')
        e('v_and_b32 v251, 4, v251')
        e('v_and_b32 v252, 7, v252')
        e('v_xor_b32 v251, v251, v252')
        e('v_lshlrev_b32 v251, 4, v251')
        e('v_lshl_add_u32 v251, v253, 7, v251')
        e(f's_lshl_b32 s49, s{sWV_T}, 15')
        e('s_and_b32 s55, s2, 1')
        e('s_lshl_b32 s55, s55, 2')
        e('s_lshr_b32 s47, s2, 6')
        e('s_add_u32 s55, s55, s47')
        e(f's_lshl_b32 s55, s55, {18 if which == "w2" else 19}')
        e(f's_mul_i32 s47, s{sWV_T}, {(28 if which == "w2" else 64) * 2048}')
        e('s_add_u32 s55, s55, s47')
        e(f's_add_u32 s55, s55, {WS_W2T if which == "w2" else WS_WOT}')
    items.append(setup)
    for ks in range(n):
        def f(ks=ks):
            e(f's_add_u32 m0, s49, {ks * 2048}')
            e('s_nop 0')
            e(f'buffer_load_dwordx4 v251, s[{sWS_T}:{sWS_T + 3}], s55 offen{wa} lds', ('g', ks))
            e(f'buffer_load_dwordx4 v251, s[{sWS_T}:{sWS_T + 3}], s55 offen offset:1024{wa} lds', ('g', ks))
            e('s_add_u32 s55, s55, 2048')
        items.append(f)
    return items


def phase_gemm64(k, which, opts, dep, out_flag, keep_x1, sbase, early=None):
    e = k.e
    name = 'pa' if which == 'wo' else 'pc'
    NKS = 256 if which == 'wo' else 112
    KW = NKS // 4
    D = 16 if which == 'wo' else 14
    NIT = KW // D
    WS_XIN = WS_O if which == 'wo' else WS_HH
    sWS, sG = sWS_T, 16
    sWv, sXo, sWo, sT0, sLb, sCnt, sXo1 = sWV_T, 33, 34, 35, 37, 38, 39
    ACC = 8
    XF = 72
    WFr = 200
    VL16, VDW, VWR = 216, 217, 218
    EP = 220
    XA = ' sc1' if dep else ''
    SA = ' sc1' if out_flag else ''
    WA = ' sc1' if opts.get('mega') else ''
    POFF = 16384
    if dep:
        VDW, sWo, sLb = 251, 55, 49
    e('s_bfe_u32 s28, s2, 0x20001')
    e('s_lshl_b32 s28, s28, 3')
    e('s_bfe_u32 s30, s2, 0x30003')
    e('s_add_u32 s28, s28, s30')
    e('s_and_b32 s29, s2, 1')
    e('s_lshl_b32 s29, s29, 2')
    e('s_lshr_b32 s30, s2, 6')
    e('s_add_u32 s29, s29, s30')
    lane_id(k, 2)
    e(f'v_lshlrev_b32 v{VL16}, 4, v2')
    if not dep:
        e('v_lshrrev_b32 v3, 3, v2')
        e('v_and_b32 v4, 7, v2')
        e('v_lshlrev_b32 v5, 1, v3')
        e('v_and_b32 v5, 4, v5')
        e('v_xor_b32 v4, v4, v5')
        e('v_lshlrev_b32 v4, 4, v4')
        e(f'v_lshl_add_u32 v{VDW}, v3, 7, v4')
        e(f's_lshl_b32 s{sLb}, s{sWv}, 15')
    e(f's_mul_i32 s{sXo}, s28, {2 * NKS * 1024}')
    e(f's_mul_i32 s{sT0}, s{sWv}, {KW * 1024}')
    e(f's_add_u32 s{sXo}, s{sXo}, s{sT0}')
    e(f's_add_u32 s{sXo}, s{sXo}, {WS_XIN}')
    e(f's_add_u32 s{sXo1}, s{sXo}, {NKS * 1024}')
    if not dep:
        e(f's_mul_i32 s{sWo}, s{sWv}, {KW * 2048}')
        e(f's_lshl_b32 s{sT0}, s29, {19 if which == "wo" else 18}')
        e(f's_add_u32 s{sWo}, s{sWo}, s{sT0}')
        e(f's_add_u32 s{sWo}, s{sWo}, {WS_WOT if which == "wo" else WS_W2T}')
    e(f's_lshr_b32 s40, s{sWv}, 1')
    e(f's_and_b32 s47, s{sWv}, 1')
    e('s_lshl_b32 s41, s29, 6')
    e('s_lshl_b32 s42, s40, 5')
    e('s_add_u32 s41, s41, s42')
    e('s_lshl_b32 s42, s28, 6')
    e('s_lshl_b32 s43, s47, 5')
    e('s_add_u32 s42, s42, s43')
    e('v_lshrrev_b32 v4, 5, v2')
    e('v_and_b32 v5, 31, v2')
    e('v_add_u32 v6, s42, v5')
    e('v_lshlrev_b32 v6, 10, v6')
    e('v_lshl_add_u32 v6, v4, 4, v6')
    e('s_lshl_b32 s43, s41, 1')
    e('v_add_u32 v6, s43, v6')
    e('s_lshl_b32 s43, s42, 10')
    e('s_lshl_b32 s44, s41, 6')
    e('s_add_u32 s43, s43, s44')
    e(f's_add_u32 s43, s43, {WS_X1}')
    e('v_lshlrev_b32 v7, 5, v4')
    e('s_lshl_b32 s44, s41, 2')
    e(f's_add_u32 s44, s44, {WS_GA if which == "wo" else WS_GB}')
    yield 'setup'
    sp = 60 if which == 'wo' else 62
    srd(k, sG, sp, sp + 1, 2048 * 1024)

    def loads(ks):
        sl = ks % D
        r0 = XF + sl * 8
        return dict(
            m0=lambda: e(f's_add_u32 m0, s{sLb}, {sl * 2048}'),
            w0=lambda: e(f'buffer_load_dwordx4 v{VDW}, s[{sWS}:{sWS + 3}], s{sWo} offen{WA} lds', ('g', ks)),
            w1=lambda: e(f'buffer_load_dwordx4 v{VDW}, s[{sWS}:{sWS + 3}], s{sWo} offen offset:1024{WA} lds', ('g', ks)),
            x0=lambda: e(f'buffer_load_dwordx4 v[{r0}:{r0 + 3}], v{VL16}, s[{sWS}:{sWS + 3}], s{sXo} offen offset:{(ks % 2) * 1024}{XA}{opts.get("xa", "")}', ('g', ks)),
            x1=lambda: e(f'buffer_load_dwordx4 v[{r0 + 4}:{r0 + 7}], v{VL16}, s[{sWS}:{sWS + 3}], s{sXo1} offen offset:{(ks % 2) * 1024}{XA}{opts.get("xa", "")}', ('g', ks)),
            uw=lambda: e(f's_add_u32 s{sWo}, s{sWo}, 2048'),
            ux=lambda: (e(f's_add_u32 s{sXo}, s{sXo}, 2048'), e(f's_add_u32 s{sXo1}, s{sXo1}, 2048')) if ks % 2 == 1 else None)

    def misc_setup():
        e('v_bfe_u32 v3, v2, 2, 2')
        e('v_lshl_add_u32 v1, v4, 3, v3')
        e('v_lshlrev_b32 v1, 7, v1')
        e(f'v_bfe_u32 v{VWR}, v2, 4, 1')
        e(f'v_lshl_add_u32 v1, v{VWR}, 5, v1')
        e(f'v_and_b32 v{VWR}, 1, v2')
        e(f'v_lshl_add_u32 v1, v{VWR}, 4, v1')
        e(f'v_bfe_u32 v{VWR}, v2, 1, 1')
        e(f'v_lshl_add_u32 v1, v{VWR}, 3, v1')
        e(f'v_add_u32 v1, s{sLb}, v1')
        e('v_lshrrev_b32 v3, 1, v3')
        e(f'v_lshl_add_u32 v{VWR}, v3, 6, v1')
        e('v_xor_b32 v3, 1, v3')
        e(f'v_lshl_add_u32 v{VWR + 1}, v3, 6, v1')
        for i in range(64):
            e(f'v_mov_b32 v{ACC + i}, 0')
        e(f's_mov_b32 s{sCnt}, {NIT - 1}')

    for u in range(2):
        e(f'buffer_load_dwordx4 v[{EP + 8 * u}:{EP + 8 * u + 3}], v7, s[{sWS}:{sWS + 3}], s44 offen offset:{64 * u}', 'ep')
        e(f'buffer_load_dwordx4 v[{EP + 8 * u + 4}:{EP + 8 * u + 7}], v7, s[{sWS}:{sWS + 3}], s44 offen offset:{64 * u + 16}', 'ep')
        if which == 'wo':
            e(f'buffer_load_dwordx4 v[{EP + 16 + 4 * u}:{EP + 19 + 4 * u}], v6, s[{sG}:{sG + 3}], 0 offen offset:{32 * u}', 'ep')
        elif not keep_x1:
            e(f'buffer_load_dwordx4 v[{EP + 16 + 4 * u}:{EP + 19 + 4 * u}], v{VL16}, s[{sWS}:{sWS + 3}], s43 offen offset:{1024 * u}', 'ep')
    if dep:
        NWP = D - 1
        yield 'prefetched'
        misc_setup()
        if which == 'w2':
            e('s_lshr_b32 s45, s28, 1')
            e('s_lshl_b32 s45, s45, 8')
            e(f's_add_u32 s45, s45, {WS_FB}')
        else:
            e('s_lshl_b32 s45, s28, 7')
            e(f's_add_u32 s45, s45, {WS_FO}')
        stamp(k, sbase)
        poll(k, name, 246, 2, 45, 56 if which == 'w2' else 32, opts)
        sbase += 1
        stamp(k, sbase)
        for ks in range(D - 1):
            L = loads(ks)
            for nm in (('x0', 'x1', 'ux') if ks < NWP else ('m0', 'x0', 'w0', 'w1', 'x1', 'uw', 'ux')):
                L[nm]()
    else:
        for ks in range(D - 1):
            L = loads(ks)
            for nm in ('m0', 'x0', 'w0', 'w1', 'x1', 'uw', 'ux'):
                L[nm]()
            if ks == 1:
                misc_setup()
        yield 'prefetched'
        stamp(k, sbase)

    def wreads(ks):
        sl = ks % D
        for nb in range(2):
            for t in range(2):
                r = WFr + (ks % 2) * 8 + nb * 4 + t * 2
                e(f'ds_read_b64_tr_b16 v[{r}:{r + 1}], v{VWR + nb} offset:{sl * 2048 + t * 512}', ('wf', ks))

    def kstep(ks, refill, last=False, extra=()):
        sl = ks % D
        L = loads(ks + D - 1) if refill else None
        for i in range(4):
            nb, mb = i // 2, i % 2
            acc = ACC + (nb * 2 + mb) * 16
            if 'M' not in opts.get('z', ''):
                e(f'v_mfma_f32_32x32x16_bf16 {vr(acc, 16)}, {vr(WFr + (ks % 2) * 8 + nb * 4, 4)}, {vr(XF + (sl * 2 + mb) * 4, 4)}, {vr(acc, 16)}')
            if i == 0:
                if not last:
                    k.wait(vm=[('g', ks + 1)])
                    if 'R' not in opts.get('z', ''): wreads(ks + 1)
                if L: L['m0']()
            elif i == 1 and L:
                L['x0'](); L['w0']()
            elif i == 2 and L:
                L['w1'](); L['x1'](); L['uw'](); L['ux']()
            elif i == 3 and not last:
                k.wait(lg=[('wf', ks + 1)])
            if i in (1, 2) and len(extra) >= i:
                extra[i - 1]()

    k.wait(vm=[('g', 0)])
    wreads(0)
    k.wait(lg=[('wf', 0)])
    stamp(k, sbase + 1)
    B0 = 0
    if dep and NIT > 2:
        for ks in range(D):
            kstep(ks, True)
        e(f's_mov_b32 s{sCnt}, {NIT - 2}')
        B0 = D
    k.label(f'{name}_loop')
    for ks in range(B0, B0 + D):
        kstep(ks, True)
    if NIT > 2:
        e(f's_sub_u32 s{sCnt}, s{sCnt}, 1')
        e(f's_cmp_lg_u32 s{sCnt}, 0')
        e(f's_cbranch_scc1 {name}_loop')
    early = list(early or [])
    for ks in range(B0 + D, B0 + 2 * D):
        ex = []
        E0 = opts.get('e0', 1)
        if early and ks == B0 + D + E0:
            ex = [early.pop(0)]
        elif early and ks > B0 + D + E0:
            ex = early[:2]; early = early[2:]
        kstep(ks, ks == B0 + D, last=(ks == B0 + 2 * D - 1), extra=ex)
    assert not early
    stamp(k, sbase + 2)
    e(f'v_add_u32 v3, s{sLb}, v{VL16}')
    for qd in range(16):
        e(f'ds_write_b128 v3, v[{ACC + 4 * qd}:{ACC + 4 * qd + 3}] offset:{POFF + qd * 1024}')
    e('s_waitcnt lgkmcnt(0)')
    e('s_barrier')
    e(f's_lshl_b32 s{sT0}, s{sWv}, 12')
    e(f'v_add_u32 v3, s{sT0}, v{VL16}')
    e(f'v_add_u32 v1, 0x10000, v3')
    RD = 72
    for w in range(4):
        a = 3 if w < 2 else 1
        for h in range(4):
            r = RD + (w * 4 + h) * 4
            e(f'ds_read_b128 v[{r}:{r + 3}], v{a} offset:{POFF + (w % 2) * 32768 + h * 1024}', ('r', w))
    for w in range(1, 4):
        k.wait(lg=[('r', w), ('r', 0)])
        for i in range(16):
            e(f'v_add_f32 v{RD + i}, v{RD + i}, v{RD + w * 16 + i}')
    if out_flag:
        e('s_barrier')
    k.wait(vm=['ep'])
    if which == 'w2' and keep_x1:
        for i in range(8):
            e(f'v_accvgpr_read_b32 v{EP + 16 + i}, a{X1KEEP + i}')
    for i in range(16):
        rbf(k, RD + i, RD + i)
    for i in range(16):
        e(f'v_mul_f32 v{RD + i}, v{RD + i}, v{EP + i}')
    for i in range(16):
        rbf(k, RD + i, RD + i)
    for i in range(16):
        src = EP + 16 + i // 2
        if i % 2 == 0:
            e(f'v_lshlrev_b32 v{RD + 16 + i}, 16, v{src}')
        else:
            e(f'v_and_b32 v{RD + 16 + i}, 0xffff0000, v{src}')
    for i in range(16):
        e(f'v_add_f32 v{RD + i}, v{RD + i}, v{RD + 16 + i}')
    for i in range(8):
        e(f'v_cvt_pk_bf16_f32 v{RD + 32 + i}, v{RD + 2 * i}, v{RD + 2 * i + 1}')
    for u in range(2):
        if which == 'w2':
            e(f'buffer_store_dwordx4 v[{RD + 32 + 4 * u}:{RD + 35 + 4 * u}], v6, s[{sG}:{sG + 3}], 0 offen offset:{32 * u}')
        else:
            e(f'buffer_store_dwordx4 v[{RD + 32 + 4 * u}:{RD + 35 + 4 * u}], v{VL16}, s[{sWS}:{sWS + 3}], s43 offen offset:{1024 * u}{SA}')
    if which == 'wo':
        if keep_x1:
            for i in range(8):
                e(f'v_accvgpr_write_b32 a{X1KEEP + i}, v{RD + 32 + i}')
        for i in range(16):
            src = RD + 32 + i // 2
            if i % 2 == 0:
                e(f'v_lshlrev_b32 v{RD + i}, 16, v{src}')
            else:
                e(f'v_and_b32 v{RD + i}, 0xffff0000, v{src}')
        A, B = RD + 16, RD + 17
        e(f'v_add_f32 v{A}, v{RD}, v{RD + 1}')
        e(f'v_mul_f32 v{B}, v{RD}, v{RD}')
        e(f'v_fmac_f32 v{B}, v{RD + 1}, v{RD + 1}')
        for i in range(2, 16):
            e(f'v_add_f32 v{A}, v{A}, v{RD + i}')
            e(f'v_fmac_f32 v{B}, v{RD + i}, v{RD + i}')
        e(f'v_mov_b32 v{A + 2}, v{A}')
        e(f'v_mov_b32 v{A + 3}, v{B}')
        e(f'v_permlane32_swap_b32 v{A}, v{A + 2}')
        e(f'v_permlane32_swap_b32 v{B}, v{A + 3}')
        e(f'v_add_f32 v{A}, v{A}, v{A + 2}')
        e(f'v_add_f32 v{B}, v{B}, v{A + 3}')
        e('s_lshl_b32 s45, s42, 7')
        e('s_lshr_b32 s46, s41, 2')
        e('s_add_u32 s45, s45, s46')
        e(f's_add_u32 s45, s45, {WS_ST}')
        e('v_lshlrev_b32 v3, 7, v5')
        e(f'buffer_store_dwordx2 v[{A}:{A + 1}], v3, s[{sWS}:{sWS + 3}], s45 offen{SA}')
        if out_flag:
            e('s_lshr_b32 s46, s28, 1')
            e('s_lshl_b32 s46, s46, 8')
            e('s_and_b32 s45, s28, 1')
            e('s_lshl_b32 s45, s45, 7')
            e('s_add_u32 s46, s46, s45')
            e('s_lshl_b32 s45, s29, 4')
            e('s_add_u32 s46, s46, s45')
            e(f's_lshl_b32 s45, s{sWv}, 2')
            e('s_add_u32 s46, s46, s45')
            e(f's_add_u32 s46, s46, {WS_FA}')
    stamp(k, sbase + 3)
    yield 'done'


def phase_ffn1(k, opts, dep, out_flag, sbase, early=None):
    e = k.e
    s1, s3_, sWS = 8, 20, sWS_T
    sW, sT0, sT1, sXb, sWo, sHb, sW4K = sWV_T, 33, 34, 35, 36, 37, 38
    ACC = 0
    XD = 12
    XR = 128
    H = 176
    SS = 184
    FT = 216
    WRA = 224
    VL16, VDW, VMD, VLANE, RS, NM = 232, 233, 234, 235, 236, 237
    T = 238
    WF = 0
    LDS_MOD = 131072
    XA = ' sc1' if dep else ''
    PURE = opts.get('sk', 0)
    if PURE:
        XD = 16; XR = 128
    e('s_and_b32 s50, s2, 1')
    e('s_lshl_b32 s50, s50, 3')
    e('s_bfe_u32 s3, s2, 0x30003')
    e('s_add_u32 s50, s50, s3')
    lane_id(k, VLANE)
    e(f'v_lshlrev_b32 v{VL16}, 4, v{VLANE}')
    e(f'v_lshrrev_b32 v{T + 1}, 4, v{VLANE}')
    e(f'v_and_b32 v{T + 2}, 15, v{VLANE}')
    e(f'v_lshlrev_b32 v{T + 3}, 2, v{T + 1}')
    e(f'v_xor_b32 v{T + 3}, v{T + 3}, v{T + 2}')
    e(f'v_lshlrev_b32 v{T + 3}, 4, v{T + 3}')
    e(f'v_mul_u32_u24 v{T + 4}, 3584, v{T + 1}')
    e(f'v_add_u32 v{VDW}, v{T + 4}, v{T + 3}')
    e(f's_lshl_b32 s{sW4K}, s{sW}, 12')
    e('s_lshl_b32 s3, s50, 2')
    e(f's_add_u32 s3, s3, s{sW}')
    e(f's_lshl_b32 s{sXb}, s3, 15')
    e(f's_add_u32 s{sXb}, s{sXb}, {WS_H2 if PURE else WS_X1}')
    e(f's_mul_i32 s{sHb}, s3, {112 * 1024}')
    e(f's_lshl_b32 s{sT0}, s51, 13')
    e(f's_add_u32 s{sHb}, s{sHb}, s{sT0}')
    e(f's_add_u32 s{sHb}, s{sHb}, {WS_HH}')
    e(f's_mul_i32 s{sWo}, s{sW}, {16 * 3584}')
    e(f's_lshl_b32 s{sT0}, s51, 8')
    e(f's_add_u32 s{sWo}, s{sWo}, s{sT0}')
    e(f'v_and_b32 v{T + 5}, 31, v{VLANE}')
    e(f'v_lshrrev_b32 v{T + 4}, 5, v{VLANE}')
    e(f'v_lshlrev_b32 v{T + 6}, 7, v{T + 5}')
    e(f'v_lshl_add_u32 v{T + 6}, v{T + 4}, 6, v{T + 6}')
    e(f's_lshl_b32 s39, s3, 12')
    e(f's_add_u32 s39, s39, {WS_ST}')
    yield 'setup'
    srd(k, s1, 56, 57, 512 * 3584)
    srd(k, s3_, 58, 59, 512 * 3584)

    def w_dma(c):
        out = []
        for mat, sd in enumerate((s1, s3_)):
            for p in range(4):
                g = []
                if p == 0:
                    g.append((1, lambda mat=mat: e(f's_add_u32 m0, s{sW4K}, {BSLOT[c % 4][mat]}')))
                g.append((1, lambda p=p: e(f's_add_u32 s{sT0}, s{sWo}, {c * 64 * 3584 + p * (4 * 3584 - 1024)}')))
                g.append((COST['dma'], lambda p=p, sd=sd: e(f'buffer_load_dwordx4 v{VDW}, s[{sd}:{sd + 3}], s{sT0} offen offset:{p * 1024} lds', ('wq', c))))
                out.append(g)
        return out

    def xreg(ks):
        return XR + (ks % XD) * 4

    def x_load(ks):
        r = xreg(ks)
        g = []
        if ks % 4 == 0:
            g.append((1, lambda: e(f's_add_u32 s{sT1}, s{sXb}, {(ks // 4) * 4096}')))
        g.append((COST['vload'], lambda: e(f'buffer_load_dwordx4 v[{r}:{r + 3}], v{VL16}, s[{sWS}:{sWS + 3}], s{sT1} offen offset:{(ks % 4) * 1024}{XA}', ('x', ks))))
        return g

    def addr_setup():
        e(f'v_lshrrev_b32 v{T + 7}, 2, v{T + 2}')
        e(f'v_and_b32 v{T + 8}, 1, v{T + 1}')
        e(f'v_lshlrev_b32 v{T + 8}, 5, v{T + 8}')
        e(f'v_and_b32 v{T + 9}, 1, v{VLANE}')
        e(f'v_lshl_add_u32 v{T + 8}, v{T + 9}, 4, v{T + 8}')
        e(f'v_bfe_u32 v{T + 9}, v{VLANE}, 1, 1')
        e(f'v_lshl_add_u32 v{T + 8}, v{T + 9}, 3, v{T + 8}')
        e(f'v_lshl_add_u32 v{T + 8}, v{T + 7}, 8, v{T + 8}')
        e(f'v_lshl_add_u32 v{T + 8}, v{T + 4}, 11, v{T + 8}')
        for db in range(4):
            e(f'v_xor_b32 v{T + 9}, {db}, v{T + 7}')
            e(f'v_lshl_add_u32 v{WRA + db}, v{T + 9}, 6, v{T + 8}')
            e(f'v_add_u32 v{WRA + 4 + db}, 0x10000, v{WRA + db}')
        e(f'v_lshlrev_b32 v{VMD}, 6, v{T + 4}')
        e(f'v_add_u32 v{VMD}, {LDS_MOD}, v{VMD}')

    ST = SS

    def st_loads():
        for j in range(4):
            e(f'buffer_load_dwordx4 v[{ST + 4 * j}:{ST + 3 + 4 * j}], v{T + 6}, s[{sWS}:{sWS + 3}], s39 offen offset:{16 * j}{XA}', 'st')

    def mod_dma():
        e(f's_lshl_b32 s{sT0}, s{sW}, 10')
        e(f's_add_u32 m0, s{sT0}, {LDS_MOD}')
        e(f's_add_u32 s{sT0}, s{sT0}, {WS_MOD2}')
        e(f'buffer_load_dwordx4 v{VL16}, s[{sWS}:{sWS + 3}], s{sT0} offen lds', ('wq', 0))

    if dep:
        NPRE = opts.get('npre4f', 4); NPX = 3
        mod_dma()
        for c in range(2, NPRE):
            for g in w_dma(c):
                for _, f in g: f()
        yield 'prefetched'
        addr_setup()
        e('s_lshl_b32 s45, s50, 8')
        e(f's_add_u32 s45, s45, {WS_FA}')
        stamp(k, sbase)
        poll(k, 'pb', T + 10, VLANE, 45, 64, opts)
        sbase += 1
        stamp(k, sbase)
        st_loads()
        for ks in range(4 * NPX):
            for _, f in x_load(ks): f()
    else:
        NPRE = opts.get('npre4', 1); NPX = NPRE
        if not PURE:
            st_loads()
            mod_dma()
        for _, f in x_load(0): f()
        for g in w_dma(0):
            for _, f in g: f()
        for ks in range(1, 4):
            for _, f in x_load(ks): f()
        for c in range(1, NPRE):
            for g in w_dma(c):
                for _, f in g: f()
            for ks in range(4 * c, 4 * c + 4):
                for _, f in x_load(ks): f()
        yield 'prefetched'
        addr_setup()
        stamp(k, sbase)
    if not PURE:
        k.wait(vm=['st'])
        e(f's_mov_b32 s3, {f32(1.0 / 512)}')
        r = ST
        for j in range(1, 8):
            e(f'v_add_f32 v{r}, v{r}, v{r + 2 * j}')
            e(f'v_add_f32 v{r + 1}, v{r + 1}, v{r + 2 * j + 1}')
        e(f'v_mov_b32 v{r + 2}, v{r}')
        e(f'v_mov_b32 v{r + 3}, v{r + 1}')
        e(f'v_permlane32_swap_b32 v{r}, v{r + 2}')
        e(f'v_permlane32_swap_b32 v{r + 1}, v{r + 3}')
        e(f'v_add_f32 v{r}, v{r}, v{r + 2}')
        e(f'v_add_f32 v{r + 1}, v{r + 1}, v{r + 3}')
        e(f'v_mul_f32 v{r}, s3, v{r}')
        e(f'v_mul_f32 v{r + 1}, s3, v{r + 1}')
        e(f'v_fma_f32 v{r + 1}, -v{r}, v{r}, v{r + 1}')
        e(f'v_max_f32 v{r + 1}, 0, v{r + 1}')
        rbf(k, r, r)
        rbf(k, r + 1, r + 1)
        e(f'v_add_f32 v{r + 1}, {f32(1e-5)}, v{r + 1}')
        rbf(k, r + 1, r + 1)
        e(f'v_sqrt_f32 v{r + 1}, v{r + 1}')
        rbf(k, r + 1, r + 1)
        e(f'v_rcp_f32 v{RS}, v{r + 1}')
        e(f'v_mul_f32 v{NM}, v{r}, v{RS}')
        e(f'v_sub_f32 v{NM}, 0, v{NM}')

    def w_reads(ks):
        out = []
        c = ks // 4
        for nb in range(8):
            mat, db = nb // 4, nb % 4
            off = BSLOT[c % 4][mat] + (ks % 4) * 4096
            base = WRA + (4 if off >= 65536 else 0) + db
            for t in range(2):
                r = WF + (ks % 2) * 32 + nb * 4 + t * 2
                out.append((COST['ds'], lambda r=r, base=base, t=t, off=off: e(f'ds_read_b64_tr_b16 a[{r}:{r + 1}], v{base} offset:{off % 65536 + t * 1024}', ('w', ks))))
        return out

    def ss_reads(ks):
        out = []
        for j in range(4):
            r = SS + (ks % 2) * 16 + 4 * j
            out.append((COST['ds'], lambda r=r, j=j: e(f'ds_read_b128 v[{r}:{r + 3}], v{VMD} offset:{ks * 128 + j * 16}', ('ss', ks))))
        return out

    def xform(ks):
        out = []
        sb = SS + (ks % 2) * 16
        x = xreg(ks)
        for p in range(4):
            t = FT + p * 2
            out.append((1, lambda p=p, t=t: e(f'v_lshlrev_b32 v{t}, 16, v{x + p}')))
            out.append((1, lambda p=p, t=t: e(f'v_and_b32 v{t + 1}, 0xffff0000, v{x + p}')))
            out.append((1, lambda t=t: e(f'v_fma_f32 v{t}, v{t}, v{RS}, v{NM}')))
            out.append((1, lambda t=t: e(f'v_fma_f32 v{t + 1}, v{t + 1}, v{RS}, v{NM}')))
            out.append((1, lambda p=p, t=t: e(f'v_fma_f32 v{t}, v{t}, v{sb + 2 * p}, v{sb + 8 + 2 * p}')))
            out.append((1, lambda p=p, t=t: e(f'v_fma_f32 v{t + 1}, v{t + 1}, v{sb + 2 * p + 1}, v{sb + 8 + 2 * p + 1}')))
            h = H + (ks % 2) * 4 + p
            out.append((1, lambda t=t, h=h: e(f'v_cvt_pk_bf16_f32 v{h}, v{t}, v{t + 1}')))
        return out

    todo = []
    wn = NPRE; xn = NPX
    while wn < 8 or xn < 8:
        if wn < 8 and wn <= xn:
            first = 0 if wn < 4 else 4 * (wn - 3)
            todo += [(first, g) for g in w_dma(wn)]; wn += 1
        else:
            for ks in range(4 * xn, 4 * xn + 4):
                todo.append((ks - XD + (1 if PURE else 0), x_load(ks)))
            xn += 1
    RATE = opts.get('rate4', 5)
    early = list(early or [])

    k.wait(vm=[('wq', 0)])
    e('s_barrier')
    stamp(k, sbase + 1)
    if PURE:
        for _, f in w_reads(0): f()
        k.wait(vm=[('x', 0)], lg=[('w', 0)])
    else:
        for _, f in ss_reads(0) + w_reads(0) + ss_reads(1): f()
        k.wait(vm=[('x', 0)], lg=[('ss', 0)])
        for _, f in xform(0): f()
        k.wait(lg=[('w', 0)])
    for ks in range(32):
        mf = []
        for nb in range(8):
            def m(nb=nb):
                acc = ACC + nb * 16
                c = '0' if ks == 0 else vr(acc, 16)
                b = xreg(ks) if PURE else H + (ks % 2) * 4
                e(f'v_mfma_f32_32x32x16_bf16 {vr(acc, 16)}, {ar(WF + (ks % 2) * 32 + nb * 4, 4)}, {vr(b, 4)}, {c}')
            mf.append(m)
        fx = {}; st = []; caps = {}
        if ks + 1 < 32:
            newc = (ks + 1) % 4 == 0
            vmw = ([] if PURE else [('x', ks + 1)]) + ([('wq', (ks + 1) // 4)] if newc else [])
            fx.setdefault(0, []).append((0, lambda: k.wait(vm=vmw, lg=[('ss', ks + 1)]), 'wait'))
            if newc:
                fx.setdefault(0, []).append((6, lambda: e('s_barrier'), 'bar'))
            g0 = 1 if newc else 0
            rd = (ss_reads(ks + 2) if ks + 2 < 32 and not PURE else []) + w_reads(ks + 1)
            for i, it in enumerate(rd):
                fx.setdefault(g0 + i // 4, []).append((it[0], it[1], 'ds'))
            st = [] if PURE else xform(ks + 1)
            fx.setdefault(7, []).append((0, lambda: k.wait(vm=[('x', ks + 1)] if PURE else [], lg=[('w', ks + 1)]), 'wait'))
        groups = []
        while todo and len(groups) < RATE and todo[0][0] <= ks:
            groups.append(todo.pop(0)[1])
        if early and ks == 22:
            groups.append([(8, early.pop(0))])
        elif early and ks >= 24 and len(early) > 5:
            groups.append([(6, early.pop(0))])
        gl = sorted([6, 7, 5, 4, 3, 2][:len(groups)])
        for g, grp in zip(gl, groups):
            for it in grp[:-1]:
                fx.setdefault(g - 1, []).append((it[0], it[1], 'end'))
            fx.setdefault(g, []).append((grp[-1][0], grp[-1][1], 'dma'))
        schedule(k, mf, fx, st, caps=caps, last_gap=6, cap=8)
    assert not todo
    if out_flag:
        e('s_barrier')
        for f in early: f()
    stamp(k, sbase + 2)
    e(f's_mov_b32 s3, {f32(-LOG2E)}')
    e(f's_add_u32 s{sT0}, s{sHb}, 4096')
    n = 0
    for j in range(4):
        for u in range(2):
            g = ACC + j * 16 + 8 * u
            up = ACC + (4 + j) * 16 + 8 * u
            t = XR + (n % 4) * 12; n += 1
            for i in range(8):
                e(f'v_mul_f32 v{t + i}, s3, v{g + i}')
            for i in range(8):
                e(f'v_exp_f32 v{t + i}, v{t + i}')
            for i in range(8):
                e(f'v_add_f32 v{t + i}, 1.0, v{t + i}')
            for i in range(8):
                e(f'v_rcp_f32 v{t + i}, v{t + i}')
            for i in range(8):
                e(f'v_mul_f32 v{g + i}, v{g + i}, v{t + i}')
            for i in range(8):
                e(f'v_mul_f32 v{g + i}, v{g + i}, v{up + i}')
            for i in range(4):
                e(f'v_cvt_pk_bf16_f32 v{t + 8 + i}, v{g + 2 * i}, v{g + 2 * i + 1}')
            kk = 2 * j + u
            so = sHb if kk < 4 else sT0
            e(f'buffer_store_dwordx4 v[{t + 8}:{t + 11}], v{VL16}, s[{sWS}:{sWS + 3}], s{so} offen offset:{(kk % 4) * 1024} sc1')
    if out_flag:
        e('s_lshl_b32 s46, s50, 8')
        e('s_lshl_b32 s45, s51, 4')
        e('s_add_u32 s46, s46, s45')
        e(f's_lshl_b32 s45, s{sW}, 2')
        e('s_add_u32 s46, s46, s45')
        e(f's_add_u32 s46, s46, {WS_FB}')
    stamp(k, sbase + 3)
    yield 'done'


def gen_oproj_sk(opts):
    k = Kern('oproj_kernel')
    e = k.e
    sWS = 12
    sW, sT0, sT1, sXb, sWo, sPb, sW4K = 32, 33, 34, 35, 36, 37, 38
    ACC = 0
    XD = 32
    XR = 64
    WRA = 192
    VL16, VDW, VLANE = 200, 201, 202
    T = 204
    WF = 0
    NSL = 8
    e('s_cmp_ge_u32 s2, 256')
    e('s_cbranch_scc1 oproj_end')
    stamp(k, 0)
    e(f's_load_dwordx2 s[6:7], s[0:1], {A_WS}')
    e(f'v_lshrrev_b32 v{T}, 6, v0')
    e(f'v_and_b32 v{VLANE}, 63, v0')
    e(f'v_readfirstlane_b32 s{sW}, v{T}')
    e(f'v_lshlrev_b32 v{VL16}, 4, v{VLANE}')
    e('s_bfe_u32 s28, s2, 0x20001')
    e('s_and_b32 s29, s2, 1')
    e('s_lshl_b32 s29, s29, 3')
    e('s_bfe_u32 s3, s2, 0x30003')
    e('s_add_u32 s29, s29, s3')
    e('s_lshr_b32 s30, s2, 6')
    e(f'v_lshrrev_b32 v{T + 1}, 4, v{VLANE}')
    e(f'v_and_b32 v{T + 2}, 15, v{VLANE}')
    e(f'v_lshlrev_b32 v{T + 3}, 2, v{T + 1}')
    e(f'v_xor_b32 v{T + 3}, v{T + 3}, v{T + 2}')
    e(f'v_lshlrev_b32 v{T + 3}, 4, v{T + 3}')
    e(f'v_lshl_add_u32 v{VDW}, v{T + 1}, 8, v{T + 3}')
    e(f's_lshl_b32 s{sW4K}, s{sW}, 12')
    e('s_lshl_b32 s3, s29, 2')
    e(f's_add_u32 s3, s3, s{sW}')
    e(f's_lshl_b32 s{sXb}, s3, 18')
    e(f's_lshl_b32 s{sT0}, s28, 16')
    e(f's_add_u32 s{sXb}, s{sXb}, s{sT0}')
    e(f's_add_u32 s{sXb}, s{sXb}, {WS_O}')
    e(f's_lshl_b32 s{sWo}, s30, 20')
    e(f's_lshl_b32 s{sT0}, s28, 18')
    e(f's_add_u32 s{sWo}, s{sWo}, s{sT0}')
    e(f's_add_u32 s{sWo}, s{sWo}, s{sW4K}')
    e(f's_add_u32 s{sWo}, s{sWo}, {WS_WOT}')
    e(f's_lshl_b32 s{sPb}, s28, 22')
    e(f's_lshl_b32 s{sT0}, s3, 16')
    e(f's_add_u32 s{sPb}, s{sPb}, s{sT0}')
    e(f's_lshl_b32 s{sT0}, s30, 14')
    e(f's_add_u32 s{sPb}, s{sPb}, s{sT0}')
    e(f's_add_u32 s{sPb}, s{sPb}, {WS_P}')
    e('s_waitcnt lgkmcnt(0)')
    srd(k, sWS, 6, 7, WS_SIZE)

    def w_dma(c):
        out = []
        for p in range(4):
            g = []
            if p == 0:
                g.append((1, lambda: e(f's_add_u32 m0, s{sW4K}, {(c % NSL) * 16384}')))
                g.append((1, lambda: e(f's_add_u32 s{sT0}, s{sWo}, {c * 16384}')))
            g.append((COST['dma'], lambda p=p: e(f'buffer_load_dwordx4 v{VDW}, s[{sWS}:{sWS + 3}], s{sT0} offen offset:{p * 1024} lds', ('wq', c))))
            out.append(g)
        return out

    def xreg(ks):
        return XR + (ks % XD) * 4

    def x_load(ks):
        r = xreg(ks)
        g = []
        if ks % 4 == 0:
            g.append((1, lambda: e(f's_add_u32 s{sT1}, s{sXb}, {(ks // 4) * 4096}')))
        g.append((COST['vload'], lambda: e(f'buffer_load_dwordx4 v[{r}:{r + 3}], v{VL16}, s[{sWS}:{sWS + 3}], s{sT1} offen offset:{(ks % 4) * 1024}', ('x', ks))))
        return g

    NPRE = opts.get('npre3', 4)
    for c in range(NPRE):
        for g in w_dma(c):
            for _, f in g: f()
        for ks in range(4 * c, 4 * c + 4):
            for _, f in x_load(ks): f()
        if c == 0:
            e(f'v_lshrrev_b32 v{T + 4}, 5, v{VLANE}')
            e(f'v_lshrrev_b32 v{T + 7}, 2, v{T + 2}')
            e(f'v_and_b32 v{T + 8}, 1, v{T + 1}')
            e(f'v_lshlrev_b32 v{T + 8}, 5, v{T + 8}')
            e(f'v_and_b32 v{T + 9}, 1, v{VLANE}')
            e(f'v_lshl_add_u32 v{T + 8}, v{T + 9}, 4, v{T + 8}')
            e(f'v_bfe_u32 v{T + 9}, v{VLANE}, 1, 1')
            e(f'v_lshl_add_u32 v{T + 8}, v{T + 9}, 3, v{T + 8}')
            e(f'v_lshl_add_u32 v{T + 8}, v{T + 7}, 8, v{T + 8}')
            e(f'v_lshl_add_u32 v{T + 8}, v{T + 4}, 11, v{T + 8}')
            for db in range(4):
                e(f'v_xor_b32 v{T + 9}, {db}, v{T + 7}')
                e(f'v_lshl_add_u32 v{WRA + db}, v{T + 9}, 6, v{T + 8}')
                e(f'v_add_u32 v{WRA + 4 + db}, 0x10000, v{WRA + db}')

    def w_reads(ks):
        out = []
        off = ((ks // 4) % NSL) * 16384 + (ks % 4) * 4096
        for db in range(4):
            base = WRA + (4 if off >= 65536 else 0) + db
            for t in range(2):
                r = WF + (ks % 2) * 16 + db * 4 + t * 2
                out.append(lambda r=r, base=base, t=t: e(f'ds_read_b64_tr_b16 a[{r}:{r + 1}], v{base} offset:{off % 65536 + t * 1024}', ('w', ks)))
        return out

    todo = []
    for c in range(NPRE, 16):
        first = 0 if c < NSL else 4 * (c - NSL + 1)
        todo += [(first, g) for g in w_dma(c)]
        for ks in range(4 * c, 4 * c + 4):
            todo.append((ks - XD + 1, x_load(ks)))
    RATE = opts.get('rate3', 3)
    stamp(k, 1)
    k.wait(vm=[('wq', 0)])
    e('s_barrier')
    for f in w_reads(0): f()
    k.wait(vm=[('x', 0)], lg=[('w', 0)])
    stamp(k, 2)
    for ks in range(64):
        mf = []
        for nb in range(4):
            def m(nb=nb):
                acc = ACC + nb * 16
                c = '0' if ks == 0 else vr(acc, 16)
                e(f'v_mfma_f32_32x32x16_bf16 {vr(acc, 16)}, {ar(WF + (ks % 2) * 16 + nb * 4, 4)}, {vr(xreg(ks), 4)}, {c}')
            mf.append(m)
        fx = {}
        if ks + 1 < 64:
            newc = (ks + 1) % 4 == 0
            if newc:
                fx.setdefault(0, []).append((0, lambda: k.wait(vm=[('wq', (ks + 1) // 4)]), 'wait'))
                fx.setdefault(0, []).append((1, lambda: e('s_barrier'), 'bar'))
            for i, f in enumerate(w_reads(ks + 1)):
                fx.setdefault(i // 4, []).append((1, f, 'ds'))
            fx.setdefault(3, []).append((0, lambda: k.wait(vm=[('x', ks + 1)], lg=[('w', ks + 1)]), 'wait'))
        groups = []
        while todo and len(groups) < RATE and todo[0][0] <= ks:
            groups.append(todo.pop(0)[1])
        for g, grp in zip([2, 3, 3][:len(groups)] if len(groups) < 3 else [1, 2, 3], groups):
            for it in grp[:-1]:
                fx.setdefault(g if g == 3 and len(groups) == 2 and False else g - 1, []).append((it[0], it[1], 'end'))
            fx.setdefault(g, []).append((grp[-1][0], grp[-1][1], 'dma'))
        schedule(k, mf, fx, [])
    assert not todo
    stamp(k, 3)
    for nb in range(4):
        e(f's_add_u32 s{sT0}, s{sPb}, {nb * 4096}')
        for q in range(4):
            e(f'buffer_store_dwordx4 v[{ACC + nb * 16 + 4 * q}:{ACC + nb * 16 + 4 * q + 3}], v{VL16}, s[{sWS}:{sWS + 3}], s{sT0} offen offset:{q * 1024}{opts.get("pst", " sc1")}')
    stamp(k, 4)
    if STAMP:
        e(f's_lshl_b32 s100, s{sW}, 6')
        e('v_mov_b32 v0, s100')
    stamp_flush(k, 5, sWS, 2)
    k.label('oproj_end')
    e('s_endpgm')
    return k, 'grid=(256,1,1) block=(256,1,1) lds=131072'


def gen_red(opts):
    k = Kern('red_kernel')
    e = k.e
    sWS, sX = 12, 16
    e('s_cmp_ge_u32 s2, 256')
    e('s_cbranch_scc1 red_end')
    stamp(k, 0)
    e(f's_load_dwordx2 s[6:7], s[0:1], {A_WS}')
    e(f's_load_dwordx2 s[4:5], s[0:1], {A_X}')
    e('v_and_b32 v1, 7, v0')
    e('v_lshrrev_b32 v2, 3, v0')
    e('v_lshlrev_b32 v3, 11, v2')
    e('v_lshl_add_u32 v3, v1, 4, v3')
    e('s_lshr_b32 s28, s2, 2')
    e('s_and_b32 s29, s2, 3')
    e('s_lshl_b32 s30, s28, 16')
    e('s_lshl_b32 s31, s29, 7')
    e('s_add_u32 s30, s30, s31')
    e(f's_add_u32 s30, s30, {WS_P}')
    e('s_lshl_b32 s33, s2, 13')
    e('v_lshlrev_b32 v4, 10, v1')
    e('v_lshl_add_u32 v4, v2, 5, v4')
    e('v_lshlrev_b32 v5, 6, v2')
    e('v_lshlrev_b32 v6, 7, v2')
    e('v_lshlrev_b32 v7, 10, v2')
    e('v_lshl_add_u32 v7, v1, 4, v7')
    e('s_lshl_b32 s34, s28, 15')
    e('s_add_u32 s34, s34, s31')
    e(f's_add_u32 s35, s34, {WS_H2}')
    e(f's_add_u32 s34, s34, {WS_X1}')
    e('s_waitcnt lgkmcnt(0)')
    srd(k, sWS, 6, 7, WS_SIZE)
    srd(k, sX, 4, 5, 2048 * 1024)
    PR = 16
    for sp in range(4):
        for hh in range(2):
            for q in range(2):
                r = PR + sp * 16 + hh * 8 + q * 4
                e(f'buffer_load_dwordx4 v[{r}:{r + 3}], v3, s[{sWS}:{sWS + 3}], s30 offen offset:{q * 1024 + hh * 512}', ('p', sp))
        if sp < 3:
            e('s_add_u32 s30, s30, 0x400000')
    GA = 80; XX = 96; MD = 104
    e(f's_mov_b32 s36, {WS_GA}')
    e(f's_mov_b32 s37, {WS_MOD2}')
    for j in range(4):
        e(f'buffer_load_dwordx4 v[{GA + 4 * j}:{GA + 4 * j + 3}], v5, s[{sWS}:{sWS + 3}], s36 offen offset:{16 * j}', 'g')
    for j in range(2):
        e(f'buffer_load_dwordx4 v[{XX + 4 * j}:{XX + 4 * j + 3}], v4, s[{sX}:{sX + 3}], s33 offen offset:{16 * j}', 'g')
    for j in range(8):
        e(f'buffer_load_dwordx4 v[{MD + 4 * j}:{MD + 4 * j + 3}], v6, s[{sWS}:{sWS + 3}], s37 offen offset:{16 * j}', 'md')
    stamp(k, 1)
    for sp in range(1, 4):
        k.wait(vm=[('p', sp), ('p', 0)])
        for i in range(16):
            e(f'v_add_f32 v{PR + i}, v{PR + i}, v{PR + sp * 16 + i}')
    k.wait(vm=['g'])
    U = 32
    for i in range(16):
        rbf(k, PR + i, PR + i)
    for i in range(16):
        e(f'v_mul_f32 v{PR + i}, v{PR + i}, v{GA + i}')
    for i in range(16):
        rbf(k, PR + i, PR + i)
    for i in range(16):
        if i % 2 == 0:
            e(f'v_lshlrev_b32 v{U + i}, 16, v{XX + i // 2}')
        else:
            e(f'v_and_b32 v{U + i}, 0xffff0000, v{XX + i // 2}')
    for i in range(16):
        e(f'v_add_f32 v{PR + i}, v{PR + i}, v{U + i}')
    for i in range(8):
        e(f'v_cvt_pk_bf16_f32 v{U + i}, v{PR + 2 * i}, v{PR + 2 * i + 1}')
    for hh in range(2):
        e(f'buffer_store_dwordx4 v[{U + 4 * hh}:{U + 4 * hh + 3}], v7, s[{sWS}:{sWS + 3}], s34 offen offset:{512 * hh}')
    for i in range(16):
        rbf(k, PR + i, PR + i)
    A, B, C2, D2 = 48, 49, 50, 51
    e(f'v_add_f32 v{A}, v{PR}, v{PR + 1}')
    e(f'v_mul_f32 v{B}, v{PR}, v{PR}')
    e(f'v_fmac_f32 v{B}, v{PR + 1}, v{PR + 1}')
    for i in range(2, 16):
        e(f'v_add_f32 v{A}, v{A}, v{PR + i}')
        e(f'v_fmac_f32 v{B}, v{PR + i}, v{PR + i}')
    e(f'v_add_f32_dpp v{C2}, v{A}, v{A} row_ror:8 row_mask:0xf bank_mask:0xf')
    e(f'v_add_f32_dpp v{D2}, v{B}, v{B} row_ror:8 row_mask:0xf bank_mask:0xf')
    for sw in ('v_permlane16_swap_b32', 'v_permlane32_swap_b32'):
        e(f'v_mov_b32 v{A}, v{C2}')
        e(f'v_mov_b32 v{B}, v{D2}')
        e(f'{sw} v{A}, v{C2}')
        e(f'{sw} v{B}, v{D2}')
        e(f'v_add_f32 v{C2}, v{A}, v{C2}')
        e(f'v_add_f32 v{D2}, v{B}, v{D2}')
    e('v_lshrrev_b32 v8, 6, v0')
    e('v_lshlrev_b32 v9, 5, v1')
    e('v_lshl_add_u32 v8, v8, 3, v9')
    e(f'ds_write_b64 v8, v[{C2}:{D2}]')
    e('s_waitcnt lgkmcnt(0)')
    e('s_barrier')
    e('ds_read_b128 v[52:55], v9')
    e('ds_read_b128 v[56:59], v9 offset:16')
    e('s_waitcnt lgkmcnt(0)')
    e('v_add_f32 v52, v52, v54')
    e('v_add_f32 v53, v53, v55')
    e('v_add_f32 v56, v56, v58')
    e('v_add_f32 v57, v57, v59')
    e('v_add_f32 v52, v52, v56')
    e('v_add_f32 v53, v53, v57')
    e(f's_mov_b32 s3, {f32(1.0 / 512)}')
    e('v_mul_f32 v52, s3, v52')
    e('v_mul_f32 v53, s3, v53')
    e('v_fma_f32 v53, -v52, v52, v53')
    e('v_max_f32 v53, 0, v53')
    rbf(k, 52, 52)
    rbf(k, 53, 53)
    e(f'v_add_f32 v53, {f32(1e-5)}, v53')
    rbf(k, 53, 53)
    e('v_sqrt_f32 v53, v53')
    rbf(k, 53, 53)
    e('v_rcp_f32 v53, v53')
    k.wait(vm=['md'])
    for i in range(16):
        e(f'v_sub_f32 v{PR + i}, v{PR + i}, v52')
    for i in range(16):
        rbf(k, PR + i, PR + i)
    for i in range(16):
        e(f'v_mul_f32 v{PR + i}, v{PR + i}, v53')
    for i in range(16):
        rbf(k, PR + i, PR + i)
    for i in range(16):
        e(f'v_mul_f32 v{PR + i}, v{PR + i}, v{MD + (i // 8) * 16 + i % 8}')
    for i in range(16):
        rbf(k, PR + i, PR + i)
    for i in range(16):
        e(f'v_add_f32 v{PR + i}, v{PR + i}, v{MD + (i // 8) * 16 + 8 + i % 8}')
    for i in range(8):
        e(f'v_cvt_pk_bf16_f32 v{60 + i}, v{PR + 2 * i}, v{PR + 2 * i + 1}')
    for hh in range(2):
        e(f'buffer_store_dwordx4 v[{60 + 4 * hh}:{63 + 4 * hh}], v7, s[{sWS}:{sWS + 3}], s35 offen offset:{512 * hh}')
    stamp(k, 2)
    stamp_flush(k, 3, sWS, 3)
    k.label('red_end')
    e('s_endpgm')
    return k, 'grid=(256,1,1) block=(256,1,1) lds=512'


def run_until(gen, tag):
    for t in gen:
        if t == tag:
            return
    raise RuntimeError('phase tag not reached: ' + tag)


def gen_tail(name, phases, opts, kidx, k=None):
    mega = k is not None
    wa = ' sc1' if mega else ''
    if not mega:
        k = Kern(name)
    e = k.e
    if not mega:
        e('s_cmp_ge_u32 s2, 256')
        e(f's_cbranch_scc1 {name}_end')
    if 'B' in phases:
        e('s_bfe_u32 s51, s2, 0x20001')
        e('s_lshr_b32 s3, s2, 6')
        e('s_lshl_b32 s3, s3, 2')
        e('s_add_u32 s51, s51, s3')
        if phases == 'B':
            e('s_cmp_ge_u32 s51, 14')
            e(f's_cbranch_scc1 {name}_end')
    if mega:
        signal(k, 244, 46, 0)
        stamp(k, 2)
        for f in early_c(k, 15, 'wo', wa): f()
    else:
        stamp(k, 0)
        e(f's_load_dwordx2 s[6:7], s[0:1], {A_WS}')
        if 'A' in phases:
            e(f's_load_dwordx2 s[60:61], s[0:1], {A_X}')
        if 'B' in phases:
            e(f's_load_dwordx4 s[56:59], s[0:1], {A_W1}')
        if 'C' in phases:
            e(f's_load_dwordx2 s[62:63], s[0:1], {A_OUT}')
        e('v_lshrrev_b32 v1, 6, v0')
        e(f'v_readfirstlane_b32 s{sWV_T}, v1')
    keep = 'A' in phases and 'C' in phases
    first = not mega
    pending_flag = False
    sb = 3 if mega else 1
    for pi, ph in enumerate(phases):
        dep = pi > 0 or mega
        out_flag = pi + 1 < len(phases)
        if ph == 'B' and len(phases) > 1:
            if first:
                e('s_waitcnt lgkmcnt(0)')
                srd(k, sWS_T, 6, 7, WS_SIZE)
                first = False
            e('s_cmp_ge_u32 s51, 14')
            e(f's_cbranch_scc1 {name}_skipb')
        if ph == 'B':
            g = phase_ffn1(k, opts, dep, out_flag, sb, early_c(k, 13, 'w2', wa) if out_flag else None)
        else:
            g = phase_gemm64(k, 'wo' if ph == 'A' else 'w2', opts, dep, out_flag, keep, sb, early_b(k) if out_flag else None)
        run_until(g, 'setup')
        if first:
            e('s_waitcnt lgkmcnt(0)')
            srd(k, sWS_T, 6, 7, WS_SIZE)
            first = False
        if pending_flag:
            signal(k, 244 if ph == 'C' else 252, 46, 0)
        run_until(g, 'prefetched')
        run_until(g, 'done')
        pending_flag = out_flag
        if ph == 'B' and len(phases) > 1:
            if pi + 1 < len(phases):
                e(f's_branch {name}_joinb')
                k.label(f'{name}_skipb')
                if pi > 0:
                    signal(k, 252, 46, 0)
                for f in early_c(k, 13, 'w2', wa): f()
                e(f's_mov_b32 s46, {WS_FDUMMY}')
                k.label(f'{name}_joinb')
            else:
                e(f's_branch {name}_fin')
                k.label(f'{name}_skipb')
                if pi > 0:
                    signal(k, 252, 46, 0)
                k.label(f'{name}_fin')
        sb += 5 if dep else 4
    if STAMP:
        e(f's_lshl_b32 s100, s{sWV_T}, 6')
        e('v_mov_b32 v0, s100')
    stamp_flush(k, sb, sWS_T, kidx)
    if mega:
        return
    k.label(f'{name}_end')
    e('s_endpgm')
    return k, 'grid=(256,1,1) block=(256,1,1) lds=135168'


def build(opts=None):
    global STAMP
    opts = opts or {}
    STAMP = opts.get('stamp', False)
    for kk in COST:
        if 'c_' + kk in opts: COST[kk] = opts['c_' + kk]
    ks = [gen_prep(opts), gen_attn(opts, (lambda k: gen_tail('tail', opts['mega'], opts, 1, k)) if opts.get('mega') else None)]
    if opts.get('mega'):
        for i, ph in enumerate([p for p in opts.get('rest', '').split('|') if p]):
            ks.append(gen_tail('tail' + ph.lower() + '_kernel', ph, dict(opts, mega=None), 2 + i))
    elif opts.get('sk', 0):
        ks += [gen_oproj_sk(opts), gen_red(opts)]
        for i, ph in enumerate(opts.get('fuse', 'B|C').split('|')):
            ks.append(gen_tail('tail' + ph.lower() + '_kernel', ph, opts, 4 + i))
    else:
        for i, ph in enumerate(opts.get('fuse', 'A|B|C').split('|')):
            ks.append(gen_tail('tail' + ph.lower() + '_kernel', ph, opts, 2 + i))
    hdr = open('adaLN_cond__mha_block_cached__glu_gated_swiglu__prompt.s.ref').read().split('\n')
    out = []
    for l in hdr:
        if l.startswith('; Override') or l.startswith('; grid=') or '@launch' in l or not l.startswith(';'):
            if not l.startswith(';'):
                break
            continue
        out.append(l)
    out += """; Pipeline (generated by a python script; all matrix products use v_mfma_f32_32x32x16_bf16, f32 accumulation):
;   prep : mod = silu(c) @ w_mod, xhat = layernorm(x) (fp16, MFMA operand order)
;   attn : one (head, 256 query rows) per workgroup: Q projection, then flash attention on S^T = K Q^T with a running
;          reference maximum (updated to the true running maximum whenever a block sum exceeds a bound), O in operand order
;   taila: x1 = x + ga * (O @ wo), per-row partial sums      tailb: layernorm + modulation + gate/up + SwiGLU
;   tailc: out = x1 + gb * (hh @ w2)""".split('\n')
    for k, launch in ks:
        for _ in range(1 + opts.get('dup_' + k.name[:5], 0)):
            out.append(f'; @launch kernel={k.name} {launch}')
    out.append('.amdgcn_target "amdgcn-amd-amdhsa--gfx950"')
    out.append('.text')
    for k, _ in ks:
        n = k.fix_hazards(verbose=opts.get('verbose', False))
        print(f'{k.name}: {len(k.ins)} instr, {n} hazard nop states, regs {k.max_regs()}', file=sys.stderr)
        out.append(f'.globl {k.name}')
        out.append('.p2align 8')
        out.append(f'.type {k.name},@function')
        out.append(f'{k.name}:')
        out.append(k.text())
    out.append('code_end:')
    errs = 0
    errs += ks[0][0].verify_path({})
    errs += ks[0][0].verify_path({'prep_ln': 1})
    errs += ks[1][0].verify_path({'attn_tail': [False, False, False, True], 'attn_copy': [True, True, True, True], 'attn_copy_st': [False, True], 'attn_copy_ret': [False, False, True, True], 'attn_copy_flag': [False, False, True, True], 'attn_fc_go': 1, 'pa_loop': 1, 'pa_go': [False, True], 'pb_go': [False, True], 'pc_go': 1})
    for k, _ in ks[2:]:
        errs += k.verify_path({'pa_loop': 2, 'pb_go': [False, True], 'pc_go': [False, True]})
        errs += k.verify_path({'pa_loop': 2, 'pb_go': 1, 'pc_go': 1})
        errs += k.verify_path({'pa_loop': 2, 'pb_go': 1, 'pc_go': 1, k.name + '_skipb': 1})
    assert errs == 0 or 'qx' in opts or 'x' in opts, errs
    out.append('.section .rodata,"a"')
    for k, _ in ks:
        out.append('.p2align 6')
        out.append(descriptor(k, 264 if k.name.startswith('tail') else 0))
    return '\n'.join(out)


if __name__ == '__main__':
    dst = sys.argv[1] if len(sys.argv) > 1 else 'adaLN_cond__mha_block_cached__glu_gated_swiglu__prompt.s'
    opts = {}
    for a in sys.argv[2:]:
        kk, _, v = a.partition('=')
        opts[kk] = eval(v) if v else True
    open(dst, 'w').write(build(opts))
```

```python
import sys, struct, math
from asmlib import *

A_X, A_K, A_V, A_WQ, A_WO, A_BX, A_W1, A_W3, A_W2, A_C, A_WMOD, A_OUT, A_DBG, A_WS = [8 * i for i in range(14)]
WS_MOD1 = 0
WS_GA = 4096
WS_MOD2 = 8192
WS_GB = 8192 + 4096
WS_FA = 0x4000
WS_FB = 0x5000
WS_FO = 0x6000
WS_FC = 0x7000
WS_FDUMMY = 0x8000
WS_XHAT = 0x10000
WS_O = 0x400000
WS_X1 = 0x1400000
WS_ST = 0x1600000
WS_HH = 0x1800000
WS_WOT = 0x2000000
WS_W2T = 0x2400000
WS_H2 = 0x2600000
WS_P = 0x3000000
WS_SIZE = 0x4000000

LOG2E = 1.4426950408889634


def f32(x):
    return '0x%08x' % struct.unpack('<I', struct.pack('<f', x))[0]


def srd(k, d, lo, hi, nbytes):
    k.e(f's_mov_b32 s{d}, s{lo}')
    k.e(f's_and_b32 s{d + 1}, s{hi}, 0xffff')
    k.e(f's_mov_b32 s{d + 2}, {nbytes}')
    k.e(f's_mov_b32 s{d + 3}, 0x00020000')


WS_STAMP = 0x1F00000
STAMP = False


def stamp(k, idx):
    if not STAMP or idx > 15 or idx < 0:
        return
    k.e('s_waitcnt lgkmcnt(0)')
    k.e(f's_memtime s[{64 + 2 * idx}:{65 + 2 * idx}]')
    if idx == 0:
        k.e('s_memrealtime s[96:97]')
    k.e('s_waitcnt lgkmcnt(0)')


def stamp_flush(k, n, sws, kidx):
    if not STAMP:
        return
    e = k.e
    n = min(n, 15)
    e('s_waitcnt vmcnt(0) lgkmcnt(0)')
    stamp(k, n)
    e('s_memrealtime s[98:99]')
    e('s_waitcnt lgkmcnt(0)')
    lab = k.newlabel('nost')
    e('v_readfirstlane_b32 s100, v0')
    e('s_cmp_lg_u32 s100, 0')
    e(f's_cbranch_scc1 {lab}')
    e('s_lshl_b32 s100, s2, 7')
    e(f's_add_u32 s100, s100, {WS_STAMP + kidx * 65536}')
    e('v_mov_b32 v1, 0')
    for i in range(n + 1):
        e(f'v_mov_b32 v2, s{64 + 2 * i}')
        e(f'buffer_store_dword v2, v1, s[{sws}:{sws + 3}], s100 offen offset:{4 * i}')
    e('v_mov_b32 v2, s96')
    e(f'buffer_store_dword v2, v1, s[{sws}:{sws + 3}], s100 offen offset:120')
    e('v_mov_b32 v2, s98')
    e(f'buffer_store_dword v2, v1, s[{sws}:{sws + 3}], s100 offen offset:124')
    k.label(lab)


def code_touch(k, v, sp, sidx, vlane, start, end):
    e = k.e
    lab = k.newlabel('pc')
    e(f's_getpc_b64 s[{sp}:{sp + 1}]')
    k.label(lab)
    e(f's_add_u32 s{sp}, s{sp}, {start}-{lab}')
    e(f's_addc_u32 s{sp + 1}, s{sp + 1}, 0')
    e(f's_lshl_b32 s{sidx}, s{sidx}, 13')
    e(f'v_lshlrev_b32 v{v}, 7, v{vlane}')
    e(f'v_add_u32 v{v}, s{sidx}, v{v}')
    e(f'v_min_u32 v{v}, {end}-{start}-4, v{v}')
    e(f'v_mov_b32 v{v + 1}, s{sp + 1}')
    e(f'v_add_co_u32 v{v}, vcc, s{sp}, v{v}')
    e(f'v_addc_co_u32 v{v + 1}, vcc, 0, v{v + 1}, vcc')
    e(f'global_load_dword v{v + 2}, v[{v}:{v + 1}], off', 'code')


def rbf(k, d, s):
    k.e(f'v_cvt_pk_bf16_f32 v{d}, 0, v{s}')


def allreduce16(k, v, t):
    for mod in ('quad_perm:[1,0,3,2]', 'quad_perm:[2,3,0,1]', 'row_half_mirror', 'row_mirror'):
        k.e(f'v_add_f32_dpp v{t}, v{v}, v{v} {mod} row_mask:0xf bank_mask:0xf')
        v, t = t, v


def gen_prep(opts):
    k = Kern('prep_kernel')
    e = k.e
    NMOD, NLN = 96, 128
    e(f's_cmp_ge_u32 s2, {NMOD + NLN}')
    e('s_cbranch_scc1 prep_end')
    stamp(k, 0)
    e(f's_load_dwordx2 s[4:5], s[0:1], {A_WS}')
    e(f's_load_dwordx2 s[6:7], s[0:1], {A_X}')
    e(f's_load_dwordx4 s[20:23], s[0:1], {A_C}')
    e(f's_load_dwordx4 s[36:39], s[0:1], {A_K}')
    e(f's_load_dwordx2 s[40:41], s[0:1], {A_WQ}')

    def prefetch(ln=False, part=3):
        if opts.get('cpf', 1) and part & 1:
            lab = k.newlabel('nocpf')
            e('v_lshrrev_b32 v72, 6, v0')
            e('v_and_b32 v73, 63, v0')
            e('v_readfirstlane_b32 s42, v72')
            e('s_lshr_b32 s43, s2, 3')
            e('s_lshl_b32 s43, s43, 2')
            e('s_add_u32 s43, s43, s42')
            e('s_cmp_ge_u32 s43, (code_end-attn_kernel+8191)/8192')
            e(f's_cbranch_scc1 {lab}')
            code_touch(k, 74, 44, 43, 73, 'attn_kernel', 'code_end')
            k.vmq.pop()
            k.label(lab)
        if opts.get('pf1', 2) == 2:
            if ln and part & 2:
                e('v_lshrrev_b32 v72, 6, v0')
                e('v_and_b32 v73, 63, v0')
                e('v_readfirstlane_b32 s42, v72')
                e('v_lshrrev_b32 v77, 3, v73')
                e('v_and_b32 v78, 7, v73')
                e('v_lshlrev_b32 v77, 13, v77')
                e('v_lshl_add_u32 v77, v78, 7, v77')
                e(f's_sub_u32 s43, s2, {NMOD}')
                e('s_lshr_b32 s43, s43, 3')
                e('s_lshl_b32 s43, s43, 2')
                e('s_add_u32 s43, s43, s42')
                e('s_lshl_b32 s43, s43, 16')
                e('s_and_b32 s44, s2, 7')
                e('s_lshl_b32 s44, s44, 10')
                e('s_add_u32 s43, s43, s44')
                srd(k, 48, 40, 41, 512 * 8192)
                e('buffer_load_dword v78, v77, s[48:51], s43 offen', 'pf')
                if opts.get('pf64', 0):
                    e('buffer_load_dword v79, v77, s[48:51], s43 offen offset:64', 'pf')
            return
        if not opts.get('pf1', 2):
            return
        e('v_lshrrev_b32 v72, 6, v0')
        e('v_and_b32 v73, 63, v0')
        e('v_readfirstlane_b32 s42, v72')
        e('v_lshrrev_b32 v74, 4, v73')
        e('v_and_b32 v75, 15, v73')
        e('v_lshlrev_b32 v74, 13, v74')
        e('v_lshl_add_u32 v74, v75, 6, v74')
        e('v_lshlrev_b32 v73, 6, v73')
        e('s_lshr_b32 s43, s2, 3')
        e('s_lshl_b32 s43, s43, 2')
        e('s_add_u32 s43, s43, s42')
        e('s_and_b32 s44, s2, 7')
        srd(k, 48, 40, 41, 512 * 8192)
        e('s_lshl_b32 s45, s43, 15')
        e('s_lshl_b32 s46, s44, 10')
        e('s_add_u32 s45, s45, s46')
        e('buffer_load_dword v76, v74, s[48:51], s45 offen', 'pf')
        e(f's_add_u32 s45, s45, {112 * 32768}')
        e('buffer_load_dword v77, v74, s[48:51], s45 offen', 'pf')
        e('s_and_b32 s45, s43, 63')
        e('s_lshr_b32 s46, s45, 4')
        e('s_lshl_b32 s47, s44, 2')
        e('s_add_u32 s46, s46, s47')
        e('s_lshl_b32 s46, s46, 19')
        e('s_and_b32 s45, s45, 15')
        e('s_lshl_b32 s45, s45, 12')
        e('s_add_u32 s45, s45, s46')
        srd(k, 48, 36, 37, 32 * 524288)
        e('buffer_load_dword v78, v73, s[48:51], s45 offen', 'pf')
        srd(k, 48, 38, 39, 32 * 524288)
        e('buffer_load_dword v79, v73, s[48:51], s45 offen', 'pf')
    e(f's_cmp_ge_u32 s2, {NMOD}')
    e('s_cbranch_scc1 prep_ln')
    e('v_and_b32 v1, 3, v0')
    e('v_lshrrev_b32 v2, 2, v0')
    e('s_mov_b32 s3, 49152')
    e('v_mul_lo_u32 v3, v2, s3')
    e('v_lshl_add_u32 v3, v1, 4, v3')
    if opts.get('mrm', 1):
        e('s_and_b32 s34, s2, 0x70')
        e('s_and_b32 s3, s2, 7')
        e('s_lshl_b32 s3, s3, 1')
        e('s_add_u32 s34, s34, s3')
        e('s_bfe_u32 s3, s2, 0x10003')
        e('s_add_u32 s34, s34, s3')
    else:
        e('s_mov_b32 s34, s2')
    e('s_lshl_b32 s3, s34, 6')
    e('v_add_u32 v3, s3, v3')
    e('v_lshlrev_b32 v4, 4, v2')
    e('s_waitcnt lgkmcnt(0)')
    stamp(k, 1)
    srd(k, 8, 20, 21, 1024)
    srd(k, 12, 22, 23, 512 * 6144)
    srd(k, 16, 4, 5, WS_SIZE)
    e('buffer_load_dwordx4 v[8:11], v4, s[8:11], 0 offen', 'c')
    for i in range(8):
        e(f's_mov_b32 s{24 + i}, {i * 6144}')
        e(f'buffer_load_dwordx4 v[{16 + 4 * i}:{19 + 4 * i}], v3, s[12:15], s{24 + i} offen', ('w', i))
    prefetch()
    k.wait(vm=['c'])
    stamp(k, 2)
    e(f's_mov_b32 s3, {f32(-LOG2E)}')
    for i in range(8):
        src = 8 + i // 2
        if i % 2 == 0:
            e(f'v_lshlrev_b32 v{48 + i}, 16, v{src}')
        else:
            e(f'v_and_b32 v{48 + i}, 0xffff0000, v{src}')
    for i in range(8):
        e(f'v_mul_f32 v{56 + i}, s3, v{48 + i}')
    for i in range(8):
        e(f'v_exp_f32 v{56 + i}, v{56 + i}')
    for i in range(8):
        e(f'v_add_f32 v{56 + i}, 1.0, v{56 + i}')
    for i in range(8):
        e(f'v_rcp_f32 v{56 + i}, v{56 + i}')
    for i in range(8):
        e(f'v_mul_f32 v{48 + i}, v{48 + i}, v{56 + i}')
    for i in range(8):
        rbf(k, 48 + i, 48 + i)
    for i in range(8):
        k.wait(vm=[('w', i)])
        for p in range(4):
            w = 16 + 4 * i + p
            e(f'v_lshlrev_b32 v56, 16, v{w}')
            e(f'v_and_b32 v57, 0xffff0000, v{w}')
            if i == 0:
                e(f'v_mul_f32 v{64 + 2 * p}, v48, v56')
                e(f'v_mul_f32 v{65 + 2 * p}, v48, v57')
            else:
                e(f'v_fmac_f32 v{64 + 2 * p}, v{48 + i}, v56')
                e(f'v_fmac_f32 v{65 + 2 * p}, v{48 + i}, v57')
    stamp(k, 3)
    e('v_lshlrev_b32 v5, 5, v0')
    e('ds_write_b128 v5, v[64:67]')
    e('ds_write_b128 v5, v[68:71] offset:16')
    e('s_waitcnt lgkmcnt(0)')
    e('s_barrier')
    e('v_and_b32 v6, 31, v0')
    e('v_lshrrev_b32 v7, 5, v0')
    e('v_lshlrev_b32 v5, 10, v7')
    e('v_lshl_add_u32 v5, v6, 2, v5')
    for i in range(8):
        e(f'ds_read_b32 v{16 + i}, v5 offset:{i * 128}')
    e('s_waitcnt lgkmcnt(0)')
    for i in range(1, 8):
        e(f'v_add_f32 v16, v16, v{16 + i}')
    e('v_lshlrev_b32 v5, 2, v0')
    e('ds_write_b32 v5, v16 offset:8192')
    e('s_waitcnt lgkmcnt(0)')
    e('s_barrier')
    e('v_cmp_gt_u32 vcc, 32, v0')
    e('s_and_saveexec_b64 s[32:33], vcc')
    e('s_cbranch_execz prep_end')
    for i in range(8):
        e(f'ds_read_b32 v{16 + i}, v5 offset:{8192 + i * 128}')
    e('s_waitcnt lgkmcnt(0)')
    for i in range(1, 8):
        e(f'v_add_f32 v16, v16, v{16 + i}')
    rbf(k, 16, 16)
    e('v_add_f32 v17, 1.0, v16')
    rbf(k, 17, 17)
    e('s_lshr_b32 s24, s34, 4')
    e('s_and_b32 s25, s34, 15')
    e('s_lshl_b32 s25, s25, 5')
    e('v_add_u32 v6, s25, v0')
    e('s_cmp_ge_u32 s24, 3')
    e('s_cselect_b32 s26, 8192, 0')
    e('s_cselect_b32 s27, 3, 0')
    e('s_sub_u32 s24, s24, s27')
    e('v_lshrrev_b32 v7, 3, v6')
    e('v_lshlrev_b32 v7, 6, v7')
    e('v_and_b32 v8, 7, v6')
    e('v_lshl_add_u32 v7, v8, 2, v7')
    e('v_lshlrev_b32 v8, 2, v6')
    stamp_flush(k, 4, 16, 0)
    e('s_cmp_eq_u32 s24, 2')
    e('s_cbranch_scc1 prep_gate')
    e('s_cmp_eq_u32 s24, 1')
    e('s_cbranch_scc1 prep_scale')
    e('buffer_store_dword v16, v7, s[16:19], s26 offen offset:32')
    e('s_endpgm')
    k.label('prep_scale')
    e('buffer_store_dword v17, v7, s[16:19], s26 offen')
    e('s_endpgm')
    k.label('prep_gate')
    e('s_add_u32 s26, s26, 4096')
    e('buffer_store_dword v16, v8, s[16:19], s26 offen')
    e('s_endpgm')
    k.label('prep_ln')
    e(f's_sub_u32 s3, s2, {NMOD}')
    e('s_lshl_b32 s3, s3, 4')
    e('v_lshrrev_b32 v1, 4, v0')
    e('v_add_u32 v1, s3, v1')
    e('v_and_b32 v2, 15, v0')
    e('v_lshlrev_b32 v3, 10, v1')
    e('v_lshl_add_u32 v3, v2, 4, v3')
    e('s_waitcnt lgkmcnt(0)')
    stamp(k, 1)
    srd(k, 8, 6, 7, 2048 * 1024)
    srd(k, 16, 4, 5, WS_SIZE)
    for j in range(4):
        e(f'buffer_load_dwordx4 v[{8 + 4 * j}:{11 + 4 * j}], v3, s[8:11], 0 offen offset:{256 * j}', ('x', j))
    PFP = opts.get('pfp', 0)
    prefetch(True, 3 if PFP == 0 else 1)
    if len(opts.get('fuse', 'A|B|C').split('|')) < 3 or opts.get('mega'):
        e(f's_sub_u32 s43, s2, {NMOD}')
        e('s_cmp_ge_u32 s43, 16')
        e('s_cbranch_scc1 prep_nofl')
        e('s_lshl_b32 s43, s43, 10')
        e(f's_add_u32 s43, s43, {WS_FA}')
        e('v_lshlrev_b32 v72, 2, v0')
        e('v_mov_b32 v73, 0')
        e('buffer_store_dword v73, v72, s[16:19], s43 offen')
        k.vmq.pop()
        k.label('prep_nofl')
    e('v_lshrrev_b32 v4, 5, v1')
    e('v_lshlrev_b32 v4, 15, v4')
    e('v_lshrrev_b32 v5, 1, v2')
    e('v_lshl_add_u32 v4, v5, 10, v4')
    e('v_and_b32 v5, 1, v2')
    e('v_lshl_add_u32 v4, v5, 9, v4')
    e('v_and_b32 v5, 31, v1')
    e('v_lshl_add_u32 v4, v5, 4, v4')
    X = 32
    for j in range(4):
        k.wait(vm=[('x', j)])
        for p in range(4):
            e(f'v_lshlrev_b32 v{X + 8 * j + 2 * p}, 16, v{8 + 4 * j + p}')
            e(f'v_and_b32 v{X + 8 * j + 2 * p + 1}, 0xffff0000, v{8 + 4 * j + p}')
    stamp(k, 2)
    if PFP == 1:
        prefetch(True, 2)
    e(f'v_add_f32 v24, v{X}, v{X + 1}')
    e(f'v_add_f32 v25, v{X + 2}, v{X + 3}')
    for i in range(4, 32):
        e(f'v_add_f32 v{24 + i % 2}, v{24 + i % 2}, v{X + i}')
    e('v_add_f32 v24, v24, v25')
    allreduce16(k, 24, 25)
    e(f's_mov_b32 s3, {f32(1.0 / 512)}')
    e('v_mul_f32 v24, s3, v24')
    for i in range(32):
        e(f'v_sub_f32 v{64 + i % 4}, v{X + i}, v24')
        if i < 2:
            e(f'v_mul_f32 v{26 + i}, v{64 + i % 4}, v{64 + i % 4}')
        else:
            e(f'v_fmac_f32 v{26 + i % 2}, v{64 + i % 4}, v{64 + i % 4}')
    e('v_add_f32 v26, v26, v27')
    allreduce16(k, 26, 27)
    e('v_mul_f32 v26, s3, v26')
    rbf(k, 24, 24)
    rbf(k, 26, 26)
    e(f'v_add_f32 v26, {f32(1e-5)}, v26')
    rbf(k, 26, 26)
    e('v_sqrt_f32 v26, v26')
    rbf(k, 26, 26)
    e('v_rcp_f32 v26, v26')
    e(f's_mov_b32 s24, {WS_XHAT}')
    for j in range(4):
        for i in range(8):
            r = X + 8 * j + i
            e(f'v_sub_f32 v{r}, v{r}, v24')
        for i in range(8):
            r = X + 8 * j + i
            rbf(k, r, r)
        for i in range(8):
            r = X + 8 * j + i
            e(f'v_mul_f32 v{r}, v{r}, v26')
        for i in range(8):
            r = X + 8 * j + i
            rbf(k, r, r)
        for p in range(4):
            r = X + 8 * j + 2 * p
            e(f'v_cvt_pkrtz_f16_f32 v{8 + 4 * j + p}, v{r}, v{r + 1}')
        e(f'buffer_store_dwordx4 v[{8 + 4 * j}:{11 + 4 * j}], v4, s[16:19], s24 offen')
        if j < 3:
            e(f's_add_u32 s24, s24, 8192')
    if PFP == 2:
        prefetch(True, 2)
    stamp(k, 3)
    stamp_flush(k, 4, 16, 0)
    k.label('prep_end')
    e('s_endpgm')
    return k, f'grid=({NMOD + NLN},1,1) block=(256,1,1) lds=9216'


COST = {'exp': 2, 'valu': 1, 'ds': 1, 'dma': 2.5, 'salu': 1, 'vload': 2.5}
GAPCAP = 6
ORDER = {'wait': 0, 'bar': 1, 'dma': 2, 'ds': 3, 'end': 9}


def schedule(k, mfmas, fixed, stream, last_gap=None, cap=GAPCAP, caps=None):
    n = len(mfmas)
    if last_gap is None:
        last_gap = n - 1
    spare = []
    for g in range(n):
        c = sum(x[0] for x in fixed.get(g, []))
        cp = caps.get(g, cap) if caps else cap
        spare.append(max(cp - c, 0) if g <= last_gap else 0)
    tot_spare = sum(spare)
    tot = sum(x[0] for x in stream)
    si = 0
    done = 0.0
    cum = 0
    lastg = max([g for g in range(n) if spare[g] > 0] or [n - 1])
    for g in range(n):
        mfmas[g]()
        fx = sorted(fixed.get(g, []), key=lambda x: ORDER[x[2]])
        cum += spare[g]
        target = tot * cum / max(tot_spare, 1)
        mine = []
        while si < len(stream) and ((spare[g] > 0 and done + stream[si][0] * 0.5 <= target) or g >= lastg):
            mine.append(stream[si]); done += stream[si][0]; si += 1
        for x in fx:
            if x[2] != 'end': x[1]()
        for x in mine: x[1]()
        for x in fx:
            if x[2] == 'end': x[1]()
    assert si == len(stream)


def gemm256(k, P):
    e = k.e
    QX = P.get('qx', '')
    P['chunk_barrier'](0)
    for _, f in P['ss_reads'](0) + P['w_reads'](0) + P['ss_reads'](1): f()
    k.wait(vm=[('x', 0)], lg=[('ss', 0)])
    for _, f in P['xform'](0): f()
    k.wait(lg=[('w', 0)])
    for ks in range(32):
        mf = []
        for db in range(4):
            for qb in range(2):
                def m(db=db, qb=qb):
                    acc = P['ACC'] + (db * 2 + qb) * 16
                    wf = P['WF'] + (ks % 2) * 16 + db * 4
                    h = P['H'] + (ks % 2) * 8 + qb * 4
                    c = '0' if ks == 0 else ar(acc, 16)
                    e(f'v_mfma_f32_32x32x16_bf16 {ar(acc, 16)}, {ar(wf, 4)}, {vr(h, 4)}, {c}')
                mf.append(m)
        fx = {}
        st = []
        caps = {}
        if ks + 1 < 32:
            newc = (ks + 1) % 4 == 0
            if newc:
                fx.setdefault(0, []).append((0, lambda: k.wait(vm=[('wq', (ks + 1) // 4), ('x', ks + 1)], lg=[('ss', ks + 1)]), 'wait'))
                if 'B' not in QX: fx.setdefault(0, []).append((6, lambda: e('s_barrier'), 'bar'))
                caps[1] = 4
            else:
                fx.setdefault(0, []).append((0, lambda: k.wait(vm=[('x', ks + 1)], lg=[('ss', ks + 1)]), 'wait'))
            g0 = 1 if newc else 0
            rd = (P['ss_reads'](ks + 2) if ks + 2 < 32 and 'S' not in QX else []) + (P['w_reads'](ks + 1) if 'W' not in QX else [])
            for i, it in enumerate(rd):
                fx.setdefault(g0 + i // 3, []).append((it[0], it[1], 'ds'))
            st = P['xform'](ks + 1) if 'T' not in QX else []
            fx.setdefault(7, []).append((0, lambda: k.wait(lg=[('w', ks + 1)]), 'wait'))
        groups = P['refill'](ks)
        if 'V' in QX: groups = []
        gl = [5, 6, 4, 7, 3, 2][:len(groups)]
        gl.sort()
        for g, grp in zip(gl, groups):
            for it in grp[:-1]:
                fx.setdefault(g - 1, []).append((it[0], it[1], 'end'))
            fx.setdefault(g, []).append((grp[-1][0], grp[-1][1], 'dma'))
        schedule(k, mf, fx, st, caps=caps, last_gap=6, cap=7)


class G256:
    pass


BIAS = 100.0
THRESH = 2.0 ** 90


def gen_attn(opts, tail_cb=None):
    global BIAS
    MEGA = tail_cb is not None
    SI = (lambda i: {0: 0, 5: 1}.get(i, -1)) if MEGA else (lambda i: i)
    BIAS = opts.get('bias', BIAS)
    k = Kern('attn_kernel')
    e = k.e
    sK, sV, sWQ, sWS = 8, 12, 16, 20
    sW, sW4K, sKoff, sVoff, sCnt, sThr, sXb, sT0, sT1, sOb = 32, 33, 34, 35, 36, 37, 38, 39, 40, 41
    sLink = 44
    S = [8, 40]; NEGM = 72; P = [104, 120]; Q = 136; ET = 200
    LS = [208, 209]; L = [210, 211]; TMP = 212
    KR = 216; VR = 224; DK = 228; DV = 232; VL16 = 233; VMD = 234; VLANE = 235
    O = 0; KF = 128; VF = 160
    LDS_K, LDS_V, LDS_MOD = 0, 65536, 131072

    e('s_cmp_ge_u32 s2, 256')
    e('s_cbranch_scc1 attn_end')
    stamp(k, SI(0))
    e(f's_load_dwordx4 s[4:7], s[0:1], {A_K}')
    e(f's_load_dwordx2 s[24:25], s[0:1], {A_WQ}')
    e(f's_load_dwordx2 s[26:27], s[0:1], {A_WS}')
    e(f's_load_dwordx2 s[48:49], s[0:1], {A_WO}')
    e(f's_load_dwordx4 s[52:55], s[0:1], {A_W3}')
    e(f's_load_dwordx2 s[50:51], s[0:1], {A_W1}')
    if MEGA:
        e(f's_load_dwordx2 s[60:61], s[0:1], {A_X}')
        e(f's_load_dwordx4 s[56:59], s[0:1], {A_W1}')
        e(f's_load_dwordx2 s[62:63], s[0:1], {A_OUT}')
    e('s_and_b32 s28, s2, 7')
    e('s_lshl_b32 s28, s28, 2')
    e('s_lshr_b32 s29, s2, 3')
    e('s_and_b32 s30, s29, 3')
    e('s_add_u32 s28, s28, s30')
    e('s_lshr_b32 s29, s29, 2')
    e('v_lshrrev_b32 v1, 6, v0')
    e(f'v_and_b32 v{VLANE}, 63, v0')
    e(f'v_readfirstlane_b32 s{sW}, v1')
    e(f'v_lshlrev_b32 v{VL16}, 4, v{VLANE}')
    e(f's_lshl_b32 s{sW4K}, s{sW}, 12')
    e(f'v_lshrrev_b32 v2, 4, v{VLANE}')
    e(f'v_and_b32 v3, 15, v{VLANE}')
    e(f'v_lshrrev_b32 v4, 5, v{VLANE}')
    e(f'v_and_b32 v5, 31, v{VLANE}')
    e('v_lshlrev_b32 v6, 2, v2')
    e('v_xor_b32 v6, v6, v3')
    e('v_lshlrev_b32 v6, 4, v6')
    e(f'v_lshl_add_u32 v{DV}, v2, 8, v6')
    e(f'v_add_u32 v{DV}, s{sW4K}, v{DV}')
    e(f's_lshl_b32 s3, s{sW}, 17')
    e('v_lshl_add_u32 v7, v2, 13, v6')
    e('v_add_u32 v7, s3, v7')
    e('s_waitcnt lgkmcnt(0)')
    e('s_lshl_b32 s3, s28, 19')
    e('s_add_u32 s4, s4, s3'); e('s_addc_u32 s5, s5, 0')
    e('s_add_u32 s6, s6, s3'); e('s_addc_u32 s7, s7, 0')
    srd(k, sK, 4, 5, 524288)
    srd(k, sV, 6, 7, 524288)
    e('s_lshl_b32 s3, s28, 8')
    e('s_add_u32 s24, s24, s3'); e('s_addc_u32 s25, s25, 0')
    e(f's_mov_b32 s{sWQ}, s24'); e(f's_and_b32 s{sWQ + 1}, s25, 0xffff')
    e(f's_sub_u32 s{sWQ + 2}, {512 * 8192}, s3'); e(f's_mov_b32 s{sWQ + 3}, 0x00020000')
    srd(k, sWS, 26, 27, WS_SIZE)
    e('s_lshl_b32 s3, s29, 3')
    e(f's_lshl_b32 s{sT0}, s{sW}, 1')
    e(f's_add_u32 s3, s3, s{sT0}')
    e(f's_lshl_b32 s{sXb}, s3, 15')
    e(f's_add_u32 s{sXb}, s{sXb}, {WS_XHAT}')
    e(f's_lshl_b32 s{sOb}, s3, 18')
    e(f's_lshl_b32 s{sT0}, s28, 13')
    e(f's_add_u32 s{sOb}, s{sOb}, s{sT0}')
    e(f's_add_u32 s{sOb}, s{sOb}, {WS_O}')

    XR = 8; H = 136; SS = 152; FT = 184; WRA = 200; WF = 128
    chunk_slot = [LDS_K, LDS_K + 16384, LDS_V, LDS_K + 32768, LDS_K + 49152, LDS_V + 16384, LDS_V + 32768, LDS_V + 49152]

    def wq_dma(c):
        out = []
        for p in range(4):
            g = []
            if p == 0:
                g.append((1, lambda: e(f's_add_u32 m0, s{sW4K}, {chunk_slot[c]}')))
            g.append((1, lambda p=p: e(f's_mov_b32 s{sT0}, {c * 524288 + p * (32768 - 1024)}')))
            g.append((COST['dma'], lambda p=p: e(f'buffer_load_dwordx4 v7, s[{sWQ}:{sWQ + 3}], s{sT0} offen offset:{p * 1024} lds', ('wq', c))))
            out.append(g)
        return out

    def xreg(ks, qb):
        return XR + (((ks // 4) % 4) * 8 + (ks % 4) * 2 + qb) * 4

    def x_load(ks, qb):
        c = ks // 4
        out = []
        so = (sT1, 43)[qb]
        if ks % 4 == 0:
            out.append((1, lambda: e(f's_add_u32 s{so}, s{sXb}, {qb * 32768 + c * 4096}')))
        r = xreg(ks, qb)
        out.append((COST['vload'], lambda: e(f'buffer_load_dwordx4 v[{r}:{r + 3}], v{VL16}, s[{sWS}:{sWS + 3}], s{so} offen offset:{(ks % 4) * 1024}', ('x', ks))))
        return out

    e(f's_lshl_b32 s{sT0}, s{sW}, 10')
    e(f's_add_u32 m0, s{sT0}, {LDS_MOD}')
    e(f's_add_u32 s{sT0}, s{sT0}, {WS_MOD1}')
    e(f'buffer_load_dwordx4 v{VL16}, s[{sWS}:{sWS + 3}], s{sT0} offen lds', ('wq', 0))
    NPRE = opts.get('npre', 1)
    NPX = opts.get('npx', NPRE)
    for c in range(max(NPRE, NPX)):
        for g in (wq_dma(c) if c < NPRE else []):
            for _, f in g: f()
        for ks in (range(4 * c, 4 * c + 4) if c < NPX else []):
            for qb in range(2):
                for _, f in x_load(ks, qb): f()
    e('v_lshrrev_b32 v236, 2, v3')
    e(f'v_and_b32 v237, 3, v{VLANE}')
    e('v_and_b32 v238, 1, v2')
    e('v_lshlrev_b32 v238, 5, v238')
    e('v_and_b32 v239, 1, v237')
    e('v_lshl_add_u32 v238, v239, 4, v238')
    e('v_lshrrev_b32 v239, 1, v237')
    e('v_lshl_add_u32 v238, v239, 3, v238')
    e('v_lshl_add_u32 v238, v236, 8, v238')
    for db in range(4):
        e(f'v_xor_b32 v239, {db}, v236')
        e(f'v_lshl_add_u32 v239, v239, 6, v238')
        e(f'v_lshl_add_u32 v{WRA + db}, v4, 11, v239')
        e(f'v_add_u32 v{WRA + 4 + db}, {LDS_V}, v{WRA + db}')
        e(f'v_lshl_add_u32 v{VR + db}, v4, 10, v239')
        e(f'v_add_u32 v{VR + db}, {LDS_V}, v{VR + db}')
    for ks in range(8):
        e(f'v_add_u32 v239, {2 * ks}, v4')
        e('v_xor_b32 v239, v239, v3')
        e('v_lshlrev_b32 v239, 4, v239')
        e(f'v_lshl_add_u32 v{KR + ks}, v5, 8, v239')
    for p in range(4):
        e(f'v_add_u32 v239, {4 * p}, v2')
        e('v_xor_b32 v239, v239, v3')
        e('v_lshlrev_b32 v239, 4, v239')
        e('v_lshl_add_u32 v239, v2, 8, v239')
        e(f'v_add_u32 v{DK + p}, s{sW4K}, v239')
    e(f'v_lshlrev_b32 v{VMD}, 6, v4')
    e(f'v_add_u32 v{VMD}, {LDS_MOD}, v{VMD}')
    e(f's_mov_b32 s{sThr}, {f32(THRESH)}')

    def w_reads(ks):
        c = ks // 4
        slot = chunk_slot[c]
        base = WRA + 4 if slot >= LDS_V else WRA
        off0 = (slot % 65536) + (ks % 4) * 16 * 256
        out = []
        for db in range(4):
            for t in range(2):
                r = WF + (ks % 2) * 16 + db * 4 + t * 2
                out.append((COST['ds'], lambda r=r, db=db, t=t: e(f'ds_read_b64_tr_b16 a[{r}:{r + 1}], v{base + db} offset:{off0 + t * 1024}', ('w', ks))))
        return out

    def ss_reads(ks):
        out = []
        for j in range(4):
            r = SS + (ks % 2) * 16 + 4 * j
            out.append((COST['ds'], lambda r=r, j=j: e(f'ds_read_b128 v[{r}:{r + 3}], v{VMD} offset:{ks * 128 + j * 16}', ('ss', ks))))
        return out

    def xform(ks):
        out = []
        sb = SS + (ks % 2) * 16
        for qb in range(2):
            x = xreg(ks, qb)
            for p in range(4):
                t = FT + (qb * 4 + p) * 2
                out.append((1, lambda x=x, p=p, t=t: e(f'v_fma_mix_f32 v{t}, v{x + p}, v{sb + 2 * p}, v{sb + 8 + 2 * p} op_sel_hi:[1,0,0]')))
                out.append((1, lambda x=x, p=p, t=t: e(f'v_fma_mix_f32 v{t + 1}, v{x + p}, v{sb + 2 * p + 1}, v{sb + 8 + 2 * p + 1} op_sel:[1,0,0] op_sel_hi:[1,0,0]')))
                h = H + (ks % 2) * 8 + qb * 4 + p
                out.append((1, lambda t=t, h=h: e(f'v_cvt_pk_bf16_f32 v{h}, v{t}, v{t + 1}')))
        return out

    def chunk_barrier(c):
        stamp(k, SI(1))
        k.wait(vm=[('wq', c)])
        e('s_barrier')
        stamp(k, SI(2))

    def kv_dma(which, tile):
        out = []
        slot = tile % 4
        for p in range(4):
            g = []
            if p == 0:
                g.append((1, lambda: e(f's_add_u32 m0, s{sW4K}, {(LDS_K if which == "K" else LDS_V) + slot * 16384}')))
                g.append((1, lambda: e(f's_mov_b32 s{sT0}, {tile * 16384}')))
            if which == 'K':
                g.append((COST['dma'], lambda p=p: e(f'buffer_load_dwordx4 v{DK + p}, s[{sK}:{sK + 3}], s{sT0} offen offset:{p * 1024} lds', ('K', tile))))
            else:
                g.append((COST['dma'], lambda p=p: e(f'buffer_load_dwordx4 v{DV}, s[{sV}:{sV + 3}], s{sT0} offen offset:{p * 1024} lds', ('V', tile))))
            out.append(g)
        return out

    todo = []
    WL = opts.get('wlead', 0)
    seq = []
    for c in range(NPRE, 8 + WL):
        if c - WL < NPRE + 0 and c < 8 and False:
            pass
    wn = NPRE; xn = NPX
    while wn < 8 or xn < 8:
        if wn < 8 and wn <= xn + WL:
            todo += [(0, g) for g in wq_dma(wn)]; wn += 1
        else:
            for ks in range(4 * xn, 4 * xn + 4):
                todo += [(ks - 16, x_load(ks, 0)), (ks - 16, x_load(ks, 1))]
            xn += 1
    todo += [(4, g) for g in kv_dma('K', 0)] + [(8, g) for g in kv_dma('K', 1)] + [(12, g) for g in kv_dma('V', 0)]
    RATE = opts.get('rate', 4)

    def refill(ks):
        out = []
        while todo and len(out) < RATE and todo[0][0] <= ks:
            out.append(todo.pop(0)[1])
        return out

    gemm256(k, dict(w_reads=w_reads, ss_reads=ss_reads, xform=xform, refill=refill, chunk_barrier=chunk_barrier,
                    ACC=O, WF=WF, H=H, qx=opts.get('qx', '')))
    assert not todo

    cq = LOG2E / math.sqrt(128.0)
    e(f's_mov_b32 s3, {f32(cq)}')
    stamp(k, SI(3))
    k.wait(vm=[('K', 0)])
    e('s_barrier')

    def k_read(blk, ks):
        tile = blk // 2
        off = LDS_K + (tile % 4) * 16384 + (blk % 2) * 8192
        r = KF + 4 * ks
        return lambda: e(f'ds_read_b128 a[{r}:{r + 3}], v{KR + ks} offset:{off}', ('kf', ks))

    def v_read(blk, i):
        u, db, t = i // 8, (i // 2) % 4, i % 2
        tile = blk // 2
        off = (tile % 4) * 16384 + ((blk % 2) * 32 + 16 * u + 8 * t) * 256
        r = VF + (u * 4 + db) * 4 + 2 * t
        return lambda: e(f'ds_read_b64_tr_b16 a[{r}:{r + 1}], v{VR + db} offset:{off}', ('vf', i))

    for ks in range(8):
        k_read(0, ks)()
    for g in kv_dma('K', 2):
        for _, f in g: f()
    def conv(db):
        items = []
        for qb in range(2):
            acc = O + (db * 2 + qb) * 16
            t = 72 + ((db * 2 + qb) % 4) * 16
            items += [(1, lambda i=i, t=t, acc=acc: e(f'v_accvgpr_read_b32 v{t + i}, a{acc + i}')) for i in range(16)]
            items += [(1, lambda i=i, t=t: e(f'v_mul_f32 v{t + i}, s3, v{t + i}')) for i in range(16)]
            items += [(1, lambda i=i, t=t, qb=qb: e(f'v_cvt_pk_bf16_f32 v{Q + (qb * 8 + 2 * db + i // 4) * 4 + i % 4}, v{t + 2 * i}, v{t + 2 * i + 1}')) for i in range(8)]
        return items
    for _, f in conv(0): f()
    for g in kv_dma('V', 1):
        for _, f in g: f()
    NPF = 2 if opts.get('pf', 1) else 0
    RETILE = opts.get('retile', 1)
    sPF = 42
    if NPF:
        for i, (sp, nb) in enumerate(((48, 4096 * 1024), (50, 512 * 3584), (52, 512 * 3584), (54, 1792 * 1024))):
            srd(k, 80 + 4 * i, sp, sp + 1, nb)
        e(f's_lshl_b32 s{sPF}, s2, 12')
        e(f's_lshl_b32 s{sT0}, s{sW}, 10')
        e(f's_add_u32 s{sPF}, s{sPF}, s{sT0}')
        e(f'v_lshrrev_b32 v236, 2, v{VLANE}')
        e(f'v_lshlrev_b32 v236, 6, v236')
        e(f'buffer_load_dword v240, v236, s[92:95], s{sPF} offen', 'pf')

    def qk_mfmas(blk, czero=False, alt=False):
        out = []
        order = [(ks, qb) for qb in range(2) for ks in range(8)] if alt else [(ks, qb) for ks in range(8) for qb in range(2)]
        for ks, qb in order:
            if True:
                def m(ks=ks, qb=qb):
                    d = S[blk % 2] + 16 * qb
                    if ks == 0:
                        c = '0' if czero else vr(NEGM + 16 * qb, 16)
                    else:
                        c = vr(d, 16)
                    e(f'v_mfma_f32_32x32x16_bf16 {vr(d, 16)}, {ar(KF + 4 * ks, 4)}, {vr(Q + (qb * 8 + ks) * 4, 4)}, {c}')
                out.append(m)
        return out

    def pv_mfmas(blk, czero=False):
        out = []
        po = opts.get('pvo', 0)
        if po == 0:
            order = [(u, db, qb) for u in range(2) for db in range(4) for qb in range(2)]
        elif po == 1:
            order = [(u, db, qb) for u in range(2) for qb in range(2) for db in range(4)]
        else:
            order = [(u, db, qb) for db in range(4) for qb in range(2) for u in range(2)]
        for u, db, qb in order:
            if True:
                if True:
                    def m(u=u, db=db, qb=qb):
                        acc = O + (db * 2 + qb) * 16
                        c = '0' if (czero and u == 0) else ar(acc, 16)
                        e(f'v_mfma_f32_32x32x16_bf16 {ar(acc, 16)}, {ar(VF + (u * 4 + db) * 4, 4)}, {vr(P[blk % 2] + (qb * 2 + u) * 4, 4)}, {c}')
                    out.append(m)
        return out

    def softmax_stream(blk):
        sb = S[blk % 2]; pb = P[blk % 2]
        items = []
        pend = []
        n = 0
        for qb in range(2):
            for i in range(8):
                t = ET + (n % 4) * 2
                r = sb + qb * 16 + 2 * i
                a = [(COST['exp'], lambda t=t, r=r: e(f'v_exp_f32 v{t}, v{r}')),
                     (COST['exp'], lambda t=t, r=r: e(f'v_exp_f32 v{t + 1}, v{r + 1}'))]
                if 'E' in opts.get('x', ''):
                    a = [(COST['exp'], lambda t=t, r=r: e(f'v_mov_b32 v{t}, 0')), (COST['exp'], lambda t=t, r=r: e(f'v_mov_b32 v{t + 1}, 0'))]
                if i == 0:
                    c = [(1, lambda t=t, qb=qb: e(f'v_add_f32 v{LS[qb]}, v{t}, v{t + 1}')), None]
                else:
                    c = [(1, lambda t=t, qb=qb: e(f'v_add_f32 v{LS[qb]}, v{LS[qb]}, v{t}')),
                         (1, lambda t=t, qb=qb: e(f'v_add_f32 v{LS[qb]}, v{LS[qb]}, v{t + 1}'))]
                if 'A' in opts.get('x', '') and i > 0:
                    c = [None, None]
                pd = pb + (qb * 2 + i // 4) * 4 + i % 4
                c.append((1, lambda t=t, pd=pd: e(f'v_cvt_pk_bf16_f32 v{pd}, v{t}, v{t + 1}')))
                items.append(a[0])
                if pend and pend[0]: items.append(pend[0])
                items.append(a[1])
                for x in pend[1:]:
                    if x: items.append(x)
                pend = c
                n += 1
        for x in pend:
            if x: items.append(x)
        return items

    stubs = []

    def check_items(blk):
        lab = k.newlabel('slow'); ret = k.newlabel('ret')
        stubs.append((lab, ret, blk % 2))

        def br():
            e(f's_cbranch_vccnz {lab}')
            k.label(ret)
        return [(1, lambda: e(f'v_max_f32 v{TMP}, v{LS[0]}, v{LS[1]}')),
                (1, lambda: e(f'v_cmp_lt_f32 vcc, s{sThr}, v{TMP}')),
                (1, br),
                (1, lambda: e(f'v_add_f32 v{L[0]}, v{L[0]}, v{LS[0]}')),
                (1, lambda: e(f'v_add_f32 v{L[1]}, v{L[1]}, v{LS[1]}'))]

    KFALL = [('kf', i) for i in range(8)]
    VFALL = [('vf', i) for i in range(16)]
    mf = qk_mfmas(0, czero=True)
    k.wait(lg=KFALL)
    for db in range(4):
        fx = {}
        for ks in (2 * db - 1, 2 * db):
            if ks >= 0:
                fx.setdefault(0 if ks < 2 * db else 2, []).append((COST['ds'], k_read(1, ks), 'ds'))
        if db == 3:
            fx.setdefault(3, []).append((COST['ds'], k_read(1, 7), 'ds'))
        schedule(k, mf[4 * db:4 * db + 4], fx, conv(db + 1) if db < 3 else [])
    for qb in range(2):
        sb = S[0] + 16 * qb
        e(f'v_max3_f32 v{TMP}, v{sb}, v{sb + 1}, v{sb + 2}')
        for i in range(3, 15, 2):
            e(f'v_max3_f32 v{TMP}, v{TMP}, v{sb + i}, v{sb + i + 1}')
        e(f'v_max_f32 v{TMP}, v{TMP}, v{sb + 15}')
        e(f'v_mov_b32 v{TMP + 1}, v{TMP}')
        e(f'v_permlane32_swap_b32 v{TMP}, v{TMP + 1}')
        e(f'v_max_f32 v{TMP}, v{TMP}, v{TMP + 1}')
        e(f'v_add_f32 v{TMP}, {f32(BIAS)}, v{TMP}')
        e(f'v_sub_f32 v{NEGM + 16 * qb}, 0, v{TMP}')
        for i in range(1, 16):
            e(f'v_mov_b32 v{NEGM + 16 * qb + i}, v{NEGM + 16 * qb}')
        for i in range(16):
            e(f'v_sub_f32 v{sb + i}, v{sb + i}, v{TMP}')
        e(f'v_mov_b32 v{L[qb]}, 0')
    e(f's_mov_b32 s{sKoff}, {3 * 16384}')
    e(f's_mov_b32 s{sVoff}, {2 * 16384}')
    e(f's_mov_b32 s{sCnt}, 8')

    def step(b, do_qk=True, do_sm=True, do_pv=True, pv_zero=False, do_kread=True, do_dma=True):
        mf = []
        fx = {}
        nq = 0
        X = opts.get('x', '')
        if 'D' in X: do_dma = False
        if 'S' in X: do_sm = False
        if do_qk:
            mf += qk_mfmas(b + 1, alt=opts.get('qko', 0) and do_pv); nq = 16
        if do_pv:
            mf += pv_mfmas(b - 1, czero=pv_zero)
        n = len(mf)
        caps = {}
        full = do_qk and do_pv
        if do_pv and 'L' not in X:
            if do_qk:
                for i in range(16):
                    fx.setdefault(i // opts.get('vper', 2), []).append((COST['ds'], v_read(b - 1, i), 'ds'))
            else:
                for i in range(16):
                    v_read(b - 1, i)()
                k.wait(lg=VFALL)
        bar = b % 2 == 0 and do_kread and 'B' not in X
        gb = 15 if full else 0
        if bar:
            vmn = 8 + (NPF if b >= 2 else NPF // 2)

            def wt():
                t = k.wait_text(lg=VFALL) if full else None
                e(f's_waitcnt vmcnt({vmn})' + (t[9:] if t else ''))
            fx.setdefault(gb, []).append((0, wt, 'wait'))
            fx.setdefault(gb, []).append((6, lambda: e('s_barrier'), 'bar'))
            caps[gb + 1] = opts.get('cap_ab', 3)
            if RETILE and b == 14:
                def hook():
                    e(f's_cmp_le_u32 s{sCnt}, 4')
                    e('s_cbranch_scc1 attn_copy')
                    k.label('attn_copy_ret')
                fx.setdefault(gb + 1, []).append((2, hook, 'dma'))
        elif full:
            fx.setdefault(15, []).append((0, lambda: k.wait(lg=VFALL), 'wait'))
        if do_kread and 'L' not in X:
            for ks in range(8):
                g = (opts.get('kg0', 17) + ks // opts.get('kper', 2)) if full else min(2 * ks + 2, 15)
                fx.setdefault(g, []).append((COST['ds'], k_read(b + 2, ks), 'ds'))
            if full:
                fx.setdefault(n - 1, []).append((0, lambda: k.wait(lg=KFALL), 'wait'))
        if do_dma:
            isK = (b % 2 == 0)
            I = (b + 2) // 2 if isK else (b + 1) // 2
            if isK:
                slot = LDS_K + ((I + 2) % 4) * 16384; so = sKoff
            else:
                slot = LDS_V + ((I + 1) % 4) * 16384; so = sVoff
            gs = opts.get('dgs', [22, 24, 26, 28]) if full else [3, 5, 7, 9]
            fx.setdefault(gs[0] - 1, []).append((1, lambda: e(f's_add_u32 m0, s{sW4K}, {slot}'), 'end'))
            for p in range(4):
                va = DK + p if isK else DV
                sd = sK if isK else sV
                fx.setdefault(gs[p], []).append((COST['dma'], lambda p=p, va=va, sd=sd: e(
                    f'buffer_load_dwordx4 v{va}, s[{sd}:{sd + 3}], s{so} offen offset:{p * 1024} lds', 'kv'), 'dma'))
            fx.setdefault(gs[3] + 1, []).append((1, lambda: e(f's_add_u32 s{so}, s{so}, 16384'), 'end'))
            if NPF and not isK:
                sp = 80 + 4 * ((b // 2) % 4)
                fx.setdefault(30, []).append((COST['dma'], lambda: e(f'buffer_load_dword v240, v236, s[{sp}:{sp + 3}], s{sPF} offen', 'pf'), 'dma'))
                if b % 8 == 7:
                    fx.setdefault(30, []).append((1, lambda: e(f's_add_u32 s{sPF}, s{sPF}, 0x100000'), 'end'))
        st = []
        if do_sm:
            st = softmax_stream(b)
        ck = check_items(b) if do_sm else []
        if do_sm and opts.get('ck2', 1):
            st = st + ck[:2]; ck = ck[2:]
            caps[n - 2] = opts.get('cap_l', 5)
        schedule(k, mf, fx, st, last_gap=n - 2, caps=caps, cap=opts.get('gcap', GAPCAP))
        if do_kread and not full:
            k.wait(lg=KFALL)
        for _, f in ck: f()

    stamp(k, SI(4))
    k.wait(lg=KFALL)
    step(0, do_pv=False)
    step(1, pv_zero=True)
    e('s_branch attn_ent')
    e('.p2align 6')
    k.label('attn_loop')
    for pos in range(8):
        if pos == 2:
            k.label('attn_ent')
        step(8 + pos)
        if pos == 6:
            e(f's_sub_u32 s{sCnt}, s{sCnt}, 1')
            e(f's_cmp_eq_u32 s{sCnt}, 0')
            e('s_cbranch_scc1 attn_tail')
            if opts.get('refresh'):
                mask = sum(1 << c for c in opts['refresh'])
                e(f's_lshr_b32 s{sT0}, {mask}, s{sCnt}')
                e(f's_bitcmp1_b32 s{sT0}, 0')
                e(f's_cselect_b32 s{sThr}, {f32(-1.0)}, s{sThr}')
        if pos == 7 and opts.get('refresh'):
            e(f's_mov_b32 s{sThr}, {f32(THRESH)}')
    e('s_branch attn_loop')
    k.label('attn_tail')
    k.lgq = []
    if opts.get('t23', 0):
        e(f'v_lshrrev_b32 v238, 2, v{VLANE}')
        e('v_lshlrev_b32 v238, 10, v238')
        e(f'v_and_b32 v239, 3, v{VLANE}')
        e('v_lshl_add_u32 v238, v239, 7, v238')
        e(f's_lshr_b32 s{sT0}, s2, 3')
        e(f's_lshl_b32 s{sT0}, s{sT0}, 2')
        e(f's_add_u32 s{sT0}, s{sT0}, s{sW}')
        e(f's_lshl_b32 s{sT0}, s{sT0}, 15')
        e(f's_and_b32 s{sT1}, s2, 1')
        e(f's_lshl_b32 s{sT1}, s{sT1}, 9')
        e(f's_add_u32 s{sT0}, s{sT0}, s{sT1}')
        e(f'buffer_load_dword v237, v238, s[80:83], s{sT0} offen', 'pf')
        e(f's_add_u32 s{sT0}, s{sT0}, 16384')
        e(f'buffer_load_dword v239, v238, s[80:83], s{sT0} offen', 'pf')
    if MEGA:
        e(f's_mov_b32 s{sT0}, {WS_FC}')
        e(f'buffer_load_dwordx4 v[244:247], v{VL16}, s[{sWS}:{sWS + 3}], s{sT0} offen sc1', 'fc')
    step(63, do_qk=False, do_kread=False, do_dma=False)
    step(64, do_qk=False, do_sm=False, do_kread=False, do_dma=False)
    if MEGA:
        e('s_barrier')

    stamp(k, SI(5))
    for qb in range(2):
        e(f'v_mov_b32 v{TMP}, v{L[qb]}')
        e(f'v_permlane32_swap_b32 v{L[qb]}, v{TMP}')
        e(f'v_add_f32 v{L[qb]}, v{L[qb]}, v{TMP}')
        e(f'v_rcp_f32 v{L[qb]}, v{L[qb]}')
    n = 0
    for qb in range(2):
        e(f's_add_u32 s{sT0}, s{sOb}, {qb * 262144}')
        e(f's_add_u32 s{sT1}, s{sOb}, {qb * 262144 + 4096}')
        for db in range(4):
            for u in range(2):
                acc = O + (db * 2 + qb) * 16 + 8 * u
                t = 8 + (n % 4) * 16; n += 1
                for i in range(8):
                    e(f'v_accvgpr_read_b32 v{t + i}, a{acc + i}')
                for i in range(8):
                    e(f'v_mul_f32 v{t + i}, v{t + i}, v{L[qb]}')
                for i in range(4):
                    e(f'v_cvt_pk_bf16_f32 v{t + 8 + i}, v{t + 2 * i}, v{t + 2 * i + 1}')
                kk = 2 * db + u
                so = sT0 if kk < 4 else sT1
                e(f'buffer_store_dwordx4 v[{t + 8}:{t + 11}], v{VL16}, s[{sWS}:{sWS + 3}], s{so} offen offset:{(kk % 4) * 1024}{opts.get("ost", " sc1")}')
    if MEGA:
        srd(k, 12, 26, 27, WS_SIZE)
        e('s_lshl_b32 s46, s29, 2')
        e(f's_add_u32 s46, s46, s{sW}')
        e('s_lshl_b32 s46, s46, 7')
        e('s_lshl_b32 s3, s28, 2')
        e('s_add_u32 s46, s46, s3')
        e(f's_add_u32 s46, s46, {WS_FO}')
        e('s_waitcnt vmcnt(16)')
        e('s_mov_b32 s48, 0x40000')
        k.label('attn_fc')
        e('v_min_u32 v244, v244, v245')
        e('v_min3_u32 v244, v244, v246, v247')
        e('v_cmp_eq_u32 vcc, 0, v244')
        e('s_cbranch_vccz attn_fc_go')
        e('s_sleep 2')
        e(f's_mov_b32 s{sT0}, {WS_FC}')
        e(f'buffer_load_dwordx4 v[244:247], v{VL16}, s[{sWS}:{sWS + 3}], s{sT0} offen sc1', 'fc')
        k.vmq.pop()
        e('s_waitcnt vmcnt(0)')
        k.vmq = ['st'] * 16
        e('s_sub_u32 s48, s48, 1')
        e('s_cmp_lg_u32 s48, 0')
        e('s_cbranch_scc1 attn_fc')
        k.label('attn_fc_go')
        tail_cb(k)
    else:
        stamp(k, SI(6))
        stamp_flush(k, 7, sWS, 1)
    k.label('attn_end')
    e('s_endpgm')

    if RETILE:
        CP = 192
        k.label('attn_copy')
        e(f's_cmp_le_u32 s{sCnt}, 2')
        e('s_cbranch_scc1 attn_copy_flag' if MEGA else 's_cbranch_scc1 attn_copy_ret')
        e(f's_lshl_b32 s{sT0}, s2, 2')
        e(f's_add_u32 s{sT0}, s{sT0}, s{sW}')
        e(f's_cmp_eq_u32 s{sCnt}, 3')
        e('s_cbranch_scc1 attn_copy_st')
        e(f's_lshl_b32 s{sT1}, s{sT0}, 12')
        for i in range(4):
            e(f'buffer_load_dwordx4 a[{CP + 4 * i}:{CP + 4 * i + 3}], v{VL16}, s[80:83], s{sT1} offen offset:{i * 1024}')
        e(f's_lshl_b32 s{sT1}, s{sT0}, 11')
        for i in range(2):
            e(f'buffer_load_dwordx4 a[{CP + 16 + 4 * i}:{CP + 19 + 4 * i}], v{VL16}, s[92:95], s{sT1} offen offset:{i * 1024}')
        e('s_branch attn_copy_ret')
        k.label('attn_copy_st')
        e(f'v_lshrrev_b32 v238, 3, v{VLANE}')
        e(f'v_and_b32 v239, 7, v{VLANE}')
        e('v_lshlrev_b32 v239, 4, v239')
        SK = opts.get('sk', 0)
        if SK:
            e(f'v_lshrrev_b32 v237, 4, v{VLANE}')
            e('v_lshlrev_b32 v237, 20, v237')
            e(f'v_and_b32 v241, 15, v{VLANE}')
            e('v_lshl_add_u32 v237, v241, 4, v237')
        else:
            e('v_lshl_add_u32 v237, v238, 19, v239')
        e('v_lshl_add_u32 v238, v238, 18, v239')
        e(f's_lshl_b32 s{sT1}, s{sT0}, {10 if SK else 9}')
        e(f's_add_u32 s{sT1}, s{sT1}, {WS_WOT}')
        for i in range(4):
            e(f'buffer_store_dwordx4 a[{CP + 4 * i}:{CP + 4 * i + 3}], v237, s[{sWS}:{sWS + 3}], s{sT1} offen offset:{i * (256 if SK else 128)} sc1')
        e(f's_lshl_b32 s{sT1}, s{sT0}, 8')
        e(f's_add_u32 s{sT1}, s{sT1}, {WS_W2T}')
        for i in range(2):
            e(f'buffer_store_dwordx4 a[{CP + 16 + 4 * i}:{CP + 19 + 4 * i}], v238, s[{sWS}:{sWS + 3}], s{sT1} offen offset:{i * 128} sc1')
        e('s_branch attn_copy_ret')
        if MEGA:
            k.label('attn_copy_flag')
            e(f's_cmp_lg_u32 s{sCnt}, 2')
            e('s_cbranch_scc1 attn_copy_ret')
            e(f's_cmp_lg_u32 s{sW}, 0')
            e('s_cbranch_scc1 attn_copy_ret')
            e(f's_lshl_b32 s{sT1}, s2, 2')
            e(f's_add_u32 s{sT1}, s{sT1}, {WS_FC}')
            e('v_mov_b32 v238, 0')
            e('v_mov_b32 v239, 1')
            e('s_mov_b64 exec, 1')
            e(f'buffer_store_dword v239, v238, s[{sWS}:{sWS + 3}], s{sT1} offen sc1')
            e('s_mov_b64 exec, -1')
            e('s_branch attn_copy_ret')

    for lab, ret, par in stubs:
        k.label(lab)
        e(f's_call_b64 s[{sLink}:{sLink + 1}], attn_slow{par}')
        e(f's_branch {ret}')
    for par in range(2):
        k.label(f'attn_slow{par}')
        e('s_nop 15'); e('s_nop 15')
        D0 = [TMP + 2, TMP + 3]
        for qb in range(2):
            sb = S[par] + 16 * qb; sn = S[1 - par] + 16 * qb
            e(f'v_max3_f32 v{TMP}, v{sb}, v{sb + 1}, v{sb + 2}')
            for i in range(3, 15, 2):
                e(f'v_max3_f32 v{TMP}, v{TMP}, v{sb + i}, v{sb + i + 1}')
            e(f'v_max_f32 v{TMP}, v{TMP}, v{sb + 15}')
            e(f'v_mov_b32 v{TMP + 1}, v{TMP}')
            e(f'v_permlane32_swap_b32 v{TMP}, v{TMP + 1}')
            e(f'v_max_f32 v{TMP}, v{TMP}, v{TMP + 1}')
            if opts.get('refresh'):
                e(f'v_mov_b32 v{ET}, v{L[qb]}')
                e(f'v_mov_b32 v{ET + 1}, v{L[qb]}')
                e(f'v_permlane32_swap_b32 v{ET}, v{ET + 1}')
                e(f'v_add_f32 v{ET}, v{ET}, v{ET + 1}')
                e(f'v_log_f32 v{ET}, v{ET}')
                e(f'v_max_f32 v{TMP}, v{TMP}, v{ET}')
            e(f'v_add_f32 v{TMP}, {f32(BIAS)}, v{TMP}')
            e(f'v_max_f32 v{TMP}, 0, v{TMP}')
            e(f'v_ceil_f32 v{TMP}, v{TMP}')
            e(f'v_sub_f32 v{TMP + 1}, 0, v{TMP}')
            e(f'v_cvt_i32_f32 v{D0[qb]}, v{TMP + 1}')
            for i in range(16):
                e(f'v_sub_f32 v{NEGM + 16 * qb + i}, v{NEGM + 16 * qb + i}, v{TMP}')
                e(f'v_sub_f32 v{sb + i}, v{sb + i}, v{TMP}')
                e(f'v_sub_f32 v{sn + i}, v{sn + i}, v{TMP}')
            e(f'v_ldexp_f32 v{L[qb]}, v{L[qb]}, v{D0[qb]}')
            for db in range(4):
                acc = O + (db * 2 + qb) * 16
                for i in range(16):
                    t = ET + i % 8
                    e(f'v_accvgpr_read_b32 v{t}, a{acc + i}')
                    e(f'v_ldexp_f32 v{t}, v{t}, v{D0[qb]}')
                    e(f'v_accvgpr_write_b32 a{acc + i}, v{t}')
        for _, f in softmax_stream(par): f()
        e('s_nop 3')
        e(f's_setpc_b64 s[{sLink}:{sLink + 1}]')
    return k, 'grid=(256,1,1) block=(256,1,1) lds=135168'


sWS_T = 12
WGF = 1
sWV_T = 32
X1KEEP = 64


def lane_id(k, v):
    k.e(f'v_mbcnt_lo_u32_b32 v{v}, -1, 0')
    k.e(f'v_mbcnt_hi_u32_b32 v{v}, -1, v{v}')


def signal(k, vt, soff, nyounger, wg=False):
    e = k.e
    e(f's_waitcnt vmcnt({nyounger})')
    if wg:
        lab = k.newlabel('nosig')
        e('s_barrier')
        e(f's_cmp_lg_u32 s{sWV_T}, 0')
        e(f's_cbranch_scc1 {lab}')
    e(f'v_mov_b32 v{vt}, 0')
    e(f'v_mov_b32 v{vt + 1}, 1')
    e('s_mov_b64 exec, 1')
    e(f'buffer_store_dword v{vt + 1}, v{vt}, s[{sWS_T}:{sWS_T + 3}], s{soff} offen sc1', 'flag')
    e('s_mov_b64 exec, -1')
    if wg:
        k.vmq.pop()
        k.label(lab)


def poll(k, name, vt, vlane, soff, nflags, opts):
    e = k.e
    e(f's_cmp_lg_u32 s{sWV_T}, 0')
    e(f's_cbranch_scc1 {name}_go')
    e(f'v_min_u32 v{vt}, {nflags - 1}, v{vlane}')
    e(f'v_lshlrev_b32 v{vt}, 2, v{vt}')
    e('s_mov_b32 s48, 0x40000')
    k.label(f'{name}_poll')
    e(f'buffer_load_dword v{vt + 1}, v{vt}, s[{sWS_T}:{sWS_T + 3}], s{soff} offen sc1', 'poll')
    e('s_waitcnt vmcnt(0)')
    e(f'v_cmp_eq_u32 vcc, 0, v{vt + 1}')
    e(f's_cbranch_vccz {name}_go')
    e(f's_sleep {opts.get("sleep", 2)}')
    e('s_sub_u32 s48, s48, 1')
    e('s_cmp_lg_u32 s48, 0')
    e(f's_cbranch_scc1 {name}_poll')
    k.label(f'{name}_go')
    e('s_waitcnt vmcnt(0)')
    e('s_barrier')


BSLOT = [(0, 32768), (65536, 98304), (16384, 49152), (81920, 114688)]


def early_b(k):
    e = k.e
    items = []

    def setup():
        lane_id(k, 251)
        e('v_lshrrev_b32 v252, 4, v251')
        e('v_and_b32 v253, 15, v251')
        e('v_lshlrev_b32 v250, 2, v252')
        e('v_xor_b32 v250, v250, v253')
        e('v_lshlrev_b32 v250, 4, v250')
        e('v_mul_u32_u24 v252, 3584, v252')
        e('v_add_u32 v250, v250, v252')
        e(f's_and_b32 s54, s{sWV_T}, 1')
        e('s_cmp_eq_u32 s54, 0')
        e('s_cselect_b32 s24, s56, s58')
        e('s_cselect_b32 s25, s57, s59')
        e('s_and_b32 s25, s25, 0xffff')
        e(f's_mov_b32 s26, {512 * 3584}')
        e('s_mov_b32 s27, 0x00020000')
        e(f's_lshr_b32 s54, s{sWV_T}, 1')
        e(f's_mul_i32 s54, s54, {64 * 3584}')
        e('s_lshl_b32 s53, s51, 8')
        e('s_add_u32 s54, s54, s53')
        e(f's_lshl_b32 s53, s{sWV_T}, 15')
    items.append(setup)
    for p in range(16):
        def f(p=p):
            e(f's_add_u32 m0, s53, {p * 1024}')
            e(f's_add_u32 s52, s54, {p * 4 * 3584}')
            e('buffer_load_dwordx4 v250, s[24:27], s52 offen lds', ('wq', 0))
        items.append(f)
    return items


def early_c(k, n, which='w2', wa=''):
    e = k.e
    items = []

    def setup():
        lane_id(k, 252)
        e('v_lshrrev_b32 v253, 3, v252')
        e('v_lshlrev_b32 v251, 1, v253')
        e('v_and_b32 v251, 4, v251')
        e('v_and_b32 v252, 7, v252')
        e('v_xor_b32 v251, v251, v252')
        e('v_lshlrev_b32 v251, 4, v251')
        e('v_lshl_add_u32 v251, v253, 7, v251')
        e(f's_lshl_b32 s49, s{sWV_T}, 15')
        e('s_and_b32 s55, s2, 1')
        e('s_lshl_b32 s55, s55, 2')
        e('s_lshr_b32 s47, s2, 6')
        e('s_add_u32 s55, s55, s47')
        e(f's_lshl_b32 s55, s55, {18 if which == "w2" else 19}')
        e(f's_mul_i32 s47, s{sWV_T}, {(28 if which == "w2" else 64) * 2048}')
        e('s_add_u32 s55, s55, s47')
        e(f's_add_u32 s55, s55, {WS_W2T if which == "w2" else WS_WOT}')
    items.append(setup)
    for ks in range(n):
        def f(ks=ks):
            e(f's_add_u32 m0, s49, {ks * 2048}')
            e('s_nop 0')
            e(f'buffer_load_dwordx4 v251, s[{sWS_T}:{sWS_T + 3}], s55 offen{wa} lds', ('g', ks))
            e(f'buffer_load_dwordx4 v251, s[{sWS_T}:{sWS_T + 3}], s55 offen offset:1024{wa} lds', ('g', ks))
            e('s_add_u32 s55, s55, 2048')
        items.append(f)
    return items


def phase_gemm64(k, which, opts, dep, out_flag, keep_x1, sbase, early=None):
    e = k.e
    name = 'pa' if which == 'wo' else 'pc'
    NKS = 256 if which == 'wo' else 112
    KW = NKS // 4
    D = 16 if which == 'wo' else 14
    NIT = KW // D
    WS_XIN = WS_O if which == 'wo' else WS_HH
    sWS, sG = sWS_T, 16
    sWv, sXo, sWo, sT0, sLb, sCnt, sXo1 = sWV_T, 33, 34, 35, 37, 38, 39
    ACC = 8
    XF = 72
    WFr = 200
    VL16, VDW, VWR = 216, 217, 218
    EP = 220
    XA = ' sc1' if dep else ''
    SA = ' sc1' if out_flag else ''
    WA = ' sc1' if opts.get('mega') else ''
    POFF = 16384
    if dep:
        VDW, sWo, sLb = 251, 55, 49
    e('s_bfe_u32 s28, s2, 0x20001')
    e('s_lshl_b32 s28, s28, 3')
    e('s_bfe_u32 s30, s2, 0x30003')
    e('s_add_u32 s28, s28, s30')
    e('s_and_b32 s29, s2, 1')
    e('s_lshl_b32 s29, s29, 2')
    e('s_lshr_b32 s30, s2, 6')
    e('s_add_u32 s29, s29, s30')
    lane_id(k, 2)
    e(f'v_lshlrev_b32 v{VL16}, 4, v2')
    if not dep:
        e('v_lshrrev_b32 v3, 3, v2')
        e('v_and_b32 v4, 7, v2')
        e('v_lshlrev_b32 v5, 1, v3')
        e('v_and_b32 v5, 4, v5')
        e('v_xor_b32 v4, v4, v5')
        e('v_lshlrev_b32 v4, 4, v4')
        e(f'v_lshl_add_u32 v{VDW}, v3, 7, v4')
        e(f's_lshl_b32 s{sLb}, s{sWv}, 15')
    e(f's_mul_i32 s{sXo}, s28, {2 * NKS * 1024}')
    e(f's_mul_i32 s{sT0}, s{sWv}, {KW * 1024}')
    e(f's_add_u32 s{sXo}, s{sXo}, s{sT0}')
    e(f's_add_u32 s{sXo}, s{sXo}, {WS_XIN}')
    e(f's_add_u32 s{sXo1}, s{sXo}, {NKS * 1024}')
    if not dep:
        e(f's_mul_i32 s{sWo}, s{sWv}, {KW * 2048}')
        e(f's_lshl_b32 s{sT0}, s29, {19 if which == "wo" else 18}')
        e(f's_add_u32 s{sWo}, s{sWo}, s{sT0}')
        e(f's_add_u32 s{sWo}, s{sWo}, {WS_WOT if which == "wo" else WS_W2T}')
    e(f's_lshr_b32 s40, s{sWv}, 1')
    e(f's_and_b32 s47, s{sWv}, 1')
    e('s_lshl_b32 s41, s29, 6')
    e('s_lshl_b32 s42, s40, 5')
    e('s_add_u32 s41, s41, s42')
    e('s_lshl_b32 s42, s28, 6')
    e('s_lshl_b32 s43, s47, 5')
    e('s_add_u32 s42, s42, s43')
    e('v_lshrrev_b32 v4, 5, v2')
    e('v_and_b32 v5, 31, v2')
    e('v_add_u32 v6, s42, v5')
    e('v_lshlrev_b32 v6, 10, v6')
    e('v_lshl_add_u32 v6, v4, 4, v6')
    e('s_lshl_b32 s43, s41, 1')
    e('v_add_u32 v6, s43, v6')
    e('s_lshl_b32 s43, s42, 10')
    e('s_lshl_b32 s44, s41, 6')
    e('s_add_u32 s43, s43, s44')
    e(f's_add_u32 s43, s43, {WS_X1}')
    e('v_lshlrev_b32 v7, 5, v4')
    e('s_lshl_b32 s44, s41, 2')
    e(f's_add_u32 s44, s44, {WS_GA if which == "wo" else WS_GB}')
    yield 'setup'
    sp = 60 if which == 'wo' else 62
    srd(k, sG, sp, sp + 1, 2048 * 1024)

    def loads(ks):
        sl = ks % D
        r0 = XF + sl * 8
        return dict(
            m0=lambda: e(f's_add_u32 m0, s{sLb}, {sl * 2048}'),
            w0=lambda: e(f'buffer_load_dwordx4 v{VDW}, s[{sWS}:{sWS + 3}], s{sWo} offen{WA} lds', ('g', ks)),
            w1=lambda: e(f'buffer_load_dwordx4 v{VDW}, s[{sWS}:{sWS + 3}], s{sWo} offen offset:1024{WA} lds', ('g', ks)),
            x0=lambda: e(f'buffer_load_dwordx4 v[{r0}:{r0 + 3}], v{VL16}, s[{sWS}:{sWS + 3}], s{sXo} offen offset:{(ks % 2) * 1024}{XA}{opts.get("xa", "")}', ('g', ks)),
            x1=lambda: e(f'buffer_load_dwordx4 v[{r0 + 4}:{r0 + 7}], v{VL16}, s[{sWS}:{sWS + 3}], s{sXo1} offen offset:{(ks % 2) * 1024}{XA}{opts.get("xa", "")}', ('g', ks)),
            uw=lambda: e(f's_add_u32 s{sWo}, s{sWo}, 2048'),
            ux=lambda: (e(f's_add_u32 s{sXo}, s{sXo}, 2048'), e(f's_add_u32 s{sXo1}, s{sXo1}, 2048')) if ks % 2 == 1 else None)

    def misc_setup():
        e('v_bfe_u32 v3, v2, 2, 2')
        e('v_lshl_add_u32 v1, v4, 3, v3')
        e('v_lshlrev_b32 v1, 7, v1')
        e(f'v_bfe_u32 v{VWR}, v2, 4, 1')
        e(f'v_lshl_add_u32 v1, v{VWR}, 5, v1')
        e(f'v_and_b32 v{VWR}, 1, v2')
        e(f'v_lshl_add_u32 v1, v{VWR}, 4, v1')
        e(f'v_bfe_u32 v{VWR}, v2, 1, 1')
        e(f'v_lshl_add_u32 v1, v{VWR}, 3, v1')
        e(f'v_add_u32 v1, s{sLb}, v1')
        e('v_lshrrev_b32 v3, 1, v3')
        e(f'v_lshl_add_u32 v{VWR}, v3, 6, v1')
        e('v_xor_b32 v3, 1, v3')
        e(f'v_lshl_add_u32 v{VWR + 1}, v3, 6, v1')
        for i in range(64):
            e(f'v_mov_b32 v{ACC + i}, 0')
        e(f's_mov_b32 s{sCnt}, {NIT - 1}')

    for u in range(2):
        e(f'buffer_load_dwordx4 v[{EP + 8 * u}:{EP + 8 * u + 3}], v7, s[{sWS}:{sWS + 3}], s44 offen offset:{64 * u}', 'ep')
        e(f'buffer_load_dwordx4 v[{EP + 8 * u + 4}:{EP + 8 * u + 7}], v7, s[{sWS}:{sWS + 3}], s44 offen offset:{64 * u + 16}', 'ep')
        if which == 'wo':
            e(f'buffer_load_dwordx4 v[{EP + 16 + 4 * u}:{EP + 19 + 4 * u}], v6, s[{sG}:{sG + 3}], 0 offen offset:{32 * u}', 'ep')
        elif not keep_x1:
            e(f'buffer_load_dwordx4 v[{EP + 16 + 4 * u}:{EP + 19 + 4 * u}], v{VL16}, s[{sWS}:{sWS + 3}], s43 offen offset:{1024 * u}', 'ep')
    if dep:
        NWP = D - 1 if which == 'w2' else opts.get('nwa', 15)
        yield 'prefetched'
        misc_setup()
        if which == 'w2':
            e('s_lshr_b32 s45, s28, 1')
            e('s_lshl_b32 s45, s45, 8')
            e(f's_add_u32 s45, s45, {WS_FB}')
        else:
            e('s_lshl_b32 s45, s28, 7')
            e(f's_add_u32 s45, s45, {WS_FO}')
        stamp(k, sbase)
        poll(k, name, 246, 2, 45, (14 if WGF else 56) if which == 'w2' else 32, opts)
        sbase += 1
        stamp(k, sbase)
        for ks in range(D - 1):
            L = loads(ks)
            for nm in (('x0', 'x1', 'ux') if ks < NWP else ('m0', 'x0', 'w0', 'w1', 'x1', 'uw', 'ux')):
                L[nm]()
    else:
        for ks in range(D - 1):
            L = loads(ks)
            for nm in ('m0', 'x0', 'w0', 'w1', 'x1', 'uw', 'ux'):
                L[nm]()
            if ks == 1:
                misc_setup()
        yield 'prefetched'
        stamp(k, sbase)

    def wreads(ks):
        sl = ks % D
        for nb in range(2):
            for t in range(2):
                r = WFr + (ks % 2) * 8 + nb * 4 + t * 2
                e(f'ds_read_b64_tr_b16 v[{r}:{r + 1}], v{VWR + nb} offset:{sl * 2048 + t * 512}', ('wf', ks))

    def kstep(ks, refill, last=False, extra=()):
        sl = ks % D
        L = loads(ks + D - 1) if refill else None
        for i in range(4):
            nb, mb = i // 2, i % 2
            acc = ACC + (nb * 2 + mb) * 16
            if 'M' not in opts.get('z', ''):
                e(f'v_mfma_f32_32x32x16_bf16 {vr(acc, 16)}, {vr(WFr + (ks % 2) * 8 + nb * 4, 4)}, {vr(XF + (sl * 2 + mb) * 4, 4)}, {vr(acc, 16)}')
            if i == 0:
                if not last:
                    k.wait(vm=[('g', ks + 1)])
                    if 'R' not in opts.get('z', ''): wreads(ks + 1)
                if L: L['m0']()
            elif i == 1 and L:
                L['x0'](); L['w0']()
            elif i == 2 and L:
                L['w1'](); L['x1'](); L['uw'](); L['ux']()
            elif i == 3 and not last:
                k.wait(lg=[('wf', ks + 1)])
            if i in (1, 2) and len(extra) >= i:
                extra[i - 1]()

    k.wait(vm=[('g', 0)])
    wreads(0)
    k.wait(lg=[('wf', 0)])
    stamp(k, sbase + 1)
    B0 = 0
    if dep and NIT > 2:
        for ks in range(D):
            kstep(ks, True)
        e(f's_mov_b32 s{sCnt}, {NIT - 2}')
        B0 = D
    k.label(f'{name}_loop')
    for ks in range(B0, B0 + D):
        kstep(ks, True)
    if NIT > 2:
        e(f's_sub_u32 s{sCnt}, s{sCnt}, 1')
        e(f's_cmp_lg_u32 s{sCnt}, 0')
        e(f's_cbranch_scc1 {name}_loop')
    early = list(early or [])
    for ks in range(B0 + D, B0 + 2 * D):
        ex = []
        E0 = opts.get('e0', 1)
        if early and ks == B0 + D + E0:
            ex = [early.pop(0)]
        elif early and ks > B0 + D + E0:
            ex = early[:2]; early = early[2:]
        kstep(ks, ks == B0 + D, last=(ks == B0 + 2 * D - 1), extra=ex)
    assert not early
    stamp(k, sbase + 2)
    e(f'v_add_u32 v3, s{sLb}, v{VL16}')
    for qd in range(16):
        e(f'ds_write_b128 v3, v[{ACC + 4 * qd}:{ACC + 4 * qd + 3}] offset:{POFF + qd * 1024}')
    e('s_waitcnt lgkmcnt(0)')
    e('s_barrier')
    e(f's_lshl_b32 s{sT0}, s{sWv}, 12')
    e(f'v_add_u32 v3, s{sT0}, v{VL16}')
    e(f'v_add_u32 v1, 0x10000, v3')
    RD = 72
    for w in range(4):
        a = 3 if w < 2 else 1
        for h in range(4):
            r = RD + (w * 4 + h) * 4
            e(f'ds_read_b128 v[{r}:{r + 3}], v{a} offset:{POFF + (w % 2) * 32768 + h * 1024}', ('r', w))
    for w in range(1, 4):
        k.wait(lg=[('r', w), ('r', 0)])
        for i in range(16):
            e(f'v_add_f32 v{RD + i}, v{RD + i}, v{RD + w * 16 + i}')
    if out_flag:
        e('s_barrier')
    k.wait(vm=['ep'])
    if which == 'w2' and keep_x1:
        for i in range(8):
            e(f'v_accvgpr_read_b32 v{EP + 16 + i}, a{X1KEEP + i}')
    for i in range(16):
        rbf(k, RD + i, RD + i)
    for i in range(16):
        e(f'v_mul_f32 v{RD + i}, v{RD + i}, v{EP + i}')
    for i in range(16):
        rbf(k, RD + i, RD + i)
    for i in range(16):
        src = EP + 16 + i // 2
        if i % 2 == 0:
            e(f'v_lshlrev_b32 v{RD + 16 + i}, 16, v{src}')
        else:
            e(f'v_and_b32 v{RD + 16 + i}, 0xffff0000, v{src}')
    for i in range(16):
        e(f'v_add_f32 v{RD + i}, v{RD + i}, v{RD + 16 + i}')
    for i in range(8):
        e(f'v_cvt_pk_bf16_f32 v{RD + 32 + i}, v{RD + 2 * i}, v{RD + 2 * i + 1}')
    for u in range(2):
        if which == 'w2':
            e(f'buffer_store_dwordx4 v[{RD + 32 + 4 * u}:{RD + 35 + 4 * u}], v6, s[{sG}:{sG + 3}], 0 offen offset:{32 * u}')
        else:
            e(f'buffer_store_dwordx4 v[{RD + 32 + 4 * u}:{RD + 35 + 4 * u}], v{VL16}, s[{sWS}:{sWS + 3}], s43 offen offset:{1024 * u}{SA}')
    if which == 'wo':
        if keep_x1:
            for i in range(8):
                e(f'v_accvgpr_write_b32 a{X1KEEP + i}, v{RD + 32 + i}')
        for i in range(16):
            src = RD + 32 + i // 2
            if i % 2 == 0:
                e(f'v_lshlrev_b32 v{RD + i}, 16, v{src}')
            else:
                e(f'v_and_b32 v{RD + i}, 0xffff0000, v{src}')
        A, B = RD + 16, RD + 17
        e(f'v_add_f32 v{A}, v{RD}, v{RD + 1}')
        e(f'v_mul_f32 v{B}, v{RD}, v{RD}')
        e(f'v_fmac_f32 v{B}, v{RD + 1}, v{RD + 1}')
        for i in range(2, 16):
            e(f'v_add_f32 v{A}, v{A}, v{RD + i}')
            e(f'v_fmac_f32 v{B}, v{RD + i}, v{RD + i}')
        e(f'v_mov_b32 v{A + 2}, v{A}')
        e(f'v_mov_b32 v{A + 3}, v{B}')
        e(f'v_permlane32_swap_b32 v{A}, v{A + 2}')
        e(f'v_permlane32_swap_b32 v{B}, v{A + 3}')
        e(f'v_add_f32 v{A}, v{A}, v{A + 2}')
        e(f'v_add_f32 v{B}, v{B}, v{A + 3}')
        e('s_lshl_b32 s45, s42, 7')
        e('s_lshl_b32 s46, s41, 3')
        e('s_add_u32 s45, s45, s46')
        e(f's_add_u32 s45, s45, {WS_ST}')
        e('v_lshlrev_b32 v3, 3, v5')
        e('s_mov_b64 exec, 0xffffffff')
        e(f'buffer_store_dwordx2 v[{A}:{A + 1}], v3, s[{sWS}:{sWS + 3}], s45 offen{SA}')
        e('s_mov_b64 exec, -1')
        if out_flag:
            e('s_lshr_b32 s46, s28, 1')
            e('s_lshl_b32 s46, s46, 8')
            e('s_and_b32 s45, s28, 1')
            e(f's_lshl_b32 s45, s45, {5 if WGF else 7}')
            e('s_add_u32 s46, s46, s45')
            e(f's_lshl_b32 s45, s29, {2 if WGF else 4}')
            e('s_add_u32 s46, s46, s45')
            if not WGF:
                e(f's_lshl_b32 s45, s{sWv}, 2')
                e('s_add_u32 s46, s46, s45')
            e(f's_add_u32 s46, s46, {WS_FA}')
    stamp(k, sbase + 3)
    yield 'done'


def phase_ffn1(k, opts, dep, out_flag, sbase, early=None):
    e = k.e
    s1, s3_, sWS = 8, 20, sWS_T
    sW, sT0, sT1, sXb, sWo, sHb, sW4K = sWV_T, 33, 34, 35, 36, 37, 38
    ACC = 0
    XD = 12
    XR = 128
    H = 176
    SS = 184
    FT = 216
    WRA = 224
    VL16, VDW, VMD, VLANE, RS, NM = 232, 233, 234, 235, 236, 237
    T = 238
    WF = 0
    LDS_MOD = 131072
    XA = ' sc1' if dep else ''
    PURE = opts.get('sk', 0)
    if PURE:
        XD = 16; XR = 128
    e('s_and_b32 s50, s2, 1')
    e('s_lshl_b32 s50, s50, 3')
    e('s_bfe_u32 s3, s2, 0x30003')
    e('s_add_u32 s50, s50, s3')
    lane_id(k, VLANE)
    e(f'v_lshlrev_b32 v{VL16}, 4, v{VLANE}')
    e(f'v_lshrrev_b32 v{T + 1}, 4, v{VLANE}')
    e(f'v_and_b32 v{T + 2}, 15, v{VLANE}')
    e(f'v_lshlrev_b32 v{T + 3}, 2, v{T + 1}')
    e(f'v_xor_b32 v{T + 3}, v{T + 3}, v{T + 2}')
    e(f'v_lshlrev_b32 v{T + 3}, 4, v{T + 3}')
    e(f'v_mul_u32_u24 v{T + 4}, 3584, v{T + 1}')
    e(f'v_add_u32 v{VDW}, v{T + 4}, v{T + 3}')
    e(f's_lshl_b32 s{sW4K}, s{sW}, 12')
    e('s_lshl_b32 s3, s50, 2')
    e(f's_add_u32 s3, s3, s{sW}')
    e(f's_lshl_b32 s{sXb}, s3, 15')
    e(f's_add_u32 s{sXb}, s{sXb}, {WS_H2 if PURE else WS_X1}')
    e(f's_mul_i32 s{sHb}, s3, {112 * 1024}')
    e(f's_lshl_b32 s{sT0}, s51, 13')
    e(f's_add_u32 s{sHb}, s{sHb}, s{sT0}')
    e(f's_add_u32 s{sHb}, s{sHb}, {WS_HH}')
    e(f's_mul_i32 s{sWo}, s{sW}, {16 * 3584}')
    e(f's_lshl_b32 s{sT0}, s51, 8')
    e(f's_add_u32 s{sWo}, s{sWo}, s{sT0}')
    e(f'v_and_b32 v{T + 5}, 31, v{VLANE}')
    e(f'v_lshrrev_b32 v{T + 4}, 5, v{VLANE}')
    e(f'v_lshlrev_b32 v{T + 6}, 3, v{T + 5}')
    e(f'v_lshl_add_u32 v{T + 6}, v{T + 4}, 11, v{T + 6}')
    e(f's_lshl_b32 s39, s3, 12')
    e(f's_add_u32 s39, s39, {WS_ST}')
    yield 'setup'
    srd(k, s1, 56, 57, 512 * 3584)
    srd(k, s3_, 58, 59, 512 * 3584)

    def w_dma(c):
        out = []
        for mat, sd in enumerate((s1, s3_)):
            for p in range(4):
                g = []
                if p == 0:
                    g.append((1, lambda mat=mat: e(f's_add_u32 m0, s{sW4K}, {BSLOT[c % 4][mat]}')))
                g.append((1, lambda p=p: e(f's_add_u32 s{sT0}, s{sWo}, {c * 64 * 3584 + p * (4 * 3584 - 1024)}')))
                g.append((COST['dma'], lambda p=p, sd=sd: e(f'buffer_load_dwordx4 v{VDW}, s[{sd}:{sd + 3}], s{sT0} offen offset:{p * 1024} lds', ('wq', c))))
                out.append(g)
        return out

    def xreg(ks):
        return XR + (ks % XD) * 4

    def x_load(ks):
        r = xreg(ks)
        g = []
        if ks % 4 == 0:
            g.append((1, lambda: e(f's_add_u32 s{sT1}, s{sXb}, {(ks // 4) * 4096}')))
        g.append((COST['vload'], lambda: e(f'buffer_load_dwordx4 v[{r}:{r + 3}], v{VL16}, s[{sWS}:{sWS + 3}], s{sT1} offen offset:{(ks % 4) * 1024}{XA}', ('x', ks))))
        return g

    def addr_setup():
        e(f'v_lshrrev_b32 v{T + 7}, 2, v{T + 2}')
        e(f'v_and_b32 v{T + 8}, 1, v{T + 1}')
        e(f'v_lshlrev_b32 v{T + 8}, 5, v{T + 8}')
        e(f'v_and_b32 v{T + 9}, 1, v{VLANE}')
        e(f'v_lshl_add_u32 v{T + 8}, v{T + 9}, 4, v{T + 8}')
        e(f'v_bfe_u32 v{T + 9}, v{VLANE}, 1, 1')
        e(f'v_lshl_add_u32 v{T + 8}, v{T + 9}, 3, v{T + 8}')
        e(f'v_lshl_add_u32 v{T + 8}, v{T + 7}, 8, v{T + 8}')
        e(f'v_lshl_add_u32 v{T + 8}, v{T + 4}, 11, v{T + 8}')
        for db in range(4):
            e(f'v_xor_b32 v{T + 9}, {db}, v{T + 7}')
            e(f'v_lshl_add_u32 v{WRA + db}, v{T + 9}, 6, v{T + 8}')
            e(f'v_add_u32 v{WRA + 4 + db}, 0x10000, v{WRA + db}')
        e(f'v_lshlrev_b32 v{VMD}, 6, v{T + 4}')
        e(f'v_add_u32 v{VMD}, {LDS_MOD}, v{VMD}')

    ST = SS

    def st_loads():
        for j in range(8):
            e(f'buffer_load_dwordx2 v[{ST + 2 * j}:{ST + 1 + 2 * j}], v{T + 6}, s[{sWS}:{sWS + 3}], s39 offen offset:{256 * j}{XA}', 'st')

    def mod_dma():
        e(f's_lshl_b32 s{sT0}, s{sW}, 10')
        e(f's_add_u32 m0, s{sT0}, {LDS_MOD}')
        e(f's_add_u32 s{sT0}, s{sT0}, {WS_MOD2}')
        e(f'buffer_load_dwordx4 v{VL16}, s[{sWS}:{sWS + 3}], s{sT0} offen lds', ('wq', 0))

    if dep:
        NPRE = opts.get('npre4f', 4); NPX = 3
        WB = opts.get('wbefore', 4)
        mod_dma()
        for c in range(2, min(NPRE, WB)):
            for g in w_dma(c):
                for _, f in g: f()
        yield 'prefetched'
        addr_setup()
        e('s_lshl_b32 s45, s50, 8')
        e(f's_add_u32 s45, s45, {WS_FA}')
        stamp(k, sbase)
        poll(k, 'pb', T + 10, VLANE, 45, 16 if WGF else 64, opts)
        sbase += 1
        stamp(k, sbase)
        st_loads()
        for ks in range(4 * NPX):
            for _, f in x_load(ks): f()
        for c in range(max(2, WB), NPRE):
            for g in w_dma(c):
                for _, f in g: f()
    else:
        NPRE = opts.get('npre4', 1); NPX = NPRE
        if not PURE:
            st_loads()
            mod_dma()
        for _, f in x_load(0): f()
        for g in w_dma(0):
            for _, f in g: f()
        for ks in range(1, 4):
            for _, f in x_load(ks): f()
        for c in range(1, NPRE):
            for g in w_dma(c):
                for _, f in g: f()
            for ks in range(4 * c, 4 * c + 4):
                for _, f in x_load(ks): f()
        yield 'prefetched'
        addr_setup()
        stamp(k, sbase)
    if not PURE:
        k.wait(vm=['st'])
        e(f's_mov_b32 s3, {f32(1.0 / 512)}')
        r = ST
        for j in range(1, 8):
            e(f'v_add_f32 v{r}, v{r}, v{r + 2 * j}')
            e(f'v_add_f32 v{r + 1}, v{r + 1}, v{r + 2 * j + 1}')
        e(f'v_mov_b32 v{r + 2}, v{r}')
        e(f'v_mov_b32 v{r + 3}, v{r + 1}')
        e(f'v_permlane32_swap_b32 v{r}, v{r + 2}')
        e(f'v_permlane32_swap_b32 v{r + 1}, v{r + 3}')
        e(f'v_add_f32 v{r}, v{r}, v{r + 2}')
        e(f'v_add_f32 v{r + 1}, v{r + 1}, v{r + 3}')
        e(f'v_mul_f32 v{r}, s3, v{r}')
        e(f'v_mul_f32 v{r + 1}, s3, v{r + 1}')
        e(f'v_fma_f32 v{r + 1}, -v{r}, v{r}, v{r + 1}')
        e(f'v_max_f32 v{r + 1}, 0, v{r + 1}')
        rbf(k, r, r)
        rbf(k, r + 1, r + 1)
        e(f'v_add_f32 v{r + 1}, {f32(1e-5)}, v{r + 1}')
        rbf(k, r + 1, r + 1)
        e(f'v_sqrt_f32 v{r + 1}, v{r + 1}')
        rbf(k, r + 1, r + 1)
        e(f'v_rcp_f32 v{RS}, v{r + 1}')
        e(f'v_mul_f32 v{NM}, v{r}, v{RS}')
        e(f'v_sub_f32 v{NM}, 0, v{NM}')

    def w_reads(ks):
        out = []
        c = ks // 4
        for nb in range(8):
            mat, db = nb // 4, nb % 4
            off = BSLOT[c % 4][mat] + (ks % 4) * 4096
            base = WRA + (4 if off >= 65536 else 0) + db
            for t in range(2):
                r = WF + (ks % 2) * 32 + nb * 4 + t * 2
                out.append((COST['ds'], lambda r=r, base=base, t=t, off=off: e(f'ds_read_b64_tr_b16 a[{r}:{r + 1}], v{base} offset:{off % 65536 + t * 1024}', ('w', ks))))
        return out

    def ss_reads(ks):
        out = []
        for j in range(4):
            r = SS + (ks % 2) * 16 + 4 * j
            out.append((COST['ds'], lambda r=r, j=j: e(f'ds_read_b128 v[{r}:{r + 3}], v{VMD} offset:{ks * 128 + j * 16}', ('ss', ks))))
        return out

    def xform(ks):
        out = []
        sb = SS + (ks % 2) * 16
        x = xreg(ks)
        for p in range(4):
            t = FT + p * 2
            out.append((1, lambda p=p, t=t: e(f'v_lshlrev_b32 v{t}, 16, v{x + p}')))
            out.append((1, lambda p=p, t=t: e(f'v_and_b32 v{t + 1}, 0xffff0000, v{x + p}')))
            out.append((1, lambda t=t: e(f'v_fma_f32 v{t}, v{t}, v{RS}, v{NM}')))
            out.append((1, lambda t=t: e(f'v_fma_f32 v{t + 1}, v{t + 1}, v{RS}, v{NM}')))
            out.append((1, lambda p=p, t=t: e(f'v_fma_f32 v{t}, v{t}, v{sb + 2 * p}, v{sb + 8 + 2 * p}')))
            out.append((1, lambda p=p, t=t: e(f'v_fma_f32 v{t + 1}, v{t + 1}, v{sb + 2 * p + 1}, v{sb + 8 + 2 * p + 1}')))
            h = H + (ks % 2) * 4 + p
            out.append((1, lambda t=t, h=h: e(f'v_cvt_pk_bf16_f32 v{h}, v{t}, v{t + 1}')))
        return out

    todo = []
    wn = NPRE; xn = NPX
    while wn < 8 or xn < 8:
        if wn < 8 and wn <= xn:
            first = 0 if wn < 4 else 4 * (wn - 3)
            todo += [(first, g) for g in w_dma(wn)]; wn += 1
        else:
            for ks in range(4 * xn, 4 * xn + 4):
                todo.append((ks - XD + (1 if PURE else 0), x_load(ks)))
            xn += 1
    RATE = opts.get('rate4', 5)
    early = list(early or [])

    k.wait(vm=[('wq', 0)])
    e('s_barrier')
    stamp(k, sbase + 1)
    if PURE:
        for _, f in w_reads(0): f()
        k.wait(vm=[('x', 0)], lg=[('w', 0)])
    else:
        for _, f in ss_reads(0) + w_reads(0) + ss_reads(1): f()
        k.wait(vm=[('x', 0)], lg=[('ss', 0)])
        for _, f in xform(0): f()
        k.wait(lg=[('w', 0)])
    for ks in range(32):
        mf = []
        for nb in range(8):
            def m(nb=nb):
                acc = ACC + nb * 16
                c = '0' if ks == 0 else vr(acc, 16)
                b = xreg(ks) if PURE else H + (ks % 2) * 4
                e(f'v_mfma_f32_32x32x16_bf16 {vr(acc, 16)}, {ar(WF + (ks % 2) * 32 + nb * 4, 4)}, {vr(b, 4)}, {c}')
            mf.append(m)
        fx = {}; st = []; caps = {}
        if ks + 1 < 32:
            newc = (ks + 1) % 4 == 0
            vmw = ([] if PURE else [('x', ks + 1)]) + ([('wq', (ks + 1) // 4)] if newc else [])
            fx.setdefault(0, []).append((0, lambda: k.wait(vm=vmw, lg=[('ss', ks + 1)]), 'wait'))
            if newc:
                fx.setdefault(0, []).append((6, lambda: e('s_barrier'), 'bar'))
            g0 = 1 if newc else 0
            rd = (ss_reads(ks + 2) if ks + 2 < 32 and not PURE else []) + w_reads(ks + 1)
            for i, it in enumerate(rd):
                fx.setdefault(g0 + i // 4, []).append((it[0], it[1], 'ds'))
            st = [] if PURE else xform(ks + 1)
            fx.setdefault(7, []).append((0, lambda: k.wait(vm=[('x', ks + 1)] if PURE else [], lg=[('w', ks + 1)]), 'wait'))
        groups = []
        while todo and len(groups) < RATE and todo[0][0] <= ks:
            groups.append(todo.pop(0)[1])
        if early and ks == 22:
            groups.append([(8, early.pop(0))])
        elif early and ks >= 24 and len(early) > 5:
            groups.append([(6, early.pop(0))])
        gl = sorted([6, 7, 5, 4, 3, 2][:len(groups)])
        for g, grp in zip(gl, groups):
            for it in grp[:-1]:
                fx.setdefault(g - 1, []).append((it[0], it[1], 'end'))
            fx.setdefault(g, []).append((grp[-1][0], grp[-1][1], 'dma'))
        schedule(k, mf, fx, st, caps=caps, last_gap=6, cap=8)
    assert not todo
    if out_flag:
        e('s_barrier')
        for f in early: f()
    stamp(k, sbase + 2)
    e(f's_mov_b32 s3, {f32(-LOG2E)}')
    e(f's_add_u32 s{sT0}, s{sHb}, 4096')
    n = 0
    for j in range(4):
        for u in range(2):
            g = ACC + j * 16 + 8 * u
            up = ACC + (4 + j) * 16 + 8 * u
            t = XR + (n % 4) * 12; n += 1
            for i in range(8):
                e(f'v_mul_f32 v{t + i}, s3, v{g + i}')
            for i in range(8):
                e(f'v_exp_f32 v{t + i}, v{t + i}')
            for i in range(8):
                e(f'v_add_f32 v{t + i}, 1.0, v{t + i}')
            for i in range(8):
                e(f'v_rcp_f32 v{t + i}, v{t + i}')
            for i in range(8):
                e(f'v_mul_f32 v{g + i}, v{g + i}, v{t + i}')
            for i in range(8):
                e(f'v_mul_f32 v{g + i}, v{g + i}, v{up + i}')
            for i in range(4):
                e(f'v_cvt_pk_bf16_f32 v{t + 8 + i}, v{g + 2 * i}, v{g + 2 * i + 1}')
            kk = 2 * j + u
            so = sHb if kk < 4 else sT0
            e(f'buffer_store_dwordx4 v[{t + 8}:{t + 11}], v{VL16}, s[{sWS}:{sWS + 3}], s{so} offen offset:{(kk % 4) * 1024} sc1')
    if out_flag:
        e('s_lshl_b32 s46, s50, 8')
        e(f's_lshl_b32 s45, s51, {2 if WGF else 4}')
        e('s_add_u32 s46, s46, s45')
        if not WGF:
            e(f's_lshl_b32 s45, s{sW}, 2')
            e('s_add_u32 s46, s46, s45')
        e(f's_add_u32 s46, s46, {WS_FB}')
    stamp(k, sbase + 3)
    yield 'done'


def gen_oproj_sk(opts):
    k = Kern('oproj_kernel')
    e = k.e
    sWS = 12
    sW, sT0, sT1, sXb, sWo, sPb, sW4K = 32, 33, 34, 35, 36, 37, 38
    ACC = 0
    XD = 32
    XR = 64
    WRA = 192
    VL16, VDW, VLANE = 200, 201, 202
    T = 204
    WF = 0
    NSL = 8
    e('s_cmp_ge_u32 s2, 256')
    e('s_cbranch_scc1 oproj_end')
    stamp(k, 0)
    e(f's_load_dwordx2 s[6:7], s[0:1], {A_WS}')
    e(f'v_lshrrev_b32 v{T}, 6, v0')
    e(f'v_and_b32 v{VLANE}, 63, v0')
    e(f'v_readfirstlane_b32 s{sW}, v{T}')
    e(f'v_lshlrev_b32 v{VL16}, 4, v{VLANE}')
    e('s_bfe_u32 s28, s2, 0x20001')
    e('s_and_b32 s29, s2, 1')
    e('s_lshl_b32 s29, s29, 3')
    e('s_bfe_u32 s3, s2, 0x30003')
    e('s_add_u32 s29, s29, s3')
    e('s_lshr_b32 s30, s2, 6')
    e(f'v_lshrrev_b32 v{T + 1}, 4, v{VLANE}')
    e(f'v_and_b32 v{T + 2}, 15, v{VLANE}')
    e(f'v_lshlrev_b32 v{T + 3}, 2, v{T + 1}')
    e(f'v_xor_b32 v{T + 3}, v{T + 3}, v{T + 2}')
    e(f'v_lshlrev_b32 v{T + 3}, 4, v{T + 3}')
    e(f'v_lshl_add_u32 v{VDW}, v{T + 1}, 8, v{T + 3}')
    e(f's_lshl_b32 s{sW4K}, s{sW}, 12')
    e('s_lshl_b32 s3, s29, 2')
    e(f's_add_u32 s3, s3, s{sW}')
    e(f's_lshl_b32 s{sXb}, s3, 18')
    e(f's_lshl_b32 s{sT0}, s28, 16')
    e(f's_add_u32 s{sXb}, s{sXb}, s{sT0}')
    e(f's_add_u32 s{sXb}, s{sXb}, {WS_O}')
    e(f's_lshl_b32 s{sWo}, s30, 20')
    e(f's_lshl_b32 s{sT0}, s28, 18')
    e(f's_add_u32 s{sWo}, s{sWo}, s{sT0}')
    e(f's_add_u32 s{sWo}, s{sWo}, s{sW4K}')
    e(f's_add_u32 s{sWo}, s{sWo}, {WS_WOT}')
    e(f's_lshl_b32 s{sPb}, s28, 22')
    e(f's_lshl_b32 s{sT0}, s3, 16')
    e(f's_add_u32 s{sPb}, s{sPb}, s{sT0}')
    e(f's_lshl_b32 s{sT0}, s30, 14')
    e(f's_add_u32 s{sPb}, s{sPb}, s{sT0}')
    e(f's_add_u32 s{sPb}, s{sPb}, {WS_P}')
    e('s_waitcnt lgkmcnt(0)')
    srd(k, sWS, 6, 7, WS_SIZE)

    def w_dma(c):
        out = []
        for p in range(4):
            g = []
            if p == 0:
                g.append((1, lambda: e(f's_add_u32 m0, s{sW4K}, {(c % NSL) * 16384}')))
                g.append((1, lambda: e(f's_add_u32 s{sT0}, s{sWo}, {c * 16384}')))
            g.append((COST['dma'], lambda p=p: e(f'buffer_load_dwordx4 v{VDW}, s[{sWS}:{sWS + 3}], s{sT0} offen offset:{p * 1024} lds', ('wq', c))))
            out.append(g)
        return out

    def xreg(ks):
        return XR + (ks % XD) * 4

    def x_load(ks):
        r = xreg(ks)
        g = []
        if ks % 4 == 0:
            g.append((1, lambda: e(f's_add_u32 s{sT1}, s{sXb}, {(ks // 4) * 4096}')))
        g.append((COST['vload'], lambda: e(f'buffer_load_dwordx4 v[{r}:{r + 3}], v{VL16}, s[{sWS}:{sWS + 3}], s{sT1} offen offset:{(ks % 4) * 1024}', ('x', ks))))
        return g

    NPRE = opts.get('npre3', 4)
    for c in range(NPRE):
        for g in w_dma(c):
            for _, f in g: f()
        for ks in range(4 * c, 4 * c + 4):
            for _, f in x_load(ks): f()
        if c == 0:
            e(f'v_lshrrev_b32 v{T + 4}, 5, v{VLANE}')
            e(f'v_lshrrev_b32 v{T + 7}, 2, v{T + 2}')
            e(f'v_and_b32 v{T + 8}, 1, v{T + 1}')
            e(f'v_lshlrev_b32 v{T + 8}, 5, v{T + 8}')
            e(f'v_and_b32 v{T + 9}, 1, v{VLANE}')
            e(f'v_lshl_add_u32 v{T + 8}, v{T + 9}, 4, v{T + 8}')
            e(f'v_bfe_u32 v{T + 9}, v{VLANE}, 1, 1')
            e(f'v_lshl_add_u32 v{T + 8}, v{T + 9}, 3, v{T + 8}')
            e(f'v_lshl_add_u32 v{T + 8}, v{T + 7}, 8, v{T + 8}')
            e(f'v_lshl_add_u32 v{T + 8}, v{T + 4}, 11, v{T + 8}')
            for db in range(4):
                e(f'v_xor_b32 v{T + 9}, {db}, v{T + 7}')
                e(f'v_lshl_add_u32 v{WRA + db}, v{T + 9}, 6, v{T + 8}')
                e(f'v_add_u32 v{WRA + 4 + db}, 0x10000, v{WRA + db}')

    def w_reads(ks):
        out = []
        off = ((ks // 4) % NSL) * 16384 + (ks % 4) * 4096
        for db in range(4):
            base = WRA + (4 if off >= 65536 else 0) + db
            for t in range(2):
                r = WF + (ks % 2) * 16 + db * 4 + t * 2
                out.append(lambda r=r, base=base, t=t: e(f'ds_read_b64_tr_b16 a[{r}:{r + 1}], v{base} offset:{off % 65536 + t * 1024}', ('w', ks)))
        return out

    todo = []
    for c in range(NPRE, 16):
        first = 0 if c < NSL else 4 * (c - NSL + 1)
        todo += [(first, g) for g in w_dma(c)]
        for ks in range(4 * c, 4 * c + 4):
            todo.append((ks - XD + 1, x_load(ks)))
    RATE = opts.get('rate3', 3)
    stamp(k, 1)
    k.wait(vm=[('wq', 0)])
    e('s_barrier')
    for f in w_reads(0): f()
    k.wait(vm=[('x', 0)], lg=[('w', 0)])
    stamp(k, 2)
    for ks in range(64):
        mf = []
        for nb in range(4):
            def m(nb=nb):
                acc = ACC + nb * 16
                c = '0' if ks == 0 else vr(acc, 16)
                e(f'v_mfma_f32_32x32x16_bf16 {vr(acc, 16)}, {ar(WF + (ks % 2) * 16 + nb * 4, 4)}, {vr(xreg(ks), 4)}, {c}')
            mf.append(m)
        fx = {}
        if ks + 1 < 64:
            newc = (ks + 1) % 4 == 0
            if newc:
                fx.setdefault(0, []).append((0, lambda: k.wait(vm=[('wq', (ks + 1) // 4)]), 'wait'))
                fx.setdefault(0, []).append((1, lambda: e('s_barrier'), 'bar'))
            for i, f in enumerate(w_reads(ks + 1)):
                fx.setdefault(i // 4, []).append((1, f, 'ds'))
            fx.setdefault(3, []).append((0, lambda: k.wait(vm=[('x', ks + 1)], lg=[('w', ks + 1)]), 'wait'))
        groups = []
        while todo and len(groups) < RATE and todo[0][0] <= ks:
            groups.append(todo.pop(0)[1])
        for g, grp in zip([2, 3, 3][:len(groups)] if len(groups) < 3 else [1, 2, 3], groups):
            for it in grp[:-1]:
                fx.setdefault(g if g == 3 and len(groups) == 2 and False else g - 1, []).append((it[0], it[1], 'end'))
            fx.setdefault(g, []).append((grp[-1][0], grp[-1][1], 'dma'))
        schedule(k, mf, fx, [])
    assert not todo
    stamp(k, 3)
    for nb in range(4):
        e(f's_add_u32 s{sT0}, s{sPb}, {nb * 4096}')
        for q in range(4):
            e(f'buffer_store_dwordx4 v[{ACC + nb * 16 + 4 * q}:{ACC + nb * 16 + 4 * q + 3}], v{VL16}, s[{sWS}:{sWS + 3}], s{sT0} offen offset:{q * 1024}{opts.get("pst", " sc1")}')
    stamp(k, 4)
    if STAMP:
        e(f's_lshl_b32 s100, s{sW}, 6')
        e('v_mov_b32 v0, s100')
    stamp_flush(k, 5, sWS, 2)
    k.label('oproj_end')
    e('s_endpgm')
    return k, 'grid=(256,1,1) block=(256,1,1) lds=131072'


def gen_red(opts):
    k = Kern('red_kernel')
    e = k.e
    sWS, sX = 12, 16
    e('s_cmp_ge_u32 s2, 256')
    e('s_cbranch_scc1 red_end')
    stamp(k, 0)
    e(f's_load_dwordx2 s[6:7], s[0:1], {A_WS}')
    e(f's_load_dwordx2 s[4:5], s[0:1], {A_X}')
    e('v_and_b32 v1, 7, v0')
    e('v_lshrrev_b32 v2, 3, v0')
    e('v_lshlrev_b32 v3, 11, v2')
    e('v_lshl_add_u32 v3, v1, 4, v3')
    e('s_lshr_b32 s28, s2, 2')
    e('s_and_b32 s29, s2, 3')
    e('s_lshl_b32 s30, s28, 16')
    e('s_lshl_b32 s31, s29, 7')
    e('s_add_u32 s30, s30, s31')
    e(f's_add_u32 s30, s30, {WS_P}')
    e('s_lshl_b32 s33, s2, 13')
    e('v_lshlrev_b32 v4, 10, v1')
    e('v_lshl_add_u32 v4, v2, 5, v4')
    e('v_lshlrev_b32 v5, 6, v2')
    e('v_lshlrev_b32 v6, 7, v2')
    e('v_lshlrev_b32 v7, 10, v2')
    e('v_lshl_add_u32 v7, v1, 4, v7')
    e('s_lshl_b32 s34, s28, 15')
    e('s_add_u32 s34, s34, s31')
    e(f's_add_u32 s35, s34, {WS_H2}')
    e(f's_add_u32 s34, s34, {WS_X1}')
    e('s_waitcnt lgkmcnt(0)')
    srd(k, sWS, 6, 7, WS_SIZE)
    srd(k, sX, 4, 5, 2048 * 1024)
    PR = 16
    for sp in range(4):
        for hh in range(2):
            for q in range(2):
                r = PR + sp * 16 + hh * 8 + q * 4
                e(f'buffer_load_dwordx4 v[{r}:{r + 3}], v3, s[{sWS}:{sWS + 3}], s30 offen offset:{q * 1024 + hh * 512}', ('p', sp))
        if sp < 3:
            e('s_add_u32 s30, s30, 0x400000')
    GA = 80; XX = 96; MD = 104
    e(f's_mov_b32 s36, {WS_GA}')
    e(f's_mov_b32 s37, {WS_MOD2}')
    for j in range(4):
        e(f'buffer_load_dwordx4 v[{GA + 4 * j}:{GA + 4 * j + 3}], v5, s[{sWS}:{sWS + 3}], s36 offen offset:{16 * j}', 'g')
    for j in range(2):
        e(f'buffer_load_dwordx4 v[{XX + 4 * j}:{XX + 4 * j + 3}], v4, s[{sX}:{sX + 3}], s33 offen offset:{16 * j}', 'g')
    for j in range(8):
        e(f'buffer_load_dwordx4 v[{MD + 4 * j}:{MD + 4 * j + 3}], v6, s[{sWS}:{sWS + 3}], s37 offen offset:{16 * j}', 'md')
    stamp(k, 1)
    for sp in range(1, 4):
        k.wait(vm=[('p', sp), ('p', 0)])
        for i in range(16):
            e(f'v_add_f32 v{PR + i}, v{PR + i}, v{PR + sp * 16 + i}')
    k.wait(vm=['g'])
    U = 32
    for i in range(16):
        rbf(k, PR + i, PR + i)
    for i in range(16):
        e(f'v_mul_f32 v{PR + i}, v{PR + i}, v{GA + i}')
    for i in range(16):
        rbf(k, PR + i, PR + i)
    for i in range(16):
        if i % 2 == 0:
            e(f'v_lshlrev_b32 v{U + i}, 16, v{XX + i // 2}')
        else:
            e(f'v_and_b32 v{U + i}, 0xffff0000, v{XX + i // 2}')
    for i in range(16):
        e(f'v_add_f32 v{PR + i}, v{PR + i}, v{U + i}')
    for i in range(8):
        e(f'v_cvt_pk_bf16_f32 v{U + i}, v{PR + 2 * i}, v{PR + 2 * i + 1}')
    for hh in range(2):
        e(f'buffer_store_dwordx4 v[{U + 4 * hh}:{U + 4 * hh + 3}], v7, s[{sWS}:{sWS + 3}], s34 offen offset:{512 * hh}')
    for i in range(16):
        rbf(k, PR + i, PR + i)
    A, B, C2, D2 = 48, 49, 50, 51
    e(f'v_add_f32 v{A}, v{PR}, v{PR + 1}')
    e(f'v_mul_f32 v{B}, v{PR}, v{PR}')
    e(f'v_fmac_f32 v{B}, v{PR + 1}, v{PR + 1}')
    for i in range(2, 16):
        e(f'v_add_f32 v{A}, v{A}, v{PR + i}')
        e(f'v_fmac_f32 v{B}, v{PR + i}, v{PR + i}')
    e(f'v_add_f32_dpp v{C2}, v{A}, v{A} row_ror:8 row_mask:0xf bank_mask:0xf')
    e(f'v_add_f32_dpp v{D2}, v{B}, v{B} row_ror:8 row_mask:0xf bank_mask:0xf')
    for sw in ('v_permlane16_swap_b32', 'v_permlane32_swap_b32'):
        e(f'v_mov_b32 v{A}, v{C2}')
        e(f'v_mov_b32 v{B}, v{D2}')
        e(f'{sw} v{A}, v{C2}')
        e(f'{sw} v{B}, v{D2}')
        e(f'v_add_f32 v{C2}, v{A}, v{C2}')
        e(f'v_add_f32 v{D2}, v{B}, v{D2}')
    e('v_lshrrev_b32 v8, 6, v0')
    e('v_lshlrev_b32 v9, 5, v1')
    e('v_lshl_add_u32 v8, v8, 3, v9')
    e(f'ds_write_b64 v8, v[{C2}:{D2}]')
    e('s_waitcnt lgkmcnt(0)')
    e('s_barrier')
    e('ds_read_b128 v[52:55], v9')
    e('ds_read_b128 v[56:59], v9 offset:16')
    e('s_waitcnt lgkmcnt(0)')
    e('v_add_f32 v52, v52, v54')
    e('v_add_f32 v53, v53, v55')
    e('v_add_f32 v56, v56, v58')
    e('v_add_f32 v57, v57, v59')
    e('v_add_f32 v52, v52, v56')
    e('v_add_f32 v53, v53, v57')
    e(f's_mov_b32 s3, {f32(1.0 / 512)}')
    e('v_mul_f32 v52, s3, v52')
    e('v_mul_f32 v53, s3, v53')
    e('v_fma_f32 v53, -v52, v52, v53')
    e('v_max_f32 v53, 0, v53')
    rbf(k, 52, 52)
    rbf(k, 53, 53)
    e(f'v_add_f32 v53, {f32(1e-5)}, v53')
    rbf(k, 53, 53)
    e('v_sqrt_f32 v53, v53')
    rbf(k, 53, 53)
    e('v_rcp_f32 v53, v53')
    k.wait(vm=['md'])
    for i in range(16):
        e(f'v_sub_f32 v{PR + i}, v{PR + i}, v52')
    for i in range(16):
        rbf(k, PR + i, PR + i)
    for i in range(16):
        e(f'v_mul_f32 v{PR + i}, v{PR + i}, v53')
    for i in range(16):
        rbf(k, PR + i, PR + i)
    for i in range(16):
        e(f'v_mul_f32 v{PR + i}, v{PR + i}, v{MD + (i // 8) * 16 + i % 8}')
    for i in range(16):
        rbf(k, PR + i, PR + i)
    for i in range(16):
        e(f'v_add_f32 v{PR + i}, v{PR + i}, v{MD + (i // 8) * 16 + 8 + i % 8}')
    for i in range(8):
        e(f'v_cvt_pk_bf16_f32 v{60 + i}, v{PR + 2 * i}, v{PR + 2 * i + 1}')
    for hh in range(2):
        e(f'buffer_store_dwordx4 v[{60 + 4 * hh}:{63 + 4 * hh}], v7, s[{sWS}:{sWS + 3}], s35 offen offset:{512 * hh}')
    stamp(k, 2)
    stamp_flush(k, 3, sWS, 3)
    k.label('red_end')
    e('s_endpgm')
    return k, 'grid=(256,1,1) block=(256,1,1) lds=512'


def run_until(gen, tag):
    for t in gen:
        if t == tag:
            return
    raise RuntimeError('phase tag not reached: ' + tag)


def gen_tail(name, phases, opts, kidx, k=None):
    mega = k is not None
    wa = ' sc1' if mega else ''
    if not mega:
        k = Kern(name)
    e = k.e
    if not mega:
        e('s_cmp_ge_u32 s2, 256')
        e(f's_cbranch_scc1 {name}_end')
    if 'B' in phases:
        e('s_bfe_u32 s51, s2, 0x20001')
        e('s_lshr_b32 s3, s2, 6')
        e('s_lshl_b32 s3, s3, 2')
        e('s_add_u32 s51, s51, s3')
        if phases == 'B':
            e('s_cmp_ge_u32 s51, 14')
            e(f's_cbranch_scc1 {name}_end')
    if mega:
        signal(k, 244, 46, 0)
        stamp(k, 2)
        for f in early_c(k, opts.get('nwa', 15), 'wo', wa): f()
    else:
        stamp(k, 0)
        e(f's_load_dwordx2 s[6:7], s[0:1], {A_WS}')
        if 'A' in phases:
            e(f's_load_dwordx2 s[60:61], s[0:1], {A_X}')
        if 'B' in phases:
            e(f's_load_dwordx4 s[56:59], s[0:1], {A_W1}')
        if 'C' in phases:
            e(f's_load_dwordx2 s[62:63], s[0:1], {A_OUT}')
        e('v_lshrrev_b32 v1, 6, v0')
        e(f'v_readfirstlane_b32 s{sWV_T}, v1')
    keep = 'A' in phases and 'C' in phases
    first = not mega
    pending_flag = False
    sb = 3 if mega else 1
    for pi, ph in enumerate(phases):
        dep = pi > 0 or mega
        out_flag = pi + 1 < len(phases)
        if ph == 'B' and len(phases) > 1:
            if first:
                e('s_waitcnt lgkmcnt(0)')
                srd(k, sWS_T, 6, 7, WS_SIZE)
                first = False
            e('s_cmp_ge_u32 s51, 14')
            e(f's_cbranch_scc1 {name}_skipb')
        if ph == 'B':
            g = phase_ffn1(k, opts, dep, out_flag, sb, early_c(k, 13, 'w2', wa) if out_flag else None)
        else:
            g = phase_gemm64(k, 'wo' if ph == 'A' else 'w2', opts, dep, out_flag, keep, sb, early_b(k) if out_flag else None)
        run_until(g, 'setup')
        if first:
            e('s_waitcnt lgkmcnt(0)')
            srd(k, sWS_T, 6, 7, WS_SIZE)
            first = False
        if pending_flag:
            signal(k, 244 if ph == 'C' else 252, 46, 0, WGF)
        run_until(g, 'prefetched')
        run_until(g, 'done')
        pending_flag = out_flag
        if ph == 'B' and len(phases) > 1:
            if pi + 1 < len(phases):
                e(f's_branch {name}_joinb')
                k.label(f'{name}_skipb')
                if pi > 0:
                    signal(k, 252, 46, 0, WGF)
                for f in early_c(k, 13, 'w2', wa): f()
                e(f's_mov_b32 s46, {WS_FDUMMY}')
                k.label(f'{name}_joinb')
            else:
                e(f's_branch {name}_fin')
                k.label(f'{name}_skipb')
                if pi > 0:
                    signal(k, 252, 46, 0, WGF)
                k.label(f'{name}_fin')
        sb += 5 if dep else 4
    if STAMP:
        e(f's_lshl_b32 s100, s{sWV_T}, 6')
        e('v_mov_b32 v0, s100')
    stamp_flush(k, sb, sWS_T, kidx)
    if mega:
        return
    k.label(f'{name}_end')
    e('s_endpgm')
    return k, 'grid=(256,1,1) block=(256,1,1) lds=135168'


def build(opts=None):
    global STAMP, WGF
    opts = opts or {}
    WGF = opts.get('wgf', 1)
    STAMP = opts.get('stamp', False)
    for kk in COST:
        if 'c_' + kk in opts: COST[kk] = opts['c_' + kk]
    ks = [gen_prep(opts), gen_attn(opts, (lambda k: gen_tail('tail', opts['mega'], opts, 1, k)) if opts.get('mega') else None)]
    if opts.get('mega'):
        for i, ph in enumerate([p for p in opts.get('rest', '').split('|') if p]):
            ks.append(gen_tail('tail' + ph.lower() + '_kernel', ph, dict(opts, mega=None), 2 + i))
    elif opts.get('sk', 0):
        ks += [gen_oproj_sk(opts), gen_red(opts)]
        for i, ph in enumerate(opts.get('fuse', 'B|C').split('|')):
            ks.append(gen_tail('tail' + ph.lower() + '_kernel', ph, opts, 4 + i))
    else:
        for i, ph in enumerate(opts.get('fuse', 'A|B|C').split('|')):
            ks.append(gen_tail('tail' + ph.lower() + '_kernel', ph, opts, 2 + i))
    hdr = open('adaLN_cond__mha_block_cached__glu_gated_swiglu__prompt.s.ref').read().split('\n')
    out = []
    for l in hdr:
        if l.startswith('; Override') or l.startswith('; grid=') or '@launch' in l or not l.startswith(';'):
            if not l.startswith(';'):
                break
            continue
        out.append(l)
    out += """; Pipeline (generated by a python script; all matrix products use v_mfma_f32_32x32x16_bf16, f32 accumulation):
;   prep : mod = silu(c) @ w_mod, xhat = layernorm(x) (fp16, MFMA operand order)
;   attn : one (head, 256 query rows) per workgroup: Q projection, then flash attention on S^T = K Q^T with a running
;          reference maximum (updated to the true running maximum whenever a block sum exceeds a bound), O in operand order
;   taila: x1 = x + ga * (O @ wo), per-row partial sums      tailb: layernorm + modulation + gate/up + SwiGLU
;   tailc: out = x1 + gb * (hh @ w2)""".split('\n')
    for k, launch in ks:
        for _ in range(1 + opts.get('dup_' + k.name[:5], 0)):
            out.append(f'; @launch kernel={k.name} {launch}')
    out.append('.amdgcn_target "amdgcn-amd-amdhsa--gfx950"')
    out.append('.text')
    for k, _ in ks:
        n = k.fix_hazards(verbose=opts.get('verbose', False))
        print(f'{k.name}: {len(k.ins)} instr, {n} hazard nop states, regs {k.max_regs()}', file=sys.stderr)
        out.append(f'.globl {k.name}')
        out.append('.p2align 8')
        out.append(f'.type {k.name},@function')
        out.append(f'{k.name}:')
        out.append(k.text())
    out.append('code_end:')
    errs = 0
    errs += ks[0][0].verify_path({})
    errs += ks[0][0].verify_path({'prep_ln': 1})
    errs += ks[1][0].verify_path({'attn_tail': [False, False, False, True], 'attn_copy': [True, True, True, True], 'attn_copy_st': [False, True], 'attn_copy_ret': [False, False, True, True], 'attn_copy_flag': [False, False, True, True], 'attn_fc_go': 1, 'pa_loop': 1, 'pa_go': [False, True], 'pb_go': [False, True], 'pc_go': 1})
    for k, _ in ks[2:]:
        errs += k.verify_path({'pa_loop': 2, 'pb_go': [False, True], 'pc_go': [False, True]})
        errs += k.verify_path({'pa_loop': 2, 'pb_go': 1, 'pc_go': 1})
        errs += k.verify_path({'pa_loop': 2, 'pb_go': 1, 'pc_go': 1, k.name + '_skipb': 1})
    assert errs == 0 or 'qx' in opts or 'x' in opts, errs
    out.append('.section .rodata,"a"')
    for k, _ in ks:
        out.append('.p2align 6')
        out.append(descriptor(k, 264 if k.name.startswith('tail') else 0))
    return '\n'.join(out)


if __name__ == '__main__':
    dst = sys.argv[1] if len(sys.argv) > 1 else 'adaLN_cond__mha_block_cached__glu_gated_swiglu__prompt.s'
    opts = {}
    for a in sys.argv[2:]:
        kk, _, v = a.partition('=')
        opts[kk] = eval(v) if v else True
    open(dst, 'w').write(build(opts))
```

```python
import sys, struct, math
from asmlib import *

A_X, A_K, A_V, A_WQ, A_WO, A_BX, A_W1, A_W3, A_W2, A_C, A_WMOD, A_OUT, A_DBG, A_WS = [8 * i for i in range(14)]
WS_MOD1 = 0
WS_GA = 4096
WS_MOD2 = 8192
WS_GB = 8192 + 4096
WS_FA = 0x4000
WS_FB = 0x5000
WS_FO = 0x6000
WS_FC = 0x7000
WS_FDUMMY = 0x8000
WS_XHAT = 0x10000
WS_O = 0x400000
WS_X1 = 0x1400000
WS_ST = 0x1600000
WS_HH = 0x1800000
WS_WOT = 0x2000000
WS_W2T = 0x2400000
WS_H2 = 0x2600000
WS_P = 0x3000000
WS_SIZE = 0x4000000

LOG2E = 1.4426950408889634


def f32(x):
    return '0x%08x' % struct.unpack('<I', struct.pack('<f', x))[0]


def srd(k, d, lo, hi, nbytes):
    k.e(f's_mov_b32 s{d}, s{lo}')
    k.e(f's_and_b32 s{d + 1}, s{hi}, 0xffff')
    k.e(f's_mov_b32 s{d + 2}, {nbytes}')
    k.e(f's_mov_b32 s{d + 3}, 0x00020000')


WS_STAMP = 0x1F00000
STAMP = False


def stamp(k, idx):
    if not STAMP or idx > 15 or idx < 0:
        return
    k.e('s_waitcnt lgkmcnt(0)')
    k.e(f's_memtime s[{64 + 2 * idx}:{65 + 2 * idx}]')
    if idx == 0:
        k.e('s_memrealtime s[96:97]')
    k.e('s_waitcnt lgkmcnt(0)')


def stamp_flush(k, n, sws, kidx):
    if not STAMP:
        return
    e = k.e
    n = min(n, 15)
    e('s_waitcnt vmcnt(0) lgkmcnt(0)')
    stamp(k, n)
    e('s_memrealtime s[98:99]')
    e('s_waitcnt lgkmcnt(0)')
    lab = k.newlabel('nost')
    e('v_readfirstlane_b32 s100, v0')
    e('s_cmp_lg_u32 s100, 0')
    e(f's_cbranch_scc1 {lab}')
    e('s_lshl_b32 s100, s2, 7')
    e(f's_add_u32 s100, s100, {WS_STAMP + kidx * 65536}')
    e('v_mov_b32 v1, 0')
    for i in range(n + 1):
        e(f'v_mov_b32 v2, s{64 + 2 * i}')
        e(f'buffer_store_dword v2, v1, s[{sws}:{sws + 3}], s100 offen offset:{4 * i}')
    e('v_mov_b32 v2, s96')
    e(f'buffer_store_dword v2, v1, s[{sws}:{sws + 3}], s100 offen offset:120')
    e('v_mov_b32 v2, s98')
    e(f'buffer_store_dword v2, v1, s[{sws}:{sws + 3}], s100 offen offset:124')
    k.label(lab)


def code_touch(k, v, sp, sidx, vlane, start, end):
    e = k.e
    lab = k.newlabel('pc')
    e(f's_getpc_b64 s[{sp}:{sp + 1}]')
    k.label(lab)
    e(f's_add_u32 s{sp}, s{sp}, {start}-{lab}')
    e(f's_addc_u32 s{sp + 1}, s{sp + 1}, 0')
    e(f's_lshl_b32 s{sidx}, s{sidx}, 13')
    e(f'v_lshlrev_b32 v{v}, 7, v{vlane}')
    e(f'v_add_u32 v{v}, s{sidx}, v{v}')
    e(f'v_min_u32 v{v}, {end}-{start}-4, v{v}')
    e(f'v_mov_b32 v{v + 1}, s{sp + 1}')
    e(f'v_add_co_u32 v{v}, vcc, s{sp}, v{v}')
    e(f'v_addc_co_u32 v{v + 1}, vcc, 0, v{v + 1}, vcc')
    e(f'global_load_dword v{v + 2}, v[{v}:{v + 1}], off', 'code')


def rbf(k, d, s):
    k.e(f'v_cvt_pk_bf16_f32 v{d}, 0, v{s}')


def allreduce16(k, v, t):
    for mod in ('quad_perm:[1,0,3,2]', 'quad_perm:[2,3,0,1]', 'row_half_mirror', 'row_mirror'):
        k.e(f'v_add_f32_dpp v{t}, v{v}, v{v} {mod} row_mask:0xf bank_mask:0xf')
        v, t = t, v


def gen_prep(opts):
    k = Kern('prep_kernel')
    e = k.e
    NMOD, NLN = 96, 128
    e(f's_cmp_ge_u32 s2, {NMOD + NLN}')
    e('s_cbranch_scc1 prep_end')
    stamp(k, 0)
    e(f's_load_dwordx2 s[4:5], s[0:1], {A_WS}')
    e(f's_load_dwordx2 s[6:7], s[0:1], {A_X}')
    e(f's_load_dwordx4 s[20:23], s[0:1], {A_C}')
    e(f's_load_dwordx4 s[36:39], s[0:1], {A_K}')
    e(f's_load_dwordx2 s[40:41], s[0:1], {A_WQ}')

    def prefetch(ln=False, part=3):
        if opts.get('cpf', 1) and part & 1:
            lab = k.newlabel('nocpf')
            e('v_lshrrev_b32 v72, 6, v0')
            e('v_and_b32 v73, 63, v0')
            e('v_readfirstlane_b32 s42, v72')
            e('s_lshr_b32 s43, s2, 3')
            e('s_lshl_b32 s43, s43, 2')
            e('s_add_u32 s43, s43, s42')
            e('s_cmp_ge_u32 s43, (code_end-attn_kernel+8191)/8192')
            e(f's_cbranch_scc1 {lab}')
            code_touch(k, 74, 44, 43, 73, 'attn_kernel', 'code_end')
            k.vmq.pop()
            k.label(lab)
        if opts.get('pf1', 2) == 2:
            if ln and part & 2:
                e('v_lshrrev_b32 v72, 6, v0')
                e('v_and_b32 v73, 63, v0')
                e('v_readfirstlane_b32 s42, v72')
                e('v_lshrrev_b32 v77, 3, v73')
                e('v_and_b32 v78, 7, v73')
                e('v_lshlrev_b32 v77, 13, v77')
                e('v_lshl_add_u32 v77, v78, 7, v77')
                e(f's_sub_u32 s43, s2, {NMOD}')
                e('s_lshr_b32 s43, s43, 3')
                e('s_lshl_b32 s43, s43, 2')
                e('s_add_u32 s43, s43, s42')
                e('s_lshl_b32 s43, s43, 16')
                e('s_and_b32 s44, s2, 7')
                e('s_lshl_b32 s44, s44, 10')
                e('s_add_u32 s43, s43, s44')
                srd(k, 48, 40, 41, 512 * 8192)
                e('buffer_load_dword v78, v77, s[48:51], s43 offen', 'pf')
                if opts.get('pf64', 0):
                    e('buffer_load_dword v79, v77, s[48:51], s43 offen offset:64', 'pf')
            return
        if not opts.get('pf1', 2):
            return
        e('v_lshrrev_b32 v72, 6, v0')
        e('v_and_b32 v73, 63, v0')
        e('v_readfirstlane_b32 s42, v72')
        e('v_lshrrev_b32 v74, 4, v73')
        e('v_and_b32 v75, 15, v73')
        e('v_lshlrev_b32 v74, 13, v74')
        e('v_lshl_add_u32 v74, v75, 6, v74')
        e('v_lshlrev_b32 v73, 6, v73')
        e('s_lshr_b32 s43, s2, 3')
        e('s_lshl_b32 s43, s43, 2')
        e('s_add_u32 s43, s43, s42')
        e('s_and_b32 s44, s2, 7')
        srd(k, 48, 40, 41, 512 * 8192)
        e('s_lshl_b32 s45, s43, 15')
        e('s_lshl_b32 s46, s44, 10')
        e('s_add_u32 s45, s45, s46')
        e('buffer_load_dword v76, v74, s[48:51], s45 offen', 'pf')
        e(f's_add_u32 s45, s45, {112 * 32768}')
        e('buffer_load_dword v77, v74, s[48:51], s45 offen', 'pf')
        e('s_and_b32 s45, s43, 63')
        e('s_lshr_b32 s46, s45, 4')
        e('s_lshl_b32 s47, s44, 2')
        e('s_add_u32 s46, s46, s47')
        e('s_lshl_b32 s46, s46, 19')
        e('s_and_b32 s45, s45, 15')
        e('s_lshl_b32 s45, s45, 12')
        e('s_add_u32 s45, s45, s46')
        srd(k, 48, 36, 37, 32 * 524288)
        e('buffer_load_dword v78, v73, s[48:51], s45 offen', 'pf')
        srd(k, 48, 38, 39, 32 * 524288)
        e('buffer_load_dword v79, v73, s[48:51], s45 offen', 'pf')
    e(f's_cmp_ge_u32 s2, {NMOD}')
    e('s_cbranch_scc1 prep_ln')
    e('v_and_b32 v1, 3, v0')
    e('v_lshrrev_b32 v2, 2, v0')
    e('s_mov_b32 s3, 49152')
    e('v_mul_lo_u32 v3, v2, s3')
    e('v_lshl_add_u32 v3, v1, 4, v3')
    if opts.get('mrm', 1):
        e('s_and_b32 s34, s2, 0x70')
        e('s_and_b32 s3, s2, 7')
        e('s_lshl_b32 s3, s3, 1')
        e('s_add_u32 s34, s34, s3')
        e('s_bfe_u32 s3, s2, 0x10003')
        e('s_add_u32 s34, s34, s3')
    else:
        e('s_mov_b32 s34, s2')
    e('s_lshl_b32 s3, s34, 6')
    e('v_add_u32 v3, s3, v3')
    e('v_lshlrev_b32 v4, 4, v2')
    e('s_waitcnt lgkmcnt(0)')
    stamp(k, 1)
    srd(k, 8, 20, 21, 1024)
    srd(k, 12, 22, 23, 512 * 6144)
    srd(k, 16, 4, 5, WS_SIZE)
    e('buffer_load_dwordx4 v[8:11], v4, s[8:11], 0 offen', 'c')
    for i in range(8):
        e(f's_mov_b32 s{24 + i}, {i * 6144}')
        e(f'buffer_load_dwordx4 v[{16 + 4 * i}:{19 + 4 * i}], v3, s[12:15], s{24 + i} offen', ('w', i))
    prefetch()
    k.wait(vm=['c'])
    stamp(k, 2)
    e(f's_mov_b32 s3, {f32(-LOG2E)}')
    for i in range(8):
        src = 8 + i // 2
        if i % 2 == 0:
            e(f'v_lshlrev_b32 v{48 + i}, 16, v{src}')
        else:
            e(f'v_and_b32 v{48 + i}, 0xffff0000, v{src}')
    for i in range(8):
        e(f'v_mul_f32 v{56 + i}, s3, v{48 + i}')
    for i in range(8):
        e(f'v_exp_f32 v{56 + i}, v{56 + i}')
    for i in range(8):
        e(f'v_add_f32 v{56 + i}, 1.0, v{56 + i}')
    for i in range(8):
        e(f'v_rcp_f32 v{56 + i}, v{56 + i}')
    for i in range(8):
        e(f'v_mul_f32 v{48 + i}, v{48 + i}, v{56 + i}')
    for i in range(8):
        rbf(k, 48 + i, 48 + i)
    for i in range(8):
        k.wait(vm=[('w', i)])
        for p in range(4):
            w = 16 + 4 * i + p
            e(f'v_lshlrev_b32 v56, 16, v{w}')
            e(f'v_and_b32 v57, 0xffff0000, v{w}')
            if i == 0:
                e(f'v_mul_f32 v{64 + 2 * p}, v48, v56')
                e(f'v_mul_f32 v{65 + 2 * p}, v48, v57')
            else:
                e(f'v_fmac_f32 v{64 + 2 * p}, v{48 + i}, v56')
                e(f'v_fmac_f32 v{65 + 2 * p}, v{48 + i}, v57')
    stamp(k, 3)
    e('v_lshlrev_b32 v5, 5, v0')
    e('ds_write_b128 v5, v[64:67]')
    e('ds_write_b128 v5, v[68:71] offset:16')
    e('s_waitcnt lgkmcnt(0)')
    e('s_barrier')
    e('v_and_b32 v6, 31, v0')
    e('v_lshrrev_b32 v7, 5, v0')
    e('v_lshlrev_b32 v5, 10, v7')
    e('v_lshl_add_u32 v5, v6, 2, v5')
    for i in range(8):
        e(f'ds_read_b32 v{16 + i}, v5 offset:{i * 128}')
    e('s_waitcnt lgkmcnt(0)')
    for i in range(1, 8):
        e(f'v_add_f32 v16, v16, v{16 + i}')
    e('v_lshlrev_b32 v5, 2, v0')
    e('ds_write_b32 v5, v16 offset:8192')
    e('s_waitcnt lgkmcnt(0)')
    e('s_barrier')
    e('v_cmp_gt_u32 vcc, 32, v0')
    e('s_and_saveexec_b64 s[32:33], vcc')
    e('s_cbranch_execz prep_end')
    for i in range(8):
        e(f'ds_read_b32 v{16 + i}, v5 offset:{8192 + i * 128}')
    e('s_waitcnt lgkmcnt(0)')
    for i in range(1, 8):
        e(f'v_add_f32 v16, v16, v{16 + i}')
    rbf(k, 16, 16)
    e('v_add_f32 v17, 1.0, v16')
    rbf(k, 17, 17)
    e('s_lshr_b32 s24, s34, 4')
    e('s_and_b32 s25, s34, 15')
    e('s_lshl_b32 s25, s25, 5')
    e('v_add_u32 v6, s25, v0')
    e('s_cmp_ge_u32 s24, 3')
    e('s_cselect_b32 s26, 8192, 0')
    e('s_cselect_b32 s27, 3, 0')
    e('s_sub_u32 s24, s24, s27')
    e('v_lshrrev_b32 v7, 3, v6')
    e('v_lshlrev_b32 v7, 6, v7')
    e('v_and_b32 v8, 7, v6')
    e('v_lshl_add_u32 v7, v8, 2, v7')
    e('v_lshlrev_b32 v8, 2, v6')
    stamp_flush(k, 4, 16, 0)
    e('s_cmp_eq_u32 s24, 2')
    e('s_cbranch_scc1 prep_gate')
    e('s_cmp_eq_u32 s24, 1')
    e('s_cbranch_scc1 prep_scale')
    e('buffer_store_dword v16, v7, s[16:19], s26 offen offset:32')
    e('s_endpgm')
    k.label('prep_scale')
    e('buffer_store_dword v17, v7, s[16:19], s26 offen')
    e('s_endpgm')
    k.label('prep_gate')
    e('s_add_u32 s26, s26, 4096')
    e('buffer_store_dword v16, v8, s[16:19], s26 offen')
    e('s_endpgm')
    k.label('prep_ln')
    e(f's_sub_u32 s3, s2, {NMOD}')
    e('s_lshl_b32 s3, s3, 4')
    e('v_lshrrev_b32 v1, 4, v0')
    e('v_add_u32 v1, s3, v1')
    e('v_and_b32 v2, 15, v0')
    e('v_lshlrev_b32 v3, 10, v1')
    e('v_lshl_add_u32 v3, v2, 4, v3')
    e('s_waitcnt lgkmcnt(0)')
    stamp(k, 1)
    srd(k, 8, 6, 7, 2048 * 1024)
    srd(k, 16, 4, 5, WS_SIZE)
    for j in range(4):
        e(f'buffer_load_dwordx4 v[{8 + 4 * j}:{11 + 4 * j}], v3, s[8:11], 0 offen offset:{256 * j}', ('x', j))
    PFP = opts.get('pfp', 0)
    prefetch(True, 3 if PFP == 0 else 1)
    if len(opts.get('fuse', 'A|B|C').split('|')) < 3 or opts.get('mega'):
        e(f's_sub_u32 s43, s2, {NMOD}')
        e('s_cmp_ge_u32 s43, 16')
        e('s_cbranch_scc1 prep_nofl')
        e('s_lshl_b32 s43, s43, 10')
        e(f's_add_u32 s43, s43, {WS_FA}')
        e('v_lshlrev_b32 v72, 2, v0')
        e('v_mov_b32 v73, 0')
        e('buffer_store_dword v73, v72, s[16:19], s43 offen')
        k.vmq.pop()
        k.label('prep_nofl')
    e('v_lshrrev_b32 v4, 5, v1')
    e('v_lshlrev_b32 v4, 15, v4')
    e('v_lshrrev_b32 v5, 1, v2')
    e('v_lshl_add_u32 v4, v5, 10, v4')
    e('v_and_b32 v5, 1, v2')
    e('v_lshl_add_u32 v4, v5, 9, v4')
    e('v_and_b32 v5, 31, v1')
    e('v_lshl_add_u32 v4, v5, 4, v4')
    X = 32
    for j in range(4):
        k.wait(vm=[('x', j)])
        for p in range(4):
            e(f'v_lshlrev_b32 v{X + 8 * j + 2 * p}, 16, v{8 + 4 * j + p}')
            e(f'v_and_b32 v{X + 8 * j + 2 * p + 1}, 0xffff0000, v{8 + 4 * j + p}')
    stamp(k, 2)
    if PFP == 1:
        prefetch(True, 2)
    e(f'v_add_f32 v24, v{X}, v{X + 1}')
    e(f'v_add_f32 v25, v{X + 2}, v{X + 3}')
    for i in range(4, 32):
        e(f'v_add_f32 v{24 + i % 2}, v{24 + i % 2}, v{X + i}')
    e('v_add_f32 v24, v24, v25')
    allreduce16(k, 24, 25)
    e(f's_mov_b32 s3, {f32(1.0 / 512)}')
    e('v_mul_f32 v24, s3, v24')
    for i in range(32):
        e(f'v_sub_f32 v{64 + i % 4}, v{X + i}, v24')
        if i < 2:
            e(f'v_mul_f32 v{26 + i}, v{64 + i % 4}, v{64 + i % 4}')
        else:
            e(f'v_fmac_f32 v{26 + i % 2}, v{64 + i % 4}, v{64 + i % 4}')
    e('v_add_f32 v26, v26, v27')
    allreduce16(k, 26, 27)
    e('v_mul_f32 v26, s3, v26')
    rbf(k, 24, 24)
    rbf(k, 26, 26)
    e(f'v_add_f32 v26, {f32(1e-5)}, v26')
    rbf(k, 26, 26)
    e('v_sqrt_f32 v26, v26')
    rbf(k, 26, 26)
    e('v_rcp_f32 v26, v26')
    e(f's_mov_b32 s24, {WS_XHAT}')
    for j in range(4):
        for i in range(8):
            r = X + 8 * j + i
            e(f'v_sub_f32 v{r}, v{r}, v24')
        for i in range(8):
            r = X + 8 * j + i
            rbf(k, r, r)
        for i in range(8):
            r = X + 8 * j + i
            e(f'v_mul_f32 v{r}, v{r}, v26')
        for i in range(8):
            r = X + 8 * j + i
            rbf(k, r, r)
        for p in range(4):
            r = X + 8 * j + 2 * p
            e(f'v_cvt_pkrtz_f16_f32 v{8 + 4 * j + p}, v{r}, v{r + 1}')
        e(f'buffer_store_dwordx4 v[{8 + 4 * j}:{11 + 4 * j}], v4, s[16:19], s24 offen')
        if j < 3:
            e(f's_add_u32 s24, s24, 8192')
    if PFP == 2:
        prefetch(True, 2)
    stamp(k, 3)
    stamp_flush(k, 4, 16, 0)
    k.label('prep_end')
    e('s_endpgm')
    return k, f'grid=({NMOD + NLN},1,1) block=(256,1,1) lds=9216'


COST = {'exp': 2, 'valu': 1, 'ds': 1, 'dma': 2.5, 'salu': 1, 'vload': 2.5}
GAPCAP = 6
ORDER = {'wait': 0, 'bar': 1, 'dma': 2, 'ds': 3, 'end': 9}


def schedule(k, mfmas, fixed, stream, last_gap=None, cap=GAPCAP, caps=None):
    n = len(mfmas)
    if last_gap is None:
        last_gap = n - 1
    spare = []
    for g in range(n):
        c = sum(x[0] for x in fixed.get(g, []))
        cp = caps.get(g, cap) if caps else cap
        spare.append(max(cp - c, 0) if g <= last_gap else 0)
    tot_spare = sum(spare)
    tot = sum(x[0] for x in stream)
    si = 0
    done = 0.0
    cum = 0
    lastg = max([g for g in range(n) if spare[g] > 0] or [n - 1])
    for g in range(n):
        mfmas[g]()
        fx = sorted(fixed.get(g, []), key=lambda x: ORDER[x[2]])
        cum += spare[g]
        target = tot * cum / max(tot_spare, 1)
        mine = []
        while si < len(stream) and ((spare[g] > 0 and done + stream[si][0] * 0.5 <= target) or g >= lastg):
            mine.append(stream[si]); done += stream[si][0]; si += 1
        for x in fx:
            if x[2] != 'end': x[1]()
        for x in mine: x[1]()
        for x in fx:
            if x[2] == 'end': x[1]()
    assert si == len(stream)


def gemm256(k, P):
    e = k.e
    QX = P.get('qx', '')
    P['chunk_barrier'](0)
    for _, f in P['ss_reads'](0) + P['w_reads'](0) + P['ss_reads'](1): f()
    k.wait(vm=[('x', 0)], lg=[('ss', 0)])
    for _, f in P['xform'](0): f()
    k.wait(lg=[('w', 0)])
    for ks in range(32):
        mf = []
        for db in range(4):
            for qb in range(2):
                def m(db=db, qb=qb):
                    acc = P['ACC'] + (db * 2 + qb) * 16
                    wf = P['WF'] + (ks % 2) * 16 + db * 4
                    h = P['H'] + (ks % 2) * 8 + qb * 4
                    c = '0' if ks == 0 else ar(acc, 16)
                    e(f'v_mfma_f32_32x32x16_bf16 {ar(acc, 16)}, {ar(wf, 4)}, {vr(h, 4)}, {c}')
                mf.append(m)
        fx = {}
        st = []
        caps = {}
        if ks + 1 < 32:
            newc = (ks + 1) % 4 == 0
            if newc:
                fx.setdefault(0, []).append((0, lambda: k.wait(vm=[('wq', (ks + 1) // 4), ('x', ks + 1)], lg=[('ss', ks + 1)]), 'wait'))
                if 'B' not in QX: fx.setdefault(0, []).append((6, lambda: e('s_barrier'), 'bar'))
                caps[1] = 4
            else:
                fx.setdefault(0, []).append((0, lambda: k.wait(vm=[('x', ks + 1)], lg=[('ss', ks + 1)]), 'wait'))
            g0 = 1 if newc else 0
            rd = (P['ss_reads'](ks + 2) if ks + 2 < 32 and 'S' not in QX else []) + (P['w_reads'](ks + 1) if 'W' not in QX else [])
            for i, it in enumerate(rd):
                fx.setdefault(g0 + i // 3, []).append((it[0], it[1], 'ds'))
            st = P['xform'](ks + 1) if 'T' not in QX else []
            fx.setdefault(7, []).append((0, lambda: k.wait(lg=[('w', ks + 1)]), 'wait'))
        groups = P['refill'](ks)
        if 'V' in QX: groups = []
        gl = [5, 6, 4, 7, 3, 2][:len(groups)]
        gl.sort()
        for g, grp in zip(gl, groups):
            for it in grp[:-1]:
                fx.setdefault(g - 1, []).append((it[0], it[1], 'end'))
            fx.setdefault(g, []).append((grp[-1][0], grp[-1][1], 'dma'))
        schedule(k, mf, fx, st, caps=caps, last_gap=6, cap=7)


class G256:
    pass


BIAS = 100.0
THRESH = 2.0 ** 90


def gen_attn(opts, tail_cb=None):
    global BIAS
    MEGA = tail_cb is not None
    SI = (lambda i: {0: 0, 5: 1}.get(i, -1)) if MEGA else (lambda i: i)
    BIAS = opts.get('bias', BIAS)
    k = Kern('attn_kernel')
    e = k.e
    sK, sV, sWQ, sWS = 8, 12, 16, 20
    sW, sW4K, sKoff, sVoff, sCnt, sThr, sXb, sT0, sT1, sOb = 32, 33, 34, 35, 36, 37, 38, 39, 40, 41
    sLink = 44
    S = [8, 40]; NEGM = 72; P = [104, 120]; Q = 136; ET = 200
    LS = [208, 209]; L = [210, 211]; TMP = 212
    KR = 216; VR = 224; DK = 228; DV = 232; VL16 = 233; VMD = 234; VLANE = 235
    O = 0; KF = 128; VF = 160
    LDS_K, LDS_V, LDS_MOD = 0, 65536, 131072

    e('s_cmp_ge_u32 s2, 256')
    e('s_cbranch_scc1 attn_end')
    stamp(k, SI(0))
    e(f's_load_dwordx4 s[4:7], s[0:1], {A_K}')
    e(f's_load_dwordx2 s[24:25], s[0:1], {A_WQ}')
    e(f's_load_dwordx2 s[26:27], s[0:1], {A_WS}')
    e(f's_load_dwordx2 s[48:49], s[0:1], {A_WO}')
    e(f's_load_dwordx4 s[52:55], s[0:1], {A_W3}')
    e(f's_load_dwordx2 s[50:51], s[0:1], {A_W1}')
    if MEGA:
        e(f's_load_dwordx2 s[60:61], s[0:1], {A_X}')
        e(f's_load_dwordx4 s[56:59], s[0:1], {A_W1}')
        e(f's_load_dwordx2 s[62:63], s[0:1], {A_OUT}')
    e('s_and_b32 s28, s2, 7')
    e('s_lshl_b32 s28, s28, 2')
    e('s_lshr_b32 s29, s2, 3')
    e('s_and_b32 s30, s29, 3')
    e('s_add_u32 s28, s28, s30')
    e('s_lshr_b32 s29, s29, 2')
    e('v_lshrrev_b32 v1, 6, v0')
    e(f'v_and_b32 v{VLANE}, 63, v0')
    e(f'v_readfirstlane_b32 s{sW}, v1')
    e(f'v_lshlrev_b32 v{VL16}, 4, v{VLANE}')
    e(f's_lshl_b32 s{sW4K}, s{sW}, 12')
    e(f'v_lshrrev_b32 v2, 4, v{VLANE}')
    e(f'v_and_b32 v3, 15, v{VLANE}')
    e(f'v_lshrrev_b32 v4, 5, v{VLANE}')
    e(f'v_and_b32 v5, 31, v{VLANE}')
    e('v_lshlrev_b32 v6, 2, v2')
    e('v_xor_b32 v6, v6, v3')
    e('v_lshlrev_b32 v6, 4, v6')
    e(f'v_lshl_add_u32 v{DV}, v2, 8, v6')
    e(f'v_add_u32 v{DV}, s{sW4K}, v{DV}')
    e(f's_lshl_b32 s3, s{sW}, 17')
    e('v_lshl_add_u32 v7, v2, 13, v6')
    e('v_add_u32 v7, s3, v7')
    e('s_waitcnt lgkmcnt(0)')
    e('s_lshl_b32 s3, s28, 19')
    e('s_add_u32 s4, s4, s3'); e('s_addc_u32 s5, s5, 0')
    e('s_add_u32 s6, s6, s3'); e('s_addc_u32 s7, s7, 0')
    srd(k, sK, 4, 5, 524288)
    srd(k, sV, 6, 7, 524288)
    e('s_lshl_b32 s3, s28, 8')
    e('s_add_u32 s24, s24, s3'); e('s_addc_u32 s25, s25, 0')
    e(f's_mov_b32 s{sWQ}, s24'); e(f's_and_b32 s{sWQ + 1}, s25, 0xffff')
    e(f's_sub_u32 s{sWQ + 2}, {512 * 8192}, s3'); e(f's_mov_b32 s{sWQ + 3}, 0x00020000')
    srd(k, sWS, 26, 27, WS_SIZE)
    e('s_lshl_b32 s3, s29, 3')
    e(f's_lshl_b32 s{sT0}, s{sW}, 1')
    e(f's_add_u32 s3, s3, s{sT0}')
    e(f's_lshl_b32 s{sXb}, s3, 15')
    e(f's_add_u32 s{sXb}, s{sXb}, {WS_XHAT}')
    e(f's_lshl_b32 s{sOb}, s3, 18')
    e(f's_lshl_b32 s{sT0}, s28, 13')
    e(f's_add_u32 s{sOb}, s{sOb}, s{sT0}')
    e(f's_add_u32 s{sOb}, s{sOb}, {WS_O}')

    XR = 8; H = 136; SS = 152; FT = 184; WRA = 200; WF = 128
    chunk_slot = [LDS_K, LDS_K + 16384, LDS_V, LDS_K + 32768, LDS_K + 49152, LDS_V + 16384, LDS_V + 32768, LDS_V + 49152]

    def wq_dma(c):
        out = []
        for p in range(4):
            g = []
            if p == 0:
                g.append((1, lambda: e(f's_add_u32 m0, s{sW4K}, {chunk_slot[c]}')))
            g.append((1, lambda p=p: e(f's_mov_b32 s{sT0}, {c * 524288 + p * (32768 - 1024)}')))
            g.append((COST['dma'], lambda p=p: e(f'buffer_load_dwordx4 v7, s[{sWQ}:{sWQ + 3}], s{sT0} offen offset:{p * 1024} lds', ('wq', c))))
            out.append(g)
        return out

    def xreg(ks, qb):
        return XR + (((ks // 4) % 4) * 8 + (ks % 4) * 2 + qb) * 4

    def x_load(ks, qb):
        c = ks // 4
        out = []
        so = (sT1, 43)[qb]
        if ks % 4 == 0:
            out.append((1, lambda: e(f's_add_u32 s{so}, s{sXb}, {qb * 32768 + c * 4096}')))
        r = xreg(ks, qb)
        out.append((COST['vload'], lambda: e(f'buffer_load_dwordx4 v[{r}:{r + 3}], v{VL16}, s[{sWS}:{sWS + 3}], s{so} offen offset:{(ks % 4) * 1024}', ('x', ks))))
        return out

    e(f's_lshl_b32 s{sT0}, s{sW}, 10')
    e(f's_add_u32 m0, s{sT0}, {LDS_MOD}')
    e(f's_add_u32 s{sT0}, s{sT0}, {WS_MOD1}')
    e(f'buffer_load_dwordx4 v{VL16}, s[{sWS}:{sWS + 3}], s{sT0} offen lds', ('wq', 0))
    NPRE = opts.get('npre', 1)
    NPX = opts.get('npx', NPRE)
    for c in range(max(NPRE, NPX)):
        for g in (wq_dma(c) if c < NPRE else []):
            for _, f in g: f()
        for ks in (range(4 * c, 4 * c + 4) if c < NPX else []):
            for qb in range(2):
                for _, f in x_load(ks, qb): f()
    e('v_lshrrev_b32 v236, 2, v3')
    e(f'v_and_b32 v237, 3, v{VLANE}')
    e('v_and_b32 v238, 1, v2')
    e('v_lshlrev_b32 v238, 5, v238')
    e('v_and_b32 v239, 1, v237')
    e('v_lshl_add_u32 v238, v239, 4, v238')
    e('v_lshrrev_b32 v239, 1, v237')
    e('v_lshl_add_u32 v238, v239, 3, v238')
    e('v_lshl_add_u32 v238, v236, 8, v238')
    for db in range(4):
        e(f'v_xor_b32 v239, {db}, v236')
        e(f'v_lshl_add_u32 v239, v239, 6, v238')
        e(f'v_lshl_add_u32 v{WRA + db}, v4, 11, v239')
        e(f'v_add_u32 v{WRA + 4 + db}, {LDS_V}, v{WRA + db}')
        e(f'v_lshl_add_u32 v{VR + db}, v4, 10, v239')
        e(f'v_add_u32 v{VR + db}, {LDS_V}, v{VR + db}')
    for ks in range(8):
        e(f'v_add_u32 v239, {2 * ks}, v4')
        e('v_xor_b32 v239, v239, v3')
        e('v_lshlrev_b32 v239, 4, v239')
        e(f'v_lshl_add_u32 v{KR + ks}, v5, 8, v239')
    for p in range(4):
        e(f'v_add_u32 v239, {4 * p}, v2')
        e('v_xor_b32 v239, v239, v3')
        e('v_lshlrev_b32 v239, 4, v239')
        e('v_lshl_add_u32 v239, v2, 8, v239')
        e(f'v_add_u32 v{DK + p}, s{sW4K}, v239')
    e(f'v_lshlrev_b32 v{VMD}, 6, v4')
    e(f'v_add_u32 v{VMD}, {LDS_MOD}, v{VMD}')
    e(f's_mov_b32 s{sThr}, {f32(THRESH)}')

    def w_reads(ks):
        c = ks // 4
        slot = chunk_slot[c]
        base = WRA + 4 if slot >= LDS_V else WRA
        off0 = (slot % 65536) + (ks % 4) * 16 * 256
        out = []
        for db in range(4):
            for t in range(2):
                r = WF + (ks % 2) * 16 + db * 4 + t * 2
                out.append((COST['ds'], lambda r=r, db=db, t=t: e(f'ds_read_b64_tr_b16 a[{r}:{r + 1}], v{base + db} offset:{off0 + t * 1024}', ('w', ks))))
        return out

    def ss_reads(ks):
        out = []
        for j in range(4):
            r = SS + (ks % 2) * 16 + 4 * j
            out.append((COST['ds'], lambda r=r, j=j: e(f'ds_read_b128 v[{r}:{r + 3}], v{VMD} offset:{ks * 128 + j * 16}', ('ss', ks))))
        return out

    def xform(ks):
        out = []
        sb = SS + (ks % 2) * 16
        for qb in range(2):
            x = xreg(ks, qb)
            for p in range(4):
                t = FT + (qb * 4 + p) * 2
                out.append((1, lambda x=x, p=p, t=t: e(f'v_fma_mix_f32 v{t}, v{x + p}, v{sb + 2 * p}, v{sb + 8 + 2 * p} op_sel_hi:[1,0,0]')))
                out.append((1, lambda x=x, p=p, t=t: e(f'v_fma_mix_f32 v{t + 1}, v{x + p}, v{sb + 2 * p + 1}, v{sb + 8 + 2 * p + 1} op_sel:[1,0,0] op_sel_hi:[1,0,0]')))
                h = H + (ks % 2) * 8 + qb * 4 + p
                out.append((1, lambda t=t, h=h: e(f'v_cvt_pk_bf16_f32 v{h}, v{t}, v{t + 1}')))
        return out

    def chunk_barrier(c):
        stamp(k, SI(1))
        k.wait(vm=[('wq', c)])
        e('s_barrier')
        stamp(k, SI(2))

    def kv_dma(which, tile):
        out = []
        slot = tile % 4
        for p in range(4):
            g = []
            if p == 0:
                g.append((1, lambda: e(f's_add_u32 m0, s{sW4K}, {(LDS_K if which == "K" else LDS_V) + slot * 16384}')))
                g.append((1, lambda: e(f's_mov_b32 s{sT0}, {tile * 16384}')))
            if which == 'K':
                g.append((COST['dma'], lambda p=p: e(f'buffer_load_dwordx4 v{DK + p}, s[{sK}:{sK + 3}], s{sT0} offen offset:{p * 1024} lds', ('K', tile))))
            else:
                g.append((COST['dma'], lambda p=p: e(f'buffer_load_dwordx4 v{DV}, s[{sV}:{sV + 3}], s{sT0} offen offset:{p * 1024} lds', ('V', tile))))
            out.append(g)
        return out

    todo = []
    WL = opts.get('wlead', 0)
    seq = []
    for c in range(NPRE, 8 + WL):
        if c - WL < NPRE + 0 and c < 8 and False:
            pass
    wn = NPRE; xn = NPX
    while wn < 8 or xn < 8:
        if wn < 8 and wn <= xn + WL:
            todo += [(0, g) for g in wq_dma(wn)]; wn += 1
        else:
            for ks in range(4 * xn, 4 * xn + 4):
                todo += [(ks - 16, x_load(ks, 0)), (ks - 16, x_load(ks, 1))]
            xn += 1
    todo += [(4, g) for g in kv_dma('K', 0)] + [(8, g) for g in kv_dma('K', 1)] + [(12, g) for g in kv_dma('V', 0)]
    RATE = opts.get('rate', 4)

    def refill(ks):
        out = []
        while todo and len(out) < RATE and todo[0][0] <= ks:
            out.append(todo.pop(0)[1])
        return out

    gemm256(k, dict(w_reads=w_reads, ss_reads=ss_reads, xform=xform, refill=refill, chunk_barrier=chunk_barrier,
                    ACC=O, WF=WF, H=H, qx=opts.get('qx', '')))
    assert not todo

    cq = LOG2E / math.sqrt(128.0)
    e(f's_mov_b32 s3, {f32(cq)}')
    stamp(k, SI(3))
    k.wait(vm=[('K', 0)])
    e('s_barrier')

    def k_read(blk, ks):
        tile = blk // 2
        off = LDS_K + (tile % 4) * 16384 + (blk % 2) * 8192
        r = KF + 4 * ks
        return lambda: e(f'ds_read_b128 a[{r}:{r + 3}], v{KR + ks} offset:{off}', ('kf', ks))

    def v_read(blk, i):
        u, db, t = i // 8, (i // 2) % 4, i % 2
        tile = blk // 2
        off = (tile % 4) * 16384 + ((blk % 2) * 32 + 16 * u + 8 * t) * 256
        r = VF + (u * 4 + db) * 4 + 2 * t
        return lambda: e(f'ds_read_b64_tr_b16 a[{r}:{r + 1}], v{VR + db} offset:{off}', ('vf', i))

    for ks in range(8):
        k_read(0, ks)()
    for g in kv_dma('K', 2):
        for _, f in g: f()
    def conv(db):
        items = []
        for qb in range(2):
            acc = O + (db * 2 + qb) * 16
            t = 72 + ((db * 2 + qb) % 4) * 16
            items += [(1, lambda i=i, t=t, acc=acc: e(f'v_accvgpr_read_b32 v{t + i}, a{acc + i}')) for i in range(16)]
            items += [(1, lambda i=i, t=t: e(f'v_mul_f32 v{t + i}, s3, v{t + i}')) for i in range(16)]
            items += [(1, lambda i=i, t=t, qb=qb: e(f'v_cvt_pk_bf16_f32 v{Q + (qb * 8 + 2 * db + i // 4) * 4 + i % 4}, v{t + 2 * i}, v{t + 2 * i + 1}')) for i in range(8)]
        return items
    for _, f in conv(0): f()
    for g in kv_dma('V', 1):
        for _, f in g: f()
    NPF = 2 if opts.get('pf', 1) else 0
    RETILE = opts.get('retile', 1)
    sPF = 42
    if NPF:
        for i, (sp, nb) in enumerate(((48, 4096 * 1024), (50, 512 * 3584), (52, 512 * 3584), (54, 1792 * 1024))):
            srd(k, 80 + 4 * i, sp, sp + 1, nb)
        e(f's_lshl_b32 s{sPF}, s2, 12')
        e(f's_lshl_b32 s{sT0}, s{sW}, 10')
        e(f's_add_u32 s{sPF}, s{sPF}, s{sT0}')
        e(f'v_lshrrev_b32 v236, 2, v{VLANE}')
        e(f'v_lshlrev_b32 v236, 6, v236')
        e(f'buffer_load_dword v240, v236, s[92:95], s{sPF} offen', 'pf')

    def qk_mfmas(blk, czero=False, alt=False):
        out = []
        order = [(ks, qb) for qb in range(2) for ks in range(8)] if alt else [(ks, qb) for ks in range(8) for qb in range(2)]
        for ks, qb in order:
            if True:
                def m(ks=ks, qb=qb):
                    d = S[blk % 2] + 16 * qb
                    if ks == 0:
                        c = '0' if czero else vr(NEGM + 16 * qb, 16)
                    else:
                        c = vr(d, 16)
                    e(f'v_mfma_f32_32x32x16_bf16 {vr(d, 16)}, {ar(KF + 4 * ks, 4)}, {vr(Q + (qb * 8 + ks) * 4, 4)}, {c}')
                out.append(m)
        return out

    def pv_mfmas(blk, czero=False):
        out = []
        po = opts.get('pvo', 0)
        if po == 0:
            order = [(u, db, qb) for u in range(2) for db in range(4) for qb in range(2)]
        elif po == 1:
            order = [(u, db, qb) for u in range(2) for qb in range(2) for db in range(4)]
        else:
            order = [(u, db, qb) for db in range(4) for qb in range(2) for u in range(2)]
        for u, db, qb in order:
            if True:
                if True:
                    def m(u=u, db=db, qb=qb):
                        acc = O + (db * 2 + qb) * 16
                        c = '0' if (czero and u == 0) else ar(acc, 16)
                        e(f'v_mfma_f32_32x32x16_bf16 {ar(acc, 16)}, {ar(VF + (u * 4 + db) * 4, 4)}, {vr(P[blk % 2] + (qb * 2 + u) * 4, 4)}, {c}')
                    out.append(m)
        return out

    def softmax_stream(blk):
        sb = S[blk % 2]; pb = P[blk % 2]
        items = []
        pend = []
        n = 0
        for qb in range(2):
            for i in range(8):
                t = ET + (n % 4) * 2
                r = sb + qb * 16 + 2 * i
                a = [(COST['exp'], lambda t=t, r=r: e(f'v_exp_f32 v{t}, v{r}')),
                     (COST['exp'], lambda t=t, r=r: e(f'v_exp_f32 v{t + 1}, v{r + 1}'))]
                if 'E' in opts.get('x', ''):
                    a = [(COST['exp'], lambda t=t, r=r: e(f'v_mov_b32 v{t}, 0')), (COST['exp'], lambda t=t, r=r: e(f'v_mov_b32 v{t + 1}, 0'))]
                if i == 0:
                    c = [(1, lambda t=t, qb=qb: e(f'v_add_f32 v{LS[qb]}, v{t}, v{t + 1}')), None]
                else:
                    c = [(1, lambda t=t, qb=qb: e(f'v_add_f32 v{LS[qb]}, v{LS[qb]}, v{t}')),
                         (1, lambda t=t, qb=qb: e(f'v_add_f32 v{LS[qb]}, v{LS[qb]}, v{t + 1}'))]
                if 'A' in opts.get('x', '') and i > 0:
                    c = [None, None]
                pd = pb + (qb * 2 + i // 4) * 4 + i % 4
                c.append((1, lambda t=t, pd=pd: e(f'v_cvt_pk_bf16_f32 v{pd}, v{t}, v{t + 1}')))
                items.append(a[0])
                if pend and pend[0]: items.append(pend[0])
                items.append(a[1])
                for x in pend[1:]:
                    if x: items.append(x)
                pend = c
                n += 1
        for x in pend:
            if x: items.append(x)
        return items

    stubs = []

    def check_items(blk):
        lab = k.newlabel('slow'); ret = k.newlabel('ret')
        stubs.append((lab, ret, blk % 2))

        def br():
            e(f's_cbranch_vccnz {lab}')
            k.label(ret)
        return [(1, lambda: e(f'v_max_f32 v{TMP}, v{LS[0]}, v{LS[1]}')),
                (1, lambda: e(f'v_cmp_lt_f32 vcc, s{sThr}, v{TMP}')),
                (1, br),
                (1, lambda: e(f'v_add_f32 v{L[0]}, v{L[0]}, v{LS[0]}')),
                (1, lambda: e(f'v_add_f32 v{L[1]}, v{L[1]}, v{LS[1]}'))]

    KFALL = [('kf', i) for i in range(8)]
    VFALL = [('vf', i) for i in range(16)]
    mf = qk_mfmas(0, czero=True)
    k.wait(lg=KFALL)
    for db in range(4):
        fx = {}
        for ks in (2 * db - 1, 2 * db):
            if ks >= 0:
                fx.setdefault(0 if ks < 2 * db else 2, []).append((COST['ds'], k_read(1, ks), 'ds'))
        if db == 3:
            fx.setdefault(3, []).append((COST['ds'], k_read(1, 7), 'ds'))
        schedule(k, mf[4 * db:4 * db + 4], fx, conv(db + 1) if db < 3 else [])
    for qb in range(2):
        sb = S[0] + 16 * qb
        e(f'v_max3_f32 v{TMP}, v{sb}, v{sb + 1}, v{sb + 2}')
        for i in range(3, 15, 2):
            e(f'v_max3_f32 v{TMP}, v{TMP}, v{sb + i}, v{sb + i + 1}')
        e(f'v_max_f32 v{TMP}, v{TMP}, v{sb + 15}')
        e(f'v_mov_b32 v{TMP + 1}, v{TMP}')
        e(f'v_permlane32_swap_b32 v{TMP}, v{TMP + 1}')
        e(f'v_max_f32 v{TMP}, v{TMP}, v{TMP + 1}')
        e(f'v_add_f32 v{TMP}, {f32(BIAS)}, v{TMP}')
        e(f'v_sub_f32 v{NEGM + 16 * qb}, 0, v{TMP}')
        for i in range(1, 16):
            e(f'v_mov_b32 v{NEGM + 16 * qb + i}, v{NEGM + 16 * qb}')
        for i in range(16):
            e(f'v_sub_f32 v{sb + i}, v{sb + i}, v{TMP}')
        e(f'v_mov_b32 v{L[qb]}, 0')
    e(f's_mov_b32 s{sKoff}, {3 * 16384}')
    e(f's_mov_b32 s{sVoff}, {2 * 16384}')
    e(f's_mov_b32 s{sCnt}, 8')

    def step(b, do_qk=True, do_sm=True, do_pv=True, pv_zero=False, do_kread=True, do_dma=True):
        mf = []
        fx = {}
        nq = 0
        X = opts.get('x', '')
        if 'D' in X: do_dma = False
        if 'S' in X: do_sm = False
        if do_qk:
            mf += qk_mfmas(b + 1, alt=opts.get('qko', 0) and do_pv); nq = 16
        if do_pv:
            mf += pv_mfmas(b - 1, czero=pv_zero)
        n = len(mf)
        caps = {}
        full = do_qk and do_pv
        if do_pv and 'L' not in X:
            if do_qk:
                for i in range(16):
                    fx.setdefault(i // opts.get('vper', 2), []).append((COST['ds'], v_read(b - 1, i), 'ds'))
            else:
                for i in range(16):
                    v_read(b - 1, i)()
                k.wait(lg=VFALL)
        bar = b % 2 == 0 and do_kread and 'B' not in X
        gb = 15 if full else 0
        if bar:
            vmn = 8 + (NPF if b >= 2 else NPF // 2)

            def wt():
                t = k.wait_text(lg=VFALL) if full else None
                e(f's_waitcnt vmcnt({vmn})' + (t[9:] if t else ''))
            fx.setdefault(gb, []).append((0, wt, 'wait'))
            fx.setdefault(gb, []).append((6, lambda: e('s_barrier'), 'bar'))
            caps[gb + 1] = opts.get('cap_ab', 3)
            if RETILE and b == 14:
                def hook():
                    e(f's_cmp_le_u32 s{sCnt}, 4')
                    e('s_cbranch_scc1 attn_copy')
                    k.label('attn_copy_ret')
                fx.setdefault(gb + 1, []).append((2, hook, 'dma'))
        elif full:
            fx.setdefault(15, []).append((0, lambda: k.wait(lg=VFALL), 'wait'))
        if do_kread and 'L' not in X:
            for ks in range(8):
                g = (opts.get('kg0', 17) + ks // opts.get('kper', 2)) if full else min(2 * ks + 2, 15)
                fx.setdefault(g, []).append((COST['ds'], k_read(b + 2, ks), 'ds'))
            if full:
                fx.setdefault(n - 1, []).append((0, lambda: k.wait(lg=KFALL), 'wait'))
        if do_dma:
            isK = (b % 2 == 0)
            I = (b + 2) // 2 if isK else (b + 1) // 2
            if isK:
                slot = LDS_K + ((I + 2) % 4) * 16384; so = sKoff
            else:
                slot = LDS_V + ((I + 1) % 4) * 16384; so = sVoff
            gs = opts.get('dgs', [22, 24, 26, 28]) if full else [3, 5, 7, 9]
            fx.setdefault(gs[0] - 1, []).append((1, lambda: e(f's_add_u32 m0, s{sW4K}, {slot}'), 'end'))
            for p in range(4):
                va = DK + p if isK else DV
                sd = sK if isK else sV
                fx.setdefault(gs[p], []).append((COST['dma'], lambda p=p, va=va, sd=sd: e(
                    f'buffer_load_dwordx4 v{va}, s[{sd}:{sd + 3}], s{so} offen offset:{p * 1024} lds', 'kv'), 'dma'))
            fx.setdefault(gs[3] + 1, []).append((1, lambda: e(f's_add_u32 s{so}, s{so}, 16384'), 'end'))
            if NPF and not isK:
                sp = 80 + 4 * ((b // 2) % 4)
                fx.setdefault(30, []).append((COST['dma'], lambda: e(f'buffer_load_dword v240, v236, s[{sp}:{sp + 3}], s{sPF} offen', 'pf'), 'dma'))
                if b % 8 == 7:
                    fx.setdefault(30, []).append((1, lambda: e(f's_add_u32 s{sPF}, s{sPF}, 0x100000'), 'end'))
        st = []
        if do_sm:
            st = softmax_stream(b)
        ck = check_items(b) if do_sm else []
        if do_sm and opts.get('ck2', 1):
            st = st + ck[:2]; ck = ck[2:]
            caps[n - 2] = opts.get('cap_l', 5)
        schedule(k, mf, fx, st, last_gap=n - 2, caps=caps, cap=opts.get('gcap', GAPCAP))
        if do_kread and not full:
            k.wait(lg=KFALL)
        for _, f in ck: f()

    stamp(k, SI(4))
    k.wait(lg=KFALL)
    step(0, do_pv=False)
    step(1, pv_zero=True)
    e('s_branch attn_ent')
    e('.p2align 6')
    k.label('attn_loop')
    for pos in range(8):
        if pos == 2:
            k.label('attn_ent')
        step(8 + pos)
        if pos == 6:
            e(f's_sub_u32 s{sCnt}, s{sCnt}, 1')
            e(f's_cmp_eq_u32 s{sCnt}, 0')
            e('s_cbranch_scc1 attn_tail')
            if opts.get('refresh'):
                mask = sum(1 << c for c in opts['refresh'])
                e(f's_lshr_b32 s{sT0}, {mask}, s{sCnt}')
                e(f's_bitcmp1_b32 s{sT0}, 0')
                e(f's_cselect_b32 s{sThr}, {f32(-1.0)}, s{sThr}')
        if pos == 7 and opts.get('refresh'):
            e(f's_mov_b32 s{sThr}, {f32(THRESH)}')
    e('s_branch attn_loop')
    k.label('attn_tail')
    k.lgq = []
    if opts.get('t23', 0):
        e(f'v_lshrrev_b32 v238, 2, v{VLANE}')
        e('v_lshlrev_b32 v238, 10, v238')
        e(f'v_and_b32 v239, 3, v{VLANE}')
        e('v_lshl_add_u32 v238, v239, 7, v238')
        e(f's_lshr_b32 s{sT0}, s2, 3')
        e(f's_lshl_b32 s{sT0}, s{sT0}, 2')
        e(f's_add_u32 s{sT0}, s{sT0}, s{sW}')
        e(f's_lshl_b32 s{sT0}, s{sT0}, 15')
        e(f's_and_b32 s{sT1}, s2, 1')
        e(f's_lshl_b32 s{sT1}, s{sT1}, 9')
        e(f's_add_u32 s{sT0}, s{sT0}, s{sT1}')
        e(f'buffer_load_dword v237, v238, s[80:83], s{sT0} offen', 'pf')
        e(f's_add_u32 s{sT0}, s{sT0}, 16384')
        e(f'buffer_load_dword v239, v238, s[80:83], s{sT0} offen', 'pf')
    if MEGA:
        e(f's_mov_b32 s{sT0}, {WS_FC}')
        e(f'buffer_load_dwordx4 v[244:247], v{VL16}, s[{sWS}:{sWS + 3}], s{sT0} offen sc1', 'fc')
    step(63, do_qk=False, do_kread=False, do_dma=False)
    step(64, do_qk=False, do_sm=False, do_kread=False, do_dma=False)
    if MEGA:
        e('s_barrier')

    stamp(k, SI(5))
    for qb in range(2):
        e(f'v_mov_b32 v{TMP}, v{L[qb]}')
        e(f'v_permlane32_swap_b32 v{L[qb]}, v{TMP}')
        e(f'v_add_f32 v{L[qb]}, v{L[qb]}, v{TMP}')
        e(f'v_rcp_f32 v{L[qb]}, v{L[qb]}')
    n = 0
    for qb in range(2):
        e(f's_add_u32 s{sT0}, s{sOb}, {qb * 262144}')
        e(f's_add_u32 s{sT1}, s{sOb}, {qb * 262144 + 4096}')
        for db in range(4):
            for u in range(2):
                acc = O + (db * 2 + qb) * 16 + 8 * u
                t = 8 + (n % 4) * 16; n += 1
                for i in range(8):
                    e(f'v_accvgpr_read_b32 v{t + i}, a{acc + i}')
                for i in range(8):
                    e(f'v_mul_f32 v{t + i}, v{t + i}, v{L[qb]}')
                for i in range(4):
                    e(f'v_cvt_pk_bf16_f32 v{t + 8 + i}, v{t + 2 * i}, v{t + 2 * i + 1}')
                kk = 2 * db + u
                so = sT0 if kk < 4 else sT1
                e(f'buffer_store_dwordx4 v[{t + 8}:{t + 11}], v{VL16}, s[{sWS}:{sWS + 3}], s{so} offen offset:{(kk % 4) * 1024}{opts.get("ost", " sc1")}')
    if MEGA:
        srd(k, 12, 26, 27, WS_SIZE)
        e('s_lshl_b32 s46, s29, 2')
        e(f's_add_u32 s46, s46, s{sW}')
        e('s_lshl_b32 s46, s46, 7')
        e('s_lshl_b32 s3, s28, 2')
        e('s_add_u32 s46, s46, s3')
        e(f's_add_u32 s46, s46, {WS_FO}')
        e('s_waitcnt vmcnt(16)')
        e('s_mov_b32 s48, 0x40000')
        k.label('attn_fc')
        e('v_min_u32 v244, v244, v245')
        e('v_min3_u32 v244, v244, v246, v247')
        e('v_cmp_eq_u32 vcc, 0, v244')
        e('s_cbranch_vccz attn_fc_go')
        e('s_sleep 2')
        e(f's_mov_b32 s{sT0}, {WS_FC}')
        e(f'buffer_load_dwordx4 v[244:247], v{VL16}, s[{sWS}:{sWS + 3}], s{sT0} offen sc1', 'fc')
        k.vmq.pop()
        e('s_waitcnt vmcnt(0)')
        k.vmq = ['st'] * 16
        e('s_sub_u32 s48, s48, 1')
        e('s_cmp_lg_u32 s48, 0')
        e('s_cbranch_scc1 attn_fc')
        k.label('attn_fc_go')
        tail_cb(k)
    else:
        stamp(k, SI(6))
        stamp_flush(k, 7, sWS, 1)
    k.label('attn_end')
    e('s_endpgm')

    if RETILE:
        CP = 192
        k.label('attn_copy')
        e(f's_cmp_le_u32 s{sCnt}, 2')
        e('s_cbranch_scc1 attn_copy_flag' if MEGA else 's_cbranch_scc1 attn_copy_ret')
        e(f's_lshl_b32 s{sT0}, s2, 2')
        e(f's_add_u32 s{sT0}, s{sT0}, s{sW}')
        e(f's_cmp_eq_u32 s{sCnt}, 3')
        e('s_cbranch_scc1 attn_copy_st')
        e(f's_lshl_b32 s{sT1}, s{sT0}, 12')
        for i in range(4):
            e(f'buffer_load_dwordx4 a[{CP + 4 * i}:{CP + 4 * i + 3}], v{VL16}, s[80:83], s{sT1} offen offset:{i * 1024}')
        e(f's_lshl_b32 s{sT1}, s{sT0}, 11')
        for i in range(2):
            e(f'buffer_load_dwordx4 a[{CP + 16 + 4 * i}:{CP + 19 + 4 * i}], v{VL16}, s[92:95], s{sT1} offen offset:{i * 1024}')
        e('s_branch attn_copy_ret')
        k.label('attn_copy_st')
        e(f'v_lshrrev_b32 v238, 3, v{VLANE}')
        e(f'v_and_b32 v239, 7, v{VLANE}')
        e('v_lshlrev_b32 v239, 4, v239')
        SK = opts.get('sk', 0)
        if SK:
            e(f'v_lshrrev_b32 v237, 4, v{VLANE}')
            e('v_lshlrev_b32 v237, 20, v237')
            e(f'v_and_b32 v241, 15, v{VLANE}')
            e('v_lshl_add_u32 v237, v241, 4, v237')
        else:
            e('v_lshl_add_u32 v237, v238, 19, v239')
        e('v_lshl_add_u32 v238, v238, 18, v239')
        e(f's_lshl_b32 s{sT1}, s{sT0}, {10 if SK else 9}')
        e(f's_add_u32 s{sT1}, s{sT1}, {WS_WOT}')
        for i in range(4):
            e(f'buffer_store_dwordx4 a[{CP + 4 * i}:{CP + 4 * i + 3}], v237, s[{sWS}:{sWS + 3}], s{sT1} offen offset:{i * (256 if SK else 128)} sc1')
        e(f's_lshl_b32 s{sT1}, s{sT0}, 8')
        e(f's_add_u32 s{sT1}, s{sT1}, {WS_W2T}')
        for i in range(2):
            e(f'buffer_store_dwordx4 a[{CP + 16 + 4 * i}:{CP + 19 + 4 * i}], v238, s[{sWS}:{sWS + 3}], s{sT1} offen offset:{i * 128} sc1')
        e('s_branch attn_copy_ret')
        if MEGA:
            k.label('attn_copy_flag')
            e(f's_cmp_lg_u32 s{sCnt}, 2')
            e('s_cbranch_scc1 attn_copy_ret')
            e(f's_cmp_lg_u32 s{sW}, 0')
            e('s_cbranch_scc1 attn_copy_ret')
            e(f's_lshl_b32 s{sT1}, s2, 2')
            e(f's_add_u32 s{sT1}, s{sT1}, {WS_FC}')
            e('v_mov_b32 v238, 0')
            e('v_mov_b32 v239, 1')
            e('s_mov_b64 exec, 1')
            e(f'buffer_store_dword v239, v238, s[{sWS}:{sWS + 3}], s{sT1} offen sc1')
            e('s_mov_b64 exec, -1')
            e('s_branch attn_copy_ret')

    for lab, ret, par in stubs:
        k.label(lab)
        e(f's_call_b64 s[{sLink}:{sLink + 1}], attn_slow{par}')
        e(f's_branch {ret}')
    for par in range(2):
        k.label(f'attn_slow{par}')
        e('s_nop 15'); e('s_nop 15')
        D0 = [TMP + 2, TMP + 3]
        for qb in range(2):
            sb = S[par] + 16 * qb; sn = S[1 - par] + 16 * qb
            e(f'v_max3_f32 v{TMP}, v{sb}, v{sb + 1}, v{sb + 2}')
            for i in range(3, 15, 2):
                e(f'v_max3_f32 v{TMP}, v{TMP}, v{sb + i}, v{sb + i + 1}')
            e(f'v_max_f32 v{TMP}, v{TMP}, v{sb + 15}')
            e(f'v_mov_b32 v{TMP + 1}, v{TMP}')
            e(f'v_permlane32_swap_b32 v{TMP}, v{TMP + 1}')
            e(f'v_max_f32 v{TMP}, v{TMP}, v{TMP + 1}')
            if opts.get('refresh'):
                e(f'v_mov_b32 v{ET}, v{L[qb]}')
                e(f'v_mov_b32 v{ET + 1}, v{L[qb]}')
                e(f'v_permlane32_swap_b32 v{ET}, v{ET + 1}')
                e(f'v_add_f32 v{ET}, v{ET}, v{ET + 1}')
                e(f'v_log_f32 v{ET}, v{ET}')
                e(f'v_max_f32 v{TMP}, v{TMP}, v{ET}')
            e(f'v_add_f32 v{TMP}, {f32(BIAS)}, v{TMP}')
            e(f'v_max_f32 v{TMP}, 0, v{TMP}')
            e(f'v_ceil_f32 v{TMP}, v{TMP}')
            e(f'v_sub_f32 v{TMP + 1}, 0, v{TMP}')
            e(f'v_cvt_i32_f32 v{D0[qb]}, v{TMP + 1}')
            for i in range(16):
                e(f'v_sub_f32 v{NEGM + 16 * qb + i}, v{NEGM + 16 * qb + i}, v{TMP}')
                e(f'v_sub_f32 v{sb + i}, v{sb + i}, v{TMP}')
                e(f'v_sub_f32 v{sn + i}, v{sn + i}, v{TMP}')
            e(f'v_ldexp_f32 v{L[qb]}, v{L[qb]}, v{D0[qb]}')
            for db in range(4):
                acc = O + (db * 2 + qb) * 16
                for i in range(16):
                    t = ET + i % 8
                    e(f'v_accvgpr_read_b32 v{t}, a{acc + i}')
                    e(f'v_ldexp_f32 v{t}, v{t}, v{D0[qb]}')
                    e(f'v_accvgpr_write_b32 a{acc + i}, v{t}')
        for _, f in softmax_stream(par): f()
        e('s_nop 3')
        e(f's_setpc_b64 s[{sLink}:{sLink + 1}]')
    return k, 'grid=(256,1,1) block=(256,1,1) lds=135168'


sWS_T = 12
WGF = 1
sWV_T = 32
X1KEEP = 64


def lane_id(k, v):
    k.e(f'v_mbcnt_lo_u32_b32 v{v}, -1, 0')
    k.e(f'v_mbcnt_hi_u32_b32 v{v}, -1, v{v}')


def signal(k, vt, soff, nyounger, wg=False):
    e = k.e
    e(f's_waitcnt vmcnt({nyounger})')
    if wg:
        lab = k.newlabel('nosig')
        e('s_barrier')
        e(f's_cmp_lg_u32 s{sWV_T}, 0')
        e(f's_cbranch_scc1 {lab}')
    e(f'v_mov_b32 v{vt}, 0')
    e(f'v_mov_b32 v{vt + 1}, 1')
    e('s_mov_b64 exec, 1')
    e(f'buffer_store_dword v{vt + 1}, v{vt}, s[{sWS_T}:{sWS_T + 3}], s{soff} offen sc1', 'flag')
    e('s_mov_b64 exec, -1')
    if wg:
        k.vmq.pop()
        k.label(lab)


def poll(k, name, vt, vlane, soff, nflags, opts):
    e = k.e
    e(f's_cmp_lg_u32 s{sWV_T}, 0')
    e(f's_cbranch_scc1 {name}_go')
    e(f'v_min_u32 v{vt}, {nflags - 1}, v{vlane}')
    e(f'v_lshlrev_b32 v{vt}, 2, v{vt}')
    e('s_mov_b32 s48, 0x40000')
    k.label(f'{name}_poll')
    e(f'buffer_load_dword v{vt + 1}, v{vt}, s[{sWS_T}:{sWS_T + 3}], s{soff} offen sc1', 'poll')
    e('s_waitcnt vmcnt(0)')
    e(f'v_cmp_eq_u32 vcc, 0, v{vt + 1}')
    e(f's_cbranch_vccz {name}_go')
    e(f's_sleep {opts.get("sleep", 2)}')
    e('s_sub_u32 s48, s48, 1')
    e('s_cmp_lg_u32 s48, 0')
    e(f's_cbranch_scc1 {name}_poll')
    k.label(f'{name}_go')
    e('s_waitcnt vmcnt(0)')
    e('s_barrier')


BSLOT = [(0, 32768), (65536, 98304), (16384, 49152), (81920, 114688)]


def early_b(k):
    e = k.e
    items = []

    def setup():
        lane_id(k, 251)
        e('v_lshrrev_b32 v252, 4, v251')
        e('v_and_b32 v253, 15, v251')
        e('v_lshlrev_b32 v250, 2, v252')
        e('v_xor_b32 v250, v250, v253')
        e('v_lshlrev_b32 v250, 4, v250')
        e('v_mul_u32_u24 v252, 3584, v252')
        e('v_add_u32 v250, v250, v252')
        e(f's_and_b32 s54, s{sWV_T}, 1')
        e('s_cmp_eq_u32 s54, 0')
        e('s_cselect_b32 s24, s56, s58')
        e('s_cselect_b32 s25, s57, s59')
        e('s_and_b32 s25, s25, 0xffff')
        e(f's_mov_b32 s26, {512 * 3584}')
        e('s_mov_b32 s27, 0x00020000')
        e(f's_lshr_b32 s54, s{sWV_T}, 1')
        e(f's_mul_i32 s54, s54, {64 * 3584}')
        e('s_lshl_b32 s53, s51, 8')
        e('s_add_u32 s54, s54, s53')
        e(f's_lshl_b32 s53, s{sWV_T}, 15')
    items.append(setup)
    for p in range(16):
        def f(p=p):
            e(f's_add_u32 m0, s53, {p * 1024}')
            e(f's_add_u32 s52, s54, {p * 4 * 3584}')
            e('buffer_load_dwordx4 v250, s[24:27], s52 offen lds', ('wq', 0))
        items.append(f)
    return items


def early_c(k, n, which='w2', wa=''):
    e = k.e
    items = []

    def setup():
        lane_id(k, 252)
        e('v_lshrrev_b32 v253, 3, v252')
        e('v_lshlrev_b32 v251, 1, v253')
        e('v_and_b32 v251, 4, v251')
        e('v_and_b32 v252, 7, v252')
        e('v_xor_b32 v251, v251, v252')
        e('v_lshlrev_b32 v251, 4, v251')
        e('v_lshl_add_u32 v251, v253, 7, v251')
        e(f's_lshl_b32 s49, s{sWV_T}, 15')
        e('s_and_b32 s55, s2, 1')
        e('s_lshl_b32 s55, s55, 2')
        e('s_lshr_b32 s47, s2, 6')
        e('s_add_u32 s55, s55, s47')
        e(f's_lshl_b32 s55, s55, {18 if which == "w2" else 19}')
        e(f's_mul_i32 s47, s{sWV_T}, {(28 if which == "w2" else 64) * 2048}')
        e('s_add_u32 s55, s55, s47')
        e(f's_add_u32 s55, s55, {WS_W2T if which == "w2" else WS_WOT}')
    items.append(setup)
    for ks in range(n):
        def f(ks=ks):
            e(f's_add_u32 m0, s49, {ks * 2048}')
            e('s_nop 0')
            e(f'buffer_load_dwordx4 v251, s[{sWS_T}:{sWS_T + 3}], s55 offen{wa} lds', ('g', ks))
            e(f'buffer_load_dwordx4 v251, s[{sWS_T}:{sWS_T + 3}], s55 offen offset:1024{wa} lds', ('g', ks))
            e('s_add_u32 s55, s55, 2048')
        items.append(f)
    return items


def phase_gemm64(k, which, opts, dep, out_flag, keep_x1, sbase, early=None):
    e = k.e
    name = 'pa' if which == 'wo' else 'pc'
    NKS = 256 if which == 'wo' else 112
    KW = NKS // 4
    D = 16 if which == 'wo' else 14
    NIT = KW // D
    WS_XIN = WS_O if which == 'wo' else WS_HH
    sWS, sG = sWS_T, 16
    sWv, sXo, sWo, sT0, sLb, sCnt, sXo1 = sWV_T, 33, 34, 35, 37, 38, 39
    ACC = 8
    XF = 72
    WFr = 200
    VL16, VDW, VWR = 216, 217, 218
    EP = 220
    XA = ' sc1' if dep else ''
    SA = ' sc1' if out_flag else ''
    WA = ' sc1' if opts.get('mega') else ''
    POFF = 16384
    if dep:
        VDW, sWo, sLb = 251, 55, 49
    e('s_bfe_u32 s28, s2, 0x20001')
    e('s_lshl_b32 s28, s28, 3')
    e('s_bfe_u32 s30, s2, 0x30003')
    e('s_add_u32 s28, s28, s30')
    e('s_and_b32 s29, s2, 1')
    e('s_lshl_b32 s29, s29, 2')
    e('s_lshr_b32 s30, s2, 6')
    e('s_add_u32 s29, s29, s30')
    lane_id(k, 2)
    e(f'v_lshlrev_b32 v{VL16}, 4, v2')
    if not dep:
        e('v_lshrrev_b32 v3, 3, v2')
        e('v_and_b32 v4, 7, v2')
        e('v_lshlrev_b32 v5, 1, v3')
        e('v_and_b32 v5, 4, v5')
        e('v_xor_b32 v4, v4, v5')
        e('v_lshlrev_b32 v4, 4, v4')
        e(f'v_lshl_add_u32 v{VDW}, v3, 7, v4')
        e(f's_lshl_b32 s{sLb}, s{sWv}, 15')
    e(f's_mul_i32 s{sXo}, s28, {2 * NKS * 1024}')
    e(f's_mul_i32 s{sT0}, s{sWv}, {KW * 1024}')
    e(f's_add_u32 s{sXo}, s{sXo}, s{sT0}')
    e(f's_add_u32 s{sXo}, s{sXo}, {WS_XIN}')
    e(f's_add_u32 s{sXo1}, s{sXo}, {NKS * 1024}')
    if not dep:
        e(f's_mul_i32 s{sWo}, s{sWv}, {KW * 2048}')
        e(f's_lshl_b32 s{sT0}, s29, {19 if which == "wo" else 18}')
        e(f's_add_u32 s{sWo}, s{sWo}, s{sT0}')
        e(f's_add_u32 s{sWo}, s{sWo}, {WS_WOT if which == "wo" else WS_W2T}')
    e(f's_lshr_b32 s40, s{sWv}, 1')
    e(f's_and_b32 s47, s{sWv}, 1')
    e('s_lshl_b32 s41, s29, 6')
    e('s_lshl_b32 s42, s40, 5')
    e('s_add_u32 s41, s41, s42')
    e('s_lshl_b32 s42, s28, 6')
    e('s_lshl_b32 s43, s47, 5')
    e('s_add_u32 s42, s42, s43')
    e('v_lshrrev_b32 v4, 5, v2')
    e('v_and_b32 v5, 31, v2')
    e('v_add_u32 v6, s42, v5')
    e('v_lshlrev_b32 v6, 10, v6')
    e('v_lshl_add_u32 v6, v4, 4, v6')
    e('s_lshl_b32 s43, s41, 1')
    e('v_add_u32 v6, s43, v6')
    e('s_lshl_b32 s43, s42, 10')
    e('s_lshl_b32 s44, s41, 6')
    e('s_add_u32 s43, s43, s44')
    e(f's_add_u32 s43, s43, {WS_X1}')
    e('v_lshlrev_b32 v7, 5, v4')
    e('s_lshl_b32 s44, s41, 2')
    e(f's_add_u32 s44, s44, {WS_GA if which == "wo" else WS_GB}')
    yield 'setup'
    sp = 60 if which == 'wo' else 62
    srd(k, sG, sp, sp + 1, 2048 * 1024)

    def loads(ks):
        sl = ks % D
        r0 = XF + sl * 8
        return dict(
            m0=lambda: e(f's_add_u32 m0, s{sLb}, {sl * 2048}'),
            w0=lambda: e(f'buffer_load_dwordx4 v{VDW}, s[{sWS}:{sWS + 3}], s{sWo} offen{WA} lds', ('g', ks)),
            w1=lambda: e(f'buffer_load_dwordx4 v{VDW}, s[{sWS}:{sWS + 3}], s{sWo} offen offset:1024{WA} lds', ('g', ks)),
            x0=lambda: e(f'buffer_load_dwordx4 v[{r0}:{r0 + 3}], v{VL16}, s[{sWS}:{sWS + 3}], s{sXo} offen offset:{(ks % 2) * 1024}{XA}{opts.get("xa", "")}', ('g', ks)),
            x1=lambda: e(f'buffer_load_dwordx4 v[{r0 + 4}:{r0 + 7}], v{VL16}, s[{sWS}:{sWS + 3}], s{sXo1} offen offset:{(ks % 2) * 1024}{XA}{opts.get("xa", "")}', ('g', ks)),
            uw=lambda: e(f's_add_u32 s{sWo}, s{sWo}, 2048'),
            ux=lambda: (e(f's_add_u32 s{sXo}, s{sXo}, 2048'), e(f's_add_u32 s{sXo1}, s{sXo1}, 2048')) if ks % 2 == 1 else None)

    def misc_setup():
        e('v_bfe_u32 v3, v2, 2, 2')
        e('v_lshl_add_u32 v1, v4, 3, v3')
        e('v_lshlrev_b32 v1, 7, v1')
        e(f'v_bfe_u32 v{VWR}, v2, 4, 1')
        e(f'v_lshl_add_u32 v1, v{VWR}, 5, v1')
        e(f'v_and_b32 v{VWR}, 1, v2')
        e(f'v_lshl_add_u32 v1, v{VWR}, 4, v1')
        e(f'v_bfe_u32 v{VWR}, v2, 1, 1')
        e(f'v_lshl_add_u32 v1, v{VWR}, 3, v1')
        e(f'v_add_u32 v1, s{sLb}, v1')
        e('v_lshrrev_b32 v3, 1, v3')
        e(f'v_lshl_add_u32 v{VWR}, v3, 6, v1')
        e('v_xor_b32 v3, 1, v3')
        e(f'v_lshl_add_u32 v{VWR + 1}, v3, 6, v1')
        for i in range(64):
            e(f'v_mov_b32 v{ACC + i}, 0')
        e(f's_mov_b32 s{sCnt}, {NIT - 1}')

    for u in range(2):
        e(f'buffer_load_dwordx4 v[{EP + 8 * u}:{EP + 8 * u + 3}], v7, s[{sWS}:{sWS + 3}], s44 offen offset:{64 * u}', 'ep')
        e(f'buffer_load_dwordx4 v[{EP + 8 * u + 4}:{EP + 8 * u + 7}], v7, s[{sWS}:{sWS + 3}], s44 offen offset:{64 * u + 16}', 'ep')
        if which == 'wo':
            e(f'buffer_load_dwordx4 v[{EP + 16 + 4 * u}:{EP + 19 + 4 * u}], v6, s[{sG}:{sG + 3}], 0 offen offset:{32 * u}', 'ep')
        elif not keep_x1:
            e(f'buffer_load_dwordx4 v[{EP + 16 + 4 * u}:{EP + 19 + 4 * u}], v{VL16}, s[{sWS}:{sWS + 3}], s43 offen offset:{1024 * u}', 'ep')
    if dep:
        NWP = D - 1 if which == 'w2' else opts.get('nwa', 15)
        yield 'prefetched'
        misc_setup()
        if which == 'w2':
            e('s_lshr_b32 s45, s28, 1')
            e('s_lshl_b32 s45, s45, 8')
            e(f's_add_u32 s45, s45, {WS_FB}')
        else:
            e('s_lshl_b32 s45, s28, 7')
            e(f's_add_u32 s45, s45, {WS_FO}')
        stamp(k, sbase)
        poll(k, name, 246, 2, 45, (14 if WGF else 56) if which == 'w2' else 32, opts)
        sbase += 1
        stamp(k, sbase)
        for ks in range(D - 1):
            L = loads(ks)
            for nm in (('x0', 'x1', 'ux') if ks < NWP else ('m0', 'x0', 'w0', 'w1', 'x1', 'uw', 'ux')):
                L[nm]()
    else:
        for ks in range(D - 1):
            L = loads(ks)
            for nm in ('m0', 'x0', 'w0', 'w1', 'x1', 'uw', 'ux'):
                L[nm]()
            if ks == 1:
                misc_setup()
        yield 'prefetched'
        stamp(k, sbase)

    def wreads(ks):
        sl = ks % D
        for nb in range(2):
            for t in range(2):
                r = WFr + (ks % 2) * 8 + nb * 4 + t * 2
                e(f'ds_read_b64_tr_b16 v[{r}:{r + 1}], v{VWR + nb} offset:{sl * 2048 + t * 512}', ('wf', ks))

    def kstep(ks, refill, last=False, extra=()):
        sl = ks % D
        L = loads(ks + D - 1) if refill else None
        for i in range(4):
            nb, mb = i // 2, i % 2
            acc = ACC + (nb * 2 + mb) * 16
            if 'M' not in opts.get('z', ''):
                e(f'v_mfma_f32_32x32x16_bf16 {vr(acc, 16)}, {vr(WFr + (ks % 2) * 8 + nb * 4, 4)}, {vr(XF + (sl * 2 + mb) * 4, 4)}, {vr(acc, 16)}')
            if i == 0:
                if not last:
                    k.wait(vm=[('g', ks + 1)])
                    if 'R' not in opts.get('z', ''): wreads(ks + 1)
                if L: L['m0']()
            elif i == 1 and L:
                L['x0'](); L['w0']()
            elif i == 2 and L:
                L['w1'](); L['x1'](); L['uw'](); L['ux']()
            elif i == 3 and not last:
                k.wait(lg=[('wf', ks + 1)])
            if i in (1, 2) and len(extra) >= i:
                extra[i - 1]()

    k.wait(vm=[('g', 0)])
    wreads(0)
    k.wait(lg=[('wf', 0)])
    stamp(k, sbase + 1)
    B0 = 0
    if dep and NIT > 2:
        for ks in range(D):
            kstep(ks, True)
        e(f's_mov_b32 s{sCnt}, {NIT - 2}')
        B0 = D
    k.label(f'{name}_loop')
    for ks in range(B0, B0 + D):
        kstep(ks, True)
    if NIT > 2:
        e(f's_sub_u32 s{sCnt}, s{sCnt}, 1')
        e(f's_cmp_lg_u32 s{sCnt}, 0')
        e(f's_cbranch_scc1 {name}_loop')
    early = list(early or [])
    for ks in range(B0 + D, B0 + 2 * D):
        ex = []
        E0 = opts.get('e0', 1)
        if early and ks == B0 + D + E0:
            ex = [early.pop(0)]
        elif early and ks > B0 + D + E0:
            ex = early[:2]; early = early[2:]
        kstep(ks, ks == B0 + D, last=(ks == B0 + 2 * D - 1), extra=ex)
    assert not early
    stamp(k, sbase + 2)
    e(f'v_add_u32 v3, s{sLb}, v{VL16}')
    for qd in range(16):
        e(f'ds_write_b128 v3, v[{ACC + 4 * qd}:{ACC + 4 * qd + 3}] offset:{POFF + qd * 1024}')
    e('s_waitcnt lgkmcnt(0)')
    e('s_barrier')
    e(f's_lshl_b32 s{sT0}, s{sWv}, 12')
    e(f'v_add_u32 v3, s{sT0}, v{VL16}')
    e(f'v_add_u32 v1, 0x10000, v3')
    RD = 72
    for w in range(4):
        a = 3 if w < 2 else 1
        for h in range(4):
            r = RD + (w * 4 + h) * 4
            e(f'ds_read_b128 v[{r}:{r + 3}], v{a} offset:{POFF + (w % 2) * 32768 + h * 1024}', ('r', w))
    for w in range(1, 4):
        k.wait(lg=[('r', w), ('r', 0)])
        for i in range(16):
            e(f'v_add_f32 v{RD + i}, v{RD + i}, v{RD + w * 16 + i}')
    if out_flag:
        e('s_barrier')
    k.wait(vm=['ep'])
    if which == 'w2' and keep_x1:
        for i in range(8):
            e(f'v_accvgpr_read_b32 v{EP + 16 + i}, a{X1KEEP + i}')
    for i in range(16):
        rbf(k, RD + i, RD + i)
    for i in range(16):
        e(f'v_mul_f32 v{RD + i}, v{RD + i}, v{EP + i}')
    for i in range(16):
        rbf(k, RD + i, RD + i)
    for i in range(16):
        src = EP + 16 + i // 2
        if i % 2 == 0:
            e(f'v_lshlrev_b32 v{RD + 16 + i}, 16, v{src}')
        else:
            e(f'v_and_b32 v{RD + 16 + i}, 0xffff0000, v{src}')
    for i in range(16):
        e(f'v_add_f32 v{RD + i}, v{RD + i}, v{RD + 16 + i}')
    for i in range(8):
        e(f'v_cvt_pk_bf16_f32 v{RD + 32 + i}, v{RD + 2 * i}, v{RD + 2 * i + 1}')
    for u in range(2):
        if which == 'w2':
            e(f'buffer_store_dwordx4 v[{RD + 32 + 4 * u}:{RD + 35 + 4 * u}], v6, s[{sG}:{sG + 3}], 0 offen offset:{32 * u}')
        else:
            e(f'buffer_store_dwordx4 v[{RD + 32 + 4 * u}:{RD + 35 + 4 * u}], v{VL16}, s[{sWS}:{sWS + 3}], s43 offen offset:{1024 * u}{SA}')
    if which == 'wo':
        if keep_x1:
            for i in range(8):
                e(f'v_accvgpr_write_b32 a{X1KEEP + i}, v{RD + 32 + i}')
        for i in range(16):
            src = RD + 32 + i // 2
            if i % 2 == 0:
                e(f'v_lshlrev_b32 v{RD + i}, 16, v{src}')
            else:
                e(f'v_and_b32 v{RD + i}, 0xffff0000, v{src}')
        A, B = RD + 16, RD + 17
        e(f'v_add_f32 v{A}, v{RD}, v{RD + 1}')
        e(f'v_mul_f32 v{B}, v{RD}, v{RD}')
        e(f'v_fmac_f32 v{B}, v{RD + 1}, v{RD + 1}')
        for i in range(2, 16):
            e(f'v_add_f32 v{A}, v{A}, v{RD + i}')
            e(f'v_fmac_f32 v{B}, v{RD + i}, v{RD + i}')
        e(f'v_mov_b32 v{A + 2}, v{A}')
        e(f'v_mov_b32 v{A + 3}, v{B}')
        e(f'v_permlane32_swap_b32 v{A}, v{A + 2}')
        e(f'v_permlane32_swap_b32 v{B}, v{A + 3}')
        e(f'v_add_f32 v{A}, v{A}, v{A + 2}')
        e(f'v_add_f32 v{B}, v{B}, v{A + 3}')
        e('s_lshl_b32 s45, s42, 7')
        e('s_lshl_b32 s46, s41, 3')
        e('s_add_u32 s45, s45, s46')
        e(f's_add_u32 s45, s45, {WS_ST}')
        e('v_lshlrev_b32 v3, 3, v5')
        e('s_mov_b64 exec, 0xffffffff')
        e(f'buffer_store_dwordx2 v[{A}:{A + 1}], v3, s[{sWS}:{sWS + 3}], s45 offen{SA}')
        e('s_mov_b64 exec, -1')
        if out_flag:
            e('s_lshr_b32 s46, s28, 1')
            e('s_lshl_b32 s46, s46, 8')
            e('s_and_b32 s45, s28, 1')
            e(f's_lshl_b32 s45, s45, {5 if WGF else 7}')
            e('s_add_u32 s46, s46, s45')
            e(f's_lshl_b32 s45, s29, {2 if WGF else 4}')
            e('s_add_u32 s46, s46, s45')
            if not WGF:
                e(f's_lshl_b32 s45, s{sWv}, 2')
                e('s_add_u32 s46, s46, s45')
            e(f's_add_u32 s46, s46, {WS_FA}')
    stamp(k, sbase + 3)
    yield 'done'


def phase_ffn1(k, opts, dep, out_flag, sbase, early=None):
    e = k.e
    s1, s3_, sWS = 8, 20, sWS_T
    sW, sT0, sT1, sXb, sWo, sHb, sW4K = sWV_T, 33, 34, 35, 36, 37, 38
    ACC = 0
    XD = 12
    XR = 128
    H = 176
    SS = 184
    FT = 216
    WRA = 224
    VL16, VDW, VMD, VLANE, RS, NM = 232, 233, 234, 235, 236, 237
    T = 238
    WF = 0
    LDS_MOD = 131072
    XA = ' sc1' if dep else ''
    PURE = opts.get('sk', 0)
    if PURE:
        XD = 16; XR = 128
    lane_id(k, VLANE)
    e(f'v_lshlrev_b32 v{VL16}, 4, v{VLANE}')
    e(f'v_lshrrev_b32 v{T + 1}, 4, v{VLANE}')
    e(f'v_and_b32 v{T + 2}, 15, v{VLANE}')
    e(f'v_lshlrev_b32 v{T + 3}, 2, v{T + 1}')
    e(f'v_xor_b32 v{T + 3}, v{T + 3}, v{T + 2}')
    e(f'v_lshlrev_b32 v{T + 3}, 4, v{T + 3}')
    e(f'v_mul_u32_u24 v{T + 4}, 3584, v{T + 1}')
    e(f'v_add_u32 v{VDW}, v{T + 4}, v{T + 3}')
    e(f's_lshl_b32 s{sW4K}, s{sW}, 12')
    e('s_lshl_b32 s3, s50, 2')
    e(f's_add_u32 s3, s3, s{sW}')
    e(f's_lshl_b32 s{sXb}, s3, 15')
    e(f's_add_u32 s{sXb}, s{sXb}, {WS_H2 if PURE else WS_X1}')
    e(f's_mul_i32 s{sHb}, s3, {112 * 1024}')
    e(f's_lshl_b32 s{sT0}, s51, 13')
    e(f's_add_u32 s{sHb}, s{sHb}, s{sT0}')
    e(f's_add_u32 s{sHb}, s{sHb}, {WS_HH}')
    e(f's_mul_i32 s{sWo}, s{sW}, {16 * 3584}')
    e(f's_lshl_b32 s{sT0}, s51, 8')
    e(f's_add_u32 s{sWo}, s{sWo}, s{sT0}')
    e(f'v_and_b32 v{T + 5}, 31, v{VLANE}')
    e(f'v_lshrrev_b32 v{T + 4}, 5, v{VLANE}')
    e(f'v_lshlrev_b32 v{T + 6}, 3, v{T + 5}')
    e(f'v_lshl_add_u32 v{T + 6}, v{T + 4}, 11, v{T + 6}')
    e(f's_lshl_b32 s39, s3, 12')
    e(f's_add_u32 s39, s39, {WS_ST}')
    yield 'setup'
    srd(k, s1, 56, 57, 512 * 3584)
    srd(k, s3_, 58, 59, 512 * 3584)

    def w_dma(c):
        out = []
        for mat, sd in enumerate((s1, s3_)):
            for p in range(4):
                g = []
                if p == 0:
                    g.append((1, lambda mat=mat: e(f's_add_u32 m0, s{sW4K}, {BSLOT[c % 4][mat]}')))
                g.append((1, lambda p=p: e(f's_add_u32 s{sT0}, s{sWo}, {c * 64 * 3584 + p * (4 * 3584 - 1024)}')))
                g.append((COST['dma'], lambda p=p, sd=sd: e(f'buffer_load_dwordx4 v{VDW}, s[{sd}:{sd + 3}], s{sT0} offen offset:{p * 1024} lds', ('wq', c))))
                out.append(g)
        return out

    def xreg(ks):
        return XR + (ks % XD) * 4

    def x_load(ks):
        r = xreg(ks)
        g = []
        if ks % 4 == 0:
            g.append((1, lambda: e(f's_add_u32 s{sT1}, s{sXb}, {(ks // 4) * 4096}')))
        g.append((COST['vload'], lambda: e(f'buffer_load_dwordx4 v[{r}:{r + 3}], v{VL16}, s[{sWS}:{sWS + 3}], s{sT1} offen offset:{(ks % 4) * 1024}{XA}', ('x', ks))))
        return g

    def addr_setup():
        e(f'v_lshrrev_b32 v{T + 7}, 2, v{T + 2}')
        e(f'v_and_b32 v{T + 8}, 1, v{T + 1}')
        e(f'v_lshlrev_b32 v{T + 8}, 5, v{T + 8}')
        e(f'v_and_b32 v{T + 9}, 1, v{VLANE}')
        e(f'v_lshl_add_u32 v{T + 8}, v{T + 9}, 4, v{T + 8}')
        e(f'v_bfe_u32 v{T + 9}, v{VLANE}, 1, 1')
        e(f'v_lshl_add_u32 v{T + 8}, v{T + 9}, 3, v{T + 8}')
        e(f'v_lshl_add_u32 v{T + 8}, v{T + 7}, 8, v{T + 8}')
        e(f'v_lshl_add_u32 v{T + 8}, v{T + 4}, 11, v{T + 8}')
        for db in range(4):
            e(f'v_xor_b32 v{T + 9}, {db}, v{T + 7}')
            e(f'v_lshl_add_u32 v{WRA + db}, v{T + 9}, 6, v{T + 8}')
            e(f'v_add_u32 v{WRA + 4 + db}, 0x10000, v{WRA + db}')
        e(f'v_lshlrev_b32 v{VMD}, 6, v{T + 4}')
        e(f'v_add_u32 v{VMD}, {LDS_MOD}, v{VMD}')

    ST = SS

    def st_loads():
        for j in range(8):
            e(f'buffer_load_dwordx2 v[{ST + 2 * j}:{ST + 1 + 2 * j}], v{T + 6}, s[{sWS}:{sWS + 3}], s39 offen offset:{256 * j}{XA}', 'st')

    def mod_dma():
        e(f's_lshl_b32 s{sT0}, s{sW}, 10')
        e(f's_add_u32 m0, s{sT0}, {LDS_MOD}')
        e(f's_add_u32 s{sT0}, s{sT0}, {WS_MOD2}')
        e(f'buffer_load_dwordx4 v{VL16}, s[{sWS}:{sWS + 3}], s{sT0} offen lds', ('wq', 0))

    if dep:
        NPRE = opts.get('npre4f', 4); NPX = 3
        WB = opts.get('wbefore', 4)
        mod_dma()
        for c in range(2, min(NPRE, WB)):
            for g in w_dma(c):
                for _, f in g: f()
        yield 'prefetched'
        addr_setup()
        e('s_lshl_b32 s45, s50, 8')
        e(f's_add_u32 s45, s45, {WS_FA}')
        stamp(k, sbase)
        poll(k, 'pb', T + 10, VLANE, 45, 16 if WGF else 64, opts)
        sbase += 1
        stamp(k, sbase)
        st_loads()
        for ks in range(4 * NPX):
            for _, f in x_load(ks): f()
        for c in range(max(2, WB), NPRE):
            for g in w_dma(c):
                for _, f in g: f()
    else:
        NPRE = opts.get('npre4', 1); NPX = NPRE
        if not PURE:
            st_loads()
            mod_dma()
        for _, f in x_load(0): f()
        for g in w_dma(0):
            for _, f in g: f()
        for ks in range(1, 4):
            for _, f in x_load(ks): f()
        for c in range(1, NPRE):
            for g in w_dma(c):
                for _, f in g: f()
            for ks in range(4 * c, 4 * c + 4):
                for _, f in x_load(ks): f()
        yield 'prefetched'
        addr_setup()
        stamp(k, sbase)
    if not PURE:
        k.wait(vm=['st'])
        e(f's_mov_b32 s3, {f32(1.0 / 512)}')
        r = ST
        for j in range(1, 8):
            e(f'v_add_f32 v{r}, v{r}, v{r + 2 * j}')
            e(f'v_add_f32 v{r + 1}, v{r + 1}, v{r + 2 * j + 1}')
        e(f'v_mov_b32 v{r + 2}, v{r}')
        e(f'v_mov_b32 v{r + 3}, v{r + 1}')
        e(f'v_permlane32_swap_b32 v{r}, v{r + 2}')
        e(f'v_permlane32_swap_b32 v{r + 1}, v{r + 3}')
        e(f'v_add_f32 v{r}, v{r}, v{r + 2}')
        e(f'v_add_f32 v{r + 1}, v{r + 1}, v{r + 3}')
        e(f'v_mul_f32 v{r}, s3, v{r}')
        e(f'v_mul_f32 v{r + 1}, s3, v{r + 1}')
        e(f'v_fma_f32 v{r + 1}, -v{r}, v{r}, v{r + 1}')
        e(f'v_max_f32 v{r + 1}, 0, v{r + 1}')
        rbf(k, r, r)
        rbf(k, r + 1, r + 1)
        e(f'v_add_f32 v{r + 1}, {f32(1e-5)}, v{r + 1}')
        rbf(k, r + 1, r + 1)
        e(f'v_sqrt_f32 v{r + 1}, v{r + 1}')
        rbf(k, r + 1, r + 1)
        e(f'v_rcp_f32 v{RS}, v{r + 1}')
        e(f'v_mul_f32 v{NM}, v{r}, v{RS}')
        e(f'v_sub_f32 v{NM}, 0, v{NM}')

    def w_reads(ks):
        out = []
        c = ks // 4
        for nb in range(8):
            mat, db = nb // 4, nb % 4
            off = BSLOT[c % 4][mat] + (ks % 4) * 4096
            base = WRA + (4 if off >= 65536 else 0) + db
            for t in range(2):
                r = WF + (ks % 2) * 32 + nb * 4 + t * 2
                out.append((COST['ds'], lambda r=r, base=base, t=t, off=off: e(f'ds_read_b64_tr_b16 a[{r}:{r + 1}], v{base} offset:{off % 65536 + t * 1024}', ('w', ks))))
        return out

    def ss_reads(ks):
        out = []
        for j in range(4):
            r = SS + (ks % 2) * 16 + 4 * j
            out.append((COST['ds'], lambda r=r, j=j: e(f'ds_read_b128 v[{r}:{r + 3}], v{VMD} offset:{ks * 128 + j * 16}', ('ss', ks))))
        return out

    def xform(ks):
        out = []
        sb = SS + (ks % 2) * 16
        x = xreg(ks)
        for p in range(4):
            t = FT + p * 2
            out.append((1, lambda p=p, t=t: e(f'v_lshlrev_b32 v{t}, 16, v{x + p}')))
            out.append((1, lambda p=p, t=t: e(f'v_and_b32 v{t + 1}, 0xffff0000, v{x + p}')))
            out.append((1, lambda t=t: e(f'v_fma_f32 v{t}, v{t}, v{RS}, v{NM}')))
            out.append((1, lambda t=t: e(f'v_fma_f32 v{t + 1}, v{t + 1}, v{RS}, v{NM}')))
            out.append((1, lambda p=p, t=t: e(f'v_fma_f32 v{t}, v{t}, v{sb + 2 * p}, v{sb + 8 + 2 * p}')))
            out.append((1, lambda p=p, t=t: e(f'v_fma_f32 v{t + 1}, v{t + 1}, v{sb + 2 * p + 1}, v{sb + 8 + 2 * p + 1}')))
            h = H + (ks % 2) * 4 + p
            out.append((1, lambda t=t, h=h: e(f'v_cvt_pk_bf16_f32 v{h}, v{t}, v{t + 1}')))
        return out

    todo = []
    wn = NPRE; xn = NPX
    while wn < 8 or xn < 8:
        if wn < 8 and wn <= xn:
            first = 0 if wn < 4 else 4 * (wn - 3)
            todo += [(first, g) for g in w_dma(wn)]; wn += 1
        else:
            for ks in range(4 * xn, 4 * xn + 4):
                todo.append((ks - XD + (1 if PURE else 0), x_load(ks)))
            xn += 1
    RATE = opts.get('rate4', 5)
    early = list(early or [])

    k.wait(vm=[('wq', 0)])
    e('s_barrier')
    stamp(k, sbase + 1)
    if PURE:
        for _, f in w_reads(0): f()
        k.wait(vm=[('x', 0)], lg=[('w', 0)])
    else:
        for _, f in ss_reads(0) + w_reads(0) + ss_reads(1): f()
        k.wait(vm=[('x', 0)], lg=[('ss', 0)])
        for _, f in xform(0): f()
        k.wait(lg=[('w', 0)])
    for ks in range(32):
        mf = []
        for nb in range(8):
            def m(nb=nb):
                acc = ACC + nb * 16
                c = '0' if ks == 0 else vr(acc, 16)
                b = xreg(ks) if PURE else H + (ks % 2) * 4
                e(f'v_mfma_f32_32x32x16_bf16 {vr(acc, 16)}, {ar(WF + (ks % 2) * 32 + nb * 4, 4)}, {vr(b, 4)}, {c}')
            mf.append(m)
        fx = {}; st = []; caps = {}
        if ks + 1 < 32:
            newc = (ks + 1) % 4 == 0
            vmw = ([] if PURE else [('x', ks + 1)]) + ([('wq', (ks + 1) // 4)] if newc else [])
            fx.setdefault(0, []).append((0, lambda: k.wait(vm=vmw, lg=[('ss', ks + 1)]), 'wait'))
            if newc:
                fx.setdefault(0, []).append((6, lambda: e('s_barrier'), 'bar'))
            g0 = 1 if newc else 0
            rd = (ss_reads(ks + 2) if ks + 2 < 32 and not PURE else []) + w_reads(ks + 1)
            for i, it in enumerate(rd):
                fx.setdefault(g0 + i // 4, []).append((it[0], it[1], 'ds'))
            st = [] if PURE else xform(ks + 1)
            fx.setdefault(7, []).append((0, lambda: k.wait(vm=[('x', ks + 1)] if PURE else [], lg=[('w', ks + 1)]), 'wait'))
        groups = []
        while todo and len(groups) < RATE and todo[0][0] <= ks:
            groups.append(todo.pop(0)[1])
        if early and ks == 22:
            groups.append([(8, early.pop(0))])
        elif early and ks >= 24 and len(early) > 5:
            groups.append([(6, early.pop(0))])
        gl = sorted([6, 7, 5, 4, 3, 2][:len(groups)])
        for g, grp in zip(gl, groups):
            for it in grp[:-1]:
                fx.setdefault(g - 1, []).append((it[0], it[1], 'end'))
            fx.setdefault(g, []).append((grp[-1][0], grp[-1][1], 'dma'))
        schedule(k, mf, fx, st, caps=caps, last_gap=6, cap=8)
    assert not todo
    if out_flag:
        e('s_barrier')
        for f in early: f()
    stamp(k, sbase + 2)
    e(f's_mov_b32 s3, {f32(-LOG2E)}')
    e(f's_add_u32 s{sT0}, s{sHb}, 4096')
    n = 0
    for j in range(4):
        for u in range(2):
            g = ACC + j * 16 + 8 * u
            up = ACC + (4 + j) * 16 + 8 * u
            t = XR + (n % 4) * 12; n += 1
            for i in range(8):
                e(f'v_mul_f32 v{t + i}, s3, v{g + i}')
            for i in range(8):
                e(f'v_exp_f32 v{t + i}, v{t + i}')
            for i in range(8):
                e(f'v_add_f32 v{t + i}, 1.0, v{t + i}')
            for i in range(8):
                e(f'v_rcp_f32 v{t + i}, v{t + i}')
            for i in range(8):
                e(f'v_mul_f32 v{g + i}, v{g + i}, v{t + i}')
            for i in range(8):
                e(f'v_mul_f32 v{g + i}, v{g + i}, v{up + i}')
            for i in range(4):
                e(f'v_cvt_pk_bf16_f32 v{t + 8 + i}, v{g + 2 * i}, v{g + 2 * i + 1}')
            kk = 2 * j + u
            so = sHb if kk < 4 else sT0
            e(f'buffer_store_dwordx4 v[{t + 8}:{t + 11}], v{VL16}, s[{sWS}:{sWS + 3}], s{so} offen offset:{(kk % 4) * 1024} sc1')
    if out_flag:
        e('s_lshl_b32 s46, s50, 8')
        e(f's_lshl_b32 s45, s51, {2 if WGF else 4}')
        e('s_add_u32 s46, s46, s45')
        if not WGF:
            e(f's_lshl_b32 s45, s{sW}, 2')
            e('s_add_u32 s46, s46, s45')
        e(f's_add_u32 s46, s46, {WS_FB}')
    stamp(k, sbase + 3)
    yield 'done'


def gen_oproj_sk(opts):
    k = Kern('oproj_kernel')
    e = k.e
    sWS = 12
    sW, sT0, sT1, sXb, sWo, sPb, sW4K = 32, 33, 34, 35, 36, 37, 38
    ACC = 0
    XD = 32
    XR = 64
    WRA = 192
    VL16, VDW, VLANE = 200, 201, 202
    T = 204
    WF = 0
    NSL = 8
    e('s_cmp_ge_u32 s2, 256')
    e('s_cbranch_scc1 oproj_end')
    stamp(k, 0)
    e(f's_load_dwordx2 s[6:7], s[0:1], {A_WS}')
    e(f'v_lshrrev_b32 v{T}, 6, v0')
    e(f'v_and_b32 v{VLANE}, 63, v0')
    e(f'v_readfirstlane_b32 s{sW}, v{T}')
    e(f'v_lshlrev_b32 v{VL16}, 4, v{VLANE}')
    e('s_bfe_u32 s28, s2, 0x20001')
    e('s_and_b32 s29, s2, 1')
    e('s_lshl_b32 s29, s29, 3')
    e('s_bfe_u32 s3, s2, 0x30003')
    e('s_add_u32 s29, s29, s3')
    e('s_lshr_b32 s30, s2, 6')
    e(f'v_lshrrev_b32 v{T + 1}, 4, v{VLANE}')
    e(f'v_and_b32 v{T + 2}, 15, v{VLANE}')
    e(f'v_lshlrev_b32 v{T + 3}, 2, v{T + 1}')
    e(f'v_xor_b32 v{T + 3}, v{T + 3}, v{T + 2}')
    e(f'v_lshlrev_b32 v{T + 3}, 4, v{T + 3}')
    e(f'v_lshl_add_u32 v{VDW}, v{T + 1}, 8, v{T + 3}')
    e(f's_lshl_b32 s{sW4K}, s{sW}, 12')
    e('s_lshl_b32 s3, s29, 2')
    e(f's_add_u32 s3, s3, s{sW}')
    e(f's_lshl_b32 s{sXb}, s3, 18')
    e(f's_lshl_b32 s{sT0}, s28, 16')
    e(f's_add_u32 s{sXb}, s{sXb}, s{sT0}')
    e(f's_add_u32 s{sXb}, s{sXb}, {WS_O}')
    e(f's_lshl_b32 s{sWo}, s30, 20')
    e(f's_lshl_b32 s{sT0}, s28, 18')
    e(f's_add_u32 s{sWo}, s{sWo}, s{sT0}')
    e(f's_add_u32 s{sWo}, s{sWo}, s{sW4K}')
    e(f's_add_u32 s{sWo}, s{sWo}, {WS_WOT}')
    e(f's_lshl_b32 s{sPb}, s28, 22')
    e(f's_lshl_b32 s{sT0}, s3, 16')
    e(f's_add_u32 s{sPb}, s{sPb}, s{sT0}')
    e(f's_lshl_b32 s{sT0}, s30, 14')
    e(f's_add_u32 s{sPb}, s{sPb}, s{sT0}')
    e(f's_add_u32 s{sPb}, s{sPb}, {WS_P}')
    e('s_waitcnt lgkmcnt(0)')
    srd(k, sWS, 6, 7, WS_SIZE)

    def w_dma(c):
        out = []
        for p in range(4):
            g = []
            if p == 0:
                g.append((1, lambda: e(f's_add_u32 m0, s{sW4K}, {(c % NSL) * 16384}')))
                g.append((1, lambda: e(f's_add_u32 s{sT0}, s{sWo}, {c * 16384}')))
            g.append((COST['dma'], lambda p=p: e(f'buffer_load_dwordx4 v{VDW}, s[{sWS}:{sWS + 3}], s{sT0} offen offset:{p * 1024} lds', ('wq', c))))
            out.append(g)
        return out

    def xreg(ks):
        return XR + (ks % XD) * 4

    def x_load(ks):
        r = xreg(ks)
        g = []
        if ks % 4 == 0:
            g.append((1, lambda: e(f's_add_u32 s{sT1}, s{sXb}, {(ks // 4) * 4096}')))
        g.append((COST['vload'], lambda: e(f'buffer_load_dwordx4 v[{r}:{r + 3}], v{VL16}, s[{sWS}:{sWS + 3}], s{sT1} offen offset:{(ks % 4) * 1024}', ('x', ks))))
        return g

    NPRE = opts.get('npre3', 4)
    for c in range(NPRE):
        for g in w_dma(c):
            for _, f in g: f()
        for ks in range(4 * c, 4 * c + 4):
            for _, f in x_load(ks): f()
        if c == 0:
            e(f'v_lshrrev_b32 v{T + 4}, 5, v{VLANE}')
            e(f'v_lshrrev_b32 v{T + 7}, 2, v{T + 2}')
            e(f'v_and_b32 v{T + 8}, 1, v{T + 1}')
            e(f'v_lshlrev_b32 v{T + 8}, 5, v{T + 8}')
            e(f'v_and_b32 v{T + 9}, 1, v{VLANE}')
            e(f'v_lshl_add_u32 v{T + 8}, v{T + 9}, 4, v{T + 8}')
            e(f'v_bfe_u32 v{T + 9}, v{VLANE}, 1, 1')
            e(f'v_lshl_add_u32 v{T + 8}, v{T + 9}, 3, v{T + 8}')
            e(f'v_lshl_add_u32 v{T + 8}, v{T + 7}, 8, v{T + 8}')
            e(f'v_lshl_add_u32 v{T + 8}, v{T + 4}, 11, v{T + 8}')
            for db in range(4):
                e(f'v_xor_b32 v{T + 9}, {db}, v{T + 7}')
                e(f'v_lshl_add_u32 v{WRA + db}, v{T + 9}, 6, v{T + 8}')
                e(f'v_add_u32 v{WRA + 4 + db}, 0x10000, v{WRA + db}')

    def w_reads(ks):
        out = []
        off = ((ks // 4) % NSL) * 16384 + (ks % 4) * 4096
        for db in range(4):
            base = WRA + (4 if off >= 65536 else 0) + db
            for t in range(2):
                r = WF + (ks % 2) * 16 + db * 4 + t * 2
                out.append(lambda r=r, base=base, t=t: e(f'ds_read_b64_tr_b16 a[{r}:{r + 1}], v{base} offset:{off % 65536 + t * 1024}', ('w', ks)))
        return out

    todo = []
    for c in range(NPRE, 16):
        first = 0 if c < NSL else 4 * (c - NSL + 1)
        todo += [(first, g) for g in w_dma(c)]
        for ks in range(4 * c, 4 * c + 4):
            todo.append((ks - XD + 1, x_load(ks)))
    RATE = opts.get('rate3', 3)
    stamp(k, 1)
    k.wait(vm=[('wq', 0)])
    e('s_barrier')
    for f in w_reads(0): f()
    k.wait(vm=[('x', 0)], lg=[('w', 0)])
    stamp(k, 2)
    for ks in range(64):
        mf = []
        for nb in range(4):
            def m(nb=nb):
                acc = ACC + nb * 16
                c = '0' if ks == 0 else vr(acc, 16)
                e(f'v_mfma_f32_32x32x16_bf16 {vr(acc, 16)}, {ar(WF + (ks % 2) * 16 + nb * 4, 4)}, {vr(xreg(ks), 4)}, {c}')
            mf.append(m)
        fx = {}
        if ks + 1 < 64:
            newc = (ks + 1) % 4 == 0
            if newc:
                fx.setdefault(0, []).append((0, lambda: k.wait(vm=[('wq', (ks + 1) // 4)]), 'wait'))
                fx.setdefault(0, []).append((1, lambda: e('s_barrier'), 'bar'))
            for i, f in enumerate(w_reads(ks + 1)):
                fx.setdefault(i // 4, []).append((1, f, 'ds'))
            fx.setdefault(3, []).append((0, lambda: k.wait(vm=[('x', ks + 1)], lg=[('w', ks + 1)]), 'wait'))
        groups = []
        while todo and len(groups) < RATE and todo[0][0] <= ks:
            groups.append(todo.pop(0)[1])
        for g, grp in zip([2, 3, 3][:len(groups)] if len(groups) < 3 else [1, 2, 3], groups):
            for it in grp[:-1]:
                fx.setdefault(g if g == 3 and len(groups) == 2 and False else g - 1, []).append((it[0], it[1], 'end'))
            fx.setdefault(g, []).append((grp[-1][0], grp[-1][1], 'dma'))
        schedule(k, mf, fx, [])
    assert not todo
    stamp(k, 3)
    for nb in range(4):
        e(f's_add_u32 s{sT0}, s{sPb}, {nb * 4096}')
        for q in range(4):
            e(f'buffer_store_dwordx4 v[{ACC + nb * 16 + 4 * q}:{ACC + nb * 16 + 4 * q + 3}], v{VL16}, s[{sWS}:{sWS + 3}], s{sT0} offen offset:{q * 1024}{opts.get("pst", " sc1")}')
    stamp(k, 4)
    if STAMP:
        e(f's_lshl_b32 s100, s{sW}, 6')
        e('v_mov_b32 v0, s100')
    stamp_flush(k, 5, sWS, 2)
    k.label('oproj_end')
    e('s_endpgm')
    return k, 'grid=(256,1,1) block=(256,1,1) lds=131072'


def gen_red(opts):
    k = Kern('red_kernel')
    e = k.e
    sWS, sX = 12, 16
    e('s_cmp_ge_u32 s2, 256')
    e('s_cbranch_scc1 red_end')
    stamp(k, 0)
    e(f's_load_dwordx2 s[6:7], s[0:1], {A_WS}')
    e(f's_load_dwordx2 s[4:5], s[0:1], {A_X}')
    e('v_and_b32 v1, 7, v0')
    e('v_lshrrev_b32 v2, 3, v0')
    e('v_lshlrev_b32 v3, 11, v2')
    e('v_lshl_add_u32 v3, v1, 4, v3')
    e('s_lshr_b32 s28, s2, 2')
    e('s_and_b32 s29, s2, 3')
    e('s_lshl_b32 s30, s28, 16')
    e('s_lshl_b32 s31, s29, 7')
    e('s_add_u32 s30, s30, s31')
    e(f's_add_u32 s30, s30, {WS_P}')
    e('s_lshl_b32 s33, s2, 13')
    e('v_lshlrev_b32 v4, 10, v1')
    e('v_lshl_add_u32 v4, v2, 5, v4')
    e('v_lshlrev_b32 v5, 6, v2')
    e('v_lshlrev_b32 v6, 7, v2')
    e('v_lshlrev_b32 v7, 10, v2')
    e('v_lshl_add_u32 v7, v1, 4, v7')
    e('s_lshl_b32 s34, s28, 15')
    e('s_add_u32 s34, s34, s31')
    e(f's_add_u32 s35, s34, {WS_H2}')
    e(f's_add_u32 s34, s34, {WS_X1}')
    e('s_waitcnt lgkmcnt(0)')
    srd(k, sWS, 6, 7, WS_SIZE)
    srd(k, sX, 4, 5, 2048 * 1024)
    PR = 16
    for sp in range(4):
        for hh in range(2):
            for q in range(2):
                r = PR + sp * 16 + hh * 8 + q * 4
                e(f'buffer_load_dwordx4 v[{r}:{r + 3}], v3, s[{sWS}:{sWS + 3}], s30 offen offset:{q * 1024 + hh * 512}', ('p', sp))
        if sp < 3:
            e('s_add_u32 s30, s30, 0x400000')
    GA = 80; XX = 96; MD = 104
    e(f's_mov_b32 s36, {WS_GA}')
    e(f's_mov_b32 s37, {WS_MOD2}')
    for j in range(4):
        e(f'buffer_load_dwordx4 v[{GA + 4 * j}:{GA + 4 * j + 3}], v5, s[{sWS}:{sWS + 3}], s36 offen offset:{16 * j}', 'g')
    for j in range(2):
        e(f'buffer_load_dwordx4 v[{XX + 4 * j}:{XX + 4 * j + 3}], v4, s[{sX}:{sX + 3}], s33 offen offset:{16 * j}', 'g')
    for j in range(8):
        e(f'buffer_load_dwordx4 v[{MD + 4 * j}:{MD + 4 * j + 3}], v6, s[{sWS}:{sWS + 3}], s37 offen offset:{16 * j}', 'md')
    stamp(k, 1)
    for sp in range(1, 4):
        k.wait(vm=[('p', sp), ('p', 0)])
        for i in range(16):
            e(f'v_add_f32 v{PR + i}, v{PR + i}, v{PR + sp * 16 + i}')
    k.wait(vm=['g'])
    U = 32
    for i in range(16):
        rbf(k, PR + i, PR + i)
    for i in range(16):
        e(f'v_mul_f32 v{PR + i}, v{PR + i}, v{GA + i}')
    for i in range(16):
        rbf(k, PR + i, PR + i)
    for i in range(16):
        if i % 2 == 0:
            e(f'v_lshlrev_b32 v{U + i}, 16, v{XX + i // 2}')
        else:
            e(f'v_and_b32 v{U + i}, 0xffff0000, v{XX + i // 2}')
    for i in range(16):
        e(f'v_add_f32 v{PR + i}, v{PR + i}, v{U + i}')
    for i in range(8):
        e(f'v_cvt_pk_bf16_f32 v{U + i}, v{PR + 2 * i}, v{PR + 2 * i + 1}')
    for hh in range(2):
        e(f'buffer_store_dwordx4 v[{U + 4 * hh}:{U + 4 * hh + 3}], v7, s[{sWS}:{sWS + 3}], s34 offen offset:{512 * hh}')
    for i in range(16):
        rbf(k, PR + i, PR + i)
    A, B, C2, D2 = 48, 49, 50, 51
    e(f'v_add_f32 v{A}, v{PR}, v{PR + 1}')
    e(f'v_mul_f32 v{B}, v{PR}, v{PR}')
    e(f'v_fmac_f32 v{B}, v{PR + 1}, v{PR + 1}')
    for i in range(2, 16):
        e(f'v_add_f32 v{A}, v{A}, v{PR + i}')
        e(f'v_fmac_f32 v{B}, v{PR + i}, v{PR + i}')
    e(f'v_add_f32_dpp v{C2}, v{A}, v{A} row_ror:8 row_mask:0xf bank_mask:0xf')
    e(f'v_add_f32_dpp v{D2}, v{B}, v{B} row_ror:8 row_mask:0xf bank_mask:0xf')
    for sw in ('v_permlane16_swap_b32', 'v_permlane32_swap_b32'):
        e(f'v_mov_b32 v{A}, v{C2}')
        e(f'v_mov_b32 v{B}, v{D2}')
        e(f'{sw} v{A}, v{C2}')
        e(f'{sw} v{B}, v{D2}')
        e(f'v_add_f32 v{C2}, v{A}, v{C2}')
        e(f'v_add_f32 v{D2}, v{B}, v{D2}')
    e('v_lshrrev_b32 v8, 6, v0')
    e('v_lshlrev_b32 v9, 5, v1')
    e('v_lshl_add_u32 v8, v8, 3, v9')
    e(f'ds_write_b64 v8, v[{C2}:{D2}]')
    e('s_waitcnt lgkmcnt(0)')
    e('s_barrier')
    e('ds_read_b128 v[52:55], v9')
    e('ds_read_b128 v[56:59], v9 offset:16')
    e('s_waitcnt lgkmcnt(0)')
    e('v_add_f32 v52, v52, v54')
    e('v_add_f32 v53, v53, v55')
    e('v_add_f32 v56, v56, v58')
    e('v_add_f32 v57, v57, v59')
    e('v_add_f32 v52, v52, v56')
    e('v_add_f32 v53, v53, v57')
    e(f's_mov_b32 s3, {f32(1.0 / 512)}')
    e('v_mul_f32 v52, s3, v52')
    e('v_mul_f32 v53, s3, v53')
    e('v_fma_f32 v53, -v52, v52, v53')
    e('v_max_f32 v53, 0, v53')
    rbf(k, 52, 52)
    rbf(k, 53, 53)
    e(f'v_add_f32 v53, {f32(1e-5)}, v53')
    rbf(k, 53, 53)
    e('v_sqrt_f32 v53, v53')
    rbf(k, 53, 53)
    e('v_rcp_f32 v53, v53')
    k.wait(vm=['md'])
    for i in range(16):
        e(f'v_sub_f32 v{PR + i}, v{PR + i}, v52')
    for i in range(16):
        rbf(k, PR + i, PR + i)
    for i in range(16):
        e(f'v_mul_f32 v{PR + i}, v{PR + i}, v53')
    for i in range(16):
        rbf(k, PR + i, PR + i)
    for i in range(16):
        e(f'v_mul_f32 v{PR + i}, v{PR + i}, v{MD + (i // 8) * 16 + i % 8}')
    for i in range(16):
        rbf(k, PR + i, PR + i)
    for i in range(16):
        e(f'v_add_f32 v{PR + i}, v{PR + i}, v{MD + (i // 8) * 16 + 8 + i % 8}')
    for i in range(8):
        e(f'v_cvt_pk_bf16_f32 v{60 + i}, v{PR + 2 * i}, v{PR + 2 * i + 1}')
    for hh in range(2):
        e(f'buffer_store_dwordx4 v[{60 + 4 * hh}:{63 + 4 * hh}], v7, s[{sWS}:{sWS + 3}], s35 offen offset:{512 * hh}')
    stamp(k, 2)
    stamp_flush(k, 3, sWS, 3)
    k.label('red_end')
    e('s_endpgm')
    return k, 'grid=(256,1,1) block=(256,1,1) lds=512'


def run_until(gen, tag):
    for t in gen:
        if t == tag:
            return
    raise RuntimeError('phase tag not reached: ' + tag)


def gen_tail(name, phases, opts, kidx, k=None):
    mega = k is not None
    wa = ' sc1' if mega else ''
    if not mega:
        k = Kern(name)
    e = k.e
    if not mega:
        e('s_cmp_ge_u32 s2, 256')
        e(f's_cbranch_scc1 {name}_end')
    if 'B' in phases:
        if opts.get('bbal', 1):
            e('s_and_b32 s50, s2, 3')
            e('s_mul_i32 s50, s50, 28')
            e('s_lshr_b32 s3, s2, 3')
            e('s_add_u32 s50, s50, s3')
            e('s_lshr_b32 s51, s50, 3')
            e('s_cmp_ge_u32 s3, 28')
            e('s_cselect_b32 s51, 14, s51')
            e('s_and_b32 s50, s50, 7')
            e('s_bfe_u32 s3, s2, 0x10002')
            e('s_lshl_b32 s3, s3, 3')
            e('s_add_u32 s50, s50, s3')
        else:
            e('s_bfe_u32 s51, s2, 0x20001')
            e('s_lshr_b32 s3, s2, 6')
            e('s_lshl_b32 s3, s3, 2')
            e('s_add_u32 s51, s51, s3')
            e('s_and_b32 s50, s2, 1')
            e('s_lshl_b32 s50, s50, 3')
            e('s_bfe_u32 s3, s2, 0x30003')
            e('s_add_u32 s50, s50, s3')
        if phases == 'B':
            e('s_cmp_ge_u32 s51, 14')
            e(f's_cbranch_scc1 {name}_end')
    if mega:
        signal(k, 244, 46, 0)
        stamp(k, 2)
        for f in early_c(k, opts.get('nwa', 15), 'wo', wa): f()
    else:
        stamp(k, 0)
        e(f's_load_dwordx2 s[6:7], s[0:1], {A_WS}')
        if 'A' in phases:
            e(f's_load_dwordx2 s[60:61], s[0:1], {A_X}')
        if 'B' in phases:
            e(f's_load_dwordx4 s[56:59], s[0:1], {A_W1}')
        if 'C' in phases:
            e(f's_load_dwordx2 s[62:63], s[0:1], {A_OUT}')
        e('v_lshrrev_b32 v1, 6, v0')
        e(f'v_readfirstlane_b32 s{sWV_T}, v1')
    keep = 'A' in phases and 'C' in phases
    first = not mega
    pending_flag = False
    sb = 3 if mega else 1
    for pi, ph in enumerate(phases):
        dep = pi > 0 or mega
        out_flag = pi + 1 < len(phases)
        if ph == 'B' and len(phases) > 1:
            if first:
                e('s_waitcnt lgkmcnt(0)')
                srd(k, sWS_T, 6, 7, WS_SIZE)
                first = False
            e('s_cmp_ge_u32 s51, 14')
            e(f's_cbranch_scc1 {name}_skipb')
        if ph == 'B':
            g = phase_ffn1(k, opts, dep, out_flag, sb, early_c(k, 13, 'w2', wa) if out_flag else None)
        else:
            g = phase_gemm64(k, 'wo' if ph == 'A' else 'w2', opts, dep, out_flag, keep, sb, early_b(k) if out_flag else None)
        run_until(g, 'setup')
        if first:
            e('s_waitcnt lgkmcnt(0)')
            srd(k, sWS_T, 6, 7, WS_SIZE)
            first = False
        if pending_flag:
            signal(k, 244 if ph == 'C' else 252, 46, 0, WGF)
        run_until(g, 'prefetched')
        run_until(g, 'done')
        pending_flag = out_flag
        if ph == 'B' and len(phases) > 1:
            if pi + 1 < len(phases):
                e(f's_branch {name}_joinb')
                k.label(f'{name}_skipb')
                if pi > 0:
                    signal(k, 252, 46, 0, WGF)
                for f in early_c(k, 13, 'w2', wa): f()
                e(f's_mov_b32 s46, {WS_FDUMMY}')
                k.label(f'{name}_joinb')
            else:
                e(f's_branch {name}_fin')
                k.label(f'{name}_skipb')
                if pi > 0:
                    signal(k, 252, 46, 0, WGF)
                k.label(f'{name}_fin')
        sb += 5 if dep else 4
    if STAMP:
        e(f's_lshl_b32 s100, s{sWV_T}, 6')
        e('v_mov_b32 v0, s100')
    stamp_flush(k, sb, sWS_T, kidx)
    if mega:
        return
    k.label(f'{name}_end')
    e('s_endpgm')
    return k, 'grid=(256,1,1) block=(256,1,1) lds=135168'


def build(opts=None):
    global STAMP, WGF
    opts = opts or {}
    WGF = opts.get('wgf', 1)
    STAMP = opts.get('stamp', False)
    for kk in COST:
        if 'c_' + kk in opts: COST[kk] = opts['c_' + kk]
    ks = [gen_prep(opts), gen_attn(opts, (lambda k: gen_tail('tail', opts['mega'], opts, 1, k)) if opts.get('mega') else None)]
    if opts.get('mega'):
        for i, ph in enumerate([p for p in opts.get('rest', '').split('|') if p]):
            ks.append(gen_tail('tail' + ph.lower() + '_kernel', ph, dict(opts, mega=None), 2 + i))
    elif opts.get('sk', 0):
        ks += [gen_oproj_sk(opts), gen_red(opts)]
        for i, ph in enumerate(opts.get('fuse', 'B|C').split('|')):
            ks.append(gen_tail('tail' + ph.lower() + '_kernel', ph, opts, 4 + i))
    else:
        for i, ph in enumerate(opts.get('fuse', 'A|B|C').split('|')):
            ks.append(gen_tail('tail' + ph.lower() + '_kernel', ph, opts, 2 + i))
    hdr = open('adaLN_cond__mha_block_cached__glu_gated_swiglu__prompt.s.ref').read().split('\n')
    out = []
    for l in hdr:
        if l.startswith('; Override') or l.startswith('; grid=') or '@launch' in l or not l.startswith(';'):
            if not l.startswith(';'):
                break
            continue
        out.append(l)
    out += """; Pipeline (generated by a python script; all matrix products use v_mfma_f32_32x32x16_bf16, f32 accumulation):
;   prep : mod = silu(c) @ w_mod, xhat = layernorm(x) (fp16, MFMA operand order), clears the hand-off flags
;   attn : 256 resident workgroups (one per CU). Per workgroup one (head, 256 query rows): Q projection, flash attention on
;          S^T = K Q^T with a running reference maximum (raised to the true running maximum whenever a block sum exceeds a
;          bound); then phase A: x1 = x + ga * (O @ wo) tile + row sums, phase B: layernorm + modulation + gate/up + SwiGLU
;          tile, phase C: out = x1 + gb * (hh @ w2) tile. Phases hand data over with write-through (sc1) stores, drained
;          before a flag word is set; consumers poll the flags and read the data with sc1 loads.""".split('\n')
    for k, launch in ks:
        for _ in range(1 + opts.get('dup_' + k.name[:5], 0)):
            out.append(f'; @launch kernel={k.name} {launch}')
    out.append('.amdgcn_target "amdgcn-amd-amdhsa--gfx950"')
    out.append('.text')
    for k, _ in ks:
        n = k.fix_hazards(verbose=opts.get('verbose', False))
        print(f'{k.name}: {len(k.ins)} instr, {n} hazard nop states, regs {k.max_regs()}', file=sys.stderr)
        out.append(f'.globl {k.name}')
        out.append('.p2align 8')
        out.append(f'.type {k.name},@function')
        out.append(f'{k.name}:')
        out.append(k.text())
    out.append('code_end:')
    errs = 0
    errs += ks[0][0].verify_path({})
    errs += ks[0][0].verify_path({'prep_ln': 1})
    errs += ks[1][0].verify_path({'attn_tail': [False, False, False, True], 'attn_copy': [True, True, True, True], 'attn_copy_st': [False, True], 'attn_copy_ret': [False, False, True, True], 'attn_copy_flag': [False, False, True, True], 'attn_fc_go': 1, 'pa_loop': 1, 'pa_go': [False, True], 'pb_go': [False, True], 'pc_go': 1})
    for k, _ in ks[2:]:
        errs += k.verify_path({'pa_loop': 2, 'pb_go': [False, True], 'pc_go': [False, True]})
        errs += k.verify_path({'pa_loop': 2, 'pb_go': 1, 'pc_go': 1})
        errs += k.verify_path({'pa_loop': 2, 'pb_go': 1, 'pc_go': 1, k.name + '_skipb': 1})
    assert errs == 0 or 'qx' in opts or 'x' in opts, errs
    out.append('.section .rodata,"a"')
    for k, _ in ks:
        out.append('.p2align 6')
        out.append(descriptor(k, 264 if k.name.startswith('tail') else 0))
    return '\n'.join(out)


if __name__ == '__main__':
    dst = sys.argv[1] if len(sys.argv) > 1 else 'adaLN_cond__mha_block_cached__glu_gated_swiglu__prompt.s'
    opts = {'mega': 'ABC'}
    for a in sys.argv[2:]:
        kk, _, v = a.partition('=')
        opts[kk] = eval(v) if v else True
    open(dst, 'w').write(build(opts))
```

```python
import sys, struct, math
from asmlib import *

A_X, A_K, A_V, A_WQ, A_WO, A_BX, A_W1, A_W3, A_W2, A_C, A_WMOD, A_OUT, A_DBG, A_WS = [8 * i for i in range(14)]
WS_MOD1 = 0
WS_GA = 4096
WS_MOD2 = 8192
WS_GB = 8192 + 4096
WS_FA = 0x4000
WS_FB = 0x5000
WS_FO = 0x6000
WS_FC = 0x7000
WS_FDUMMY = 0x8000
WS_FP = 0x9000
WS_EPOCH = 0xA000
sTAG = 101
WS_XHAT = 0x10000
WS_O = 0x400000
WS_X1 = 0x1400000
WS_ST = 0x1600000
WS_HH = 0x1800000
WS_WOT = 0x2000000
WS_W2T = 0x2400000
WS_H2 = 0x2600000
WS_P = 0x3000000
WS_SIZE = 0x4000000

LOG2E = 1.4426950408889634


def f32(x):
    return '0x%08x' % struct.unpack('<I', struct.pack('<f', x))[0]


def srd(k, d, lo, hi, nbytes):
    k.e(f's_mov_b32 s{d}, s{lo}')
    k.e(f's_and_b32 s{d + 1}, s{hi}, 0xffff')
    k.e(f's_mov_b32 s{d + 2}, {nbytes}')
    k.e(f's_mov_b32 s{d + 3}, 0x00020000')


WS_STAMP = 0x1F00000
STAMP = False


def stamp(k, idx):
    if not STAMP or idx > 15 or idx < 0:
        return
    k.e('s_waitcnt lgkmcnt(0)')
    k.e(f's_memtime s[{64 + 2 * idx}:{65 + 2 * idx}]')
    if idx == 0:
        k.e('s_memrealtime s[96:97]')
    k.e('s_waitcnt lgkmcnt(0)')


def stamp_flush(k, n, sws, kidx):
    if not STAMP:
        return
    e = k.e
    n = min(n, 15)
    e('s_waitcnt vmcnt(0) lgkmcnt(0)')
    stamp(k, n)
    e('s_memrealtime s[98:99]')
    e('s_waitcnt lgkmcnt(0)')
    lab = k.newlabel('nost')
    e('v_readfirstlane_b32 s100, v0')
    e('s_cmp_lg_u32 s100, 0')
    e(f's_cbranch_scc1 {lab}')
    e('s_lshl_b32 s100, s2, 7')
    e(f's_add_u32 s100, s100, {WS_STAMP + kidx * 65536}')
    e('v_mov_b32 v1, 0')
    for i in range(n + 1):
        e(f'v_mov_b32 v2, s{64 + 2 * i}')
        e(f'buffer_store_dword v2, v1, s[{sws}:{sws + 3}], s100 offen offset:{4 * i}')
    e('v_mov_b32 v2, s96')
    e(f'buffer_store_dword v2, v1, s[{sws}:{sws + 3}], s100 offen offset:120')
    e('v_mov_b32 v2, s98')
    e(f'buffer_store_dword v2, v1, s[{sws}:{sws + 3}], s100 offen offset:124')
    k.label(lab)


def code_touch(k, v, sp, sidx, vlane, start, end, back=False):
    e = k.e
    lab = k.newlabel('pc')
    e(f's_getpc_b64 s[{sp}:{sp + 1}]')
    k.label(lab)
    if back:
        e(f's_sub_u32 s{sp}, s{sp}, {lab}-{start}')
        e(f's_subb_u32 s{sp + 1}, s{sp + 1}, 0')
    else:
        e(f's_add_u32 s{sp}, s{sp}, {start}-{lab}')
        e(f's_addc_u32 s{sp + 1}, s{sp + 1}, 0')
    e(f's_lshl_b32 s{sidx}, s{sidx}, 13')
    e(f'v_lshlrev_b32 v{v}, 7, v{vlane}')
    e(f'v_add_u32 v{v}, s{sidx}, v{v}')
    e(f'v_min_u32 v{v}, {end}-{start}-4, v{v}')
    e(f'v_mov_b32 v{v + 1}, s{sp + 1}')
    e(f'v_add_co_u32 v{v}, vcc, s{sp}, v{v}')
    e(f'v_addc_co_u32 v{v + 1}, vcc, 0, v{v + 1}, vcc')
    e(f'global_load_dword v{v + 2}, v[{v}:{v + 1}], off', 'code')


def rbf(k, d, s):
    k.e(f'v_cvt_pk_bf16_f32 v{d}, 0, v{s}')


def allreduce16(k, v, t):
    for mod in ('quad_perm:[1,0,3,2]', 'quad_perm:[2,3,0,1]', 'row_half_mirror', 'row_mirror'):
        k.e(f'v_add_f32_dpp v{t}, v{v}, v{v} {mod} row_mask:0xf bank_mask:0xf')
        v, t = t, v


def gen_prep(opts, k=None):
    ONE = k is not None
    SC = ' sc1' if ONE else ''
    if not ONE:
        k = Kern('prep_kernel')
    e = k.e
    END = 's_branch prep_end' if ONE else 's_endpgm'
    NMOD, NLN = 96, 128
    e(f's_load_dwordx2 s[4:5], s[0:1], {A_WS}')
    if ONE:
        e(f's_mov_b32 s46, {WS_FDUMMY}')
    e(f's_cmp_ge_u32 s2, {NMOD + NLN}')
    e('s_cbranch_scc1 prep_none' if ONE else 's_cbranch_scc1 prep_end')
    if not ONE:
        stamp(k, 0)
    e(f's_load_dwordx2 s[6:7], s[0:1], {A_X}')
    e(f's_load_dwordx4 s[20:23], s[0:1], {A_C}')
    e(f's_load_dwordx4 s[36:39], s[0:1], {A_K}')
    e(f's_load_dwordx2 s[40:41], s[0:1], {A_WQ}')

    def prefetch(ln=False, part=3):
        if opts.get('cpf', 1) and part & 1:
            lab = k.newlabel('nocpf')
            e('v_lshrrev_b32 v72, 6, v0')
            e('v_and_b32 v73, 63, v0')
            e('v_readfirstlane_b32 s42, v72')
            e('s_lshr_b32 s43, s2, 3')
            e('s_lshl_b32 s43, s43, 2')
            e('s_add_u32 s43, s43, s42')
            e('s_cmp_ge_u32 s43, (code_end-%s+8191)/8192' % ('attn_main' if ONE else 'attn_kernel'))
            e(f's_cbranch_scc1 {lab}')
            code_touch(k, 74, 44, 43, 73, 'attn_main' if ONE else 'attn_kernel', 'code_end')
            k.vmq.pop()
            k.label(lab)
        if ONE and not opts.get('pf1o', 0):
            return
        if opts.get('pf1', 2) == 2:
            if ln and part & 2:
                e('v_lshrrev_b32 v72, 6, v0')
                e('v_and_b32 v73, 63, v0')
                e('v_readfirstlane_b32 s42, v72')
                e('v_lshrrev_b32 v77, 3, v73')
                e('v_and_b32 v78, 7, v73')
                e('v_lshlrev_b32 v77, 13, v77')
                e('v_lshl_add_u32 v77, v78, 7, v77')
                e(f's_sub_u32 s43, s2, {NMOD}')
                e('s_lshr_b32 s43, s43, 3')
                e('s_lshl_b32 s43, s43, 2')
                e('s_add_u32 s43, s43, s42')
                e('s_lshl_b32 s43, s43, 16')
                e('s_and_b32 s44, s2, 7')
                e('s_lshl_b32 s44, s44, 10')
                e('s_add_u32 s43, s43, s44')
                srd(k, 48, 40, 41, 512 * 8192)
                e('buffer_load_dword v78, v77, s[48:51], s43 offen', 'pf')
                if opts.get('pf64', 0):
                    e('buffer_load_dword v79, v77, s[48:51], s43 offen offset:64', 'pf')
            return
        if not opts.get('pf1', 2):
            return
        e('v_lshrrev_b32 v72, 6, v0')
        e('v_and_b32 v73, 63, v0')
        e('v_readfirstlane_b32 s42, v72')
        e('v_lshrrev_b32 v74, 4, v73')
        e('v_and_b32 v75, 15, v73')
        e('v_lshlrev_b32 v74, 13, v74')
        e('v_lshl_add_u32 v74, v75, 6, v74')
        e('v_lshlrev_b32 v73, 6, v73')
        e('s_lshr_b32 s43, s2, 3')
        e('s_lshl_b32 s43, s43, 2')
        e('s_add_u32 s43, s43, s42')
        e('s_and_b32 s44, s2, 7')
        srd(k, 48, 40, 41, 512 * 8192)
        e('s_lshl_b32 s45, s43, 15')
        e('s_lshl_b32 s46, s44, 10')
        e('s_add_u32 s45, s45, s46')
        e('buffer_load_dword v76, v74, s[48:51], s45 offen', 'pf')
        e(f's_add_u32 s45, s45, {112 * 32768}')
        e('buffer_load_dword v77, v74, s[48:51], s45 offen', 'pf')
        e('s_and_b32 s45, s43, 63')
        e('s_lshr_b32 s46, s45, 4')
        e('s_lshl_b32 s47, s44, 2')
        e('s_add_u32 s46, s46, s47')
        e('s_lshl_b32 s46, s46, 19')
        e('s_and_b32 s45, s45, 15')
        e('s_lshl_b32 s45, s45, 12')
        e('s_add_u32 s45, s45, s46')
        srd(k, 48, 36, 37, 32 * 524288)
        e('buffer_load_dword v78, v73, s[48:51], s45 offen', 'pf')
        srd(k, 48, 38, 39, 32 * 524288)
        e('buffer_load_dword v79, v73, s[48:51], s45 offen', 'pf')
    e(f's_cmp_ge_u32 s2, {NMOD}')
    e('s_cbranch_scc1 prep_ln')
    e('v_and_b32 v1, 3, v0')
    e('v_lshrrev_b32 v2, 2, v0')
    e('s_mov_b32 s3, 49152')
    e('v_mul_lo_u32 v3, v2, s3')
    e('v_lshl_add_u32 v3, v1, 4, v3')
    if opts.get('mrm', 1):
        e('s_and_b32 s34, s2, 0x70')
        e('s_and_b32 s3, s2, 7')
        e('s_lshl_b32 s3, s3, 1')
        e('s_add_u32 s34, s34, s3')
        e('s_bfe_u32 s3, s2, 0x10003')
        e('s_add_u32 s34, s34, s3')
    else:
        e('s_mov_b32 s34, s2')
    e('s_lshl_b32 s3, s34, 6')
    e('v_add_u32 v3, s3, v3')
    if ONE:
        e('s_lshl_b32 s35, s34, 2')
        e(f's_add_u32 s35, s35, {WS_FP}')
    e('v_lshlrev_b32 v4, 4, v2')
    e('s_waitcnt lgkmcnt(0)')
    if ONE: e(f's_load_dword s{sTAG}, s[4:5], {WS_EPOCH}')
    if not ONE: stamp(k, 1)
    srd(k, 8, 20, 21, 1024)
    srd(k, 12, 22, 23, 512 * 6144)
    srd(k, 16, 4, 5, WS_SIZE)
    e('buffer_load_dwordx4 v[8:11], v4, s[8:11], 0 offen', 'c')
    for i in range(8):
        e(f's_mov_b32 s{24 + i}, {i * 6144}')
        e(f'buffer_load_dwordx4 v[{16 + 4 * i}:{19 + 4 * i}], v3, s[12:15], s{24 + i} offen', ('w', i))
    prefetch()
    k.wait(vm=['c'])
    if not ONE: stamp(k, 2)
    e(f's_mov_b32 s3, {f32(-LOG2E)}')
    for i in range(8):
        src = 8 + i // 2
        if i % 2 == 0:
            e(f'v_lshlrev_b32 v{48 + i}, 16, v{src}')
        else:
            e(f'v_and_b32 v{48 + i}, 0xffff0000, v{src}')
    for i in range(8):
        e(f'v_mul_f32 v{56 + i}, s3, v{48 + i}')
    for i in range(8):
        e(f'v_exp_f32 v{56 + i}, v{56 + i}')
    for i in range(8):
        e(f'v_add_f32 v{56 + i}, 1.0, v{56 + i}')
    for i in range(8):
        e(f'v_rcp_f32 v{56 + i}, v{56 + i}')
    for i in range(8):
        e(f'v_mul_f32 v{48 + i}, v{48 + i}, v{56 + i}')
    for i in range(8):
        rbf(k, 48 + i, 48 + i)
    for i in range(8):
        k.wait(vm=[('w', i)])
        for p in range(4):
            w = 16 + 4 * i + p
            e(f'v_lshlrev_b32 v56, 16, v{w}')
            e(f'v_and_b32 v57, 0xffff0000, v{w}')
            if i == 0:
                e(f'v_mul_f32 v{64 + 2 * p}, v48, v56')
                e(f'v_mul_f32 v{65 + 2 * p}, v48, v57')
            else:
                e(f'v_fmac_f32 v{64 + 2 * p}, v{48 + i}, v56')
                e(f'v_fmac_f32 v{65 + 2 * p}, v{48 + i}, v57')
    if not ONE: stamp(k, 3)
    e('v_lshlrev_b32 v5, 5, v0')
    e('ds_write_b128 v5, v[64:67]')
    e('ds_write_b128 v5, v[68:71] offset:16')
    e('s_waitcnt lgkmcnt(0)')
    e('s_barrier')
    e('v_and_b32 v6, 31, v0')
    e('v_lshrrev_b32 v7, 5, v0')
    e('v_lshlrev_b32 v5, 10, v7')
    e('v_lshl_add_u32 v5, v6, 2, v5')
    for i in range(8):
        e(f'ds_read_b32 v{16 + i}, v5 offset:{i * 128}')
    e('s_waitcnt lgkmcnt(0)')
    for i in range(1, 8):
        e(f'v_add_f32 v16, v16, v{16 + i}')
    e('v_lshlrev_b32 v5, 2, v0')
    e('ds_write_b32 v5, v16 offset:8192')
    e('s_waitcnt lgkmcnt(0)')
    e('s_barrier')
    if ONE:
        e('s_mov_b32 s46, s35')
    e('v_cmp_gt_u32 vcc, 32, v0')
    e('s_and_saveexec_b64 s[32:33], vcc')
    e('s_cbranch_execz prep_end')
    for i in range(8):
        e(f'ds_read_b32 v{16 + i}, v5 offset:{8192 + i * 128}')
    e('s_waitcnt lgkmcnt(0)')
    for i in range(1, 8):
        e(f'v_add_f32 v16, v16, v{16 + i}')
    rbf(k, 16, 16)
    e('v_add_f32 v17, 1.0, v16')
    rbf(k, 17, 17)
    e('s_lshr_b32 s24, s34, 4')
    e('s_and_b32 s25, s34, 15')
    e('s_lshl_b32 s25, s25, 5')
    e('v_add_u32 v6, s25, v0')
    e('s_cmp_ge_u32 s24, 3')
    e('s_cselect_b32 s26, 8192, 0')
    e('s_cselect_b32 s27, 3, 0')
    e('s_sub_u32 s24, s24, s27')
    e('v_lshrrev_b32 v7, 3, v6')
    e('v_lshlrev_b32 v7, 6, v7')
    e('v_and_b32 v8, 7, v6')
    e('v_lshl_add_u32 v7, v8, 2, v7')
    e('v_lshlrev_b32 v8, 2, v6')
    if not ONE: stamp_flush(k, 4, 16, 0)
    e('s_cmp_eq_u32 s24, 2')
    e('s_cbranch_scc1 prep_gate')
    e('s_cmp_eq_u32 s24, 1')
    e('s_cbranch_scc1 prep_scale')
    e('buffer_store_dword v16, v7, s[16:19], s26 offen offset:32' + SC)
    e(END)
    k.label('prep_scale')
    e('buffer_store_dword v17, v7, s[16:19], s26 offen' + SC)
    e(END)
    k.label('prep_gate')
    e('s_add_u32 s26, s26, 4096')
    e('buffer_store_dword v16, v8, s[16:19], s26 offen' + SC)
    e(END)
    k.label('prep_ln')
    e(f's_sub_u32 s3, s2, {NMOD}')
    e('s_lshl_b32 s3, s3, 4')
    e('v_lshrrev_b32 v1, 4, v0')
    e('v_add_u32 v1, s3, v1')
    e('v_and_b32 v2, 15, v0')
    e('v_lshlrev_b32 v3, 10, v1')
    e('v_lshl_add_u32 v3, v2, 4, v3')
    e('s_waitcnt lgkmcnt(0)')
    if ONE: e(f's_load_dword s{sTAG}, s[4:5], {WS_EPOCH}')
    if not ONE: stamp(k, 1)
    srd(k, 8, 6, 7, 2048 * 1024)
    srd(k, 16, 4, 5, WS_SIZE)
    for j in range(4):
        e(f'buffer_load_dwordx4 v[{8 + 4 * j}:{11 + 4 * j}], v3, s[8:11], 0 offen offset:{256 * j}', ('x', j))
    PFP = opts.get('pfp', 0)
    prefetch(True, 3 if PFP == 0 else 1)
    if (len(opts.get('fuse', 'A|B|C').split('|')) < 3 or opts.get('mega')) and not ONE:
        e(f's_sub_u32 s43, s2, {NMOD}')
        e('s_cmp_ge_u32 s43, 16')
        e('s_cbranch_scc1 prep_nofl')
        e('s_lshl_b32 s43, s43, 10')
        e(f's_add_u32 s43, s43, {WS_FA}')
        e('v_lshlrev_b32 v72, 2, v0')
        e('v_mov_b32 v73, 0')
        e('buffer_store_dword v73, v72, s[16:19], s43 offen')
        k.vmq.pop()
        k.label('prep_nofl')
    e('v_lshrrev_b32 v4, 5, v1')
    e('v_lshlrev_b32 v4, 15, v4')
    e('v_lshrrev_b32 v5, 1, v2')
    e('v_lshl_add_u32 v4, v5, 10, v4')
    e('v_and_b32 v5, 1, v2')
    e('v_lshl_add_u32 v4, v5, 9, v4')
    e('v_and_b32 v5, 31, v1')
    e('v_lshl_add_u32 v4, v5, 4, v4')
    X = 32
    for j in range(4):
        k.wait(vm=[('x', j)])
        for p in range(4):
            e(f'v_lshlrev_b32 v{X + 8 * j + 2 * p}, 16, v{8 + 4 * j + p}')
            e(f'v_and_b32 v{X + 8 * j + 2 * p + 1}, 0xffff0000, v{8 + 4 * j + p}')
    if not ONE: stamp(k, 2)
    if PFP == 1:
        prefetch(True, 2)
    e(f'v_add_f32 v24, v{X}, v{X + 1}')
    e(f'v_add_f32 v25, v{X + 2}, v{X + 3}')
    for i in range(4, 32):
        e(f'v_add_f32 v{24 + i % 2}, v{24 + i % 2}, v{X + i}')
    e('v_add_f32 v24, v24, v25')
    allreduce16(k, 24, 25)
    e(f's_mov_b32 s3, {f32(1.0 / 512)}')
    e('v_mul_f32 v24, s3, v24')
    for i in range(32):
        e(f'v_sub_f32 v{64 + i % 4}, v{X + i}, v24')
        if i < 2:
            e(f'v_mul_f32 v{26 + i}, v{64 + i % 4}, v{64 + i % 4}')
        else:
            e(f'v_fmac_f32 v{26 + i % 2}, v{64 + i % 4}, v{64 + i % 4}')
    e('v_add_f32 v26, v26, v27')
    allreduce16(k, 26, 27)
    e('v_mul_f32 v26, s3, v26')
    rbf(k, 24, 24)
    rbf(k, 26, 26)
    e(f'v_add_f32 v26, {f32(1e-5)}, v26')
    rbf(k, 26, 26)
    e('v_sqrt_f32 v26, v26')
    rbf(k, 26, 26)
    e('v_rcp_f32 v26, v26')
    e(f's_mov_b32 s24, {WS_XHAT}')
    for j in range(4):
        for i in range(8):
            r = X + 8 * j + i
            e(f'v_sub_f32 v{r}, v{r}, v24')
        for i in range(8):
            r = X + 8 * j + i
            rbf(k, r, r)
        for i in range(8):
            r = X + 8 * j + i
            e(f'v_mul_f32 v{r}, v{r}, v26')
        for i in range(8):
            r = X + 8 * j + i
            rbf(k, r, r)
        for p in range(4):
            r = X + 8 * j + 2 * p
            e(f'v_cvt_pkrtz_f16_f32 v{8 + 4 * j + p}, v{r}, v{r + 1}')
        e(f'buffer_store_dwordx4 v[{8 + 4 * j}:{11 + 4 * j}], v4, s[16:19], s24 offen{SC}')
        if j < 3:
            e(f's_add_u32 s24, s24, 8192')
    if PFP == 2:
        prefetch(True, 2)
    if not ONE: stamp(k, 3)
    if not ONE: stamp_flush(k, 4, 16, 0)
    if ONE:
        e(f's_sub_u32 s46, s2, {NMOD}')
        e('s_lshl_b32 s46, s46, 2')
        e(f's_add_u32 s46, s46, {WS_FP + 512}')
        e('s_branch prep_end')
        k.label('prep_none')
        e('s_waitcnt lgkmcnt(0)')
        e(f's_load_dword s{sTAG}, s[4:5], {WS_EPOCH}')
    k.label('prep_end')
    if ONE:
        e('s_mov_b64 exec, -1')
        return
    e('s_endpgm')
    return k, f'grid=({NMOD + NLN},1,1) block=(256,1,1) lds=9216'


COST = {'exp': 2, 'valu': 1, 'ds': 1, 'dma': 2.5, 'salu': 1, 'vload': 2.5}
GAPCAP = 6
ORDER = {'wait': 0, 'bar': 1, 'dma': 2, 'ds': 3, 'end': 9}


def schedule(k, mfmas, fixed, stream, last_gap=None, cap=GAPCAP, caps=None):
    n = len(mfmas)
    if last_gap is None:
        last_gap = n - 1
    spare = []
    for g in range(n):
        c = sum(x[0] for x in fixed.get(g, []))
        cp = caps.get(g, cap) if caps else cap
        spare.append(max(cp - c, 0) if g <= last_gap else 0)
    tot_spare = sum(spare)
    tot = sum(x[0] for x in stream)
    si = 0
    done = 0.0
    cum = 0
    lastg = max([g for g in range(n) if spare[g] > 0] or [n - 1])
    for g in range(n):
        mfmas[g]()
        fx = sorted(fixed.get(g, []), key=lambda x: ORDER[x[2]])
        cum += spare[g]
        target = tot * cum / max(tot_spare, 1)
        mine = []
        while si < len(stream) and ((spare[g] > 0 and done + stream[si][0] * 0.5 <= target) or g >= lastg):
            mine.append(stream[si]); done += stream[si][0]; si += 1
        for x in fx:
            if x[2] != 'end': x[1]()
        for x in mine: x[1]()
        for x in fx:
            if x[2] == 'end': x[1]()
    assert si == len(stream)


def gemm256(k, P):
    e = k.e
    QX = P.get('qx', '')
    P['chunk_barrier'](0)
    for _, f in P['ss_reads'](0) + P['w_reads'](0) + P['ss_reads'](1): f()
    k.wait(vm=[('x', 0)], lg=[('ss', 0)])
    for _, f in P['xform'](0): f()
    k.wait(lg=[('w', 0)])
    for ks in range(32):
        mf = []
        for db in range(4):
            for qb in range(2):
                def m(db=db, qb=qb):
                    acc = P['ACC'] + (db * 2 + qb) * 16
                    wf = P['WF'] + (ks % 2) * 16 + db * 4
                    h = P['H'] + (ks % 2) * 8 + qb * 4
                    c = '0' if ks == 0 else ar(acc, 16)
                    e(f'v_mfma_f32_32x32x16_bf16 {ar(acc, 16)}, {ar(wf, 4)}, {vr(h, 4)}, {c}')
                mf.append(m)
        fx = {}
        st = []
        caps = {}
        if ks + 1 < 32:
            newc = (ks + 1) % 4 == 0
            if newc:
                fx.setdefault(0, []).append((0, lambda: k.wait(vm=[('wq', (ks + 1) // 4), ('x', ks + 1)], lg=[('ss', ks + 1)]), 'wait'))
                if 'B' not in QX: fx.setdefault(0, []).append((6, lambda: e('s_barrier'), 'bar'))
                caps[1] = 4
            else:
                fx.setdefault(0, []).append((0, lambda: k.wait(vm=[('x', ks + 1)], lg=[('ss', ks + 1)]), 'wait'))
            g0 = 1 if newc else 0
            rd = (P['ss_reads'](ks + 2) if ks + 2 < 32 and 'S' not in QX else []) + (P['w_reads'](ks + 1) if 'W' not in QX else [])
            for i, it in enumerate(rd):
                fx.setdefault(g0 + i // 3, []).append((it[0], it[1], 'ds'))
            st = P['xform'](ks + 1) if 'T' not in QX else []
            fx.setdefault(7, []).append((0, lambda: k.wait(lg=[('w', ks + 1)]), 'wait'))
        groups = P['refill'](ks)
        if 'V' in QX: groups = []
        gl = [5, 6, 4, 7, 3, 2][:len(groups)]
        gl.sort()
        for g, grp in zip(gl, groups):
            for it in grp[:-1]:
                fx.setdefault(g - 1, []).append((it[0], it[1], 'end'))
            fx.setdefault(g, []).append((grp[-1][0], grp[-1][1], 'dma'))
        schedule(k, mf, fx, st, caps=caps, last_gap=6, cap=7)


class G256:
    pass


BIAS = 100.0
THRESH = 2.0 ** 90


def gen_attn(opts, tail_cb=None):
    global BIAS
    MEGA = tail_cb is not None
    ONE = opts.get('one', 0)
    SCP = ' sc1' if ONE else ''
    SI = (lambda i: {0: 0, 5: 1}.get(i, -1)) if MEGA else (lambda i: i)
    if opts.get('sthead'):
        SI = lambda i: {0: 0, 1: 3, 2: 4, 3: 5, 4: 6, 5: 7}.get(i, -1)
    BIAS = opts.get('bias', BIAS)
    k = Kern('attn_kernel')
    e = k.e
    sK, sV, sWQ, sWS = 8, 12, 16, 20
    sW, sW4K, sKoff, sVoff, sCnt, sThr, sXb, sT0, sT1, sOb = 32, 33, 34, 35, 36, 37, 38, 39, 40, 41
    sLink = 44
    S = [8, 40]; NEGM = 72; P = [104, 120]; Q = 136; ET = 200
    LS = [208, 209]; L = [210, 211]; TMP = 212
    KR = 216; VR = 224; DK = 228; DV = 232; VL16 = 233; VMD = 234; VLANE = 235
    O = 0; KF = 128; VF = 160
    LDS_K, LDS_V, LDS_MOD = 0, 65536, 131072

    e('s_cmp_ge_u32 s2, 256')
    e('s_cbranch_scc1 attn_end')
    stamp(k, SI(0))
    if ONE:
        gen_prep(opts, k)
        k.label('attn_main')
        e('s_mov_b32 s26, s4')
        e('s_mov_b32 s27, s5')
        srd(k, sWS, 26, 27, WS_SIZE)
    else:
        e(f's_mov_b32 s{sTAG}, 1')
    e(f's_load_dwordx4 s[4:7], s[0:1], {A_K}')
    e(f's_load_dwordx2 s[24:25], s[0:1], {A_WQ}')
    if not ONE:
        e(f's_load_dwordx2 s[26:27], s[0:1], {A_WS}')
    e(f's_load_dwordx2 s[48:49], s[0:1], {A_WO}')
    e(f's_load_dwordx4 s[52:55], s[0:1], {A_W3}')
    e(f's_load_dwordx2 s[50:51], s[0:1], {A_W1}')
    if MEGA:
        e(f's_load_dwordx2 s[60:61], s[0:1], {A_X}')
        e(f's_load_dwordx4 s[56:59], s[0:1], {A_W1}')
        e(f's_load_dwordx2 s[62:63], s[0:1], {A_OUT}')
    e('s_and_b32 s28, s2, 7')
    e('s_lshl_b32 s28, s28, 2')
    e('s_lshr_b32 s29, s2, 3')
    e('s_and_b32 s30, s29, 3')
    e('s_add_u32 s28, s28, s30')
    e('s_lshr_b32 s29, s29, 2')
    e('v_lshrrev_b32 v1, 6, v0')
    e(f'v_and_b32 v{VLANE}, 63, v0')
    e(f'v_readfirstlane_b32 s{sW}, v1')
    e(f'v_lshlrev_b32 v{VL16}, 4, v{VLANE}')
    e(f's_lshl_b32 s{sW4K}, s{sW}, 12')
    e(f'v_lshrrev_b32 v2, 4, v{VLANE}')
    e(f'v_and_b32 v3, 15, v{VLANE}')
    e(f'v_lshrrev_b32 v4, 5, v{VLANE}')
    e(f'v_and_b32 v5, 31, v{VLANE}')
    e('v_lshlrev_b32 v6, 2, v2')
    e('v_xor_b32 v6, v6, v3')
    e('v_lshlrev_b32 v6, 4, v6')
    e(f'v_lshl_add_u32 v{DV}, v2, 8, v6')
    e(f'v_add_u32 v{DV}, s{sW4K}, v{DV}')
    e(f's_lshl_b32 s3, s{sW}, 17')
    e('v_lshl_add_u32 v7, v2, 13, v6')
    e('v_add_u32 v7, s3, v7')
    e('s_waitcnt lgkmcnt(0)')
    if ONE:
        e(f's_mul_i32 s{sTAG}, s{sTAG}, 1664525')
        e(f's_add_u32 s{sTAG}, s{sTAG}, 1013904223')
        signal(k, 8, 46, 0, True, sWS)
        if opts.get('sthead'): stamp(k, 1)
    e('s_lshl_b32 s3, s28, 19')
    e('s_add_u32 s4, s4, s3'); e('s_addc_u32 s5, s5, 0')
    e('s_add_u32 s6, s6, s3'); e('s_addc_u32 s7, s7, 0')
    srd(k, sK, 4, 5, 524288)
    srd(k, sV, 6, 7, 524288)
    e('s_lshl_b32 s3, s28, 8')
    e('s_add_u32 s24, s24, s3'); e('s_addc_u32 s25, s25, 0')
    e(f's_mov_b32 s{sWQ}, s24'); e(f's_and_b32 s{sWQ + 1}, s25, 0xffff')
    e(f's_sub_u32 s{sWQ + 2}, {512 * 8192}, s3'); e(f's_mov_b32 s{sWQ + 3}, 0x00020000')
    srd(k, sWS, 26, 27, WS_SIZE)
    e('s_lshl_b32 s3, s29, 3')
    e(f's_lshl_b32 s{sT0}, s{sW}, 1')
    e(f's_add_u32 s3, s3, s{sT0}')
    e(f's_lshl_b32 s{sXb}, s3, 15')
    e(f's_add_u32 s{sXb}, s{sXb}, {WS_XHAT}')
    e(f's_lshl_b32 s{sOb}, s3, 18')
    e(f's_lshl_b32 s{sT0}, s28, 13')
    e(f's_add_u32 s{sOb}, s{sOb}, s{sT0}')
    e(f's_add_u32 s{sOb}, s{sOb}, {WS_O}')

    XR = 8; H = 136; SS = 152; FT = 184; WRA = 200; WF = 128
    chunk_slot = [LDS_K, LDS_K + 16384, LDS_V, LDS_K + 32768, LDS_K + 49152, LDS_V + 16384, LDS_V + 32768, LDS_V + 49152]

    def wq_dma(c):
        out = []
        for p in range(4):
            g = []
            if p == 0:
                g.append((1, lambda: e(f's_add_u32 m0, s{sW4K}, {chunk_slot[c]}')))
            g.append((1, lambda p=p: e(f's_mov_b32 s{sT0}, {c * 524288 + p * (32768 - 1024)}')))
            g.append((COST['dma'], lambda p=p: e(f'buffer_load_dwordx4 v7, s[{sWQ}:{sWQ + 3}], s{sT0} offen offset:{p * 1024} lds', ('wq', c))))
            out.append(g)
        return out

    def xreg(ks, qb):
        return XR + (((ks // 4) % 4) * 8 + (ks % 4) * 2 + qb) * 4

    def x_load(ks, qb):
        c = ks // 4
        out = []
        so = (sT1, 43)[qb]
        if ks % 4 == 0:
            out.append((1, lambda: e(f's_add_u32 s{so}, s{sXb}, {qb * 32768 + c * 4096}')))
        r = xreg(ks, qb)
        out.append((COST['vload'], lambda: e(f'buffer_load_dwordx4 v[{r}:{r + 3}], v{VL16}, s[{sWS}:{sWS + 3}], s{so} offen offset:{(ks % 4) * 1024}{SCP}', ('x', ks))))
        return out

    def mod_dma():
        e(f's_lshl_b32 s{sT0}, s{sW}, 10')
        e(f's_add_u32 m0, s{sT0}, {LDS_MOD}')
        e(f's_add_u32 s{sT0}, s{sT0}, {WS_MOD1}')
        e(f'buffer_load_dwordx4 v{VL16}, s[{sWS}:{sWS + 3}], s{sT0} offen{SCP} lds', ('wq', 0))
    if ONE:
        NPRE = opts.get('npre1', 8); NPX = opts.get('npx1', 2)

        def wq_first():
            for c in range(NPRE):
                for g in wq_dma(c):
                    for _, f in g: f()
    else:
        mod_dma()
        NPRE = opts.get('npre', 1)
        NPX = opts.get('npx', NPRE)
        for c in range(max(NPRE, NPX)):
            for g in (wq_dma(c) if c < NPRE else []):
                for _, f in g: f()
            for ks in (range(4 * c, 4 * c + 4) if c < NPX else []):
                for qb in range(2):
                    for _, f in x_load(ks, qb): f()
    e('v_lshrrev_b32 v236, 2, v3')
    e(f'v_and_b32 v237, 3, v{VLANE}')
    e('v_and_b32 v238, 1, v2')
    e('v_lshlrev_b32 v238, 5, v238')
    e('v_and_b32 v239, 1, v237')
    e('v_lshl_add_u32 v238, v239, 4, v238')
    e('v_lshrrev_b32 v239, 1, v237')
    e('v_lshl_add_u32 v238, v239, 3, v238')
    e('v_lshl_add_u32 v238, v236, 8, v238')
    for db in range(4):
        e(f'v_xor_b32 v239, {db}, v236')
        e(f'v_lshl_add_u32 v239, v239, 6, v238')
        e(f'v_lshl_add_u32 v{WRA + db}, v4, 11, v239')
        e(f'v_add_u32 v{WRA + 4 + db}, {LDS_V}, v{WRA + db}')
        e(f'v_lshl_add_u32 v{VR + db}, v4, 10, v239')
        e(f'v_add_u32 v{VR + db}, {LDS_V}, v{VR + db}')
    for ks in range(8):
        e(f'v_add_u32 v239, {2 * ks}, v4')
        e('v_xor_b32 v239, v239, v3')
        e('v_lshlrev_b32 v239, 4, v239')
        e(f'v_lshl_add_u32 v{KR + ks}, v5, 8, v239')
    for p in range(4):
        e(f'v_add_u32 v239, {4 * p}, v2')
        e('v_xor_b32 v239, v239, v3')
        e('v_lshlrev_b32 v239, 4, v239')
        e('v_lshl_add_u32 v239, v2, 8, v239')
        e(f'v_add_u32 v{DK + p}, s{sW4K}, v239')
    e(f'v_lshlrev_b32 v{VMD}, 6, v4')
    e(f'v_add_u32 v{VMD}, {LDS_MOD}, v{VMD}')
    e(f's_mov_b32 s{sThr}, {f32(THRESH)}')
    if ONE:
        def paddr():
            e(f'v_min_u32 v236, 47, v{VLANE}')
            e('s_lshl_b32 s3, s29, 4')
            e(f's_add_u32 s3, s3, {128 - 32}')
            e('v_mov_b32 v237, s3')
            e('v_cmp_lt_u32 vcc, 31, v236')
            e('v_cndmask_b32 v237, 0, v237, vcc')
            e('v_add_u32 v236, v236, v237')
            e('v_lshlrev_b32 v236, 2, v236')
        e(f's_mov_b32 s45, {WS_FP}')
        e('s_mov_b32 s47, s48')
        poll(k, 'pp', 236, VLANE, 45, 0, opts, sWS, paddr, wq_first)
        e('s_mov_b32 s48, s47')
        if opts.get('sthead'): stamp(k, 2)
        mod_dma()
        for ks in range(4 * NPX):
            for qb in range(2):
                for _, f in x_load(ks, qb): f()

    def w_reads(ks):
        c = ks // 4
        slot = chunk_slot[c]
        base = WRA + 4 if slot >= LDS_V else WRA
        off0 = (slot % 65536) + (ks % 4) * 16 * 256
        out = []
        for db in range(4):
            for t in range(2):
                r = WF + (ks % 2) * 16 + db * 4 + t * 2
                out.append((COST['ds'], lambda r=r, db=db, t=t: e(f'ds_read_b64_tr_b16 a[{r}:{r + 1}], v{base + db} offset:{off0 + t * 1024}', ('w', ks))))
        return out

    def ss_reads(ks):
        out = []
        for j in range(4):
            r = SS + (ks % 2) * 16 + 4 * j
            out.append((COST['ds'], lambda r=r, j=j: e(f'ds_read_b128 v[{r}:{r + 3}], v{VMD} offset:{ks * 128 + j * 16}', ('ss', ks))))
        return out

    def xform(ks):
        out = []
        sb = SS + (ks % 2) * 16
        for qb in range(2):
            x = xreg(ks, qb)
            for p in range(4):
                t = FT + (qb * 4 + p) * 2
                out.append((1, lambda x=x, p=p, t=t: e(f'v_fma_mix_f32 v{t}, v{x + p}, v{sb + 2 * p}, v{sb + 8 + 2 * p} op_sel_hi:[1,0,0]')))
                out.append((1, lambda x=x, p=p, t=t: e(f'v_fma_mix_f32 v{t + 1}, v{x + p}, v{sb + 2 * p + 1}, v{sb + 8 + 2 * p + 1} op_sel:[1,0,0] op_sel_hi:[1,0,0]')))
                h = H + (ks % 2) * 8 + qb * 4 + p
                out.append((1, lambda t=t, h=h: e(f'v_cvt_pk_bf16_f32 v{h}, v{t}, v{t + 1}')))
        return out

    def chunk_barrier(c):
        stamp(k, SI(1))
        k.wait(vm=[('wq', c)])
        e('s_barrier')
        stamp(k, SI(2))

    def kv_dma(which, tile):
        out = []
        slot = tile % 4
        for p in range(4):
            g = []
            if p == 0:
                g.append((1, lambda: e(f's_add_u32 m0, s{sW4K}, {(LDS_K if which == "K" else LDS_V) + slot * 16384}')))
                g.append((1, lambda: e(f's_mov_b32 s{sT0}, {tile * 16384}')))
            if which == 'K':
                g.append((COST['dma'], lambda p=p: e(f'buffer_load_dwordx4 v{DK + p}, s[{sK}:{sK + 3}], s{sT0} offen offset:{p * 1024} lds', ('K', tile))))
            else:
                g.append((COST['dma'], lambda p=p: e(f'buffer_load_dwordx4 v{DV}, s[{sV}:{sV + 3}], s{sT0} offen offset:{p * 1024} lds', ('V', tile))))
            out.append(g)
        return out

    todo = []
    WL = opts.get('wlead', 0)
    seq = []
    for c in range(NPRE, 8 + WL):
        if c - WL < NPRE + 0 and c < 8 and False:
            pass
    wn = NPRE; xn = NPX
    while wn < 8 or xn < 8:
        if wn < 8 and wn <= xn + WL:
            todo += [(0, g) for g in wq_dma(wn)]; wn += 1
        else:
            for ks in range(4 * xn, 4 * xn + 4):
                todo += [(ks - 16, x_load(ks, 0)), (ks - 16, x_load(ks, 1))]
            xn += 1
    todo += [(4, g) for g in kv_dma('K', 0)] + [(8, g) for g in kv_dma('K', 1)] + [(12, g) for g in kv_dma('V', 0)]
    RATE = opts.get('rate', 4)

    def refill(ks):
        out = []
        while todo and len(out) < RATE and todo[0][0] <= ks:
            out.append(todo.pop(0)[1])
        return out

    gemm256(k, dict(w_reads=w_reads, ss_reads=ss_reads, xform=xform, refill=refill, chunk_barrier=chunk_barrier,
                    ACC=O, WF=WF, H=H, qx=opts.get('qx', '')))
    assert not todo

    cq = LOG2E / math.sqrt(128.0)
    e(f's_mov_b32 s3, {f32(cq)}')
    stamp(k, SI(3))
    k.wait(vm=[('K', 0)])
    e('s_barrier')

    def k_read(blk, ks):
        tile = blk // 2
        off = LDS_K + (tile % 4) * 16384 + (blk % 2) * 8192
        r = KF + 4 * ks
        return lambda: e(f'ds_read_b128 a[{r}:{r + 3}], v{KR + ks} offset:{off}', ('kf', ks))

    def v_read(blk, i):
        u, db, t = i // 8, (i // 2) % 4, i % 2
        tile = blk // 2
        off = (tile % 4) * 16384 + ((blk % 2) * 32 + 16 * u + 8 * t) * 256
        r = VF + (u * 4 + db) * 4 + 2 * t
        return lambda: e(f'ds_read_b64_tr_b16 a[{r}:{r + 1}], v{VR + db} offset:{off}', ('vf', i))

    for ks in range(8):
        k_read(0, ks)()
    for g in kv_dma('K', 2):
        for _, f in g: f()
    def conv(db):
        items = []
        for qb in range(2):
            acc = O + (db * 2 + qb) * 16
            t = 72 + ((db * 2 + qb) % 4) * 16
            items += [(1, lambda i=i, t=t, acc=acc: e(f'v_accvgpr_read_b32 v{t + i}, a{acc + i}')) for i in range(16)]
            items += [(1, lambda i=i, t=t: e(f'v_mul_f32 v{t + i}, s3, v{t + i}')) for i in range(16)]
            items += [(1, lambda i=i, t=t, qb=qb: e(f'v_cvt_pk_bf16_f32 v{Q + (qb * 8 + 2 * db + i // 4) * 4 + i % 4}, v{t + 2 * i}, v{t + 2 * i + 1}')) for i in range(8)]
        return items
    for _, f in conv(0): f()
    for g in kv_dma('V', 1):
        for _, f in g: f()
    NPF = 2 if opts.get('pf', 1) else 0
    RETILE = opts.get('retile', 1)
    sPF = 42
    if NPF:
        for i, (sp, nb) in enumerate(((48, 4096 * 1024), (50, 512 * 3584), (52, 512 * 3584), (54, 1792 * 1024))):
            srd(k, 80 + 4 * i, sp, sp + 1, nb)
        e(f's_lshl_b32 s{sPF}, s2, 12')
        e(f's_lshl_b32 s{sT0}, s{sW}, 10')
        e(f's_add_u32 s{sPF}, s{sPF}, s{sT0}')
        e(f'v_lshrrev_b32 v236, 2, v{VLANE}')
        e(f'v_lshlrev_b32 v236, 6, v236')
        e(f'buffer_load_dword v240, v236, s[92:95], s{sPF} offen', 'pf')

    def qk_mfmas(blk, czero=False, alt=False):
        out = []
        order = [(ks, qb) for qb in range(2) for ks in range(8)] if alt else [(ks, qb) for ks in range(8) for qb in range(2)]
        for ks, qb in order:
            if True:
                def m(ks=ks, qb=qb):
                    d = S[blk % 2] + 16 * qb
                    if ks == 0:
                        c = '0' if czero else vr(NEGM + 16 * qb, 16)
                    else:
                        c = vr(d, 16)
                    e(f'v_mfma_f32_32x32x16_bf16 {vr(d, 16)}, {ar(KF + 4 * ks, 4)}, {vr(Q + (qb * 8 + ks) * 4, 4)}, {c}')
                out.append(m)
        return out

    def pv_mfmas(blk, czero=False):
        out = []
        po = opts.get('pvo', 0)
        if po == 0:
            order = [(u, db, qb) for u in range(2) for db in range(4) for qb in range(2)]
        elif po == 1:
            order = [(u, db, qb) for u in range(2) for qb in range(2) for db in range(4)]
        else:
            order = [(u, db, qb) for db in range(4) for qb in range(2) for u in range(2)]
        for u, db, qb in order:
            if True:
                if True:
                    def m(u=u, db=db, qb=qb):
                        acc = O + (db * 2 + qb) * 16
                        c = '0' if (czero and u == 0) else ar(acc, 16)
                        e(f'v_mfma_f32_32x32x16_bf16 {ar(acc, 16)}, {ar(VF + (u * 4 + db) * 4, 4)}, {vr(P[blk % 2] + (qb * 2 + u) * 4, 4)}, {c}')
                    out.append(m)
        return out

    def softmax_stream(blk):
        sb = S[blk % 2]; pb = P[blk % 2]
        items = []
        pend = []
        n = 0
        for qb in range(2):
            for i in range(8):
                t = ET + (n % 4) * 2
                r = sb + qb * 16 + 2 * i
                a = [(COST['exp'], lambda t=t, r=r: e(f'v_exp_f32 v{t}, v{r}')),
                     (COST['exp'], lambda t=t, r=r: e(f'v_exp_f32 v{t + 1}, v{r + 1}'))]
                if 'E' in opts.get('x', ''):
                    a = [(COST['exp'], lambda t=t, r=r: e(f'v_mov_b32 v{t}, 0')), (COST['exp'], lambda t=t, r=r: e(f'v_mov_b32 v{t + 1}, 0'))]
                if i == 0:
                    c = [(1, lambda t=t, qb=qb: e(f'v_add_f32 v{LS[qb]}, v{t}, v{t + 1}')), None]
                else:
                    c = [(1, lambda t=t, qb=qb: e(f'v_add_f32 v{LS[qb]}, v{LS[qb]}, v{t}')),
                         (1, lambda t=t, qb=qb: e(f'v_add_f32 v{LS[qb]}, v{LS[qb]}, v{t + 1}'))]
                if 'A' in opts.get('x', '') and i > 0:
                    c = [None, None]
                pd = pb + (qb * 2 + i // 4) * 4 + i % 4
                c.append((1, lambda t=t, pd=pd: e(f'v_cvt_pk_bf16_f32 v{pd}, v{t}, v{t + 1}')))
                items.append(a[0])
                if pend and pend[0]: items.append(pend[0])
                items.append(a[1])
                for x in pend[1:]:
                    if x: items.append(x)
                pend = c
                n += 1
        for x in pend:
            if x: items.append(x)
        return items

    stubs = []

    def check_items(blk):
        lab = k.newlabel('slow'); ret = k.newlabel('ret')
        stubs.append((lab, ret, blk % 2))

        def br():
            e(f's_cbranch_vccnz {lab}')
            k.label(ret)
        return [(1, lambda: e(f'v_max_f32 v{TMP}, v{LS[0]}, v{LS[1]}')),
                (1, lambda: e(f'v_cmp_lt_f32 vcc, s{sThr}, v{TMP}')),
                (1, br),
                (1, lambda: e(f'v_add_f32 v{L[0]}, v{L[0]}, v{LS[0]}')),
                (1, lambda: e(f'v_add_f32 v{L[1]}, v{L[1]}, v{LS[1]}'))]

    KFALL = [('kf', i) for i in range(8)]
    VFALL = [('vf', i) for i in range(16)]
    mf = qk_mfmas(0, czero=True)
    k.wait(lg=KFALL)
    for db in range(4):
        fx = {}
        for ks in (2 * db - 1, 2 * db):
            if ks >= 0:
                fx.setdefault(0 if ks < 2 * db else 2, []).append((COST['ds'], k_read(1, ks), 'ds'))
        if db == 3:
            fx.setdefault(3, []).append((COST['ds'], k_read(1, 7), 'ds'))
        schedule(k, mf[4 * db:4 * db + 4], fx, conv(db + 1) if db < 3 else [])
    for qb in range(2):
        sb = S[0] + 16 * qb
        e(f'v_max3_f32 v{TMP}, v{sb}, v{sb + 1}, v{sb + 2}')
        for i in range(3, 15, 2):
            e(f'v_max3_f32 v{TMP}, v{TMP}, v{sb + i}, v{sb + i + 1}')
        e(f'v_max_f32 v{TMP}, v{TMP}, v{sb + 15}')
        e(f'v_mov_b32 v{TMP + 1}, v{TMP}')
        e(f'v_permlane32_swap_b32 v{TMP}, v{TMP + 1}')
        e(f'v_max_f32 v{TMP}, v{TMP}, v{TMP + 1}')
        e(f'v_add_f32 v{TMP}, {f32(BIAS)}, v{TMP}')
        e(f'v_sub_f32 v{NEGM + 16 * qb}, 0, v{TMP}')
        for i in range(1, 16):
            e(f'v_mov_b32 v{NEGM + 16 * qb + i}, v{NEGM + 16 * qb}')
        for i in range(16):
            e(f'v_sub_f32 v{sb + i}, v{sb + i}, v{TMP}')
        e(f'v_mov_b32 v{L[qb]}, 0')
    e(f's_mov_b32 s{sKoff}, {3 * 16384}')
    e(f's_mov_b32 s{sVoff}, {2 * 16384}')
    e(f's_mov_b32 s{sCnt}, 8')

    def step(b, do_qk=True, do_sm=True, do_pv=True, pv_zero=False, do_kread=True, do_dma=True):
        mf = []
        fx = {}
        nq = 0
        X = opts.get('x', '')
        if 'D' in X: do_dma = False
        if 'S' in X: do_sm = False
        if do_qk:
            mf += qk_mfmas(b + 1, alt=opts.get('qko', 0) and do_pv); nq = 16
        if do_pv:
            mf += pv_mfmas(b - 1, czero=pv_zero)
        n = len(mf)
        caps = {}
        full = do_qk and do_pv
        if do_pv and 'L' not in X:
            if do_qk:
                for i in range(16):
                    fx.setdefault(i // opts.get('vper', 2), []).append((COST['ds'], v_read(b - 1, i), 'ds'))
            else:
                for i in range(16):
                    v_read(b - 1, i)()
                k.wait(lg=VFALL)
        bar = b % 2 == 0 and do_kread and 'B' not in X
        gb = 15 if full else 0
        if bar:
            vmn = 8 + (NPF if b >= 2 else NPF // 2)

            def wt():
                t = k.wait_text(lg=VFALL) if full else None
                e(f's_waitcnt vmcnt({vmn})' + (t[9:] if t else ''))
            fx.setdefault(gb, []).append((0, wt, 'wait'))
            fx.setdefault(gb, []).append((6, lambda: e('s_barrier'), 'bar'))
            caps[gb + 1] = opts.get('cap_ab', 3)
            if RETILE and b == 14:
                def hook():
                    e(f's_cmp_le_u32 s{sCnt}, 4')
                    e('s_cbranch_scc1 attn_copy')
                    k.label('attn_copy_ret')
                fx.setdefault(gb + 1, []).append((2, hook, 'dma'))
        elif full:
            fx.setdefault(15, []).append((0, lambda: k.wait(lg=VFALL), 'wait'))
        if do_kread and 'L' not in X:
            for ks in range(8):
                g = (opts.get('kg0', 17) + ks // opts.get('kper', 2)) if full else min(2 * ks + 2, 15)
                fx.setdefault(g, []).append((COST['ds'], k_read(b + 2, ks), 'ds'))
            if full:
                fx.setdefault(n - 1, []).append((0, lambda: k.wait(lg=KFALL), 'wait'))
        if do_dma:
            isK = (b % 2 == 0)
            I = (b + 2) // 2 if isK else (b + 1) // 2
            if isK:
                slot = LDS_K + ((I + 2) % 4) * 16384; so = sKoff
            else:
                slot = LDS_V + ((I + 1) % 4) * 16384; so = sVoff
            gs = opts.get('dgs', [22, 24, 26, 28]) if full else [3, 5, 7, 9]
            fx.setdefault(gs[0] - 1, []).append((1, lambda: e(f's_add_u32 m0, s{sW4K}, {slot}'), 'end'))
            for p in range(4):
                va = DK + p if isK else DV
                sd = sK if isK else sV
                fx.setdefault(gs[p], []).append((COST['dma'], lambda p=p, va=va, sd=sd: e(
                    f'buffer_load_dwordx4 v{va}, s[{sd}:{sd + 3}], s{so} offen offset:{p * 1024} lds', 'kv'), 'dma'))
            fx.setdefault(gs[3] + 1, []).append((1, lambda: e(f's_add_u32 s{so}, s{so}, 16384'), 'end'))
            if NPF and not isK:
                sp = 80 + 4 * ((b // 2) % 4)
                fx.setdefault(30, []).append((COST['dma'], lambda: e(f'buffer_load_dword v240, v236, s[{sp}:{sp + 3}], s{sPF} offen', 'pf'), 'dma'))
                if b % 8 == 7:
                    fx.setdefault(30, []).append((1, lambda: e(f's_add_u32 s{sPF}, s{sPF}, 0x100000'), 'end'))
        st = []
        if do_sm:
            st = softmax_stream(b)
        ck = check_items(b) if do_sm else []
        if do_sm and opts.get('ck2', 1):
            st = st + ck[:2]; ck = ck[2:]
            caps[n - 2] = opts.get('cap_l', 5)
        schedule(k, mf, fx, st, last_gap=n - 2, caps=caps, cap=opts.get('gcap', GAPCAP))
        if do_kread and not full:
            k.wait(lg=KFALL)
        for _, f in ck: f()

    stamp(k, SI(4))
    k.wait(lg=KFALL)
    step(0, do_pv=False)
    step(1, pv_zero=True)
    e('s_branch attn_ent')
    e('.p2align 6')
    k.label('attn_loop')
    for pos in range(8):
        if pos == 2:
            k.label('attn_ent')
        step(8 + pos)
        if pos == 6:
            e(f's_sub_u32 s{sCnt}, s{sCnt}, 1')
            e(f's_cmp_eq_u32 s{sCnt}, 0')
            e('s_cbranch_scc1 attn_tail')
            if opts.get('refresh'):
                mask = sum(1 << c for c in opts['refresh'])
                e(f's_lshr_b32 s{sT0}, {mask}, s{sCnt}')
                e(f's_bitcmp1_b32 s{sT0}, 0')
                e(f's_cselect_b32 s{sThr}, {f32(-1.0)}, s{sThr}')
        if pos == 7 and opts.get('refresh'):
            e(f's_mov_b32 s{sThr}, {f32(THRESH)}')
    e('s_branch attn_loop')
    k.label('attn_tail')
    k.lgq = []
    if opts.get('t23', 0):
        e(f'v_lshrrev_b32 v238, 2, v{VLANE}')
        e('v_lshlrev_b32 v238, 10, v238')
        e(f'v_and_b32 v239, 3, v{VLANE}')
        e('v_lshl_add_u32 v238, v239, 7, v238')
        e(f's_lshr_b32 s{sT0}, s2, 3')
        e(f's_lshl_b32 s{sT0}, s{sT0}, 2')
        e(f's_add_u32 s{sT0}, s{sT0}, s{sW}')
        e(f's_lshl_b32 s{sT0}, s{sT0}, 15')
        e(f's_and_b32 s{sT1}, s2, 1')
        e(f's_lshl_b32 s{sT1}, s{sT1}, 9')
        e(f's_add_u32 s{sT0}, s{sT0}, s{sT1}')
        e(f'buffer_load_dword v237, v238, s[80:83], s{sT0} offen', 'pf')
        e(f's_add_u32 s{sT0}, s{sT0}, 16384')
        e(f'buffer_load_dword v239, v238, s[80:83], s{sT0} offen', 'pf')
    if MEGA:
        e(f's_mov_b32 s{sT0}, {WS_FC}')
        e(f'buffer_load_dwordx4 v[244:247], v{VL16}, s[{sWS}:{sWS + 3}], s{sT0} offen sc1', 'fc')
    step(63, do_qk=False, do_kread=False, do_dma=False)
    step(64, do_qk=False, do_sm=False, do_kread=False, do_dma=False)
    if MEGA:
        e('s_barrier')

    stamp(k, SI(5))
    for qb in range(2):
        e(f'v_mov_b32 v{TMP}, v{L[qb]}')
        e(f'v_permlane32_swap_b32 v{L[qb]}, v{TMP}')
        e(f'v_add_f32 v{L[qb]}, v{L[qb]}, v{TMP}')
        e(f'v_rcp_f32 v{L[qb]}, v{L[qb]}')
    ILV = opts.get('ilv', 0) if MEGA else 0
    ea = []
    if MEGA:
        srd(k, 12, 26, 27, WS_SIZE)
        e('s_lshl_b32 s46, s29, 2')
        e(f's_add_u32 s46, s46, s{sW}')
        e('s_lshl_b32 s46, s46, 7')
        e('s_lshl_b32 s3, s28, 2')
        e('s_add_u32 s46, s46, s3')
        e(f's_add_u32 s46, s46, {WS_FO}')
        e('s_waitcnt vmcnt(0)')
        e('s_mov_b32 s48, 0x40000')
        k.label('attn_fc')
        for i in range(4):
            e(f'v_xor_b32 v{244 + i}, s{sTAG}, v{244 + i}')
        e('v_or_b32 v244, v244, v245')
        e('v_or3_b32 v244, v244, v246, v247')
        e('v_cmp_ne_u32 vcc, 0, v244')
        e('s_cbranch_vccz attn_fc_go')
        e('s_sleep 2')
        e(f's_mov_b32 s{sT0}, {WS_FC}')
        e(f'buffer_load_dwordx4 v[244:247], v{VL16}, s[{sWS}:{sWS + 3}], s{sT0} offen sc1', 'fc')
        e('s_waitcnt vmcnt(0)')
        e('s_sub_u32 s48, s48, 1')
        e('s_cmp_lg_u32 s48, 0')
        e('s_cbranch_scc1 attn_fc')
        k.label('attn_fc_go')
        ea = early_c(k, 15, 'wo', ' sc1')
        ea.pop(0)()
    n = 0
    for qb in range(2):
        e(f's_add_u32 s{sT0}, s{sOb}, {qb * 262144}')
        e(f's_add_u32 s{sT1}, s{sOb}, {qb * 262144 + 4096}')
        for db in range(4):
            for u in range(2):
                acc = O + (db * 2 + qb) * 16 + 8 * u
                t = 8 + (n % 4) * 16; n += 1
                for i in range(8):
                    e(f'v_accvgpr_read_b32 v{t + i}, a{acc + i}')
                for i in range(8):
                    e(f'v_mul_f32 v{t + i}, v{t + i}, v{L[qb]}')
                for i in range(4):
                    e(f'v_cvt_pk_bf16_f32 v{t + 8 + i}, v{t + 2 * i}, v{t + 2 * i + 1}')
                kk = 2 * db + u
                so = sT0 if kk < 4 else sT1
                e(f'buffer_store_dwordx4 v[{t + 8}:{t + 11}], v{VL16}, s[{sWS}:{sWS + 3}], s{so} offen offset:{(kk % 4) * 1024}{opts.get("ost", " sc1")}')
                if ILV and n <= opts.get('ilvn', 15) and ea:
                    ea.pop(0)()
    if MEGA:
        k.early_rest = ea
        tail_cb(k)
        if ONE:
            e('s_cmp_lg_u32 s2, 0')
            e('s_cbranch_scc1 attn_end')
            e(f's_mov_b32 s46, {WS_EPOCH}')
            signal(k, 244, 46, 63)
    else:
        stamp(k, SI(6))
        stamp_flush(k, 7, sWS, 1)
    k.label('attn_end')
    e('s_endpgm')

    if RETILE:
        CP = 192
        k.label('attn_copy')
        e(f's_cmp_le_u32 s{sCnt}, 2')
        e('s_cbranch_scc1 attn_copy_flag' if MEGA else 's_cbranch_scc1 attn_copy_ret')
        e(f's_lshl_b32 s{sT0}, s2, 2')
        e(f's_add_u32 s{sT0}, s{sT0}, s{sW}')
        e(f's_cmp_eq_u32 s{sCnt}, 3')
        e('s_cbranch_scc1 attn_copy_st')
        e(f's_lshl_b32 s{sT1}, s{sT0}, 12')
        for i in range(4):
            e(f'buffer_load_dwordx4 a[{CP + 4 * i}:{CP + 4 * i + 3}], v{VL16}, s[80:83], s{sT1} offen offset:{i * 1024}')
        e(f's_lshl_b32 s{sT1}, s{sT0}, 11')
        for i in range(2):
            e(f'buffer_load_dwordx4 a[{CP + 16 + 4 * i}:{CP + 19 + 4 * i}], v{VL16}, s[92:95], s{sT1} offen offset:{i * 1024}')
        e('s_branch attn_copy_ret')
        k.label('attn_copy_st')
        e(f'v_lshrrev_b32 v238, 3, v{VLANE}')
        e(f'v_and_b32 v239, 7, v{VLANE}')
        e('v_lshlrev_b32 v239, 4, v239')
        SK = opts.get('sk', 0)
        if SK:
            e(f'v_lshrrev_b32 v237, 4, v{VLANE}')
            e('v_lshlrev_b32 v237, 20, v237')
            e(f'v_and_b32 v241, 15, v{VLANE}')
            e('v_lshl_add_u32 v237, v241, 4, v237')
        else:
            e('v_lshl_add_u32 v237, v238, 19, v239')
        e('v_lshl_add_u32 v238, v238, 18, v239')
        e(f's_lshl_b32 s{sT1}, s{sT0}, {10 if SK else 9}')
        e(f's_add_u32 s{sT1}, s{sT1}, {WS_WOT}')
        for i in range(4):
            e(f'buffer_store_dwordx4 a[{CP + 4 * i}:{CP + 4 * i + 3}], v237, s[{sWS}:{sWS + 3}], s{sT1} offen offset:{i * (256 if SK else 128)} sc1')
        e(f's_lshl_b32 s{sT1}, s{sT0}, 8')
        e(f's_add_u32 s{sT1}, s{sT1}, {WS_W2T}')
        for i in range(2):
            e(f'buffer_store_dwordx4 a[{CP + 16 + 4 * i}:{CP + 19 + 4 * i}], v238, s[{sWS}:{sWS + 3}], s{sT1} offen offset:{i * 128} sc1')
        e('s_branch attn_copy_ret')
        if MEGA:
            k.label('attn_copy_flag')
            e(f's_cmp_lg_u32 s{sCnt}, 2')
            e('s_cbranch_scc1 attn_copy_code' if opts.get('ct1', 1) else 's_cbranch_scc1 attn_copy_ret')
            e(f's_cmp_lg_u32 s{sW}, 0')
            e('s_cbranch_scc1 attn_copy_ret')
            e(f's_lshl_b32 s{sT1}, s2, 2')
            e(f's_add_u32 s{sT1}, s{sT1}, {WS_FC}')
            e('v_mov_b32 v238, 0')
            e(f'v_mov_b32 v239, s{sTAG}')
            e('s_mov_b64 exec, 1')
            e(f'buffer_store_dword v239, v238, s[{sWS}:{sWS + 3}], s{sT1} offen sc1')
            e('s_mov_b64 exec, -1')
            e('s_branch attn_copy_ret')
            if opts.get('ct1', 1):
                k.label('attn_copy_code')
                e(f's_lshr_b32 s{sT0}, s2, 3')
                e(f's_lshl_b32 s{sT0}, s{sT0}, 2')
                e(f's_add_u32 s{sT0}, s{sT0}, s{sW}')
                e(f's_cmp_ge_u32 s{sT0}, (attn_end-attn_tail+8191)/8192')
                e('s_cbranch_scc1 attn_copy_ret')
                code_touch(k, 242, 46, sT0, VLANE, 'attn_tail', 'attn_end', back=True)
                e('s_branch attn_copy_ret')

    for lab, ret, par in stubs:
        k.label(lab)
        e(f's_call_b64 s[{sLink}:{sLink + 1}], attn_slow{par}')
        e(f's_branch {ret}')
    for par in range(2):
        k.label(f'attn_slow{par}')
        e('s_nop 15'); e('s_nop 15')
        D0 = [TMP + 2, TMP + 3]
        for qb in range(2):
            sb = S[par] + 16 * qb; sn = S[1 - par] + 16 * qb
            e(f'v_max3_f32 v{TMP}, v{sb}, v{sb + 1}, v{sb + 2}')
            for i in range(3, 15, 2):
                e(f'v_max3_f32 v{TMP}, v{TMP}, v{sb + i}, v{sb + i + 1}')
            e(f'v_max_f32 v{TMP}, v{TMP}, v{sb + 15}')
            e(f'v_mov_b32 v{TMP + 1}, v{TMP}')
            e(f'v_permlane32_swap_b32 v{TMP}, v{TMP + 1}')
            e(f'v_max_f32 v{TMP}, v{TMP}, v{TMP + 1}')
            if opts.get('refresh'):
                e(f'v_mov_b32 v{ET}, v{L[qb]}')
                e(f'v_mov_b32 v{ET + 1}, v{L[qb]}')
                e(f'v_permlane32_swap_b32 v{ET}, v{ET + 1}')
                e(f'v_add_f32 v{ET}, v{ET}, v{ET + 1}')
                e(f'v_log_f32 v{ET}, v{ET}')
                e(f'v_max_f32 v{TMP}, v{TMP}, v{ET}')
            e(f'v_add_f32 v{TMP}, {f32(BIAS)}, v{TMP}')
            e(f'v_max_f32 v{TMP}, 0, v{TMP}')
            e(f'v_ceil_f32 v{TMP}, v{TMP}')
            e(f'v_sub_f32 v{TMP + 1}, 0, v{TMP}')
            e(f'v_cvt_i32_f32 v{D0[qb]}, v{TMP + 1}')
            for i in range(16):
                e(f'v_sub_f32 v{NEGM + 16 * qb + i}, v{NEGM + 16 * qb + i}, v{TMP}')
                e(f'v_sub_f32 v{sb + i}, v{sb + i}, v{TMP}')
                e(f'v_sub_f32 v{sn + i}, v{sn + i}, v{TMP}')
            e(f'v_ldexp_f32 v{L[qb]}, v{L[qb]}, v{D0[qb]}')
            for db in range(4):
                acc = O + (db * 2 + qb) * 16
                for i in range(16):
                    t = ET + i % 8
                    e(f'v_accvgpr_read_b32 v{t}, a{acc + i}')
                    e(f'v_ldexp_f32 v{t}, v{t}, v{D0[qb]}')
                    e(f'v_accvgpr_write_b32 a{acc + i}, v{t}')
        for _, f in softmax_stream(par): f()
        e('s_nop 3')
        e(f's_setpc_b64 s[{sLink}:{sLink + 1}]')
    return k, 'grid=(256,1,1) block=(256,1,1) lds=135168'


sWS_T = 12
WGF = 1
CT2 = 0
sWV_T = 32
X1KEEP = 64


def lane_id(k, v):
    k.e(f'v_mbcnt_lo_u32_b32 v{v}, -1, 0')
    k.e(f'v_mbcnt_hi_u32_b32 v{v}, -1, v{v}')


def signal(k, vt, soff, nyounger, wg=False, sws=12):
    e = k.e
    e(f's_waitcnt vmcnt({nyounger})')
    if wg:
        lab = k.newlabel('nosig')
        e('s_barrier')
        e(f's_cmp_lg_u32 s{sWV_T}, 0')
        e(f's_cbranch_scc1 {lab}')
    e(f'v_mov_b32 v{vt}, 0')
    e(f'v_mov_b32 v{vt + 1}, s{sTAG}')
    e('s_mov_b64 exec, 1')
    e(f'buffer_store_dword v{vt + 1}, v{vt}, s[{sws}:{sws + 3}], s{soff} offen sc1', 'flag')
    e('s_mov_b64 exec, -1')
    if wg:
        k.vmq.pop()
        k.label(lab)


def poll(k, name, vt, vlane, soff, nflags, opts, sws=12, addr=None, between=None):
    e = k.e
    e(f's_cmp_lg_u32 s{sWV_T}, 0')
    e(f's_cbranch_scc1 {name}_go')
    if addr:
        addr()
    else:
        e(f'v_min_u32 v{vt}, {nflags - 1}, v{vlane}')
        e(f'v_lshlrev_b32 v{vt}, 2, v{vt}')
    e('s_mov_b32 s48, 0x40000')
    k.label(f'{name}_poll')
    e(f'buffer_load_dword v{vt + 1}, v{vt}, s[{sws}:{sws + 3}], s{soff} offen sc1', 'poll')
    e('s_waitcnt vmcnt(0)')
    e(f'v_cmp_ne_u32 vcc, s{sTAG}, v{vt + 1}')
    e(f's_cbranch_vccz {name}_go')
    e(f's_sleep {opts.get("sleep", 2)}')
    e('s_sub_u32 s48, s48, 1')
    e('s_cmp_lg_u32 s48, 0')
    e(f's_cbranch_scc1 {name}_poll')
    k.label(f'{name}_go')
    if between:
        between()
    else:
        e('s_waitcnt vmcnt(0)')
    e('s_barrier')


BSLOT = [(0, 32768), (65536, 98304), (16384, 49152), (81920, 114688)]


def early_b(k):
    e = k.e
    items = []

    def setup():
        lane_id(k, 251)
        e('v_lshrrev_b32 v252, 4, v251')
        e('v_and_b32 v253, 15, v251')
        e('v_lshlrev_b32 v250, 2, v252')
        e('v_xor_b32 v250, v250, v253')
        e('v_lshlrev_b32 v250, 4, v250')
        e('v_mul_u32_u24 v252, 3584, v252')
        e('v_add_u32 v250, v250, v252')
        e(f's_and_b32 s54, s{sWV_T}, 1')
        e('s_cmp_eq_u32 s54, 0')
        e('s_cselect_b32 s24, s56, s58')
        e('s_cselect_b32 s25, s57, s59')
        e('s_and_b32 s25, s25, 0xffff')
        e(f's_mov_b32 s26, {512 * 3584}')
        e('s_mov_b32 s27, 0x00020000')
        e(f's_lshr_b32 s54, s{sWV_T}, 1')
        e(f's_mul_i32 s54, s54, {64 * 3584}')
        e('s_lshl_b32 s53, s51, 8')
        e('s_add_u32 s54, s54, s53')
        e(f's_lshl_b32 s53, s{sWV_T}, 15')
        if CT2:
            lab = k.newlabel('nct')
            e('s_lshr_b32 s52, s2, 3')
            e('s_lshl_b32 s52, s52, 2')
            e(f's_add_u32 s52, s52, s{sWV_T}')
            e(f's_cmp_ge_u32 s52, (attn_end-{lab}+8191)/8192')
            e(f's_cbranch_scc1 {lab}')
            code_touch(k, 246, 22, 52, 251, lab, 'attn_end')
            k.vmq.pop()
            k.label(lab)
    items.append(setup)
    for p in range(16):
        def f(p=p):
            e(f's_add_u32 m0, s53, {p * 1024}')
            e(f's_add_u32 s52, s54, {p * 4 * 3584}')
            e('buffer_load_dwordx4 v250, s[24:27], s52 offen lds', ('wq', 0))
        items.append(f)
    return items


def early_c(k, n, which='w2', wa=''):
    e = k.e
    items = []

    def setup():
        lane_id(k, 252)
        e('v_lshrrev_b32 v253, 3, v252')
        e('v_lshlrev_b32 v251, 1, v253')
        e('v_and_b32 v251, 4, v251')
        e('v_and_b32 v252, 7, v252')
        e('v_xor_b32 v251, v251, v252')
        e('v_lshlrev_b32 v251, 4, v251')
        e('v_lshl_add_u32 v251, v253, 7, v251')
        e(f's_lshl_b32 s49, s{sWV_T}, 15')
        e('s_and_b32 s55, s2, 1')
        e('s_lshl_b32 s55, s55, 2')
        e('s_lshr_b32 s47, s2, 6')
        e('s_add_u32 s55, s55, s47')
        e(f's_lshl_b32 s55, s55, {18 if which == "w2" else 19}')
        e(f's_mul_i32 s47, s{sWV_T}, {(28 if which == "w2" else 64) * 2048}')
        e('s_add_u32 s55, s55, s47')
        e(f's_add_u32 s55, s55, {WS_W2T if which == "w2" else WS_WOT}')
    items.append(setup)
    for ks in range(n):
        def f(ks=ks):
            e(f's_add_u32 m0, s49, {ks * 2048}')
            e('s_nop 0')
            e(f'buffer_load_dwordx4 v251, s[{sWS_T}:{sWS_T + 3}], s55 offen{wa} lds', ('g', ks))
            e(f'buffer_load_dwordx4 v251, s[{sWS_T}:{sWS_T + 3}], s55 offen offset:1024{wa} lds', ('g', ks))
            e('s_add_u32 s55, s55, 2048')
        items.append(f)
    return items


def phase_gemm64(k, which, opts, dep, out_flag, keep_x1, sbase, early=None):
    e = k.e
    name = 'pa' if which == 'wo' else 'pc'
    NKS = 256 if which == 'wo' else 112
    KW = NKS // 4
    D = 16 if which == 'wo' else 14
    NIT = KW // D
    WS_XIN = WS_O if which == 'wo' else WS_HH
    sWS, sG = sWS_T, 16
    sWv, sXo, sWo, sT0, sLb, sCnt, sXo1 = sWV_T, 33, 34, 35, 37, 38, 39
    ACC = 8
    XF = 72
    WFr = 200
    VL16, VDW, VWR = 216, 217, 218
    EP = 220
    XA = ' sc1' if dep else ''
    SA = ' sc1' if out_flag else ''
    WA = ' sc1' if opts.get('mega') else ''
    GA_ = ' sc1' if opts.get('one') else ''
    POFF = 16384
    if dep:
        VDW, sWo, sLb = 251, 55, 49
    e('s_bfe_u32 s28, s2, 0x20001')
    e('s_lshl_b32 s28, s28, 3')
    e('s_bfe_u32 s30, s2, 0x30003')
    e('s_add_u32 s28, s28, s30')
    e('s_and_b32 s29, s2, 1')
    e('s_lshl_b32 s29, s29, 2')
    e('s_lshr_b32 s30, s2, 6')
    e('s_add_u32 s29, s29, s30')
    lane_id(k, 2)
    e(f'v_lshlrev_b32 v{VL16}, 4, v2')
    if not dep:
        e('v_lshrrev_b32 v3, 3, v2')
        e('v_and_b32 v4, 7, v2')
        e('v_lshlrev_b32 v5, 1, v3')
        e('v_and_b32 v5, 4, v5')
        e('v_xor_b32 v4, v4, v5')
        e('v_lshlrev_b32 v4, 4, v4')
        e(f'v_lshl_add_u32 v{VDW}, v3, 7, v4')
        e(f's_lshl_b32 s{sLb}, s{sWv}, 15')
    e(f's_mul_i32 s{sXo}, s28, {2 * NKS * 1024}')
    e(f's_mul_i32 s{sT0}, s{sWv}, {KW * 1024}')
    e(f's_add_u32 s{sXo}, s{sXo}, s{sT0}')
    e(f's_add_u32 s{sXo}, s{sXo}, {WS_XIN}')
    e(f's_add_u32 s{sXo1}, s{sXo}, {NKS * 1024}')
    if not dep:
        e(f's_mul_i32 s{sWo}, s{sWv}, {KW * 2048}')
        e(f's_lshl_b32 s{sT0}, s29, {19 if which == "wo" else 18}')
        e(f's_add_u32 s{sWo}, s{sWo}, s{sT0}')
        e(f's_add_u32 s{sWo}, s{sWo}, {WS_WOT if which == "wo" else WS_W2T}')
    e(f's_lshr_b32 s40, s{sWv}, 1')
    e(f's_and_b32 s47, s{sWv}, 1')
    e('s_lshl_b32 s41, s29, 6')
    e('s_lshl_b32 s42, s40, 5')
    e('s_add_u32 s41, s41, s42')
    e('s_lshl_b32 s42, s28, 6')
    e('s_lshl_b32 s43, s47, 5')
    e('s_add_u32 s42, s42, s43')
    e('v_lshrrev_b32 v4, 5, v2')
    e('v_and_b32 v5, 31, v2')
    e('v_add_u32 v6, s42, v5')
    e('v_lshlrev_b32 v6, 10, v6')
    e('v_lshl_add_u32 v6, v4, 4, v6')
    e('s_lshl_b32 s43, s41, 1')
    e('v_add_u32 v6, s43, v6')
    e('s_lshl_b32 s43, s42, 10')
    e('s_lshl_b32 s44, s41, 6')
    e('s_add_u32 s43, s43, s44')
    e(f's_add_u32 s43, s43, {WS_X1}')
    e('v_lshlrev_b32 v7, 5, v4')
    e('s_lshl_b32 s44, s41, 2')
    e(f's_add_u32 s44, s44, {WS_GA if which == "wo" else WS_GB}')
    yield 'setup'
    sp = 60 if which == 'wo' else 62
    srd(k, sG, sp, sp + 1, 2048 * 1024)

    def loads(ks):
        sl = ks % D
        r0 = XF + sl * 8
        return dict(
            m0=lambda: e(f's_add_u32 m0, s{sLb}, {sl * 2048}'),
            w0=lambda: e(f'buffer_load_dwordx4 v{VDW}, s[{sWS}:{sWS + 3}], s{sWo} offen{WA} lds', ('g', ks)),
            w1=lambda: e(f'buffer_load_dwordx4 v{VDW}, s[{sWS}:{sWS + 3}], s{sWo} offen offset:1024{WA} lds', ('g', ks)),
            x0=lambda: e(f'buffer_load_dwordx4 v[{r0}:{r0 + 3}], v{VL16}, s[{sWS}:{sWS + 3}], s{sXo} offen offset:{(ks % 2) * 1024}{XA}{opts.get("xa", "")}', ('g', ks)),
            x1=lambda: e(f'buffer_load_dwordx4 v[{r0 + 4}:{r0 + 7}], v{VL16}, s[{sWS}:{sWS + 3}], s{sXo1} offen offset:{(ks % 2) * 1024}{XA}{opts.get("xa", "")}', ('g', ks)),
            uw=lambda: e(f's_add_u32 s{sWo}, s{sWo}, 2048'),
            ux=lambda: (e(f's_add_u32 s{sXo}, s{sXo}, 2048'), e(f's_add_u32 s{sXo1}, s{sXo1}, 2048')) if ks % 2 == 1 else None)

    def misc_setup():
        e('v_bfe_u32 v3, v2, 2, 2')
        e('v_lshl_add_u32 v1, v4, 3, v3')
        e('v_lshlrev_b32 v1, 7, v1')
        e(f'v_bfe_u32 v{VWR}, v2, 4, 1')
        e(f'v_lshl_add_u32 v1, v{VWR}, 5, v1')
        e(f'v_and_b32 v{VWR}, 1, v2')
        e(f'v_lshl_add_u32 v1, v{VWR}, 4, v1')
        e(f'v_bfe_u32 v{VWR}, v2, 1, 1')
        e(f'v_lshl_add_u32 v1, v{VWR}, 3, v1')
        e(f'v_add_u32 v1, s{sLb}, v1')
        e('v_lshrrev_b32 v3, 1, v3')
        e(f'v_lshl_add_u32 v{VWR}, v3, 6, v1')
        e('v_xor_b32 v3, 1, v3')
        e(f'v_lshl_add_u32 v{VWR + 1}, v3, 6, v1')
        for i in range(64):
            e(f'v_mov_b32 v{ACC + i}, 0')
        e(f's_mov_b32 s{sCnt}, {NIT - 1}')

    for u in range(2):
        e(f'buffer_load_dwordx4 v[{EP + 8 * u}:{EP + 8 * u + 3}], v7, s[{sWS}:{sWS + 3}], s44 offen offset:{64 * u}{GA_}', 'ep')
        e(f'buffer_load_dwordx4 v[{EP + 8 * u + 4}:{EP + 8 * u + 7}], v7, s[{sWS}:{sWS + 3}], s44 offen offset:{64 * u + 16}{GA_}', 'ep')
        if which == 'wo':
            e(f'buffer_load_dwordx4 v[{EP + 16 + 4 * u}:{EP + 19 + 4 * u}], v6, s[{sG}:{sG + 3}], 0 offen offset:{32 * u}', 'ep')
        elif not keep_x1:
            e(f'buffer_load_dwordx4 v[{EP + 16 + 4 * u}:{EP + 19 + 4 * u}], v{VL16}, s[{sWS}:{sWS + 3}], s43 offen offset:{1024 * u}', 'ep')
    if dep:
        NWP = D - 1 if which == 'w2' else 15
        yield 'prefetched'
        misc_setup()
        if which == 'w2':
            e('s_lshr_b32 s45, s28, 1')
            e('s_lshl_b32 s45, s45, 8')
            e(f's_add_u32 s45, s45, {WS_FB}')
        else:
            e('s_lshl_b32 s45, s28, 7')
            e(f's_add_u32 s45, s45, {WS_FO}')
        stamp(k, sbase)
        poll(k, name, 246, 2, 45, (14 if WGF else 56) if which == 'w2' else 32, opts)
        sbase += 1
        stamp(k, sbase)
        for ks in range(D - 1):
            L = loads(ks)
            for nm in (('x0', 'x1', 'ux') if ks < NWP else ('m0', 'x0', 'w0', 'w1', 'x1', 'uw', 'ux')):
                L[nm]()
    else:
        for ks in range(D - 1):
            L = loads(ks)
            for nm in ('m0', 'x0', 'w0', 'w1', 'x1', 'uw', 'ux'):
                L[nm]()
            if ks == 1:
                misc_setup()
        yield 'prefetched'
        stamp(k, sbase)

    def wreads(ks):
        sl = ks % D
        for nb in range(2):
            for t in range(2):
                r = WFr + (ks % 2) * 8 + nb * 4 + t * 2
                e(f'ds_read_b64_tr_b16 v[{r}:{r + 1}], v{VWR + nb} offset:{sl * 2048 + t * 512}', ('wf', ks))

    def kstep(ks, refill, last=False, extra=()):
        sl = ks % D
        L = loads(ks + D - 1) if refill else None
        for i in range(4):
            nb, mb = i // 2, i % 2
            acc = ACC + (nb * 2 + mb) * 16
            if 'M' not in opts.get('z', ''):
                e(f'v_mfma_f32_32x32x16_bf16 {vr(acc, 16)}, {vr(WFr + (ks % 2) * 8 + nb * 4, 4)}, {vr(XF + (sl * 2 + mb) * 4, 4)}, {vr(acc, 16)}')
            if i == 0:
                if not last:
                    k.wait(vm=[('g', ks + 1)])
                    if 'R' not in opts.get('z', ''): wreads(ks + 1)
                if L: L['m0']()
            elif i == 1 and L:
                L['x0'](); L['w0']()
            elif i == 2 and L:
                L['w1'](); L['x1'](); L['uw'](); L['ux']()
            elif i == 3 and not last:
                k.wait(lg=[('wf', ks + 1)])
            if i in (1, 2) and len(extra) >= i:
                extra[i - 1]()

    k.wait(vm=[('g', 0)])
    wreads(0)
    k.wait(lg=[('wf', 0)])
    stamp(k, sbase + 1)
    B0 = 0
    if dep and NIT > 2:
        for ks in range(D):
            kstep(ks, True)
        e(f's_mov_b32 s{sCnt}, {NIT - 2}')
        B0 = D
    k.label(f'{name}_loop')
    for ks in range(B0, B0 + D):
        kstep(ks, True)
    if NIT > 2:
        e(f's_sub_u32 s{sCnt}, s{sCnt}, 1')
        e(f's_cmp_lg_u32 s{sCnt}, 0')
        e(f's_cbranch_scc1 {name}_loop')
    early = list(early or [])
    for ks in range(B0 + D, B0 + 2 * D):
        ex = []
        E0 = opts.get('e0', 1)
        if early and ks == B0 + D + E0:
            ex = [early.pop(0)]
        elif early and ks > B0 + D + E0:
            ex = early[:2]; early = early[2:]
        kstep(ks, ks == B0 + D, last=(ks == B0 + 2 * D - 1), extra=ex)
    assert not early
    stamp(k, sbase + 2)
    e(f'v_add_u32 v3, s{sLb}, v{VL16}')
    for qd in range(16):
        e(f'ds_write_b128 v3, v[{ACC + 4 * qd}:{ACC + 4 * qd + 3}] offset:{POFF + qd * 1024}')
    e('s_waitcnt lgkmcnt(0)')
    e('s_barrier')
    e(f's_lshl_b32 s{sT0}, s{sWv}, 12')
    e(f'v_add_u32 v3, s{sT0}, v{VL16}')
    e(f'v_add_u32 v1, 0x10000, v3')
    RD = 72
    for w in range(4):
        a = 3 if w < 2 else 1
        for h in range(4):
            r = RD + (w * 4 + h) * 4
            e(f'ds_read_b128 v[{r}:{r + 3}], v{a} offset:{POFF + (w % 2) * 32768 + h * 1024}', ('r', w))
    for w in range(1, 4):
        k.wait(lg=[('r', w), ('r', 0)])
        for i in range(16):
            e(f'v_add_f32 v{RD + i}, v{RD + i}, v{RD + w * 16 + i}')
    if out_flag:
        e('s_barrier')
    k.wait(vm=['ep'])
    if which == 'w2' and keep_x1:
        for i in range(8):
            e(f'v_accvgpr_read_b32 v{EP + 16 + i}, a{X1KEEP + i}')
    for i in range(16):
        rbf(k, RD + i, RD + i)
    for i in range(16):
        e(f'v_mul_f32 v{RD + i}, v{RD + i}, v{EP + i}')
    for i in range(16):
        rbf(k, RD + i, RD + i)
    for i in range(16):
        src = EP + 16 + i // 2
        if i % 2 == 0:
            e(f'v_lshlrev_b32 v{RD + 16 + i}, 16, v{src}')
        else:
            e(f'v_and_b32 v{RD + 16 + i}, 0xffff0000, v{src}')
    for i in range(16):
        e(f'v_add_f32 v{RD + i}, v{RD + i}, v{RD + 16 + i}')
    for i in range(8):
        e(f'v_cvt_pk_bf16_f32 v{RD + 32 + i}, v{RD + 2 * i}, v{RD + 2 * i + 1}')
    for u in range(2):
        if which == 'w2':
            e(f'buffer_store_dwordx4 v[{RD + 32 + 4 * u}:{RD + 35 + 4 * u}], v6, s[{sG}:{sG + 3}], 0 offen offset:{32 * u}')
        else:
            e(f'buffer_store_dwordx4 v[{RD + 32 + 4 * u}:{RD + 35 + 4 * u}], v{VL16}, s[{sWS}:{sWS + 3}], s43 offen offset:{1024 * u}{SA}')
    if which == 'wo':
        if keep_x1:
            for i in range(8):
                e(f'v_accvgpr_write_b32 a{X1KEEP + i}, v{RD + 32 + i}')
        for i in range(16):
            src = RD + 32 + i // 2
            if i % 2 == 0:
                e(f'v_lshlrev_b32 v{RD + i}, 16, v{src}')
            else:
                e(f'v_and_b32 v{RD + i}, 0xffff0000, v{src}')
        A, B = RD + 16, RD + 17
        e(f'v_add_f32 v{A}, v{RD}, v{RD + 1}')
        e(f'v_mul_f32 v{B}, v{RD}, v{RD}')
        e(f'v_fmac_f32 v{B}, v{RD + 1}, v{RD + 1}')
        for i in range(2, 16):
            e(f'v_add_f32 v{A}, v{A}, v{RD + i}')
            e(f'v_fmac_f32 v{B}, v{RD + i}, v{RD + i}')
        e(f'v_mov_b32 v{A + 2}, v{A}')
        e(f'v_mov_b32 v{A + 3}, v{B}')
        e(f'v_permlane32_swap_b32 v{A}, v{A + 2}')
        e(f'v_permlane32_swap_b32 v{B}, v{A + 3}')
        e(f'v_add_f32 v{A}, v{A}, v{A + 2}')
        e(f'v_add_f32 v{B}, v{B}, v{A + 3}')
        e('s_lshl_b32 s45, s42, 7')
        e('s_lshl_b32 s46, s41, 3')
        e('s_add_u32 s45, s45, s46')
        e(f's_add_u32 s45, s45, {WS_ST}')
        e('v_lshlrev_b32 v3, 3, v5')
        e('s_mov_b64 exec, 0xffffffff')
        e(f'buffer_store_dwordx2 v[{A}:{A + 1}], v3, s[{sWS}:{sWS + 3}], s45 offen{SA}')
        e('s_mov_b64 exec, -1')
        if out_flag:
            e('s_lshr_b32 s46, s28, 1')
            e('s_lshl_b32 s46, s46, 8')
            e('s_and_b32 s45, s28, 1')
            e(f's_lshl_b32 s45, s45, {5 if WGF else 7}')
            e('s_add_u32 s46, s46, s45')
            e(f's_lshl_b32 s45, s29, {2 if WGF else 4}')
            e('s_add_u32 s46, s46, s45')
            if not WGF:
                e(f's_lshl_b32 s45, s{sWv}, 2')
                e('s_add_u32 s46, s46, s45')
            e(f's_add_u32 s46, s46, {WS_FA}')
    stamp(k, sbase + 3)
    yield 'done'


def phase_ffn1(k, opts, dep, out_flag, sbase, early=None):
    e = k.e
    s1, s3_, sWS = 8, 20, sWS_T
    sW, sT0, sT1, sXb, sWo, sHb, sW4K = sWV_T, 33, 34, 35, 36, 37, 38
    ACC = 0
    XD = 12
    XR = 128
    H = 176
    SS = 184
    FT = 216
    WRA = 224
    VL16, VDW, VMD, VLANE, RS, NM = 232, 233, 234, 235, 236, 237
    T = 238
    WF = 0
    LDS_MOD = 131072
    XA = ' sc1' if dep else ''
    PURE = opts.get('sk', 0)
    if PURE:
        XD = 16; XR = 128
    lane_id(k, VLANE)
    e(f'v_lshlrev_b32 v{VL16}, 4, v{VLANE}')
    e(f'v_lshrrev_b32 v{T + 1}, 4, v{VLANE}')
    e(f'v_and_b32 v{T + 2}, 15, v{VLANE}')
    e(f'v_lshlrev_b32 v{T + 3}, 2, v{T + 1}')
    e(f'v_xor_b32 v{T + 3}, v{T + 3}, v{T + 2}')
    e(f'v_lshlrev_b32 v{T + 3}, 4, v{T + 3}')
    e(f'v_mul_u32_u24 v{T + 4}, 3584, v{T + 1}')
    e(f'v_add_u32 v{VDW}, v{T + 4}, v{T + 3}')
    e(f's_lshl_b32 s{sW4K}, s{sW}, 12')
    e('s_lshl_b32 s3, s50, 2')
    e(f's_add_u32 s3, s3, s{sW}')
    e(f's_lshl_b32 s{sXb}, s3, 15')
    e(f's_add_u32 s{sXb}, s{sXb}, {WS_H2 if PURE else WS_X1}')
    e(f's_mul_i32 s{sHb}, s3, {112 * 1024}')
    e(f's_lshl_b32 s{sT0}, s51, 13')
    e(f's_add_u32 s{sHb}, s{sHb}, s{sT0}')
    e(f's_add_u32 s{sHb}, s{sHb}, {WS_HH}')
    e(f's_mul_i32 s{sWo}, s{sW}, {16 * 3584}')
    e(f's_lshl_b32 s{sT0}, s51, 8')
    e(f's_add_u32 s{sWo}, s{sWo}, s{sT0}')
    e(f'v_and_b32 v{T + 5}, 31, v{VLANE}')
    e(f'v_lshrrev_b32 v{T + 4}, 5, v{VLANE}')
    e(f'v_lshlrev_b32 v{T + 6}, 3, v{T + 5}')
    e(f'v_lshl_add_u32 v{T + 6}, v{T + 4}, 11, v{T + 6}')
    e(f's_lshl_b32 s39, s3, 12')
    e(f's_add_u32 s39, s39, {WS_ST}')
    yield 'setup'
    srd(k, s1, 56, 57, 512 * 3584)
    srd(k, s3_, 58, 59, 512 * 3584)

    def w_dma(c):
        out = []
        for mat, sd in enumerate((s1, s3_)):
            for p in range(4):
                g = []
                if p == 0:
                    g.append((1, lambda mat=mat: e(f's_add_u32 m0, s{sW4K}, {BSLOT[c % 4][mat]}')))
                g.append((1, lambda p=p: e(f's_add_u32 s{sT0}, s{sWo}, {c * 64 * 3584 + p * (4 * 3584 - 1024)}')))
                g.append((COST['dma'], lambda p=p, sd=sd: e(f'buffer_load_dwordx4 v{VDW}, s[{sd}:{sd + 3}], s{sT0} offen offset:{p * 1024} lds', ('wq', c))))
                out.append(g)
        return out

    def xreg(ks):
        return XR + (ks % XD) * 4

    def x_load(ks):
        r = xreg(ks)
        g = []
        if ks % 4 == 0:
            g.append((1, lambda: e(f's_add_u32 s{sT1}, s{sXb}, {(ks // 4) * 4096}')))
        g.append((COST['vload'], lambda: e(f'buffer_load_dwordx4 v[{r}:{r + 3}], v{VL16}, s[{sWS}:{sWS + 3}], s{sT1} offen offset:{(ks % 4) * 1024}{XA}', ('x', ks))))
        return g

    def addr_setup():
        e(f'v_lshrrev_b32 v{T + 7}, 2, v{T + 2}')
        e(f'v_and_b32 v{T + 8}, 1, v{T + 1}')
        e(f'v_lshlrev_b32 v{T + 8}, 5, v{T + 8}')
        e(f'v_and_b32 v{T + 9}, 1, v{VLANE}')
        e(f'v_lshl_add_u32 v{T + 8}, v{T + 9}, 4, v{T + 8}')
        e(f'v_bfe_u32 v{T + 9}, v{VLANE}, 1, 1')
        e(f'v_lshl_add_u32 v{T + 8}, v{T + 9}, 3, v{T + 8}')
        e(f'v_lshl_add_u32 v{T + 8}, v{T + 7}, 8, v{T + 8}')
        e(f'v_lshl_add_u32 v{T + 8}, v{T + 4}, 11, v{T + 8}')
        for db in range(4):
            e(f'v_xor_b32 v{T + 9}, {db}, v{T + 7}')
            e(f'v_lshl_add_u32 v{WRA + db}, v{T + 9}, 6, v{T + 8}')
            e(f'v_add_u32 v{WRA + 4 + db}, 0x10000, v{WRA + db}')
        e(f'v_lshlrev_b32 v{VMD}, 6, v{T + 4}')
        e(f'v_add_u32 v{VMD}, {LDS_MOD}, v{VMD}')

    ST = SS

    def st_loads():
        for j in range(8):
            e(f'buffer_load_dwordx2 v[{ST + 2 * j}:{ST + 1 + 2 * j}], v{T + 6}, s[{sWS}:{sWS + 3}], s39 offen offset:{256 * j}{XA}', 'st')

    def mod_dma():
        e(f's_lshl_b32 s{sT0}, s{sW}, 10')
        e(f's_add_u32 m0, s{sT0}, {LDS_MOD}')
        e(f's_add_u32 s{sT0}, s{sT0}, {WS_MOD2}')
        e(f'buffer_load_dwordx4 v{VL16}, s[{sWS}:{sWS + 3}], s{sT0} offen{" sc1" if opts.get("one") else ""} lds', ('wq', 0))

    if dep:
        NPRE = opts.get('npre4f', 4); NPX = 3
        WB = opts.get('wbefore', 4)
        mod_dma()
        for c in range(2, min(NPRE, WB)):
            for g in w_dma(c):
                for _, f in g: f()
        yield 'prefetched'
        addr_setup()
        e('s_lshl_b32 s45, s50, 8')
        e(f's_add_u32 s45, s45, {WS_FA}')
        stamp(k, sbase)
        poll(k, 'pb', T + 10, VLANE, 45, 16 if WGF else 64, opts)
        sbase += 1
        stamp(k, sbase)
        st_loads()
        for ks in range(4 * NPX):
            for _, f in x_load(ks): f()
        for c in range(max(2, WB), NPRE):
            for g in w_dma(c):
                for _, f in g: f()
    else:
        NPRE = opts.get('npre4', 1); NPX = NPRE
        if not PURE:
            st_loads()
            mod_dma()
        for _, f in x_load(0): f()
        for g in w_dma(0):
            for _, f in g: f()
        for ks in range(1, 4):
            for _, f in x_load(ks): f()
        for c in range(1, NPRE):
            for g in w_dma(c):
                for _, f in g: f()
            for ks in range(4 * c, 4 * c + 4):
                for _, f in x_load(ks): f()
        yield 'prefetched'
        addr_setup()
        stamp(k, sbase)
    if not PURE:
        k.wait(vm=['st'])
        e(f's_mov_b32 s3, {f32(1.0 / 512)}')
        r = ST
        for j in range(1, 8):
            e(f'v_add_f32 v{r}, v{r}, v{r + 2 * j}')
            e(f'v_add_f32 v{r + 1}, v{r + 1}, v{r + 2 * j + 1}')
        e(f'v_mov_b32 v{r + 2}, v{r}')
        e(f'v_mov_b32 v{r + 3}, v{r + 1}')
        e(f'v_permlane32_swap_b32 v{r}, v{r + 2}')
        e(f'v_permlane32_swap_b32 v{r + 1}, v{r + 3}')
        e(f'v_add_f32 v{r}, v{r}, v{r + 2}')
        e(f'v_add_f32 v{r + 1}, v{r + 1}, v{r + 3}')
        e(f'v_mul_f32 v{r}, s3, v{r}')
        e(f'v_mul_f32 v{r + 1}, s3, v{r + 1}')
        e(f'v_fma_f32 v{r + 1}, -v{r}, v{r}, v{r + 1}')
        e(f'v_max_f32 v{r + 1}, 0, v{r + 1}')
        rbf(k, r, r)
        rbf(k, r + 1, r + 1)
        e(f'v_add_f32 v{r + 1}, {f32(1e-5)}, v{r + 1}')
        rbf(k, r + 1, r + 1)
        e(f'v_sqrt_f32 v{r + 1}, v{r + 1}')
        rbf(k, r + 1, r + 1)
        e(f'v_rcp_f32 v{RS}, v{r + 1}')
        e(f'v_mul_f32 v{NM}, v{r}, v{RS}')
        e(f'v_sub_f32 v{NM}, 0, v{NM}')

    def w_reads(ks):
        out = []
        c = ks // 4
        for nb in range(8):
            mat, db = nb // 4, nb % 4
            off = BSLOT[c % 4][mat] + (ks % 4) * 4096
            base = WRA + (4 if off >= 65536 else 0) + db
            for t in range(2):
                r = WF + (ks % 2) * 32 + nb * 4 + t * 2
                out.append((COST['ds'], lambda r=r, base=base, t=t, off=off: e(f'ds_read_b64_tr_b16 a[{r}:{r + 1}], v{base} offset:{off % 65536 + t * 1024}', ('w', ks))))
        return out

    def ss_reads(ks):
        out = []
        for j in range(4):
            r = SS + (ks % 2) * 16 + 4 * j
            out.append((COST['ds'], lambda r=r, j=j: e(f'ds_read_b128 v[{r}:{r + 3}], v{VMD} offset:{ks * 128 + j * 16}', ('ss', ks))))
        return out

    def xform(ks):
        out = []
        sb = SS + (ks % 2) * 16
        x = xreg(ks)
        for p in range(4):
            t = FT + p * 2
            out.append((1, lambda p=p, t=t: e(f'v_lshlrev_b32 v{t}, 16, v{x + p}')))
            out.append((1, lambda p=p, t=t: e(f'v_and_b32 v{t + 1}, 0xffff0000, v{x + p}')))
            out.append((1, lambda t=t: e(f'v_fma_f32 v{t}, v{t}, v{RS}, v{NM}')))
            out.append((1, lambda t=t: e(f'v_fma_f32 v{t + 1}, v{t + 1}, v{RS}, v{NM}')))
            out.append((1, lambda p=p, t=t: e(f'v_fma_f32 v{t}, v{t}, v{sb + 2 * p}, v{sb + 8 + 2 * p}')))
            out.append((1, lambda p=p, t=t: e(f'v_fma_f32 v{t + 1}, v{t + 1}, v{sb + 2 * p + 1}, v{sb + 8 + 2 * p + 1}')))
            h = H + (ks % 2) * 4 + p
            out.append((1, lambda t=t, h=h: e(f'v_cvt_pk_bf16_f32 v{h}, v{t}, v{t + 1}')))
        return out

    todo = []
    wn = NPRE; xn = NPX
    while wn < 8 or xn < 8:
        if wn < 8 and wn <= xn:
            first = 0 if wn < 4 else 4 * (wn - 3)
            todo += [(first, g) for g in w_dma(wn)]; wn += 1
        else:
            for ks in range(4 * xn, 4 * xn + 4):
                todo.append((ks - XD + (1 if PURE else 0), x_load(ks)))
            xn += 1
    RATE = opts.get('rate4', 5)
    early = list(early or [])

    k.wait(vm=[('wq', 0)])
    e('s_barrier')
    stamp(k, sbase + 1)
    if PURE:
        for _, f in w_reads(0): f()
        k.wait(vm=[('x', 0)], lg=[('w', 0)])
    else:
        for _, f in ss_reads(0) + w_reads(0) + ss_reads(1): f()
        k.wait(vm=[('x', 0)], lg=[('ss', 0)])
        for _, f in xform(0): f()
        k.wait(lg=[('w', 0)])
    for ks in range(32):
        mf = []
        for nb in range(8):
            def m(nb=nb):
                acc = ACC + nb * 16
                c = '0' if ks == 0 else vr(acc, 16)
                b = xreg(ks) if PURE else H + (ks % 2) * 4
                e(f'v_mfma_f32_32x32x16_bf16 {vr(acc, 16)}, {ar(WF + (ks % 2) * 32 + nb * 4, 4)}, {vr(b, 4)}, {c}')
            mf.append(m)
        fx = {}; st = []; caps = {}
        if ks + 1 < 32:
            newc = (ks + 1) % 4 == 0
            vmw = ([] if PURE else [('x', ks + 1)]) + ([('wq', (ks + 1) // 4)] if newc else [])
            fx.setdefault(0, []).append((0, lambda: k.wait(vm=vmw, lg=[('ss', ks + 1)]), 'wait'))
            if newc:
                fx.setdefault(0, []).append((6, lambda: e('s_barrier'), 'bar'))
            g0 = 1 if newc else 0
            rd = (ss_reads(ks + 2) if ks + 2 < 32 and not PURE else []) + w_reads(ks + 1)
            for i, it in enumerate(rd):
                fx.setdefault(g0 + i // 4, []).append((it[0], it[1], 'ds'))
            st = [] if PURE else xform(ks + 1)
            fx.setdefault(7, []).append((0, lambda: k.wait(vm=[('x', ks + 1)] if PURE else [], lg=[('w', ks + 1)]), 'wait'))
        groups = []
        while todo and len(groups) < RATE and todo[0][0] <= ks:
            groups.append(todo.pop(0)[1])
        if early and ks == 22:
            groups.append([(8, early.pop(0))])
        elif early and ks >= 24 and len(early) > 5:
            groups.append([(6, early.pop(0))])
        gl = sorted([6, 7, 5, 4, 3, 2][:len(groups)])
        for g, grp in zip(gl, groups):
            for it in grp[:-1]:
                fx.setdefault(g - 1, []).append((it[0], it[1], 'end'))
            fx.setdefault(g, []).append((grp[-1][0], grp[-1][1], 'dma'))
        schedule(k, mf, fx, st, caps=caps, last_gap=6, cap=8)
    assert not todo
    if out_flag:
        e('s_barrier')
        for f in early: f()
    stamp(k, sbase + 2)
    e(f's_mov_b32 s3, {f32(-LOG2E)}')
    e(f's_add_u32 s{sT0}, s{sHb}, 4096')
    n = 0
    for j in range(4):
        for u in range(2):
            g = ACC + j * 16 + 8 * u
            up = ACC + (4 + j) * 16 + 8 * u
            t = XR + (n % 4) * 12; n += 1
            for i in range(8):
                e(f'v_mul_f32 v{t + i}, s3, v{g + i}')
            for i in range(8):
                e(f'v_exp_f32 v{t + i}, v{t + i}')
            for i in range(8):
                e(f'v_add_f32 v{t + i}, 1.0, v{t + i}')
            for i in range(8):
                e(f'v_rcp_f32 v{t + i}, v{t + i}')
            for i in range(8):
                e(f'v_mul_f32 v{g + i}, v{g + i}, v{t + i}')
            for i in range(8):
                e(f'v_mul_f32 v{g + i}, v{g + i}, v{up + i}')
            for i in range(4):
                e(f'v_cvt_pk_bf16_f32 v{t + 8 + i}, v{g + 2 * i}, v{g + 2 * i + 1}')
            kk = 2 * j + u
            so = sHb if kk < 4 else sT0
            e(f'buffer_store_dwordx4 v[{t + 8}:{t + 11}], v{VL16}, s[{sWS}:{sWS + 3}], s{so} offen offset:{(kk % 4) * 1024} sc1')
    if out_flag:
        e('s_lshl_b32 s46, s50, 8')
        e(f's_lshl_b32 s45, s51, {2 if WGF else 4}')
        e('s_add_u32 s46, s46, s45')
        if not WGF:
            e(f's_lshl_b32 s45, s{sW}, 2')
            e('s_add_u32 s46, s46, s45')
        e(f's_add_u32 s46, s46, {WS_FB}')
    stamp(k, sbase + 3)
    yield 'done'


def gen_oproj_sk(opts):
    k = Kern('oproj_kernel')
    e = k.e
    sWS = 12
    sW, sT0, sT1, sXb, sWo, sPb, sW4K = 32, 33, 34, 35, 36, 37, 38
    ACC = 0
    XD = 32
    XR = 64
    WRA = 192
    VL16, VDW, VLANE = 200, 201, 202
    T = 204
    WF = 0
    NSL = 8
    e('s_cmp_ge_u32 s2, 256')
    e('s_cbranch_scc1 oproj_end')
    stamp(k, 0)
    e(f's_load_dwordx2 s[6:7], s[0:1], {A_WS}')
    e(f'v_lshrrev_b32 v{T}, 6, v0')
    e(f'v_and_b32 v{VLANE}, 63, v0')
    e(f'v_readfirstlane_b32 s{sW}, v{T}')
    e(f'v_lshlrev_b32 v{VL16}, 4, v{VLANE}')
    e('s_bfe_u32 s28, s2, 0x20001')
    e('s_and_b32 s29, s2, 1')
    e('s_lshl_b32 s29, s29, 3')
    e('s_bfe_u32 s3, s2, 0x30003')
    e('s_add_u32 s29, s29, s3')
    e('s_lshr_b32 s30, s2, 6')
    e(f'v_lshrrev_b32 v{T + 1}, 4, v{VLANE}')
    e(f'v_and_b32 v{T + 2}, 15, v{VLANE}')
    e(f'v_lshlrev_b32 v{T + 3}, 2, v{T + 1}')
    e(f'v_xor_b32 v{T + 3}, v{T + 3}, v{T + 2}')
    e(f'v_lshlrev_b32 v{T + 3}, 4, v{T + 3}')
    e(f'v_lshl_add_u32 v{VDW}, v{T + 1}, 8, v{T + 3}')
    e(f's_lshl_b32 s{sW4K}, s{sW}, 12')
    e('s_lshl_b32 s3, s29, 2')
    e(f's_add_u32 s3, s3, s{sW}')
    e(f's_lshl_b32 s{sXb}, s3, 18')
    e(f's_lshl_b32 s{sT0}, s28, 16')
    e(f's_add_u32 s{sXb}, s{sXb}, s{sT0}')
    e(f's_add_u32 s{sXb}, s{sXb}, {WS_O}')
    e(f's_lshl_b32 s{sWo}, s30, 20')
    e(f's_lshl_b32 s{sT0}, s28, 18')
    e(f's_add_u32 s{sWo}, s{sWo}, s{sT0}')
    e(f's_add_u32 s{sWo}, s{sWo}, s{sW4K}')
    e(f's_add_u32 s{sWo}, s{sWo}, {WS_WOT}')
    e(f's_lshl_b32 s{sPb}, s28, 22')
    e(f's_lshl_b32 s{sT0}, s3, 16')
    e(f's_add_u32 s{sPb}, s{sPb}, s{sT0}')
    e(f's_lshl_b32 s{sT0}, s30, 14')
    e(f's_add_u32 s{sPb}, s{sPb}, s{sT0}')
    e(f's_add_u32 s{sPb}, s{sPb}, {WS_P}')
    e('s_waitcnt lgkmcnt(0)')
    srd(k, sWS, 6, 7, WS_SIZE)

    def w_dma(c):
        out = []
        for p in range(4):
            g = []
            if p == 0:
                g.append((1, lambda: e(f's_add_u32 m0, s{sW4K}, {(c % NSL) * 16384}')))
                g.append((1, lambda: e(f's_add_u32 s{sT0}, s{sWo}, {c * 16384}')))
            g.append((COST['dma'], lambda p=p: e(f'buffer_load_dwordx4 v{VDW}, s[{sWS}:{sWS + 3}], s{sT0} offen offset:{p * 1024} lds', ('wq', c))))
            out.append(g)
        return out

    def xreg(ks):
        return XR + (ks % XD) * 4

    def x_load(ks):
        r = xreg(ks)
        g = []
        if ks % 4 == 0:
            g.append((1, lambda: e(f's_add_u32 s{sT1}, s{sXb}, {(ks // 4) * 4096}')))
        g.append((COST['vload'], lambda: e(f'buffer_load_dwordx4 v[{r}:{r + 3}], v{VL16}, s[{sWS}:{sWS + 3}], s{sT1} offen offset:{(ks % 4) * 1024}', ('x', ks))))
        return g

    NPRE = opts.get('npre3', 4)
    for c in range(NPRE):
        for g in w_dma(c):
            for _, f in g: f()
        for ks in range(4 * c, 4 * c + 4):
            for _, f in x_load(ks): f()
        if c == 0:
            e(f'v_lshrrev_b32 v{T + 4}, 5, v{VLANE}')
            e(f'v_lshrrev_b32 v{T + 7}, 2, v{T + 2}')
            e(f'v_and_b32 v{T + 8}, 1, v{T + 1}')
            e(f'v_lshlrev_b32 v{T + 8}, 5, v{T + 8}')
            e(f'v_and_b32 v{T + 9}, 1, v{VLANE}')
            e(f'v_lshl_add_u32 v{T + 8}, v{T + 9}, 4, v{T + 8}')
            e(f'v_bfe_u32 v{T + 9}, v{VLANE}, 1, 1')
            e(f'v_lshl_add_u32 v{T + 8}, v{T + 9}, 3, v{T + 8}')
            e(f'v_lshl_add_u32 v{T + 8}, v{T + 7}, 8, v{T + 8}')
            e(f'v_lshl_add_u32 v{T + 8}, v{T + 4}, 11, v{T + 8}')
            for db in range(4):
                e(f'v_xor_b32 v{T + 9}, {db}, v{T + 7}')
                e(f'v_lshl_add_u32 v{WRA + db}, v{T + 9}, 6, v{T + 8}')
                e(f'v_add_u32 v{WRA + 4 + db}, 0x10000, v{WRA + db}')

    def w_reads(ks):
        out = []
        off = ((ks // 4) % NSL) * 16384 + (ks % 4) * 4096
        for db in range(4):
            base = WRA + (4 if off >= 65536 else 0) + db
            for t in range(2):
                r = WF + (ks % 2) * 16 + db * 4 + t * 2
                out.append(lambda r=r, base=base, t=t: e(f'ds_read_b64_tr_b16 a[{r}:{r + 1}], v{base} offset:{off % 65536 + t * 1024}', ('w', ks)))
        return out

    todo = []
    for c in range(NPRE, 16):
        first = 0 if c < NSL else 4 * (c - NSL + 1)
        todo += [(first, g) for g in w_dma(c)]
        for ks in range(4 * c, 4 * c + 4):
            todo.append((ks - XD + 1, x_load(ks)))
    RATE = opts.get('rate3', 3)
    stamp(k, 1)
    k.wait(vm=[('wq', 0)])
    e('s_barrier')
    for f in w_reads(0): f()
    k.wait(vm=[('x', 0)], lg=[('w', 0)])
    stamp(k, 2)
    for ks in range(64):
        mf = []
        for nb in range(4):
            def m(nb=nb):
                acc = ACC + nb * 16
                c = '0' if ks == 0 else vr(acc, 16)
                e(f'v_mfma_f32_32x32x16_bf16 {vr(acc, 16)}, {ar(WF + (ks % 2) * 16 + nb * 4, 4)}, {vr(xreg(ks), 4)}, {c}')
            mf.append(m)
        fx = {}
        if ks + 1 < 64:
            newc = (ks + 1) % 4 == 0
            if newc:
                fx.setdefault(0, []).append((0, lambda: k.wait(vm=[('wq', (ks + 1) // 4)]), 'wait'))
                fx.setdefault(0, []).append((1, lambda: e('s_barrier'), 'bar'))
            for i, f in enumerate(w_reads(ks + 1)):
                fx.setdefault(i // 4, []).append((1, f, 'ds'))
            fx.setdefault(3, []).append((0, lambda: k.wait(vm=[('x', ks + 1)], lg=[('w', ks + 1)]), 'wait'))
        groups = []
        while todo and len(groups) < RATE and todo[0][0] <= ks:
            groups.append(todo.pop(0)[1])
        for g, grp in zip([2, 3, 3][:len(groups)] if len(groups) < 3 else [1, 2, 3], groups):
            for it in grp[:-1]:
                fx.setdefault(g if g == 3 and len(groups) == 2 and False else g - 1, []).append((it[0], it[1], 'end'))
            fx.setdefault(g, []).append((grp[-1][0], grp[-1][1], 'dma'))
        schedule(k, mf, fx, [])
    assert not todo
    stamp(k, 3)
    for nb in range(4):
        e(f's_add_u32 s{sT0}, s{sPb}, {nb * 4096}')
        for q in range(4):
            e(f'buffer_store_dwordx4 v[{ACC + nb * 16 + 4 * q}:{ACC + nb * 16 + 4 * q + 3}], v{VL16}, s[{sWS}:{sWS + 3}], s{sT0} offen offset:{q * 1024}{opts.get("pst", " sc1")}')
    stamp(k, 4)
    if STAMP:
        e(f's_lshl_b32 s100, s{sW}, 6')
        e('v_mov_b32 v0, s100')
    stamp_flush(k, 5, sWS, 2)
    k.label('oproj_end')
    e('s_endpgm')
    return k, 'grid=(256,1,1) block=(256,1,1) lds=131072'


def gen_red(opts):
    k = Kern('red_kernel')
    e = k.e
    sWS, sX = 12, 16
    e('s_cmp_ge_u32 s2, 256')
    e('s_cbranch_scc1 red_end')
    stamp(k, 0)
    e(f's_load_dwordx2 s[6:7], s[0:1], {A_WS}')
    e(f's_load_dwordx2 s[4:5], s[0:1], {A_X}')
    e('v_and_b32 v1, 7, v0')
    e('v_lshrrev_b32 v2, 3, v0')
    e('v_lshlrev_b32 v3, 11, v2')
    e('v_lshl_add_u32 v3, v1, 4, v3')
    e('s_lshr_b32 s28, s2, 2')
    e('s_and_b32 s29, s2, 3')
    e('s_lshl_b32 s30, s28, 16')
    e('s_lshl_b32 s31, s29, 7')
    e('s_add_u32 s30, s30, s31')
    e(f's_add_u32 s30, s30, {WS_P}')
    e('s_lshl_b32 s33, s2, 13')
    e('v_lshlrev_b32 v4, 10, v1')
    e('v_lshl_add_u32 v4, v2, 5, v4')
    e('v_lshlrev_b32 v5, 6, v2')
    e('v_lshlrev_b32 v6, 7, v2')
    e('v_lshlrev_b32 v7, 10, v2')
    e('v_lshl_add_u32 v7, v1, 4, v7')
    e('s_lshl_b32 s34, s28, 15')
    e('s_add_u32 s34, s34, s31')
    e(f's_add_u32 s35, s34, {WS_H2}')
    e(f's_add_u32 s34, s34, {WS_X1}')
    e('s_waitcnt lgkmcnt(0)')
    srd(k, sWS, 6, 7, WS_SIZE)
    srd(k, sX, 4, 5, 2048 * 1024)
    PR = 16
    for sp in range(4):
        for hh in range(2):
            for q in range(2):
                r = PR + sp * 16 + hh * 8 + q * 4
                e(f'buffer_load_dwordx4 v[{r}:{r + 3}], v3, s[{sWS}:{sWS + 3}], s30 offen offset:{q * 1024 + hh * 512}', ('p', sp))
        if sp < 3:
            e('s_add_u32 s30, s30, 0x400000')
    GA = 80; XX = 96; MD = 104
    e(f's_mov_b32 s36, {WS_GA}')
    e(f's_mov_b32 s37, {WS_MOD2}')
    for j in range(4):
        e(f'buffer_load_dwordx4 v[{GA + 4 * j}:{GA + 4 * j + 3}], v5, s[{sWS}:{sWS + 3}], s36 offen offset:{16 * j}', 'g')
    for j in range(2):
        e(f'buffer_load_dwordx4 v[{XX + 4 * j}:{XX + 4 * j + 3}], v4, s[{sX}:{sX + 3}], s33 offen offset:{16 * j}', 'g')
    for j in range(8):
        e(f'buffer_load_dwordx4 v[{MD + 4 * j}:{MD + 4 * j + 3}], v6, s[{sWS}:{sWS + 3}], s37 offen offset:{16 * j}', 'md')
    stamp(k, 1)
    for sp in range(1, 4):
        k.wait(vm=[('p', sp), ('p', 0)])
        for i in range(16):
            e(f'v_add_f32 v{PR + i}, v{PR + i}, v{PR + sp * 16 + i}')
    k.wait(vm=['g'])
    U = 32
    for i in range(16):
        rbf(k, PR + i, PR + i)
    for i in range(16):
        e(f'v_mul_f32 v{PR + i}, v{PR + i}, v{GA + i}')
    for i in range(16):
        rbf(k, PR + i, PR + i)
    for i in range(16):
        if i % 2 == 0:
            e(f'v_lshlrev_b32 v{U + i}, 16, v{XX + i // 2}')
        else:
            e(f'v_and_b32 v{U + i}, 0xffff0000, v{XX + i // 2}')
    for i in range(16):
        e(f'v_add_f32 v{PR + i}, v{PR + i}, v{U + i}')
    for i in range(8):
        e(f'v_cvt_pk_bf16_f32 v{U + i}, v{PR + 2 * i}, v{PR + 2 * i + 1}')
    for hh in range(2):
        e(f'buffer_store_dwordx4 v[{U + 4 * hh}:{U + 4 * hh + 3}], v7, s[{sWS}:{sWS + 3}], s34 offen offset:{512 * hh}')
    for i in range(16):
        rbf(k, PR + i, PR + i)
    A, B, C2, D2 = 48, 49, 50, 51
    e(f'v_add_f32 v{A}, v{PR}, v{PR + 1}')
    e(f'v_mul_f32 v{B}, v{PR}, v{PR}')
    e(f'v_fmac_f32 v{B}, v{PR + 1}, v{PR + 1}')
    for i in range(2, 16):
        e(f'v_add_f32 v{A}, v{A}, v{PR + i}')
        e(f'v_fmac_f32 v{B}, v{PR + i}, v{PR + i}')
    e(f'v_add_f32_dpp v{C2}, v{A}, v{A} row_ror:8 row_mask:0xf bank_mask:0xf')
    e(f'v_add_f32_dpp v{D2}, v{B}, v{B} row_ror:8 row_mask:0xf bank_mask:0xf')
    for sw in ('v_permlane16_swap_b32', 'v_permlane32_swap_b32'):
        e(f'v_mov_b32 v{A}, v{C2}')
        e(f'v_mov_b32 v{B}, v{D2}')
        e(f'{sw} v{A}, v{C2}')
        e(f'{sw} v{B}, v{D2}')
        e(f'v_add_f32 v{C2}, v{A}, v{C2}')
        e(f'v_add_f32 v{D2}, v{B}, v{D2}')
    e('v_lshrrev_b32 v8, 6, v0')
    e('v_lshlrev_b32 v9, 5, v1')
    e('v_lshl_add_u32 v8, v8, 3, v9')
    e(f'ds_write_b64 v8, v[{C2}:{D2}]')
    e('s_waitcnt lgkmcnt(0)')
    e('s_barrier')
    e('ds_read_b128 v[52:55], v9')
    e('ds_read_b128 v[56:59], v9 offset:16')
    e('s_waitcnt lgkmcnt(0)')
    e('v_add_f32 v52, v52, v54')
    e('v_add_f32 v53, v53, v55')
    e('v_add_f32 v56, v56, v58')
    e('v_add_f32 v57, v57, v59')
    e('v_add_f32 v52, v52, v56')
    e('v_add_f32 v53, v53, v57')
    e(f's_mov_b32 s3, {f32(1.0 / 512)}')
    e('v_mul_f32 v52, s3, v52')
    e('v_mul_f32 v53, s3, v53')
    e('v_fma_f32 v53, -v52, v52, v53')
    e('v_max_f32 v53, 0, v53')
    rbf(k, 52, 52)
    rbf(k, 53, 53)
    e(f'v_add_f32 v53, {f32(1e-5)}, v53')
    rbf(k, 53, 53)
    e('v_sqrt_f32 v53, v53')
    rbf(k, 53, 53)
    e('v_rcp_f32 v53, v53')
    k.wait(vm=['md'])
    for i in range(16):
        e(f'v_sub_f32 v{PR + i}, v{PR + i}, v52')
    for i in range(16):
        rbf(k, PR + i, PR + i)
    for i in range(16):
        e(f'v_mul_f32 v{PR + i}, v{PR + i}, v53')
    for i in range(16):
        rbf(k, PR + i, PR + i)
    for i in range(16):
        e(f'v_mul_f32 v{PR + i}, v{PR + i}, v{MD + (i // 8) * 16 + i % 8}')
    for i in range(16):
        rbf(k, PR + i, PR + i)
    for i in range(16):
        e(f'v_add_f32 v{PR + i}, v{PR + i}, v{MD + (i // 8) * 16 + 8 + i % 8}')
    for i in range(8):
        e(f'v_cvt_pk_bf16_f32 v{60 + i}, v{PR + 2 * i}, v{PR + 2 * i + 1}')
    for hh in range(2):
        e(f'buffer_store_dwordx4 v[{60 + 4 * hh}:{63 + 4 * hh}], v7, s[{sWS}:{sWS + 3}], s35 offen offset:{512 * hh}')
    stamp(k, 2)
    stamp_flush(k, 3, sWS, 3)
    k.label('red_end')
    e('s_endpgm')
    return k, 'grid=(256,1,1) block=(256,1,1) lds=512'


def run_until(gen, tag):
    for t in gen:
        if t == tag:
            return
    raise RuntimeError('phase tag not reached: ' + tag)


def gen_tail(name, phases, opts, kidx, k=None):
    mega = k is not None
    wa = ' sc1' if mega else ''
    if not mega:
        k = Kern(name)
    e = k.e
    if not mega:
        e('s_cmp_ge_u32 s2, 256')
        e(f's_cbranch_scc1 {name}_end')
    if 'B' in phases:
        if opts.get('bbal', 1):
            e('s_and_b32 s50, s2, 3')
            e('s_mul_i32 s50, s50, 28')
            e('s_lshr_b32 s3, s2, 3')
            e('s_add_u32 s50, s50, s3')
            e('s_lshr_b32 s51, s50, 3')
            e('s_cmp_ge_u32 s3, 28')
            e('s_cselect_b32 s51, 14, s51')
            e('s_and_b32 s50, s50, 7')
            e('s_bfe_u32 s3, s2, 0x10002')
            e('s_lshl_b32 s3, s3, 3')
            e('s_add_u32 s50, s50, s3')
        else:
            e('s_bfe_u32 s51, s2, 0x20001')
            e('s_lshr_b32 s3, s2, 6')
            e('s_lshl_b32 s3, s3, 2')
            e('s_add_u32 s51, s51, s3')
            e('s_and_b32 s50, s2, 1')
            e('s_lshl_b32 s50, s50, 3')
            e('s_bfe_u32 s3, s2, 0x30003')
            e('s_add_u32 s50, s50, s3')
        if phases == 'B':
            e('s_cmp_ge_u32 s51, 14')
            e(f's_cbranch_scc1 {name}_end')
    if mega:
        signal(k, 244, 46, 0)
        if not opts.get('sthead'): stamp(k, 2)
        for f in k.early_rest: f()
    else:
        stamp(k, 0)
        e(f's_mov_b32 s{sTAG}, 1')
        e(f's_load_dwordx2 s[6:7], s[0:1], {A_WS}')
        if 'A' in phases:
            e(f's_load_dwordx2 s[60:61], s[0:1], {A_X}')
        if 'B' in phases:
            e(f's_load_dwordx4 s[56:59], s[0:1], {A_W1}')
        if 'C' in phases:
            e(f's_load_dwordx2 s[62:63], s[0:1], {A_OUT}')
        e('v_lshrrev_b32 v1, 6, v0')
        e(f'v_readfirstlane_b32 s{sWV_T}, v1')
    keep = 'A' in phases and 'C' in phases
    first = not mega
    pending_flag = False
    sb = 3 if mega else 1
    if opts.get('sthead'): sb = 100
    for pi, ph in enumerate(phases):
        dep = pi > 0 or mega
        out_flag = pi + 1 < len(phases)
        if ph == 'B' and len(phases) > 1:
            if first:
                e('s_waitcnt lgkmcnt(0)')
                srd(k, sWS_T, 6, 7, WS_SIZE)
                first = False
            e('s_cmp_ge_u32 s51, 14')
            e(f's_cbranch_scc1 {name}_skipb')
        if ph == 'B':
            g = phase_ffn1(k, opts, dep, out_flag, sb, early_c(k, 13, 'w2', wa) if out_flag else None)
        else:
            g = phase_gemm64(k, 'wo' if ph == 'A' else 'w2', opts, dep, out_flag, keep, sb, early_b(k) if out_flag else None)
        run_until(g, 'setup')
        if first:
            e('s_waitcnt lgkmcnt(0)')
            srd(k, sWS_T, 6, 7, WS_SIZE)
            first = False
        if pending_flag:
            signal(k, 244 if ph == 'C' else 252, 46, 0, WGF)
        run_until(g, 'prefetched')
        run_until(g, 'done')
        pending_flag = out_flag
        if ph == 'B' and len(phases) > 1:
            if pi + 1 < len(phases):
                e(f's_branch {name}_joinb')
                k.label(f'{name}_skipb')
                if pi > 0:
                    signal(k, 252, 46, 0, WGF)
                for f in early_c(k, 13, 'w2', wa): f()
                e(f's_mov_b32 s46, {WS_FDUMMY}')
                k.label(f'{name}_joinb')
            else:
                e(f's_branch {name}_fin')
                k.label(f'{name}_skipb')
                if pi > 0:
                    signal(k, 252, 46, 0, WGF)
                k.label(f'{name}_fin')
        sb += 5 if dep else 4
    if STAMP:
        e(f's_lshl_b32 s100, s{sWV_T}, 6')
        e('v_mov_b32 v0, s100')
    stamp_flush(k, 8 if opts.get('sthead') else sb, sWS_T, kidx)
    if mega:
        return
    k.label(f'{name}_end')
    e('s_endpgm')
    return k, 'grid=(256,1,1) block=(256,1,1) lds=135168'


def build(opts=None):
    global STAMP, WGF, CT2
    opts = opts or {}
    WGF = opts.get('wgf', 1)
    CT2 = opts.get('ct2', 1) if opts.get('mega') else 0
    STAMP = opts.get('stamp', False)
    for kk in COST:
        if 'c_' + kk in opts: COST[kk] = opts['c_' + kk]
    ks = [gen_prep(opts), gen_attn(opts, (lambda k: gen_tail('tail', opts['mega'], opts, 1, k)) if opts.get('mega') else None)]
    if opts.get('one'):
        ks = ks[1:]
    if opts.get('mega'):
        for i, ph in enumerate([p for p in opts.get('rest', '').split('|') if p]):
            ks.append(gen_tail('tail' + ph.lower() + '_kernel', ph, dict(opts, mega=None), 2 + i))
    elif opts.get('sk', 0):
        ks += [gen_oproj_sk(opts), gen_red(opts)]
        for i, ph in enumerate(opts.get('fuse', 'B|C').split('|')):
            ks.append(gen_tail('tail' + ph.lower() + '_kernel', ph, opts, 4 + i))
    else:
        for i, ph in enumerate(opts.get('fuse', 'A|B|C').split('|')):
            ks.append(gen_tail('tail' + ph.lower() + '_kernel', ph, opts, 2 + i))
    hdr = open('adaLN_cond__mha_block_cached__glu_gated_swiglu__prompt.s.ref').read().split('\n')
    out = []
    for l in hdr:
        if l.startswith('; Override') or l.startswith('; grid=') or '@launch' in l or not l.startswith(';'):
            if not l.startswith(';'):
                break
            continue
        out.append(l)
    out += """; Pipeline (generated by a python script; all matrix products use v_mfma_f32_32x32x16_bf16, f32 accumulation):
;   prep : mod = silu(c) @ w_mod, xhat = layernorm(x) (fp16, MFMA operand order), clears the hand-off flags
;   attn : 256 resident workgroups (one per CU). Per workgroup one (head, 256 query rows): Q projection, flash attention on
;          S^T = K Q^T with a running reference maximum (raised to the true running maximum whenever a block sum exceeds a
;          bound); then phase A: x1 = x + ga * (O @ wo) tile + row sums, phase B: layernorm + modulation + gate/up + SwiGLU
;          tile, phase C: out = x1 + gb * (hh @ w2) tile. Phases hand data over with write-through (sc1) stores, drained
;          before a flag word is set; consumers poll the flags and read the data with sc1 loads.""".split('\n')
    for k, launch in ks:
        for _ in range(1 + opts.get('dup_' + k.name[:5], 0)):
            out.append(f'; @launch kernel={k.name} {launch}')
    out.append('.amdgcn_target "amdgcn-amd-amdhsa--gfx950"')
    out.append('.text')
    for k, _ in ks:
        n = k.fix_hazards(verbose=opts.get('verbose', False))
        print(f'{k.name}: {len(k.ins)} instr, {n} hazard nop states, regs {k.max_regs()}', file=sys.stderr)
        out.append(f'.globl {k.name}')
        out.append('.p2align 8')
        out.append(f'.type {k.name},@function')
        out.append(f'{k.name}:')
        out.append(k.text())
    out.append('code_end:')
    errs = 0
    AP = {'attn_tail': [False, False, False, True], 'attn_copy': [True, True, True, True], 'attn_copy_st': [False, True],
          'attn_copy_ret': [False, False, True, True], 'attn_copy_flag': [False, False, True, True], 'attn_copy_code': [False, True], 'attn_fc_go': 1,
          'pa_loop': 1, 'pa_go': [False, True], 'pb_go': [False, True], 'pc_go': 1, 'pp_go': [False, True]}
    import copy
    if opts.get('one'):
        for extra in ({}, {'prep_ln': 1}, {'prep_none': 1}):
            errs += ks[0][0].verify_path(dict(copy.deepcopy(AP), **extra))
    else:
        errs += ks[0][0].verify_path({})
        errs += ks[0][0].verify_path({'prep_ln': 1})
        errs += ks[1][0].verify_path(AP)
    for k, _ in ks[2:]:
        errs += k.verify_path({'pa_loop': 2, 'pb_go': [False, True], 'pc_go': [False, True]})
        errs += k.verify_path({'pa_loop': 2, 'pb_go': 1, 'pc_go': 1})
        errs += k.verify_path({'pa_loop': 2, 'pb_go': 1, 'pc_go': 1, k.name + '_skipb': 1})
    assert errs == 0 or 'qx' in opts or 'x' in opts, errs
    out.append('.section .rodata,"a"')
    for k, _ in ks:
        out.append('.p2align 6')
        out.append(descriptor(k, 264 if k.name.startswith('tail') else 0))
    return '\n'.join(out)


if __name__ == '__main__':
    dst = sys.argv[1] if len(sys.argv) > 1 else 'adaLN_cond__mha_block_cached__glu_gated_swiglu__prompt.s'
    opts = {'mega': 'ABC'}
    for a in sys.argv[2:]:
        kk, _, v = a.partition('=')
        opts[kk] = eval(v) if v else True
    open(dst, 'w').write(build(opts))
```

```python
import sys
HEAD = '''; @launch grid=({grid},1,1) block=({block},1,1) lds={lds}
.amdgcn_target "amdgcn-amd-amdhsa--gfx950"
.text
.globl ub_kernel
.p2align 8
.type ub_kernel,@function
ub_kernel:
    s_load_dwordx2 s[4:5], s[0:1], 0
    s_load_dwordx2 s[6:7], s[0:1], 8
    s_waitcnt lgkmcnt(0)
    s_mov_b32 s8, s4
    s_mov_b32 s9, s5
    s_mov_b32 s10, 0x4000000
    s_mov_b32 s11, 0x00020000
    s_mov_b32 s12, s6
    s_mov_b32 s13, s7
    s_mov_b32 s14, 0x100000
    s_mov_b32 s15, 0x00020000
    v_lshlrev_b32 v1, 4, v0
    s_lshl_b32 s3, s2, 16
    v_add_u32 v1, s3, v1
'''
TAIL = '''
    s_memtime s[20:21]
    s_memrealtime s[22:23]
    s_waitcnt lgkmcnt(0)
    s_sub_u32 s20, s20, s16
    s_sub_u32 s22, s22, s18
    v_mov_b32 v4, s20
    v_mov_b32 v5, s22
    v_mov_b32 v6, 0
    v_mov_b32 v7, 0
    s_lshl_b32 s3, s2, 4
    v_mov_b32 v2, s3
    v_cmp_eq_u32 vcc, 0, v0
    s_and_saveexec_b64 s[24:25], vcc
    s_cbranch_execz Lend
    buffer_store_dwordx4 v[4:7], v2, s[12:15], 0 offen
    s_waitcnt vmcnt(0)
Lend:
    s_endpgm
.section .rodata,"a"
.p2align 6
.amdhsa_kernel ub_kernel
  .amdhsa_next_free_vgpr {nfv}
  .amdhsa_next_free_sgpr 102
  .amdhsa_accum_offset {acc}
  .amdhsa_group_segment_fixed_size 0
  .amdhsa_kernarg_size 16
  .amdhsa_user_sgpr_count 2
  .amdhsa_user_sgpr_kernarg_segment_ptr 1
  .amdhsa_system_sgpr_workgroup_id_x 1
.end_amdhsa_kernel
'''
def gen(fn, block, fillers, iters=72, nm=32, shape=32, nfv=512, acc=256, lds=131072, grid=256, rand=True):
    s = HEAD.format(grid=grid, block=block, lds=lds)
    for i in range(16):
        s += f'    buffer_load_dwordx4 v[{16+4*i}:{19+4*i}], v1, s[8:11], 0 offen offset:{(i*1024)%4096}\n'
        if i % 4 == 3:
            s += '    v_add_u32 v1, 0x1000, v1\n'
    s += '    s_waitcnt vmcnt(0)\n'
    if not rand:
        for i in range(16, 80): s += f'    v_mov_b32 v{i}, 0\n'
    s += '    v_and_b32 v2, 63, v0\n    v_lshlrev_b32 v2, 4, v2\n'
    s += '    v_lshlrev_b32 v3, 3, v0\n v_and_b32 v3, 0x1ff, v3\n'
    for i in range(80, min(200, acc)): s += f'    v_mov_b32 v{i}, 1.0\n'
    na = 128 if nfv > 256 else 64
    accb = 'a' if nfv > 256 or acc < nfv else 'v'
    for i in range(na): s += f'    v_accvgpr_write_b32 a{i}, 0\n'
    for i in range(16):
        s += f'    ds_write_b128 v2, v[{16+4*i}:{19+4*i}] offset:{i*1024}\n'
    s += '    s_waitcnt lgkmcnt(0)\n    s_barrier\n'
    s += '    s_mov_b32 m0, 0\n'
    s += f'    s_mov_b32 s26, {iters}\n'
    s += '    s_memtime s[16:17]\n    s_memrealtime s[18:19]\n    s_waitcnt lgkmcnt(0)\n'
    s += '.p2align 6\nLloop:\n'
    for i in range(nm):
        a = 16 + 4 * (i % 8); b = 48 + 4 * ((i // 2) % 8)
        if shape == 32:
            d = 16 * (i % (na // 16))
            s += f'    v_mfma_f32_32x32x16_bf16 a[{d}:{d+15}], v[{a}:{a+3}], v[{b}:{b+3}], a[{d}:{d+15}]\n'
        elif shape == 16:
            d = 4 * (i % (na // 4))
            s += f'    v_mfma_f32_16x16x32_bf16 a[{d}:{d+3}], v[{a}:{a+3}], v[{b}:{b+3}], a[{d}:{d+3}]\n'
        for f in fillers(i):
            s += '    ' + f + '\n'
    s += '    s_sub_u32 s26, s26, 1\n    s_cmp_lg_u32 s26, 0\n    s_cbranch_scc1 Lloop\n'
    s += '    s_waitcnt vmcnt(0) lgkmcnt(0)\n'
    s += TAIL.format(nfv=nfv, acc=acc)
    open(fn, 'w').write(s)

def F(nexp=0, nadd=0, ncvt=0, nb128=0, ntr=0, dma_every=0, wait=True, npk=0):
    cnt = [0]
    def f(i):
        out = []
        for j in range(nexp):
            r = 80 + (cnt[0] % 32); cnt[0] += 1
            out.append(f'v_exp_f32 v{r}, v{r+32}')
        for j in range(nadd):
            r = 144 + (j % 4) + 4 * (i % 2)
            out.append(f'v_add_f32 v{r}, v{r}, v{112 + (i*3+j) % 32}')
        for j in range(npk):
            r = 144 + 2*(j % 4) + 8 * (i % 2)
            out.append(f'v_pk_add_f32 v[{r}:{r+1}], v[{r}:{r+1}], v[{112 + 2*((i*3+j) % 16)}:{113 + 2*((i*3+j) % 16)}]')
        for j in range(ncvt):
            r = 160 + (i * 2 + j) % 16
            out.append(f'v_cvt_pk_bf16_f32 v{r}, v{112 + (2*i) % 32}, v{113 + (2*i) % 32}')
        nb = nb128 if isinstance(nb128, int) else (1 if (i % int(round(1/nb128))) == 0 else 0)
        for j in range(nb):
            r = 176 + 4 * ((i + j) % 4)
            out.append(f'ds_read_b128 v[{r}:{r+3}], v2 offset:{((i*2+j) % 16) * 1024}')
        nt = ntr if isinstance(ntr, int) else (1 if (i % int(round(1/ntr))) == 0 else 0)
        for j in range(nt):
            r = 192 + 2 * ((i * 2 + j) % 4)
            out.append(f'ds_read_b64_tr_b16 v[{r}:{r+1}], v3 offset:{((i*2+j) % 32) * 512}')
        if dma_every and i % dma_every == dma_every - 1:
            out.append(f'buffer_load_dwordx4 v1, s[8:11], 0 offen offset:{(i // dma_every % 4) * 1024} lds')
        if wait and (nb or nt) and i % 4 == 3:
            out.append('s_waitcnt lgkmcnt(4)')
        if dma_every and i == 31:
            out.append('s_waitcnt vmcnt(4)')
        return out
    return f

if __name__ == '__main__':
    gen('m_bare32.s', 256, F())
    gen('m_bare16.s', 256, F(), nm=64, shape=16)
    gen('m_bare32_z.s', 256, F(), rand=False)
    gen('m_e1a1.s', 256, F(nexp=1, nadd=1, ncvt=1))
    gen('m_e1a2c1.s', 256, F(nexp=1, nadd=2, ncvt=1))
    gen('m_e1a3c1.s', 256, F(nexp=1, nadd=3, ncvt=1))
    gen('m_e2a2.s', 256, F(nexp=2, nadd=2))
    gen('m_e2a1c1.s', 256, F(nexp=2, nadd=1, ncvt=1))
    gen('m_full.s', 256, F(nexp=1, nadd=1, ncvt=1, nb128=0.5, ntr=0.5, dma_every=8))
    gen('m_full_nodma.s', 256, F(nexp=1, nadd=1, ncvt=1, nb128=0.5, ntr=0.5))
    gen('m_dma8.s', 256, F(dma_every=8))
    gen('m_dma4.s', 256, F(dma_every=4))
    gen('m_a6.s', 256, F(nadd=6))
    gen('m_a8.s', 256, F(nadd=8))
    gen('m_a8_w8.s', 512, F(nadd=8), nfv=256, acc=192 , iters=36)
    gen('m_a6_w8.s', 512, F(nadd=6), nfv=256, acc=192 , iters=36)
    gen('m_a12_w8.s', 512, F(nadd=12), nfv=256, acc=192 , iters=36)
    gen('m_pk3.s', 256, F(npk=3))
    gen('m16_e1.s', 256, lambda i: (['v_exp_f32 v80, v112'] if i % 2 == 0 else ['v_add_f32 v144, v144, v113', 'v_cvt_pk_bf16_f32 v160, v112, v113']), nm=64, shape=16)
```

```python
from gen1 import HEAD, TAIL
def gen(fn, body, block=256, iters=72, nfv=512, acc=256, lds=131072, grid=256, zero_regs=(), sparse_regs=()):
    s = HEAD.format(grid=grid, block=block, lds=lds)
    for i in range(16):
        s += f'    buffer_load_dwordx4 v[{16+4*i}:{19+4*i}], v1, s[8:11], 0 offen offset:{(i*1024)%4096}\n'
        if i % 4 == 3:
            s += '    v_add_u32 v1, 0x1000, v1\n'
    s += '    s_waitcnt vmcnt(0)\n'
    s += '    v_and_b32 v2, 63, v0\n    v_lshlrev_b32 v2, 4, v2\n'
    s += '    v_lshlrev_b32 v3, 3, v0\n v_and_b32 v3, 0x1ff, v3\n'
    for i in range(16):
        s += f'    ds_write_b128 v2, v[{16+4*i}:{19+4*i}] offset:{i*1024}\n'
    for i in range(80, min(256, acc)): s += f'    v_mov_b32 v{i}, v{16 + i % 64}\n'
    for i in zero_regs: s += f'    v_mov_b32 v{i}, 0\n'
    for i in range(nfv - acc): s += f'    v_accvgpr_write_b32 a{i}, 0\n'
    s += '    s_waitcnt lgkmcnt(0)\n    s_barrier\n'
    s += '    s_mov_b32 m0, 0x8000\n'
    s += f'    s_mov_b32 s26, {iters}\n'
    s += '    s_memtime s[16:17]\n    s_memrealtime s[18:19]\n    s_waitcnt lgkmcnt(0)\n'
    s += '.p2align 6\nLloop:\n'
    for l in body: s += '    ' + l + '\n'
    s += '    s_sub_u32 s26, s26, 1\n    s_cmp_lg_u32 s26, 0\n    s_cbranch_scc1 Lloop\n'
    s += '    s_waitcnt vmcnt(0) lgkmcnt(0)\n'
    s += TAIL.format(nfv=nfv, acc=acc)
    open(fn, 'w').write(s)

def interleave(mfmas, fillers):
    out = []; n = len(mfmas); m = len(fillers); k = 0
    for i, mf in enumerate(mfmas):
        out.append(mf)
        tgt = (i + 1) * m // n
        while k < tgt:
            out.append(fillers[k]); k += 1
    return out

def step32(pzero=True, lds=True, valu=True, dma=True, addsum=True):
    mf = []
    for ks in range(8):
        for qb in range(2):
            d = 80 + 16 * qb
            c = f'v[{144+16*qb}:{159+16*qb}]' if ks == 0 else f'v[{d}:{d+15}]'
            mf.append(f'v_mfma_f32_32x32x16_bf16 v[{d}:{d+15}], v[{16+4*ks}:{19+4*ks}], v[{48+4*ks}:{51+4*ks}], {c}')
    for ks in range(2):
        for db in range(4):
            for qb in range(2):
                d = 16 * (db * 2 + qb)
                v = 192 + 4 * (ks * 4 + db)
                p = 176 + 4 * (qb * 2 + ks)
                mf.append(f'v_mfma_f32_32x32x16_bf16 a[{d}:{d+15}], v[{v}:{v+3}], v[{p}:{p+3}], a[{d}:{d+15}]')
    fl = []
    for i in range(16):
        if valu:
            fl.append(f'v_exp_f32 v{224+(2*i)%8}, v{112+2*i}')
            fl.append(f'v_exp_f32 v{225+(2*i)%8}, v{113+2*i}')
            if addsum:
                fl.append(f'v_add_f32 v{232+(i%2)}, v{232+(i%2)}, v{224+(2*i+4)%8}')
                fl.append(f'v_add_f32 v{234+(i%2)}, v{234+(i%2)}, v{225+(2*i+4)%8}')
            fl.append(f'v_cvt_pk_bf16_f32 v{236+i%4}, v{224+(2*i+4)%8}, v{225+(2*i+4)%8}')
        if lds:
            if i % 2 == 0:
                fl.append(f'ds_read_b128 v[{240+4*((i//2)%2)}:{243+4*((i//2)%2)}], v2 offset:{(i//2)*1024}')
            fl.append(f'ds_read_b64_tr_b16 v[{248+2*(i%4)}:{249+2*(i%4)}], v3 offset:{i*512}')
        if dma and i % 4 == 3:
            fl.append(f'buffer_load_dwordx4 v1, s[8:11], 0 offen offset:{(i//4)*1024} lds')
    if dma: fl.append('s_waitcnt vmcnt(4)')
    return interleave(mf, fl)

def step16(pzero=True, lds=True, valu=True, dma=True, addsum=True, mfmasum=False):
    mf = []
    for kb in range(2):
        for ks in range(4):
            for qb in range(4):
                d = 80 + 4 * (kb * 4 + qb)
                c = f'v[{144+4*qb}:{147+4*qb}]' if ks == 0 else f'v[{d}:{d+3}]'
                a = 16 + 4 * (kb * 4 + ks); b = 48 + 4 * ((qb * 4 + ks) % 8)
                mf.append(f'v_mfma_f32_16x16x32_bf16 v[{d}:{d+3}], v[{a}:{a+3}], v[{b}:{b+3}], {c}')
    for db in range(8):
        for qb in range(4):
            d = 4 * (db * 4 + qb)
            v = 192 + 4 * db
            p = 176 + 4 * qb
            mf.append(f'v_mfma_f32_16x16x32_bf16 a[{d}:{d+3}], v[{v}:{v+3}], v[{p}:{p+3}], a[{d}:{d+3}]')
    if mfmasum:
        for qb in range(4):
            p = 176 + 4 * qb
            mf.append(f'v_mfma_f32_16x16x32_bf16 a[{128+4*qb}:{131+4*qb}], v[{160}:{163}], v[{p}:{p+3}], a[{128+4*qb}:{131+4*qb}]')
    fl = []
    for i in range(16):
        if valu:
            fl.append(f'v_exp_f32 v{224+(2*i)%8}, v{112+2*i}')
            fl.append(f'v_exp_f32 v{225+(2*i)%8}, v{113+2*i}')
            if addsum:
                fl.append(f'v_add_f32 v{232+(i%2)}, v{232+(i%2)}, v{224+(2*i+4)%8}')
                fl.append(f'v_add_f32 v{234+(i%2)}, v{234+(i%2)}, v{225+(2*i+4)%8}')
            fl.append(f'v_cvt_pk_bf16_f32 v{236+i%4}, v{224+(2*i+4)%8}, v{225+(2*i+4)%8}')
        if lds:
            if i % 2 == 0:
                fl.append(f'ds_read_b128 v[{240+4*((i//2)%2)}:{243+4*((i//2)%2)}], v2 offset:{(i//2)*1024}')
            fl.append(f'ds_read_b64_tr_b16 v[{248+2*(i%4)}:{249+2*(i%4)}], v3 offset:{i*512}')
        if dma and i % 4 == 3:
            fl.append(f'buffer_load_dwordx4 v1, s[8:11], 0 offen offset:{(i//4)*1024} lds')
    if dma: fl.append('s_waitcnt vmcnt(4)')
    return interleave(mf, fl)

P = range(176, 192)
gen('a32_rand.s', step32())
gen('a32_pz.s', step32(), zero_regs=P)
gen('a32_pz_nolds.s', step32(lds=False), zero_regs=P)
gen('a32_pz_novalu.s', step32(valu=False), zero_regs=P)
gen('a32_pz_bare.s', step32(valu=False, lds=False, dma=False), zero_regs=P)
gen('a16_rand.s', step16())
gen('a16_pz.s', step16(), zero_regs=P)
gen('a16_pz_ms.s', step16(addsum=False, mfmasum=True), zero_regs=P)
gen('a16_rand_ms.s', step16(addsum=False, mfmasum=True))
gen('a16_pz_bare.s', step16(valu=False, lds=False, dma=False), zero_regs=P)
gen('a32_pz_noadd.s', step32(addsum=False), zero_regs=P)
```

```python
from gen2 import gen
P = range(176, 192)
def step(mode):
    mf = []
    if mode == 32:
        for ks in range(8):
            for qb in range(2):
                d = 80 + 16 * qb
                c = f'v[{144+16*qb}:{159+16*qb}]' if ks == 0 else f'v[{d}:{d+15}]'
                mf.append((f'v_mfma_f32_32x32x16_bf16 v[{d}:{d+15}], v[{16+4*ks}:{19+4*ks}], v[{48+4*ks}:{51+4*ks}], {c}', 6))
    else:
        for ks in range(4):
            for kb in range(2):
                for s in range(4):
                    d = 80 + 4 * (kb * 4 + s)
                    c = f'v[{144+4*s}:{147+4*s}]' if ks == 0 else f'v[{d}:{d+3}]'
                    a = 16 + 4 * (kb * 4 + ks); b = 48 + 4 * ((s * 4 + ks) % 8)
                    mf.append((f'v_mfma_f32_16x16x32_bf16 v[{d}:{d+3}], v[{a}:{a+3}], v[{b}:{b+3}], {c}', 2))
    nq = len(mf)
    for ks in range(2):
        for db in range(4):
            for qb in range(2):
                d = 16 * (db * 2 + qb); v = 192 + 4 * (ks * 4 + db); p = 176 + 4 * (qb * 2 + ks)
                mf.append((f'v_mfma_f32_32x32x16_bf16 a[{d}:{d+15}], v[{v}:{v+3}], v[{p}:{p+3}], a[{d}:{d+15}]', 6))
    mem = {}
    for i in range(16):
        g = (i // 2) if mode == 32 else i
        mem.setdefault(g, []).append(f'ds_read_b64_tr_b16 a[{160+2*i}:{161+2*i}], v3 offset:{i*512}')
    for i in range(8):
        mem.setdefault(nq + 1 + i // 2, []).append(f'ds_read_b128 a[{128+4*i}:{131+4*i}], v2 offset:{i*1024}')
    for i in range(4):
        mem.setdefault(nq + 6 + 2 * i, []).insert(0, f'buffer_load_dwordx4 v1, s[8:11], 0 offen offset:{i*1024} lds')
    st = []
    for i in range(16):
        st += [(2, f'v_exp_f32 v{224+(2*i)%8}, v{112+2*i}'), (1, f'v_add_f32 v232, v232, v{224+(2*i+4)%8}'),
               (2, f'v_exp_f32 v{225+(2*i)%8}, v{113+2*i}'), (1, f'v_add_f32 v233, v233, v{225+(2*i+4)%8}'),
               (1, f'v_cvt_pk_bf16_f32 v{236+i%8}, v{224+(2*i+4)%8}, v{225+(2*i+4)%8}')]
        if mode == 16 and i % 2 == 1:
            st.append((1, f'v_permlane16_swap_b32 v{244+(i//2)%2*2}, v{245+(i//2)%2*2}'))
    spare = [max(c - len(mem.get(g, [])) * 1.0 - (1.5 if any('lds' == m[-3:] for m in mem.get(g, [])) else 0), 0) for g, (_, c) in enumerate(mf)]
    tot = sum(x[0] for x in st); ts = sum(spare); out = []; si = 0; done = 0; cum = 0
    for g, (m, c) in enumerate(mf):
        out.append(m); out += mem.get(g, [])
        cum += spare[g]
        while si < len(st) and (done + st[si][0] * 0.5 <= tot * cum / ts or g == len(mf) - 1):
            out.append(st[si][1]); done += st[si][0]; si += 1
    out.append('s_waitcnt vmcnt(4) lgkmcnt(0)')
    return out
gen('q32_pz.s', step(32), zero_regs=P, iters=64)
gen('q16_pz.s', step(16), zero_regs=P, iters=64)
gen('q32_rd.s', step(32), iters=64)
gen('q16_rd.s', step(16), iters=64)
```
